```python
import torch

def _softmax(x, axis=-1):
    return torch.softmax(x, dim=axis)
def _gelu(x):
    return torch.nn.functional.gelu(x, approximate="tanh")
def _silu(x):
    return torch.nn.functional.silu(x)
def _sigmoid(x):
    return torch.sigmoid(x)
def _layernorm(x, axis=-1, eps=1e-5):
    m = x.mean(dim=axis, keepdim=True)
    v = x.var(dim=axis, keepdim=True, unbiased=False)
    return (x - m) / torch.sqrt(v + eps)
def _scatter_add(tgt, idx, src, axis=0):
    return tgt.clone().index_add_(axis, idx, src)
def _segment_sum(src, seg, n):
    out = torch.zeros((n,) + src.shape[1:], dtype=src.dtype)
    return out.index_add_(0, seg, src)
def _pad(x, pw):
    flat = tuple(v for pair in reversed(pw) for v in pair)
    return torch.nn.functional.pad(x, flat)

kernel_name = 'interleave_layers__sliding_block__mixer_channel_mlp__prompt'

def setup_inputs():

    _w = (lambda a: (lambda t: t.to(torch.bfloat16) if t.is_floating_point() else t)(torch.as_tensor(a)))
    def _A_setup():
        B, S, D = 1, 2048, 512
        return {
            "x": _w((lambda *s: torch.randn(*s, dtype=torch.bfloat16) * 0.05)(B, S, D)),
            "wqkv": _w((lambda *s: torch.randn(*s, dtype=torch.bfloat16) * 0.05)(D, 3 * D)),
            "wo": _w((lambda *s: torch.randn(*s, dtype=torch.bfloat16) * 0.05)(D, D)),
        }
    _A_in = _A_setup()

    def _B_setup():
        B, S, D, F = 1, 2048, 512, 1792
        return {
            "x": _w((lambda *s: torch.randn(*s, dtype=torch.bfloat16) * 0.05)(B, S, D)),
            "w1": _w((lambda *s: torch.randn(*s, dtype=torch.bfloat16) * 3.2)(D, F) * (D ** -0.5)),
            "b1": _w((lambda *s: torch.randn(*s, dtype=torch.bfloat16) * 0.8)(F)),
            "w2": _w((lambda *s: torch.randn(*s, dtype=torch.bfloat16) * 0.2)(F, D) * (F ** -0.5)),
            "b2": _w((lambda *s: torch.randn(*s, dtype=torch.bfloat16) * 0.2)(D)),
        }
    _B_in = _B_setup()

    return {
        "A_x": _A_in["x"],
        "A_wqkv": _A_in["wqkv"],
        "A_wo": _A_in["wo"],
        "B_x": _B_in["x"],
        "B_w1": _B_in["w1"],
        "B_b1": _B_in["b1"],
        "B_w2": _B_in["w2"],
        "B_b2": _B_in["b2"],
    }

def reference(A_x, A_wqkv, A_wo, B_x, B_w1, B_b1, B_w2, B_b2):
    def _A_ref(x, wqkv, wo):
        B, S, D = x.shape
        H = 32; Dh = D // H; W = 256
        qkv = (lambda x, *d: x.permute(*d))((x @ wqkv).reshape(B, S, 3, H, Dh), 2, 0, 3, 1, 4)
        q, k, v = qkv[0], qkv[1], qkv[2]
        scores = torch.einsum("bhqd,bhkd->bhqk", q, k) * (Dh ** -0.5)
        idx = torch.arange(S)
        mask = (idx[:, None] - idx[None, :] >= 0) & (idx[:, None] - idx[None, :] < W)
        scores = torch.where(mask[None, None], scores, -1e9)
        p = _softmax(scores, axis=-1)
        o = torch.einsum("bhqk,bhkd->bhqd", p, v)
        return (lambda x, *d: x.permute(*d))(o, 0, 2, 1, 3).reshape(B, S, D) @ wo

    def _B_ref(x, w1, b1, w2, b2):
        y = _layernorm(x, axis=-1)
        h = _gelu(torch.einsum("bsd,df->bsf", y, w1) + b1)
        return torch.einsum("bsf,fd->bsd", h, w2) + b2

    x = A_x
    x = x + _A_ref(_layernorm(x, axis=-1), A_wqkv, A_wo)
    x = x + _B_ref(_layernorm(x, axis=-1), B_w1, B_b1, B_w2, B_b2)
    x = x + _A_ref(_layernorm(x, axis=-1), A_wqkv, A_wo)
    x = x + _B_ref(_layernorm(x, axis=-1), B_w1, B_b1, B_w2, B_b2)
    return x
```

```python
import re

TRANS = ("v_exp_f32", "v_log_f32", "v_rcp_f32", "v_rsq_f32", "v_sqrt_f32", "v_sin_f32", "v_cos_f32",
         "v_rcp_iflag_f32", "v_exp_f16", "v_rcp_f16", "v_rsq_f16")
REG_RE = re.compile(r"(?<![\w.])([vas])(\d+)\b|(?<![\w.])([vas])\[(\d+):(\d+)\]|\b(vcc_lo|vcc_hi|vcc|exec_lo|exec_hi|exec|m0)\b")


def regs_of(tok):
    out = []
    for m in REG_RE.finditer(tok):
        if m.group(1):
            out.append((m.group(1), int(m.group(2))))
        elif m.group(3):
            out += [(m.group(3), i) for i in range(int(m.group(4)), int(m.group(5)) + 1)]
        else:
            n = m.group(6)
            if n.startswith("vcc"):
                out.append(("x", "vcc"))
            elif n.startswith("exec"):
                out.append(("x", "exec"))
            else:
                out.append(("x", "m0"))
    return out


def split_ops(s):
    ops, depth, cur = [], 0, ""
    for ch in s:
        if ch == "[":
            depth += 1
        if ch == "]":
            depth -= 1
        if ch == "," and depth == 0:
            ops.append(cur.strip())
            cur = ""
        else:
            cur += ch
    if cur.strip():
        ops.append(cur.strip())
    return ops


class Ins:
    __slots__ = ("text", "op", "dst", "src", "kind", "passes", "mA", "mB", "mC", "mD", "xdst", "xsrc", "target",
                 "states", "wide", "sdata", "comment", "waitspec", "dpp", "opsel")

    def __init__(self, text, xdst=(), xsrc=(), comment=None):
        self.text = text.strip()
        self.xdst = list(xdst)
        self.xsrc = list(xsrc)
        self.comment = comment
        self.passes = 0
        self.mA = self.mB = self.mC = self.mD = ()
        self.target = None
        self.states = 1
        self.wide = False
        self.sdata = ()
        self.waitspec = None
        self.dpp = False
        self.opsel = False
        t = self.text
        if t.endswith(":"):
            self.op, self.kind, self.dst, self.src, self.states = "label", "label", [], [], 0
            self.target = t[:-1]
            return
        if t.startswith(";") or t.startswith("."):
            self.op, self.kind, self.dst, self.src, self.states = "dir", "dir", [], [], 0
            return
        parts = t.split(None, 1)
        op = parts[0]
        rest = parts[1] if len(parts) > 1 else ""
        self.op = op
        ops = split_ops(rest)
        R = [regs_of(o) for o in ops]
        allr = [r for x in R for r in x]
        base = op
        for suf in ("_e32", "_e64", "_dpp", "_sdwa"):
            if base.endswith(suf):
                base = base[: -len(suf)]
        if op.startswith("v_mfma"):
            self.kind = "mfma"
            self.passes = 8 if "32x32" in op else 4
            self.mD, self.mA, self.mB, self.mC = R[0], R[1], R[2], R[3]
            self.dst, self.src = R[0], R[1] + R[2] + R[3]
        elif op.startswith("buffer_load") or op.startswith("global_load"):
            if re.search(r"\blds\b", rest) or "_lds_" in op:
                self.kind, self.dst, self.src = "dma", [], allr + [("x", "m0")]
            else:
                self.kind, self.dst, self.src = "vload", R[0], [r for x in R[1:] for r in x]
        elif op.startswith("buffer_store") or op.startswith("global_store"):
            self.kind, self.dst, self.src = "vstore", [], allr
            self.sdata = R[0] if op.startswith("buffer") else R[1]
            self.wide = op.endswith("x3") or op.endswith("x4")
        elif op.startswith("buffer_atomic") or op.startswith("global_atomic"):
            self.kind, self.dst, self.src = "vstore", [], allr
        elif op.startswith("ds_read") or op.startswith("ds_bpermute") or op.startswith("ds_permute") or op.startswith("ds_swizzle"):
            self.kind, self.dst, self.src = "dsread", R[0], [r for x in R[1:] for r in x]
        elif op.startswith("ds_"):
            self.kind, self.dst, self.src = "dswrite", [], allr
            self.sdata = [r for x in R[1:] for r in x]
            self.wide = op.endswith("b128") or op.endswith("b96")
        elif op.startswith("s_load") or op.startswith("s_buffer_load") or op in ("s_memtime", "s_memrealtime"):
            self.kind, self.dst, self.src = "smem", R[0], [r for x in R[1:] for r in x]
        elif op.startswith("s_cbranch") or op == "s_branch":
            self.kind, self.dst, self.src = "branch", [], []
            self.target = ops[0]
            if "vcc" in op:
                self.src = [("x", "vcc")]
            if "exec" in op:
                self.src = [("x", "exec")]
        elif op == "s_endpgm":
            self.kind, self.dst, self.src = "end", [], []
        elif op == "s_waitcnt":
            self.kind, self.dst, self.src = "wait", [], []
            vm = re.search(r"vmcnt\((\d+)\)", rest)
            lg = re.search(r"lgkmcnt\((\d+)\)", rest)
            self.waitspec = (int(vm.group(1)) if vm else None, int(lg.group(1)) if lg else None)
        elif op == "s_nop":
            self.kind, self.dst, self.src = "nop", [], []
            self.states = int(ops[0], 0) + 1
        elif op in ("s_barrier", "s_setprio", "s_sleep", "s_sethalt"):
            self.kind, self.dst, self.src = "salu", [], []
        elif op.startswith("s_cmp") or op.startswith("s_bitcmp"):
            self.kind, self.dst, self.src = "salu", [], allr
        elif op.startswith("s_"):
            self.kind, self.dst, self.src = "salu", R[0], [r for x in R[1:] for r in x]
            if "saveexec" in op:
                self.dst = self.dst + [("x", "exec")]
                self.src = self.src + [("x", "exec")]
        elif op.startswith("v_"):
            self.kind = "trans" if base in TRANS else "valu"
            if base.startswith("v_dot"):
                self.kind = "dot"
            if base in ("v_permlane32_swap_b32", "v_permlane16_swap_b32", "v_swap_b32"):
                self.dst, self.src = R[0] + R[1], R[0] + R[1]
            elif base.startswith("v_cmpx"):
                raise ValueError("avoid v_cmpx")
            elif re.match(r"v_(add|sub|subrev|addc|subb|subbrev)_co_", base) or base == "v_mad_u64_u32":
                self.dst, self.src = R[0] + R[1], [r for x in R[2:] for r in x]
            elif base == "v_nop":
                self.dst, self.src = [], []
            else:
                self.dst, self.src = R[0], [r for x in R[1:] for r in x]
                if base.startswith(("v_fmac", "v_mac", "v_dot2c", "v_dot4c", "v_pk_fmac", "v_writelane")):
                    self.src = self.src + R[0]
                if base == "v_cndmask_b32" and len(ops) == 3:
                    self.src = self.src + [("x", "vcc")]
            if re.search(r"\b(quad_perm|row_shl|row_shr|row_ror|row_mirror|row_half_mirror|row_bcast|wave_shl|wave_shr|row_newbcast)", rest):
                self.dpp = True
                self.src = self.src + self.dst
            if "sdwa" in op or "dst_sel" in rest:
                self.opsel = True
                self.src = self.src + self.dst
            if re.search(r"op_sel:\[[01],[01],[01],1\]|op_sel:\[[01],[01],1\]", rest) and not base.startswith("v_pk"):
                self.opsel = True
                self.src = self.src + self.dst
        else:
            raise ValueError("unknown instruction: " + t)

    def is_valu(self):
        return self.kind in ("valu", "trans", "dot")


class Prog:
    def __init__(self):
        self.ins = []
        self.nlabel = 0

    def __call__(self, text, xdst=(), xsrc=(), comment=None):
        i = Ins(text, xdst, xsrc, comment)
        self.ins.append(i)
        return i

    def add(self, lst):
        for i in lst:
            if isinstance(i, str):
                self(i)
            else:
                self.ins.append(i)

    def label(self, name=None):
        if name is None:
            self.nlabel += 1
            name = f"L{self.nlabel}"
        return name

    def put(self, name):
        self(name + ":")

    def need(self, *res):
        i = Ins(";need", xsrc=res)
        i.kind = "need"
        self.ins.append(i)

    def comment(self, s):
        self("; " + s)


def need_ins(*res):
    i = Ins(";need", xsrc=res)
    i.kind = "need"
    return i


def _merge(a, b):
    if a is None:
        return {k: dict(v) for k, v in b.items()}
    out = {}
    for c in ("vm", "lg", "sm"):
        d = dict(a[c])
        for k, v in b[c].items():
            d[k] = min(d[k], v) if k in d else v
        out[c] = d
    return out


def _step(st, i):
    vm = lg = None
    touched = list(i.src) + list(i.xsrc)
    k = i.kind
    for r in touched:
        if r in st["vm"]:
            vm = st["vm"][r] if vm is None else min(vm, st["vm"][r])
        if r in st["lg"]:
            lg = st["lg"][r] if lg is None else min(lg, st["lg"][r])
        if r in st["sm"]:
            lg = 0
    for r in i.dst:
        if r in st["vm"] and k != "vload":
            vm = st["vm"][r] if vm is None else min(vm, st["vm"][r])
        if r in st["lg"] and k != "dsread":
            lg = st["lg"][r] if lg is None else min(lg, st["lg"][r])
        if r in st["sm"]:
            lg = 0
    if lg is not None and st["sm"]:
        lg = 0
    if vm is not None:
        vm = min(vm, 63)
    if lg is not None:
        lg = min(lg, 15)
    _apply_wait(st, vm, lg)
    if k == "wait":
        _apply_wait(st, *i.waitspec)
    if k in ("vload", "vstore", "dma"):
        d = st["vm"]
        for r in list(d):
            d[r] += 1
            if d[r] > 63:
                del d[r]
        for r in list(i.dst) + list(i.xdst):
            d[r] = 0
        d["vm_any"] = 0
        if k == "vstore":
            d["stores"] = 0
    elif k in ("dsread", "dswrite"):
        d = st["lg"]
        for r in list(d):
            d[r] += 1
        for r in list(i.dst) + list(i.xdst):
            d[r] = 0
        d["ds_any"] = 0
    elif k == "smem":
        for r in i.dst:
            st["sm"][r] = 0
    return vm, lg


def _apply_wait(st, vm, lg):
    if vm is not None:
        d = st["vm"]
        for r in list(d):
            if d[r] >= vm:
                del d[r]
    if lg is not None:
        if st["sm"] and lg != 0:
            return
        d = st["lg"]
        for r in list(d):
            if d[r] >= lg:
                del d[r]
        if lg == 0:
            st["sm"].clear()


def build_cfg(ins):
    labels = {i.target: n for n, i in enumerate(ins) if i.kind == "label"}
    succ = [[] for _ in ins]
    for n, i in enumerate(ins):
        if i.kind == "end":
            continue
        if i.kind == "branch":
            succ[n].append(labels[i.target])
            if i.op == "s_branch":
                continue
        if n + 1 < len(ins):
            succ[n].append(n + 1)
    return succ


def insert_waits(ins):
    succ = build_cfg(ins)
    n = len(ins)
    leaders = {0}
    for k, i in enumerate(ins):
        if i.kind == "label":
            leaders.add(k)
        if i.kind in ("branch", "end") and k + 1 < n:
            leaders.add(k + 1)
    leaders = sorted(leaders)
    bend = {b: (leaders[j + 1] if j + 1 < len(leaders) else n) for j, b in enumerate(leaders)}
    instate = {b: None for b in leaders}
    instate[0] = {"vm": {}, "lg": {}, "sm": {}}
    work = [0]
    waits = {}
    while work:
        b = work.pop(0)
        st = {c: dict(v) for c, v in instate[b].items()}
        for k in range(b, bend[b]):
            waits[k] = _step(st, ins[k])
        for s in succ[bend[b] - 1]:
            new = _merge(instate[s], st)
            if new != instate[s]:
                instate[s] = new
                if s not in work:
                    work.append(s)
    out = []
    for k, i in enumerate(ins):
        vm, lg = waits.get(k, (None, None))
        if vm is not None or lg is not None:
            t = "s_waitcnt"
            if vm is not None:
                t += f" vmcnt({vm})"
            if lg is not None:
                t += f" lgkmcnt({lg})"
            out.append(Ins(t))
        if i.kind != "need":
            out.append(i)
    return out


def _req(p, c):
    need = 0
    pk, ck = p.kind, c.kind
    if pk in ("label", "dir", "nop", "wait", "branch", "need"):
        return 0
    pd = set(p.dst)
    cs = set(c.src)
    cd = set(c.dst)
    cvalu = ck in ("valu", "trans", "dot")
    if pk == "mfma":
        P = p.passes
        if ck == "mfma":
            if pd & set(c.mC):
                if list(c.mC) == list(p.mD) and c.passes == P:
                    need = max(need, 0)
                else:
                    need = max(need, P + 2)
            if pd & (set(c.mA) | set(c.mB)):
                need = max(need, P + 4)
            if pd & cd and not (list(c.mD) == list(p.mD) and c.passes == P):
                need = max(need, P + 4)
        else:
            if pd & (cs | cd):
                need = max(need, P + 4)
            if cvalu and set(p.mC) & cd:
                need = max(need, P - 1)
        return need
    if pk in ("valu", "trans", "dot"):
        vd = {r for r in pd if r[0] in "va"}
        sd = pd - vd
        if pk == "dot":
            if vd & (cs | cd):
                if c.op == p.op and not (vd & set(c.src[:2])) :
                    pass
                else:
                    need = max(need, 3)
        if ck == "mfma" and vd & cs:
            need = max(need, 2)
        if pk == "trans" and vd & cs:
            need = max(need, 1)
        if p.opsel and cvalu and vd & (cs | cd):
            need = max(need, 1)
        if cvalu and vd & cs:
            if c.op.startswith("v_permlane") or c.dpp:
                need = max(need, 2)
            if c.op.startswith("v_readlane") or c.op.startswith("v_readfirstlane"):
                need = max(need, 1)
        if sd & cs:
            if ck in ("vload", "vstore", "dma"):
                need = max(need, 5)
            elif cvalu:
                need = max(need, 4 if c.op.startswith(("v_readlane", "v_writelane")) else 2)
            elif ck == "mfma":
                need = max(need, 4)
            elif ck == "salu":
                need = max(need, 1)
        return need
    if pk in ("vstore", "dswrite") and p.wide:
        if set(p.sdata) & cd:
            need = max(need, 2 if (cvalu or ck == "mfma") else 1)
    if pk == "salu" and ("x", "m0") in pd and ck == "dma":
        need = max(need, 1)
    return need


MAXD = 13


def insert_nops(ins):
    out = []
    labelpos = {}
    branch_to = {}
    orig_labels = {i.target: n for n, i in enumerate(ins) if i.kind == "label"}
    srcs = {}
    for n, i in enumerate(ins):
        if i.kind == "branch":
            srcs.setdefault(i.target, []).append(n)
    pad = [0] * len(ins)

    def scan(n, dist, c, seen):
        worst = 0
        k = n - 1
        while k >= 0 and dist < MAXD:
            p = ins[k]
            if k != n - 1 or True:
                pass
            if p.kind == "end" or (p.kind == "branch" and p.op == "s_branch"):
                if not (seen_entry[0] == k):
                    break
            r = _req(p, c)
            if r > dist:
                worst = max(worst, r - dist)
            if p.kind == "label":
                for sidx in srcs.get(p.target, []):
                    if (sidx, dist) not in seen:
                        seen.add((sidx, dist))
                        old = seen_entry[0]
                        seen_entry[0] = sidx
                        worst = max(worst, scan(sidx + 1, dist, c, seen))
                        seen_entry[0] = old
            dist += p.states + pad[k]
            k -= 1
        return worst

    seen_entry = [-1]
    for n, c in enumerate(ins):
        if c.kind in ("label", "dir", "nop", "wait", "need"):
            continue
        w = scan(n, 0, c, set())
        pad[n] = w
    for n, c in enumerate(ins):
        w = pad[n]
        while w > 0:
            k = min(w, 16)
            out.append(Ins(f"s_nop {k - 1}"))
            w -= k
        out.append(c)
    return out


def emit(prog):
    ins = insert_waits(prog.ins)
    ins = insert_nops(ins)
    lines = []
    for i in ins:
        if i.kind == "label":
            lines.append(i.text)
        else:
            lines.append("  " + i.text + (f"   ; {i.comment}" if i.comment else ""))
    return "\n".join(lines), ins


def interleave(main, fill, per=1, start=0):
    out = []
    f = list(fill)
    for n, m in enumerate(main):
        out.append(m)
        if n >= start:
            for _ in range(per):
                if f:
                    out.append(f.pop(0))
    out += f
    return out
```

```python
import sys, struct
from asmgen import Prog, Ins, emit, interleave, need_ins

KN = "interleave_layers__sliding_block__mixer_channel_mlp__prompt_kernel"
OPT = dict(a.split("=") for a in sys.argv[2:])
STOP = OPT.get("STOP")

MB = 1 << 20
KV_O, O_O, X1_O, XIN_O, ST1_O, ST2_O, H_O = 0, 4 * MB, 6 * MB, 8 * MB, 10 * MB, 10 * MB + 256 * 1024, 11 * MB
LSTRIDE = 20 * MB
OOB = 0x40000000
IMG = 32768
SLOT0 = 98304
def SLOT(i): return SLOT0 + 4096 * i
TAB0 = 155648
RBC = TAB0 + 7 * 1024

sC, sM, sW, sFB = "s4", "s5", "s6", "s7"
sX, sWQ, sWO, sW1, sW2, sWS, sFL, sOUT, sB2, sB1, sDBG = [f"s[{8 + 4 * i}:{11 + 4 * i}]" for i in range(11)]
sT, sTP, sCT, sCNT, sTG = "s52", "s53", "s54", "s55", "s56"
t0, t1, t2, t3, t4, t5, t6 = "s57", "s58", "s59", "s60", "s61", "s62", "s63"
def sMASK(r): return f"s[{64 + 2 * r}:{65 + 2 * r}]"
sH0, sH1, sLO = "s[96:97]", "s[98:99]", "s[100:101]"
vL, vL16, vTR, vTR1 = "v0", "v1", "v2", "v3"

def f2u(x): return struct.unpack("<I", struct.pack("<f", x))[0]
def fc(x): return hex(f2u(x))
def V(n, k=4): return f"v[{n}:{n + k - 1}]" if k > 1 else f"v{n}"
def A(n, k=4): return f"a[{n}:{n + k - 1}]" if k > 1 else f"a{n}"
def R(f, n, k=4): return f"{f}[{n}:{n + k - 1}]"

LOG2E = 1.4426950408889634
EPS = 1e-5
P = Prog()
MF = "v_mfma_f32_32x32x16_bf16"


def trfrag(f, n, addr, base=None, xsrc=()):
    if base is None:
        base, off = (vTR, addr) if addr < 65536 else (vTR1, addr - 65536)
    else:
        off = addr
    assert 0 <= off and off + 256 < 65536
    return [Ins(f"ds_read_b64_tr_b16 {R(f, n, 2)}, {base} offset:{off}", xsrc=xsrc),
            Ins(f"ds_read_b64_tr_b16 {R(f, n + 2, 2)}, {base} offset:{off + 256}", xsrc=xsrc)]


def dma_rows(srd, voff, sbase, pitch, nins, lds_s, lds_imm, tag, st=t0):
    out = []
    for j in range(nins):
        if j % 4 == 0:
            if lds_s is None:
                out.append(Ins(f"s_mov_b32 m0, {lds_imm + 1024 * j}"))
            else:
                out.append(Ins(f"s_add_u32 m0, {lds_s}, {lds_imm + 1024 * j}"))
        out.append(Ins(f"s_add_u32 {st}, {sbase}, {j * 16 * pitch - (j % 4) * 1024}"))
        out.append(Ins(f"buffer_load_dwordx4 {voff}, {srd}, {st} offen offset:{(j % 4) * 1024} lds", xdst=[tag]))
    return out


def dma_voff(v, pitch, tmp):
    P(f"v_lshrrev_b32 {v}, 2, {vL}")
    P(f"v_mul_u32_u24 {v}, {pitch}, {v}")
    P(f"v_and_b32 {tmp}, 3, {vL}")
    P(f"v_lshl_add_u32 {v}, {tmp}, 4, {v}")


def barrier():
    P.need("ds_any")
    P("s_barrier")


def poll(vaddr, vtmp, mask_lo, phase, mask_s=None):
    lp, done = P.label(), P.label()
    if mask_s is None:
        P(f"s_mov_b64 exec, {mask_lo}")
    else:
        P(f"s_mov_b64 exec, {mask_s}")
    P(f"s_add_u32 {sTG}, {sFB}, {phase}")
    P(f"s_mov_b32 {sCNT}, 20000")
    P.put(lp)
    P(f"buffer_load_dword {vtmp}, {vaddr}, {sFL}, 0 offen sc1")
    P(f"v_cmp_gt_u32 vcc, {sTG}, {vtmp}")
    P(f"s_cbranch_vccz {done}")
    P(f"s_sub_u32 {sCNT}, {sCNT}, 1")
    P(f"s_cbranch_scc0 {lp}")
    P("s_endpgm")
    P.put(done)
    P("s_mov_b64 exec, -1")


def publish(phase, va, vd):
    out = [Ins(f"s_lshl_b32 {t6}, {sC}, 4"), Ins(f"s_add_u32 {t6}, {t6}, {sM}"), Ins(f"s_lshl_b32 {t6}, {t6}, 2"),
           Ins(f"s_add_u32 {t6}, {t6}, {sW}"), Ins(f"s_lshl_b32 {t6}, {t6}, 7"),
           Ins(f"s_add_u32 {t5}, {sFB}, {phase}"),
           Ins(f"v_mov_b32 {vd}, {t5}"), Ins(f"v_mov_b32 {va}, 0"),
           need_ins("stores"),
           Ins("s_mov_b64 exec, 1"),
           Ins(f"buffer_store_dword {vd}, {va}, {sFL}, {t6} offen sc1"),
           Ins("s_mov_b64 exec, -1")]
    return out


def stop(ph):
    if STOP is None:
        return
    L, p = STOP.split(".")
    if int(p) != ph:
        return
    P(f"s_cmp_eq_u32 {sFB}, {8 * int(L)}")
    P("s_cbranch_scc1 L_end")


def if_l0():
    l = P.label()
    P(f"s_cmp_lg_u32 {sFB}, 0")
    P(f"s_cbranch_scc1 {l}")
    return l


def prologue():
    P("s_cmp_ge_u32 s2, 256")
    P("s_cbranch_scc1 L_end")
    P("s_load_dwordx16 s[64:79], s[0:1], 0")
    P("s_load_dwordx4 s[80:83], s[0:1], 64")
    P("s_load_dwordx2 s[84:85], s[0:1], 80")
    P("v_lshrrev_b32 v4, 6, v0")
    P("v_and_b32 v0, 63, v0")
    P(f"v_readfirstlane_b32 {sW}, v4")
    P("s_and_b32 s3, s2, 7")
    P(f"s_lshl_b32 {sC}, s3, 1")
    P("s_bfe_u32 s3, s2, 0x10003")
    P(f"s_or_b32 {sC}, {sC}, s3")
    P(f"s_lshr_b32 {sM}, s2, 4")
    P(f"s_mov_b32 {sFB}, 0")
    P(f"v_lshlrev_b32 {vL16}, 4, {vL}")
    P(f"v_lshrrev_b32 v4, 5, {vL}")
    P(f"v_bfe_u32 v5, {vL}, 2, 2")
    P("v_lshl_add_u32 v4, v4, 3, v5")
    P("v_lshlrev_b32 v4, 6, v4")
    P(f"v_bfe_u32 v5, {vL}, 4, 1")
    P("v_lshl_add_u32 v4, v5, 5, v4")
    P(f"v_and_b32 v5, 1, {vL}")
    P("v_lshl_add_u32 v4, v5, 4, v4")
    P(f"v_bfe_u32 v5, {vL}, 1, 1")
    P(f"v_lshl_add_u32 {vTR}, v5, 3, v4")
    P(f"v_add_u32 {vTR1}, 0x10000, {vTR}")
    P(f"s_lshl_b32 {sT}, {sC}, 2")
    P(f"s_and_b32 s3, {sM}, 1")
    P(f"s_lshl_b32 s3, s3, 1")
    P(f"s_add_u32 {sTP}, {sT}, s3")
    P(f"s_lshr_b32 s3, {sW}, 1")
    P(f"s_add_u32 {sTP}, {sTP}, s3")
    P(f"s_add_u32 {sT}, {sT}, {sW}")
    P(f"s_and_b32 {sCT}, {sM}, 14")
    P(f"s_and_b32 s3, {sW}, 1")
    P(f"s_add_u32 {sCT}, {sCT}, s3")
    def srd(n, src, size):
        P(f"s_mov_b32 s{n}, s{src}")
        P(f"s_mov_b32 s{n + 1}, s{src + 1}")
        P(f"s_mov_b32 s{n + 2}, {size}")
        P(f"s_mov_b32 s{n + 3}, 0x00020000")
    srd(8, 64, 2 * MB)
    srd(12, 66, 512 * 1536 * 2)
    srd(16, 68, 512 * 512 * 2)
    srd(20, 72, 512 * 1792 * 2)
    srd(24, 76, 1792 * 512 * 2)
    srd(32, 84, 128 * 1024)
    srd(36, 80, 2 * MB)
    srd(40, 78, 1024)
    srd(44, 74, 3584)
    srd(48, 82, 256)
    P(f"s_add_u32 s28, s84, {MB}")
    P("s_addc_u32 s29, s85, 0")
    P(f"s_mov_b32 s30, {2 * LSTRIDE}")
    P("s_mov_b32 s31, 0x00020000")
    P("s_mov_b32 s96, 0xffff")
    P("s_mov_b32 s97, 0xffff")
    P("s_mov_b32 s98, 0xffff0000")
    P("s_mov_b32 s99, 0xffff0000")
    P("s_mov_b32 s100, -1")
    P("s_mov_b32 s101, 0")
    P(f"v_and_b32 v4, 31, {vL}")
    P(f"v_lshrrev_b32 v5, 5, {vL}")
    P("v_lshlrev_b32 v5, 2, v5")
    P("v_sub_u32 v4, v4, v5")
    for r in range(16):
        P(f"v_cmp_le_i32_e64 {sMASK(r)}, {(r & 3) + 8 * (r >> 2)}, v4")
    l = P.label()
    P(f"s_cmp_lg_u32 {sW}, 0")
    P(f"s_cbranch_scc1 {l}")
    P(f"s_lshl_b32 {t0}, {sC}, 4")
    P(f"s_add_u32 {t0}, {t0}, {sM}")
    P(f"s_lshl_b32 {t0}, {t0}, 9")
    P(f"v_lshlrev_b32 v4, 7, {vL}")
    P("v_mov_b32 v5, 0")
    P("s_mov_b64 exec, 15")
    P(f"buffer_store_dword v5, v4, {sFL}, {t0} offen sc1")
    P("s_mov_b64 exec, 1")
    P("v_mov_b32 v5, 1")
    P("v_mov_b32 v4, s2")
    P.need("stores")
    P(f"buffer_store_byte v5, v4, {sDBG}, 0 offen sc1")
    P("s_mov_b64 exec, -1")
    P.put(l)
    P(f"v_and_b32 v4, 31, {vL}")
    P(f"v_lshrrev_b32 v5, 5, {vL}")
    P("v_lshlrev_b32 v4, 10, v4")
    P("v_lshl_add_u32 v4, v5, 4, v4")
    P(f"s_lshl_b32 {t0}, {sTP}, 15")
    P(f"s_lshl_b32 {t1}, {sCT}, 6")
    P(f"s_add_u32 {t0}, {t0}, {t1}")
    P(f"buffer_load_dwordx4 v[8:11], v4, {sX}, {t0} offen")
    P(f"buffer_load_dwordx4 v[12:15], v4, {sX}, {t0} offen offset:32")
    for d in range(8):
        P(f"v_lshlrev_b32 v5, 16, v{8 + d}")
        P(f"v_and_b32 v6, 0xffff0000, v{8 + d}")
        P(f"v_accvgpr_write_b32 a{224 + 2 * d}, v5")
        P(f"v_accvgpr_write_b32 a{225 + 2 * d}, v6")
    w2_stage_simple()
    wq_dma()


def w2_row0(kk):
    late, e = kk // 14, kk % 14
    return 128 * (e >> 1) + 16 * (e & 1) + 64 * late


def w2_stage_simple():
    dma_voff("v4", 1024, "v5")
    P(f"s_lshr_b32 {t2}, {sW}, 1")
    P(f"s_mul_i32 {t2}, {t2}, {896 * 1024}")
    P(f"s_and_b32 {t3}, {sW}, 1")
    P(f"s_lshl_b32 {t3}, {t3}, 15")
    P(f"s_add_u32 {t2}, {t2}, {t3}")
    P(f"s_lshl_b32 {t3}, {sCT}, 6")
    P(f"s_add_u32 {t1}, {t2}, {t3}")
    P(f"s_xor_b32 {t3}, {t3}, 64")
    P(f"s_add_u32 {t2}, {t2}, {t3}")
    P(f"s_mul_i32 {t3}, {sW}, 14336")
    P(f"s_add_u32 {t3}, {t3}, {SLOT0}")
    P(f"v_add_u32 v5, {t3}, {vTR}")
    for rnd in range(4):
        for q in range(7):
            kk = rnd * 7 + q
            for ct in range(2):
                P(f"s_add_u32 m0, {t3}, {(2 * q + ct) * 1024}")
                P(f"s_add_u32 {t0}, {t1 if ct == 0 else t2}, {w2_row0(kk) * 1024}")
                P(f"buffer_load_dwordx4 v4, {sW2}, {t0} offen lds", xdst=["stg"])
        P.need("stg")
        for q in range(7):
            kk = rnd * 7 + q
            for ct in range(2):
                P.add(trfrag("a", (kk * 2 + ct) * 4, (2 * q + ct) * 1024, base="v5"))
        P.need("ds_any")


def wq_dma():
    dma_voff("v4", 3072, "v5")
    P(f"s_mul_i32 {t1}, {sW}, {128 * 3072}")
    P(f"s_lshl_b32 {t2}, {sM}, 6")
    P(f"s_add_u32 {t1}, {t1}, {t2}")
    P(f"s_lshl_b32 {t3}, {sW}, 13")
    for img, cb in ((0, 1024), (1, 2048), (2, 0)):
        P(f"s_add_u32 {t2}, {t1}, {cb}")
        P.add(dma_rows(sWQ, "v4", t2, 3072, 8, t3, img * IMG, "wimg"))


def w1_dma(tiles, vt="v4", vt2="v5"):
    dma_voff(vt, 3584, vt2)
    P(f"s_mul_i32 {t1}, {sW}, {128 * 3584}")
    P(f"s_lshl_b32 {t2}, {sM}, 8")
    P(f"s_add_u32 {t1}, {t1}, {t2}")
    P(f"s_lshl_b32 {t3}, {sW}, 13")
    for tl in tiles:
        P(f"s_add_u32 {t2}, {t1}, {tl * 64}")
        P.add(dma_rows(sW1, vt, t2, 3584, 8, t3, tl * IMG, "wimg"))


def wo_dma(vt="v4", vt2="v5"):
    dma_voff(vt, 1024, vt2)
    P(f"s_lshl_b32 {t1}, {sW}, 17")
    P(f"s_lshl_b32 {t2}, {sCT}, 6")
    P(f"s_add_u32 {t4}, {t1}, {t2}")
    P(f"s_lshl_b32 {t3}, {sW}, 13")
    P.add(dma_rows(sWO, vt, t4, 1024, 8, t3, 0, "woimg"))
    P(f"s_xor_b32 {t2}, {t2}, 64")
    P(f"s_add_u32 {t4}, {t1}, {t2}")
    P.add(dma_rows(sWO, vt, t4, 1024, 8, t3, IMG, "woimg"))


XF = 128


def colsum(tab_base, with_bias, acc, ring, tmp):
    va, ones, vb = f"v{tmp}", tmp + 4, f"v{tmp + 1}"
    P(f"s_lshl_b32 {t0}, {sW}, 15")
    P(f"v_add_u32 {va}, {t0}, {vTR}")
    for j in range(4):
        P(f"v_mov_b32 v{ones + j}, 0x3f803f80")
    if with_bias:
        P(f"v_and_b32 {vb}, 0x13, {vL}")
        P(f"v_bfe_u32 v{tmp + 2}, {vL}, 2, 1")
        P(f"v_lshl_add_u32 {vb}, v{tmp + 2}, 3, {vb}")
        P(f"v_bfe_u32 v{tmp + 2}, {vL}, 3, 1")
        P(f"v_lshl_add_u32 {vb}, v{tmp + 2}, 2, {vb}")
        P(f"v_lshlrev_b32 {vb}, 1, {vb}")
        P(f"s_lshl_b32 {t0}, {sM}, 8")
        P(f"s_lshl_b32 {t1}, {sW}, 6")
        P(f"s_add_u32 {t0}, {t0}, {t1}")
        P(f"buffer_load_ushort {vb}, {vb}, {sB1}, {t0} offen")
    else:
        P(f"v_mov_b32 {vb}, 0")
    D = 6
    for t in range(32 + D):
        if t < 32:
            P.add(trfrag("v", ring + 4 * (t % 8), t * 1024, base=va))
        if t >= D:
            k = t - D
            P(f"{MF} {V(acc, 16)}, {V(ones)}, {V(ring + 4 * (k % 8))}, {V(acc, 16) if k else 0}")
    c, o = f"v{tmp + 2}", ones
    P(f"v_cndmask_b32_e64 {c}, 0, v{acc}, {sLO}")
    P(f"v_cndmask_b32_e64 {vb}, 0, {vb}, {sLO}")
    P(f"v_cvt_pk_bf16_f32 v{o}, {c}, {c}")
    P(f"v_lshlrev_b32 v{o + 1}, 16, v{o}")
    P(f"v_sub_f32 v{o + 1}, {c}, v{o + 1}")
    P(f"v_and_b32 v{o + 2}, 0xffff, v{o}")
    P(f"v_cvt_pk_bf16_f32 v{o}, {c}, v{o + 1}")
    P(f"v_lshl_or_b32 v{o + 1}, {vb}, 16, v{o + 2}")
    P(f"v_mov_b32 v{o + 2}, {vb}")
    P(f"v_mov_b32 v{o + 3}, 0")
    P(f"s_lshl_b32 {t0}, {sW}, 10")
    P(f"s_add_u32 {t0}, {t0}, {tab_base}")
    P(f"v_add_u32 {va}, {t0}, {vL16}")
    P(f"ds_write_b128 {va}, {V(o)}")
    barrier()


def x_flags_addr(va, vt):
    P(f"v_and_b32 {va}, 14, {vL}")
    P(f"v_lshlrev_b32 {va}, 9, {va}")
    P(f"v_and_b32 {vt}, 1, {vL}")
    P(f"v_lshl_add_u32 {va}, {vt}, 7, {va}")
    P(f"s_lshl_b32 {t0}, {sC}, 13")
    P(f"s_lshr_b32 {t1}, {sW}, 1")
    P(f"s_lshl_b32 {t1}, {t1}, 9")
    P(f"s_add_u32 {t0}, {t0}, {t1}")
    P(f"s_and_b32 {t1}, {sW}, 1")
    P(f"s_lshl_b32 {t1}, {t1}, 8")
    P(f"s_add_u32 {t0}, {t0}, {t1}")
    P(f"v_add_u32 {va}, {t0}, {va}")


def load_x_chunks(xoff, stoff, stv):
    P(f"s_lshl_b32 {t0}, {sT}, 12")
    P(f"s_add_u32 {t0}, {t0}, {stoff}")
    P(f"v_lshlrev_b32 v4, 2, {vL}")
    for s in range(16):
        P(f"buffer_load_dword v{stv + s}, v4, {sWS}, {t0} offen offset:{s * 256} sc1")
    P(f"s_lshl_b32 {t1}, {sT}, 15")
    for t in range(32):
        if t % 4 == 0:
            P(f"s_add_u32 {t0}, {t1}, {xoff + t * 1024}")
        P(f"buffer_load_dwordx4 {V(XF + 4 * t)}, {vL16}, {sWS}, {t0} offen offset:{(t % 4) * 1024} sc1")


def stats_sum(stv):
    for st in (8, 4, 2, 1):
        for i in range(st):
            P(f"v_add_f32 v{stv + i}, v{stv + i}, v{stv + i + st}")


def stats_finish(stv, ex, mlp):
    a, b, c, d = (f"v{stv + i}" for i in range(4))
    e = f"v{stv + 4}"
    P(f"v_mov_b32 {b}, {a}")
    P(f"v_permlane32_swap_b32 {a}, {b}")
    P(f"v_mul_f32 {a}, {fc(-1.0 / 512)}, {a}")
    P(f"v_mul_f32 {c}, {a}, {a}")
    P(f"v_mul_f32 {b}, {fc(1.0 / 512)}, {b}")
    P(f"v_sub_f32 {b}, {b}, {c}")
    P(f"v_max_f32 {b}, 0, {b}")
    P(f"v_add_f32 {c}, {fc(EPS)}, {b}")
    P(f"v_rsq_f32 {d}, {c}")
    if mlp:
        P(f"v_mul_f32 {b}, {b}, {d}")
        P(f"v_mul_f32 {b}, {b}, {d}")
        P(f"v_add_f32 {b}, {fc(EPS)}, {b}")
        P(f"v_rsq_f32 {b}, {b}")
        P(f"v_mul_f32 {b}, {b}, {d}")
        P(f"v_rcp_f32 {c}, {b}")
    else:
        P(f"v_mov_b32 {b}, {d}")
        P(f"v_mul_f32 {c}, {c}, {d}")
    P(f"v_cvt_pk_bf16_f32 v{ex}, {a}, {a}")
    P(f"v_lshlrev_b32 {d}, 16, v{ex}")
    P(f"v_sub_f32 {d}, {a}, {d}")
    P(f"v_cvt_pk_bf16_f32 v{ex + 1}, {d}, {c}")
    P(f"v_and_b32 {d}, 0xffff0000, v{ex + 1}")
    P(f"v_sub_f32 {d}, {c}, {d}")
    P(f"v_mov_b32 {e}, 0")
    P(f"v_cvt_pk_bf16_f32 v{ex + 2}, {d}, {e}")
    P(f"v_mov_b32 v{ex + 3}, 0")


def phase1():
    aK, aV, aQ, ring, ex, tabs, stv = 16, 32, 48, 64, 96, 100, 112
    l1, lj = P.label(), P.label()
    P(f"s_cmp_lg_u32 {sFB}, 0")
    P(f"s_cbranch_scc1 {l1}")
    P(f"v_and_b32 v4, 31, {vL}")
    P(f"v_lshrrev_b32 v5, 5, {vL}")
    P("v_lshlrev_b32 v4, 10, v4")
    P("v_lshl_add_u32 v4, v5, 4, v4")
    P(f"s_lshl_b32 {t0}, {sT}, 15")
    for t in range(32):
        P(f"buffer_load_dwordx4 {V(XF + 4 * t)}, v4, {sX}, {t0} offen offset:{t * 32}")
    P(f"v_mov_b32 v5, 0x3f803f80")
    for i in range(4):
        P(f"v_mov_b32 v{stv + i}, 0")
    for i in range(128):
        P(f"v_dot2_f32_bf16 v{stv + (i & 1)}, v{XF + i}, v5, v{stv + (i & 1)}")
        P(f"v_dot2_f32_bf16 v{stv + 2 + (i & 1)}, v{XF + i}, v{XF + i}, v{stv + 2 + (i & 1)}")
    P(f"v_add_f32 v{stv}, v{stv}, v{stv + 1}")
    P(f"v_add_f32 v{stv + 2}, v{stv + 2}, v{stv + 3}")
    P(f"v_permlane32_swap_b32 v{stv}, v{stv + 2}")
    P(f"v_add_f32 v{stv}, v{stv}, v{stv + 2}")
    P.need("wimg")
    barrier()
    colsum(TAB0, False, aK, ring, ex)
    P(f"s_branch {lj}")
    P.put(l1)
    x_flags_addr("v4", "v5")
    poll("v4", "v5", "0xffff", -1)
    load_x_chunks(XIN_O, ST2_O, stv)
    stats_sum(stv)
    P.need("wimg")
    barrier()
    P.put(lj)
    stats_finish(stv, ex, False)
    r = f"v{stv + 1}"
    P(f"s_lshl_b32 {t0}, {sW}, 7")
    P(f"s_add_u32 {t0}, {t0}, {RBC}")
    P(f"v_and_b32 v4, 31, {vL}")
    P(f"v_lshl_add_u32 v4, v4, 2, {t0}")
    P(f"ds_write_b32 v4, {r}")
    P(f"v_add_u32 v5, {TAB0}, {vL16}")
    for j in range(3):
        P(f"ds_read_b128 {V(tabs + 4 * j)}, v5 offset:{1024 * j}")
    D = 3
    for t in range(32 + D):
        if t < 32:
            P.add(trfrag("v", ring + 8 * (t % 4), t * 1024))
            P.add(trfrag("v", ring + 8 * (t % 4) + 4, IMG + t * 1024))
        if t >= D:
            k = t - D
            P(f"{MF} {V(aK, 16)}, {V(ring + 8 * (k % 4))}, {V(XF + 4 * k)}, {V(aK, 16) if k else 0}")
            P(f"{MF} {V(aV, 16)}, {V(XF + 4 * k)}, {V(ring + 8 * (k % 4) + 4)}, {V(aV, 16) if k else 0}")
    P(f"{MF} {V(aK, 16)}, {V(tabs)}, {V(ex)}, {V(aK, 16)}")
    P(f"{MF} {V(aV, 16)}, {V(ex)}, {V(tabs + 4)}, {V(aV, 16)}")
    P(f"v_lshrrev_b32 v4, 5, {vL}")
    P(f"v_lshl_add_u32 v4, v4, 4, {t0}")
    for g in range(4):
        P(f"ds_read_b128 {V(ring + 4 * g)}, v4 offset:{32 * g}")
    for i in range(16):
        P(f"v_mul_f32 v{aK + i}, v{aK + i}, {r}")
    for i in range(8):
        P(f"v_cvt_pk_bf16_f32 v{aK + i}, v{aK + 2 * i}, v{aK + 2 * i + 1}")
    for i in range(16):
        P(f"v_mul_f32 v{aV + i}, v{aV + i}, v{ring + i}")
    for i in range(8):
        P(f"v_cvt_pk_bf16_f32 v{aV + i}, v{aV + 2 * i}, v{aV + 2 * i + 1}")
    P(f"v_bfe_u32 v4, {vL}, 4, 1")
    P(f"v_lshlrev_b32 v4, 11, v4")
    P(f"v_and_b32 v5, 15, {vL}")
    P(f"v_lshl_add_u32 v4, v5, 4, v4")
    P(f"v_lshrrev_b32 v5, 5, {vL}")
    P(f"v_lshl_add_u32 v4, v5, 8, v4")
    P(f"s_lshl_b32 {t0}, {sT}, 4")
    P(f"s_add_u32 {t0}, {t0}, {sM}")
    P(f"s_lshl_b32 {t0}, {t0}, 12")
    P(f"buffer_store_dwordx4 {V(aK)}, {vL16}, {sWS}, {t0} offen sc1")
    P(f"buffer_store_dwordx4 {V(aK + 4)}, {vL16}, {sWS}, {t0} offen offset:2048 sc1")
    P(f"buffer_store_dwordx4 {V(aV)}, v4, {sWS}, {t0} offen offset:1024 sc1")
    P(f"buffer_store_dwordx4 {V(aV + 4)}, v4, {sWS}, {t0} offen offset:1536 sc1")
    P(f"s_lshl_b32 {t0}, {sW}, 12")
    P(f"s_add_u32 {t0}, {t0}, {SLOT(8)}")
    P(f"v_add_u32 v5, {t0}, {vL16}")
    P(f"v_add_u32 v4, {t0}, v4")
    P(f"ds_write_b128 v5, {V(aK)}")
    P(f"ds_write_b128 v5, {V(aK + 4)} offset:2048")
    P(f"ds_write_b128 v4, {V(aV)} offset:1024")
    P(f"ds_write_b128 v4, {V(aV + 4)} offset:1536")
    D = 6
    for t in range(32 + D):
        if t < 32:
            P.add(trfrag("v", ring + 4 * (t % 8), 2 * IMG + t * 1024))
        if t >= D:
            k = t - D
            P(f"{MF} {V(aQ, 16)}, {V(ring + 4 * (k % 8))}, {V(XF + 4 * k)}, {V(aQ, 16) if k else 0}")
        if t == 24:
            P.add(publish(1, "v4", "v5"))
    P(f"{MF} {V(aQ, 16)}, {V(tabs + 8)}, {V(ex)}, {V(aQ, 16)}")
    P(f"v_mul_f32 {r}, {fc(0.25 * LOG2E)}, {r}")
    for i in range(16):
        P(f"v_mul_f32 v{aQ + i}, v{aQ + i}, {r}")
    for i in range(8):
        P(f"v_cvt_pk_bf16_f32 v{8 + i}, v{aQ + 2 * i}, v{aQ + 2 * i + 1}")


def phase2():
    l = if_l0()
    lp, dn = P.label(), P.label()
    P(f"v_lshlrev_b32 v4, 2, {vL}")
    P(f"s_mov_b32 {sCNT}, 20000")
    P(f"s_mov_b32 {t0}, 0x01010101")
    P.put(lp)
    P(f"buffer_load_dword v5, v4, {sDBG}, 0 offen sc1")
    P(f"v_cmp_ne_u32 vcc, {t0}, v5")
    P(f"s_cbranch_vccz {dn}")
    P(f"s_sub_u32 {sCNT}, {sCNT}, 1")
    P(f"s_cbranch_scc0 {lp}")
    P("s_endpgm")
    P.put(dn)
    P.put(l)
    lskip = P.label()
    P(f"s_cmp_eq_u32 {sC}, 0")
    P(f"s_cbranch_scc1 {lskip}")
    P(f"s_lshl_b32 {t0}, {sC}, 4")
    P(f"s_add_u32 {t0}, {t0}, {sM}")
    P(f"s_lshl_b32 {t0}, {t0}, 2")
    P(f"s_add_u32 {t0}, {t0}, {sW}")
    P(f"s_lshl_b32 {t0}, {t0}, 7")
    P(f"s_sub_u32 {t0}, {t0}, 8192")
    P(f"v_lshlrev_b32 v4, 13, {vL}")
    P(f"v_sub_u32 v4, {t0}, v4")
    P(f"s_cmp_eq_u32 {sC}, 1")
    P(f"s_cselect_b32 {t3}, 1, 3")
    P(f"s_mov_b32 {t4}, 0")
    poll("v4", "v5", None, 1, mask_s="s[60:61]")
    P.put(lskip)
    hb = 64
    for i, back in ((0, 8), (1, 4)):
        P(f"s_sub_u32 {t0}, {sT}, {back}")
        P(f"s_lshl_b32 {t0}, {t0}, 4")
        P(f"s_add_u32 {t0}, {t0}, {sM}")
        P(f"s_lshl_b32 {t0}, {t0}, 12")
        P(f"s_cmp_lt_u32 {sT}, {back}")
        P(f"s_cselect_b32 {t0}, {OOB}, {t0}")
        for j in range(4):
            P(f"buffer_load_dwordx4 {V(hb + 16 * i + 4 * j)}, {vL16}, {sWS}, {t0} offen offset:{1024 * j} sc1")
    P(f"s_lshl_b32 {t0}, {sW}, 12")
    P(f"s_add_u32 {t0}, {t0}, {SLOT0}")
    P(f"v_add_u32 v4, {t0}, {vL16}")
    for i in range(2):
        for j in range(4):
            P(f"ds_write_b128 v4, {V(hb + 16 * i + 4 * j)} offset:{16384 * i + 1024 * j}")
    KA, VA, PM = 16, 25, 26
    P(f"v_lshrrev_b32 v5, 5, {vL}")
    P(f"v_lshlrev_b32 v5, 9, v5")
    P(f"s_lshl_b32 {t1}, {sC}, 14")
    P(f"s_sub_u32 {t1}, {SLOT(8)}, {t1}")
    P(f"v_add_u32 v5, {t1}, v5")
    for j in range(9):
        if j < 8:
            P(f"v_add_u32 v6, {4096 * j}, v4")
            P(f"s_cmp_lt_u32 {sT}, {8 - j}")
            P(f"s_cselect_b64 vcc, -1, 0")
            P(f"v_cndmask_b32 v{KA + j}, v6, v5, vcc")
        else:
            P(f"v_add_u32 v{KA + j}, {4096 * j}, v4")
    P(f"v_and_b32 v5, 15, {vL}")
    P(f"v_lshrrev_b32 v6, 5, {vL}")
    P(f"v_lshl_add_u32 v5, v6, 4, v5")
    P(f"v_lshl_add_u32 v{VA}, v5, 4, {t0}")
    P(f"v_mov_b32 v5, 0xffff")
    P(f"v_mov_b32 v6, 0xffff0000")
    for d in range(8):
        P(f"v_cndmask_b32_e64 v{PM + d}, 0, v5, {sMASK(2 * d)}")
        P(f"v_cndmask_b32_e64 v7, 0, v6, {sMASK(2 * d + 1)}")
        P(f"v_or_b32 v{PM + d}, v{PM + d}, v7")
    barrier()
    wo_dma()
    KF, S0, NM, OA, VF = 36, 72, 136, 152, 168
    for h in range(2):
        q = V(8 + 4 * h)
        half = sH0 if h == 0 else sH1
        for j in range(9):
            P(f"ds_read_b128 {V(KF + 4 * j)}, v{KA + j} offset:{2048 * h}")
        for i in range(24):
            P(f"v_mov_b32 v{VF + i}, 0x3f803f80")
        order = [8, 0, 1, 2, 3, 4, 5, 6, 7]
        def sb(n): return S0 + 16 * (n % 4)
        m = "v4"
        for n in range(9 + 2):
            if n < 9:
                P(f"{MF} {V(sb(n), 16)}, {V(KF + 4 * order[n])}, {q}, 0")
            k = n - 2
            if k == 1:
                for r in range(16):
                    P(f"v_cndmask_b32_e64 v{sb(1) + r}, v{sb(1) + r}, v{sb(0) + r}, {sMASK(r)}")
            if k >= 1:
                s = sb(k)
                for i in range(8):
                    if k == 1 and i == 0:
                        P(f"v_max_f32 {m}, v{s}, v{s + 1}")
                    else:
                        P(f"v_max3_f32 {m}, {m}, v{s + 2 * i}, v{s + 2 * i + 1}")
        P(f"v_mov_b32 v5, {m}")
        P(f"v_permlane32_swap_b32 {m}, v5")
        P(f"v_max_f32 {m}, {m}, v5")
        for i in range(16):
            P(f"v_sub_f32 v{NM + i}, 0, {m}")
        def vload(j, dst):
            if j < 8:
                P(f"s_cmp_lt_u32 {sT}, {8 - j}")
                P(f"s_cselect_b64 exec, -1, {half}")
            else:
                P(f"s_mov_b64 exec, {half}")
            P(f"ds_read_b128 {V(dst)}, v{VA} offset:{4096 * j + 2048 * h + 1024}")
            P(f"ds_read_b128 {V(dst + 4)}, v{VA} offset:{4096 * j + 2048 * h + 1536}")
            P("s_mov_b64 exec, -1")
        order = [8, 0, 7, 6, 5, 4, 3, 2, 1]
        vload(8, VF)
        vload(0, VF + 16)
        first = True
        for n in range(9 + 2):
            if n < 9:
                P(f"{MF} {V(sb(n), 16)}, {V(KF + 4 * order[n])}, {q}, {V(NM, 16)}")
            k = n - 2
            if k == 1:
                for r in range(16):
                    P(f"v_cndmask_b32_e64 v{sb(1) + r}, v{sb(1) + r}, v{sb(0) + r}, {sMASK(r)}")
            if k >= 1:
                s = sb(k)
                pb = s
                vf = VF + 8 * ((k - 1) & 1)
                if k + 1 < 9:
                    vload(order[k + 1], VF + 8 * (k & 1))
                for i in range(16):
                    P(f"v_exp_f32 v{s + i}, v{s + i}")
                for i in range(8):
                    P(f"v_cvt_pk_bf16_f32 v{pb + i}, v{s + 2 * i}, v{s + 2 * i + 1}")
                if k == 1:
                    pb2 = s + 8
                    for i in range(8):
                        P(f"v_and_b32 v{pb2 + i}, v{pb + i}, v{PM + i}")
                        P(f"v_xor_b32 v{pb + i}, v{pb + i}, v{pb2 + i}")
                    P(f"{MF} {V(OA, 16)}, {V(vf)}, {V(pb2)}, 0")
                    P(f"{MF} {V(OA, 16)}, {V(vf + 4)}, {V(pb2 + 4)}, {V(OA, 16)}")
                    P(f"{MF} {V(OA, 16)}, {V(VF + 16)}, {V(pb)}, {V(OA, 16)}")
                    P(f"{MF} {V(OA, 16)}, {V(VF + 20)}, {V(pb + 4)}, {V(OA, 16)}")
                else:
                    P(f"{MF} {V(OA, 16)}, {V(vf)}, {V(pb)}, {V(OA, 16)}")
                    P(f"{MF} {V(OA, 16)}, {V(vf + 4)}, {V(pb + 4)}, {V(OA, 16)}")
        o, sm = (OA, OA + 8) if h == 0 else (OA + 8, OA)
        P(f"v_rcp_f32 v4, v{sm}")
        for i in range(8):
            P(f"v_mul_f32 v{o + i}, v{o + i}, v4")
        for i in range(4):
            P(f"v_cvt_pk_bf16_f32 v{sm + i}, v{o + 2 * i}, v{o + 2 * i + 1}")
        P(f"s_lshl_b32 {t0}, {sT}, 4")
        P(f"s_add_u32 {t0}, {t0}, {sM}")
        P(f"s_lshl_b32 {t0}, {t0}, 11")
        P(f"s_add_u32 {t0}, {t0}, {O_O}")
        P(f"buffer_store_dwordx4 {V(sm)}, {vL16}, {sWS}, {t0} offen offset:{1024 * h} sc1")
        if h == 0:
            P.need("woimg")
            P(f"s_lshl_b32 {t0}, {sW}, 13")
            P(f"v_add_u32 v5, {t0}, {vTR}")
            for ks in range(8):
                for ct in range(2):
                    P.add(trfrag("v", 192 + (ks * 2 + ct) * 4, ct * IMG + ks * 1024, base="v5"))
            P.need("ds_any")
            lsk = P.label()
            P(f"s_cmp_ge_u32 {sM}, 14")
            P(f"s_cbranch_scc1 {lsk}")
            w1_dma([0, 1, 2], "v5", "v6")
            P.put(lsk)
    P.add(publish(3, "v4", "v5"))


def reduce_epilogue(acc, tmp, is_p5):
    for i in (1, 2, 3):
        P(f"s_xor_b32 {t0}, {sW}, {i}")
        if i < 3:
            P(f"s_lshl_b32 {t0}, {t0}, 13")
            P(f"s_add_u32 {t0}, {t0}, {SLOT(i - 1)}")
        else:
            P(f"s_lshl_b32 {t0}, {t0}, 12")
            P(f"s_add_u32 {t0}, {t0}, {SLOT(8)}")
        P(f"v_add_u32 v{4 + i}, {t0}, {vL16}")
    if not is_p5:
        barrier()
    for i in (1, 2, 3):
        for j in range(4):
            P(f"ds_write_b128 v{4 + i}, {V(acc + 16 * (i - 1) + 4 * j)} offset:{1024 * j}")
    P(f"s_lshl_b32 {t0}, {sW}, 13")
    P(f"s_add_u32 {t0}, {t0}, {SLOT(0)}")
    P(f"v_add_u32 v5, {t0}, {vL16}")
    P(f"s_lshl_b32 {t0}, {sW}, 12")
    P(f"s_add_u32 {t0}, {t0}, {SLOT(8)}")
    P(f"v_add_u32 v6, {t0}, {vL16}")
    if not is_p5:
        P(f"v_lshrrev_b32 v4, 5, {vL}")
        P(f"v_lshlrev_b32 v4, 4, v4")
        P(f"s_lshl_b32 {t0}, {sCT}, 6")
        P(f"buffer_load_dwordx4 {V(tmp + 64)}, v4, {sB2}, {t0} offen")
        P(f"buffer_load_dwordx4 {V(tmp + 68)}, v4, {sB2}, {t0} offen offset:32")
    x = tmp + 48
    for i in range(16):
        P(f"v_accvgpr_read_b32 v{x + i}, a{224 + i}")
    barrier()
    for j in range(8):
        P(f"ds_read_b128 {V(tmp + 4 * j)}, v5 offset:{1024 * j}")
    for j in range(4):
        P(f"ds_read_b128 {V(tmp + 32 + 4 * j)}, v6 offset:{1024 * j}")
    for p in range(3):
        for i in range(16):
            P(f"v_add_f32 v{x + i}, v{x + i}, v{tmp + 16 * p + i}")
    pk = tmp
    for i in range(8):
        P(f"v_cvt_pk_bf16_f32 v{pk + i}, v{x + 2 * i}, v{x + 2 * i + 1}")
    lout, lj = P.label(), P.label()
    if is_p5:
        P(f"s_cmp_lg_u32 {sFB}, 0")
        P(f"s_cbranch_scc1 {lout}")
    xo, so = (LSTRIDE + XIN_O, LSTRIDE + ST2_O) if is_p5 else (X1_O, ST1_O)
    P(f"s_lshl_b32 {t0}, {sTP}, 4")
    P(f"s_add_u32 {t0}, {t0}, {sCT}")
    P(f"s_lshl_b32 {t1}, {t0}, 11")
    P(f"s_add_u32 {t1}, {t1}, {xo}")
    P(f"buffer_store_dwordx4 {V(pk)}, {vL16}, {sWS}, {t1} offen sc1")
    P(f"buffer_store_dwordx4 {V(pk + 4)}, {vL16}, {sWS}, {t1} offen offset:1024 sc1")
    s1, s2 = f"v{tmp + 16}", f"v{tmp + 17}"
    P(f"v_add_f32 {s1}, v{x}, v{x + 1}")
    P(f"v_mul_f32 {s2}, v{x}, v{x}")
    P(f"v_fmac_f32 {s2}, v{x + 1}, v{x + 1}")
    for i in range(2, 16):
        P(f"v_add_f32 {s1}, {s1}, v{x + i}")
        P(f"v_fmac_f32 {s2}, v{x + i}, v{x + i}")
    P(f"v_permlane32_swap_b32 {s1}, {s2}")
    P(f"v_add_f32 {s1}, {s1}, {s2}")
    P(f"s_lshl_b32 {t1}, {t0}, 8")
    P(f"s_add_u32 {t1}, {t1}, {so}")
    P(f"v_lshlrev_b32 v4, 2, {vL}")
    P(f"buffer_store_dword {s1}, v4, {sWS}, {t1} offen sc1")
    if not is_p5:
        for d in range(8):
            P(f"v_lshlrev_b32 v5, 16, v{tmp + 64 + d}")
            P(f"v_and_b32 v6, 0xffff0000, v{tmp + 64 + d}")
            P(f"v_add_f32 v{x + 2 * d}, v{x + 2 * d}, v5")
            P(f"v_add_f32 v{x + 2 * d + 1}, v{x + 2 * d + 1}, v6")
    for i in range(16):
        P(f"v_accvgpr_write_b32 a{224 + i}, v{x + i}")
    P.add(publish(7 if is_p5 else 4, "v4", "v5"))
    if is_p5:
        P(f"s_branch {lj}")
        P.put(lout)
        P(f"v_and_b32 v4, 31, {vL}")
        P(f"v_lshrrev_b32 v5, 5, {vL}")
        P("v_lshlrev_b32 v4, 10, v4")
        P("v_lshl_add_u32 v4, v5, 4, v4")
        P(f"s_lshl_b32 {t0}, {sTP}, 15")
        P(f"s_lshl_b32 {t1}, {sCT}, 6")
        P(f"s_add_u32 {t0}, {t0}, {t1}")
        P(f"buffer_store_dwordx4 {V(pk)}, v4, {sOUT}, {t0} offen")
        P(f"buffer_store_dwordx4 {V(pk + 4)}, v4, {sOUT}, {t0} offen offset:32")
        P("s_endpgm")
        P.put(lj)


def acc_of(acc, tt, ct):
    i = 2 * tt + ct
    return A(224, 16) if i == 0 else V(acc + 16 * (i - 1), 16)


def phase3():
    acc, OF, WO = 16, 128, 192
    P(f"v_lshrrev_b32 v4, 1, {vL}")
    P(f"v_lshlrev_b32 v4, 9, v4")
    P(f"v_and_b32 v5, 1, {vL}")
    P(f"v_lshl_add_u32 v4, v5, 7, v4")
    P(f"s_lshl_b32 {t0}, {sC}, 13")
    P(f"s_lshl_b32 {t1}, {sW}, 11")
    P(f"s_add_u32 {t0}, {t0}, {t1}")
    P(f"s_and_b32 {t1}, {sM}, 1")
    P(f"s_lshl_b32 {t1}, {t1}, 8")
    P(f"s_add_u32 {t0}, {t0}, {t1}")
    P(f"v_add_u32 v4, {t0}, v4")
    poll("v4", "v5", "0xff", 3)
    P(f"s_lshl_b32 {t1}, {sW}, 13")
    P(f"s_add_u32 {t1}, {t1}, {O_O}")
    P(f"s_lshl_b32 {t2}, {sTP}, 15")
    P(f"s_add_u32 {t3}, {t1}, {t2}")
    P(f"s_xor_b32 {t2}, {t2}, 0x8000")
    P(f"s_add_u32 {t4}, {t1}, {t2}")
    for ks in range(8):
        if ks == 4:
            P(f"s_add_u32 {t3}, {t3}, 4096")
            P(f"s_add_u32 {t4}, {t4}, 4096")
        for tt in range(2):
            P(f"buffer_load_dwordx4 {V(OF + (ks * 2 + tt) * 4)}, {vL16}, {sWS}, {t3 if tt == 0 else t4} offen offset:{(ks % 4) * 1024} sc1")
    for ks in range(8):
        for tt in range(2):
            for ct in range(2):
                a = acc_of(acc, tt, ct)
                c = a if (ks or (tt == 0 and ct == 0)) else "0"
                P(f"{MF} {a}, {V(WO + (ks * 2 + ct) * 4)}, {V(OF + (ks * 2 + tt) * 4)}, {c}")
    reduce_epilogue(acc, 128, False)
    lsk = P.label()
    P(f"s_cmp_ge_u32 {sM}, 14")
    P(f"s_cbranch_scc1 {lsk}")
    w1_dma([3])
    P.put(lsk)


def gelu_tile(a, c0, c1, ir, tmp):
    out = []
    for i in range(16):
        x, t = f"v{a + i}", f"v{tmp + (i % 4)}"
        out += [f"v_mul_f32 {t}, {x}, {x}", f"v_fma_f32 {t}, {t}, {c1}, {c0}", f"v_mul_f32 {t}, {t}, {x}",
                f"v_exp_f32 {t}, {t}", f"v_fma_f32 {t}, {t}, {ir}, {ir}", f"v_rcp_f32 {t}, {t}", f"v_mul_f32 {x}, {x}, {t}"]
    res = []
    for g in range(4):
        blk = [out[(4 * g + e) * 7:(4 * g + e) * 7 + 7] for e in range(4)]
        for s in range(7):
            for e in range(4):
                res.append(blk[e][s])
        for i in (2 * g, 2 * g + 1):
            res.append(f"v_cvt_pk_bf16_f32 v{a + i}, v{a + 2 * i}, v{a + 2 * i + 1}")
    return res


def phase4():
    acc, ring, ex, stv, tabs = 16, 80, 8, 112, 0
    lidle, lj = P.label(), P.label()
    P(f"s_cmp_ge_u32 {sM}, 14")
    P(f"s_cbranch_scc1 {lidle}")
    P.need("wimg")
    barrier()
    l = if_l0()
    colsum(TAB0 + 3072, True, acc, ring, stv)
    P.put(l)
    x_flags_addr("v4", "v5")
    poll("v4", "v5", "0xffff", 4)
    load_x_chunks(X1_O, ST1_O, stv)
    stats_sum(stv)
    stats_finish(stv, ex, True)
    r, ir, c0, c1 = f"v{stv + 1}", f"v{stv + 2}", f"v{stv + 3}", f"v{stv + 4}"
    C0 = -2.0 * LOG2E * 0.7978845608028654
    P(f"v_mul_f32 {c0}, {fc(C0)}, {r}")
    P(f"v_mul_f32 {c1}, {r}, {r}")
    P(f"v_mul_f32 {c1}, {c1}, {c0}")
    P(f"v_mul_f32 {c1}, {fc(0.044715)}, {c1}")
    P(f"v_add_u32 v5, {TAB0 + 3072}, {vL16}")
    P(f"s_mul_i32 {t1}, {sT}, {112 * 1024}")
    P(f"s_lshl_b32 {t2}, {sM}, 13")
    P(f"s_add_u32 {t1}, {t1}, {t2}")
    P(f"s_add_u32 {t1}, {t1}, {H_O}")
    P(f"s_add_u32 {t2}, {t1}, 4096")
    D = 3
    for pr in range(2):
        for t in range(33 + D):
            if t < 32:
                P.add(trfrag("v", ring + 8 * (t % 4), (2 * pr) * IMG + t * 1024))
                P.add(trfrag("v", ring + 8 * (t % 4) + 4, (2 * pr + 1) * IMG + t * 1024))
            elif t == 32:
                P(f"ds_read_b128 {V(ring + 8 * (t % 4))}, v5 offset:{2048 * pr}")
                P(f"ds_read_b128 {V(ring + 8 * (t % 4) + 4)}, v5 offset:{2048 * pr + 1024}")
            if t >= D:
                k = t - D
                xb = V(XF + 4 * k) if k < 32 else V(ex)
                for e in range(2):
                    a = V(acc + 16 * (2 * pr + e), 16)
                    P(f"{MF} {a}, {V(ring + 8 * (k % 4) + 4 * e)}, {xb}, {a if k else 0}")
        for e in range(2):
            a = acc + 16 * (2 * pr + e)
            P.add(gelu_tile(a, c0, c1, ir, stv + 8))
            so = t1 if pr == 0 else t2
            P(f"buffer_store_dwordx4 {V(a)}, {vL16}, {sWS}, {so} offen offset:{2048 * e} sc1")
            P(f"buffer_store_dwordx4 {V(a + 4)}, {vL16}, {sWS}, {so} offen offset:{2048 * e + 1024} sc1")
        P.add(publish(5 + pr, "v4", "v6"))
    P(f"s_branch {lj}")
    P.put(lidle)
    P("s_barrier")
    l = if_l0()
    P("s_barrier")
    P.put(l)
    P.put(lj)
    barrier()
    l = if_l0()
    wq_dma()
    P.put(l)


def phase5():
    acc, HF = 16, 64
    NR = 48
    P(f"v_lshrrev_b32 v4, 1, {vL}")
    P(f"v_lshlrev_b32 v4, 9, v4")
    P(f"v_and_b32 v5, 1, {vL}")
    P(f"v_lshl_add_u32 v4, v5, 7, v4")
    P(f"s_lshl_b32 {t0}, {sC}, 13")
    P(f"s_lshr_b32 {t1}, {sW}, 1")
    P(f"s_mul_i32 {t1}, {t1}, {7 * 512}")
    P(f"s_add_u32 {t0}, {t0}, {t1}")
    P(f"s_and_b32 {t1}, {sM}, 1")
    P(f"s_lshl_b32 {t1}, {t1}, 8")
    P(f"s_add_u32 {t0}, {t0}, {t1}")
    P(f"v_add_u32 v4, {t0}, v4")
    P(f"s_lshr_b32 {t1}, {sW}, 1")
    P(f"s_mul_i32 {t1}, {t1}, {56 * 1024}")
    P(f"s_and_b32 {t2}, {sW}, 1")
    P(f"s_lshl_b32 {t2}, {t2}, 11")
    P(f"s_add_u32 {t1}, {t1}, {t2}")
    P(f"s_add_u32 {t1}, {t1}, {H_O}")
    P(f"s_mul_i32 {t3}, {sTP}, {112 * 1024}")
    P(f"s_add_u32 {t3}, {t3}, {t1}")
    P(f"s_xor_b32 {t4}, {sTP}, 1")
    P(f"s_mul_i32 {t4}, {t4}, {112 * 1024}")
    P(f"s_add_u32 {t4}, {t4}, {t1}")

    def loads(kk):
        late, e = kk // 14, kk % 14
        off = (8 * (e >> 1) + (e & 1) + 4 * late) * 1024
        out = []
        for tt in range(2):
            if (e & 1) == 0:
                out.append(Ins(f"s_add_u32 {t1 if tt == 0 else t2}, {t3 if tt == 0 else t4}, {off}"))
            f = HF + 4 * ((kk * 2 + tt) % NR)
            out.append(Ins(f"buffer_load_dwordx4 {V(f)}, {vL16}, {sWS}, {t1 if tt == 0 else t2} offen offset:{(e & 1) * 1024} sc1"))
        return out

    def mf(kk):
        out = []
        for tt in range(2):
            for ct in range(2):
                a = acc_of(acc, tt, ct)
                c = a if (kk or (tt == 0 and ct == 0)) else "0"
                out.append(Ins(f"{MF} {a}, {A((kk * 2 + ct) * 4)}, {V(HF + 4 * ((kk * 2 + tt) % NR))}, {c}"))
        return out
    poll("v4", "v5", "0x3fff", 5)
    for kk in range(14):
        P.add(loads(kk))
    for kk in range(14):
        P.add(mf(kk))
    poll("v4", "v5", "0x3fff", 6)
    for kk in range(14, 28):
        P.add(loads(kk))
    for kk in range(14, 28):
        P.add(mf(kk))
    reduce_epilogue(acc, 128, True)


def main():
    prologue()
    P.put("L_layer")
    phase1(); stop(1)
    phase2(); stop(2)
    phase3(); stop(3)
    phase4(); stop(4)
    phase5(); stop(5)
    P(f"s_add_u32 {sFB}, {sFB}, 8")
    P(f"s_add_u32 s28, s28, {LSTRIDE}")
    P("s_addc_u32 s29, s29, 0")
    P("s_branch L_layer")
    P.put("L_end")
    P("s_endpgm")
    body, ins = emit(P)
    hdr = open("interleave_layers__sliding_block__mixer_channel_mlp__prompt.s.ref").read()
    top = hdr.split("; @launch")[0]
    txt = top + "; @launch grid=(256,1,1) block=(256,1,1) lds=163840\n"
    txt += f""".amdgcn_target "amdgcn-amd-amdhsa--gfx950"
.text
.globl {KN}
.p2align 8
.type {KN},@function
{KN}:
{body}
.section .rodata,"a"
.p2align 6
.amdhsa_kernel {KN}
  .amdhsa_next_free_vgpr 512
  .amdhsa_next_free_sgpr 102
  .amdhsa_accum_offset 256
  .amdhsa_group_segment_fixed_size 0
  .amdhsa_kernarg_size 88
  .amdhsa_user_sgpr_count 2
  .amdhsa_user_sgpr_kernarg_segment_ptr 1
  .amdhsa_system_sgpr_workgroup_id_x 1
.end_amdhsa_kernel
"""
    open(sys.argv[1], "w").write(txt)
    print("instructions:", len(ins))


main()
```

```python
import sys, struct
from asmgen import Prog, Ins, emit, interleave, need_ins

KN = "interleave_layers__sliding_block__mixer_channel_mlp__prompt_kernel"
OPT = dict(a.split("=") for a in sys.argv[2:])
STOP = OPT.get("STOP")

MB = 1 << 20
KV_O, O_O, X1_O, XIN_O, ST1_O, ST2_O, H_O = 0, 4 * MB, 6 * MB, 8 * MB, 10 * MB, 10 * MB + 256 * 1024, 11 * MB
LSTRIDE = 20 * MB
OOB = 0x40000000
IMG = 32768
SLOT0 = 98304
def SLOT(i): return SLOT0 + 4096 * i
TAB0 = 155648
RBC = TAB0 + 7 * 1024

sC, sM, sW, sFB = "s4", "s5", "s6", "s7"
sX, sWQ, sWO, sW1, sW2, sWS, sFL, sOUT, sB2, sB1, sDBG = [f"s[{8 + 4 * i}:{11 + 4 * i}]" for i in range(11)]
sT, sTP, sCT, sCNT, sTG = "s52", "s53", "s54", "s55", "s56"
t0, t1, t2, t3, t4, t5, t6 = "s57", "s58", "s59", "s60", "s61", "s62", "s63"
def sMASK(r): return f"s[{64 + 2 * r}:{65 + 2 * r}]"
sH0, sH1, sLO = "s[96:97]", "s[98:99]", "s[100:101]"
vL, vL16, vTR, vTR1 = "v0", "v1", "v2", "v3"

def f2u(x): return struct.unpack("<I", struct.pack("<f", x))[0]
def fc(x): return hex(f2u(x))
def V(n, k=4): return f"v[{n}:{n + k - 1}]" if k > 1 else f"v{n}"
def A(n, k=4): return f"a[{n}:{n + k - 1}]" if k > 1 else f"a{n}"
def R(f, n, k=4): return f"{f}[{n}:{n + k - 1}]"

LOG2E = 1.4426950408889634
EPS = 1e-5
P = Prog()
MF = "v_mfma_f32_32x32x16_bf16"


def trfrag(f, n, addr, base=None, xsrc=()):
    if base is None:
        base, off = (vTR, addr) if addr < 65536 else (vTR1, addr - 65536)
    else:
        off = addr
    assert 0 <= off and off + 256 < 65536
    return [Ins(f"ds_read_b64_tr_b16 {R(f, n, 2)}, {base} offset:{off}", xsrc=xsrc),
            Ins(f"ds_read_b64_tr_b16 {R(f, n + 2, 2)}, {base} offset:{off + 256}", xsrc=xsrc)]


def dma_rows(srd, voff, sbase, pitch, nins, lds_s, lds_imm, tag, st=t0):
    out = []
    for j in range(nins):
        if j % 4 == 0:
            if lds_s is None:
                out.append(Ins(f"s_mov_b32 m0, {lds_imm + 1024 * j}"))
            else:
                out.append(Ins(f"s_add_u32 m0, {lds_s}, {lds_imm + 1024 * j}"))
        out.append(Ins(f"s_add_u32 {st}, {sbase}, {j * 16 * pitch - (j % 4) * 1024}"))
        out.append(Ins(f"buffer_load_dwordx4 {voff}, {srd}, {st} offen offset:{(j % 4) * 1024} lds", xdst=[tag]))
    return out


def dma_voff(v, pitch, tmp):
    P(f"v_lshrrev_b32 {v}, 2, {vL}")
    P(f"v_mul_u32_u24 {v}, {pitch}, {v}")
    P(f"v_and_b32 {tmp}, 3, {vL}")
    P(f"v_lshl_add_u32 {v}, {tmp}, 4, {v}")


def barrier():
    P.need("ds_any")
    P("s_barrier")


def poll(vaddr, vtmp, mask_lo, phase, mask_s=None):
    lp, done = P.label(), P.label()
    if mask_s is None:
        P(f"s_mov_b64 exec, {mask_lo}")
    else:
        P(f"s_mov_b64 exec, {mask_s}")
    P(f"s_add_u32 {sTG}, {sFB}, {phase}")
    P(f"s_mov_b32 {sCNT}, 20000")
    P.put(lp)
    P(f"buffer_load_dword {vtmp}, {vaddr}, {sFL}, 0 offen sc1")
    P(f"v_cmp_gt_u32 vcc, {sTG}, {vtmp}")
    P(f"s_cbranch_vccz {done}")
    P(f"s_sub_u32 {sCNT}, {sCNT}, 1")
    P(f"s_cbranch_scc0 {lp}")
    P("s_endpgm")
    P.put(done)
    P("s_mov_b64 exec, -1")


sMODE = t6
OUTL = []
def mstore(texts):
    ls, lr = P.label(), P.label()
    out = [Ins(f"s_cmp_eq_u32 {sMODE}, 0"), Ins(f"s_cbranch_scc1 {ls}")]
    out += [Ins(t) for t in texts]
    out.append(Ins(lr + ":"))
    OUTL.extend([Ins(ls + ":")] + [Ins(t + " sc1") for t in texts] + [Ins(f"s_branch {lr}")])
    return out


def publish(phase, va, vd):
    a = sCNT
    out = [Ins(f"s_lshl_b32 {a}, {sC}, 4"), Ins(f"s_add_u32 {a}, {a}, {sM}"), Ins(f"s_lshl_b32 {a}, {a}, 2"),
           Ins(f"s_add_u32 {a}, {a}, {sW}"), Ins(f"s_lshl_b32 {a}, {a}, 7"),
           Ins(f"s_add_u32 {t5}, {sFB}, {phase}"),
           Ins(f"v_mov_b32 {vd}, {t5}"), Ins(f"v_mov_b32 {va}, {131072 if phase == 1 else 0}"),
           need_ins("stores"),
           Ins("s_mov_b64 exec, 1")]
    if phase == 1:
        out.append(Ins(f"buffer_store_dword {vd}, {va}, {sFL}, {a} offen sc1"))
    else:
        out += mstore([f"buffer_store_dword {vd}, {va}, {sFL}, {a} offen"])
    out.append(Ins("s_mov_b64 exec, -1"))
    return out


PROF = int(OPT.get("PROF", 0))
NPT = [0]
PNAMES = []
def tick(name):
    if not PROF:
        return
    idx = NPT[0]; NPT[0] += 1
    PNAMES.append(name)
    assert idx < 32
    P("s_memrealtime s[0:1]")
    P(f"s_lshl_b32 s3, {sFB}, 2")
    P(f"s_add_u32 s3, s3, {idx}")
    P("s_mov_b32 m0, s3")
    P("s_waitcnt lgkmcnt(0)")
    P("v_writelane_b32 v7, s0, m0")


def prof_dump():
    if not PROF:
        return
    P(f"s_lshl_b32 {t0}, s2, 2")
    P(f"s_add_u32 {t0}, {t0}, {sW}")
    P(f"s_lshl_b32 {t0}, {t0}, 8")
    P(f"s_add_u32 {t0}, {t0}, {19 * MB}")
    P(f"v_lshlrev_b32 v4, 2, {vL}")
    P(f"buffer_store_dword v7, v4, {sWS}, {t0} offen")


def stop(ph):
    if STOP is None:
        return
    L, p = STOP.split(".")
    if int(p) != ph:
        return
    P(f"s_cmp_eq_u32 {sFB}, {8 * int(L)}")
    P("s_cbranch_scc1 L_end")


def if_l0():
    l = P.label()
    P(f"s_cmp_lg_u32 {sFB}, 0")
    P(f"s_cbranch_scc1 {l}")
    return l


def prologue():
    P("s_cmp_ge_u32 s2, 256")
    P("s_cbranch_scc1 L_end")
    P("s_load_dwordx16 s[64:79], s[0:1], 0")
    P("s_load_dwordx4 s[80:83], s[0:1], 64")
    P("s_load_dwordx2 s[84:85], s[0:1], 80")
    P("v_lshrrev_b32 v4, 6, v0")
    P("v_and_b32 v0, 63, v0")
    P(f"v_readfirstlane_b32 {sW}, v4")
    P("s_and_b32 s3, s2, 7")
    P(f"s_lshl_b32 {sC}, s3, 1")
    P("s_bfe_u32 s3, s2, 0x10003")
    P(f"s_or_b32 {sC}, {sC}, s3")
    P(f"s_lshr_b32 {sM}, s2, 4")
    P(f"s_mov_b32 {sFB}, 0")
    P(f"v_lshlrev_b32 {vL16}, 4, {vL}")
    P(f"v_lshrrev_b32 v4, 5, {vL}")
    P(f"v_bfe_u32 v5, {vL}, 2, 2")
    P("v_lshl_add_u32 v4, v4, 3, v5")
    P("v_lshlrev_b32 v4, 6, v4")
    P(f"v_bfe_u32 v5, {vL}, 4, 1")
    P("v_lshl_add_u32 v4, v5, 5, v4")
    P(f"v_and_b32 v5, 1, {vL}")
    P("v_lshl_add_u32 v4, v5, 4, v4")
    P(f"v_bfe_u32 v5, {vL}, 1, 1")
    P(f"v_lshl_add_u32 {vTR}, v5, 3, v4")
    P(f"v_add_u32 {vTR1}, 0x10000, {vTR}")
    P(f"s_lshl_b32 {sT}, {sC}, 2")
    P(f"s_and_b32 s3, {sM}, 1")
    P(f"s_lshl_b32 s3, s3, 1")
    P(f"s_add_u32 {sTP}, {sT}, s3")
    P(f"s_lshr_b32 s3, {sW}, 1")
    P(f"s_add_u32 {sTP}, {sTP}, s3")
    P(f"s_add_u32 {sT}, {sT}, {sW}")
    P(f"s_and_b32 {sCT}, {sM}, 14")
    P(f"s_and_b32 s3, {sW}, 1")
    P(f"s_add_u32 {sCT}, {sCT}, s3")
    def srd(n, src, size):
        P(f"s_mov_b32 s{n}, s{src}")
        P(f"s_mov_b32 s{n + 1}, s{src + 1}")
        P(f"s_mov_b32 s{n + 2}, {size}")
        P(f"s_mov_b32 s{n + 3}, 0x00020000")
    srd(8, 64, 2 * MB)
    srd(12, 66, 512 * 1536 * 2)
    srd(16, 68, 512 * 512 * 2)
    srd(20, 72, 512 * 1792 * 2)
    srd(24, 76, 1792 * 512 * 2)
    srd(32, 84, 256 * 1024)
    srd(36, 80, 2 * MB)
    srd(40, 78, 1024)
    srd(44, 74, 3584)
    srd(48, 82, 256)
    P(f"s_add_u32 s28, s84, {MB}")
    P("s_addc_u32 s29, s85, 0")
    P(f"s_mov_b32 s30, {2 * LSTRIDE}")
    P("s_mov_b32 s31, 0x00020000")
    P("s_mov_b32 s96, 0xffff")
    P("s_mov_b32 s97, 0xffff")
    P("s_mov_b32 s98, 0xffff0000")
    P("s_mov_b32 s99, 0xffff0000")
    P("s_mov_b32 s100, -1")
    P("s_mov_b32 s101, 0")
    P(f"s_getreg_b32 {sMODE}, hwreg(HW_REG_XCC_ID, 0, 4)")
    P(f"s_or_b32 {sMODE}, {sMODE}, 0x10")
    tick("s.start")
    P(f"v_and_b32 v4, 31, {vL}")
    P(f"v_lshrrev_b32 v5, 5, {vL}")
    P("v_lshlrev_b32 v5, 2, v5")
    P("v_sub_u32 v4, v4, v5")
    for r in range(16):
        P(f"v_cmp_le_i32_e64 {sMASK(r)}, {(r & 3) + 8 * (r >> 2)}, v4")
    l = P.label()
    P(f"s_cmp_lg_u32 {sW}, 0")
    P(f"s_cbranch_scc1 {l}")
    P(f"s_lshl_b32 {t0}, {sC}, 4")
    P(f"s_add_u32 {t0}, {t0}, {sM}")
    P(f"s_lshl_b32 {t0}, {t0}, 9")
    P(f"v_lshlrev_b32 v4, 7, {vL}")
    P("v_mov_b32 v5, 0")
    P("s_mov_b64 exec, 15")
    P(f"buffer_store_dword v5, v4, {sFL}, {t0} offen sc1")
    P(f"s_add_u32 {t0}, {t0}, 131072")
    P(f"buffer_store_dword v5, v4, {sFL}, {t0} offen sc1")
    P("s_mov_b64 exec, 1")
    P(f"v_mov_b32 v5, {sMODE}")
    P("v_mov_b32 v4, s2")
    P.need("stores")
    P(f"buffer_store_byte v5, v4, {sDBG}, 0 offen sc1")
    P("s_mov_b64 exec, -1")
    P.put(l)
    P(f"v_and_b32 v4, 31, {vL}")
    P(f"v_lshrrev_b32 v5, 5, {vL}")
    P("v_lshlrev_b32 v4, 10, v4")
    P("v_lshl_add_u32 v4, v5, 4, v4")
    P(f"s_lshl_b32 {t0}, {sTP}, 15")
    P(f"s_lshl_b32 {t1}, {sCT}, 6")
    P(f"s_add_u32 {t0}, {t0}, {t1}")
    P(f"buffer_load_dwordx4 v[8:11], v4, {sX}, {t0} offen")
    P(f"buffer_load_dwordx4 v[12:15], v4, {sX}, {t0} offen offset:32")
    for d in range(8):
        P(f"v_lshlrev_b32 v5, 16, v{8 + d}")
        P(f"v_and_b32 v6, 0xffff0000, v{8 + d}")
        P(f"v_accvgpr_write_b32 a{224 + 2 * d}, v5")
        P(f"v_accvgpr_write_b32 a{225 + 2 * d}, v6")
    tick("s.resid")
    w2_stage_simple()
    tick("s.w2stg")
    wq_dma()


def w2_row0(kk):
    late, e = kk // 14, kk % 14
    return 128 * (e >> 1) + 16 * (e & 1) + 64 * late


def w2_stage_simple():
    dma_voff("v4", 1024, "v5")
    P(f"s_lshr_b32 {t2}, {sW}, 1")
    P(f"s_mul_i32 {t2}, {t2}, {896 * 1024}")
    P(f"s_and_b32 {t3}, {sW}, 1")
    P(f"s_lshl_b32 {t3}, {t3}, 15")
    P(f"s_add_u32 {t2}, {t2}, {t3}")
    P(f"s_lshl_b32 {t3}, {sCT}, 6")
    P(f"s_add_u32 {t1}, {t2}, {t3}")
    P(f"s_xor_b32 {t3}, {t3}, 64")
    P(f"s_add_u32 {t2}, {t2}, {t3}")
    P(f"s_mul_i32 {t3}, {sW}, 14336")
    P(f"s_add_u32 {t3}, {t3}, {SLOT0}")
    P(f"v_add_u32 v5, {t3}, {vTR}")
    for rnd in range(4):
        for q in range(7):
            kk = rnd * 7 + q
            for ct in range(2):
                P(f"s_add_u32 m0, {t3}, {(2 * q + ct) * 1024}")
                P(f"s_add_u32 {t0}, {t1 if ct == 0 else t2}, {w2_row0(kk) * 1024}")
                P(f"buffer_load_dwordx4 v4, {sW2}, {t0} offen lds", xdst=["stg"])
        P.need("stg")
        for q in range(7):
            kk = rnd * 7 + q
            for ct in range(2):
                P.add(trfrag("a", (kk * 2 + ct) * 4, (2 * q + ct) * 1024, base="v5"))
        P.need("ds_any")


def wq_dma():
    dma_voff("v4", 3072, "v5")
    P(f"s_mul_i32 {t1}, {sW}, {128 * 3072}")
    P(f"s_lshl_b32 {t2}, {sM}, 6")
    P(f"s_add_u32 {t1}, {t1}, {t2}")
    P(f"s_lshl_b32 {t3}, {sW}, 13")
    for img, cb in ((0, 1024), (1, 2048), (2, 0)):
        P(f"s_add_u32 {t2}, {t1}, {cb}")
        P.add(dma_rows(sWQ, "v4", t2, 3072, 8, t3, img * IMG, "wimg"))


def w1_dma(tiles, vt="v4", vt2="v5"):
    dma_voff(vt, 3584, vt2)
    P(f"s_mul_i32 {t1}, {sW}, {128 * 3584}")
    P(f"s_lshl_b32 {t2}, {sM}, 8")
    P(f"s_add_u32 {t1}, {t1}, {t2}")
    P(f"s_lshl_b32 {t3}, {sW}, 13")
    for tl in tiles:
        P(f"s_add_u32 {t2}, {t1}, {tl * 64}")
        P.add(dma_rows(sW1, vt, t2, 3584, 8, t3, tl * IMG, "wimg"))


def wo_dma(vt="v4", vt2="v5"):
    dma_voff(vt, 1024, vt2)
    P(f"s_lshl_b32 {t1}, {sW}, 17")
    P(f"s_lshl_b32 {t2}, {sCT}, 6")
    P(f"s_add_u32 {t4}, {t1}, {t2}")
    P(f"s_lshl_b32 {t3}, {sW}, 13")
    P.add(dma_rows(sWO, vt, t4, 1024, 8, t3, 0, "woimg"))
    P(f"s_xor_b32 {t2}, {t2}, 64")
    P(f"s_add_u32 {t4}, {t1}, {t2}")
    P.add(dma_rows(sWO, vt, t4, 1024, 8, t3, IMG, "woimg"))


XF = 128


def colsum(tab_base, with_bias, acc, ring, tmp):
    va, ones, vb = f"v{tmp}", tmp + 4, f"v{tmp + 1}"
    P(f"s_lshl_b32 {t0}, {sW}, 15")
    P(f"v_add_u32 {va}, {t0}, {vTR}")
    for j in range(4):
        P(f"v_mov_b32 v{ones + j}, 0x3f803f80")
    if with_bias:
        P(f"v_and_b32 {vb}, 0x13, {vL}")
        P(f"v_bfe_u32 v{tmp + 2}, {vL}, 2, 1")
        P(f"v_lshl_add_u32 {vb}, v{tmp + 2}, 3, {vb}")
        P(f"v_bfe_u32 v{tmp + 2}, {vL}, 3, 1")
        P(f"v_lshl_add_u32 {vb}, v{tmp + 2}, 2, {vb}")
        P(f"v_lshlrev_b32 {vb}, 1, {vb}")
        P(f"s_lshl_b32 {t0}, {sM}, 8")
        P(f"s_lshl_b32 {t1}, {sW}, 6")
        P(f"s_add_u32 {t0}, {t0}, {t1}")
        P(f"buffer_load_ushort {vb}, {vb}, {sB1}, {t0} offen")
    else:
        P(f"v_mov_b32 {vb}, 0")
    D = 6
    for t in range(32 + D):
        if t < 32:
            P.add(trfrag("v", ring + 4 * (t % 8), t * 1024, base=va))
        if t >= D:
            k = t - D
            P(f"{MF} {V(acc, 16)}, {V(ones)}, {V(ring + 4 * (k % 8))}, {V(acc, 16) if k else 0}")
    c, o = f"v{tmp + 2}", ones
    P(f"v_cndmask_b32_e64 {c}, 0, v{acc}, {sLO}")
    P(f"v_cndmask_b32_e64 {vb}, 0, {vb}, {sLO}")
    P(f"v_cvt_pk_bf16_f32 v{o}, {c}, {c}")
    P(f"v_lshlrev_b32 v{o + 1}, 16, v{o}")
    P(f"v_sub_f32 v{o + 1}, {c}, v{o + 1}")
    P(f"v_and_b32 v{o + 2}, 0xffff, v{o}")
    P(f"v_cvt_pk_bf16_f32 v{o}, {c}, v{o + 1}")
    P(f"v_lshl_or_b32 v{o + 1}, {vb}, 16, v{o + 2}")
    P(f"v_mov_b32 v{o + 2}, {vb}")
    P(f"v_mov_b32 v{o + 3}, 0")
    P(f"s_lshl_b32 {t0}, {sW}, 10")
    P(f"s_add_u32 {t0}, {t0}, {tab_base}")
    P(f"v_add_u32 {va}, {t0}, {vL16}")
    P(f"ds_write_b128 {va}, {V(o)}")
    barrier()


def x_flags_addr(va, vt):
    P(f"v_and_b32 {va}, 14, {vL}")
    P(f"v_lshlrev_b32 {va}, 9, {va}")
    P(f"v_and_b32 {vt}, 1, {vL}")
    P(f"v_lshl_add_u32 {va}, {vt}, 7, {va}")
    P(f"s_lshl_b32 {t0}, {sC}, 13")
    P(f"s_lshr_b32 {t1}, {sW}, 1")
    P(f"s_lshl_b32 {t1}, {t1}, 9")
    P(f"s_add_u32 {t0}, {t0}, {t1}")
    P(f"s_and_b32 {t1}, {sW}, 1")
    P(f"s_lshl_b32 {t1}, {t1}, 8")
    P(f"s_add_u32 {t0}, {t0}, {t1}")
    P(f"v_add_u32 {va}, {t0}, {va}")


def load_x_chunks(xoff, stoff, stv):
    P(f"s_lshl_b32 {t0}, {sT}, 12")
    P(f"s_add_u32 {t0}, {t0}, {stoff}")
    P(f"v_lshlrev_b32 v4, 2, {vL}")
    for s in range(16):
        P(f"buffer_load_dword v{stv + s}, v4, {sWS}, {t0} offen offset:{s * 256} sc1")
    P(f"s_lshl_b32 {t1}, {sT}, 15")
    for t in range(32):
        if t % 4 == 0:
            P(f"s_add_u32 {t0}, {t1}, {xoff + t * 1024}")
        P(f"buffer_load_dwordx4 {V(XF + 4 * t)}, {vL16}, {sWS}, {t0} offen offset:{(t % 4) * 1024} sc1")


def stats_sum(stv):
    for st in (8, 4, 2, 1):
        for i in range(st):
            P(f"v_add_f32 v{stv + i}, v{stv + i}, v{stv + i + st}")


def stats_finish(stv, ex, mlp):
    a, b, c, d = (f"v{stv + i}" for i in range(4))
    e = f"v{stv + 4}"
    P(f"v_mov_b32 {b}, {a}")
    P(f"v_permlane32_swap_b32 {a}, {b}")
    P(f"v_mul_f32 {a}, {fc(-1.0 / 512)}, {a}")
    P(f"v_mul_f32 {c}, {a}, {a}")
    P(f"v_mul_f32 {b}, {fc(1.0 / 512)}, {b}")
    P(f"v_sub_f32 {b}, {b}, {c}")
    P(f"v_max_f32 {b}, 0, {b}")
    P(f"v_add_f32 {c}, {fc(EPS)}, {b}")
    P(f"v_rsq_f32 {d}, {c}")
    if mlp:
        P(f"v_mul_f32 {b}, {b}, {d}")
        P(f"v_mul_f32 {b}, {b}, {d}")
        P(f"v_add_f32 {b}, {fc(EPS)}, {b}")
        P(f"v_rsq_f32 {b}, {b}")
        P(f"v_mul_f32 {b}, {b}, {d}")
        P(f"v_rcp_f32 {c}, {b}")
    else:
        P(f"v_mov_b32 {b}, {d}")
        P(f"v_mul_f32 {c}, {c}, {d}")
    P(f"v_cvt_pk_bf16_f32 v{ex}, {a}, {a}")
    P(f"v_lshlrev_b32 {d}, 16, v{ex}")
    P(f"v_sub_f32 {d}, {a}, {d}")
    P(f"v_cvt_pk_bf16_f32 v{ex + 1}, {d}, {c}")
    P(f"v_and_b32 {d}, 0xffff0000, v{ex + 1}")
    P(f"v_sub_f32 {d}, {c}, {d}")
    P(f"v_mov_b32 {e}, 0")
    P(f"v_cvt_pk_bf16_f32 v{ex + 2}, {d}, {e}")
    P(f"v_mov_b32 v{ex + 3}, 0")


def phase1():
    aK, aV, aQ, ring, ex, tabs, stv = 16, 32, 48, 64, 96, 100, 112
    l1, lj = P.label(), P.label()
    P(f"s_cmp_lg_u32 {sFB}, 0")
    P(f"s_cbranch_scc1 {l1}")
    P(f"v_and_b32 v4, 31, {vL}")
    P(f"v_lshrrev_b32 v5, 5, {vL}")
    P("v_lshlrev_b32 v4, 10, v4")
    P("v_lshl_add_u32 v4, v5, 4, v4")
    P(f"s_lshl_b32 {t0}, {sT}, 15")
    for t in range(32):
        P(f"buffer_load_dwordx4 {V(XF + 4 * t)}, v4, {sX}, {t0} offen offset:{t * 32}")
    P(f"v_mov_b32 v5, 0x3f803f80")
    for i in range(4):
        P(f"v_mov_b32 v{stv + i}, 0")
    for i in range(128):
        P(f"v_dot2_f32_bf16 v{stv + (i & 1)}, v{XF + i}, v5, v{stv + (i & 1)}")
        P(f"v_dot2_f32_bf16 v{stv + 2 + (i & 1)}, v{XF + i}, v{XF + i}, v{stv + 2 + (i & 1)}")
    P(f"v_add_f32 v{stv}, v{stv}, v{stv + 1}")
    P(f"v_add_f32 v{stv + 2}, v{stv + 2}, v{stv + 3}")
    P(f"v_permlane32_swap_b32 v{stv}, v{stv + 2}")
    P(f"v_add_f32 v{stv}, v{stv}, v{stv + 2}")
    P.need("wimg")
    barrier()
    colsum(TAB0, False, aK, ring, ex)
    P(f"s_branch {lj}")
    P.put(l1)
    x_flags_addr("v4", "v5")
    poll("v4", "v5", "0xffff", -1)
    load_x_chunks(XIN_O, ST2_O, stv)
    stats_sum(stv)
    P.need("wimg")
    barrier()
    P.put(lj)
    tick("p1.x+w")
    stats_finish(stv, ex, False)
    r = f"v{stv + 1}"
    P(f"s_lshl_b32 {t0}, {sW}, 7")
    P(f"s_add_u32 {t0}, {t0}, {RBC}")
    P(f"v_and_b32 v4, 31, {vL}")
    P(f"v_lshl_add_u32 v4, v4, 2, {t0}")
    P(f"ds_write_b32 v4, {r}")
    P(f"v_add_u32 v5, {TAB0}, {vL16}")
    for j in range(3):
        P(f"ds_read_b128 {V(tabs + 4 * j)}, v5 offset:{1024 * j}")
    D = 3
    for t in range(32 + D):
        if t < 32:
            P.add(trfrag("v", ring + 8 * (t % 4), t * 1024))
            P.add(trfrag("v", ring + 8 * (t % 4) + 4, IMG + t * 1024))
        if t >= D:
            k = t - D
            P(f"{MF} {V(aK, 16)}, {V(ring + 8 * (k % 4))}, {V(XF + 4 * k)}, {V(aK, 16) if k else 0}")
            P(f"{MF} {V(aV, 16)}, {V(XF + 4 * k)}, {V(ring + 8 * (k % 4) + 4)}, {V(aV, 16) if k else 0}")
    P(f"{MF} {V(aK, 16)}, {V(tabs)}, {V(ex)}, {V(aK, 16)}")
    P(f"{MF} {V(aV, 16)}, {V(ex)}, {V(tabs + 4)}, {V(aV, 16)}")
    tick("p1.kv")
    P(f"v_lshrrev_b32 v4, 5, {vL}")
    P(f"v_lshl_add_u32 v4, v4, 4, {t0}")
    for g in range(4):
        P(f"ds_read_b128 {V(ring + 4 * g)}, v4 offset:{32 * g}")
    for i in range(16):
        P(f"v_mul_f32 v{aK + i}, v{aK + i}, {r}")
    for i in range(8):
        P(f"v_cvt_pk_bf16_f32 v{aK + i}, v{aK + 2 * i}, v{aK + 2 * i + 1}")
    for i in range(16):
        P(f"v_mul_f32 v{aV + i}, v{aV + i}, v{ring + i}")
    for i in range(8):
        P(f"v_cvt_pk_bf16_f32 v{aV + i}, v{aV + 2 * i}, v{aV + 2 * i + 1}")
    P(f"v_bfe_u32 v4, {vL}, 4, 1")
    P(f"v_lshlrev_b32 v4, 11, v4")
    P(f"v_and_b32 v5, 15, {vL}")
    P(f"v_lshl_add_u32 v4, v5, 4, v4")
    P(f"v_lshrrev_b32 v5, 5, {vL}")
    P(f"v_lshl_add_u32 v4, v5, 8, v4")
    P(f"s_lshl_b32 {t0}, {sT}, 4")
    P(f"s_add_u32 {t0}, {t0}, {sM}")
    P(f"s_lshl_b32 {t0}, {t0}, 12")
    P(f"buffer_store_dwordx4 {V(aK)}, {vL16}, {sWS}, {t0} offen sc1")
    P(f"buffer_store_dwordx4 {V(aK + 4)}, {vL16}, {sWS}, {t0} offen offset:2048 sc1")
    P(f"buffer_store_dwordx4 {V(aV)}, v4, {sWS}, {t0} offen offset:1024 sc1")
    P(f"buffer_store_dwordx4 {V(aV + 4)}, v4, {sWS}, {t0} offen offset:1536 sc1")
    P(f"s_lshl_b32 {t0}, {sW}, 12")
    P(f"s_add_u32 {t0}, {t0}, {SLOT(8)}")
    P(f"v_add_u32 v5, {t0}, {vL16}")
    P(f"v_add_u32 v4, {t0}, v4")
    P(f"ds_write_b128 v5, {V(aK)}")
    P(f"ds_write_b128 v5, {V(aK + 4)} offset:2048")
    P(f"ds_write_b128 v4, {V(aV)} offset:1024")
    P(f"ds_write_b128 v4, {V(aV + 4)} offset:1536")
    D = 6
    for t in range(32 + D):
        if t < 32:
            P.add(trfrag("v", ring + 4 * (t % 8), 2 * IMG + t * 1024))
        if t >= D:
            k = t - D
            P(f"{MF} {V(aQ, 16)}, {V(ring + 4 * (k % 8))}, {V(XF + 4 * k)}, {V(aQ, 16) if k else 0}")
        if t == 24:
            P.add(publish(1, "v4", "v5"))
    P(f"{MF} {V(aQ, 16)}, {V(tabs + 8)}, {V(ex)}, {V(aQ, 16)}")
    P(f"v_mul_f32 {r}, {fc(0.25 * LOG2E)}, {r}")
    for i in range(16):
        P(f"v_mul_f32 v{aQ + i}, v{aQ + i}, {r}")
    for i in range(8):
        P(f"v_cvt_pk_bf16_f32 v{8 + i}, v{aQ + 2 * i}, v{aQ + 2 * i + 1}")


def phase2():
    tick("p1.end")
    l = if_l0()
    lp, dn = P.label(), P.label()
    P(f"v_lshlrev_b32 v4, 2, {vL}")
    P(f"s_mov_b32 {sCNT}, 20000")
    P(f"s_mov_b32 {t0}, 0x10101010")
    P.put(lp)
    P(f"buffer_load_dword v5, v4, {sDBG}, 0 offen sc1")
    P(f"v_and_b32 v6, {t0}, v5")
    P(f"v_cmp_ne_u32 vcc, {t0}, v6")
    P(f"s_cbranch_vccz {dn}")
    P(f"s_sub_u32 {sCNT}, {sCNT}, 1")
    P(f"s_cbranch_scc0 {lp}")
    P("s_endpgm")
    P.put(dn)
    P(f"s_and_b32 {t0}, s2, 3")
    P(f"s_lshl_b32 {t0}, {t0}, 3")
    P(f"v_lshrrev_b32 v5, {t0}, v5")
    P(f"v_and_b32 v5, 0xff, v5")
    P(f"s_bfe_u32 {t0}, s2, 0x20002")
    P(f"v_and_b32 v6, 3, {vL}")
    P(f"v_cmp_eq_u32 vcc, {t0}, v6")
    P(f"v_cmp_ne_u32_e64 s[60:61], {sMODE}, v5")
    P(f"s_and_b64 vcc, vcc, s[60:61]")
    P(f"s_cselect_b32 {sMODE}, 0, 1")
    if OPT.get("SLOW"):
        P(f"s_mov_b32 {sMODE}, 0")
    P.put(l)
    lskip = P.label()
    P(f"s_cmp_eq_u32 {sC}, 0")
    P(f"s_cbranch_scc1 {lskip}")
    P(f"s_lshl_b32 {t0}, {sC}, 4")
    P(f"s_add_u32 {t0}, {t0}, {sM}")
    P(f"s_lshl_b32 {t0}, {t0}, 2")
    P(f"s_add_u32 {t0}, {t0}, {sW}")
    P(f"s_lshl_b32 {t0}, {t0}, 7")
    P(f"s_add_u32 {t0}, {t0}, {131072 - 8192}")
    P(f"v_lshlrev_b32 v4, 13, {vL}")
    P(f"v_sub_u32 v4, {t0}, v4")
    P(f"s_cmp_eq_u32 {sC}, 1")
    P(f"s_cselect_b32 {t3}, 1, 3")
    P(f"s_mov_b32 {t4}, 0")
    poll("v4", "v5", None, 1, mask_s="s[60:61]")
    P.put(lskip)
    tick("p2.poll")
    hb = 64
    for i, back in ((0, 8), (1, 4)):
        P(f"s_sub_u32 {t0}, {sT}, {back}")
        P(f"s_lshl_b32 {t0}, {t0}, 4")
        P(f"s_add_u32 {t0}, {t0}, {sM}")
        P(f"s_lshl_b32 {t0}, {t0}, 12")
        P(f"s_cmp_lt_u32 {sT}, {back}")
        P(f"s_cselect_b32 {t0}, {OOB}, {t0}")
        for j in range(4):
            P(f"buffer_load_dwordx4 {V(hb + 16 * i + 4 * j)}, {vL16}, {sWS}, {t0} offen offset:{1024 * j} sc1")
    P(f"s_lshl_b32 {t0}, {sW}, 12")
    P(f"s_add_u32 {t0}, {t0}, {SLOT0}")
    P(f"v_add_u32 v4, {t0}, {vL16}")
    for i in range(2):
        for j in range(4):
            P(f"ds_write_b128 v4, {V(hb + 16 * i + 4 * j)} offset:{16384 * i + 1024 * j}")
    KA, VA, PM = 16, 25, 26
    P(f"v_lshrrev_b32 v5, 5, {vL}")
    P(f"v_lshlrev_b32 v5, 9, v5")
    P(f"s_lshl_b32 {t1}, {sC}, 14")
    P(f"s_sub_u32 {t1}, {SLOT(8)}, {t1}")
    P(f"v_add_u32 v5, {t1}, v5")
    for j in range(9):
        if j < 8:
            P(f"v_add_u32 v6, {4096 * j}, v4")
            P(f"s_cmp_lt_u32 {sT}, {8 - j}")
            P(f"s_cselect_b64 vcc, -1, 0")
            P(f"v_cndmask_b32 v{KA + j}, v6, v5, vcc")
        else:
            P(f"v_add_u32 v{KA + j}, {4096 * j}, v4")
    P(f"v_and_b32 v5, 15, {vL}")
    P(f"v_lshrrev_b32 v6, 5, {vL}")
    P(f"v_lshl_add_u32 v5, v6, 4, v5")
    P(f"v_lshl_add_u32 v{VA}, v5, 4, {t0}")
    P(f"v_mov_b32 v5, 0xffff")
    P(f"v_mov_b32 v6, 0xffff0000")
    for d in range(8):
        P(f"v_cndmask_b32_e64 v{PM + d}, 0, v5, {sMASK(2 * d)}")
        P(f"v_cndmask_b32_e64 v34, 0, v6, {sMASK(2 * d + 1)}")
        P(f"v_or_b32 v{PM + d}, v{PM + d}, v34")
    barrier()
    tick("p2.B2")
    wo_dma()
    KF, S0, NM, OA, VF = 36, 72, 136, 152, 168
    for h in range(2):
        q = V(8 + 4 * h)
        half = sH0 if h == 0 else sH1
        for j in range(9):
            P(f"ds_read_b128 {V(KF + 4 * j)}, v{KA + j} offset:{2048 * h}")
        for i in range(24):
            P(f"v_mov_b32 v{VF + i}, 0x3f803f80")
        order = [8, 0, 1, 2, 3, 4, 5, 6, 7]
        def sb(n): return S0 + 16 * (n % 4)
        m = "v4"
        for n in range(9 + 2):
            if n < 9:
                P(f"{MF} {V(sb(n), 16)}, {V(KF + 4 * order[n])}, {q}, 0")
            k = n - 2
            if k == 1:
                for r in range(16):
                    P(f"v_cndmask_b32_e64 v{sb(1) + r}, v{sb(1) + r}, v{sb(0) + r}, {sMASK(r)}")
            if k >= 1:
                s = sb(k)
                for i in range(8):
                    if k == 1 and i == 0:
                        P(f"v_max_f32 {m}, v{s}, v{s + 1}")
                    else:
                        P(f"v_max3_f32 {m}, {m}, v{s + 2 * i}, v{s + 2 * i + 1}")
        P(f"v_mov_b32 v5, {m}")
        P(f"v_permlane32_swap_b32 {m}, v5")
        P(f"v_max_f32 {m}, {m}, v5")
        for i in range(16):
            P(f"v_sub_f32 v{NM + i}, 0, {m}")
        def vload(j, dst):
            if j < 8:
                P(f"s_cmp_lt_u32 {sT}, {8 - j}")
                P(f"s_cselect_b64 exec, -1, {half}")
            else:
                P(f"s_mov_b64 exec, {half}")
            P(f"ds_read_b128 {V(dst)}, v{VA} offset:{4096 * j + 2048 * h + 1024}")
            P(f"ds_read_b128 {V(dst + 4)}, v{VA} offset:{4096 * j + 2048 * h + 1536}")
            P("s_mov_b64 exec, -1")
        order = [8, 0, 7, 6, 5, 4, 3, 2, 1]
        vload(8, VF)
        vload(0, VF + 16)
        first = True
        for n in range(9 + 2):
            if n < 9:
                P(f"{MF} {V(sb(n), 16)}, {V(KF + 4 * order[n])}, {q}, {V(NM, 16)}")
            k = n - 2
            if k == 1:
                for r in range(16):
                    P(f"v_cndmask_b32_e64 v{sb(1) + r}, v{sb(1) + r}, v{sb(0) + r}, {sMASK(r)}")
            if k >= 1:
                s = sb(k)
                pb = s
                vf = VF + 8 * ((k - 1) & 1)
                if k + 1 < 9:
                    vload(order[k + 1], VF + 8 * (k & 1))
                for i in range(16):
                    P(f"v_exp_f32 v{s + i}, v{s + i}")
                for i in range(8):
                    P(f"v_cvt_pk_bf16_f32 v{pb + i}, v{s + 2 * i}, v{s + 2 * i + 1}")
                if k == 1:
                    pb2 = s + 8
                    for i in range(8):
                        P(f"v_and_b32 v{pb2 + i}, v{pb + i}, v{PM + i}")
                        P(f"v_xor_b32 v{pb + i}, v{pb + i}, v{pb2 + i}")
                    P(f"{MF} {V(OA, 16)}, {V(vf)}, {V(pb2)}, 0")
                    P(f"{MF} {V(OA, 16)}, {V(vf + 4)}, {V(pb2 + 4)}, {V(OA, 16)}")
                    P(f"{MF} {V(OA, 16)}, {V(VF + 16)}, {V(pb)}, {V(OA, 16)}")
                    P(f"{MF} {V(OA, 16)}, {V(VF + 20)}, {V(pb + 4)}, {V(OA, 16)}")
                else:
                    P(f"{MF} {V(OA, 16)}, {V(vf)}, {V(pb)}, {V(OA, 16)}")
                    P(f"{MF} {V(OA, 16)}, {V(vf + 4)}, {V(pb + 4)}, {V(OA, 16)}")
        o, sm = (OA, OA + 8) if h == 0 else (OA + 8, OA)
        P(f"v_rcp_f32 v4, v{sm}")
        for i in range(8):
            P(f"v_mul_f32 v{o + i}, v{o + i}, v4")
        for i in range(4):
            P(f"v_cvt_pk_bf16_f32 v{sm + i}, v{o + 2 * i}, v{o + 2 * i + 1}")
        P(f"s_lshl_b32 {t0}, {sT}, 4")
        P(f"s_add_u32 {t0}, {t0}, {sM}")
        P(f"s_lshl_b32 {t0}, {t0}, 11")
        P(f"s_add_u32 {t0}, {t0}, {O_O}")
        P.add(mstore([f"buffer_store_dwordx4 {V(sm)}, {vL16}, {sWS}, {t0} offen offset:{1024 * h}"]))
        if h == 0:
            tick("p2.h0")
            P.need("woimg")
            P(f"s_lshl_b32 {t0}, {sW}, 13")
            P(f"v_add_u32 v5, {t0}, {vTR}")
            for ks in range(8):
                for ct in range(2):
                    P.add(trfrag("v", 192 + (ks * 2 + ct) * 4, ct * IMG + ks * 1024, base="v5"))
            P.need("ds_any")
            lsk = P.label()
            P(f"s_cmp_ge_u32 {sM}, 14")
            P(f"s_cbranch_scc1 {lsk}")
            w1_dma([0, 1, 2], "v5", "v6")
            P.put(lsk)
            tick("p2.wo")
    tick("p2.h1")
    P.add(publish(3, "v4", "v5"))
    tick("p2.end")


def reduce_epilogue(acc, tmp, is_p5):
    for i in (1, 2, 3):
        P(f"s_xor_b32 {t0}, {sW}, {i}")
        if i < 3:
            P(f"s_lshl_b32 {t0}, {t0}, 13")
            P(f"s_add_u32 {t0}, {t0}, {SLOT(i - 1)}")
        else:
            P(f"s_lshl_b32 {t0}, {t0}, 12")
            P(f"s_add_u32 {t0}, {t0}, {SLOT(8)}")
        P(f"v_add_u32 v{8 + i}, {t0}, {vL16}")
    if not is_p5:
        barrier()
    for i in (1, 2, 3):
        for j in range(4):
            P(f"ds_write_b128 v{8 + i}, {V(acc + 16 * (i - 1) + 4 * j)} offset:{1024 * j}")
    P(f"s_lshl_b32 {t0}, {sW}, 13")
    P(f"s_add_u32 {t0}, {t0}, {SLOT(0)}")
    P(f"v_add_u32 v5, {t0}, {vL16}")
    P(f"s_lshl_b32 {t0}, {sW}, 12")
    P(f"s_add_u32 {t0}, {t0}, {SLOT(8)}")
    P(f"v_add_u32 v6, {t0}, {vL16}")
    if not is_p5:
        P(f"v_lshrrev_b32 v4, 5, {vL}")
        P(f"v_lshlrev_b32 v4, 4, v4")
        P(f"s_lshl_b32 {t0}, {sCT}, 6")
        P(f"buffer_load_dwordx4 {V(tmp + 64)}, v4, {sB2}, {t0} offen")
        P(f"buffer_load_dwordx4 {V(tmp + 68)}, v4, {sB2}, {t0} offen offset:32")
    x = tmp + 48
    for i in range(16):
        P(f"v_accvgpr_read_b32 v{x + i}, a{224 + i}")
    barrier()
    for j in range(8):
        P(f"ds_read_b128 {V(tmp + 4 * j)}, v5 offset:{1024 * j}")
    for j in range(4):
        P(f"ds_read_b128 {V(tmp + 32 + 4 * j)}, v6 offset:{1024 * j}")
    for p in range(3):
        for i in range(16):
            P(f"v_add_f32 v{x + i}, v{x + i}, v{tmp + 16 * p + i}")
    pk = tmp
    for i in range(8):
        P(f"v_cvt_pk_bf16_f32 v{pk + i}, v{x + 2 * i}, v{x + 2 * i + 1}")
    lout, lj = P.label(), P.label()
    if is_p5:
        P(f"s_cmp_lg_u32 {sFB}, 0")
        P(f"s_cbranch_scc1 {lout}")
    xo, so = (LSTRIDE + XIN_O, LSTRIDE + ST2_O) if is_p5 else (X1_O, ST1_O)
    P(f"s_lshl_b32 {t0}, {sTP}, 4")
    P(f"s_add_u32 {t0}, {t0}, {sCT}")
    P(f"s_lshl_b32 {t1}, {t0}, 11")
    P(f"s_add_u32 {t1}, {t1}, {xo}")
    P.add(mstore([f"buffer_store_dwordx4 {V(pk)}, {vL16}, {sWS}, {t1} offen",
                  f"buffer_store_dwordx4 {V(pk + 4)}, {vL16}, {sWS}, {t1} offen offset:1024"]))
    s1, s2 = f"v{tmp + 16}", f"v{tmp + 17}"
    P(f"v_add_f32 {s1}, v{x}, v{x + 1}")
    P(f"v_mul_f32 {s2}, v{x}, v{x}")
    P(f"v_fmac_f32 {s2}, v{x + 1}, v{x + 1}")
    for i in range(2, 16):
        P(f"v_add_f32 {s1}, {s1}, v{x + i}")
        P(f"v_fmac_f32 {s2}, v{x + i}, v{x + i}")
    P(f"v_permlane32_swap_b32 {s1}, {s2}")
    P(f"v_add_f32 {s1}, {s1}, {s2}")
    P(f"s_lshl_b32 {t1}, {t0}, 8")
    P(f"s_add_u32 {t1}, {t1}, {so}")
    P(f"v_lshlrev_b32 v4, 2, {vL}")
    P.add(mstore([f"buffer_store_dword {s1}, v4, {sWS}, {t1} offen"]))
    if not is_p5:
        for d in range(8):
            P(f"v_lshlrev_b32 v5, 16, v{tmp + 64 + d}")
            P(f"v_and_b32 v6, 0xffff0000, v{tmp + 64 + d}")
            P(f"v_add_f32 v{x + 2 * d}, v{x + 2 * d}, v5")
            P(f"v_add_f32 v{x + 2 * d + 1}, v{x + 2 * d + 1}, v6")
    for i in range(16):
        P(f"v_accvgpr_write_b32 a{224 + i}, v{x + i}")
    P.add(publish(7 if is_p5 else 4, "v4", "v5"))
    if is_p5:
        P(f"s_branch {lj}")
        P.put(lout)
        P(f"v_and_b32 v4, 31, {vL}")
        P(f"v_lshrrev_b32 v5, 5, {vL}")
        P("v_lshlrev_b32 v4, 10, v4")
        P("v_lshl_add_u32 v4, v5, 4, v4")
        P(f"s_lshl_b32 {t0}, {sTP}, 15")
        P(f"s_lshl_b32 {t1}, {sCT}, 6")
        P(f"s_add_u32 {t0}, {t0}, {t1}")
        P(f"buffer_store_dwordx4 {V(pk)}, v4, {sOUT}, {t0} offen")
        P(f"buffer_store_dwordx4 {V(pk + 4)}, v4, {sOUT}, {t0} offen offset:32")
        if PROF:
            P.need("stores")
            NPT[0] += 1; PNAMES.append("p5.end")
            tick("final")
            NPT[0] -= 2; PNAMES.pop(); PNAMES.pop()
            prof_dump()
        P("s_endpgm")
        P.put(lj)


def acc_of(acc, tt, ct):
    i = 2 * tt + ct
    return A(224, 16) if i == 0 else V(acc + 16 * (i - 1), 16)


def phase3():
    acc, OF, WO = 16, 128, 192
    P(f"v_lshrrev_b32 v4, 1, {vL}")
    P(f"v_lshlrev_b32 v4, 9, v4")
    P(f"v_and_b32 v5, 1, {vL}")
    P(f"v_lshl_add_u32 v4, v5, 7, v4")
    P(f"s_lshl_b32 {t0}, {sC}, 13")
    P(f"s_lshl_b32 {t1}, {sW}, 11")
    P(f"s_add_u32 {t0}, {t0}, {t1}")
    P(f"s_and_b32 {t1}, {sM}, 1")
    P(f"s_lshl_b32 {t1}, {t1}, 8")
    P(f"s_add_u32 {t0}, {t0}, {t1}")
    P(f"v_add_u32 v4, {t0}, v4")
    poll("v4", "v5", "0xff", 3)
    tick("p3.poll")
    P(f"s_lshl_b32 {t1}, {sW}, 13")
    P(f"s_add_u32 {t1}, {t1}, {O_O}")
    P(f"s_lshl_b32 {t2}, {sTP}, 15")
    P(f"s_add_u32 {t3}, {t1}, {t2}")
    P(f"s_xor_b32 {t2}, {t2}, 0x8000")
    P(f"s_add_u32 {t4}, {t1}, {t2}")
    for ks in range(8):
        if ks == 4:
            P(f"s_add_u32 {t3}, {t3}, 4096")
            P(f"s_add_u32 {t4}, {t4}, 4096")
        for tt in range(2):
            P(f"buffer_load_dwordx4 {V(OF + (ks * 2 + tt) * 4)}, {vL16}, {sWS}, {t3 if tt == 0 else t4} offen offset:{(ks % 4) * 1024} sc1")
    for ks in range(8):
        for tt in range(2):
            for ct in range(2):
                a = acc_of(acc, tt, ct)
                c = a if (ks or (tt == 0 and ct == 0)) else "0"
                P(f"{MF} {a}, {V(WO + (ks * 2 + ct) * 4)}, {V(OF + (ks * 2 + tt) * 4)}, {c}")
    tick("p3.mm")
    reduce_epilogue(acc, 128, False)
    tick("p3.end")
    lsk = P.label()
    P(f"s_cmp_ge_u32 {sM}, 14")
    P(f"s_cbranch_scc1 {lsk}")
    w1_dma([3])
    P.put(lsk)


def gelu_tile(a, c0, c1, ir, tmp):
    out = []
    for i in range(16):
        x, t = f"v{a + i}", f"v{tmp + (i % 4)}"
        out += [f"v_mul_f32 {t}, {x}, {x}", f"v_fma_f32 {t}, {t}, {c1}, {c0}", f"v_mul_f32 {t}, {t}, {x}",
                f"v_exp_f32 {t}, {t}", f"v_fma_f32 {t}, {t}, {ir}, {ir}", f"v_rcp_f32 {t}, {t}", f"v_mul_f32 {x}, {x}, {t}"]
    res = []
    for g in range(4):
        blk = [out[(4 * g + e) * 7:(4 * g + e) * 7 + 7] for e in range(4)]
        for s in range(7):
            for e in range(4):
                res.append(blk[e][s])
        for i in (2 * g, 2 * g + 1):
            res.append(f"v_cvt_pk_bf16_f32 v{a + i}, v{a + 2 * i}, v{a + 2 * i + 1}")
    return res


def phase4():
    acc, ring, ex, stv, tabs = 16, 80, 8, 112, 0
    lidle, lj = P.label(), P.label()
    P(f"s_cmp_ge_u32 {sM}, 14")
    P(f"s_cbranch_scc1 {lidle}")
    P.need("wimg")
    barrier()
    l = if_l0()
    colsum(TAB0 + 3072, True, acc, ring, stv)
    P.put(l)
    tick("p4.B5")
    x_flags_addr("v4", "v5")
    poll("v4", "v5", "0xffff", 4)
    tick("p4.poll")
    load_x_chunks(X1_O, ST1_O, stv)
    stats_sum(stv)
    stats_finish(stv, ex, True)
    r, ir, c0, c1 = f"v{stv + 1}", f"v{stv + 2}", f"v{stv + 3}", f"v{stv + 4}"
    C0 = -2.0 * LOG2E * 0.7978845608028654
    P(f"v_mul_f32 {c0}, {fc(C0)}, {r}")
    P(f"v_mul_f32 {c1}, {r}, {r}")
    P(f"v_mul_f32 {c1}, {c1}, {c0}")
    P(f"v_mul_f32 {c1}, {fc(0.044715)}, {c1}")
    P(f"v_add_u32 v5, {TAB0 + 3072}, {vL16}")
    P(f"s_mul_i32 {t1}, {sT}, {112 * 1024}")
    P(f"s_lshl_b32 {t2}, {sM}, 13")
    P(f"s_add_u32 {t1}, {t1}, {t2}")
    P(f"s_add_u32 {t1}, {t1}, {H_O}")
    P(f"s_add_u32 {t2}, {t1}, 4096")
    D = 3
    for pr in range(2):
        for t in range(33 + D):
            if t < 32:
                P.add(trfrag("v", ring + 8 * (t % 4), (2 * pr) * IMG + t * 1024))
                P.add(trfrag("v", ring + 8 * (t % 4) + 4, (2 * pr + 1) * IMG + t * 1024))
            elif t == 32:
                P(f"ds_read_b128 {V(ring + 8 * (t % 4))}, v5 offset:{2048 * pr}")
                P(f"ds_read_b128 {V(ring + 8 * (t % 4) + 4)}, v5 offset:{2048 * pr + 1024}")
            if t >= D:
                k = t - D
                xb = V(XF + 4 * k) if k < 32 else V(ex)
                for e in range(2):
                    a = V(acc + 16 * (2 * pr + e), 16)
                    P(f"{MF} {a}, {V(ring + 8 * (k % 4) + 4 * e)}, {xb}, {a if k else 0}")
        tick(f"p4.mm{pr}")
        for e in range(2):
            a = acc + 16 * (2 * pr + e)
            P.add(gelu_tile(a, c0, c1, ir, stv + 8))
            so = t1 if pr == 0 else t2
            P.add(mstore([f"buffer_store_dwordx4 {V(a)}, {vL16}, {sWS}, {so} offen offset:{2048 * e}",
                          f"buffer_store_dwordx4 {V(a + 4)}, {vL16}, {sWS}, {so} offen offset:{2048 * e + 1024}"]))
        tick(f"p4.ge{pr}")
        P.add(publish(5 + pr, "v4", "v6"))
        tick(f"p4.pub{pr}")
    P(f"s_branch {lj}")
    P.put(lidle)
    P("s_barrier")
    l = if_l0()
    P("s_barrier")
    P.put(l)
    P.put(lj)
    barrier()
    tick("p4.B6")
    l = if_l0()
    wq_dma()
    P.put(l)


def phase5():
    acc, HF = 16, 64
    NR = 48
    P(f"v_lshrrev_b32 v4, 1, {vL}")
    P(f"v_lshlrev_b32 v4, 9, v4")
    P(f"v_and_b32 v5, 1, {vL}")
    P(f"v_lshl_add_u32 v4, v5, 7, v4")
    P(f"s_lshl_b32 {t0}, {sC}, 13")
    P(f"s_lshr_b32 {t1}, {sW}, 1")
    P(f"s_mul_i32 {t1}, {t1}, {7 * 512}")
    P(f"s_add_u32 {t0}, {t0}, {t1}")
    P(f"s_and_b32 {t1}, {sM}, 1")
    P(f"s_lshl_b32 {t1}, {t1}, 8")
    P(f"s_add_u32 {t0}, {t0}, {t1}")
    P(f"v_add_u32 v4, {t0}, v4")
    P(f"s_lshr_b32 {t1}, {sW}, 1")
    P(f"s_mul_i32 {t1}, {t1}, {56 * 1024}")
    P(f"s_and_b32 {t2}, {sW}, 1")
    P(f"s_lshl_b32 {t2}, {t2}, 11")
    P(f"s_add_u32 {t1}, {t1}, {t2}")
    P(f"s_add_u32 {t1}, {t1}, {H_O}")
    P(f"s_mul_i32 {t3}, {sTP}, {112 * 1024}")
    P(f"s_add_u32 {t3}, {t3}, {t1}")
    P(f"s_xor_b32 {t4}, {sTP}, 1")
    P(f"s_mul_i32 {t4}, {t4}, {112 * 1024}")
    P(f"s_add_u32 {t4}, {t4}, {t1}")

    def loads(kk):
        late, e = kk // 14, kk % 14
        off = (8 * (e >> 1) + (e & 1) + 4 * late) * 1024
        out = []
        for tt in range(2):
            if (e & 1) == 0:
                out.append(Ins(f"s_add_u32 {t1 if tt == 0 else t2}, {t3 if tt == 0 else t4}, {off}"))
            f = HF + 4 * ((kk * 2 + tt) % NR)
            out.append(Ins(f"buffer_load_dwordx4 {V(f)}, {vL16}, {sWS}, {t1 if tt == 0 else t2} offen offset:{(e & 1) * 1024} sc1"))
        return out

    def mf(kk):
        out = []
        for tt in range(2):
            for ct in range(2):
                a = acc_of(acc, tt, ct)
                c = a if (kk or (tt == 0 and ct == 0)) else "0"
                out.append(Ins(f"{MF} {a}, {A((kk * 2 + ct) * 4)}, {V(HF + 4 * ((kk * 2 + tt) % NR))}, {c}"))
        return out
    poll("v4", "v5", "0x3fff", 5)
    tick("p5.poll5")
    for kk in range(14):
        P.add(loads(kk))
    for kk in range(14):
        P.add(mf(kk))
    tick("p5.mm0")
    poll("v4", "v5", "0x3fff", 6)
    tick("p5.poll6")
    for kk in range(14, 28):
        P.add(loads(kk))
    for kk in range(14, 28):
        P.add(mf(kk))
    tick("p5.mm1")
    reduce_epilogue(acc, 128, True)
    tick("p5.end")


def main():
    prologue()
    P.put("L_layer")
    phase1(); stop(1)
    phase2(); stop(2)
    phase3(); stop(3)
    phase4(); stop(4)
    phase5(); stop(5)
    P(f"s_add_u32 {sFB}, {sFB}, 8")
    P(f"s_add_u32 s28, s28, {LSTRIDE}")
    P("s_addc_u32 s29, s29, 0")
    P("s_branch L_layer")
    P.put("L_end")
    P("s_endpgm")
    P.add(OUTL)
    body, ins = emit(P)
    hdr = open("interleave_layers__sliding_block__mixer_channel_mlp__prompt.s.ref").read()
    top = hdr.split("; @launch")[0]
    txt = top + "; @launch grid=(256,1,1) block=(256,1,1) lds=163840\n"
    txt += f""".amdgcn_target "amdgcn-amd-amdhsa--gfx950"
.text
.globl {KN}
.p2align 8
.type {KN},@function
{KN}:
{body}
.section .rodata,"a"
.p2align 6
.amdhsa_kernel {KN}
  .amdhsa_next_free_vgpr 512
  .amdhsa_next_free_sgpr 102
  .amdhsa_accum_offset 256
  .amdhsa_group_segment_fixed_size 0
  .amdhsa_kernarg_size 88
  .amdhsa_user_sgpr_count 2
  .amdhsa_user_sgpr_kernarg_segment_ptr 1
  .amdhsa_system_sgpr_workgroup_id_x 1
.end_amdhsa_kernel
"""
    open(sys.argv[1], "w").write(txt)
    print("instructions:", len(ins))
    open(sys.argv[1] + ".names", "w").write(" ".join(PNAMES + ["final"]))


main()
```

```python
import sys, struct
from asmgen import Prog, Ins, emit, interleave, need_ins

KN = "interleave_layers__sliding_block__mixer_channel_mlp__prompt_kernel"
OPT = dict(a.split("=") for a in sys.argv[2:])
STOP = OPT.get("STOP")

MB = 1 << 20
KV_O, O_O, X1_O, XIN_O, ST1_O, ST2_O, H_O = 0, 4 * MB, 6 * MB, 8 * MB, 10 * MB, 10 * MB + 256 * 1024, 11 * MB
LSTRIDE = 20 * MB
OOB = 0x40000000
IMG = 32768
SLOT0 = 98304
def SLOT(i): return SLOT0 + 4096 * i
TAB0 = 155648
RBC = TAB0 + 7 * 1024

sC, sM, sW, sFB = "s4", "s5", "s6", "s7"
sX, sWQ, sWO, sW1, sW2, sWS, sFL, sOUT, sB2, sB1, sDBG = [f"s[{8 + 4 * i}:{11 + 4 * i}]" for i in range(11)]
sT, sTP, sCT, sCNT, sTG = "s52", "s53", "s54", "s55", "s56"
t0, t1, t2, t3, t4, t5, t6 = "s57", "s58", "s59", "s60", "s61", "s62", "s63"
def sMASK(r): return f"s[{64 + 2 * r}:{65 + 2 * r}]"
sH0, sH1, sLO = "s[96:97]", "s[98:99]", "s[100:101]"
vL, vL16, vTR, vTR1 = "v0", "v1", "v2", "v3"

def f2u(x): return struct.unpack("<I", struct.pack("<f", x))[0]
def fc(x): return hex(f2u(x))
def V(n, k=4): return f"v[{n}:{n + k - 1}]" if k > 1 else f"v{n}"
def A(n, k=4): return f"a[{n}:{n + k - 1}]" if k > 1 else f"a{n}"
def R(f, n, k=4): return f"{f}[{n}:{n + k - 1}]"

LOG2E = 1.4426950408889634
EPS = 1e-5
P = Prog()
MF = "v_mfma_f32_32x32x16_bf16"


def trfrag(f, n, addr, base=None, xsrc=()):
    if base is None:
        base, off = (vTR, addr) if addr < 65536 else (vTR1, addr - 65536)
    else:
        off = addr
    assert 0 <= off and off + 256 < 65536
    return [Ins(f"ds_read_b64_tr_b16 {R(f, n, 2)}, {base} offset:{off}", xsrc=xsrc),
            Ins(f"ds_read_b64_tr_b16 {R(f, n + 2, 2)}, {base} offset:{off + 256}", xsrc=xsrc)]


def dma_rows(srd, voff, sbase, pitch, nins, lds_s, lds_imm, tag, st=t0):
    out = []
    for j in range(nins):
        if j % 4 == 0:
            if lds_s is None:
                out.append(Ins(f"s_mov_b32 m0, {lds_imm + 1024 * j}"))
            else:
                out.append(Ins(f"s_add_u32 m0, {lds_s}, {lds_imm + 1024 * j}"))
        out.append(Ins(f"s_add_u32 {st}, {sbase}, {j * 16 * pitch - (j % 4) * 1024}"))
        out.append(Ins(f"buffer_load_dwordx4 {voff}, {srd}, {st} offen offset:{(j % 4) * 1024} lds", xdst=[tag]))
    return out


def dma_voff(v, pitch, tmp):
    P(f"v_lshrrev_b32 {v}, 2, {vL}")
    P(f"v_mul_u32_u24 {v}, {pitch}, {v}")
    P(f"v_and_b32 {tmp}, 3, {vL}")
    P(f"v_lshl_add_u32 {v}, {tmp}, 4, {v}")


def barrier():
    P.need("ds_any")
    P("s_barrier")


def poll(vaddr, vtmp, mask_lo, phase, mask_s=None):
    lp, done = P.label(), P.label()
    if mask_s is None:
        P(f"s_mov_b64 exec, {mask_lo}")
    else:
        P(f"s_mov_b64 exec, {mask_s}")
    P(f"s_add_u32 {sTG}, {sFB}, {phase}")
    P(f"s_mov_b32 {sCNT}, 20000")
    P.put(lp)
    P(f"buffer_load_dword {vtmp}, {vaddr}, {sFL}, 0 offen sc1")
    P(f"v_cmp_gt_u32 vcc, {sTG}, {vtmp}")
    P(f"s_cbranch_vccz {done}")
    P(f"s_sub_u32 {sCNT}, {sCNT}, 1")
    P(f"s_cbranch_scc0 {lp}")
    P("s_endpgm")
    P.put(done)
    P("s_mov_b64 exec, -1")


sMODE = t6
OUTL = []
def mstore(texts):
    ls, lr = P.label(), P.label()
    out = [Ins(f"s_cmp_eq_u32 {sMODE}, 0"), Ins(f"s_cbranch_scc1 {ls}")]
    out += [Ins(t) for t in texts]
    out.append(Ins(lr + ":"))
    OUTL.extend([Ins(ls + ":")] + [Ins(t + " sc1") for t in texts] + [Ins(f"s_branch {lr}")])
    return out


def publish(phase, va, vd):
    a = sCNT
    out = [Ins(f"s_lshl_b32 {a}, {sC}, 4"), Ins(f"s_add_u32 {a}, {a}, {sM}"), Ins(f"s_lshl_b32 {a}, {a}, 2"),
           Ins(f"s_add_u32 {a}, {a}, {sW}"), Ins(f"s_lshl_b32 {a}, {a}, 7"),
           Ins(f"s_add_u32 {t5}, {sFB}, {phase}"),
           Ins(f"v_mov_b32 {vd}, {t5}"), Ins(f"v_mov_b32 {va}, {131072 if phase == 1 else 0}"),
           need_ins("stores"),
           Ins("s_mov_b64 exec, 1")]
    if phase == 1:
        out.append(Ins(f"buffer_store_dword {vd}, {va}, {sFL}, {a} offen sc1"))
    else:
        out += mstore([f"buffer_store_dword {vd}, {va}, {sFL}, {a} offen"])
    out.append(Ins("s_mov_b64 exec, -1"))
    return out


PROF = int(OPT.get("PROF", 0))
NPT = [0]
PNAMES = []
def tick(name):
    if not PROF:
        return
    idx = NPT[0]; NPT[0] += 1
    PNAMES.append(name)
    assert idx < 32
    P("s_memrealtime s[0:1]")
    P(f"s_lshl_b32 s3, {sFB}, 2")
    P(f"s_add_u32 s3, s3, {idx}")
    P("s_mov_b32 m0, s3")
    P("s_waitcnt lgkmcnt(0)")
    P("v_writelane_b32 v7, s0, m0")


def prof_dump():
    if not PROF:
        return
    P(f"s_lshl_b32 {t0}, s2, 2")
    P(f"s_add_u32 {t0}, {t0}, {sW}")
    P(f"s_lshl_b32 {t0}, {t0}, 8")
    P(f"s_add_u32 {t0}, {t0}, {19 * MB}")
    P(f"v_lshlrev_b32 v4, 2, {vL}")
    P(f"buffer_store_dword v7, v4, {sWS}, {t0} offen")


def stop(ph):
    if STOP is None:
        return
    L, p = STOP.split(".")
    if int(p) != ph:
        return
    P(f"s_cmp_eq_u32 {sFB}, {8 * int(L)}")
    P("s_cbranch_scc1 L_end")


def if_l0():
    l = P.label()
    P(f"s_cmp_lg_u32 {sFB}, 0")
    P(f"s_cbranch_scc1 {l}")
    return l


def prologue():
    P("s_cmp_ge_u32 s2, 256")
    P("s_cbranch_scc1 L_end")
    P("s_load_dwordx16 s[64:79], s[0:1], 0")
    P("s_load_dwordx4 s[80:83], s[0:1], 64")
    P("s_load_dwordx2 s[84:85], s[0:1], 80")
    P("v_lshrrev_b32 v4, 6, v0")
    P("v_and_b32 v0, 63, v0")
    P(f"v_readfirstlane_b32 {sW}, v4")
    P("s_and_b32 s3, s2, 7")
    P(f"s_lshl_b32 {sC}, s3, 1")
    P("s_bfe_u32 s3, s2, 0x10003")
    P(f"s_or_b32 {sC}, {sC}, s3")
    P(f"s_lshr_b32 {sM}, s2, 4")
    P(f"s_mov_b32 {sFB}, 0")
    P(f"v_lshlrev_b32 {vL16}, 4, {vL}")
    P(f"v_lshrrev_b32 v4, 5, {vL}")
    P(f"v_bfe_u32 v5, {vL}, 2, 2")
    P("v_lshl_add_u32 v4, v4, 3, v5")
    P("v_lshlrev_b32 v4, 6, v4")
    P(f"v_bfe_u32 v5, {vL}, 4, 1")
    P("v_lshl_add_u32 v4, v5, 5, v4")
    P(f"v_and_b32 v5, 1, {vL}")
    P("v_lshl_add_u32 v4, v5, 4, v4")
    P(f"v_bfe_u32 v5, {vL}, 1, 1")
    P(f"v_lshl_add_u32 {vTR}, v5, 3, v4")
    P(f"v_add_u32 {vTR1}, 0x10000, {vTR}")
    P(f"s_lshl_b32 {sT}, {sC}, 2")
    P(f"s_and_b32 s3, {sM}, 1")
    P(f"s_lshl_b32 s3, s3, 1")
    P(f"s_add_u32 {sTP}, {sT}, s3")
    P(f"s_lshr_b32 s3, {sW}, 1")
    P(f"s_add_u32 {sTP}, {sTP}, s3")
    P(f"s_add_u32 {sT}, {sT}, {sW}")
    P(f"s_and_b32 {sCT}, {sM}, 14")
    P(f"s_and_b32 s3, {sW}, 1")
    P(f"s_add_u32 {sCT}, {sCT}, s3")
    def srd(n, src, size):
        P(f"s_mov_b32 s{n}, s{src}")
        P(f"s_mov_b32 s{n + 1}, s{src + 1}")
        P(f"s_mov_b32 s{n + 2}, {size}")
        P(f"s_mov_b32 s{n + 3}, 0x00020000")
    srd(8, 64, 2 * MB)
    srd(12, 66, 512 * 1536 * 2)
    srd(16, 68, 512 * 512 * 2)
    srd(20, 72, 512 * 1792 * 2)
    srd(24, 76, 1792 * 512 * 2)
    srd(32, 84, 256 * 1024)
    srd(36, 80, 2 * MB)
    srd(40, 78, 1024)
    srd(44, 74, 3584)
    srd(48, 82, 256)
    P(f"s_add_u32 s28, s84, {MB}")
    P("s_addc_u32 s29, s85, 0")
    P(f"s_mov_b32 s30, {2 * LSTRIDE}")
    P("s_mov_b32 s31, 0x00020000")
    P("s_mov_b32 s96, 0xffff")
    P("s_mov_b32 s97, 0xffff")
    P("s_mov_b32 s98, 0xffff0000")
    P("s_mov_b32 s99, 0xffff0000")
    P("s_mov_b32 s100, -1")
    P("s_mov_b32 s101, 0")
    P(f"s_getreg_b32 {sMODE}, hwreg(HW_REG_XCC_ID, 0, 4)")
    P(f"s_or_b32 {sMODE}, {sMODE}, 0x10")
    tick("s.start")
    P(f"v_and_b32 v4, 31, {vL}")
    P(f"v_lshrrev_b32 v5, 5, {vL}")
    P("v_lshlrev_b32 v5, 2, v5")
    P("v_sub_u32 v4, v4, v5")
    for r in range(16):
        P(f"v_cmp_le_i32_e64 {sMASK(r)}, {(r & 3) + 8 * (r >> 2)}, v4")
    l = P.label()
    P(f"s_cmp_lg_u32 {sW}, 0")
    P(f"s_cbranch_scc1 {l}")
    P(f"s_lshl_b32 {t0}, {sC}, 4")
    P(f"s_add_u32 {t0}, {t0}, {sM}")
    P(f"s_lshl_b32 {t0}, {t0}, 9")
    P(f"v_lshlrev_b32 v4, 7, {vL}")
    P("v_mov_b32 v5, 0")
    P("s_mov_b64 exec, 15")
    P(f"buffer_store_dword v5, v4, {sFL}, {t0} offen sc1")
    P(f"s_add_u32 {t0}, {t0}, 131072")
    P(f"buffer_store_dword v5, v4, {sFL}, {t0} offen sc1")
    P("s_mov_b64 exec, 1")
    P(f"v_mov_b32 v5, {sMODE}")
    P("v_mov_b32 v4, s2")
    P.need("stores")
    P(f"buffer_store_byte v5, v4, {sDBG}, 0 offen sc1")
    P("s_mov_b64 exec, -1")
    P.put(l)
    P(f"v_and_b32 v4, 31, {vL}")
    P(f"v_lshrrev_b32 v5, 5, {vL}")
    P("v_lshlrev_b32 v4, 10, v4")
    P("v_lshl_add_u32 v4, v5, 4, v4")
    P(f"s_lshl_b32 {t0}, {sTP}, 15")
    P(f"s_lshl_b32 {t1}, {sCT}, 6")
    P(f"s_add_u32 {t0}, {t0}, {t1}")
    P(f"buffer_load_dwordx4 v[8:11], v4, {sX}, {t0} offen")
    P(f"buffer_load_dwordx4 v[12:15], v4, {sX}, {t0} offen offset:32")
    for d in range(8):
        P(f"v_lshlrev_b32 v5, 16, v{8 + d}")
        P(f"v_and_b32 v6, 0xffff0000, v{8 + d}")
        P(f"v_accvgpr_write_b32 a{224 + 2 * d}, v5")
        P(f"v_accvgpr_write_b32 a{225 + 2 * d}, v6")
    tick("s.resid")
    w2_stage_simple()
    tick("s.w2stg")
    wq_dma()


def w2_row0(kk):
    late, e = kk // 14, kk % 14
    return 128 * (e >> 1) + 16 * (e & 1) + 64 * late


def w2_stage_simple():
    dma_voff("v4", 1024, "v5")
    P(f"s_lshr_b32 {t2}, {sW}, 1")
    P(f"s_mul_i32 {t2}, {t2}, {896 * 1024}")
    P(f"s_and_b32 {t3}, {sW}, 1")
    P(f"s_lshl_b32 {t3}, {t3}, 15")
    P(f"s_add_u32 {t2}, {t2}, {t3}")
    P(f"s_lshl_b32 {t3}, {sCT}, 6")
    P(f"s_add_u32 {t1}, {t2}, {t3}")
    P(f"s_xor_b32 {t3}, {t3}, 64")
    P(f"s_add_u32 {t2}, {t2}, {t3}")
    P(f"s_mul_i32 {t3}, {sW}, 14336")
    P(f"s_add_u32 {t3}, {t3}, {SLOT0}")
    P(f"v_add_u32 v5, {t3}, {vTR}")
    for rnd in range(4):
        for q in range(7):
            kk = rnd * 7 + q
            for ct in range(2):
                P(f"s_add_u32 m0, {t3}, {(2 * q + ct) * 1024}")
                P(f"s_add_u32 {t0}, {t1 if ct == 0 else t2}, {w2_row0(kk) * 1024}")
                P(f"buffer_load_dwordx4 v4, {sW2}, {t0} offen lds", xdst=["stg"])
        P.need("stg")
        for q in range(7):
            kk = rnd * 7 + q
            for ct in range(2):
                P.add(trfrag("a", (kk * 2 + ct) * 4, (2 * q + ct) * 1024, base="v5"))
        P.need("ds_any")


def wq_dma():
    dma_voff("v4", 3072, "v5")
    P(f"s_mul_i32 {t1}, {sW}, {128 * 3072}")
    P(f"s_lshl_b32 {t2}, {sM}, 6")
    P(f"s_add_u32 {t1}, {t1}, {t2}")
    P(f"s_lshl_b32 {t3}, {sW}, 13")
    for img, cb in ((0, 1024), (1, 2048), (2, 0)):
        P(f"s_add_u32 {t2}, {t1}, {cb}")
        P.add(dma_rows(sWQ, "v4", t2, 3072, 8, t3, img * IMG, "wimg"))


def w1_dma(tiles, vt="v4", vt2="v5"):
    dma_voff(vt, 3584, vt2)
    P(f"s_mul_i32 {t1}, {sW}, {128 * 3584}")
    P(f"s_lshl_b32 {t2}, {sM}, 8")
    P(f"s_add_u32 {t1}, {t1}, {t2}")
    P(f"s_lshl_b32 {t3}, {sW}, 13")
    for tl in tiles:
        P(f"s_add_u32 {t2}, {t1}, {tl * 64}")
        P.add(dma_rows(sW1, vt, t2, 3584, 8, t3, tl * IMG, "wimg"))


def wo_dma(vt="v4", vt2="v5"):
    dma_voff(vt, 1024, vt2)
    P(f"s_lshl_b32 {t1}, {sW}, 17")
    P(f"s_lshl_b32 {t2}, {sCT}, 6")
    P(f"s_add_u32 {t4}, {t1}, {t2}")
    P(f"s_lshl_b32 {t3}, {sW}, 13")
    P.add(dma_rows(sWO, vt, t4, 1024, 8, t3, 0, "woimg"))
    P(f"s_xor_b32 {t2}, {t2}, 64")
    P(f"s_add_u32 {t4}, {t1}, {t2}")
    P.add(dma_rows(sWO, vt, t4, 1024, 8, t3, IMG, "woimg"))


XF = 128


def colsum(tab_base, with_bias, acc, ring, tmp):
    va, ones, vb = f"v{tmp}", tmp + 4, f"v{tmp + 1}"
    P(f"s_lshl_b32 {t0}, {sW}, 15")
    P(f"v_add_u32 {va}, {t0}, {vTR}")
    for j in range(4):
        P(f"v_mov_b32 v{ones + j}, 0x3f803f80")
    if with_bias:
        P(f"v_and_b32 {vb}, 0x13, {vL}")
        P(f"v_bfe_u32 v{tmp + 2}, {vL}, 2, 1")
        P(f"v_lshl_add_u32 {vb}, v{tmp + 2}, 3, {vb}")
        P(f"v_bfe_u32 v{tmp + 2}, {vL}, 3, 1")
        P(f"v_lshl_add_u32 {vb}, v{tmp + 2}, 2, {vb}")
        P(f"v_lshlrev_b32 {vb}, 1, {vb}")
        P(f"s_lshl_b32 {t0}, {sM}, 8")
        P(f"s_lshl_b32 {t1}, {sW}, 6")
        P(f"s_add_u32 {t0}, {t0}, {t1}")
        P(f"buffer_load_ushort {vb}, {vb}, {sB1}, {t0} offen")
    else:
        P(f"v_mov_b32 {vb}, 0")
    D = 6
    for t in range(32 + D):
        if t < 32:
            P.add(trfrag("v", ring + 4 * (t % 8), t * 1024, base=va))
        if t >= D:
            k = t - D
            P(f"{MF} {V(acc, 16)}, {V(ones)}, {V(ring + 4 * (k % 8))}, {V(acc, 16) if k else 0}")
    c, o = f"v{tmp + 2}", ones
    P(f"v_cndmask_b32_e64 {c}, 0, v{acc}, {sLO}")
    P(f"v_cndmask_b32_e64 {vb}, 0, {vb}, {sLO}")
    P(f"v_cvt_pk_bf16_f32 v{o}, {c}, {c}")
    P(f"v_lshlrev_b32 v{o + 1}, 16, v{o}")
    P(f"v_sub_f32 v{o + 1}, {c}, v{o + 1}")
    P(f"v_and_b32 v{o + 2}, 0xffff, v{o}")
    P(f"v_cvt_pk_bf16_f32 v{o}, {c}, v{o + 1}")
    P(f"v_lshl_or_b32 v{o + 1}, {vb}, 16, v{o + 2}")
    P(f"v_mov_b32 v{o + 2}, {vb}")
    P(f"v_mov_b32 v{o + 3}, 0")
    P(f"s_lshl_b32 {t0}, {sW}, 10")
    P(f"s_add_u32 {t0}, {t0}, {tab_base}")
    P(f"v_add_u32 {va}, {t0}, {vL16}")
    P(f"ds_write_b128 {va}, {V(o)}")
    barrier()


def x_flags_addr(va, vt):
    P(f"v_and_b32 {va}, 14, {vL}")
    P(f"v_lshlrev_b32 {va}, 9, {va}")
    P(f"v_and_b32 {vt}, 1, {vL}")
    P(f"v_lshl_add_u32 {va}, {vt}, 7, {va}")
    P(f"s_lshl_b32 {t0}, {sC}, 13")
    P(f"s_lshr_b32 {t1}, {sW}, 1")
    P(f"s_lshl_b32 {t1}, {t1}, 9")
    P(f"s_add_u32 {t0}, {t0}, {t1}")
    P(f"s_and_b32 {t1}, {sW}, 1")
    P(f"s_lshl_b32 {t1}, {t1}, 8")
    P(f"s_add_u32 {t0}, {t0}, {t1}")
    P(f"v_add_u32 {va}, {t0}, {va}")


def load_x_chunks(xoff, stoff, stv):
    P(f"s_lshl_b32 {t0}, {sT}, 12")
    P(f"s_add_u32 {t0}, {t0}, {stoff}")
    P(f"v_lshlrev_b32 v4, 2, {vL}")
    for s in range(16):
        P(f"buffer_load_dword v{stv + s}, v4, {sWS}, {t0} offen offset:{s * 256} sc1")
    P(f"s_lshl_b32 {t1}, {sT}, 15")
    for t in range(32):
        if t % 4 == 0:
            P(f"s_add_u32 {t0}, {t1}, {xoff + t * 1024}")
        P(f"buffer_load_dwordx4 {V(XF + 4 * t)}, {vL16}, {sWS}, {t0} offen offset:{(t % 4) * 1024} sc1")


def stats_sum(stv):
    for st in (8, 4, 2, 1):
        for i in range(st):
            P(f"v_add_f32 v{stv + i}, v{stv + i}, v{stv + i + st}")


def stats_finish(stv, ex, mlp):
    a, b, c, d = (f"v{stv + i}" for i in range(4))
    e = f"v{stv + 4}"
    P(f"v_mov_b32 {b}, {a}")
    P(f"v_permlane32_swap_b32 {a}, {b}")
    P(f"v_mul_f32 {a}, {fc(-1.0 / 512)}, {a}")
    P(f"v_mul_f32 {c}, {a}, {a}")
    P(f"v_mul_f32 {b}, {fc(1.0 / 512)}, {b}")
    P(f"v_sub_f32 {b}, {b}, {c}")
    P(f"v_max_f32 {b}, 0, {b}")
    P(f"v_add_f32 {c}, {fc(EPS)}, {b}")
    P(f"v_rsq_f32 {d}, {c}")
    if mlp:
        P(f"v_mul_f32 {b}, {b}, {d}")
        P(f"v_mul_f32 {b}, {b}, {d}")
        P(f"v_add_f32 {b}, {fc(EPS)}, {b}")
        P(f"v_rsq_f32 {b}, {b}")
        P(f"v_mul_f32 {b}, {b}, {d}")
        P(f"v_rcp_f32 {c}, {b}")
    else:
        P(f"v_mov_b32 {b}, {d}")
        P(f"v_mul_f32 {c}, {c}, {d}")
    P(f"v_cvt_pk_bf16_f32 v{ex}, {a}, {a}")
    P(f"v_lshlrev_b32 {d}, 16, v{ex}")
    P(f"v_sub_f32 {d}, {a}, {d}")
    P(f"v_cvt_pk_bf16_f32 v{ex + 1}, {d}, {c}")
    P(f"v_and_b32 {d}, 0xffff0000, v{ex + 1}")
    P(f"v_sub_f32 {d}, {c}, {d}")
    P(f"v_mov_b32 {e}, 0")
    P(f"v_cvt_pk_bf16_f32 v{ex + 2}, {d}, {e}")
    P(f"v_mov_b32 v{ex + 3}, 0")


def phase1():
    aK, aV, aQ, ring, ex, tabs, stv = 16, 32, 48, 64, 96, 100, 112
    l1, lj = P.label(), P.label()
    P(f"s_cmp_lg_u32 {sFB}, 0")
    P(f"s_cbranch_scc1 {l1}")
    P(f"v_and_b32 v4, 31, {vL}")
    P(f"v_lshrrev_b32 v5, 5, {vL}")
    P("v_lshlrev_b32 v4, 10, v4")
    P("v_lshl_add_u32 v4, v5, 4, v4")
    P(f"s_lshl_b32 {t0}, {sT}, 15")
    for t in range(32):
        P(f"buffer_load_dwordx4 {V(XF + 4 * t)}, v4, {sX}, {t0} offen offset:{t * 32}")
    P(f"v_mov_b32 v5, 0x3f803f80")
    for i in range(4):
        P(f"v_mov_b32 v{stv + i}, 0")
    for i in range(128):
        P(f"v_dot2_f32_bf16 v{stv + (i & 1)}, v{XF + i}, v5, v{stv + (i & 1)}")
        P(f"v_dot2_f32_bf16 v{stv + 2 + (i & 1)}, v{XF + i}, v{XF + i}, v{stv + 2 + (i & 1)}")
    P(f"v_add_f32 v{stv}, v{stv}, v{stv + 1}")
    P(f"v_add_f32 v{stv + 2}, v{stv + 2}, v{stv + 3}")
    P(f"v_permlane32_swap_b32 v{stv}, v{stv + 2}")
    P(f"v_add_f32 v{stv}, v{stv}, v{stv + 2}")
    P.need("wimg")
    barrier()
    colsum(TAB0, False, aK, ring, ex)
    P(f"s_branch {lj}")
    P.put(l1)
    x_flags_addr("v4", "v5")
    poll("v4", "v5", "0xffff", -1)
    load_x_chunks(XIN_O, ST2_O, stv)
    stats_sum(stv)
    P.need("wimg")
    barrier()
    P.put(lj)
    tick("p1.x+w")
    stats_finish(stv, ex, False)
    r = f"v{stv + 1}"
    P(f"s_lshl_b32 {t0}, {sW}, 7")
    P(f"s_add_u32 {t0}, {t0}, {RBC}")
    P(f"v_and_b32 v4, 31, {vL}")
    P(f"v_lshl_add_u32 v4, v4, 2, {t0}")
    P(f"ds_write_b32 v4, {r}")
    P(f"v_add_u32 v5, {TAB0}, {vL16}")
    for j in range(3):
        P(f"ds_read_b128 {V(tabs + 4 * j)}, v5 offset:{1024 * j}")
    D = 3
    for t in range(32 + D):
        if t < 32:
            P.add(trfrag("v", ring + 8 * (t % 4), t * 1024))
            P.add(trfrag("v", ring + 8 * (t % 4) + 4, IMG + t * 1024))
        if t >= D:
            k = t - D
            P(f"{MF} {V(aK, 16)}, {V(ring + 8 * (k % 4))}, {V(XF + 4 * k)}, {V(aK, 16) if k else 0}")
            P(f"{MF} {V(aV, 16)}, {V(XF + 4 * k)}, {V(ring + 8 * (k % 4) + 4)}, {V(aV, 16) if k else 0}")
    P(f"{MF} {V(aK, 16)}, {V(tabs)}, {V(ex)}, {V(aK, 16)}")
    P(f"{MF} {V(aV, 16)}, {V(ex)}, {V(tabs + 4)}, {V(aV, 16)}")
    tick("p1.kv")
    P(f"v_lshrrev_b32 v4, 5, {vL}")
    P(f"v_lshl_add_u32 v4, v4, 4, {t0}")
    for g in range(4):
        P(f"ds_read_b128 {V(ring + 4 * g)}, v4 offset:{32 * g}")
    for i in range(16):
        P(f"v_mul_f32 v{aK + i}, v{aK + i}, {r}")
    for i in range(8):
        P(f"v_cvt_pk_bf16_f32 v{aK + i}, v{aK + 2 * i}, v{aK + 2 * i + 1}")
    for i in range(16):
        P(f"v_mul_f32 v{aV + i}, v{aV + i}, v{ring + i}")
    for i in range(8):
        P(f"v_cvt_pk_bf16_f32 v{aV + i}, v{aV + 2 * i}, v{aV + 2 * i + 1}")
    P(f"v_bfe_u32 v4, {vL}, 4, 1")
    P(f"v_lshlrev_b32 v4, 11, v4")
    P(f"v_and_b32 v5, 15, {vL}")
    P(f"v_lshl_add_u32 v4, v5, 4, v4")
    P(f"v_lshrrev_b32 v5, 5, {vL}")
    P(f"v_lshl_add_u32 v4, v5, 8, v4")
    P(f"s_lshl_b32 {t0}, {sT}, 4")
    P(f"s_add_u32 {t0}, {t0}, {sM}")
    P(f"s_lshl_b32 {t0}, {t0}, 12")
    P(f"buffer_store_dwordx4 {V(aK)}, {vL16}, {sWS}, {t0} offen sc1")
    P(f"buffer_store_dwordx4 {V(aK + 4)}, {vL16}, {sWS}, {t0} offen offset:2048 sc1")
    P(f"buffer_store_dwordx4 {V(aV)}, v4, {sWS}, {t0} offen offset:1024 sc1")
    P(f"buffer_store_dwordx4 {V(aV + 4)}, v4, {sWS}, {t0} offen offset:1536 sc1")
    P(f"s_lshl_b32 {t0}, {sW}, 12")
    P(f"s_add_u32 {t0}, {t0}, {SLOT(8)}")
    P(f"v_add_u32 v5, {t0}, {vL16}")
    P(f"v_add_u32 v4, {t0}, v4")
    P(f"ds_write_b128 v5, {V(aK)}")
    P(f"ds_write_b128 v5, {V(aK + 4)} offset:2048")
    P(f"ds_write_b128 v4, {V(aV)} offset:1024")
    P(f"ds_write_b128 v4, {V(aV + 4)} offset:1536")
    D = 6
    for t in range(32 + D):
        if t < 32:
            P.add(trfrag("v", ring + 4 * (t % 8), 2 * IMG + t * 1024))
        if t >= D:
            k = t - D
            P(f"{MF} {V(aQ, 16)}, {V(ring + 4 * (k % 8))}, {V(XF + 4 * k)}, {V(aQ, 16) if k else 0}")
        if t == 24:
            P.add(publish(1, "v4", "v5"))
    P(f"{MF} {V(aQ, 16)}, {V(tabs + 8)}, {V(ex)}, {V(aQ, 16)}")
    P(f"v_mul_f32 {r}, {fc(0.25 * LOG2E)}, {r}")
    for i in range(16):
        P(f"v_mul_f32 v{aQ + i}, v{aQ + i}, {r}")
    for i in range(8):
        P(f"v_cvt_pk_bf16_f32 v{8 + i}, v{aQ + 2 * i}, v{aQ + 2 * i + 1}")


def phase2():
    tick("p1.end")
    l = if_l0()
    lp, dn = P.label(), P.label()
    P(f"v_lshlrev_b32 v4, 2, {vL}")
    P(f"s_mov_b32 {sCNT}, 20000")
    P(f"s_mov_b32 {t0}, 0x10101010")
    P.put(lp)
    P(f"buffer_load_dword v5, v4, {sDBG}, 0 offen sc1")
    P(f"v_and_b32 v6, {t0}, v5")
    P(f"v_cmp_ne_u32 vcc, {t0}, v6")
    P(f"s_cbranch_vccz {dn}")
    P(f"s_sub_u32 {sCNT}, {sCNT}, 1")
    P(f"s_cbranch_scc0 {lp}")
    P("s_endpgm")
    P.put(dn)
    P(f"s_and_b32 {t0}, s2, 3")
    P(f"s_lshl_b32 {t0}, {t0}, 3")
    P(f"v_lshrrev_b32 v5, {t0}, v5")
    P(f"v_and_b32 v5, 0xff, v5")
    P(f"s_bfe_u32 {t0}, s2, 0x20002")
    P(f"v_and_b32 v6, 3, {vL}")
    P(f"v_cmp_eq_u32 vcc, {t0}, v6")
    P(f"v_cmp_ne_u32_e64 s[60:61], {sMODE}, v5")
    P(f"s_and_b64 vcc, vcc, s[60:61]")
    P(f"s_cselect_b32 {sMODE}, 0, 1")
    if OPT.get("SLOW"):
        P(f"s_mov_b32 {sMODE}, 0")
    if OPT.get("PROBE"):
        lq, lq2 = P.label(), P.label()
        P(f"s_cmp_lg_u32 {sMODE}, 0")
        P(f"s_cbranch_scc1 {lq2}")
        P(f"s_mov_b32 {sCNT}, 12")
        P.put(lq)
        P("s_sleep 127")
        P(f"s_sub_u32 {sCNT}, {sCNT}, 1")
        P(f"s_cbranch_scc0 {lq}")
        P.put(lq2)
    P.put(l)
    lskip = P.label()
    P(f"s_cmp_eq_u32 {sC}, 0")
    P(f"s_cbranch_scc1 {lskip}")
    P(f"s_lshl_b32 {t0}, {sC}, 4")
    P(f"s_add_u32 {t0}, {t0}, {sM}")
    P(f"s_lshl_b32 {t0}, {t0}, 2")
    P(f"s_add_u32 {t0}, {t0}, {sW}")
    P(f"s_lshl_b32 {t0}, {t0}, 7")
    P(f"s_add_u32 {t0}, {t0}, {131072 - 8192}")
    P(f"v_lshlrev_b32 v4, 13, {vL}")
    P(f"v_sub_u32 v4, {t0}, v4")
    P(f"s_cmp_eq_u32 {sC}, 1")
    P(f"s_cselect_b32 {t3}, 1, 3")
    P(f"s_mov_b32 {t4}, 0")
    poll("v4", "v5", None, 1, mask_s="s[60:61]")
    P.put(lskip)
    tick("p2.poll")
    hb = 64
    for i, back in ((0, 8), (1, 4)):
        P(f"s_sub_u32 {t0}, {sT}, {back}")
        P(f"s_lshl_b32 {t0}, {t0}, 4")
        P(f"s_add_u32 {t0}, {t0}, {sM}")
        P(f"s_lshl_b32 {t0}, {t0}, 12")
        P(f"s_cmp_lt_u32 {sT}, {back}")
        P(f"s_cselect_b32 {t0}, {OOB}, {t0}")
        for j in range(4):
            P(f"buffer_load_dwordx4 {V(hb + 16 * i + 4 * j)}, {vL16}, {sWS}, {t0} offen offset:{1024 * j} sc1")
    P(f"s_lshl_b32 {t0}, {sW}, 12")
    P(f"s_add_u32 {t0}, {t0}, {SLOT0}")
    P(f"v_add_u32 v4, {t0}, {vL16}")
    for i in range(2):
        for j in range(4):
            P(f"ds_write_b128 v4, {V(hb + 16 * i + 4 * j)} offset:{16384 * i + 1024 * j}")
    KA, VA, PM = 16, 25, 26
    P(f"v_lshrrev_b32 v5, 5, {vL}")
    P(f"v_lshlrev_b32 v5, 9, v5")
    P(f"s_lshl_b32 {t1}, {sC}, 14")
    P(f"s_sub_u32 {t1}, {SLOT(8)}, {t1}")
    P(f"v_add_u32 v5, {t1}, v5")
    for j in range(9):
        if j < 8:
            P(f"v_add_u32 v6, {4096 * j}, v4")
            P(f"s_cmp_lt_u32 {sT}, {8 - j}")
            P(f"s_cselect_b64 vcc, -1, 0")
            P(f"v_cndmask_b32 v{KA + j}, v6, v5, vcc")
        else:
            P(f"v_add_u32 v{KA + j}, {4096 * j}, v4")
    P(f"v_and_b32 v5, 15, {vL}")
    P(f"v_lshrrev_b32 v6, 5, {vL}")
    P(f"v_lshl_add_u32 v5, v6, 4, v5")
    P(f"v_lshl_add_u32 v{VA}, v5, 4, {t0}")
    P(f"v_mov_b32 v5, 0xffff")
    P(f"v_mov_b32 v6, 0xffff0000")
    for d in range(8):
        P(f"v_cndmask_b32_e64 v{PM + d}, 0, v5, {sMASK(2 * d)}")
        P(f"v_cndmask_b32_e64 v34, 0, v6, {sMASK(2 * d + 1)}")
        P(f"v_or_b32 v{PM + d}, v{PM + d}, v34")
    barrier()
    tick("p2.B2")
    wo_dma()
    KF, S0, NM, OA, VF = 36, 72, 136, 152, 168
    for h in range(2):
        q = V(8 + 4 * h)
        half = sH0 if h == 0 else sH1
        for j in range(9):
            P(f"ds_read_b128 {V(KF + 4 * j)}, v{KA + j} offset:{2048 * h}")
        for i in range(24):
            P(f"v_mov_b32 v{VF + i}, 0x3f803f80")
        order = [8, 0, 1, 2, 3, 4, 5, 6, 7]
        def sb(n): return S0 + 16 * (n % 4)
        m = "v4"
        for n in range(9 + 2):
            if n < 9:
                P(f"{MF} {V(sb(n), 16)}, {V(KF + 4 * order[n])}, {q}, 0")
            k = n - 2
            if k == 1:
                for r in range(16):
                    P(f"v_cndmask_b32_e64 v{sb(1) + r}, v{sb(1) + r}, v{sb(0) + r}, {sMASK(r)}")
            if k >= 1:
                s = sb(k)
                for i in range(8):
                    if k == 1 and i == 0:
                        P(f"v_max_f32 {m}, v{s}, v{s + 1}")
                    else:
                        P(f"v_max3_f32 {m}, {m}, v{s + 2 * i}, v{s + 2 * i + 1}")
        P(f"v_mov_b32 v5, {m}")
        P(f"v_permlane32_swap_b32 {m}, v5")
        P(f"v_max_f32 {m}, {m}, v5")
        for i in range(16):
            P(f"v_sub_f32 v{NM + i}, 0, {m}")
        def vload(j, dst):
            if j < 8:
                P(f"s_cmp_lt_u32 {sT}, {8 - j}")
                P(f"s_cselect_b64 exec, -1, {half}")
            else:
                P(f"s_mov_b64 exec, {half}")
            P(f"ds_read_b128 {V(dst)}, v{VA} offset:{4096 * j + 2048 * h + 1024}")
            P(f"ds_read_b128 {V(dst + 4)}, v{VA} offset:{4096 * j + 2048 * h + 1536}")
            P("s_mov_b64 exec, -1")
        order = [8, 0, 7, 6, 5, 4, 3, 2, 1]
        vload(8, VF)
        vload(0, VF + 16)
        first = True
        for n in range(9 + 2):
            if n < 9:
                P(f"{MF} {V(sb(n), 16)}, {V(KF + 4 * order[n])}, {q}, {V(NM, 16)}")
            k = n - 2
            if k == 1:
                for r in range(16):
                    P(f"v_cndmask_b32_e64 v{sb(1) + r}, v{sb(1) + r}, v{sb(0) + r}, {sMASK(r)}")
            if k >= 1:
                s = sb(k)
                pb = s
                vf = VF + 8 * ((k - 1) & 1)
                if k + 1 < 9:
                    vload(order[k + 1], VF + 8 * (k & 1))
                for i in range(16):
                    P(f"v_exp_f32 v{s + i}, v{s + i}")
                for i in range(8):
                    P(f"v_cvt_pk_bf16_f32 v{pb + i}, v{s + 2 * i}, v{s + 2 * i + 1}")
                if k == 1:
                    pb2 = s + 8
                    for i in range(8):
                        P(f"v_and_b32 v{pb2 + i}, v{pb + i}, v{PM + i}")
                        P(f"v_xor_b32 v{pb + i}, v{pb + i}, v{pb2 + i}")
                    P(f"{MF} {V(OA, 16)}, {V(vf)}, {V(pb2)}, 0")
                    P(f"{MF} {V(OA, 16)}, {V(vf + 4)}, {V(pb2 + 4)}, {V(OA, 16)}")
                    P(f"{MF} {V(OA, 16)}, {V(VF + 16)}, {V(pb)}, {V(OA, 16)}")
                    P(f"{MF} {V(OA, 16)}, {V(VF + 20)}, {V(pb + 4)}, {V(OA, 16)}")
                else:
                    P(f"{MF} {V(OA, 16)}, {V(vf)}, {V(pb)}, {V(OA, 16)}")
                    P(f"{MF} {V(OA, 16)}, {V(vf + 4)}, {V(pb + 4)}, {V(OA, 16)}")
        o, sm = (OA, OA + 8) if h == 0 else (OA + 8, OA)
        P(f"v_rcp_f32 v4, v{sm}")
        for i in range(8):
            P(f"v_mul_f32 v{o + i}, v{o + i}, v4")
        for i in range(4):
            P(f"v_cvt_pk_bf16_f32 v{sm + i}, v{o + 2 * i}, v{o + 2 * i + 1}")
        P(f"s_lshl_b32 {t0}, {sT}, 4")
        P(f"s_add_u32 {t0}, {t0}, {sM}")
        P(f"s_lshl_b32 {t0}, {t0}, 11")
        P(f"s_add_u32 {t0}, {t0}, {O_O}")
        P.add(mstore([f"buffer_store_dwordx4 {V(sm)}, {vL16}, {sWS}, {t0} offen offset:{1024 * h}"]))
        if h == 0:
            tick("p2.h0")
            P.need("woimg")
            P(f"s_lshl_b32 {t0}, {sW}, 13")
            P(f"v_add_u32 v5, {t0}, {vTR}")
            for ks in range(8):
                for ct in range(2):
                    P.add(trfrag("v", 192 + (ks * 2 + ct) * 4, ct * IMG + ks * 1024, base="v5"))
            P.need("ds_any")
            lsk = P.label()
            P(f"s_cmp_ge_u32 {sM}, 14")
            P(f"s_cbranch_scc1 {lsk}")
            w1_dma([0, 1, 2], "v5", "v6")
            P.put(lsk)
            tick("p2.wo")
    tick("p2.h1")
    P.add(publish(3, "v4", "v5"))
    tick("p2.end")


def reduce_epilogue(acc, tmp, is_p5):
    for i in (1, 2, 3):
        P(f"s_xor_b32 {t0}, {sW}, {i}")
        if i < 3:
            P(f"s_lshl_b32 {t0}, {t0}, 13")
            P(f"s_add_u32 {t0}, {t0}, {SLOT(i - 1)}")
        else:
            P(f"s_lshl_b32 {t0}, {t0}, 12")
            P(f"s_add_u32 {t0}, {t0}, {SLOT(8)}")
        P(f"v_add_u32 v{8 + i}, {t0}, {vL16}")
    if not is_p5:
        barrier()
    for i in (1, 2, 3):
        for j in range(4):
            P(f"ds_write_b128 v{8 + i}, {V(acc + 16 * (i - 1) + 4 * j)} offset:{1024 * j}")
    P(f"s_lshl_b32 {t0}, {sW}, 13")
    P(f"s_add_u32 {t0}, {t0}, {SLOT(0)}")
    P(f"v_add_u32 v5, {t0}, {vL16}")
    P(f"s_lshl_b32 {t0}, {sW}, 12")
    P(f"s_add_u32 {t0}, {t0}, {SLOT(8)}")
    P(f"v_add_u32 v6, {t0}, {vL16}")
    if not is_p5:
        P(f"v_lshrrev_b32 v4, 5, {vL}")
        P(f"v_lshlrev_b32 v4, 4, v4")
        P(f"s_lshl_b32 {t0}, {sCT}, 6")
        P(f"buffer_load_dwordx4 {V(tmp + 64)}, v4, {sB2}, {t0} offen")
        P(f"buffer_load_dwordx4 {V(tmp + 68)}, v4, {sB2}, {t0} offen offset:32")
    x = tmp + 48
    for i in range(16):
        P(f"v_accvgpr_read_b32 v{x + i}, a{224 + i}")
    barrier()
    for j in range(8):
        P(f"ds_read_b128 {V(tmp + 4 * j)}, v5 offset:{1024 * j}")
    for j in range(4):
        P(f"ds_read_b128 {V(tmp + 32 + 4 * j)}, v6 offset:{1024 * j}")
    for p in range(3):
        for i in range(16):
            P(f"v_add_f32 v{x + i}, v{x + i}, v{tmp + 16 * p + i}")
    pk = tmp
    for i in range(8):
        P(f"v_cvt_pk_bf16_f32 v{pk + i}, v{x + 2 * i}, v{x + 2 * i + 1}")
    lout, lj = P.label(), P.label()
    if is_p5:
        P(f"s_cmp_lg_u32 {sFB}, 0")
        P(f"s_cbranch_scc1 {lout}")
    xo, so = (LSTRIDE + XIN_O, LSTRIDE + ST2_O) if is_p5 else (X1_O, ST1_O)
    P(f"s_lshl_b32 {t0}, {sTP}, 4")
    P(f"s_add_u32 {t0}, {t0}, {sCT}")
    P(f"s_lshl_b32 {t1}, {t0}, 11")
    P(f"s_add_u32 {t1}, {t1}, {xo}")
    P.add(mstore([f"buffer_store_dwordx4 {V(pk)}, {vL16}, {sWS}, {t1} offen",
                  f"buffer_store_dwordx4 {V(pk + 4)}, {vL16}, {sWS}, {t1} offen offset:1024"]))
    s1, s2 = f"v{tmp + 16}", f"v{tmp + 17}"
    P(f"v_add_f32 {s1}, v{x}, v{x + 1}")
    P(f"v_mul_f32 {s2}, v{x}, v{x}")
    P(f"v_fmac_f32 {s2}, v{x + 1}, v{x + 1}")
    for i in range(2, 16):
        P(f"v_add_f32 {s1}, {s1}, v{x + i}")
        P(f"v_fmac_f32 {s2}, v{x + i}, v{x + i}")
    P(f"v_permlane32_swap_b32 {s1}, {s2}")
    P(f"v_add_f32 {s1}, {s1}, {s2}")
    P(f"s_lshl_b32 {t1}, {t0}, 8")
    P(f"s_add_u32 {t1}, {t1}, {so}")
    P(f"v_lshlrev_b32 v4, 2, {vL}")
    P.add(mstore([f"buffer_store_dword {s1}, v4, {sWS}, {t1} offen"]))
    if not is_p5:
        for d in range(8):
            P(f"v_lshlrev_b32 v5, 16, v{tmp + 64 + d}")
            P(f"v_and_b32 v6, 0xffff0000, v{tmp + 64 + d}")
            P(f"v_add_f32 v{x + 2 * d}, v{x + 2 * d}, v5")
            P(f"v_add_f32 v{x + 2 * d + 1}, v{x + 2 * d + 1}, v6")
    for i in range(16):
        P(f"v_accvgpr_write_b32 a{224 + i}, v{x + i}")
    P.add(publish(7 if is_p5 else 4, "v4", "v5"))
    if is_p5:
        P(f"s_branch {lj}")
        P.put(lout)
        P(f"v_and_b32 v4, 31, {vL}")
        P(f"v_lshrrev_b32 v5, 5, {vL}")
        P("v_lshlrev_b32 v4, 10, v4")
        P("v_lshl_add_u32 v4, v5, 4, v4")
        P(f"s_lshl_b32 {t0}, {sTP}, 15")
        P(f"s_lshl_b32 {t1}, {sCT}, 6")
        P(f"s_add_u32 {t0}, {t0}, {t1}")
        P(f"buffer_store_dwordx4 {V(pk)}, v4, {sOUT}, {t0} offen")
        P(f"buffer_store_dwordx4 {V(pk + 4)}, v4, {sOUT}, {t0} offen offset:32")
        if PROF:
            P.need("stores")
            NPT[0] += 1; PNAMES.append("p5.end")
            tick("final")
            NPT[0] -= 2; PNAMES.pop(); PNAMES.pop()
            prof_dump()
        P("s_endpgm")
        P.put(lj)


def acc_of(acc, tt, ct):
    i = 2 * tt + ct
    return A(224, 16) if i == 0 else V(acc + 16 * (i - 1), 16)


def phase3():
    acc, OF, WO = 16, 128, 192
    P(f"v_lshrrev_b32 v4, 1, {vL}")
    P(f"v_lshlrev_b32 v4, 9, v4")
    P(f"v_and_b32 v5, 1, {vL}")
    P(f"v_lshl_add_u32 v4, v5, 7, v4")
    P(f"s_lshl_b32 {t0}, {sC}, 13")
    P(f"s_lshl_b32 {t1}, {sW}, 11")
    P(f"s_add_u32 {t0}, {t0}, {t1}")
    P(f"s_and_b32 {t1}, {sM}, 1")
    P(f"s_lshl_b32 {t1}, {t1}, 8")
    P(f"s_add_u32 {t0}, {t0}, {t1}")
    P(f"v_add_u32 v4, {t0}, v4")
    poll("v4", "v5", "0xff", 3)
    tick("p3.poll")
    P(f"s_lshl_b32 {t1}, {sW}, 13")
    P(f"s_add_u32 {t1}, {t1}, {O_O}")
    P(f"s_lshl_b32 {t2}, {sTP}, 15")
    P(f"s_add_u32 {t3}, {t1}, {t2}")
    P(f"s_xor_b32 {t2}, {t2}, 0x8000")
    P(f"s_add_u32 {t4}, {t1}, {t2}")
    for ks in range(8):
        if ks == 4:
            P(f"s_add_u32 {t3}, {t3}, 4096")
            P(f"s_add_u32 {t4}, {t4}, 4096")
        for tt in range(2):
            P(f"buffer_load_dwordx4 {V(OF + (ks * 2 + tt) * 4)}, {vL16}, {sWS}, {t3 if tt == 0 else t4} offen offset:{(ks % 4) * 1024} sc1")
    for ks in range(8):
        for tt in range(2):
            for ct in range(2):
                a = acc_of(acc, tt, ct)
                c = a if (ks or (tt == 0 and ct == 0)) else "0"
                P(f"{MF} {a}, {V(WO + (ks * 2 + ct) * 4)}, {V(OF + (ks * 2 + tt) * 4)}, {c}")
    tick("p3.mm")
    reduce_epilogue(acc, 128, False)
    tick("p3.end")
    lsk = P.label()
    P(f"s_cmp_ge_u32 {sM}, 14")
    P(f"s_cbranch_scc1 {lsk}")
    w1_dma([3])
    P.put(lsk)


def gelu_tile(a, c0, c1, ir, tmp):
    out = []
    for i in range(16):
        x, t = f"v{a + i}", f"v{tmp + (i % 4)}"
        out += [f"v_mul_f32 {t}, {x}, {x}", f"v_fma_f32 {t}, {t}, {c1}, {c0}", f"v_mul_f32 {t}, {t}, {x}",
                f"v_exp_f32 {t}, {t}", f"v_fma_f32 {t}, {t}, {ir}, {ir}", f"v_rcp_f32 {t}, {t}", f"v_mul_f32 {x}, {x}, {t}"]
    res = []
    for g in range(4):
        blk = [out[(4 * g + e) * 7:(4 * g + e) * 7 + 7] for e in range(4)]
        for s in range(7):
            for e in range(4):
                res.append(blk[e][s])
        for i in (2 * g, 2 * g + 1):
            res.append(f"v_cvt_pk_bf16_f32 v{a + i}, v{a + 2 * i}, v{a + 2 * i + 1}")
    return res


def phase4():
    acc, ring, ex, stv, tabs = 16, 80, 8, 112, 0
    lidle, lj = P.label(), P.label()
    P(f"s_cmp_ge_u32 {sM}, 14")
    P(f"s_cbranch_scc1 {lidle}")
    P.need("wimg")
    barrier()
    l = if_l0()
    colsum(TAB0 + 3072, True, acc, ring, stv)
    P.put(l)
    tick("p4.B5")
    x_flags_addr("v4", "v5")
    poll("v4", "v5", "0xffff", 4)
    tick("p4.poll")
    load_x_chunks(X1_O, ST1_O, stv)
    stats_sum(stv)
    stats_finish(stv, ex, True)
    r, ir, c0, c1 = f"v{stv + 1}", f"v{stv + 2}", f"v{stv + 3}", f"v{stv + 4}"
    C0 = -2.0 * LOG2E * 0.7978845608028654
    P(f"v_mul_f32 {c0}, {fc(C0)}, {r}")
    P(f"v_mul_f32 {c1}, {r}, {r}")
    P(f"v_mul_f32 {c1}, {c1}, {c0}")
    P(f"v_mul_f32 {c1}, {fc(0.044715)}, {c1}")
    P(f"v_add_u32 v5, {TAB0 + 3072}, {vL16}")
    P(f"s_mul_i32 {t1}, {sT}, {112 * 1024}")
    P(f"s_lshl_b32 {t2}, {sM}, 13")
    P(f"s_add_u32 {t1}, {t1}, {t2}")
    P(f"s_add_u32 {t1}, {t1}, {H_O}")
    P(f"s_add_u32 {t2}, {t1}, 4096")
    D = 3
    for pr in range(2):
        for t in range(33 + D):
            if t < 32:
                P.add(trfrag("v", ring + 8 * (t % 4), (2 * pr) * IMG + t * 1024))
                P.add(trfrag("v", ring + 8 * (t % 4) + 4, (2 * pr + 1) * IMG + t * 1024))
            elif t == 32:
                P(f"ds_read_b128 {V(ring + 8 * (t % 4))}, v5 offset:{2048 * pr}")
                P(f"ds_read_b128 {V(ring + 8 * (t % 4) + 4)}, v5 offset:{2048 * pr + 1024}")
            if t >= D:
                k = t - D
                xb = V(XF + 4 * k) if k < 32 else V(ex)
                for e in range(2):
                    a = V(acc + 16 * (2 * pr + e), 16)
                    P(f"{MF} {a}, {V(ring + 8 * (k % 4) + 4 * e)}, {xb}, {a if k else 0}")
        tick(f"p4.mm{pr}")
        for e in range(2):
            a = acc + 16 * (2 * pr + e)
            P.add(gelu_tile(a, c0, c1, ir, stv + 8))
            so = t1 if pr == 0 else t2
            P.add(mstore([f"buffer_store_dwordx4 {V(a)}, {vL16}, {sWS}, {so} offen offset:{2048 * e}",
                          f"buffer_store_dwordx4 {V(a + 4)}, {vL16}, {sWS}, {so} offen offset:{2048 * e + 1024}"]))
        tick(f"p4.ge{pr}")
        P.add(publish(5 + pr, "v4", "v6"))
        tick(f"p4.pub{pr}")
    P(f"s_branch {lj}")
    P.put(lidle)
    P("s_barrier")
    l = if_l0()
    P("s_barrier")
    P.put(l)
    P.put(lj)
    barrier()
    tick("p4.B6")
    l = if_l0()
    wq_dma()
    P.put(l)


def phase5():
    acc, HF = 16, 64
    NR = 48
    P(f"v_lshrrev_b32 v4, 1, {vL}")
    P(f"v_lshlrev_b32 v4, 9, v4")
    P(f"v_and_b32 v5, 1, {vL}")
    P(f"v_lshl_add_u32 v4, v5, 7, v4")
    P(f"s_lshl_b32 {t0}, {sC}, 13")
    P(f"s_lshr_b32 {t1}, {sW}, 1")
    P(f"s_mul_i32 {t1}, {t1}, {7 * 512}")
    P(f"s_add_u32 {t0}, {t0}, {t1}")
    P(f"s_and_b32 {t1}, {sM}, 1")
    P(f"s_lshl_b32 {t1}, {t1}, 8")
    P(f"s_add_u32 {t0}, {t0}, {t1}")
    P(f"v_add_u32 v4, {t0}, v4")
    P(f"s_lshr_b32 {t1}, {sW}, 1")
    P(f"s_mul_i32 {t1}, {t1}, {56 * 1024}")
    P(f"s_and_b32 {t2}, {sW}, 1")
    P(f"s_lshl_b32 {t2}, {t2}, 11")
    P(f"s_add_u32 {t1}, {t1}, {t2}")
    P(f"s_add_u32 {t1}, {t1}, {H_O}")
    P(f"s_mul_i32 {t3}, {sTP}, {112 * 1024}")
    P(f"s_add_u32 {t3}, {t3}, {t1}")
    P(f"s_xor_b32 {t4}, {sTP}, 1")
    P(f"s_mul_i32 {t4}, {t4}, {112 * 1024}")
    P(f"s_add_u32 {t4}, {t4}, {t1}")

    def loads(kk):
        late, e = kk // 14, kk % 14
        off = (8 * (e >> 1) + (e & 1) + 4 * late) * 1024
        out = []
        for tt in range(2):
            if (e & 1) == 0:
                out.append(Ins(f"s_add_u32 {t1 if tt == 0 else t2}, {t3 if tt == 0 else t4}, {off}"))
            f = HF + 4 * ((kk * 2 + tt) % NR)
            out.append(Ins(f"buffer_load_dwordx4 {V(f)}, {vL16}, {sWS}, {t1 if tt == 0 else t2} offen offset:{(e & 1) * 1024} sc1"))
        return out

    def mf(kk):
        out = []
        for tt in range(2):
            for ct in range(2):
                a = acc_of(acc, tt, ct)
                c = a if (kk or (tt == 0 and ct == 0)) else "0"
                out.append(Ins(f"{MF} {a}, {A((kk * 2 + ct) * 4)}, {V(HF + 4 * ((kk * 2 + tt) % NR))}, {c}"))
        return out
    poll("v4", "v5", "0x3fff", 5)
    tick("p5.poll5")
    for kk in range(14):
        P.add(loads(kk))
    for kk in range(14):
        P.add(mf(kk))
    tick("p5.mm0")
    poll("v4", "v5", "0x3fff", 6)
    tick("p5.poll6")
    for kk in range(14, 28):
        P.add(loads(kk))
    for kk in range(14, 28):
        P.add(mf(kk))
    tick("p5.mm1")
    reduce_epilogue(acc, 128, True)
    tick("p5.end")


def main():
    prologue()
    P.put("L_layer")
    phase1(); stop(1)
    phase2(); stop(2)
    phase3(); stop(3)
    phase4(); stop(4)
    phase5(); stop(5)
    P(f"s_add_u32 {sFB}, {sFB}, 8")
    P(f"s_add_u32 s28, s28, {LSTRIDE}")
    P("s_addc_u32 s29, s29, 0")
    P("s_branch L_layer")
    P.put("L_end")
    P("s_endpgm")
    P.add(OUTL)
    body, ins = emit(P)
    hdr = open("interleave_layers__sliding_block__mixer_channel_mlp__prompt.s.ref").read()
    top = hdr.split("; @launch")[0]
    txt = top + "; @launch grid=(256,1,1) block=(256,1,1) lds=163840\n"
    txt += f""".amdgcn_target "amdgcn-amd-amdhsa--gfx950"
.text
.globl {KN}
.p2align 8
.type {KN},@function
{KN}:
{body}
.section .rodata,"a"
.p2align 6
.amdhsa_kernel {KN}
  .amdhsa_next_free_vgpr 512
  .amdhsa_next_free_sgpr 102
  .amdhsa_accum_offset 256
  .amdhsa_group_segment_fixed_size 0
  .amdhsa_kernarg_size 88
  .amdhsa_user_sgpr_count 2
  .amdhsa_user_sgpr_kernarg_segment_ptr 1
  .amdhsa_system_sgpr_workgroup_id_x 1
.end_amdhsa_kernel
"""
    open(sys.argv[1], "w").write(txt)
    print("instructions:", len(ins))
    open(sys.argv[1] + ".names", "w").write(" ".join(PNAMES + ["final"]))


main()
```

```python
import sys, struct
from asmgen import Prog, Ins, emit, need_ins

KN = "interleave_layers__sliding_block__mixer_channel_mlp__prompt_kernel"
OPT = dict(a.split("=") for a in sys.argv[2:])
STOP = OPT.get("STOP")
PROF = int(OPT.get("PROF", 0))
def opt(name, default): return int(OPT.get(name, default))

MB = 1 << 20
KV_O, O_O, X1_O, XIN_O, ST1_O, ST2_O, H_O = 0, 4 * MB, 6 * MB, 8 * MB, 10 * MB, 10 * MB + 256 * 1024, 11 * MB
LSTRIDE = 20 * MB
def LB(L): return MB + L * LSTRIDE
FPACK = 131072
MBOX = FPACK + 8192
OOB = 0x40000000
R0, R1, R2, SL, PITCH = 0, 32768, 65536, 98304, 4112
SCR3, SPARE, TAB0, RBC = 131072, 147648, 156160, 163328

sC, sM, sW, sCNT = "s4", "s5", "s6", "s7"
sX, sWQ, sWO, sW1, sW2, sWS, sOUT, sB2, sB1, sDBG = [f"s[{8 + 4 * i}:{11 + 4 * i}]" for i in range(10)]
sT, sTP, sCT, sMODE, sFA, sFP = "s48", "s49", "s50", "s51", "s52", "s53"
t0, t1, t2, t3, t4, t5 = "s54", "s55", "s56", "s57", "s58", "s59"
d0, d1, d2, d3 = "s60", "s61", "s62", "s63"
u0, u1, u2, u3 = "s96", "s97", "s98", "s99"
def sMASK(r): return f"s[{64 + 2 * r}:{65 + 2 * r}]"
vL, vL16, vTR, vTR1, vTP, vTP1, vPX, vPO, vPH, vPROF, voQ, vo1, vo2 = [f"v{i}" for i in range(13)]
x0, x1, x2 = "v13", "v14", "v15"
XF = 128

def f2u(x): return struct.unpack("<I", struct.pack("<f", x))[0]
def fc(x): return hex(f2u(x))
def V(n, k=4): return f"v[{n}:{n + k - 1}]" if k > 1 else f"v{n}"
def A(n, k=4): return f"a[{n}:{n + k - 1}]" if k > 1 else f"a{n}"
def R(f, n, k=4): return f"{f}[{n}:{n + k - 1}]"

LOG2E = 1.4426950408889634
EPS = 1e-5
P = Prog()
MF = "v_mfma_f32_32x32x16_bf16"
MF16 = "v_mfma_f32_16x16x32_bf16"
OUTL = []


def I(x):
    if isinstance(x, str):
        return [Ins(x)]
    if isinstance(x, Ins):
        return [x]
    out = []
    for e in x:
        out += I(e)
    return out


def cost(ins):
    c = 0
    for i in ins:
        if i.kind in ("label", "dir"):
            continue
        c += 8 if (i.kind in ("mfma", "trans") or i.op.startswith("v_permlane")) else 4
    return c


def weave(groups, fill, slack=4, start=0, rate=1.0):
    out, f, credit = [], [], 0
    for it in fill:
        if isinstance(it, tuple):
            f.append((it[0], I(it[1])))
        else:
            f.append((0, I(it)))
    for n, g in enumerate(groups):
        g = I(g)
        out += g
        pipe = sum(4 * i.passes for i in g if i.kind == "mfma")
        if n < start:
            continue
        credit = min(credit, 8) + (pipe - cost(g) - slack) * rate
        while f and f[0][0] <= n and credit > 0:
            it = f.pop(0)[1]
            out += it
            credit -= cost(it)
    for _, it in f:
        out += it
    return out


def spread(main, fill, lo=0.0, hi=1.0):
    main = [I(m) for m in main]
    fill = [I(x) for x in fill]
    tot = sum(cost(m) for m in main)
    out, acc, k = [], 0, 0
    for m in main:
        out.append(m)
        acc += cost(m)
        while k < len(fill) and acc >= tot * (lo + (hi - lo) * k / max(1, len(fill))):
            out.append(fill[k]); k += 1
    out += fill[k:]
    return out


def tr(f, n, base, off):
    assert 0 <= off and off + 256 < 65536
    return [Ins(f"ds_read_b64_tr_b16 {R(f, n, 2)}, {base} offset:{off}"),
            Ins(f"ds_read_b64_tr_b16 {R(f, n + 2, 2)}, {base} offset:{off + 256}")]

def tr1(n, addr):
    return tr("v", n, vTR, addr) if addr < 65536 else tr("v", n, vTR1, addr - 65536)

def trp(n, addr):
    return tr("v", n, vTP, addr) if addr < 65536 else tr("v", n, vTP1, addr - 65536)


def dma(srd, voff, sbase, goffs, lds_s, lds_imm, tag, st=d0):
    out = []
    for j, g in enumerate(goffs):
        it = []
        if j % 4 == 0:
            it.append(Ins(f"s_add_u32 m0, {lds_s}, {lds_imm + 1024 * j}") if lds_s else Ins(f"s_mov_b32 m0, {lds_imm + 1024 * j}"))
        o = g - (j % 4) * 1024
        assert o >= 0
        it.append(Ins(f"s_add_u32 {st}, {sbase}, {o}"))
        it.append(Ins(f"buffer_load_dwordx4 {voff}, {srd}, {st} offen offset:{(j % 4) * 1024} lds", xdst=[tag]))
        out.append(it)
    return out


def barrier(*extra):
    return [need_ins("ds_any", *extra), Ins("s_barrier")]


def poll_issue(vaddr, vt):
    return [Ins(f"buffer_load_dword {vt}, {vaddr}, {sWS}, {sFP} offen sc1")]


def poll_check(vaddr, vt, target):
    ls, lr, lp = P.label(), P.label(), P.label()
    OUTL.extend(I([ls + ":", f"s_mov_b32 {sCNT}, 30000", lp + ":",
                   f"buffer_load_dword {vt}, {vaddr}, {sWS}, {sFP} offen sc1",
                   f"v_cmp_gt_u32 vcc, {target}, {vt}", f"s_cbranch_vccz {lr}",
                   f"s_sub_u32 {sCNT}, {sCNT}, 1", f"s_cbranch_scc0 {lp}", "s_endpgm"]))
    return I([f"v_cmp_gt_u32 vcc, {target}, {vt}", f"s_cbranch_vccnz {ls}", lr + ":"])


def poll(vaddr, vt, target):
    lp, lr = P.label(), P.label()
    return I([f"s_mov_b32 {sCNT}, 30000", lp + ":",
              f"buffer_load_dword {vt}, {vaddr}, {sWS}, {sFP} offen sc1",
              f"v_cmp_gt_u32 vcc, {target}, {vt}", f"s_cbranch_vccz {lr}",
              f"s_sub_u32 {sCNT}, {sCNT}, 1", f"s_cbranch_scc0 {lp}", "s_endpgm", lr + ":"])


def publish(val, vt, tag="stores"):
    ls, lr = P.label(), P.label()
    st = f"buffer_store_dword {vt}, off, {sWS}, {sFA}"
    OUTL.extend(I([ls + ":", st + " sc1", f"s_branch {lr}"]))
    return I([f"v_mov_b32 {vt}, {val}", f"s_cmp_eq_u32 {sMODE}, 0", need_ins(tag), f"s_cbranch_scc1 {ls}", st, lr + ":"])


PNAMES = []
def tick(name):
    if not PROF:
        return []
    idx = len(PNAMES)
    PNAMES.append(name)
    assert idx < 64
    return I(["s_memrealtime s[100:101]", "s_waitcnt lgkmcnt(0)", f"v_writelane_b32 {vPROF}, s100, {idx}"])


def prof_dump():
    if not PROF:
        return []
    return I([f"s_lshl_b32 {t0}, s2, 2", f"s_add_u32 {t0}, {t0}, {sW}", f"s_lshl_b32 {t0}, {t0}, 8",
              f"s_add_u32 {t0}, {t0}, {LB(1) + 19 * MB}", f"v_lshlrev_b32 {x0}, 2, {vL}",
              f"buffer_store_dword {vPROF}, {x0}, {sWS}, {t0} offen"])


def stop(L, ph):
    if STOP == f"{L}.{ph}":
        P.add(prof_dump())
        P("s_endpgm")
        return True
    return False


def finish():
    P.put("L_end")
    P("s_endpgm")
    P.add(OUTL)
    body, ins = emit(P)
    hdr = open("interleave_layers__sliding_block__mixer_channel_mlp__prompt.s.ref").read()
    top = hdr.split("; @launch")[0]
    txt = top + "; @launch grid=(256,1,1) block=(256,1,1) lds=163840\n"
    txt += f""".amdgcn_target "amdgcn-amd-amdhsa--gfx950"
.text
.globl {KN}
.p2align 8
.type {KN},@function
{KN}:
{body}
.section .rodata,"a"
.p2align 6
.amdhsa_kernel {KN}
  .amdhsa_next_free_vgpr 512
  .amdhsa_next_free_sgpr 102
  .amdhsa_accum_offset 256
  .amdhsa_group_segment_fixed_size 0
  .amdhsa_kernarg_size 88
  .amdhsa_user_sgpr_count 2
  .amdhsa_user_sgpr_kernarg_segment_ptr 1
  .amdhsa_system_sgpr_workgroup_id_x 1
.end_amdhsa_kernel
"""
    open(sys.argv[1], "w").write(txt)
    print("instructions:", len(ins))
    open(sys.argv[1] + ".names", "w").write(" ".join(PNAMES))
```

```python
from k2_base import *

sW2B = "s3"

def wq_items(img, chunks=(0, 1, 2, 3), tag="wq"):
    cb = (1024, 2048, 0)[img]
    out = []
    for q in chunks:
        out += dma(sWQ, voQ, d1, [q * 128 * 3072 + cb + i * 16 * 3072 for i in range(2)], d2, img * 32768 + q * 8192, tag)
    return out

def wq_setup():
    return I([f"s_mul_i32 {d1}, {sW}, {32 * 3072}", f"s_lshl_b32 {d2}, {sM}, 6", f"s_add_u32 {d1}, {d1}, {d2}",
              f"s_lshl_b32 {d2}, {sW}, 11"])

vX0, vX1, XA = "v112", "v113", 120

def x0_items(q):
    out = []
    for j in range(8):
        it = []
        if j == 0:
            it += [f"s_xor_b32 {d1}, {t5}, {q}", f"s_lshl_b32 {d1}, {d1}, 8", f"s_add_u32 {d1}, {d1}, {t3}"]
        if j % 4 == 0:
            it.append(f"s_add_u32 m0, {d3}, {SL + 8192 * (q & 1) + 1024 * j}")
        it.append(f"s_add_u32 {d0}, {d1}, {(j >> 2) * 128 + (j & 3) * 7168}")
        it.append(Ins(f"buffer_load_dwordx4 {vX1 if j & 1 else vX0}, {sX}, {d0} offen offset:{(j & 3) * 1024} lds", xdst=[f"x{q}"]))
        out.append(I(it))
    return out

def w0_items(q, imgs=(0, 1), tag=None):
    out = []
    for img in imgs:
        cb = (1024, 2048, 0)[img]
        out += dma(sWQ, voQ, d1, [cb + i * 16 * 3072 for i in range(2)], d2, img * 32768 + q * 8192, tag or f"kv{q}")
    out[0] = I([f"s_xor_b32 {d1}, {t5}, {q}", f"s_mul_i32 {d1}, {d1}, {128 * 3072}", f"s_add_u32 {d1}, {d1}, {t4}"]) + out[0]
    return out

def w2_piece(kks, mul, imm, tag, vb):
    goffs = []
    for kk in kks:
        s, i = kk // 7, kk % 7
        goffs += [(128 * i + 32 * s + 8 * h) * 1024 for h in range(2)]
    dm = dma(sW2, vo2, sW2B, goffs, d2, imm, tag)
    dm[0] = I(f"s_mul_i32 {d2}, {sW}, {mul}") + dm[0]
    rd = [I([f"s_mul_i32 {u0}, {sW}, {mul}", f"s_add_u32 {u0}, {u0}, {imm}", f"v_add_u32 {vb}, {u0}, {vTP}", need_ins(tag)])]
    for j, kk in enumerate(kks):
        for ct in range(2):
            rd.append(tr("a", (kk * 2 + ct) * 4, vb, 2048 * j + 512 * ct))
    return dm, rd

def w2_round(rnd, vb):
    k = {1: 13, 2: 0, 3: 18, 4: 23}[rnd]
    pieces = {1: [(5, 16384, 0)],
              2: [(8, 16384, 0), (4, 8192, R2), (1, 2048, SPARE)],
              3: [(4, 8192, R2), (1, 2048, SPARE)],
              4: [(4, 8192, SL), (1, 2048, SPARE)]}[rnd]
    dm, rd = [], []
    for n, (cnt, mul, imm) in enumerate(pieces):
        a, b = w2_piece(list(range(k, k + cnt)), mul, imm, f"w2r{rnd}_{n}", vb)
        dm += a; rd += b
        k += cnt
    return dm, rd

def wo_items():
    it = dma(sWO, vo2, d1, [j * 8 * 1024 for j in range(16)], d2, 0, "wo")
    it[0] = I([f"s_and_b32 {d1}, {sW}, 1", f"s_lshl_b32 {d1}, {d1}, 18", f"s_lshr_b32 {d2}, {sW}, 1", f"s_lshl_b32 {d2}, {d2}, 17",
               f"s_add_u32 {d1}, {d1}, {d2}", f"s_and_b32 {d2}, {sCT}, 14", f"s_lshl_b32 {d2}, {d2}, 6", f"s_add_u32 {d1}, {d1}, {d2}",
               f"s_lshl_b32 {d2}, {sW}, 14"]) + it[0]
    return it

def w1_items(part):
    if part == "AB":
        rows, n, g0, sh, imm = 128, 16, 0, 14, 0
    else:
        rows, n, sh = 64, 8, 13
        g0, imm = (128, R2) if part == "CD1" else (128 + 256 * 3584, SL)
    it = dma(sW1, vo1, d1, [g0 + j * 8 * 3584 for j in range(n)], d2, imm, "w1" + part)
    it[0] = I([f"s_mul_i32 {d1}, {sW}, {rows * 3584}", f"s_lshl_b32 {d2}, {sM}, 8", f"s_add_u32 {d1}, {d1}, {d2}",
               f"s_lshl_b32 {d2}, {sW}, {sh}"]) + it[0]
    return it


def asel(n):
    return I([f"v_lshrrev_b32 v{n}, 2, {vL}", f"v_xor_b32 v{n}, v{n}, {vL}", f"v_bfe_u32 v{n}, v{n}, 2, 1",
              f"v_add_u32 v{n}, -1, v{n}", f"v_and_b32 v{n}, 0x3f803f80, v{n}",
              f"v_mov_b32 v{n + 1}, v{n}", f"v_mov_b64 {V(n + 2, 2)}, {V(n, 2)}"])


def table_write(c, tab, va, bias=None):
    o = [f"v_cvt_pk_bf16_f32 v{c + 2}, v{c}, v{c}",
         f"v_lshlrev_b32 v{c + 1}, 16, v{c + 2}",
         f"v_sub_f32 v{c + 1}, v{c}, v{c + 1}",
         f"v_and_b32 v{c + 3}, 0xffff, v{c + 2}",
         f"v_cvt_pk_bf16_f32 v{c + 2}, v{c}, v{c + 1}"]
    if bias:
        o.append(f"v_lshl_or_b32 v{c + 3}, {bias}, 16, v{c + 3}")
    o.append(f"ds_write_b64 {va}, {V(c + 2, 2)} offset:{tab * 1024}")
    return [I(x) for x in o]


def table_addr(va):
    return I([f"s_lshr_b32 {u0}, {sW}, 1", f"s_lshl_b32 {u0}, {u0}, 9", f"s_and_b32 {u1}, {sW}, 1", f"s_lshl_b32 {u1}, {u1}, 3",
              f"s_add_u32 {u0}, {u0}, {u1}", f"s_add_u32 {u0}, {u0}, {TAB0}",
              f"v_and_b32 {va}, 0x1f0, {vL16}", f"v_add_u32 {va}, {u0}, {va}"])


def stats_finish(a, b, c, d, ex, mlp, r, ir):
    o = [f"v_mul_f32 {a}, {fc(-1.0 / 512)}, {a}",
         f"v_mul_f32 {c}, {a}, {a}",
         f"v_fma_f32 {b}, {b}, {u3}, -{c}",
         f"v_cvt_pk_bf16_f32 v{ex}, {a}, {a}",
         f"v_max_f32 {b}, 0, {b}",
         f"v_add_f32 {c}, {fc(EPS)}, {b}",
         f"v_rsq_f32 {r}, {c}",
         f"v_lshlrev_b32 {d}, 16, v{ex}",
         f"v_sub_f32 {d}, {a}, {d}"]
    o = [f"s_mov_b32 {u3}, {fc(1.0 / 512)}"] + o
    if mlp:
        o += [f"v_mul_f32 {b}, {b}, {r}", f"v_mul_f32 {b}, {b}, {r}", f"v_add_f32 {b}, {fc(EPS)}, {b}",
              f"v_rsq_f32 {b}, {b}", f"v_mov_b32 v{ex + 2}, v{ex}", f"v_mul_f32 {r}, {b}, {r}", f"v_rcp_f32 {ir}, {r}",
              f"v_cvt_pk_bf16_f32 v{ex + 1}, {d}, {ir}", f"v_and_b32 {a}, 0xffff0000, v{ex + 1}", f"v_sub_f32 {a}, {ir}, {a}",
              f"v_cvt_pk_bf16_f32 v{ex + 3}, {d}, {a}"]
    else:
        o += [f"v_mov_b32 v{ex + 2}, v{ex}", f"v_cvt_pk_bf16_f32 v{ex + 1}, {d}, {d}", f"v_mov_b32 v{ex + 3}, v{ex + 1}"]
    return [I(x) for x in o]


def x_loads(xoff, stoff, stv, split=16):
    o = [f"s_lshl_b32 {t1}, {sT}, 15"]
    for t in range(32):
        if t == split:
            o += [f"s_lshl_b32 {t2}, {sT}, 12", f"s_add_u32 {t2}, {t2}, {stoff}", f"v_lshlrev_b32 {x1}, 2, {vL}"]
            for s in range(16):
                o.append(f"buffer_load_dword v{stv + s}, {x1}, {sWS}, {t2} offen offset:{s * 256} sc1")
        if t % 4 == 0:
            o.append(f"s_add_u32 {t0}, {t1}, {xoff + t * 1024}")
        o.append(f"buffer_load_dwordx4 {V(XF + 4 * t)}, {vL16}, {sWS}, {t0} offen offset:{(t % 4) * 1024} sc1")
    return I(o)


def stats_sum(stv):
    o = []
    for st in (8, 4, 2, 1):
        for i in range(st):
            o.append(f"v_add_f32 v{stv + i}, v{stv + i}, v{stv + i + st}")
    o += [f"v_mov_b32 v{stv + 1}, v{stv}", "s_nop 0", f"v_permlane32_swap_b32 v{stv}, v{stv + 1}"]
    return [I(x) for x in o]


def prologue():
    P("s_cmp_ge_u32 s2, 256")
    P("s_cbranch_scc1 L_end")
    P.add(tick("s.start"))
    P("s_load_dwordx16 s[64:79], s[0:1], 0")
    P("s_load_dwordx4 s[80:83], s[0:1], 64")
    P("s_load_dwordx2 s[84:85], s[0:1], 80")
    P(f"v_lshrrev_b32 {x0}, 6, v0")
    P("v_and_b32 v0, 63, v0")
    P(f"v_readfirstlane_b32 {sW}, {x0}")
    P("s_and_b32 s3, s2, 7")
    P(f"s_lshl_b32 {sC}, s3, 1")
    P("s_bfe_u32 s3, s2, 0x10003")
    P(f"s_or_b32 {sC}, {sC}, s3")
    P(f"s_lshr_b32 {sM}, s2, 4")
    P(f"v_lshlrev_b32 {vL16}, 4, {vL}")
    P(f"s_lshl_b32 {sT}, {sC}, 2")
    P(f"s_add_u32 {sT}, {sT}, {sW}")
    P(f"v_lshrrev_b32 {x0}, 3, {vL}")
    P(f"v_xor_b32 {x2}, {x0}, {vL}")
    P(f"v_and_b32 {x2}, 7, {x2}")
    P(f"v_lshlrev_b32 {x2}, 4, {x2}")
    P(f"v_lshl_add_u32 {vX0}, {x0}, 10, {x2}")
    P(f"v_xor_b32 {vX1}, 16, {vX0}")
    P(f"v_lshrrev_b32 {x1}, 5, {vL}")
    P(f"v_lshrrev_b32 {voQ}, 2, {vL}")
    P(f"v_mul_u32_u24 {voQ}, 3072, {voQ}")
    P(f"v_and_b32 {x0}, 0x30, {vL16}")
    P(f"v_add_u32 {voQ}, {voQ}, {x0}")
    P(f"s_lshl_b32 {t5}, s3, 1")
    P(f"s_and_b32 {t0}, {sM}, 1")
    P(f"s_or_b32 {t5}, {t5}, {t0}")
    P(f"s_bfe_u32 {t0}, {sM}, 0x20001")
    P(f"s_xor_b32 {t5}, {t5}, {t0}")
    if opt("NOROT", 0):
        P(f"s_mov_b32 {t5}, 0")
    P(f"s_lshl_b32 {t3}, {sT}, 15")
    P.add(wq_setup())
    P(f"s_mov_b32 {t4}, {d1}")
    P(f"s_lshl_b32 {d3}, {sW}, 14")
    def srd(n, src, size):
        P(f"s_mov_b64 s[{n}:{n + 1}], s[{src}:{src + 1}]")
        P(f"s_mov_b32 s{n + 2}, {size}")
        P(f"s_mov_b32 s{n + 3}, 0x00020000")
    srd(8, 64, 2 * MB)
    P.add(I(x0_items(0)))
    srd(12, 66, 512 * 1536 * 2)
    P.add(I(w0_items(0)))
    srd(28, 84, 64 * MB)
    P.add(tick("s.c0"))
    if opt("INP", 0) == 0:
        P.add(I(init_l0()))
    P.add(tick("s.init"))
    srd(44, 82, 256)
    P(f"s_getreg_b32 {sMODE}, hwreg(HW_REG_XCC_ID, 0, 4)")
    P(f"s_or_b32 {sMODE}, {sMODE}, 0x10")
    srd(16, 68, 512 * 512 * 2)
    srd(20, 72, 512 * 1792 * 2)
    srd(24, 76, 1792 * 512 * 2)
    srd(32, 80, 2 * MB)
    srd(36, 78, 1024)
    srd(40, 74, 3584)
    P(f"v_bfe_u32 {x0}, {vL}, 2, 2")
    P(f"v_lshl_add_u32 {x0}, {x1}, 3, {x0}")
    P(f"v_lshlrev_b32 {x0}, 6, {x0}")
    P(f"v_bfe_u32 {x2}, {vL}, 4, 1")
    P(f"v_lshl_add_u32 {x0}, {x2}, 5, {x0}")
    P(f"v_and_b32 {x2}, 1, {vL}")
    P(f"v_lshl_add_u32 {x0}, {x2}, 4, {x0}")
    P(f"v_bfe_u32 {x2}, {vL}, 1, 1")
    P(f"v_lshl_add_u32 {vTR}, {x2}, 3, {x0}")
    P(f"v_add_u32 {vTR1}, 0x10000, {vTR}")
    P(f"v_lshl_add_u32 {vTP}, {x1}, 9, {vTR}")
    P(f"v_add_u32 {vTP1}, 0x10000, {vTP}")
    P(f"s_and_b32 {t0}, {sM}, 1")
    P(f"s_lshl_b32 {t0}, {t0}, 1")
    P(f"s_lshl_b32 {sTP}, {sC}, 2")
    P(f"s_add_u32 {sTP}, {sTP}, {t0}")
    P(f"s_lshr_b32 {t0}, {sW}, 1")
    P(f"s_add_u32 {sTP}, {sTP}, {t0}")
    P(f"s_and_b32 {t2}, {sM}, 14")
    P(f"s_and_b32 {t1}, {sW}, 1")
    P(f"s_add_u32 {sCT}, {t2}, {t1}")
    P(f"s_mul_i32 {sW2B}, {t0}, {896 * 1024}")
    P(f"s_lshl_b32 {t0}, {t1}, 14")
    P(f"s_add_u32 {sW2B}, {sW2B}, {t0}")
    P(f"s_lshl_b32 {t2}, {t2}, 6")
    P(f"s_add_u32 {sW2B}, {sW2B}, {t2}")
    P(f"v_bfe_u32 {x0}, {vL}, 2, 3")
    P(f"v_and_b32 {x2}, 0x30, {vL16}")
    P(f"v_mul_u32_u24 {vo1}, 3584, {x0}")
    P(f"v_lshl_add_u32 {vo2}, {x0}, 10, {x2}")
    P(f"v_add_u32 {vo1}, {vo1}, {x2}")
    P(f"v_lshl_add_u32 {vo1}, {x1}, 6, {vo1}")
    P(f"v_xor_b32 {x0}, {t1}, {x1}")
    P(f"v_lshl_add_u32 {vo2}, {x0}, 6, {vo2}")
    P(f"v_and_b32 {x0}, 31, {vL}")
    P(f"v_lshlrev_b32 {x2}, 2, {x1}")
    P(f"v_sub_u32 {x0}, {x0}, {x2}")
    for r in range(16):
        P(f"v_cmp_le_i32_e64 {sMASK(r)}, {(r & 3) + 8 * (r >> 2)}, {x0}")
    P(f"v_mov_b32 {x0}, 0xffff")
    P(f"v_mov_b32 {x2}, 0xffff0000")
    for d in range(8):
        P(f"v_cndmask_b32_e64 v16, 0, {x0}, {sMASK(2 * d)}")
        P(f"v_cndmask_b32_e64 v17, 0, {x2}, {sMASK(2 * d + 1)}")
        P(f"v_or_b32 v16, v16, v17")
        P(f"v_accvgpr_write_b32 a{240 + d}, v16")


def init_kv(L, tag):
    it = [I(([f"v_accvgpr_write_b32 a{236 + i}, -1" for i in range(4)] if L == 0 else []) +
            [f"s_lshl_b32 {u0}, {sT}, 4", f"s_add_u32 {u0}, {u0}, {sM}", f"s_lshl_b32 {u0}, {u0}, 12", f"s_add_u32 {u1}, {u0}, {LB(L) + KV_O}"])]
    for j in range(4):
        it.append([Ins(f"buffer_store_dwordx4 a[236:239], {vL16}, {sWS}, {u1} offen offset:{1024 * j} sc1", xdst=[tag])])
    return it


def init_l0():
    it = init_kv(0, "init")
    it.append(I(["v_mov_b32 v20, 0", f"s_lshl_b32 {u0}, {sC}, 4", f"s_add_u32 {u0}, {u0}, {sM}", f"s_lshl_b32 {u0}, {u0}, 2", f"s_add_u32 {sFA}, {u0}, {sW}",
                 f"s_lshl_b32 {u0}, {sFA}, 7", f"s_lshl_b32 {u1}, {sFA}, 2", f"s_add_u32 {u1}, {u1}, {FPACK}"]))
    it.append([Ins(f"buffer_store_dword v20, off, {sWS}, {u0} sc1", xdst=["init"])])
    it.append([Ins(f"buffer_store_dword v20, off, {sWS}, {u1} sc1", xdst=["init"])])
    it.append(I(f"s_add_u32 {sFP}, {u1}, {MBOX - FPACK}"))
    it.append([Ins(f"buffer_store_dword v20, off, {sWS}, {sFP} sc1", xdst=["init"])])
    return it


def misc_l0():
    it = []
    it.append(I([f"v_and_b32 v21, 31, {vL}", f"v_lshrrev_b32 v22, 5, {vL}", "v_lshlrev_b32 v21, 10, v21", "v_lshlrev_b32 v22, 4, v22",
                 "v_add_u32 v21, v21, v22",
                 f"s_lshl_b32 {u0}, {sTP}, 15", f"s_lshl_b32 {u1}, {sCT}, 6", f"s_add_u32 {u0}, {u0}, {u1}"]))
    it.append(I(f"buffer_load_dwordx4 a[224:227], v21, {sX}, {u0} offen"))
    it.append(I(f"buffer_load_dwordx4 a[228:231], v21, {sX}, {u0} offen offset:32"))
    it.append(I(f"buffer_load_dwordx4 a[248:251], v22, {sB2}, {u1} offen"))
    it.append(I(f"buffer_load_dwordx4 a[252:255], v22, {sB2}, {u1} offen offset:32"))
    return it


def touch(srd, total, vt, va, st=u0):
    share = total // 128
    sh = 7 if share > 4096 else 6
    it = [I([f"s_lshr_b32 {st}, s2, 3", f"s_lshl_b32 {st}, {st}, 2", f"s_add_u32 {st}, {st}, {sW}", f"s_mul_i32 {st}, {st}, {share}",
             f"v_lshlrev_b32 {va}, {sh}, {vL}", f"buffer_load_dword {vt}, {va}, {srd}, {st} offen"])]
    if share > 8192:
        assert share <= 16384
        it.append(I([f"s_add_u32 {st}, {st}, {share - 8192}", f"buffer_load_dword {vt}, {va}, {srd}, {st} offen"]))
    return it


aK, aV, aQ, RING, STV, EX, TABS = 16, 32, 48, 64, 96, 112, 116
HB = XF


def kv_epilogue(L):
    r = x0
    it = []
    for i in range(16):
        it.append(f"v_mul_f32 v{aK + i}, v{aK + i}, {r}")
    for i in range(8):
        it.append(f"v_cvt_pk_bf16_f32 v{aK + i}, v{aK + 2 * i}, v{aK + 2 * i + 1}")
    it.append([f"s_lshl_b32 {u0}, {sT}, 4", f"s_add_u32 {u0}, {u0}, {sM}", f"s_lshl_b32 {u0}, {u0}, 12", f"s_add_u32 {u0}, {u0}, {LB(L) + KV_O}"])
    it.append(f"buffer_store_dwordx4 {V(aK)}, {vL16}, {sWS}, {u0} offen sc1")
    it.append(f"buffer_store_dwordx4 {V(aK + 4)}, {vL16}, {sWS}, {u0} offen offset:2048 sc1")
    for i in range(16):
        it.append(f"v_mul_f32 v{aV + i}, v{aV + i}, v{STV + i}")
    for i in range(8):
        it.append(f"v_cvt_pk_bf16_f32 v{aV + i}, v{aV + 2 * i}, v{aV + 2 * i + 1}")
    it.append(f"buffer_store_dwordx4 {V(aV)}, {x2}, {sWS}, {u0} offen offset:1024 sc1")
    it.append(f"buffer_store_dwordx4 {V(aV + 4)}, {x2}, {sWS}, {u0} offen offset:1536 sc1")
    it.append([f"s_mul_i32 {u1}, {sW}, {PITCH}", f"s_add_u32 {u1}, {u1}, {SL + 8 * PITCH}"])
    it.append(f"v_add_u32 {x1}, {u1}, {vL16}")
    it.append(f"v_add_u32 {x2}, {u1}, {x2}")
    it.append(f"ds_write_b128 {x1}, {V(aK)}")
    it.append(f"ds_write_b128 {x1}, {V(aK + 4)} offset:2048")
    it.append(f"ds_write_b128 {x2}, {V(aV)} offset:1024")
    it.append(f"ds_write_b128 {x2}, {V(aV + 4)} offset:1536")
    it.append(f"v_mul_f32 {r}, {fc(0.25 * LOG2E)}, {r}")
    return [I(x) for x in it]


def r_bcast():
    it = [[f"s_lshl_b32 {u0}, {sW}, 7", f"s_add_u32 {u0}, {u0}, {RBC}"],
          f"v_and_b32 {x1}, 31, {vL}", f"v_lshl_add_u32 {x1}, {x1}, 2, {u0}", f"ds_write_b32 {x1}, {x0}",
          f"v_lshrrev_b32 {x2}, 5, {vL}", f"v_lshl_add_u32 {x1}, {x2}, 4, {u0}"]
    for g in range(4):
        it.append(f"ds_read_b128 {V(STV + 4 * g)}, {x1} offset:{32 * g}")
    it += [f"v_lshlrev_b32 {x2}, 8, {x2}", f"v_and_b32 {x1}, 0xf0, {vL16}", f"v_add_u32 {x2}, {x2}, {x1}",
           f"v_bfe_u32 {x1}, {vL}, 4, 1", f"v_lshl_add_u32 {x2}, {x1}, 11, {x2}"]
    return [I(x) for x in it]


def kv_groups(ts, D=3, lo=0, hi=32):
    g = []
    for k in ts:
        it = []
        t = k + D
        if lo <= t < hi:
            it += tr1(RING + 8 * (t % 4), R0 + t * 1024) + tr1(RING + 8 * (t % 4) + 4, R1 + t * 1024)
        it += I([f"{MF} {V(aK, 16)}, {V(RING + 8 * (k % 4))}, {V(XF + 4 * k)}, {V(aK, 16) if k else 0}",
                 f"{MF} {V(aV, 16)}, {V(XF + 4 * k)}, {V(RING + 8 * (k % 4) + 4)}, {V(aV, 16) if k else 0}"])
        g.append(it)
    return g


def kv_pre(t0_, n=3):
    o = []
    for t in range(t0_, t0_ + n):
        o += tr1(RING + 8 * (t % 4), R0 + t * 1024) + tr1(RING + 8 * (t % 4) + 4, R1 + t * 1024)
    return o


def tab_reads(js, va):
    return [I(f"v_add_u32 {va}, {TAB0}, {vL16}")] + [I(f"ds_read_b128 {V(TABS + 4 * j)}, {va} offset:{1024 * j}") for j in js]


def halo_setup(L):
    o = []
    for i, (back, sk, sv) in enumerate(((8, d1, d2), (4, d3, t5))):
        o += [f"s_sub_u32 {u0}, {sT}, {back}", f"s_cselect_b32 {u0}, 0, {u0}", f"s_cselect_b32 {u1}, 0x200, -1", f"s_cselect_b32 {u2}, {OOB}, 0",
              f"s_lshl_b32 {u0}, {u0}, 4", f"s_add_u32 {u0}, {u0}, {sM}", f"s_lshl_b32 {u0}, {u0}, 12", f"s_add_u32 {sk}, {u0}, {LB(L) + KV_O}",
              f"s_add_u32 {sv}, {sk}, {u2}", f"v_and_b32 v{STV + i}, {u1}, {vL16}"]
    return [I(o)]


def halo_loads():
    o = []
    for i, (sk, sv) in enumerate(((d1, d2), (d3, t5))):
        for j in range(4):
            va, so = (f"v{STV + i}", sk) if j % 2 == 0 else (vL16, sv)
            o.append(f"buffer_load_dwordx4 {V(HB + 16 * i + 4 * j)}, {va}, {sWS}, {so} offen offset:{1024 * j} sc1")
    return [I(x) for x in o]


def lead_issue():
    ls, lr = P.label(), P.label()
    OUTL.extend(I([ls + ":", f"v_lshlrev_b32 v116, 2, {vL}", f"buffer_load_dword v117, v116, {sDBG}, 0 offen sc1", f"s_branch {lr}"]))
    return I([f"s_or_b32 {u2}, {sM}, {sW}", f"s_cbranch_scc0 {ls}", lr + ":"])


def lead_check():
    ls, lr, lp, lc = P.label(), P.label(), P.label(), P.label()
    o = [ls + ":", f"v_lshlrev_b32 v116, 2, {vL}", f"s_mov_b32 {sCNT}, 30000", f"s_max_u32 {u0}, {sC}, 2", f"s_sub_u32 {u0}, {u0}, 2", f"s_sub_u32 {u1}, {sC}, {u0}",
         f"s_lshl_b32 {u0}, {u0}, 2", f"s_lshl_b32 {u1}, {u1}, 2", f"s_add_u32 {u1}, {u1}, 4", f"s_bfm_b64 s[98:99], {u1}, {u0}",
         f"s_mov_b32 {u0}, 0x10101010", need_ins(("v", 117)), f"s_branch {lc}",
         lp + ":", f"s_sub_u32 {sCNT}, {sCNT}, 1", f"s_cbranch_scc1 L_end", f"buffer_load_dword v117, v116, {sDBG}, 0 offen sc1", need_ins(("v", 117)),
         lc + ":", f"v_and_b32 v118, {u0}, v117", f"v_cmp_ne_u32 vcc, {u0}, v118", f"s_and_b64 vcc, vcc, s[98:99]", f"s_cbranch_scc1 {lp}",
         f"s_mul_i32 {u0}, {sMODE}, 0x01010101", f"v_cmp_ne_u32 vcc, {u0}, v117", f"s_lshl_b32 {u1}, {sC}, 2", f"s_bfm_b64 s[98:99], 4, {u1}",
         f"s_and_b64 vcc, vcc, s[98:99]", f"s_cselect_b32 {u0}, 1, 2", f"v_mov_b32 v118, {u0}",
         f"buffer_store_dword v118, v116, {sWS}, {sFP} offen sc1", f"s_branch {lr}"]
    OUTL.extend(I(o))
    return I([f"s_or_b32 {u2}, {sM}, {sW}", f"s_cbranch_scc0 {ls}", lr + ":"])


def handshake_issue():
    return [I([f"buffer_load_dword v{STV + 3}, off, {sWS}, {sFP} sc1"])]


def handshake_check():
    b, c = f"v{STV + 3}", f"v{STV + 4}"
    ls, lr, lp = P.label(), P.label(), P.label()
    OUTL.extend(I([ls + ":", f"s_mov_b32 {sCNT}, 30000", lp + ":", f"buffer_load_dword {b}, off, {sWS}, {sFP} sc1",
                   f"v_cmp_eq_u32 vcc, 0, {b}", f"s_cbranch_vccz {lr}",
                   f"s_sub_u32 {sCNT}, {sCNT}, 1", f"s_cbranch_scc0 {lp}", "s_endpgm"]))
    o = [f"v_cmp_eq_u32 vcc, 0, {b}", f"s_cbranch_vccnz {ls}", lr + ":"]
    it = [I(o)]
    o = [f"v_readfirstlane_b32 {u0}, {b}", f"s_cmp_eq_u32 {u0}, 1"]
    if OPT.get("SLOW"):
        o.append("s_cmp_eq_u32 0, 0")
    o += [f"s_cselect_b32 {sMODE}, 0, 1", f"s_cselect_b32 {u0}, 7, {opt('FSH', 2)}", f"s_cselect_b32 {u1}, 0, {FPACK if opt('FSH', 2) == 2 else 0}",
          f"s_lshl_b32 {sFA}, {sFA}, {u0}", f"s_add_u32 {sFA}, {sFA}, {u1}",
          f"s_lshl_b32 {sFP}, {sC}, 6", f"s_lshl_b32 {sFP}, {sFP}, {u0}", f"s_add_u32 {sFP}, {sFP}, {u1}"]
    it.append(I(o))
    it.append(I([f"s_lshr_b32 {u1}, {sW}, 1", f"s_lshl_b32 {u1}, {u1}, 2", f"s_and_b32 {u2}, {sW}, 1", f"s_lshl_b32 {u3}, {u2}, 1", f"s_add_u32 {u1}, {u1}, {u3}",
                 f"v_and_b32 {b}, 14, {vL}", f"v_and_b32 {c}, 1, {vL}", f"v_lshl_add_u32 {b}, {b}, 2, {c}", f"v_add_u32 {b}, {u1}, {b}",
                 f"v_lshlrev_b32 {vPX}, {u0}, {b}"]))
    it.append(I([f"s_lshl_b32 {u2}, {u2}, 5", f"s_and_b32 {u1}, {sTP}, 3", f"s_add_u32 {u1}, {u1}, {u2}",
                 f"v_and_b32 {b}, 7, {vL}", f"v_lshl_add_u32 {b}, {b}, 2, {u1}", f"v_lshlrev_b32 {vPO}, {u0}, {b}"]))
    it.append(I([f"s_lshr_b32 {u1}, {sW}, 1", f"s_mul_i32 {u1}, {u1}, 28", f"s_and_b32 {u2}, {sTP}, 2", f"s_add_u32 {u1}, {u1}, {u2}",
                 f"v_bfe_u32 {b}, {vL}, 1, 3", f"v_min_u32 {b}, 6, {b}", f"v_lshl_add_u32 {b}, {b}, 2, {c}", f"v_add_u32 {b}, {u1}, {b}",
                 f"v_lshlrev_b32 {vPH}, {u0}, {b}"]))
    return it


def phase1(L):
    ext = I([f"{MF} {V(aK, 16)}, {V(TABS)}, {V(EX)}, {V(aK, 16)}", f"{MF} {V(aV, 16)}, {V(EX)}, {V(TABS + 4)}, {V(aV, 16)}"])
    D = 6
    qg = []
    for k in range(32):
        it = tr1(RING + 4 * ((k + D) % 8), R2 + (k + D) * 1024) if k + D < 32 else []
        qg.append(it + I(f"{MF} {V(aQ, 16)}, {V(RING + 4 * (k % 8))}, {V(XF + 4 * k)}, {V(aQ, 16) if k else 0}"))
    qpre = []
    for t in range(D):
        qpre += tr1(RING + 4 * t, R2 + t * 1024)
    HL = opt("HL", 20)
    if L == 0:
        AS, S1, S2, CK, CV, CF = 124, 96, 100, 104, 108, 48
        P.add(asel(AS))
        for i in range(4):
            P(f"v_mov_b32 v{S2 + i}, 0")
        P(f"v_lshrrev_b32 {x0}, 5, {vL}")
        P(f"v_bfe_u32 {x1}, {vL}, 3, 1")
        P(f"v_xor_b32 {x0}, {x0}, {x1}")
        P(f"v_xor_b32 {x0}, {x0}, {vL}")
        P(f"v_and_b32 {x0}, 7, {x0}")
        P(f"v_and_b32 {x1}, 31, {vL}")
        P(f"v_lshlrev_b32 {x1}, 7, {x1}")
        P(f"v_lshl_add_u32 {x0}, {x0}, 4, {x1}")
        P(f"s_add_u32 {t0}, {d3}, {SL}")
        P(f"v_add_u32 v{XA}, {t0}, {x0}")
        for k in range(1, 4):
            P(f"v_xor_b32 v{XA + k}, {32 * k}, v{XA}")
        P(f"v_add_u32 {x1}, {d2}, {vTR}")
        P.add(table_addr(x2))
        P.add(tick("s.setup"))
        if opt("DBGW", 0):
            P.need("x0")
            P.add(tick("s.w0"))
            P.need("kv0")
            P.add(tick("s.w1"))
            P.need("init")
            P.add(tick("s.w2"))
        P.add(I(x0_items(1) + w0_items(1)))
        if opt("INP", 0) == 1:
            P.add(I(init_l0()))
        P.add(tick("s.c1"))
        later = {0: x0_items(2) + w0_items(2), 1: x0_items(3) + w0_items(3),
                 2: w0_items(0, (2,), "wq") + w0_items(1, (2,), "wq") + w0_items(2, (2,), "wq") + w0_items(3, (2,), "wq") + init_kv(1, "init1"),
                 3: touch(sW2, 1792 * 1024, "a232", "v119") + touch(sWO, 512 * 1024, "a232", "v119")}
        for q in range(4):
            P.need(f"x{q}")
            for t in range(8):
                P(f"ds_read_b128 {V(XF + 32 * q + 4 * t)}, v{XA + (t & 3)} offset:{8192 * (q & 1) + 4096 * (t >> 2)}")
            P.add(tick(f"s.x{q}"))
            main = []
            for t in range(8):
                for j in range(4):
                    main.append(f"v_dot2c_f32_bf16 v{S2 + j}, v{XF + 32 * q + 4 * t + j}, v{XF + 32 * q + 4 * t + j}")
                main.append(f"{MF16} {V(S1)}, {V(AS)}, {V(XF + 32 * q + 4 * t)}, {V(S1) if (q or t) else 0}")
            lt = later[q]
            if q < 2:
                lt = [[need_ins("ds_any")]] + lt
            P.add(I(spread(main, lt, 0.1, 1.0)))
            if q == 3:
                P(f"v_add_f32 v{S2}, v{S2}, v{S2 + 1}")
                P(f"v_add_f32 v{S2 + 2}, v{S2 + 2}, v{S2 + 3}")
                P(f"v_add_f32 v{S2}, v{S2}, v{S2 + 2}")
                P(f"v_mov_b32 v{S2 + 1}, v{S2}")
                P(f"v_permlane32_swap_b32 v{S2}, v{S2 + 1}")
                P(f"v_add_f32 v{S2}, v{S2}, v{S2 + 1}")
                P.add(I(stats_finish(f"v{S1}", f"v{S2}", f"v{S2 + 1}", f"v{S2 + 2}", EX, False, x0, None)))
            P.need(f"kv{q}")
            for i in range(2):
                P.add(tr("v", CF + 8 * i, x1, R0 + 8192 * q + 1024 * i) + tr("v", CF + 8 * i + 4, x1, R1 + 8192 * q + 1024 * i))
            SG = opt("INP", 0)
            if q == SG:
                P(f"v_mov_b32 v119, {sMODE}")
                P(f"s_lshr_b32 {u0}, {sFA}, 2")
                P(f"s_cmp_lg_u32 {sW}, 0")
                P.need("init")
            P("s_barrier")
            if q == SG:
                lsk = P.label()
                P(f"s_cbranch_scc1 {lsk}")
                P(f"buffer_store_byte v119, off, {sDBG}, {u0} sc1")
                P.put(lsk)
            P.add(tick(f"s.b{q}"))
            P.add(kv_pre(8 * q))
            for i in range(2):
                P(f"{MF16} {V(CK)}, {V(AS)}, {V(CF + 8 * i)}, {V(CK) if (q or i) else 0}")
                P(f"{MF16} {V(CV)}, {V(AS)}, {V(CF + 8 * i + 4)}, {V(CV) if (q or i) else 0}")
            g = kv_groups(range(8 * q, 8 * q + 8), hi=8 * q + 8)
            if q < 3:
                P.add(I(g))
            else:
                fill = [(1, x) for x in table_write(CK, 0, x2) + table_write(CV, 1, x2)] + [(4, lead_check() + barrier())] + tab_reads([0, 1], x2) + r_bcast()
                P.add(weave(g, fill))
            if q == opt("LIS", 1):
                P.add(lead_issue())
            P.add(tick(f"s.kv{q}"))
        P.need("init1")
        P.add(ext)
        P.add(I(kv_epilogue(0)))
        P.add(tick("0.kv"))
        CQ = 104
        P(f"s_lshl_b32 {t0}, {sW}, 11")
        P(f"v_add_u32 {x1}, {t0}, {vTR1}")
        P.add(table_addr(x2))
        P.need("wq")
        for q in range(4):
            for i in range(2):
                P.add(tr("v", 16 + 8 * q + 4 * i, x1, 8192 * q + 1024 * i))
        P("s_barrier")
        P.add(qpre)
        for j in range(8):
            P(f"{MF16} {V(CQ)}, {V(AS)}, {V(16 + 4 * j)}, {V(CQ) if j else 0}")
        fill = [(1, x) for x in table_write(CQ, 2, x2)] + [(opt("HSI", 6), x) for x in handshake_issue()] + [(8, barrier())] + tab_reads([2], x2) \
            + [(opt("HSC", 16), x) for x in handshake_check()] + halo_setup(0) + [(HL, x) for x in halo_loads()] + misc_l0()
        P.add(weave(qg, fill))
    else:
        P.add(wq_setup())
        P.add(I(wq_items(2)))
        P.add(I(tab_reads([0, 1, 2], x2)))
        P.add(kv_pre(0))
        P.add(poll(vPX, x1, 8))
        P.add(tick("1.pollx"))
        P.add(x_loads(LB(1) + XIN_O, LB(1) + ST2_O, STV))
        P.add(tick("1.xiss"))
        s = [f"v{STV + i}" for i in range(4)]
        fill = stats_sum(STV) + stats_finish(s[0], s[1], s[2], s[3], EX, False, x0, None) + r_bcast()
        P.add(weave(kv_groups(range(32)), [(17, x) for x in fill]))
        P.add(ext)
        P.add(tick("1.kv"))
        P.add(barrier("wq"))
        P.add(qpre)
        fill = [(1, x) for x in kv_epilogue(1)] + halo_setup(1) + [(HL, x) for x in halo_loads()]
        P.add(weave(qg, fill))
    P(f"{MF} {V(aQ, 16)}, {V(TABS + 8)}, {V(EX)}, {V(aQ, 16)}")
```

```python
from k2_base import *
from k2_p1 import *

QF, KA, VA, M0_, M1_, TMP, PM, KF, SA, SB, NM0, OA0 = 16, 24, 25, 29, 30, 31, 32, 40, 112, 176, 224, 240
NM1, OA1, VF = 112, 128, 144


def phase2(L):
    P(f"s_mul_i32 {t0}, {sW}, {PITCH}")
    P(f"s_add_u32 {t0}, {t0}, {SL}")
    P(f"v_add_u32 v{KA}, {t0}, {vL16}")
    P(f"v_and_b32 {x1}, 0xf0, {vL16}")
    P(f"v_lshrrev_b32 {x2}, 5, {vL}")
    P(f"v_lshl_add_u32 {x1}, {x2}, 8, {x1}")
    P(f"v_add_u32 {x1}, {t0}, {x1}")
    P(f"s_mov_b32 vcc_lo, 0xffff0000")
    P(f"s_mov_b32 vcc_hi, 0xffff0000")
    for hs in range(4):
        P(f"s_add_u32 {t1}, {t0}, {4096 - (2048 * (hs >> 1) + 1024 + 512 * (hs & 1))}")
        P(f"v_mov_b32 {x2}, {t1}")
        P(f"v_cndmask_b32 v{VA + hs}, {x1}, {x2}, vcc")
    P(f"v_lshrrev_b32 {x1}, 2, {vL}")
    P(f"v_min_u32 {x1}, 2, {x1}")
    P(f"v_lshlrev_b32 {x2}, 2, {x1}")
    P(f"v_add_u32 {x2}, {sT}, {x2}")
    P(f"v_cmp_le_u32 vcc, 8, {x2}")
    P(f"v_mul_u32_u24 {x1}, {4 * PITCH}, {x1}")
    P(f"v_and_b32 {x2}, 3, {vL}")
    P(f"v_lshl_add_u32 {x1}, {x2}, 2, {x1}")
    P(f"v_add_u32 {x1}, {t0}, {x1}")
    P(f"v_mov_b32 {x2}, 0x3f803f80")
    P(f"v_cndmask_b32 {x2}, 0, {x2}, vcc")
    P(f"ds_write_b32 {x1}, {x2} offset:4096")
    for i in range(16):
        P(f"v_mul_f32 v{aQ + i}, v{aQ + i}, {x0}")
    for i in range(8):
        P(f"v_cvt_pk_bf16_f32 v{QF + i}, v{aQ + 2 * i}, v{aQ + 2 * i + 1}")
    for d in range(8):
        P(f"v_accvgpr_read_b32 v{PM + d}, a{240 + d}")
    P.add(tick(f"{L}.p1end"))
    lp, lr, ls = P.label(), P.label(), P.label()
    P(f"s_mov_b32 {sCNT}, 20000")
    P.put(lp)
    for i in range(2):
        for j in range(4):
            P(f"ds_write_b128 v{KA}, {V(HB + 16 * i + 4 * j)} offset:{4 * PITCH * i + 1024 * j}")
            b = HB + 16 * i + 4 * j
            if i == 0 and j == 0:
                P(f"v_max3_u32 {x1}, v{b}, v{b + 1}, v{b + 2}")
                P(f"v_max_u32 {x1}, {x1}, v{b + 3}")
            else:
                P(f"v_max3_u32 {x1}, {x1}, v{b}, v{b + 1}")
                P(f"v_max3_u32 {x1}, {x1}, v{b + 2}, v{b + 3}")
    P(f"v_cmp_eq_u32 vcc, -1, {x1}")
    P(f"s_cbranch_vccnz {ls}")
    P.put(lr)
    OUTL.extend(I([ls + ":", f"s_sub_u32 {sCNT}, {sCNT}, 1", f"s_cbranch_scc1 {lr}"] + halo_loads() + [f"s_branch {lp}"]))
    P.add(tick(f"{L}.halo"))
    P.add(barrier())
    P.add(tick(f"{L}.B2"))

    o1 = [8, 0, 1, 2, 3, 4, 5, 6, 7]
    def kf(h, j): return V(KF + 36 * h + 4 * j)
    def q(h): return V(QF + 4 * h)
    main = []
    for h in range(2):
        for n in range(9):
            main.append(f"ds_read_b128 {kf(h, o1[n])}, v{KA} offset:{PITCH * o1[n] + 2048 * h}")
    def sa(g): return SA + 16 * (g % 4)
    def s1(g): return f"{MF} {V(sa(g), 16)}, {kf(g // 9, o1[g % 9])}, {q(g // 9)}, 0"
    def sb(g): return SB + 16 * (g % 3)
    def nm(h): return NM0 if h == 0 else NM1
    def oa(h): return OA0 if h == 0 else OA1
    def s2(g): return f"{MF} {V(sb(g), 16)}, {kf(g // 9, o1[g % 9])}, {q(g // 9)}, {V(nm(g // 9), 16)}"
    def vf(g): return VF + 8 * (g % 4)
    def vload(g):
        h, j = g // 9, o1[g % 9]
        return [f"ds_read_b128 {V(vf(g) + 4 * s)}, v{VA + 2 * h + s} offset:{PITCH * j + 2048 * h + 1024 + 512 * s}" for s in range(2)]
    def fin(h):
        m, n = f"v{M0_ + h}", nm(h)
        o = [f"v_mov_b32 v{TMP}, {m}", None, f"v_permlane32_swap_b32 {m}, v{TMP}", f"v_max_f32 {m}, {m}, v{TMP}",
             f"v_sub_f32 v{n}, 0, {m}", f"v_sub_f32 v{n + 1}, 0, {m}"]
        o += [f"v_mov_b64 {V(n + 2 * i, 2)}, {V(n, 2)}" for i in range(1, 8)]
        return o
    def mix(a, b):
        out, b = [], list(b)
        for x in a:
            out.append(x)
            if b:
                y = b.pop(0)
                if y is not None:
                    out.append(y)
        return out + [y for y in b if y is not None]
    main += [s1(0), s1(1)]
    for g in range(1, 18):
        h, k = g // 9, g % 9
        m = f"v{M0_ + h}"
        if k == 0:
            continue
        body = []
        if k == 1:
            for r in range(16):
                body.append(f"v_cndmask_b32_e64 v{sa(g) + r}, v{sa(g) + r}, v{sa(g - 1) + r}, {sMASK(r)}")
        for i in range(8):
            s = sa(g)
            if k == 1 and i == 0:
                body.append(f"v_max_f32 {m}, v{s}, v{s + 1}")
            else:
                body.append(f"v_max3_f32 {m}, {m}, v{s + 2 * i}, v{s + 2 * i + 1}")
        main.append(("P1", g, body))
    seq, issued = [], 2
    units = [x for x in main if isinstance(x, tuple)]
    main = [x for x in main if not isinstance(x, tuple)]
    for (_, g, body) in units:
        k = g % 9
        lim = min(17, g + 2 if k != 8 else g + 3)
        mf = []
        while issued <= lim:
            mf.append(s1(issued)); issued += 1
        extra = []
        if g == 10:
            extra = fin(0)
        if g == 14:
            mf.append(s2(0))
        if g == 15:
            mf.append(s2(1))
        if g == 16:
            mf.append(s2(2))
        b = list(body)
        if len(mf) == 2:
            b = [mf[0]] + b[:4] + [mf[1]] + b[4:]
        elif len(mf) == 1:
            b = mf + b
        if g == 16:
            b = b + vload(0) + vload(1)
        if g == 17:
            b = b + vload(2)
        main += mix(b, extra)
    n_p1 = len(main)
    pend = []
    issued = 3
    def epi(h):
        o = oa(h)
        e = [f"v_rcp_f32 v{TMP}, v{o + 8}", None]
        e += [f"v_mul_f32 v{o + i}, v{o + i}, v{TMP}" for i in range(8)]
        e += [f"v_cvt_pk_bf16_f32 v{o + 8 + i}, v{o + 2 * i}, v{o + 2 * i + 1}" for i in range(4)]
        e += [xstore(f"buffer_store_dwordx4 {V(o + 8)}, {vL16}, {sWS}, {t0} offen offset:{1024 * h}", 1 << (4 * L))]
        return e
    main += [f"s_lshl_b32 {t0}, {sT}, 4", f"s_add_u32 {t0}, {t0}, {sM}", f"s_lshl_b32 {t0}, {t0}, 11", f"s_add_u32 {t0}, {t0}, {LB(L) + O_O}"]
    for g in range(1, 18):
        h, k = g // 9, g % 9
        if k == 0:
            continue
        s, o = sb(g), V(oa(h), 16)
        pre = []
        if k == 1:
            pre = [f"v_cndmask_b32_e64 v{s + r}, v{s + r}, v{sb(g - 1) + r}, {sMASK(r)}" for r in range(16)]
        ex = [f"v_exp_f32 v{s + i}, v{s + i}" for i in range(16)]
        cv = [f"v_cvt_pk_bf16_f32 v{s + i}, v{s + 2 * i}, v{s + 2 * i + 1}" for i in range(8)]
        post = []
        if k == 1:
            for i in range(8):
                post += [f"v_and_b32 v{s + 8 + i}, v{s + i}, v{PM + i}", f"v_xor_b32 v{s + i}, v{s + i}, v{s + 8 + i}"]
            pv = [f"{MF} {o}, {V(vf(g - 1))}, {V(s + 8)}, 0", f"{MF} {o}, {V(vf(g - 1) + 4)}, {V(s + 12)}, {o}",
                  f"{MF} {o}, {V(vf(g))}, {V(s)}, {o}", f"{MF} {o}, {V(vf(g) + 4)}, {V(s + 4)}, {o}"]
        else:
            pv = [f"{MF} {o}, {V(vf(g))}, {V(s)}, {o}", f"{MF} {o}, {V(vf(g) + 4)}, {V(s + 4)}, {o}"]
        mf = list(pend)
        late = []
        while issued <= min(17, g + 2):
            (late if k == 1 else mf).append(s2(issued)); issued += 1
        vl = vload(g + 2) if g + 2 <= 17 else []
        if g == 10:
            vl = vload(11) + vload(12)
        extra = vl + (fin(1) if g == 1 else []) + (epi(0) if g == 11 else [])
        valu = pre + ex + mix(cv + post, extra)
        acc = 32
        for n, x in enumerate(valu):
            if acc >= 28 and (mf or (late and n >= len(pre))):
                main.append((mf or late).pop(0)); acc = 0
            main.append(x); acc += cost(I(x))
        assert not mf and not late
        pend = pv
    main += pend
    ep = [x for x in epi(1) if x is not None]
    if L == 0:
        d2_, r2_ = w2_round(2, x0)
        d3_, r3_ = w2_round(3, x0)
        d1_, r1_ = w2_round(1, x0)
        a = spread(main, d2_, 0.02, 0.25)
        a = spread(a, r2_ + [[need_ins("ds_any")]] + d1_ + d3_, 0.35, 0.62)
        a = spread(a, r1_ + [[need_ins("ds_any")]] + wo_items() + touch(sW1, 1792 * 1024, "a232", x1), 0.72, 0.92)
        late_rd = r3_
    else:
        a = spread(main, wo_items() + w1_items("CD1"), 0.02, 0.6)
        late_rd = []
    P.add(I(a))
    P.add(I(ep))
    P.add(tick(f"{L}.att"))
    P.add(publish(16 * L + 1, x1))
    P.add(tick(f"{L}.p2end"))
    return late_rd
```

```python
from k2_base import *
from k2_p1 import *

B1V, CC, CD_, AS4 = 48, 52, 56, 60


def tile_out(x, pk, tmp, xo, so, val):
    for i in range(8):
        P(f"v_cvt_pk_bf16_f32 v{pk + i}, v{x + 2 * i}, v{x + 2 * i + 1}")
    P(f"buffer_store_dwordx4 {V(pk)}, {vL16}, {sWS}, {t1} offen sc1")
    P(f"buffer_store_dwordx4 {V(pk + 4)}, {vL16}, {sWS}, {t1} offen offset:1024 sc1")
    a, b = V(tmp, 2), V(tmp + 2, 2)
    P(f"v_pk_add_f32 {a}, {V(x, 2)}, {V(x + 2, 2)}")
    P(f"v_pk_mul_f32 {b}, {V(x, 2)}, {V(x, 2)}")
    for i in range(1, 8):
        if i >= 2:
            P(f"v_pk_add_f32 {a}, {a}, {V(x + 2 * i, 2)}")
        P(f"v_pk_fma_f32 {b}, {V(x + 2 * i, 2)}, {V(x + 2 * i, 2)}, {b}")
    P(f"v_add_f32 v{tmp}, v{tmp}, v{tmp + 1}")
    P(f"v_add_f32 v{tmp + 2}, v{tmp + 2}, v{tmp + 3}")
    P(f"v_permlane32_swap_b32 v{tmp}, v{tmp + 2}")
    P(f"v_add_f32 v{tmp}, v{tmp}, v{tmp + 2}")
    P(f"buffer_store_dword v{tmp}, {x2}, {sWS}, {t2} offen sc1")


def tile_addr(xo, so):
    return I([f"s_lshl_b32 {t2}, {sTP}, 4", f"s_add_u32 {t2}, {t2}, {sCT}", f"s_lshl_b32 {t1}, {t2}, 11", f"s_add_u32 {t1}, {t1}, {xo}",
              f"s_lshl_b32 {t2}, {t2}, 8", f"s_add_u32 {t2}, {t2}, {so}", f"v_lshlrev_b32 {x2}, 2, {vL}"])


def phase3(L, late_rd):
    a0, a1, OF, WO = 16, 32, 64, 128
    P.add(barrier("wo"))
    if L == 0:
        d4, r4 = w2_round(4, x0)
        P.add(I(late_rd))
        P.add(I(d4[:8]))
    else:
        P.add(I(w1_items("CD2")))
        r4 = []
    P(f"s_and_b32 {t0}, {sW}, 1")
    P(f"s_lshl_b32 {t0}, {t0}, 14")
    P(f"v_add_u32 {x1}, {t0}, {vTP}")
    for ks in range(16):
        for ct in range(2):
            P.add(tr("v", WO + (ks * 2 + ct) * 4, x1, (ks >> 3) * 32768 + 2048 * (ks & 7) + 512 * ct))
    if L == 0:
        for d in range(8):
            P(f"v_accvgpr_read_b32 {x2}, a{224 + d}")
            P(f"v_lshlrev_b32 v{a0 + 2 * d}, 16, {x2}")
            P(f"v_and_b32 v{a0 + 2 * d + 1}, 0xffff0000, {x2}")
        P(f"v_and_b32 {x1}, 0x13, {vL}")
        P(f"v_bfe_u32 {x2}, {vL}, 2, 1")
        P(f"v_lshl_add_u32 {x1}, {x2}, 3, {x1}")
        P(f"v_bfe_u32 {x2}, {vL}, 3, 1")
        P(f"v_lshl_add_u32 {x1}, {x2}, 2, {x1}")
        P(f"v_lshlrev_b32 {x1}, 1, {x1}")
        P(f"s_lshl_b32 {t1}, {sM}, 8")
        P(f"s_cmp_ge_u32 {sW}, 2")
        P(f"s_cselect_b32 {t1}, {OOB}, {t1}")
        for e in range(4):
            P(f"buffer_load_ushort v{B1V + e}, {x1}, {sB1}, {t1} offen offset:{64 * e}")
        P.need("ds_any")
        P.add(I(d4[8:]))
    else:
        for i in range(16):
            P(f"v_accvgpr_read_b32 v{a0 + i}, a{224 + i}")
    P(f"s_lshl_b32 {t3}, {sTP}, 15")
    P(f"s_add_u32 {t3}, {t3}, {t0}")
    P(f"s_add_u32 {t3}, {t3}, {LB(L) + O_O}")
    P(f"s_xor_b32 {t0}, {sW}, 1")
    P(f"s_lshl_b32 {t0}, {t0}, 12")
    P(f"s_add_u32 {t0}, {t0}, {SCR3}")
    P(f"v_add_u32 {x0 if L else 'v52'}, {t0}, {vL16}")
    vw = x0 if L else "v52"
    P.add(tile_addr(LB(L) + X1_O, LB(L) + ST1_O))
    P.add(barrier())
    P.add(tick(f"{L}.B3b"))
    P.add(poll(vPO, x1, 16 * L + 1))
    P.add(tick(f"{L}.pollo"))
    for ks in range(16):
        if ks % 4 == 0 and ks:
            P(f"s_add_u32 {t3}, {t3}, 4096")
        P(f"buffer_load_dwordx4 {V(OF + 4 * ks)}, {vL16}, {sWS}, {t3} offen offset:{(ks % 4) * 1024} sc1")
    def mf(ks, ct):
        a = V(a0 if ct == 0 else a1, 16)
        return f"{MF} {a}, {V(WO + (ks * 2 + ct) * 4)}, {V(OF + 4 * ks)}, {a if (ks or ct == 0) else 0}"
    NT = 4
    g = [[mf(ks, 1), mf(ks, 0)] for ks in range(16 - NT)] + [[mf(ks, 1)] for ks in range(16 - NT, 16)]
    fill = w1_items("AB") + (w1_items("CD1") if L == 0 else [])
    P.add(I(spread(g, fill, 0.0, 1.0)))
    for n, ks in enumerate(range(16 - NT, 16)):
        P(mf(ks, 0))
        if n >= 1:
            for j in ([n - 1] if n < NT - 1 else range(n - 1, 4)):
                P(f"ds_write_b128 {vw}, {V(a1 + 4 * j)} offset:{1024 * j}")
    P(f"v_xor_b32 {vw}, 0x1000, {vw}")
    P.add(tick(f"{L}.p3mm"))
    P.add(barrier())
    for j in range(4):
        P(f"ds_read_b128 {V(OF + 4 * j)}, {vw} offset:{1024 * j}")
    for i in range(8):
        P(f"v_pk_add_f32 {V(a0 + 2 * i, 2)}, {V(a0 + 2 * i, 2)}, {V(OF + 2 * i, 2)}")
    tile_out(a0, OF + 16, OF + 24, None, None, None)
    for d in range(8):
        P(f"v_accvgpr_read_b32 {x1}, a{248 + d}")
        P(f"v_lshlrev_b32 v{OF}, 16, {x1}")
        P(f"v_and_b32 v{OF + 1}, 0xffff0000, {x1}")
        P(f"v_pk_add_f32 {V(a0 + 2 * d, 2)}, {V(a0 + 2 * d, 2)}, {V(OF, 2)}")
        P(f"v_accvgpr_write_b32 a{224 + 2 * d}, v{a0 + 2 * d}")
        P(f"v_accvgpr_write_b32 a{225 + 2 * d}, v{a0 + 2 * d + 1}")
    P.add(publish(16 * L + 3, x1))
    P.add(tick(f"{L}.p3end"))
    return r4


def gelu(a, c0, c1, ir, tmp, so, tag, pk=False):
    res = []
    for g in range(4):
        if pk:
            xs = [V(a + 4 * g + 2 * e, 2) for e in range(2)]
            ts = [V(tmp + 2 * e, 2) for e in range(2)]
            bc = lambda r: f"v[{r[1:]}:{int(r[1:]) + 1}]"
            res += [f"v_pk_mul_f32 {t}, {x}, {x}" for x, t in zip(xs, ts)]
            res += [f"v_pk_fma_f32 {t}, {t}, {bc(c1)}, {bc(c0)} op_sel_hi:[1,0,0]" for t in ts]
            res += [f"v_pk_mul_f32 {t}, {t}, {x}" for x, t in zip(xs, ts)]
            res += [f"v_exp_f32 v{tmp + e}, v{tmp + e}" for e in range(4)]
            res += [f"v_pk_fma_f32 {t}, {t}, {bc(ir)}, {bc(ir)} op_sel_hi:[1,0,0]" for t in ts]
            res += [f"v_rcp_f32 v{tmp + e}, v{tmp + e}" for e in range(4)]
            res += [f"v_pk_mul_f32 {x}, {x}, {t}" for x, t in zip(xs, ts)]
        else:
            blk = []
            for e in range(4):
                x, t = f"v{a + 4 * g + e}", f"v{tmp + e}"
                blk.append([f"v_mul_f32 {t}, {x}, {x}", f"v_fma_f32 {t}, {t}, {c1}, {c0}", f"v_mul_f32 {t}, {t}, {x}",
                            f"v_exp_f32 {t}, {t}", f"v_fma_f32 {t}, {t}, {ir}, {ir}", f"v_rcp_f32 {t}, {t}", f"v_mul_f32 {x}, {x}, {t}"])
            for s in range(7):
                for e in range(4):
                    res.append(blk[e][s])
        for i in (2 * g, 2 * g + 1):
            res.append(f"v_cvt_pk_bf16_f32 v{a + i}, v{a + 2 * i}, v{a + 2 * i + 1}")
        if g & 1:
            s, off = so
            res.append(Ins(f"buffer_store_dwordx4 {V(a + 2 * (g - 1))}, {vL16}, {sWS}, {s} offen offset:{off + 1024 * (g >> 1)} sc1", xdst=[tag]))
    return [I(x) for x in res]


def phase45(L, r4):
    T = [16, 32, 48, 16]
    C0R, C1R, IRR, RR, GT = "v116", "v118", "v120", "v122", 124
    FB = 16 * L
    vtb = x2
    if L == 0:
        P.add(I(r4))
        P.add(asel(AS4))
        P(f"s_lshl_b32 {t0}, {sW}, 14")
        P(f"v_add_u32 {x1}, {t0}, {vTP}")
        P(f"s_lshl_b32 {t0}, {sW}, 13")
        P(f"v_add_u32 {x0}, {t0}, {vTP1}")
        P.add(table_addr(x2))
        P.need("w1AB")
        for j in range(16):
            P.add(tr("v", XF + 4 * j, x1, 2048 * (j >> 1) + 512 * (j & 1)))
        P.need("w1CD1")
        for j in range(8):
            P.add(tr("v", XF + 64 + 4 * j, x0, 2048 * (j >> 1) + 512 * (j & 1)))
        for j in range(16):
            c = V(16 + 4 * (j & 1))
            P(f"{MF16} {c}, {V(AS4)}, {V(XF + 4 * j)}, {c if j >= 2 else 0}")
        for j in range(8):
            c = V(CC + 4 * (j & 1))
            P(f"{MF16} {c}, {V(AS4)}, {V(XF + 64 + 4 * j)}, {c if j >= 2 else 0}")
        P.add(I(table_write(16, 3, x2, f"v{B1V}") + table_write(20, 4, x2, f"v{B1V + 1}")))
        P.add(barrier())
        vtw = "v123"
        P(f"v_mov_b32 {vtw}, {x2}")
    else:
        P.add(barrier("w1AB", "w1CD1", "w1CD2"))
    P(f"v_add_u32 {vtb}, {TAB0 + 3072}, {vL16}")
    D = 3
    def rdA(t):
        if t < 32:
            return trp(RING + 8 * (t % 4), 2048 * t) + trp(RING + 8 * (t % 4) + 4, 2048 * t + 512)
        if t == 32:
            return I([f"ds_read_b128 {V(RING + 8 * (t % 4) + 4 * e)}, {vtb} offset:{1024 * e}" for e in range(2)])
        return []
    for t in range(D):
        P.add(rdA(t))
    P(f"s_lshl_b32 {t3}, {sT}, 17")
    P(f"s_lshl_b32 {t4}, {sM}, 13")
    P(f"s_add_u32 {t3}, {t3}, {t4}")
    P(f"s_add_u32 {t3}, {t3}, {LB(L) + H_O}")
    P(f"s_add_u32 {t4}, {t3}, 4096")
    P.add(tick(f"{L}.B4b"))
    P.add(poll(vPX, x1, FB + 3))
    P.add(tick(f"{L}.pollx1"))
    P.add(x_loads(LB(L) + X1_O, LB(L) + ST1_O, STV))
    if L == 0:
        P.add(I(w1_items("CD2")))
    gA = []
    for k in range(33):
        xb = V(XF + 4 * k) if k < 32 else V(EX)
        gA.append(rdA(k + D) + I([f"{MF} {V(T[e], 16)}, {V(RING + 8 * (k % 4) + 4 * e)}, {xb}, {V(T[e], 16) if k else 0}" for e in range(2)]))
    s = [f"v{STV + i}" for i in range(4)]
    C0 = -2.0 * LOG2E * 0.7978845608028654
    fill = stats_sum(STV) + stats_finish(s[0], s[1], s[2], s[3], EX, True, RR, IRR)
    fill += [I(x) for x in [f"v_mul_f32 {C0R}, {fc(C0)}, {RR}", f"v_mul_f32 {C1R}, {RR}, {RR}", f"v_mul_f32 {C1R}, {C1R}, {C0R}",
                            f"v_mul_f32 {C1R}, {fc(0.044715)}, {C1R}"]]
    P.add(weave(gA, [(17, x) for x in fill]))
    P.add(tick(f"{L}.pA"))
    D1 = 6
    def rd1(e, t):
        if t < 32:
            return trp(RING + 4 * (t % 8), R2 + 2048 * t + 512 * e)
        if t == 32:
            return I(f"ds_read_b128 {V(RING + 4 * (t % 8))}, {vtb} offset:{2048 + 1024 * e}")
        if e == 0 and t - 34 >= 0:
            pass
        return []
    def g1(e, off):
        def rd(t):
            n = RING + 4 * ((t + off) % 8)
            if t < 32:
                return trp(n, R2 + 2048 * t + 512 * e)
            if t == 32:
                return I(f"ds_read_b128 {V(n)}, {vtb} offset:{2048 + 1024 * e}")
            if e == 0:
                return trp(n, R2 + 2048 * (t - 33) + 512)
            return []
        a = V(T[2 + e], 16)
        out = []
        for k in range(33):
            xb = V(XF + 4 * k) if k < 32 else V(EX)
            it = rd(k + D1)
            if k % 2 == 0 and k + 1 < 33:
                it = it + [need_ins(("v", RING + 4 * ((k + 1 + off) % 8) + 3))]
            out.append(it + I(f"{MF} {a}, {V(RING + 4 * ((k + off) % 8))}, {xb}, {a if k else 0}"))
        return out, [rd(t) for t in range(D1)]
    gB, preB = g1(0, 0)
    gC, _ = g1(1, 33)
    PUBD = opt("PUBD", 14)
    GHI = opt("GHI", 90) / 100
    def G(i, pk=False):
        return gelu(T[i], C0R, C1R, IRR, GT, (t3 if i < 2 else t4, 2048 * (i & 1)), f"h{i}", pk)
    def at(groups, n, item):
        groups[n] = groups[n] + I(item)
    if L == 0:
        cs = [I([need_ins("w1CD2")] + tr("v", STV + 4 * (j & 3), x0, 32768 + 2048 * (j >> 1) + 512 * (j & 1))) for j in range(4)]
        for j in range(8):
            c = V(CC + 4 * (j & 1))
            cs.append(I(f"{MF16} {c}, {V(AS4)}, {V(STV + 4 * (j & 3))}, {c}"))
            if j + 4 < 8:
                cs.append(tr("v", STV + 4 * (j & 3), x0, 32768 + 2048 * ((j + 4) >> 1) + 512 * (j & 1)))
        cs += [[]] + table_write(CC, 5, vtw, f"v{B1V + 2}") + table_write(CD_, 6, vtw, f"v{B1V + 3}")
        P.add(I(spread(G(0), cs + preB, 0.1, 0.95)))
        P.add(barrier())
        kv = wq_items(0, tag="wkv") + wq_items(1, tag="wkv")
        kv[0] = wq_setup() + kv[0]
        for j in range(8):
            at(gB, 1 + j, kv[j]); at(gC, 1 + j, kv[8 + j])
    else:
        P.add(I(spread(G(0, True), preB, 0.5, 0.95)))
    P.add(tick(f"{L}.G0"))
    at(gB, PUBD, publish(FB + 4, x1, "h0"))
    P.add(I(spread(gB, G(1), 0.03, GHI)))
    P.add(tick(f"{L}.pB"))
    at(gC, PUBD, publish(FB + 5, x1, "h1"))
    at(gC, 24, poll_issue(vPH, x0))
    hb = I([f"s_lshr_b32 {u0}, {sW}, 1", f"s_mul_i32 {u0}, {u0}, {56 * 1024}", f"s_and_b32 {u1}, {sW}, 1", f"s_lshl_b32 {u1}, {u1}, 10",
            f"s_add_u32 {u0}, {u0}, {u1}", f"s_add_u32 {u0}, {u0}, {LB(L) + H_O}", f"s_lshl_b32 {t5}, {sTP}, 17", f"s_xor_b32 {d3}, {t5}, 0x20000",
            f"s_add_u32 {t5}, {t5}, {u0}", f"s_add_u32 {d3}, {d3}, {u0}"])
    at(gC, 30, hb)
    P.add(I(spread(gC, G(2), 0.03, GHI)))
    P.add(tick(f"{L}.pC"))
    ACC = [A(224, 16), V(32, 16), V(48, 16), V(240, 16)]
    def hf(s, i, tt): return XF + 4 * (14 * (s & 1) + 2 * i + tt)
    def hloads(s):
        out = []
        for i in range(7):
            for tt in range(2):
                out.append(I([f"s_add_u32 {u0}, {t5 if tt == 0 else d3}, {(8 * i + 2 * s) * 1024}",
                              f"buffer_load_dwordx4 {V(hf(s, i, tt))}, {vL16}, {sWS}, {u0} offen sc1"]))
        return out
    def mf(s, i, n):
        tt, ct = n >> 1, n & 1
        a = ACC[n]
        return f"{MF} {a}, {A(((7 * s + i) * 2 + ct) * 4)}, {V(hf(s, i, tt))}, {a if (s or i or n == 0) else 0}"
    def gS(s): return [I(mf(s, i, n)) for i in range(7) for n in range(4)]
    CHK = opt("CHK", 11)
    P.add(poll_check(vPH, x0, FB + 4))
    P.add(tick(f"{L}.h0"))
    g3 = G(3)
    P.add(I(spread(g3[:40], hloads(0), 0.0, 0.6)))
    g = gS(0)
    at(g, 2, publish(FB + 6, x1, "h2"))
    at(g, 4, poll_issue(vPH, x0))
    sp = spread(g, g3[40:], 0.0, 0.6)
    P.add(I(sp[:len(sp) - 10]))
    P.add(poll_check(vPH, x0, FB + 5))
    P.add(weave(sp[len(sp) - 10:], hloads(1)))
    P.add(tick(f"{L}.S0"))
    P.add(barrier())
    for s in (1, 2):
        g = gS(s)
        if s == 1:
            at(g, opt("PUB3", 4), publish(FB + 7, x1, "h3"))
        at(g, max(0, CHK - 6), poll_issue(vPH, x0))
        at(g, CHK, poll_check(vPH, x0, FB + 5 + s))
        P.add(weave(g, [(CHK, x) for x in hloads(s + 1)]))
        P.add(tick(f"{L}.S{s}"))
    NT = opt("NT5", 2)
    wa = ["v16", "v17", "v18", "v19"]
    pre = []
    for i in range(4):
        pre.append(I([f"s_xor_b32 {u0}, {sW}, {i}", f"s_mul_i32 {u0}, {u0}, 12288", f"s_add_u32 {u0}, {u0}, {SL + 4096 * max(0, i - 1)}",
                      f"v_add_u32 {wa[i]}, {u0}, {vL16}"]))
    if L == 0:
        pre.append(tile_addr(LB(1) + XIN_O, LB(1) + ST2_O))
    else:
        pre.append(I([f"v_and_b32 {x2}, 31, {vL}", f"v_lshrrev_b32 {x1}, 5, {vL}", f"v_lshlrev_b32 {x2}, 10, {x2}", f"v_lshl_add_u32 {x2}, {x1}, 4, {x2}",
                      f"s_lshl_b32 {t1}, {sTP}, 15", f"s_lshl_b32 {t2}, {sCT}, 6", f"s_add_u32 {t1}, {t1}, {t2}"]))
    P.add(I(pre))
    g = [I(mf(3, i, n)) for i in range(7 - NT) for n in range(4)]
    base = [0, 32, 48, 240]
    wr = []
    for n in (3, 2, 1, 0):
        for e, i in enumerate(range(7 - NT, 7)):
            g.append(I(mf(3, i, n)))
            if e >= 1 or NT == 1:
                k = (len(wr) + (NT - e) - 1) // (NT - e)
                g.append(I(wr[:k])); wr = wr[k:]
        if n:
            wr = [f"ds_write_b128 {wa[n]}, {V(base[n] + 4 * j)} offset:{1024 * j}" for j in range(4)]
    P.add(I(g))
    x, tmp = 64, 80
    for i in range(16):
        P(f"v_accvgpr_read_b32 v{x + i}, a{224 + i}")
    P.add(tick(f"{L}.S3"))
    P.add(barrier(*(["wkv"] if L == 0 else [])))
    for j in range(12):
        P(f"ds_read_b128 {V(tmp + 4 * j)}, {wa[0]} offset:{1024 * j}")
    for p in range(3):
        for i in range(8):
            P(f"v_pk_add_f32 {V(x + 2 * i, 2)}, {V(x + 2 * i, 2)}, {V(tmp + 16 * p + 2 * i, 2)}")
    if L == 0:
        tile_out(x, 16, 24, None, None, None)
        for i in range(16):
            P(f"v_accvgpr_write_b32 a{224 + i}, v{x + i}")
        P.add(publish(8, x1))
        P.add(tick("0.p5end"))
    else:
        for i in range(8):
            P(f"v_cvt_pk_bf16_f32 v{16 + i}, v{x + 2 * i}, v{x + 2 * i + 1}")
        P(f"buffer_store_dwordx4 {V(16)}, {x2}, {sOUT}, {t1} offen")
        P(f"buffer_store_dwordx4 {V(20)}, {x2}, {sOUT}, {t1} offen offset:32")
        if PROF:
            P.need("stores")
            P.add(tick("1.final"))
            P.add(prof_dump())
```

```python
from k2_base import *
from k2_p1 import *
from k2_p2 import *
from k2_p345 import *

def main():
    prologue()
    for L in range(2):
        if opt("CT", 0): P.put(f"L_p1_{L}")
        phase1(L)
        if stop(L, 1): return
        lr = phase2(L)
        if stop(L, 2): return
        if opt("CT", 0): P.put(f"L_p3_{L}")
        r4 = phase3(L, lr)
        if stop(L, 3): return
        phase45(L, r4)
        if stop(L, 5): return
main()
finish()
```

```python
import re

TRANS = ("v_exp_f32", "v_log_f32", "v_rcp_f32", "v_rsq_f32", "v_sqrt_f32", "v_sin_f32", "v_cos_f32",
         "v_rcp_iflag_f32", "v_exp_f16", "v_rcp_f16", "v_rsq_f16")
REG_RE = re.compile(r"(?<![\w.])([vas])(\d+)\b|(?<![\w.])([vas])\[(\d+):(\d+)\]|\b(vcc_lo|vcc_hi|vcc|exec_lo|exec_hi|exec|m0)\b")


def regs_of(tok):
    out = []
    for m in REG_RE.finditer(tok):
        if m.group(1):
            out.append((m.group(1), int(m.group(2))))
        elif m.group(3):
            out += [(m.group(3), i) for i in range(int(m.group(4)), int(m.group(5)) + 1)]
        else:
            n = m.group(6)
            if n.startswith("vcc"):
                out.append(("x", "vcc"))
            elif n.startswith("exec"):
                out.append(("x", "exec"))
            else:
                out.append(("x", "m0"))
    return out


def split_ops(s):
    ops, depth, cur = [], 0, ""
    for ch in s:
        if ch == "[":
            depth += 1
        if ch == "]":
            depth -= 1
        if ch == "," and depth == 0:
            ops.append(cur.strip())
            cur = ""
        else:
            cur += ch
    if cur.strip():
        ops.append(cur.strip())
    return ops


class Ins:
    __slots__ = ("text", "op", "dst", "src", "kind", "passes", "mA", "mB", "mC", "mD", "xdst", "xsrc", "target",
                 "states", "wide", "sdata", "comment", "waitspec", "dpp", "opsel")

    def __init__(self, text, xdst=(), xsrc=(), comment=None):
        self.text = text.strip()
        self.xdst = list(xdst)
        self.xsrc = list(xsrc)
        self.comment = comment
        self.passes = 0
        self.mA = self.mB = self.mC = self.mD = ()
        self.target = None
        self.states = 1
        self.wide = False
        self.sdata = ()
        self.waitspec = None
        self.dpp = False
        self.opsel = False
        t = self.text
        if t.endswith(":"):
            self.op, self.kind, self.dst, self.src, self.states = "label", "label", [], [], 0
            self.target = t[:-1]
            return
        if t.startswith(";") or t.startswith("."):
            self.op, self.kind, self.dst, self.src, self.states = "dir", "dir", [], [], 0
            return
        parts = t.split(None, 1)
        op = parts[0]
        rest = parts[1] if len(parts) > 1 else ""
        self.op = op
        ops = split_ops(rest)
        R = [regs_of(o) for o in ops]
        allr = [r for x in R for r in x]
        base = op
        for suf in ("_e32", "_e64", "_dpp", "_sdwa"):
            if base.endswith(suf):
                base = base[: -len(suf)]
        if op.startswith("v_mfma"):
            self.kind = "mfma"
            self.passes = 8 if "32x32" in op else 4
            self.mD, self.mA, self.mB, self.mC = R[0], R[1], R[2], R[3]
            self.dst, self.src = R[0], R[1] + R[2] + R[3]
        elif op.startswith("buffer_load") or op.startswith("global_load"):
            if re.search(r"\blds\b", rest) or "_lds_" in op:
                self.kind, self.dst, self.src = "dma", [], allr + [("x", "m0")]
            else:
                self.kind, self.dst, self.src = "vload", R[0], [r for x in R[1:] for r in x]
        elif op.startswith("buffer_store") or op.startswith("global_store"):
            self.kind, self.dst, self.src = "vstore", [], allr
            self.sdata = R[0] if op.startswith("buffer") else R[1]
            self.wide = op.endswith("x3") or op.endswith("x4")
        elif op.startswith("buffer_atomic") or op.startswith("global_atomic"):
            self.kind, self.dst, self.src = "vstore", [], allr
        elif op.startswith("ds_read") or op.startswith("ds_bpermute") or op.startswith("ds_permute") or op.startswith("ds_swizzle"):
            self.kind, self.dst, self.src = "dsread", R[0], [r for x in R[1:] for r in x]
        elif op.startswith("ds_"):
            self.kind, self.dst, self.src = "dswrite", [], allr
            self.sdata = [r for x in R[1:] for r in x]
            self.wide = op.endswith("b128") or op.endswith("b96")
        elif op.startswith("s_load") or op.startswith("s_buffer_load") or op in ("s_memtime", "s_memrealtime"):
            self.kind, self.dst, self.src = "smem", R[0], [r for x in R[1:] for r in x]
        elif op.startswith("s_cbranch") or op == "s_branch":
            self.kind, self.dst, self.src = "branch", [], []
            self.target = ops[0]
            if "vcc" in op:
                self.src = [("x", "vcc")]
            if "exec" in op:
                self.src = [("x", "exec")]
        elif op == "s_endpgm":
            self.kind, self.dst, self.src = "end", [], []
        elif op == "s_waitcnt":
            self.kind, self.dst, self.src = "wait", [], []
            vm = re.search(r"vmcnt\((\d+)\)", rest)
            lg = re.search(r"lgkmcnt\((\d+)\)", rest)
            self.waitspec = (int(vm.group(1)) if vm else None, int(lg.group(1)) if lg else None)
        elif op == "s_nop":
            self.kind, self.dst, self.src = "nop", [], []
            self.states = int(ops[0], 0) + 1
        elif op in ("s_barrier", "s_setprio", "s_sleep", "s_sethalt"):
            self.kind, self.dst, self.src = "salu", [], []
        elif op.startswith("s_cmp") or op.startswith("s_bitcmp"):
            self.kind, self.dst, self.src = "salu", [], allr
        elif op.startswith("s_"):
            self.kind, self.dst, self.src = "salu", R[0], [r for x in R[1:] for r in x]
            if "saveexec" in op:
                self.dst = self.dst + [("x", "exec")]
                self.src = self.src + [("x", "exec")]
        elif op.startswith("v_"):
            self.kind = "trans" if base in TRANS else "valu"
            if base.startswith("v_dot"):
                self.kind = "dot"
            if base in ("v_permlane32_swap_b32", "v_permlane16_swap_b32", "v_swap_b32"):
                self.dst, self.src = R[0] + R[1], R[0] + R[1]
            elif base.startswith("v_cmpx"):
                raise ValueError("avoid v_cmpx")
            elif re.match(r"v_(add|sub|subrev|addc|subb|subbrev)_co_", base) or base == "v_mad_u64_u32":
                self.dst, self.src = R[0] + R[1], [r for x in R[2:] for r in x]
            elif base == "v_nop":
                self.dst, self.src = [], []
            else:
                self.dst, self.src = R[0], [r for x in R[1:] for r in x]
                if base.startswith(("v_fmac", "v_mac", "v_dot2c", "v_dot4c", "v_pk_fmac", "v_writelane")):
                    self.src = self.src + R[0]
                if base == "v_cndmask_b32" and len(ops) == 3:
                    self.src = self.src + [("x", "vcc")]
            if re.search(r"\b(quad_perm|row_shl|row_shr|row_ror|row_mirror|row_half_mirror|row_bcast|wave_shl|wave_shr|row_newbcast)", rest):
                self.dpp = True
                self.src = self.src + self.dst
            if "sdwa" in op or "dst_sel" in rest:
                self.opsel = True
                self.src = self.src + self.dst
            if re.search(r"op_sel:\[[01],[01],[01],1\]|op_sel:\[[01],[01],1\]", rest) and not base.startswith("v_pk"):
                self.opsel = True
                self.src = self.src + self.dst
        else:
            raise ValueError("unknown instruction: " + t)

    def is_valu(self):
        return self.kind in ("valu", "trans", "dot")


class Prog:
    def __init__(self):
        self.ins = []
        self.nlabel = 0

    def __call__(self, text, xdst=(), xsrc=(), comment=None):
        i = Ins(text, xdst, xsrc, comment)
        self.ins.append(i)
        return i

    def add(self, lst):
        for i in lst:
            if isinstance(i, str):
                self(i)
            else:
                self.ins.append(i)

    def label(self, name=None):
        if name is None:
            self.nlabel += 1
            name = f"L{self.nlabel}"
        return name

    def put(self, name):
        self(name + ":")

    def need(self, *res):
        i = Ins(";need", xsrc=res)
        i.kind = "need"
        self.ins.append(i)

    def comment(self, s):
        self("; " + s)


def need_ins(*res):
    i = Ins(";need", xsrc=res)
    i.kind = "need"
    return i


def _merge(a, b):
    if a is None:
        return {k: dict(v) for k, v in b.items()}
    out = {}
    for c in ("vm", "lg", "sm"):
        d = dict(a[c])
        for k, v in b[c].items():
            d[k] = min(d[k], v) if k in d else v
        out[c] = d
    return out


def _step(st, i):
    vm = lg = None
    touched = list(i.src) + list(i.xsrc)
    k = i.kind
    for r in touched:
        if r in st["vm"]:
            vm = st["vm"][r] if vm is None else min(vm, st["vm"][r])
        if r in st["lg"]:
            lg = st["lg"][r] if lg is None else min(lg, st["lg"][r])
        if r in st["sm"]:
            lg = 0
    for r in i.dst:
        if r in st["vm"] and k != "vload":
            vm = st["vm"][r] if vm is None else min(vm, st["vm"][r])
        if r in st["lg"] and k != "dsread":
            lg = st["lg"][r] if lg is None else min(lg, st["lg"][r])
        if r in st["sm"]:
            lg = 0
    if lg is not None and st["sm"]:
        lg = 0
    if vm is not None:
        vm = min(vm, 63)
    if lg is not None:
        lg = min(lg, 15)
    _apply_wait(st, vm, lg)
    if k == "wait":
        _apply_wait(st, *i.waitspec)
    if k in ("vload", "vstore", "dma"):
        d = st["vm"]
        for r in list(d):
            d[r] += 1
            if d[r] > 63:
                del d[r]
        for r in list(i.dst) + list(i.xdst):
            d[r] = 0
        d["vm_any"] = 0
        if k == "vstore":
            d["stores"] = 0
    elif k in ("dsread", "dswrite"):
        d = st["lg"]
        for r in list(d):
            d[r] += 1
        for r in list(i.dst) + list(i.xdst):
            d[r] = 0
        d["ds_any"] = 0
    elif k == "smem":
        for r in i.dst:
            st["sm"][r] = 0
    return vm, lg


def _apply_wait(st, vm, lg):
    if vm is not None:
        d = st["vm"]
        for r in list(d):
            if d[r] >= vm:
                del d[r]
    if lg is not None:
        if st["sm"] and lg != 0:
            return
        d = st["lg"]
        for r in list(d):
            if d[r] >= lg:
                del d[r]
        if lg == 0:
            st["sm"].clear()


def build_cfg(ins):
    labels = {i.target: n for n, i in enumerate(ins) if i.kind == "label"}
    succ = [[] for _ in ins]
    for n, i in enumerate(ins):
        if i.kind == "end":
            continue
        if i.kind == "branch":
            succ[n].append(labels[i.target])
            if i.op == "s_branch":
                continue
        if n + 1 < len(ins):
            succ[n].append(n + 1)
    return succ


def insert_waits(ins):
    succ = build_cfg(ins)
    n = len(ins)
    leaders = {0}
    for k, i in enumerate(ins):
        if i.kind == "label":
            leaders.add(k)
        if i.kind in ("branch", "end") and k + 1 < n:
            leaders.add(k + 1)
    leaders = sorted(leaders)
    bend = {b: (leaders[j + 1] if j + 1 < len(leaders) else n) for j, b in enumerate(leaders)}
    instate = {b: None for b in leaders}
    instate[0] = {"vm": {}, "lg": {}, "sm": {}}
    work = [0]
    waits = {}
    while work:
        b = work.pop(0)
        st = {c: dict(v) for c, v in instate[b].items()}
        for k in range(b, bend[b]):
            waits[k] = _step(st, ins[k])
        for s in succ[bend[b] - 1]:
            new = _merge(instate[s], st)
            if new != instate[s]:
                instate[s] = new
                if s not in work:
                    work.append(s)
    out = []
    for k, i in enumerate(ins):
        vm, lg = waits.get(k, (None, None))
        if vm is not None or lg is not None:
            t = "s_waitcnt"
            if vm is not None:
                t += f" vmcnt({vm})"
            if lg is not None:
                t += f" lgkmcnt({lg})"
            out.append(Ins(t, comment="auto"))
        if i.kind != "need":
            out.append(i)
    return out


def _req(p, c):
    need = 0
    pk, ck = p.kind, c.kind
    if pk in ("label", "dir", "nop", "wait", "branch", "need"):
        return 0
    pd = set(p.dst)
    cs = set(c.src)
    cd = set(c.dst)
    cvalu = ck in ("valu", "trans", "dot")
    if pk == "mfma":
        P = p.passes
        if ck == "mfma":
            if pd & set(c.mC):
                if list(c.mC) == list(p.mD) and c.passes == P:
                    need = max(need, 0)
                else:
                    need = max(need, P + 2)
            if pd & (set(c.mA) | set(c.mB)):
                need = max(need, P + 4)
            if pd & cd and not (list(c.mD) == list(p.mD) and c.passes == P):
                need = max(need, P + 4)
        else:
            if pd & (cs | cd):
                need = max(need, P + 4)
            if cvalu and set(p.mC) & cd:
                need = max(need, P - 1)
        return need
    if pk in ("valu", "trans", "dot"):
        vd = {r for r in pd if r[0] in "va"}
        sd = pd - vd
        if pk == "dot":
            if vd & (cs | cd):
                if c.op == p.op and not (vd & set(c.src[:2])) :
                    pass
                else:
                    need = max(need, 3)
        if ck == "mfma" and vd & cs:
            need = max(need, 2)
        if pk == "trans" and vd & cs:
            need = max(need, 1)
        if p.opsel and cvalu and vd & (cs | cd):
            need = max(need, 1)
        if cvalu and vd & cs:
            if c.op.startswith("v_permlane") or c.dpp:
                need = max(need, 2)
            if c.op.startswith("v_readlane") or c.op.startswith("v_readfirstlane"):
                need = max(need, 1)
        if sd & cs:
            if ck in ("vload", "vstore", "dma"):
                need = max(need, 5)
            elif cvalu:
                need = max(need, 4 if c.op.startswith(("v_readlane", "v_writelane")) else 2)
            elif ck == "mfma":
                need = max(need, 4)
            elif ck == "salu":
                need = max(need, 1)
        return need
    if pk in ("vstore", "dswrite") and p.wide:
        if set(p.sdata) & cd:
            need = max(need, 2 if (cvalu or ck == "mfma") else 1)
    if pk == "salu" and ("x", "m0") in pd and ck == "dma":
        need = max(need, 1)
    return need


MAXD = 13


def insert_nops(ins):
    out = []
    labelpos = {}
    branch_to = {}
    orig_labels = {i.target: n for n, i in enumerate(ins) if i.kind == "label"}
    srcs = {}
    for n, i in enumerate(ins):
        if i.kind == "branch":
            srcs.setdefault(i.target, []).append(n)
    pad = [0] * len(ins)

    def scan(n, dist, c, seen):
        worst = 0
        k = n - 1
        while k >= 0 and dist < MAXD:
            p = ins[k]
            if k != n - 1 or True:
                pass
            if p.kind == "end" or (p.kind == "branch" and p.op == "s_branch"):
                if not (seen_entry[0] == k):
                    break
            r = _req(p, c)
            if r > dist:
                worst = max(worst, r - dist)
            if p.kind == "label":
                for sidx in srcs.get(p.target, []):
                    if (sidx, dist) not in seen:
                        seen.add((sidx, dist))
                        old = seen_entry[0]
                        seen_entry[0] = sidx
                        worst = max(worst, scan(sidx + 1, dist, c, seen))
                        seen_entry[0] = old
            dist += p.states + pad[k]
            k -= 1
        return worst

    seen_entry = [-1]
    for n, c in enumerate(ins):
        if c.kind in ("label", "dir", "nop", "wait", "need"):
            continue
        w = scan(n, 0, c, set())
        pad[n] = w
    for n, c in enumerate(ins):
        w = pad[n]
        while w > 0:
            k = min(w, 16)
            out.append(Ins(f"s_nop {k - 1}"))
            w -= k
        out.append(c)
    return out


MEMK = ("vload", "vstore", "dma", "dsread", "dswrite")
VALK = ("valu", "trans", "dot")


def _clumpable(i):
    if i.kind in MEMK or i.kind == "need":
        return True
    return i.kind == "salu" and i.op not in ("s_barrier", "s_setprio", "s_sleep", "s_sethalt")


def _conflict(cl, y):
    ys, yd = set(y.src), set(y.dst)
    for x in cl:
        xs = set(x.src) | {r for r in x.xsrc if isinstance(r, tuple)}
        if set(x.dst) & (ys | yd) or xs & yd:
            return True
    return False


def memsched(ins, lim=12):
    ins = list(ins)
    out, i, n = [], 0, len(ins)
    moved = 0
    while i < n:
        if not _clumpable(ins[i]):
            out.append(ins[i]); i += 1
            continue
        j = i
        while j < n and _clumpable(ins[j]):
            j += 1
        cl = ins[i:j]
        first = next((k for k, x in enumerate(cl) if x.kind in MEMK), None)
        pre = sum(1 for x in cl[:first] if x.kind == "salu") if first is not None else 0
        if first is None or pre >= 2 or not out or out[-1].kind not in VALK:
            out += cl; i = j
            continue
        k = len(out)
        while k > 0 and out[k - 1].kind in VALK and len(out) - k < lim and not _conflict(cl, out[k - 1]):
            k -= 1
        if k > 0 and (out[k - 1].kind == "mfma" or out[k - 1].kind in MEMK):
            out[k:k] = cl; i = j; moved += 1
            continue
        k = j
        while k < n and ins[k].kind in VALK and k - j < lim and not _conflict(cl, ins[k]):
            k += 1
        if k < n and ins[k].kind == "mfma" and not _conflict(cl, ins[k]):
            out += ins[j:k + 1] + cl
            i = k + 1; moved += 1
            continue
        if k < n and k > j and _clumpable(ins[k]):
            e = k
            while e < n and _clumpable(ins[e]):
                e += 1
            if any(x.kind in MEMK for x in ins[k:e]):
                ins[i:k] = ins[j:k] + cl
                moved += 1
                continue
        out += cl; i = j
    return out


def hoist_waits(ins, lim=14):
    out = []
    for w in ins:
        if w.kind == "wait" and getattr(w, "comment", None) == "auto" and w.waitspec[0] is None and out and out[-1].kind != "mfma":
            k, cnt = len(out), w.waitspec[1]
            while k > 0 and len(out) - k < lim and (out[k - 1].kind in VALK or out[k - 1].kind in MEMK or
                                                  (out[k - 1].kind == "salu" and _clumpable(out[k - 1]))):
                if out[k - 1].kind in ("dsread", "dswrite"):
                    cnt -= 1
                k -= 1
            if k > 0 and out[k - 1].kind == "mfma" and cnt >= MINW and out[k].kind != "salu":
                out.insert(k, Ins(f"s_waitcnt lgkmcnt({cnt})"))
                continue
        out.append(w)
    for w in out:
        if w.kind == "wait":
            w.comment = None
    return out


MINW = 2
SCHED = True


def emit(prog):
    ins = prog.ins
    if SCHED:
        ins = memsched(ins)
    ins = insert_waits(ins)
    if SCHED:
        ins = hoist_waits(ins)
    else:
        for w in ins:
            if w.kind == "wait":
                w.comment = None
    ins = insert_nops(ins)
    lines = []
    for i in ins:
        if i.kind == "label":
            lines.append(i.text)
        else:
            lines.append("  " + i.text + (f"   ; {i.comment}" if i.comment else ""))
    return "\n".join(lines), ins


def interleave(main, fill, per=1, start=0):
    out = []
    f = list(fill)
    for n, m in enumerate(main):
        out.append(m)
        if n >= start:
            for _ in range(per):
                if f:
                    out.append(f.pop(0))
    out += f
    return out
```

```python
import sys, struct, re
from asmgen import Prog, Ins, emit, need_ins

KN = "interleave_layers__sliding_block__mixer_channel_mlp__prompt_kernel"
OPT = dict(a.split("=") for a in sys.argv[2:])
STOP = OPT.get("STOP")
PROF = int(OPT.get("PROF", 0))
def opt(name, default): return int(OPT.get(name, default))

MB = 1 << 20
KV_O, O_O, X1_O, XIN_O, ST1_O, ST2_O, H_O = 0, 4 * MB, 6 * MB, 8 * MB, 10 * MB, 10 * MB + 256 * 1024, 11 * MB
LSTRIDE = 20 * MB
def LB(L): return MB + L * LSTRIDE
FPACK = 131072
MBOX = FPACK + 8192
ARR = FPACK + 65536
OOB = 0x40000000
R0, R1, R2, SL, PITCH = 0, 32768, 65536, 98304, 4112
SCR3, SPARE, TAB0, RBC = 131072, 147648, 156160, 163328

sC, sM, sW, sCNT = "s4", "s5", "s6", "s7"
sX, sWQ, sWO, sW1, sW2, sWS, sOUT, sB2, sB1, sDBG = [f"s[{8 + 4 * i}:{11 + 4 * i}]" for i in range(10)]
sT, sTP, sCT, sMODE, sFA, sFP = "s48", "s49", "s50", "s51", "s52", "s53"
t0, t1, t2, t3, t4, t5 = "s54", "s55", "s56", "s57", "s58", "s59"
d0, d1, d2, d3 = "s60", "s61", "s62", "s63"
u0, u1, u2, u3 = "s96", "s97", "s98", "s99"
def sMASK(r): return f"s[{64 + 2 * r}:{65 + 2 * r}]"
vL, vL16, vTR, vTR1, vTP, vTP1, vPX, vPO, vPH, vPROF, voQ, vo1, vo2 = [f"v{i}" for i in range(13)]
x0, x1, x2 = "v13", "v14", "v15"
XF = 128

def f2u(x): return struct.unpack("<I", struct.pack("<f", x))[0]
def fc(x): return hex(f2u(x))
def V(n, k=4): return f"v[{n}:{n + k - 1}]" if k > 1 else f"v{n}"
def A(n, k=4): return f"a[{n}:{n + k - 1}]" if k > 1 else f"a{n}"
def R(f, n, k=4): return f"{f}[{n}:{n + k - 1}]"

LOG2E = 1.4426950408889634
EPS = 1e-5
P = Prog()
MF = "v_mfma_f32_32x32x16_bf16"
MF16 = "v_mfma_f32_16x16x32_bf16"
OUTL = []


def I(x):
    if isinstance(x, str):
        return [Ins(x)]
    if isinstance(x, Ins):
        return [x]
    out = []
    for e in x:
        out += I(e)
    return out


def cost(ins):
    c = 0
    for i in ins:
        if i.kind in ("label", "dir"):
            continue
        c += 8 if (i.kind in ("mfma", "trans") or i.op.startswith("v_permlane")) else 4
    return c


def weave(groups, fill, slack=4, start=0, rate=1.0):
    out, f, credit = [], [], 0
    for it in fill:
        if isinstance(it, tuple):
            f.append((it[0], I(it[1])))
        else:
            f.append((0, I(it)))
    for n, g in enumerate(groups):
        g = I(g)
        out += g
        pipe = sum(4 * i.passes for i in g if i.kind == "mfma")
        if n < start:
            continue
        credit = min(credit, 8) + (pipe - cost(g) - slack) * rate
        while f and f[0][0] <= n and credit > 0:
            it = f.pop(0)[1]
            out += it
            credit -= cost(it)
    for _, it in f:
        out += it
    return out


def spread(main, fill, lo=0.0, hi=1.0):
    main = [I(m) for m in main]
    fill = [I(x) for x in fill]
    tot = sum(cost(m) for m in main)
    out, acc, k = [], 0, 0
    for m in main:
        out.append(m)
        acc += cost(m)
        while k < len(fill) and acc >= tot * (lo + (hi - lo) * k / max(1, len(fill))):
            out.append(fill[k]); k += 1
    out += fill[k:]
    return out


def tr(f, n, base, off):
    assert 0 <= off and off + 256 < 65536
    return [Ins(f"ds_read_b64_tr_b16 {R(f, n, 2)}, {base} offset:{off}"),
            Ins(f"ds_read_b64_tr_b16 {R(f, n + 2, 2)}, {base} offset:{off + 256}")]

def tr1(n, addr):
    return tr("v", n, vTR, addr) if addr < 65536 else tr("v", n, vTR1, addr - 65536)

def trp(n, addr):
    return tr("v", n, vTP, addr) if addr < 65536 else tr("v", n, vTP1, addr - 65536)


def dma(srd, voff, sbase, goffs, lds_s, lds_imm, tag, st=d0):
    out = []
    for j, g in enumerate(goffs):
        it = []
        if j % 4 == 0:
            it.append(Ins(f"s_add_u32 m0, {lds_s}, {lds_imm + 1024 * j}") if lds_s else Ins(f"s_mov_b32 m0, {lds_imm + 1024 * j}"))
        o = g - (j % 4) * 1024
        assert o >= 0
        it.append(Ins(f"s_add_u32 {st}, {sbase}, {o}"))
        it.append(Ins(f"buffer_load_dwordx4 {voff}, {srd}, {st} offen offset:{(j % 4) * 1024} lds", xdst=[tag]))
        out.append(it)
    return out


def barrier(*extra):
    return [need_ins("ds_any", *extra), Ins("s_barrier")]


def poll_issue(vaddr, vt):
    return [Ins(f"buffer_load_dword {vt}, {vaddr}, {sWS}, {sFP} offen sc1")]


def poll_check(vaddr, vt, target):
    ls, lr, lp = P.label(), P.label(), P.label()
    OUTL.extend(I([ls + ":", f"s_mov_b32 {sCNT}, 30000", lp + ":",
                   f"buffer_load_dword {vt}, {vaddr}, {sWS}, {sFP} offen sc1",
                   f"v_cmp_gt_u32 vcc, {target}, {vt}", f"s_cbranch_vccz {lr}",
                   f"s_sub_u32 {sCNT}, {sCNT}, 1", f"s_cbranch_scc0 {lp}", "s_endpgm"]))
    return I([f"v_cmp_gt_u32 vcc, {target}, {vt}", f"s_cbranch_vccnz {ls}", lr + ":"])


def poll(vaddr, vt, target):
    lp, lr = P.label(), P.label()
    return I([f"s_mov_b32 {sCNT}, 30000", lp + ":",
              f"buffer_load_dword {vt}, {vaddr}, {sWS}, {sFP} offen sc1",
              f"v_cmp_gt_u32 vcc, {target}, {vt}", f"s_cbranch_vccz {lr}",
              f"s_sub_u32 {sCNT}, {sCNT}, 1", f"s_cbranch_scc0 {lp}", "s_endpgm", lr + ":"])


def publish(val, vt, tag="stores"):
    ls, lr = P.label(), P.label()
    st = f"buffer_store_dword {vt}, off, {sWS}, {sFA}"
    OUTL.extend(I([ls + ":", st + " sc1", f"s_branch {lr}"]))
    return I([f"v_mov_b32 {vt}, {val}", f"s_cmp_eq_u32 {sMODE}, 0", need_ins(tag), f"s_cbranch_scc1 {ls}", st, lr + ":"])


PNAMES = []
def tick(name):
    if not PROF:
        return []
    if OPT.get("TK") and not re.match(OPT["TK"], name):
        return []
    idx = len(PNAMES)
    PNAMES.append(name)
    assert idx < 64
    op = "s_memtime" if opt("CLK", 0) else "s_memrealtime"
    return I([f"{op} s[100:101]", "s_waitcnt lgkmcnt(0)", f"v_writelane_b32 {vPROF}, s100, {idx}"])


def prof_dump():
    if not PROF:
        return []
    return I([f"s_lshl_b32 {t0}, s2, 2", f"s_add_u32 {t0}, {t0}, {sW}", f"s_lshl_b32 {t0}, {t0}, 8",
              f"s_add_u32 {t0}, {t0}, {LB(1) + 19 * MB}", f"v_lshlrev_b32 {x0}, 2, {vL}",
              f"buffer_store_dword {vPROF}, {x0}, {sWS}, {t0} offen"])


def stop(L, ph):
    if STOP == f"{L}.{ph}":
        P.add(prof_dump())
        P("s_endpgm")
        return True
    return False


def finish():
    import asmgen
    asmgen.SCHED = bool(opt('SCHED', 1))
    asmgen.MINW = opt('MINW', 2)
    P.put("L_end")
    P("s_endpgm")
    P.add(OUTL)
    body, ins = emit(P)
    hdr = open("interleave_layers__sliding_block__mixer_channel_mlp__prompt.s.ref").read()
    top = hdr.split("; @launch")[0]
    txt = top + "; @launch grid=(256,1,1) block=(256,1,1) lds=163840\n"
    txt += f""".amdgcn_target "amdgcn-amd-amdhsa--gfx950"
.text
.globl {KN}
.p2align 8
.type {KN},@function
{KN}:
{body}
.section .rodata,"a"
.p2align 6
.amdhsa_kernel {KN}
  .amdhsa_next_free_vgpr 512
  .amdhsa_next_free_sgpr 102
  .amdhsa_accum_offset 256
  .amdhsa_group_segment_fixed_size 0
  .amdhsa_kernarg_size 88
  .amdhsa_user_sgpr_count 2
  .amdhsa_user_sgpr_kernarg_segment_ptr 1
  .amdhsa_system_sgpr_workgroup_id_x 1
.end_amdhsa_kernel
"""
    open(sys.argv[1], "w").write(txt)
    print("instructions:", len(ins))
    open(sys.argv[1] + ".names", "w").write(" ".join(PNAMES))
```

```python
from k2_base import *

sW2B = "s3"

def wq_items(img, chunks=(0, 1, 2, 3), tag="wq"):
    cb = (1024, 2048, 0)[img]
    out = []
    for q in chunks:
        out += dma(sWQ, voQ, d1, [q * 128 * 3072 + cb + i * 16 * 3072 for i in range(2)], d2, img * 32768 + q * 8192, tag)
    return out

def wq_setup():
    return I([f"s_mul_i32 {d1}, {sW}, {32 * 3072}", f"s_lshl_b32 {d2}, {sM}, 6", f"s_add_u32 {d1}, {d1}, {d2}",
              f"s_lshl_b32 {d2}, {sW}, 11"])

vX0, vX1, XA = "v112", "v113", 120

def x0_items(q):
    out = []
    for j in range(8):
        it = []
        if j == 0:
            it += [f"s_xor_b32 {d1}, {t5}, {q}", f"s_lshl_b32 {d1}, {d1}, 8", f"s_add_u32 {d1}, {d1}, {t3}"]
        if j % 4 == 0:
            it.append(f"s_add_u32 m0, {d3}, {SL + 8192 * (q & 1) + 1024 * j}")
        it.append(f"s_add_u32 {d0}, {d1}, {(j >> 2) * 128 + (j & 3) * 7168}")
        it.append(Ins(f"buffer_load_dwordx4 {vX1 if j & 1 else vX0}, {sX}, {d0} offen offset:{(j & 3) * 1024} lds", xdst=[f"x{q}"]))
        out.append(I(it))
    return out

def w0_items(q, imgs=(0, 1), tag=None):
    out = []
    for img in imgs:
        cb = (1024, 2048, 0)[img]
        out += dma(sWQ, voQ, d1, [cb + i * 16 * 3072 for i in range(2)], d2, img * 32768 + q * 8192, tag or f"kv{q}")
    out[0] = I([f"s_xor_b32 {d1}, {t5}, {q}", f"s_mul_i32 {d1}, {d1}, {128 * 3072}", f"s_add_u32 {d1}, {d1}, {t4}"]) + out[0]
    return out

def w2_piece(kks, mul, imm, tag, vb):
    goffs = []
    for kk in kks:
        s, i = kk // 7, kk % 7
        goffs += [(128 * i + 32 * s + 8 * h) * 1024 for h in range(2)]
    dm = dma(sW2, vo2, sW2B, goffs, d2, imm, tag)
    dm[0] = I(f"s_mul_i32 {d2}, {sW}, {mul}") + dm[0]
    rd = [I([f"s_mul_i32 {u0}, {sW}, {mul}", f"s_add_u32 {u0}, {u0}, {imm}", f"v_add_u32 {vb}, {u0}, {vTP}", need_ins(tag)])]
    for j, kk in enumerate(kks):
        for ct in range(2):
            rd.append(tr("a", (kk * 2 + ct) * 4, vb, 2048 * j + 512 * ct))
    return dm, rd

def w2_round(rnd, vb):
    k = {1: 13, 2: 0, 3: 18, 4: 23}[rnd]
    pieces = {1: [(5, 16384, 0)],
              2: [(8, 16384, 0), (4, 8192, R2), (1, 2048, SPARE)],
              3: [(4, 8192, R2), (1, 2048, SPARE)],
              4: [(4, 8192, SL), (1, 2048, SPARE)]}[rnd]
    dm, rd = [], []
    for n, (cnt, mul, imm) in enumerate(pieces):
        a, b = w2_piece(list(range(k, k + cnt)), mul, imm, f"w2r{rnd}_{n}", vb)
        dm += a; rd += b
        k += cnt
    return dm, rd

def wo_items():
    it = dma(sWO, vo2, d1, [j * 8 * 1024 for j in range(16)], d2, 0, "wo")
    it[0] = I([f"s_and_b32 {d1}, {sW}, 1", f"s_lshl_b32 {d1}, {d1}, 18", f"s_lshr_b32 {d2}, {sW}, 1", f"s_lshl_b32 {d2}, {d2}, 17",
               f"s_add_u32 {d1}, {d1}, {d2}", f"s_and_b32 {d2}, {sCT}, 14", f"s_lshl_b32 {d2}, {d2}, 6", f"s_add_u32 {d1}, {d1}, {d2}",
               f"s_lshl_b32 {d2}, {sW}, 14"]) + it[0]
    return it

def w1_items(part):
    if part == "AB":
        rows, n, g0, sh, imm = 128, 16, 0, 14, 0
    else:
        rows, n, sh = 64, 8, 13
        g0, imm = (128, R2) if part == "CD1" else (128 + 256 * 3584, SL)
    it = dma(sW1, vo1, d1, [g0 + j * 8 * 3584 for j in range(n)], d2, imm, "w1" + part)
    it[0] = I([f"s_mul_i32 {d1}, {sW}, {rows * 3584}", f"s_lshl_b32 {d2}, {sM}, 8", f"s_add_u32 {d1}, {d1}, {d2}",
               f"s_lshl_b32 {d2}, {sW}, {sh}"]) + it[0]
    return it


def asel(n):
    return I([f"v_lshrrev_b32 v{n}, 2, {vL}", f"v_xor_b32 v{n}, v{n}, {vL}", f"v_bfe_u32 v{n}, v{n}, 2, 1",
              f"v_add_u32 v{n}, -1, v{n}", f"v_and_b32 v{n}, 0x3f803f80, v{n}",
              f"v_mov_b32 v{n + 1}, v{n}", f"v_mov_b64 {V(n + 2, 2)}, {V(n, 2)}"])


def table_write(c, tab, va, bias=None):
    o = [f"v_cvt_pk_bf16_f32 v{c + 2}, v{c}, v{c}",
         f"v_lshlrev_b32 v{c + 1}, 16, v{c + 2}",
         f"v_sub_f32 v{c + 1}, v{c}, v{c + 1}",
         f"v_and_b32 v{c + 3}, 0xffff, v{c + 2}",
         f"v_cvt_pk_bf16_f32 v{c + 2}, v{c}, v{c + 1}"]
    if bias:
        o.append(f"v_lshl_or_b32 v{c + 3}, {bias}, 16, v{c + 3}")
    o.append(f"ds_write_b64 {va}, {V(c + 2, 2)} offset:{tab * 1024}")
    return [I(x) for x in o]


def table_addr(va):
    return I([f"s_lshr_b32 {u0}, {sW}, 1", f"s_lshl_b32 {u0}, {u0}, 9", f"s_and_b32 {u1}, {sW}, 1", f"s_lshl_b32 {u1}, {u1}, 3",
              f"s_add_u32 {u0}, {u0}, {u1}", f"s_add_u32 {u0}, {u0}, {TAB0}",
              f"v_and_b32 {va}, 0x1f0, {vL16}", f"v_add_u32 {va}, {u0}, {va}"])


def stats_finish(a, b, c, d, ex, mlp, r, ir):
    o = [f"v_mul_f32 {a}, {fc(-1.0 / 512)}, {a}",
         f"v_mul_f32 {c}, {a}, {a}",
         f"v_fma_f32 {b}, {b}, {u3}, -{c}",
         f"v_cvt_pk_bf16_f32 v{ex}, {a}, {a}",
         f"v_max_f32 {b}, 0, {b}",
         f"v_add_f32 {c}, {fc(EPS)}, {b}",
         f"v_rsq_f32 {r}, {c}",
         f"v_lshlrev_b32 {d}, 16, v{ex}",
         f"v_sub_f32 {d}, {a}, {d}"]
    o = [f"s_mov_b32 {u3}, {fc(1.0 / 512)}"] + o
    if mlp:
        o += [f"v_mul_f32 {b}, {b}, {r}", f"v_mul_f32 {b}, {b}, {r}", f"v_add_f32 {b}, {fc(EPS)}, {b}",
              f"v_rsq_f32 {b}, {b}", f"v_mov_b32 v{ex + 2}, v{ex}", f"v_mul_f32 {r}, {b}, {r}", f"v_rcp_f32 {ir}, {r}",
              f"v_cvt_pk_bf16_f32 v{ex + 1}, {d}, {ir}", f"v_and_b32 {a}, 0xffff0000, v{ex + 1}", f"v_sub_f32 {a}, {ir}, {a}",
              f"v_cvt_pk_bf16_f32 v{ex + 3}, {d}, {a}"]
    else:
        o += [f"v_mov_b32 v{ex + 2}, v{ex}", f"v_cvt_pk_bf16_f32 v{ex + 1}, {d}, {d}", f"v_mov_b32 v{ex + 3}, v{ex + 1}"]
    return [I(x) for x in o]


def x_loads(xoff, stoff, stv):
    setup = I([f"s_lshl_b32 {t1}, {sT}, 15", f"s_lshl_b32 {t2}, {sT}, 12", f"s_add_u32 {t2}, {t2}, {stoff}", f"v_lshlrev_b32 v{stv + 15}, 2, {vL}"])
    items = []
    for t in range(32):
        if t == opt("XSP", 16):
            for s in range(0, 16, 4):
                items.append(I([f"buffer_load_dword v{stv + s + e}, v{stv + 15}, {sWS}, {t2} offen offset:{(s + e) * 256} sc1" for e in range(4)]))
        o = []
        if t % 4 == 0:
            o.append(f"s_add_u32 {t0}, {t1}, {xoff + t * 1024}")
        o.append(f"buffer_load_dwordx4 {V(XF + 4 * t)}, {vL16}, {sWS}, {t0} offen offset:{(t % 4) * 1024} sc1")
        items.append(I(o))
    return setup, items


def attach(groups, items, start=0, per=1):
    items = list(items)
    for n in range(start, len(groups)):
        for _ in range(per):
            if items:
                groups[n] = groups[n] + I(items.pop(0))
    assert not items
    return groups


def stats_sum(stv):
    o = []
    for st in (8, 4, 2, 1):
        for i in range(st):
            o.append(f"v_add_f32 v{stv + i}, v{stv + i}, v{stv + i + st}")
    o += [f"v_mov_b32 v{stv + 1}, v{stv}", "s_nop 0", f"v_permlane32_swap_b32 v{stv}, v{stv + 1}"]
    return [I(x) for x in o]


def prologue():
    P("s_cmp_ge_u32 s2, 256")
    P("s_cbranch_scc1 L_end")
    P.add(tick("s.start"))
    P("s_load_dwordx16 s[64:79], s[0:1], 0")
    P("s_load_dwordx4 s[80:83], s[0:1], 64")
    P("s_load_dwordx2 s[84:85], s[0:1], 80")
    P(f"v_lshrrev_b32 {x0}, 6, v0")
    P("v_and_b32 v0, 63, v0")
    P(f"v_readfirstlane_b32 {sW}, {x0}")
    P("s_and_b32 s3, s2, 7")
    P(f"s_lshl_b32 {sC}, s3, 1")
    P("s_bfe_u32 s3, s2, 0x10003")
    P(f"s_or_b32 {sC}, {sC}, s3")
    P(f"s_lshr_b32 {sM}, s2, 4")
    P(f"v_lshlrev_b32 {vL16}, 4, {vL}")
    P(f"s_lshl_b32 {sT}, {sC}, 2")
    P(f"s_add_u32 {sT}, {sT}, {sW}")
    P(f"v_lshrrev_b32 {x0}, 3, {vL}")
    P(f"v_xor_b32 {x2}, {x0}, {vL}")
    P(f"v_and_b32 {x2}, 7, {x2}")
    P(f"v_lshlrev_b32 {x2}, 4, {x2}")
    P(f"v_lshl_add_u32 {vX0}, {x0}, 10, {x2}")
    P(f"v_xor_b32 {vX1}, 16, {vX0}")
    P(f"v_lshrrev_b32 {x1}, 5, {vL}")
    P(f"v_lshrrev_b32 {voQ}, 2, {vL}")
    P(f"v_mul_u32_u24 {voQ}, 3072, {voQ}")
    P(f"v_and_b32 {x0}, 0x30, {vL16}")
    P(f"v_add_u32 {voQ}, {voQ}, {x0}")
    P(f"s_lshl_b32 {t5}, s3, 1")
    P(f"s_and_b32 {t0}, {sM}, 1")
    P(f"s_or_b32 {t5}, {t5}, {t0}")
    P(f"s_bfe_u32 {t0}, {sM}, 0x20001")
    P(f"s_xor_b32 {t5}, {t5}, {t0}")
    if opt("NOROT", 0):
        P(f"s_mov_b32 {t5}, 0")
    P(f"s_lshl_b32 {t3}, {sT}, 15")
    P.add(wq_setup())
    P(f"s_mov_b32 {t4}, {d1}")
    P(f"s_lshl_b32 {d3}, {sW}, 14")
    def srd(n, src, size):
        P(f"s_mov_b64 s[{n}:{n + 1}], s[{src}:{src + 1}]")
        P(f"s_mov_b32 s{n + 2}, {size}")
        P(f"s_mov_b32 s{n + 3}, 0x00020000")
    srd(8, 64, 2 * MB)
    P.add(I(x0_items(0)))
    srd(12, 66, 512 * 1536 * 2)
    P.add(I(w0_items(0)))
    srd(28, 84, 64 * MB)
    P.add(tick("s.c0"))
    if opt("INP", 0) == 0:
        P.add(I(init_l0()))
    P.add(tick("s.init"))
    srd(44, 82, 256)
    P(f"s_getreg_b32 {sMODE}, hwreg(HW_REG_XCC_ID, 0, 4)")
    P(f"s_or_b32 {sMODE}, {sMODE}, 0x10")
    srd(16, 68, 512 * 512 * 2)
    srd(20, 72, 512 * 1792 * 2)
    srd(24, 76, 1792 * 512 * 2)
    srd(32, 80, 2 * MB)
    srd(36, 78, 1024)
    srd(40, 74, 3584)
    P(f"v_bfe_u32 {x0}, {vL}, 2, 2")
    P(f"v_lshl_add_u32 {x0}, {x1}, 3, {x0}")
    P(f"v_lshlrev_b32 {x0}, 6, {x0}")
    P(f"v_bfe_u32 {x2}, {vL}, 4, 1")
    P(f"v_lshl_add_u32 {x0}, {x2}, 5, {x0}")
    P(f"v_and_b32 {x2}, 1, {vL}")
    P(f"v_lshl_add_u32 {x0}, {x2}, 4, {x0}")
    P(f"v_bfe_u32 {x2}, {vL}, 1, 1")
    P(f"v_lshl_add_u32 {vTR}, {x2}, 3, {x0}")
    P(f"v_add_u32 {vTR1}, 0x10000, {vTR}")
    P(f"v_lshl_add_u32 {vTP}, {x1}, 9, {vTR}")
    P(f"v_add_u32 {vTP1}, 0x10000, {vTP}")
    P(f"s_and_b32 {t0}, {sM}, 1")
    P(f"s_lshl_b32 {t0}, {t0}, 1")
    P(f"s_lshl_b32 {sTP}, {sC}, 2")
    P(f"s_add_u32 {sTP}, {sTP}, {t0}")
    P(f"s_lshr_b32 {t0}, {sW}, 1")
    P(f"s_add_u32 {sTP}, {sTP}, {t0}")
    P(f"s_and_b32 {t2}, {sM}, 14")
    P(f"s_and_b32 {t1}, {sW}, 1")
    P(f"s_add_u32 {sCT}, {t2}, {t1}")
    P(f"s_mul_i32 {sW2B}, {t0}, {896 * 1024}")
    P(f"s_lshl_b32 {t0}, {t1}, 14")
    P(f"s_add_u32 {sW2B}, {sW2B}, {t0}")
    P(f"s_lshl_b32 {t2}, {t2}, 6")
    P(f"s_add_u32 {sW2B}, {sW2B}, {t2}")
    P(f"v_bfe_u32 {x0}, {vL}, 2, 3")
    P(f"v_and_b32 {x2}, 0x30, {vL16}")
    P(f"v_mul_u32_u24 {vo1}, 3584, {x0}")
    P(f"v_lshl_add_u32 {vo2}, {x0}, 10, {x2}")
    P(f"v_add_u32 {vo1}, {vo1}, {x2}")
    P(f"v_lshl_add_u32 {vo1}, {x1}, 6, {vo1}")
    P(f"v_xor_b32 {x0}, {t1}, {x1}")
    P(f"v_lshl_add_u32 {vo2}, {x0}, 6, {vo2}")
    P(f"v_and_b32 {x0}, 31, {vL}")
    P(f"v_lshlrev_b32 {x2}, 2, {x1}")
    P(f"v_sub_u32 {x0}, {x0}, {x2}")
    for r in range(16):
        P(f"v_cmp_le_i32_e64 {sMASK(r)}, {(r & 3) + 8 * (r >> 2)}, {x0}")
    P(f"v_mov_b32 {x0}, 0xffff")
    P(f"v_mov_b32 {x2}, 0xffff0000")
    for d in range(8):
        P(f"v_cndmask_b32_e64 v16, 0, {x0}, {sMASK(2 * d)}")
        P(f"v_cndmask_b32_e64 v17, 0, {x2}, {sMASK(2 * d + 1)}")
        P(f"v_or_b32 v16, v16, v17")
        P(f"v_accvgpr_write_b32 a{240 + d}, v16")


def init_kv(L, tag):
    it = [I(([f"v_accvgpr_write_b32 a{236 + i}, -1" for i in range(4)] if L == 0 else []) +
            [f"s_lshl_b32 {u0}, {sT}, 4", f"s_add_u32 {u0}, {u0}, {sM}", f"s_lshl_b32 {u0}, {u0}, 12", f"s_add_u32 {u1}, {u0}, {LB(L) + KV_O}"])]
    for j in range(4):
        it.append([Ins(f"buffer_store_dwordx4 a[236:239], {vL16}, {sWS}, {u1} offen offset:{1024 * j} sc1", xdst=[tag])])
    return it


def init_l0():
    it = init_kv(0, "init")
    it.append(I(["v_mov_b32 v20, 0", f"s_lshl_b32 {u0}, {sC}, 4", f"s_add_u32 {u0}, {u0}, {sM}", f"s_lshl_b32 {u0}, {u0}, 2", f"s_add_u32 {sFA}, {u0}, {sW}",
                 f"s_lshl_b32 {u0}, {sFA}, 7", f"s_lshl_b32 {u1}, {sFA}, 2", f"s_add_u32 {u1}, {u1}, {FPACK}"]))
    it.append([Ins(f"buffer_store_dword v20, off, {sWS}, {u0} sc1", xdst=["init"])])
    it.append([Ins(f"buffer_store_dword v20, off, {sWS}, {u1} sc1", xdst=["init"])])
    it.append(I(f"s_add_u32 {sFP}, {u1}, {MBOX - FPACK}"))
    it.append([Ins(f"buffer_store_dword v20, off, {sWS}, {sFP} sc1", xdst=["init"])])
    return it


def misc_l0():
    it = []
    it.append(I([f"v_and_b32 v21, 31, {vL}", f"v_lshrrev_b32 v22, 5, {vL}", "v_lshlrev_b32 v21, 10, v21", "v_lshlrev_b32 v22, 4, v22",
                 "v_add_u32 v21, v21, v22",
                 f"s_lshl_b32 {u0}, {sTP}, 15", f"s_lshl_b32 {u1}, {sCT}, 6", f"s_add_u32 {u0}, {u0}, {u1}"]))
    it.append(I(f"buffer_load_dwordx4 a[224:227], v21, {sX}, {u0} offen"))
    it.append(I(f"buffer_load_dwordx4 a[228:231], v21, {sX}, {u0} offen offset:32"))
    it.append(I(f"buffer_load_dwordx4 a[248:251], v22, {sB2}, {u1} offen"))
    it.append(I(f"buffer_load_dwordx4 a[252:255], v22, {sB2}, {u1} offen offset:32"))
    return it


def touch(srd, total, vt, va, st=u0):
    share = total // 128
    sh = 7 if share > 4096 else 6
    it = [I([f"s_lshr_b32 {st}, s2, 3", f"s_lshl_b32 {st}, {st}, 2", f"s_add_u32 {st}, {st}, {sW}", f"s_mul_i32 {st}, {st}, {share}",
             f"v_lshlrev_b32 {va}, {sh}, {vL}", f"buffer_load_dword {vt}, {va}, {srd}, {st} offen"])]
    if share > 8192:
        assert share <= 16384
        it.append(I([f"s_add_u32 {st}, {st}, {share - 8192}", f"buffer_load_dword {vt}, {va}, {srd}, {st} offen"]))
    return it


aK, aV, aQ, RING, STV, EX, TABS = 16, 32, 48, 64, 96, 112, 116
HB = XF


def kv_epilogue(L):
    r = x0
    it = []
    for i in range(16):
        it.append(f"v_mul_f32 v{aK + i}, v{aK + i}, {r}")
    for i in range(8):
        it.append(f"v_cvt_pk_bf16_f32 v{aK + i}, v{aK + 2 * i}, v{aK + 2 * i + 1}")
    it.append([f"s_lshl_b32 {u0}, {sT}, 4", f"s_add_u32 {u0}, {u0}, {sM}", f"s_lshl_b32 {u0}, {u0}, 12", f"s_add_u32 {u0}, {u0}, {LB(L) + KV_O}"])
    it.append(f"buffer_store_dwordx4 {V(aK)}, {vL16}, {sWS}, {u0} offen sc1")
    it.append(f"buffer_store_dwordx4 {V(aK + 4)}, {vL16}, {sWS}, {u0} offen offset:2048 sc1")
    for i in range(16):
        it.append(f"v_mul_f32 v{aV + i}, v{aV + i}, v{STV + i}")
    for i in range(8):
        it.append(f"v_cvt_pk_bf16_f32 v{aV + i}, v{aV + 2 * i}, v{aV + 2 * i + 1}")
    it.append(f"buffer_store_dwordx4 {V(aV)}, {x2}, {sWS}, {u0} offen offset:1024 sc1")
    it.append(f"buffer_store_dwordx4 {V(aV + 4)}, {x2}, {sWS}, {u0} offen offset:1536 sc1")
    it.append([f"s_mul_i32 {u1}, {sW}, {PITCH}", f"s_add_u32 {u1}, {u1}, {SL + 8 * PITCH}"])
    it.append(f"v_add_u32 {x1}, {u1}, {vL16}")
    it.append(f"v_add_u32 {x2}, {u1}, {x2}")
    it.append(f"ds_write_b128 {x1}, {V(aK)}")
    it.append(f"ds_write_b128 {x1}, {V(aK + 4)} offset:2048")
    it.append(f"ds_write_b128 {x2}, {V(aV)} offset:1024")
    it.append(f"ds_write_b128 {x2}, {V(aV + 4)} offset:1536")
    it.append(f"v_mul_f32 {r}, {fc(0.25 * LOG2E)}, {r}")
    return [I(x) for x in it]


def r_bcast():
    it = [[f"s_lshl_b32 {u0}, {sW}, 7", f"s_add_u32 {u0}, {u0}, {RBC}"],
          f"v_and_b32 {x1}, 31, {vL}", f"v_lshl_add_u32 {x1}, {x1}, 2, {u0}", f"ds_write_b32 {x1}, {x0}",
          f"v_lshrrev_b32 {x2}, 5, {vL}", f"v_lshl_add_u32 {x1}, {x2}, 4, {u0}"]
    for g in range(4):
        it.append(f"ds_read_b128 {V(STV + 4 * g)}, {x1} offset:{32 * g}")
    it += [f"v_lshlrev_b32 {x2}, 8, {x2}", f"v_and_b32 {x1}, 0xf0, {vL16}", f"v_add_u32 {x2}, {x2}, {x1}",
           f"v_bfe_u32 {x1}, {vL}, 4, 1", f"v_lshl_add_u32 {x2}, {x1}, 11, {x2}"]
    return [I(x) for x in it]


def kv_groups(ts, D=3, lo=0, hi=32):
    g = []
    for k in ts:
        it = []
        t = k + D
        if lo <= t < hi:
            it += tr1(RING + 8 * (t % 4), R0 + t * 1024) + tr1(RING + 8 * (t % 4) + 4, R1 + t * 1024)
        it += I([f"{MF} {V(aK, 16)}, {V(RING + 8 * (k % 4))}, {V(XF + 4 * k)}, {V(aK, 16) if k else 0}",
                 f"{MF} {V(aV, 16)}, {V(XF + 4 * k)}, {V(RING + 8 * (k % 4) + 4)}, {V(aV, 16) if k else 0}"])
        g.append(it)
    return g


def kv_pre(t0_, n=3):
    o = []
    for t in range(t0_, t0_ + n):
        o += tr1(RING + 8 * (t % 4), R0 + t * 1024) + tr1(RING + 8 * (t % 4) + 4, R1 + t * 1024)
    return o


def tab_reads(js, va):
    return [I(f"v_add_u32 {va}, {TAB0}, {vL16}")] + [I(f"ds_read_b128 {V(TABS + 4 * j)}, {va} offset:{1024 * j}") for j in js]


def halo_setup(L):
    o = []
    for i, (back, sk, sv) in enumerate(((8, d1, d2), (4, d3, t5))):
        o += [f"s_sub_u32 {u0}, {sT}, {back}", f"s_cselect_b32 {u0}, 0, {u0}", f"s_cselect_b32 {u1}, 0x200, -1", f"s_cselect_b32 {u2}, {OOB}, 0",
              f"s_lshl_b32 {u0}, {u0}, 4", f"s_add_u32 {u0}, {u0}, {sM}", f"s_lshl_b32 {u0}, {u0}, 12", f"s_add_u32 {sk}, {u0}, {LB(L) + KV_O}",
              f"s_add_u32 {sv}, {sk}, {u2}", f"v_and_b32 v{STV + i}, {u1}, {vL16}"]
    return [I(o)]


def halo_loads():
    o = []
    for i, (sk, sv) in enumerate(((d1, d2), (d3, t5))):
        for j in range(4):
            va, so = (f"v{STV + i}", sk) if j % 2 == 0 else (vL16, sv)
            o.append(f"buffer_load_dwordx4 {V(HB + 16 * i + 4 * j)}, {va}, {sWS}, {so} offen offset:{1024 * j} sc1")
    return [I(x) for x in o]


def lead_issue():
    ls, lr = P.label(), P.label()
    OUTL.extend(I([ls + ":", f"v_lshlrev_b32 v116, 2, {vL}", f"buffer_load_dword v117, v116, {sDBG}, 0 offen sc1", f"s_branch {lr}"]))
    return I([f"s_or_b32 {u2}, {sM}, {sW}", f"s_cbranch_scc0 {ls}", lr + ":"])


def lead_check():
    ls, lr, lp, lc = P.label(), P.label(), P.label(), P.label()
    o = [ls + ":", f"v_lshlrev_b32 v116, 2, {vL}", f"s_mov_b32 {sCNT}, 30000", f"s_max_u32 {u0}, {sC}, 2", f"s_sub_u32 {u0}, {u0}, 2", f"s_sub_u32 {u1}, {sC}, {u0}",
         f"s_lshl_b32 {u0}, {u0}, 2", f"s_lshl_b32 {u1}, {u1}, 2", f"s_add_u32 {u1}, {u1}, 4", f"s_bfm_b64 s[98:99], {u1}, {u0}",
         f"s_mov_b32 {u0}, 0x10101010", need_ins(("v", 117)), f"s_branch {lc}",
         lp + ":", f"s_sub_u32 {sCNT}, {sCNT}, 1", f"s_cbranch_scc1 L_end", f"buffer_load_dword v117, v116, {sDBG}, 0 offen sc1", need_ins(("v", 117)),
         lc + ":", f"v_and_b32 v118, {u0}, v117", f"v_cmp_ne_u32 vcc, {u0}, v118", f"s_and_b64 vcc, vcc, s[98:99]", f"s_cbranch_scc1 {lp}",
         f"s_mul_i32 {u0}, {sMODE}, 0x01010101", f"v_cmp_ne_u32 vcc, {u0}, v117", f"s_lshl_b32 {u1}, {sC}, 2", f"s_bfm_b64 s[98:99], 4, {u1}",
         f"s_and_b64 vcc, vcc, s[98:99]", f"s_cselect_b32 {u0}, 1, 2", f"v_mov_b32 v118, {u0}",
         f"buffer_store_dword v118, v116, {sWS}, {sFP} offen sc1", f"s_branch {lr}"]
    OUTL.extend(I(o))
    return I([f"s_or_b32 {u2}, {sM}, {sW}", f"s_cbranch_scc0 {ls}", lr + ":"])


def handshake_issue():
    return [I([f"buffer_load_dword v{STV + 3}, off, {sWS}, {sFP} sc1"])]


def handshake_check():
    b, c = f"v{STV + 3}", f"v{STV + 4}"
    ls, lr, lp = P.label(), P.label(), P.label()
    OUTL.extend(I([ls + ":", f"s_mov_b32 {sCNT}, 30000", lp + ":", f"buffer_load_dword {b}, off, {sWS}, {sFP} sc1",
                   f"v_cmp_eq_u32 vcc, 0, {b}", f"s_cbranch_vccz {lr}",
                   f"s_sub_u32 {sCNT}, {sCNT}, 1", f"s_cbranch_scc0 {lp}", "s_endpgm"]))
    o = [f"v_cmp_eq_u32 vcc, 0, {b}", f"s_cbranch_vccnz {ls}", lr + ":"]
    it = [I(o)]
    o = [f"v_readfirstlane_b32 {u0}, {b}", f"s_cmp_eq_u32 {u0}, 1"]
    if OPT.get("SLOW"):
        o.append("s_cmp_eq_u32 0, 0")
    o += [f"s_cselect_b32 {sMODE}, 0, 1", f"s_cselect_b32 {u0}, 7, {opt('FSH', 2)}", f"s_cselect_b32 {u1}, 0, {FPACK if opt('FSH', 2) == 2 else 0}",
          f"s_lshl_b32 {sFA}, {sFA}, {u0}", f"s_add_u32 {sFA}, {sFA}, {u1}",
          f"s_lshl_b32 {sFP}, {sC}, 6", f"s_lshl_b32 {sFP}, {sFP}, {u0}", f"s_add_u32 {sFP}, {sFP}, {u1}"]
    it.append(I(o))
    it.append(I([f"s_lshr_b32 {u1}, {sW}, 1", f"s_lshl_b32 {u1}, {u1}, 2", f"s_and_b32 {u2}, {sW}, 1", f"s_lshl_b32 {u3}, {u2}, 1", f"s_add_u32 {u1}, {u1}, {u3}",
                 f"v_and_b32 {b}, 14, {vL}", f"v_and_b32 {c}, 1, {vL}", f"v_lshl_add_u32 {b}, {b}, 2, {c}", f"v_add_u32 {b}, {u1}, {b}",
                 f"v_lshlrev_b32 {vPX}, {u0}, {b}"]))
    it.append(I([f"s_lshl_b32 {u2}, {u2}, 5", f"s_and_b32 {u1}, {sTP}, 3", f"s_add_u32 {u1}, {u1}, {u2}",
                 f"v_and_b32 {b}, 7, {vL}", f"v_lshl_add_u32 {b}, {b}, 2, {u1}", f"v_lshlrev_b32 {vPO}, {u0}, {b}"]))
    it.append(I([f"s_lshr_b32 {u1}, {sW}, 1", f"s_mul_i32 {u1}, {u1}, 28", f"s_and_b32 {u2}, {sTP}, 2", f"s_add_u32 {u1}, {u1}, {u2}",
                 f"v_bfe_u32 {b}, {vL}, 1, 3", f"v_min_u32 {b}, 6, {b}", f"v_lshl_add_u32 {b}, {b}, 2, {c}", f"v_add_u32 {b}, {u1}, {b}",
                 f"v_lshlrev_b32 {vPH}, {u0}, {b}"]))
    return it


def phase1(L):
    ext = I([f"{MF} {V(aK, 16)}, {V(TABS)}, {V(EX)}, {V(aK, 16)}", f"{MF} {V(aV, 16)}, {V(EX)}, {V(TABS + 4)}, {V(aV, 16)}"])
    D = 6
    qg = []
    for k in range(32):
        it = tr1(RING + 4 * ((k + D) % 8), R2 + (k + D) * 1024) if k + D < 32 else []
        qg.append(it + I(f"{MF} {V(aQ, 16)}, {V(RING + 4 * (k % 8))}, {V(XF + 4 * k)}, {V(aQ, 16) if k else 0}"))
    qpre = []
    for t in range(D):
        qpre += tr1(RING + 4 * t, R2 + t * 1024)
    HL = opt("HL", 20)
    if L == 0:
        AS, S1, S2, CK, CV, CF = 124, 96, 100, 104, 108, 48
        P.add(asel(AS))
        for i in range(4):
            P(f"v_mov_b32 v{S2 + i}, 0")
        P(f"v_lshrrev_b32 {x0}, 5, {vL}")
        P(f"v_bfe_u32 {x1}, {vL}, 3, 1")
        P(f"v_xor_b32 {x0}, {x0}, {x1}")
        P(f"v_xor_b32 {x0}, {x0}, {vL}")
        P(f"v_and_b32 {x0}, 7, {x0}")
        P(f"v_and_b32 {x1}, 31, {vL}")
        P(f"v_lshlrev_b32 {x1}, 7, {x1}")
        P(f"v_lshl_add_u32 {x0}, {x0}, 4, {x1}")
        P(f"s_add_u32 {t0}, {d3}, {SL}")
        P(f"v_add_u32 v{XA}, {t0}, {x0}")
        for k in range(1, 4):
            P(f"v_xor_b32 v{XA + k}, {32 * k}, v{XA}")
        P(f"v_add_u32 {x1}, {d2}, {vTR}")
        P.add(table_addr(x2))
        P.add(tick("s.setup"))
        if opt("DBGW", 0):
            P.need("x0")
            P.add(tick("s.w0"))
            P.need("kv0")
            P.add(tick("s.w1"))
            P.need("init")
            P.add(tick("s.w2"))
        P.add(I(x0_items(1) + w0_items(1)))
        if opt("INP", 0) == 1:
            P.add(I(init_l0()))
        P.add(tick("s.c1"))
        later = {0: x0_items(2) + w0_items(2), 1: x0_items(3) + w0_items(3),
                 2: w0_items(0, (2,), "wq") + w0_items(1, (2,), "wq") + w0_items(2, (2,), "wq") + w0_items(3, (2,), "wq") + init_kv(1, "init1"),
                 3: touch(sW2, 1792 * 1024, "a232", "v119") + touch(sWO, 512 * 1024, "a232", "v119")}
        for q in range(4):
            P.need(f"x{q}")
            for t in range(8):
                P(f"ds_read_b128 {V(XF + 32 * q + 4 * t)}, v{XA + (t & 3)} offset:{8192 * (q & 1) + 4096 * (t >> 2)}")
            P.add(tick(f"s.x{q}"))
            main = []
            for t in range(8):
                for j in range(4):
                    main.append(f"v_dot2c_f32_bf16 v{S2 + j}, v{XF + 32 * q + 4 * t + j}, v{XF + 32 * q + 4 * t + j}")
                main.append(f"{MF16} {V(S1)}, {V(AS)}, {V(XF + 32 * q + 4 * t)}, {V(S1) if (q or t) else 0}")
            lt = later[q]
            if q < 2:
                lt = [[need_ins("ds_any")]] + lt
            P.add(I(spread(main, lt, 0.1, 1.0)))
            if q == 3:
                P(f"v_add_f32 v{S2}, v{S2}, v{S2 + 1}")
                P(f"v_add_f32 v{S2 + 2}, v{S2 + 2}, v{S2 + 3}")
                P(f"v_add_f32 v{S2}, v{S2}, v{S2 + 2}")
                P(f"v_mov_b32 v{S2 + 1}, v{S2}")
                P(f"v_permlane32_swap_b32 v{S2}, v{S2 + 1}")
                P(f"v_add_f32 v{S2}, v{S2}, v{S2 + 1}")
                P.add(I(stats_finish(f"v{S1}", f"v{S2}", f"v{S2 + 1}", f"v{S2 + 2}", EX, False, x0, None)))
            P.need(f"kv{q}")
            for i in range(2):
                P.add(tr("v", CF + 8 * i, x1, R0 + 8192 * q + 1024 * i) + tr("v", CF + 8 * i + 4, x1, R1 + 8192 * q + 1024 * i))
            SG = opt("INP", 0)
            if q == SG:
                P(f"v_mov_b32 v119, {sMODE}")
                P(f"s_lshr_b32 {u0}, {sFA}, 2")
                P(f"s_cmp_lg_u32 {sW}, 0")
                P.need("init")
            P("s_barrier")
            if q == SG:
                lsk = P.label()
                P(f"s_cbranch_scc1 {lsk}")
                P(f"buffer_store_byte v119, off, {sDBG}, {u0} sc1")
                P.put(lsk)
            P.add(tick(f"s.b{q}"))
            P.add(kv_pre(8 * q))
            for i in range(2):
                P(f"{MF16} {V(CK)}, {V(AS)}, {V(CF + 8 * i)}, {V(CK) if (q or i) else 0}")
                P(f"{MF16} {V(CV)}, {V(AS)}, {V(CF + 8 * i + 4)}, {V(CV) if (q or i) else 0}")
            g = kv_groups(range(8 * q, 8 * q + 8), hi=8 * q + 8)
            if q < 3:
                P.add(I(g))
            else:
                fill = [(1, x) for x in table_write(CK, 0, x2) + table_write(CV, 1, x2)] + [(4, lead_check() + barrier())] + tab_reads([0, 1], x2) + r_bcast()
                P.add(weave(g, fill))
            if q == opt("LIS", 1):
                P.add(lead_issue())
            P.add(tick(f"s.kv{q}"))
        P.need("init1")
        P.add(ext)
        P.add(I(kv_epilogue(0)))
        P.add(tick("0.kv"))
        CQ = 104
        P(f"s_lshl_b32 {t0}, {sW}, 11")
        P(f"v_add_u32 {x1}, {t0}, {vTR1}")
        P.add(table_addr(x2))
        P.need("wq")
        for q in range(4):
            for i in range(2):
                P.add(tr("v", 16 + 8 * q + 4 * i, x1, 8192 * q + 1024 * i))
        P("s_barrier")
        P.add(qpre)
        for j in range(8):
            P(f"{MF16} {V(CQ)}, {V(AS)}, {V(16 + 4 * j)}, {V(CQ) if j else 0}")
        fill = [(1, x) for x in table_write(CQ, 2, x2)] + [(opt("HSI", 6), x) for x in handshake_issue()] + [(8, barrier())] + tab_reads([2], x2) \
            + [(opt("HSC", 16), x) for x in handshake_check()] + halo_setup(0) + [(HL, x) for x in halo_loads()] + misc_l0()
        P.add(weave(qg, fill))
    else:
        P.add(wq_setup())
        P.add(I(wq_items(2)))
        P.add(I(tab_reads([0, 1, 2], x2)))
        P.add(kv_pre(0))
        xs, xi = x_loads(LB(1) + XIN_O, LB(1) + ST2_O, STV)
        NB = opt("NB", 14)
        P.add(xs)
        P.add(poll(vPX, x1, 8))
        P.add(tick("1.pollx"))
        P.add(I(xi[:NB]))
        P.add(tick("1.xiss"))
        s = [f"v{STV + i}" for i in range(4)]
        fill = stats_sum(STV) + stats_finish(s[0], s[1], s[2], s[3], EX, False, x0, None) + r_bcast()
        P.add(weave(attach(kv_groups(range(32)), xi[NB:]), [(opt("XSP", 16) + 2, x) for x in fill]))
        P.add(ext)
        P.add(tick("1.kv"))
        P.add(barrier("wq"))
        P.add(qpre)
        fill = [(1, x) for x in kv_epilogue(1)] + halo_setup(1) + [(HL, x) for x in halo_loads()]
        P.add(weave(qg, fill))
    P(f"{MF} {V(aQ, 16)}, {V(TABS + 8)}, {V(EX)}, {V(aQ, 16)}")
```

```python
from k2_base import *
from k2_p1 import *

B1V, CC, CD_, AS4 = 48, 52, 56, 60


def tile_out(x, pk, tmp, xo, so, val):
    for i in range(8):
        P(f"v_cvt_pk_bf16_f32 v{pk + i}, v{x + 2 * i}, v{x + 2 * i + 1}")
    P(f"buffer_store_dwordx4 {V(pk)}, {vL16}, {sWS}, {t1} offen sc1")
    P(f"buffer_store_dwordx4 {V(pk + 4)}, {vL16}, {sWS}, {t1} offen offset:1024 sc1")
    a, b = V(tmp, 2), V(tmp + 2, 2)
    P(f"v_pk_add_f32 {a}, {V(x, 2)}, {V(x + 2, 2)}")
    P(f"v_pk_mul_f32 {b}, {V(x, 2)}, {V(x, 2)}")
    for i in range(1, 8):
        if i >= 2:
            P(f"v_pk_add_f32 {a}, {a}, {V(x + 2 * i, 2)}")
        P(f"v_pk_fma_f32 {b}, {V(x + 2 * i, 2)}, {V(x + 2 * i, 2)}, {b}")
    P(f"v_add_f32 v{tmp}, v{tmp}, v{tmp + 1}")
    P(f"v_add_f32 v{tmp + 2}, v{tmp + 2}, v{tmp + 3}")
    P(f"v_permlane32_swap_b32 v{tmp}, v{tmp + 2}")
    P(f"v_add_f32 v{tmp}, v{tmp}, v{tmp + 2}")
    P(f"buffer_store_dword v{tmp}, {x2}, {sWS}, {t2} offen sc1")


def tile_addr(xo, so):
    return I([f"s_lshl_b32 {t2}, {sTP}, 4", f"s_add_u32 {t2}, {t2}, {sCT}", f"s_lshl_b32 {t1}, {t2}, 11", f"s_add_u32 {t1}, {t1}, {xo}",
              f"s_lshl_b32 {t2}, {t2}, 8", f"s_add_u32 {t2}, {t2}, {so}", f"v_lshlrev_b32 {x2}, 2, {vL}"])


def phase3(L, late_rd):
    a0, a1, OF, WO = 16, 32, 64, 128
    P.add(barrier("wo"))
    if L == 0:
        d4, r4 = w2_round(4, x0)
        P.add(I(late_rd))
        P.add(I(d4[:8]))
    else:
        P.add(I(w1_items("CD2")))
        r4 = []
    P(f"s_and_b32 {t0}, {sW}, 1")
    P(f"s_lshl_b32 {t0}, {t0}, 14")
    P(f"v_add_u32 {x1}, {t0}, {vTP}")
    for ks in range(16):
        for ct in range(2):
            P.add(tr("v", WO + (ks * 2 + ct) * 4, x1, (ks >> 3) * 32768 + 2048 * (ks & 7) + 512 * ct))
    if L == 0:
        for d in range(8):
            P(f"v_accvgpr_read_b32 {x2}, a{224 + d}")
            P(f"v_lshlrev_b32 v{a0 + 2 * d}, 16, {x2}")
            P(f"v_and_b32 v{a0 + 2 * d + 1}, 0xffff0000, {x2}")
        P(f"v_and_b32 {x1}, 0x13, {vL}")
        P(f"v_bfe_u32 {x2}, {vL}, 2, 1")
        P(f"v_lshl_add_u32 {x1}, {x2}, 3, {x1}")
        P(f"v_bfe_u32 {x2}, {vL}, 3, 1")
        P(f"v_lshl_add_u32 {x1}, {x2}, 2, {x1}")
        P(f"v_lshlrev_b32 {x1}, 1, {x1}")
        P(f"s_lshl_b32 {t1}, {sM}, 8")
        P(f"s_cmp_ge_u32 {sW}, 2")
        P(f"s_cselect_b32 {t1}, {OOB}, {t1}")
        for e in range(4):
            P(f"buffer_load_ushort v{B1V + e}, {x1}, {sB1}, {t1} offen offset:{64 * e}")
        P.need("ds_any")
        P.add(I(d4[8:]))
    else:
        for i in range(16):
            P(f"v_accvgpr_read_b32 v{a0 + i}, a{224 + i}")
    P(f"s_lshl_b32 {t3}, {sTP}, 15")
    P(f"s_add_u32 {t3}, {t3}, {t0}")
    P(f"s_add_u32 {t3}, {t3}, {LB(L) + O_O}")
    P(f"s_xor_b32 {t0}, {sW}, 1")
    P(f"s_lshl_b32 {t0}, {t0}, 12")
    P(f"s_add_u32 {t0}, {t0}, {SCR3}")
    P(f"v_add_u32 {x0 if L else 'v52'}, {t0}, {vL16}")
    vw = x0 if L else "v52"
    P.add(tile_addr(LB(L) + X1_O, LB(L) + ST1_O))
    P.add(barrier())
    P.add(tick(f"{L}.B3b"))
    P.add(poll(vPO, x1, 16 * L + 1))
    P.add(tick(f"{L}.pollo"))
    for ks in range(16):
        if ks % 4 == 0 and ks:
            P(f"s_add_u32 {t3}, {t3}, 4096")
        P(f"buffer_load_dwordx4 {V(OF + 4 * ks)}, {vL16}, {sWS}, {t3} offen offset:{(ks % 4) * 1024} sc1")
    def mf(ks, ct):
        a = V(a0 if ct == 0 else a1, 16)
        return f"{MF} {a}, {V(WO + (ks * 2 + ct) * 4)}, {V(OF + 4 * ks)}, {a if (ks or ct == 0) else 0}"
    NT = 4
    g = [[mf(ks, 1), mf(ks, 0)] for ks in range(16 - NT)] + [[mf(ks, 1)] for ks in range(16 - NT, 16)]
    fill = w1_items("AB") + (w1_items("CD1") if L == 0 else [])
    P.add(I(spread(g, fill, 0.0, 1.0)))
    for n, ks in enumerate(range(16 - NT, 16)):
        P(mf(ks, 0))
        if n >= 1:
            for j in ([n - 1] if n < NT - 1 else range(n - 1, 4)):
                P(f"ds_write_b128 {vw}, {V(a1 + 4 * j)} offset:{1024 * j}")
    P(f"v_xor_b32 {vw}, 0x1000, {vw}")
    P.add(tick(f"{L}.p3mm"))
    P.add(barrier())
    for j in range(4):
        P(f"ds_read_b128 {V(OF + 4 * j)}, {vw} offset:{1024 * j}")
    for i in range(8):
        P(f"v_pk_add_f32 {V(a0 + 2 * i, 2)}, {V(a0 + 2 * i, 2)}, {V(OF + 2 * i, 2)}")
    tile_out(a0, OF + 16, OF + 24, None, None, None)
    for d in range(8):
        P(f"v_accvgpr_read_b32 {x1}, a{248 + d}")
        P(f"v_lshlrev_b32 v{OF}, 16, {x1}")
        P(f"v_and_b32 v{OF + 1}, 0xffff0000, {x1}")
        P(f"v_pk_add_f32 {V(a0 + 2 * d, 2)}, {V(a0 + 2 * d, 2)}, {V(OF, 2)}")
        P(f"v_accvgpr_write_b32 a{224 + 2 * d}, v{a0 + 2 * d}")
        P(f"v_accvgpr_write_b32 a{225 + 2 * d}, v{a0 + 2 * d + 1}")
    P.add(publish(16 * L + 3, x1))
    P.add(tick(f"{L}.p3end"))
    return r4


def gelu(a, c0, c1, ir, tmp, so, tag, pk=False):
    res = []
    for g in range(4):
        if pk:
            xs = [V(a + 4 * g + 2 * e, 2) for e in range(2)]
            ts = [V(tmp + 2 * e, 2) for e in range(2)]
            bc = lambda r: f"v[{r[1:]}:{int(r[1:]) + 1}]"
            res += [f"v_pk_mul_f32 {t}, {x}, {x}" for x, t in zip(xs, ts)]
            res += [f"v_pk_fma_f32 {t}, {t}, {bc(c1)}, {bc(c0)} op_sel_hi:[1,0,0]" for t in ts]
            res += [f"v_pk_mul_f32 {t}, {t}, {x}" for x, t in zip(xs, ts)]
            res += [f"v_exp_f32 v{tmp + e}, v{tmp + e}" for e in range(4)]
            res += [f"v_pk_fma_f32 {t}, {t}, {bc(ir)}, {bc(ir)} op_sel_hi:[1,0,0]" for t in ts]
            res += [f"v_rcp_f32 v{tmp + e}, v{tmp + e}" for e in range(4)]
            res += [f"v_pk_mul_f32 {x}, {x}, {t}" for x, t in zip(xs, ts)]
        else:
            blk = []
            for e in range(4):
                x, t = f"v{a + 4 * g + e}", f"v{tmp + e}"
                blk.append([f"v_mul_f32 {t}, {x}, {x}", f"v_fma_f32 {t}, {t}, {c1}, {c0}", f"v_mul_f32 {t}, {t}, {x}",
                            f"v_exp_f32 {t}, {t}", f"v_fma_f32 {t}, {t}, {ir}, {ir}", f"v_rcp_f32 {t}, {t}", f"v_mul_f32 {x}, {x}, {t}"])
            for s in range(7):
                for e in range(4):
                    res.append(blk[e][s])
        for i in (2 * g, 2 * g + 1):
            res.append(f"v_cvt_pk_bf16_f32 v{a + i}, v{a + 2 * i}, v{a + 2 * i + 1}")
        if g & 1:
            s, off = so
            res.append(Ins(f"buffer_store_dwordx4 {V(a + 2 * (g - 1))}, {vL16}, {sWS}, {s} offen offset:{off + 1024 * (g >> 1)} sc1", xdst=[tag]))
    return [I(x) for x in res]


def phase45(L, r4):
    T = [16, 32, 48, 16]
    C0R, C1R, IRR, RR, GT = "v116", "v118", "v120", "v122", 124
    FB = 16 * L
    vtb = x2
    if L == 0:
        P.add(I(r4))
        P.add(asel(AS4))
        P(f"s_lshl_b32 {t0}, {sW}, 14")
        P(f"v_add_u32 {x1}, {t0}, {vTP}")
        P(f"s_lshl_b32 {t0}, {sW}, 13")
        P(f"v_add_u32 {x0}, {t0}, {vTP1}")
        P.add(table_addr(x2))
        P.need("w1AB")
        for j in range(16):
            P.add(tr("v", XF + 4 * j, x1, 2048 * (j >> 1) + 512 * (j & 1)))
        P.need("w1CD1")
        for j in range(8):
            P.add(tr("v", XF + 64 + 4 * j, x0, 2048 * (j >> 1) + 512 * (j & 1)))
        for j in range(16):
            c = V(16 + 4 * (j & 1))
            P(f"{MF16} {c}, {V(AS4)}, {V(XF + 4 * j)}, {c if j >= 2 else 0}")
        for j in range(8):
            c = V(CC + 4 * (j & 1))
            P(f"{MF16} {c}, {V(AS4)}, {V(XF + 64 + 4 * j)}, {c if j >= 2 else 0}")
        P.add(I(table_write(16, 3, x2, f"v{B1V}") + table_write(20, 4, x2, f"v{B1V + 1}")))
        P.add(barrier())
        vtw = "v123"
        P(f"v_mov_b32 {vtw}, {x2}")
    else:
        P.add(barrier("w1AB", "w1CD1", "w1CD2"))
    P(f"v_add_u32 {vtb}, {TAB0 + 3072}, {vL16}")
    D = 3
    def rdA(t):
        if t < 32:
            return trp(RING + 8 * (t % 4), 2048 * t) + trp(RING + 8 * (t % 4) + 4, 2048 * t + 512)
        if t == 32:
            return I([f"ds_read_b128 {V(RING + 8 * (t % 4) + 4 * e)}, {vtb} offset:{1024 * e}" for e in range(2)])
        return []
    for t in range(D):
        P.add(rdA(t))
    P(f"s_lshl_b32 {t3}, {sT}, 17")
    P(f"s_lshl_b32 {t4}, {sM}, 13")
    P(f"s_add_u32 {t3}, {t3}, {t4}")
    P(f"s_add_u32 {t3}, {t3}, {LB(L) + H_O}")
    P(f"s_add_u32 {t4}, {t3}, 4096")
    xs, xi = x_loads(LB(L) + X1_O, LB(L) + ST1_O, STV)
    NB = opt("NB", 14)
    P.add(xs)
    P.add(tick(f"{L}.B4b"))
    P.add(poll(vPX, x1, FB + 3))
    P.add(tick(f"{L}.pollx1"))
    P.add(I(xi[:NB]))
    xi = xi[NB:] + (w1_items("CD2") if L == 0 else [])
    gA = []
    for k in range(33):
        xb = V(XF + 4 * k) if k < 32 else V(EX)
        gA.append(rdA(k + D) + I([f"{MF} {V(T[e], 16)}, {V(RING + 8 * (k % 4) + 4 * e)}, {xb}, {V(T[e], 16) if k else 0}" for e in range(2)]))
    s = [f"v{STV + i}" for i in range(4)]
    C0 = -2.0 * LOG2E * 0.7978845608028654
    fill = stats_sum(STV) + stats_finish(s[0], s[1], s[2], s[3], EX, True, RR, IRR)
    fill += [I(x) for x in [f"v_mul_f32 {C0R}, {fc(C0)}, {RR}", f"v_mul_f32 {C1R}, {RR}, {RR}", f"v_mul_f32 {C1R}, {C1R}, {C0R}",
                            f"v_mul_f32 {C1R}, {fc(0.044715)}, {C1R}"]]
    P.add(weave(attach(gA, xi), [(opt("XSP", 16) + 2, x) for x in fill]))
    P.add(tick(f"{L}.pA"))
    D1 = 6
    def rd1(e, t):
        if t < 32:
            return trp(RING + 4 * (t % 8), R2 + 2048 * t + 512 * e)
        if t == 32:
            return I(f"ds_read_b128 {V(RING + 4 * (t % 8))}, {vtb} offset:{2048 + 1024 * e}")
        if e == 0 and t - 34 >= 0:
            pass
        return []
    def g1(e, off):
        def rd(t):
            n = RING + 4 * ((t + off) % 8)
            if t < 32:
                return trp(n, R2 + 2048 * t + 512 * e)
            if t == 32:
                return I(f"ds_read_b128 {V(n)}, {vtb} offset:{2048 + 1024 * e}")
            if e == 0:
                return trp(n, R2 + 2048 * (t - 33) + 512)
            return []
        a = V(T[2 + e], 16)
        out = []
        for k in range(33):
            xb = V(XF + 4 * k) if k < 32 else V(EX)
            it = rd(k + D1)
            if k % 2 == 0 and k + 1 < 33:
                it = it + [need_ins(("v", RING + 4 * ((k + 1 + off) % 8) + 3))]
            out.append(it + I(f"{MF} {a}, {V(RING + 4 * ((k + off) % 8))}, {xb}, {a if k else 0}"))
        return out, [rd(t) for t in range(D1)]
    gB, preB = g1(0, 0)
    gC, _ = g1(1, 33)
    PUBD = opt("PUBD", 14)
    GHI = opt("GHI", 90) / 100
    def G(i, pk=False):
        return gelu(T[i], C0R, C1R, IRR, GT, (t3 if i < 2 else t4, 2048 * (i & 1)), f"h{i}", pk)
    def at(groups, n, item):
        groups[n] = groups[n] + I(item)
    if L == 0:
        cs = [I([need_ins("w1CD2")] + tr("v", STV + 4 * (j & 3), x0, 32768 + 2048 * (j >> 1) + 512 * (j & 1))) for j in range(4)]
        for j in range(8):
            c = V(CC + 4 * (j & 1))
            cs.append(I(f"{MF16} {c}, {V(AS4)}, {V(STV + 4 * (j & 3))}, {c}"))
            if j + 4 < 8:
                cs.append(tr("v", STV + 4 * (j & 3), x0, 32768 + 2048 * ((j + 4) >> 1) + 512 * (j & 1)))
        cs += [[]] + table_write(CC, 5, vtw, f"v{B1V + 2}") + table_write(CD_, 6, vtw, f"v{B1V + 3}")
        P.add(I(spread(G(0), cs + preB, 0.1, 0.95)))
        P.add(barrier())
        kv = wq_items(0, tag="wkv") + wq_items(1, tag="wkv")
        kv[0] = wq_setup() + kv[0]
        for j in range(8):
            at(gB, 1 + j, kv[j]); at(gC, 1 + j, kv[8 + j])
    else:
        P.add(I(spread(G(0, True), preB, 0.5, 0.95)))
    P.add(tick(f"{L}.G0"))
    ACC = [A(224, 16), V(32, 16), V(48, 16), V(240, 16)]
    def hf(s, i, tt): return XF + 4 * (14 * (s & 1) + 2 * i + tt)
    def hloads(s):
        out = []
        for i in range(7):
            for tt in range(2):
                out.append(I([f"s_add_u32 {u0}, {t5 if tt == 0 else d3}, {(8 * i + 2 * s) * 1024}",
                              f"buffer_load_dwordx4 {V(hf(s, i, tt))}, {vL16}, {sWS}, {u0} offen sc1"]))
        return out
    def mf(s, i, n):
        tt, ct = n >> 1, n & 1
        a = ACC[n]
        return f"{MF} {a}, {A(((7 * s + i) * 2 + ct) * 4)}, {V(hf(s, i, tt))}, {a if (s or i or n == 0) else 0}"
    def gS(s): return [I(mf(s, i, n)) for i in range(7) for n in range(4)]
    hb = I([f"s_lshr_b32 {u0}, {sW}, 1", f"s_mul_i32 {u0}, {u0}, {56 * 1024}", f"s_and_b32 {u1}, {sW}, 1", f"s_lshl_b32 {u1}, {u1}, 10",
            f"s_add_u32 {u0}, {u0}, {u1}", f"s_add_u32 {u0}, {u0}, {LB(L) + H_O}", f"s_lshl_b32 {t5}, {sTP}, 17", f"s_xor_b32 {d3}, {t5}, 0x20000",
            f"s_add_u32 {t5}, {t5}, {u0}", f"s_add_u32 {d3}, {d3}, {u0}"])
    for n, x in enumerate(hb):
        at(gB, 16 + n, x)
    st = gB + gC + gS(0) + gS(1) + gS(2)
    CK = [opt("CK0", 41), opt("CK1", 66), opt("CK2", 96), opt("CK3", 124)]
    PB = [opt("PB0", 14), opt("PB1", 47), opt("PB2", 78), opt("PB3", 108)]
    PD = opt("PD", 12)
    for s in range(4):
        at(st, PB[s], publish(FB + 4 + s, x1, f"h{s}"))
        at(st, CK[s] - PD, poll_issue(vPH, x0))
        at(st, CK[s], poll_check(vPH, x0, FB + 4 + s))
        n = CK[s] + 1
        for j, x in enumerate(hloads(s)):
            lo = {0: 33 + j, 1: 33 + 14 + j}.get(s, 66 + 28 * (s - 2) + 4 * (j >> 1) + 3)
            n = max(n, lo)
            at(st, n, x)
            n += 1 if j < opt("HBU", 6) else opt("HST", 2)
        assert n <= len(st) + 1
    at(st, opt("B6", 110), barrier())
    P.add(I(spread(st[:33], G(1), 0.03, GHI)))
    P.add(tick(f"{L}.pB"))
    P.add(I(spread(st[33:66], G(2), 0.03, GHI)))
    P.add(tick(f"{L}.pC"))
    P.add(weave(st[66:94], [(1, x) for x in G(3)], slack=0))
    P.add(tick(f"{L}.S0"))
    P.add(I(st[94:122]))
    P.add(tick(f"{L}.S1"))
    P.add(I(st[122:150]))
    P.add(tick(f"{L}.S2"))
    NT = opt("NT5", 2)
    wa = ["v16", "v17", "v18", "v19"]
    pre = []
    for i in range(4):
        pre.append(I([f"s_xor_b32 {u0}, {sW}, {i}", f"s_mul_i32 {u0}, {u0}, 12288", f"s_add_u32 {u0}, {u0}, {SL + 4096 * max(0, i - 1)}",
                      f"v_add_u32 {wa[i]}, {u0}, {vL16}"]))
    if L == 0:
        pre.append(tile_addr(LB(1) + XIN_O, LB(1) + ST2_O))
    else:
        pre.append(I([f"v_and_b32 {x2}, 31, {vL}", f"v_lshrrev_b32 {x1}, 5, {vL}", f"v_lshlrev_b32 {x2}, 10, {x2}", f"v_lshl_add_u32 {x2}, {x1}, 4, {x2}",
                      f"s_lshl_b32 {t1}, {sTP}, 15", f"s_lshl_b32 {t2}, {sCT}, 6", f"s_add_u32 {t1}, {t1}, {t2}"]))
    P.add(I(pre))
    g = [I(mf(3, i, n)) for i in range(7 - NT) for n in range(4)]
    base = [0, 32, 48, 240]
    wr = []
    for n in (3, 2, 1, 0):
        for e, i in enumerate(range(7 - NT, 7)):
            g.append(I(mf(3, i, n)))
            if e >= 1 or NT == 1:
                k = (len(wr) + (NT - e) - 1) // (NT - e)
                g.append(I(wr[:k])); wr = wr[k:]
        if n:
            wr = [f"ds_write_b128 {wa[n]}, {V(base[n] + 4 * j)} offset:{1024 * j}" for j in range(4)]
    P.add(I(g))
    x, tmp = 64, 80
    for i in range(16):
        P(f"v_accvgpr_read_b32 v{x + i}, a{224 + i}")
    P.add(tick(f"{L}.S3"))
    P.add(barrier(*(["wkv"] if L == 0 else [])))
    for j in range(12):
        P(f"ds_read_b128 {V(tmp + 4 * j)}, {wa[0]} offset:{1024 * j}")
    for p in range(3):
        for i in range(8):
            P(f"v_pk_add_f32 {V(x + 2 * i, 2)}, {V(x + 2 * i, 2)}, {V(tmp + 16 * p + 2 * i, 2)}")
    if L == 0:
        tile_out(x, 16, 24, None, None, None)
        for i in range(16):
            P(f"v_accvgpr_write_b32 a{224 + i}, v{x + i}")
        P.add(publish(8, x1))
        P.add(tick("0.p5end"))
    else:
        for i in range(8):
            P(f"v_cvt_pk_bf16_f32 v{16 + i}, v{x + 2 * i}, v{x + 2 * i + 1}")
        P(f"buffer_store_dwordx4 {V(16)}, {x2}, {sOUT}, {t1} offen")
        P(f"buffer_store_dwordx4 {V(20)}, {x2}, {sOUT}, {t1} offen offset:32")
        if PROF:
            P.need("stores")
            P.add(tick("1.final"))
            P.add(prof_dump())
```

```python
import re

TRANS = ("v_exp_f32", "v_log_f32", "v_rcp_f32", "v_rsq_f32", "v_sqrt_f32", "v_sin_f32", "v_cos_f32",
         "v_rcp_iflag_f32", "v_exp_f16", "v_rcp_f16", "v_rsq_f16")
REG_RE = re.compile(r"(?<![\w.])([vas])(\d+)\b|(?<![\w.])([vas])\[(\d+):(\d+)\]|\b(vcc_lo|vcc_hi|vcc|exec_lo|exec_hi|exec|m0)\b")


def regs_of(tok):
    out = []
    for m in REG_RE.finditer(tok):
        if m.group(1):
            out.append((m.group(1), int(m.group(2))))
        elif m.group(3):
            out += [(m.group(3), i) for i in range(int(m.group(4)), int(m.group(5)) + 1)]
        else:
            n = m.group(6)
            if n.startswith("vcc"):
                out.append(("x", "vcc"))
            elif n.startswith("exec"):
                out.append(("x", "exec"))
            else:
                out.append(("x", "m0"))
    return out


def split_ops(s):
    ops, depth, cur = [], 0, ""
    for ch in s:
        if ch == "[":
            depth += 1
        if ch == "]":
            depth -= 1
        if ch == "," and depth == 0:
            ops.append(cur.strip())
            cur = ""
        else:
            cur += ch
    if cur.strip():
        ops.append(cur.strip())
    return ops


class Ins:
    __slots__ = ("text", "op", "dst", "src", "kind", "passes", "mA", "mB", "mC", "mD", "xdst", "xsrc", "target",
                 "states", "wide", "sdata", "comment", "waitspec", "dpp", "opsel")

    def __init__(self, text, xdst=(), xsrc=(), comment=None):
        self.text = text.strip()
        self.xdst = list(xdst)
        self.xsrc = list(xsrc)
        self.comment = comment
        self.passes = 0
        self.mA = self.mB = self.mC = self.mD = ()
        self.target = None
        self.states = 1
        self.wide = False
        self.sdata = ()
        self.waitspec = None
        self.dpp = False
        self.opsel = False
        t = self.text
        if t.endswith(":"):
            self.op, self.kind, self.dst, self.src, self.states = "label", "label", [], [], 0
            self.target = t[:-1]
            return
        if t.startswith(";") or t.startswith("."):
            self.op, self.kind, self.dst, self.src, self.states = "dir", "dir", [], [], 0
            return
        parts = t.split(None, 1)
        op = parts[0]
        rest = parts[1] if len(parts) > 1 else ""
        self.op = op
        ops = split_ops(rest)
        R = [regs_of(o) for o in ops]
        allr = [r for x in R for r in x]
        base = op
        for suf in ("_e32", "_e64", "_dpp", "_sdwa"):
            if base.endswith(suf):
                base = base[: -len(suf)]
        if op.startswith("v_mfma"):
            self.kind = "mfma"
            self.passes = 8 if "32x32" in op else 4
            self.mD, self.mA, self.mB, self.mC = R[0], R[1], R[2], R[3]
            self.dst, self.src = R[0], R[1] + R[2] + R[3]
        elif op.startswith("buffer_load") or op.startswith("global_load"):
            if re.search(r"\blds\b", rest) or "_lds_" in op:
                self.kind, self.dst, self.src = "dma", [], allr + [("x", "m0")]
            else:
                self.kind, self.dst, self.src = "vload", R[0], [r for x in R[1:] for r in x]
        elif op.startswith("buffer_wbl2"):
            self.kind, self.dst, self.src = "dma", [], []
        elif op.startswith("buffer_store") or op.startswith("global_store"):
            self.kind, self.dst, self.src = "vstore", [], allr
            self.sdata = R[0] if op.startswith("buffer") else R[1]
            self.wide = op.endswith("x3") or op.endswith("x4")
        elif op.startswith("buffer_atomic") or op.startswith("global_atomic"):
            self.kind, self.dst, self.src = "vstore", [], allr
        elif op.startswith("ds_read") or op.startswith("ds_bpermute") or op.startswith("ds_permute") or op.startswith("ds_swizzle"):
            self.kind, self.dst, self.src = "dsread", R[0], [r for x in R[1:] for r in x]
        elif op.startswith("ds_"):
            self.kind, self.dst, self.src = "dswrite", [], allr
            self.sdata = [r for x in R[1:] for r in x]
            self.wide = op.endswith("b128") or op.endswith("b96")
        elif op.startswith("s_load") or op.startswith("s_buffer_load") or op in ("s_memtime", "s_memrealtime"):
            self.kind, self.dst, self.src = "smem", R[0], [r for x in R[1:] for r in x]
        elif op.startswith("s_cbranch") or op == "s_branch":
            self.kind, self.dst, self.src = "branch", [], []
            self.target = ops[0]
            if "vcc" in op:
                self.src = [("x", "vcc")]
            if "exec" in op:
                self.src = [("x", "exec")]
        elif op == "s_endpgm":
            self.kind, self.dst, self.src = "end", [], []
        elif op == "s_waitcnt":
            self.kind, self.dst, self.src = "wait", [], []
            vm = re.search(r"vmcnt\((\d+)\)", rest)
            lg = re.search(r"lgkmcnt\((\d+)\)", rest)
            self.waitspec = (int(vm.group(1)) if vm else None, int(lg.group(1)) if lg else None)
        elif op == "s_nop":
            self.kind, self.dst, self.src = "nop", [], []
            self.states = int(ops[0], 0) + 1
        elif op in ("s_barrier", "s_setprio", "s_sleep", "s_sethalt"):
            self.kind, self.dst, self.src = "salu", [], []
        elif op.startswith("s_cmp") or op.startswith("s_bitcmp"):
            self.kind, self.dst, self.src = "salu", [], allr
        elif op.startswith("s_"):
            self.kind, self.dst, self.src = "salu", R[0], [r for x in R[1:] for r in x]
            if "saveexec" in op:
                self.dst = self.dst + [("x", "exec")]
                self.src = self.src + [("x", "exec")]
        elif op.startswith("v_"):
            self.kind = "trans" if base in TRANS else "valu"
            if base.startswith("v_dot"):
                self.kind = "dot"
            if base in ("v_permlane32_swap_b32", "v_permlane16_swap_b32", "v_swap_b32"):
                self.dst, self.src = R[0] + R[1], R[0] + R[1]
            elif base.startswith("v_cmpx"):
                raise ValueError("avoid v_cmpx")
            elif re.match(r"v_(add|sub|subrev|addc|subb|subbrev)_co_", base) or base == "v_mad_u64_u32":
                self.dst, self.src = R[0] + R[1], [r for x in R[2:] for r in x]
            elif base == "v_nop":
                self.dst, self.src = [], []
            else:
                self.dst, self.src = R[0], [r for x in R[1:] for r in x]
                if base.startswith(("v_fmac", "v_mac", "v_dot2c", "v_dot4c", "v_pk_fmac", "v_writelane")):
                    self.src = self.src + R[0]
                if base == "v_cndmask_b32" and len(ops) == 3:
                    self.src = self.src + [("x", "vcc")]
            if re.search(r"\b(quad_perm|row_shl|row_shr|row_ror|row_mirror|row_half_mirror|row_bcast|wave_shl|wave_shr|row_newbcast)", rest):
                self.dpp = True
                self.src = self.src + self.dst
            if "sdwa" in op or "dst_sel" in rest:
                self.opsel = True
                self.src = self.src + self.dst
            if re.search(r"op_sel:\[[01],[01],[01],1\]|op_sel:\[[01],[01],1\]", rest) and not base.startswith("v_pk"):
                self.opsel = True
                self.src = self.src + self.dst
        else:
            raise ValueError("unknown instruction: " + t)

    def is_valu(self):
        return self.kind in ("valu", "trans", "dot")


class Prog:
    def __init__(self):
        self.ins = []
        self.nlabel = 0

    def __call__(self, text, xdst=(), xsrc=(), comment=None):
        i = Ins(text, xdst, xsrc, comment)
        self.ins.append(i)
        return i

    def add(self, lst):
        for i in lst:
            if isinstance(i, str):
                self(i)
            else:
                self.ins.append(i)

    def label(self, name=None):
        if name is None:
            self.nlabel += 1
            name = f"L{self.nlabel}"
        return name

    def put(self, name):
        self(name + ":")

    def need(self, *res):
        i = Ins(";need", xsrc=res)
        i.kind = "need"
        self.ins.append(i)

    def comment(self, s):
        self("; " + s)


def need_ins(*res):
    i = Ins(";need", xsrc=res)
    i.kind = "need"
    return i


def _merge(a, b):
    if a is None:
        return {k: dict(v) for k, v in b.items()}
    out = {}
    for c in ("vm", "lg", "sm"):
        d = dict(a[c])
        for k, v in b[c].items():
            d[k] = min(d[k], v) if k in d else v
        out[c] = d
    return out


def _step(st, i):
    vm = lg = None
    touched = list(i.src) + list(i.xsrc)
    k = i.kind
    for r in touched:
        if r in st["vm"]:
            vm = st["vm"][r] if vm is None else min(vm, st["vm"][r])
        if r in st["lg"]:
            lg = st["lg"][r] if lg is None else min(lg, st["lg"][r])
        if r in st["sm"]:
            lg = 0
    for r in i.dst:
        if r in st["vm"] and k != "vload":
            vm = st["vm"][r] if vm is None else min(vm, st["vm"][r])
        if r in st["lg"] and k != "dsread":
            lg = st["lg"][r] if lg is None else min(lg, st["lg"][r])
        if r in st["sm"]:
            lg = 0
    if vm is not None:
        vm = min(vm, 63)
    if lg is not None:
        lg = min(lg, 15)
    _apply_wait(st, vm, lg)
    if k == "wait":
        _apply_wait(st, *i.waitspec)
    if k in ("vload", "vstore", "dma"):
        d = st["vm"]
        for r in list(d):
            d[r] += 1
            if d[r] > 63:
                del d[r]
        for r in list(i.dst) + list(i.xdst):
            d[r] = 0
        d["vm_any"] = 0
        if k == "vstore":
            d["stores"] = 0
    elif k in ("dsread", "dswrite"):
        d = st["lg"]
        for r in list(d):
            d[r] += 1
        for r in list(i.dst) + list(i.xdst):
            d[r] = 0
        d["ds_any"] = 0
    elif k == "smem":
        for r in i.dst:
            st["sm"][r] = 0
    return vm, lg


def _apply_wait(st, vm, lg):
    if vm is not None:
        d = st["vm"]
        for r in list(d):
            if d[r] >= vm:
                del d[r]
    if lg is not None:
        d = st["lg"]
        for r in list(d):
            if d[r] >= lg:
                del d[r]
        if lg == 0:
            st["sm"].clear()


def build_cfg(ins):
    labels = {i.target: n for n, i in enumerate(ins) if i.kind == "label"}
    succ = [[] for _ in ins]
    for n, i in enumerate(ins):
        if i.kind == "end":
            continue
        if i.kind == "branch":
            succ[n].append(labels[i.target])
            if i.op == "s_branch":
                continue
        if n + 1 < len(ins):
            succ[n].append(n + 1)
    return succ


def insert_waits(ins):
    succ = build_cfg(ins)
    n = len(ins)
    leaders = {0}
    for k, i in enumerate(ins):
        if i.kind == "label":
            leaders.add(k)
        if i.kind in ("branch", "end") and k + 1 < n:
            leaders.add(k + 1)
    leaders = sorted(leaders)
    bend = {b: (leaders[j + 1] if j + 1 < len(leaders) else n) for j, b in enumerate(leaders)}
    instate = {b: None for b in leaders}
    instate[0] = {"vm": {}, "lg": {}, "sm": {}}
    work = [0]
    waits = {}
    while work:
        b = work.pop(0)
        st = {c: dict(v) for c, v in instate[b].items()}
        for k in range(b, bend[b]):
            waits[k] = _step(st, ins[k])
        for s in succ[bend[b] - 1]:
            new = _merge(instate[s], st)
            if new != instate[s]:
                instate[s] = new
                if s not in work:
                    work.append(s)
    out = []
    for k, i in enumerate(ins):
        vm, lg = waits.get(k, (None, None))
        if vm is not None or lg is not None:
            t = "s_waitcnt"
            if vm is not None:
                t += f" vmcnt({vm})"
            if lg is not None:
                t += f" lgkmcnt({lg})"
            out.append(Ins(t, comment="auto"))
        if i.kind != "need":
            out.append(i)
    return out


def _req(p, c):
    need = 0
    pk, ck = p.kind, c.kind
    if pk in ("label", "dir", "nop", "wait", "branch", "need"):
        return 0
    pd = set(p.dst)
    cs = set(c.src)
    cd = set(c.dst)
    cvalu = ck in ("valu", "trans", "dot")
    if pk == "mfma":
        P = p.passes
        if ck == "mfma":
            if pd & set(c.mC):
                if list(c.mC) == list(p.mD) and c.passes == P:
                    need = max(need, 0)
                else:
                    need = max(need, P + 2)
            if pd & (set(c.mA) | set(c.mB)):
                need = max(need, P + 4)
            if pd & cd and not (list(c.mD) == list(p.mD) and c.passes == P):
                need = max(need, P + 4)
        else:
            if pd & (cs | cd):
                need = max(need, P + 4)
            if cvalu and set(p.mC) & cd:
                need = max(need, P - 1)
        return need
    if pk in ("valu", "trans", "dot"):
        vd = {r for r in pd if r[0] in "va"}
        sd = pd - vd
        if pk == "dot":
            if vd & (cs | cd):
                if c.op == p.op and not (vd & set(c.src[:2])) :
                    pass
                else:
                    need = max(need, 3)
        if ck == "mfma" and vd & cs:
            need = max(need, 2)
        if pk == "trans" and vd & cs:
            need = max(need, 1)
        if p.opsel and cvalu and vd & (cs | cd):
            need = max(need, 1)
        if cvalu and vd & cs:
            if c.op.startswith("v_permlane") or c.dpp:
                need = max(need, 2)
            if c.op.startswith("v_readlane") or c.op.startswith("v_readfirstlane"):
                need = max(need, 1)
        if sd & cs:
            if ck in ("vload", "vstore", "dma"):
                need = max(need, 5)
            elif cvalu:
                need = max(need, 4 if c.op.startswith(("v_readlane", "v_writelane")) else 2)
            elif ck == "mfma":
                need = max(need, 4)
            elif ck == "salu":
                need = max(need, 1)
        return need
    if pk in ("vstore", "dswrite") and p.wide:
        if set(p.sdata) & cd:
            need = max(need, 2 if (cvalu or ck == "mfma") else 1)
    if pk == "salu" and ("x", "m0") in pd and ck == "dma":
        need = max(need, 1)
    return need


MAXD = 13


def insert_nops(ins):
    out = []
    labelpos = {}
    branch_to = {}
    orig_labels = {i.target: n for n, i in enumerate(ins) if i.kind == "label"}
    srcs = {}
    for n, i in enumerate(ins):
        if i.kind == "branch":
            srcs.setdefault(i.target, []).append(n)
    pad = [0] * len(ins)

    def scan(n, dist, c, seen):
        worst = 0
        k = n - 1
        while k >= 0 and dist < MAXD:
            p = ins[k]
            if k != n - 1 or True:
                pass
            if p.kind == "end" or (p.kind == "branch" and p.op == "s_branch"):
                if not (seen_entry[0] == k):
                    break
            r = _req(p, c)
            if r > dist:
                worst = max(worst, r - dist)
            if p.kind == "label":
                for sidx in srcs.get(p.target, []):
                    if (sidx, dist) not in seen:
                        seen.add((sidx, dist))
                        old = seen_entry[0]
                        seen_entry[0] = sidx
                        worst = max(worst, scan(sidx + 1, dist, c, seen))
                        seen_entry[0] = old
            dist += p.states + pad[k]
            k -= 1
        return worst

    seen_entry = [-1]
    for n, c in enumerate(ins):
        if c.kind in ("label", "dir", "nop", "wait", "need"):
            continue
        w = scan(n, 0, c, set())
        pad[n] = w
    for n, c in enumerate(ins):
        w = pad[n]
        while w > 0:
            k = min(w, 16)
            out.append(Ins(f"s_nop {k - 1}"))
            w -= k
        out.append(c)
    return out


MEMK = ("vload", "vstore", "dma", "dsread", "dswrite")
VALK = ("valu", "trans", "dot")


def _clumpable(i):
    if i.kind in MEMK or i.kind == "need":
        return True
    return i.kind == "salu" and i.op not in ("s_barrier", "s_setprio", "s_sleep", "s_sethalt")


def _conflict(cl, y):
    ys, yd = set(y.src), set(y.dst)
    for x in cl:
        xs = set(x.src) | {r for r in x.xsrc if isinstance(r, tuple)}
        if set(x.dst) & (ys | yd) or xs & yd:
            return True
    return False


def memsched(ins, lim=12):
    ins = list(ins)
    out, i, n = [], 0, len(ins)
    moved = 0
    while i < n:
        if not _clumpable(ins[i]):
            out.append(ins[i]); i += 1
            continue
        j = i
        while j < n and _clumpable(ins[j]):
            j += 1
        cl = ins[i:j]
        first = next((k for k, x in enumerate(cl) if x.kind in MEMK), None)
        pre = sum(1 for x in cl[:first] if x.kind == "salu") if first is not None else 0
        if first is None or pre >= 2 or not out or out[-1].kind not in VALK:
            out += cl; i = j
            continue
        k = len(out)
        while k > 0 and out[k - 1].kind in VALK and len(out) - k < lim and not _conflict(cl, out[k - 1]):
            k -= 1
        if k > 0 and (out[k - 1].kind == "mfma" or out[k - 1].kind in MEMK):
            out[k:k] = cl; i = j; moved += 1
            continue
        k = j
        while k < n and ins[k].kind in VALK and k - j < lim and not _conflict(cl, ins[k]):
            k += 1
        if k < n and ins[k].kind == "mfma" and not _conflict(cl, ins[k]):
            out += ins[j:k + 1] + cl
            i = k + 1; moved += 1
            continue
        if k < n and k > j and _clumpable(ins[k]):
            e = k
            while e < n and _clumpable(ins[e]):
                e += 1
            if any(x.kind in MEMK for x in ins[k:e]):
                ins[i:k] = ins[j:k] + cl
                moved += 1
                continue
        out += cl; i = j
    return out


def hoist_waits(ins, lim=14):
    out = []
    for w in ins:
        if w.kind == "wait" and getattr(w, "comment", None) == "auto" and w.waitspec[0] is None and out and out[-1].kind != "mfma":
            k, cnt = len(out), w.waitspec[1]
            while k > 0 and len(out) - k < lim and (out[k - 1].kind in VALK or out[k - 1].kind in MEMK or
                                                  (out[k - 1].kind == "salu" and _clumpable(out[k - 1]))):
                if out[k - 1].kind in ("dsread", "dswrite"):
                    cnt -= 1
                k -= 1
            if k > 0 and out[k - 1].kind == "mfma" and cnt >= MINW and out[k].kind != "salu":
                out.insert(k, Ins(f"s_waitcnt lgkmcnt({cnt})"))
                continue
        out.append(w)
    for w in out:
        if w.kind == "wait":
            w.comment = None
    return out


MINW = 2
SCHED = True


def emit(prog):
    ins = prog.ins
    if SCHED:
        ins = memsched(ins)
    ins = insert_waits(ins)
    if SCHED:
        ins = hoist_waits(ins)
    else:
        for w in ins:
            if w.kind == "wait":
                w.comment = None
    ins = insert_nops(ins)
    lines = []
    for i in ins:
        if i.kind == "label":
            lines.append(i.text)
        else:
            lines.append("  " + i.text + (f"   ; {i.comment}" if i.comment else ""))
    return "\n".join(lines), ins


def interleave(main, fill, per=1, start=0):
    out = []
    f = list(fill)
    for n, m in enumerate(main):
        out.append(m)
        if n >= start:
            for _ in range(per):
                if f:
                    out.append(f.pop(0))
    out += f
    return out
```

```python
from k2_base import *

sW2B = "s3"

def wq_items(img, chunks=(0, 1, 2, 3), tag="wq"):
    cb = (1024, 2048, 0)[img]
    out = []
    for q in chunks:
        out += dma(sWQ, voQ, d1, [q * 128 * 3072 + cb + i * 16 * 3072 for i in range(2)], d2, img * 32768 + q * 8192, tag)
    return out

def wq_setup():
    return I([f"s_mul_i32 {d1}, {sW}, {32 * 3072}", f"s_lshl_b32 {d2}, {sM}, 6", f"s_add_u32 {d1}, {d1}, {d2}",
              f"s_lshl_b32 {d2}, {sW}, 11"])

vX0, vX1, XA = "v112", "v113", 120

def x0_items(h):
    out = []
    for j in range(4):
        it = []
        if j == 0:
            it += [f"s_xor_b32 {d1}, {t5}, {h}", f"s_lshl_b32 {d1}, {d1}, 7", f"s_add_u32 {d1}, {d1}, {t3}", f"s_add_u32 m0, {d3}, {SL + 4096 * (h & 3)}"]
        else:
            it.append(f"s_add_u32 {d1}, {d1}, 7168")
        it.append(Ins(f"buffer_load_dwordx4 {vX1 if j & 1 else vX0}, {sX}, {d1} offen offset:{j * 1024} lds", xdst=[f"x{h}"]))
        out.append(I(it))
    return out

def w0_items(h, imgs=(0, 1), tag=None):
    out = []
    for img in imgs:
        cb = (1024, 2048, 0)[img]
        out += dma(sWQ, voQ, d1, [cb], d2, img * 32768 + h * 4096, tag or f"kv{h}")
    out[0] = I([f"s_xor_b32 {d1}, {t5}, {h}", f"s_mul_i32 {d1}, {d1}, {64 * 3072}", f"s_add_u32 {d1}, {d1}, {t4}"]) + out[0]
    return out

def w2_piece(kks, mul, imm, tag, vb):
    goffs = []
    for kk in kks:
        s, i = kk // 7, kk % 7
        goffs += [(128 * i + 32 * s + 8 * h) * 1024 for h in range(2)]
    dm = dma(sW2, vo2, sW2B, goffs, d2, imm, tag)
    dm[0] = I(f"s_mul_i32 {d2}, {sW}, {mul}") + dm[0]
    rd = [I([f"s_mul_i32 {u0}, {sW}, {mul}", f"s_add_u32 {u0}, {u0}, {imm}", f"v_add_u32 {vb}, {u0}, {vTP}", need_ins(tag)])]
    for j, kk in enumerate(kks):
        for ct in range(2):
            rd.append(tr("a", (kk * 2 + ct) * 4, vb, 2048 * j + 512 * ct))
    return dm, rd

def w2_round(rnd, vb):
    k = {1: 13, 2: 0, 3: 18, 4: 23}[rnd]
    pieces = {1: [(5, 16384, 0)],
              2: [(8, 16384, 0), (4, 8192, R2), (1, 2048, SPARE)],
              3: [(4, 8192, R2), (1, 2048, SPARE)],
              4: [(4, 8192, SL), (1, 2048, SPARE)]}[rnd]
    dm, rd = [], []
    for n, (cnt, mul, imm) in enumerate(pieces):
        a, b = w2_piece(list(range(k, k + cnt)), mul, imm, f"w2r{rnd}_{n}", vb)
        dm += a; rd += b
        k += cnt
    return dm, rd

def wo_items():
    it = dma(sWO, vo2, d1, [j * 8 * 1024 for j in range(16)], d2, 0, "wo")
    it[0] = I([f"s_and_b32 {d1}, {sW}, 1", f"s_lshl_b32 {d1}, {d1}, 18", f"s_lshr_b32 {d2}, {sW}, 1", f"s_lshl_b32 {d2}, {d2}, 17",
               f"s_add_u32 {d1}, {d1}, {d2}", f"s_and_b32 {d2}, {sCT}, 14", f"s_lshl_b32 {d2}, {d2}, 6", f"s_add_u32 {d1}, {d1}, {d2}",
               f"s_lshl_b32 {d2}, {sW}, 14"]) + it[0]
    return it

def w1_items(part):
    if part == "AB":
        rows, n, g0, sh, imm = 128, 16, 0, 14, 0
    else:
        rows, n, sh = 64, 8, 13
        g0, imm = (128, R2) if part == "CD1" else (128 + 256 * 3584, SL)
    it = dma(sW1, vo1, d1, [g0 + j * 8 * 3584 for j in range(n)], d2, imm, "w1" + part)
    it[0] = I([f"s_mul_i32 {d1}, {sW}, {rows * 3584}", f"s_lshl_b32 {d2}, {sM}, 8", f"s_add_u32 {d1}, {d1}, {d2}",
               f"s_lshl_b32 {d2}, {sW}, {sh}"]) + it[0]
    return it


def asel(n):
    return I([f"v_lshrrev_b32 v{n}, 2, {vL}", f"v_xor_b32 v{n}, v{n}, {vL}", f"v_bfe_u32 v{n}, v{n}, 2, 1",
              f"v_add_u32 v{n}, -1, v{n}", f"v_and_b32 v{n}, 0x3f803f80, v{n}",
              f"v_mov_b32 v{n + 1}, v{n}", f"v_mov_b64 {V(n + 2, 2)}, {V(n, 2)}"])


def table_write(c, tab, va, bias=None):
    o = [f"v_cvt_pk_bf16_f32 v{c + 2}, v{c}, v{c}",
         f"v_lshlrev_b32 v{c + 1}, 16, v{c + 2}",
         f"v_sub_f32 v{c + 1}, v{c}, v{c + 1}",
         f"v_and_b32 v{c + 3}, 0xffff, v{c + 2}",
         f"v_cvt_pk_bf16_f32 v{c + 2}, v{c}, v{c + 1}"]
    if bias:
        o.append(f"v_lshl_or_b32 v{c + 3}, {bias}, 16, v{c + 3}")
    o.append(f"ds_write_b64 {va}, {V(c + 2, 2)} offset:{tab * 1024}")
    return [I(x) for x in o]


def table_addr(va):
    return I([f"s_lshr_b32 {u0}, {sW}, 1", f"s_lshl_b32 {u0}, {u0}, 9", f"s_and_b32 {u1}, {sW}, 1", f"s_lshl_b32 {u1}, {u1}, 3",
              f"s_add_u32 {u0}, {u0}, {u1}", f"s_add_u32 {u0}, {u0}, {TAB0}",
              f"v_and_b32 {va}, 0x1f0, {vL16}", f"v_add_u32 {va}, {u0}, {va}"])


def stats_finish(a, b, c, d, ex, mlp, r, ir):
    o = [f"v_mul_f32 {a}, {fc(-1.0 / 512)}, {a}",
         f"v_mul_f32 {c}, {a}, {a}",
         f"v_fma_f32 {b}, {b}, {u3}, -{c}",
         f"v_cvt_pk_bf16_f32 v{ex}, {a}, {a}",
         f"v_max_f32 {b}, 0, {b}",
         f"v_add_f32 {c}, {fc(EPS)}, {b}",
         f"v_rsq_f32 {r}, {c}",
         f"v_lshlrev_b32 {d}, 16, v{ex}",
         f"v_sub_f32 {d}, {a}, {d}"]
    o = [f"s_mov_b32 {u3}, {fc(1.0 / 512)}"] + o
    if mlp:
        o += [f"v_mul_f32 {b}, {b}, {r}", f"v_mul_f32 {b}, {b}, {r}", f"v_add_f32 {b}, {fc(EPS)}, {b}",
              f"v_rsq_f32 {b}, {b}", f"v_mov_b32 v{ex + 2}, v{ex}", f"v_mul_f32 {r}, {b}, {r}", f"v_rcp_f32 {ir}, {r}",
              f"v_cvt_pk_bf16_f32 v{ex + 1}, {d}, {ir}", f"v_and_b32 {a}, 0xffff0000, v{ex + 1}", f"v_sub_f32 {a}, {ir}, {a}",
              f"v_cvt_pk_bf16_f32 v{ex + 3}, {d}, {a}"]
    else:
        o += [f"v_mov_b32 v{ex + 2}, v{ex}", f"v_cvt_pk_bf16_f32 v{ex + 1}, {d}, {d}", f"v_mov_b32 v{ex + 3}, v{ex + 1}"]
    return [I(x) for x in o]


def x_loads(xoff, stoff, stv):
    setup = I([f"s_lshl_b32 {t1}, {sT}, 15", f"s_lshl_b32 {t2}, {sT}, 12", f"s_add_u32 {t2}, {t2}, {stoff}", f"v_lshlrev_b32 v{stv + 15}, 2, {vL}"])
    items = []
    for t in range(32):
        if t == opt("XSP", 16):
            for s in range(0, 16, 4):
                items.append(I([f"buffer_load_dword v{stv + s + e}, v{stv + 15}, {sWS}, {t2} offen offset:{(s + e) * 256} sc1" for e in range(4)]))
        o = []
        if t % 4 == 0:
            o.append(f"s_add_u32 {t0}, {t1}, {xoff + t * 1024}")
        o.append(f"buffer_load_dwordx4 {V(XF + 4 * t)}, {vL16}, {sWS}, {t0} offen offset:{(t % 4) * 1024} sc1")
        items.append(I(o))
    return setup, items


def attach(groups, items, start=0, per=1):
    items = list(items)
    for n in range(start, len(groups)):
        for _ in range(per):
            if items:
                groups[n] = groups[n] + I(items.pop(0))
    assert not items
    return groups


def stats_sum(stv):
    o = []
    for st in (8, 4, 2, 1):
        for i in range(st):
            o.append(f"v_add_f32 v{stv + i}, v{stv + i}, v{stv + i + st}")
    o += [f"v_mov_b32 v{stv + 1}, v{stv}", "s_nop 0", f"v_permlane32_swap_b32 v{stv}, v{stv + 1}"]
    return [I(x) for x in o]


def prologue():
    P("s_cmp_ge_u32 s2, 256")
    P("s_cbranch_scc1 L_end")
    P.add(tick("s.start"))
    P("s_load_dwordx16 s[64:79], s[0:1], 0")
    P("s_load_dwordx4 s[80:83], s[0:1], 64")
    P("s_load_dwordx2 s[84:85], s[0:1], 80")
    P(f"v_lshrrev_b32 {x0}, 6, v0")
    P("v_and_b32 v0, 63, v0")
    P(f"v_readfirstlane_b32 {sW}, {x0}")
    P("s_and_b32 s3, s2, 7")
    P(f"s_lshl_b32 {sC}, s3, 1")
    P("s_bfe_u32 s3, s2, 0x10003")
    P(f"s_or_b32 {sC}, {sC}, s3")
    P(f"s_lshr_b32 {sM}, s2, 4")
    P(f"v_lshlrev_b32 {vL16}, 4, {vL}")
    P(f"s_lshl_b32 {sT}, {sC}, 2")
    P(f"s_add_u32 {sT}, {sT}, {sW}")
    P(f"v_lshrrev_b32 {x0}, 3, {vL}")
    P(f"v_xor_b32 {x2}, {x0}, {vL}")
    P(f"v_and_b32 {x2}, 7, {x2}")
    P(f"v_lshlrev_b32 {x2}, 4, {x2}")
    P(f"v_lshl_add_u32 {vX0}, {x0}, 10, {x2}")
    P(f"v_xor_b32 {vX1}, 16, {vX0}")
    P(f"v_lshrrev_b32 {x1}, 5, {vL}")
    P(f"v_lshrrev_b32 {voQ}, 2, {vL}")
    P(f"v_mul_u32_u24 {voQ}, 3072, {voQ}")
    P(f"v_and_b32 {x0}, 0x30, {vL16}")
    P(f"v_add_u32 {voQ}, {voQ}, {x0}")
    P(f"s_lshl_b32 {t5}, s3, 1")
    P(f"s_and_b32 {t0}, {sM}, 1")
    P(f"s_or_b32 {t5}, {t5}, {t0}")
    P(f"s_bfe_u32 {t0}, {sM}, 0x20001")
    P(f"s_xor_b32 {t5}, {t5}, {t0}")
    ROT = opt("ROT", 0)
    if ROT == 0:
        P(f"s_mov_b32 {t5}, 0")
    elif ROT == 1:
        P(f"s_and_b32 {t5}, {t5}, 1")
        P(f"s_lshl_b32 {t5}, {t5}, 1")
    elif ROT == 2:
        P(f"s_lshl_b32 {t5}, {t5}, 1")
    elif ROT == 3:
        P(f"s_and_b32 {t5}, {t5}, 1")
    elif ROT == 4:
        P(f"s_lshr_b32 {t5}, {sM}, 1")
    elif ROT == 5:
        P(f"s_lshr_b32 {t5}, {sM}, 1")
        P(f"s_lshl_b32 {t0}, s3, 2")
        P(f"s_xor_b32 {t5}, {t5}, {t0}")
    elif ROT == 6:
        P(f"s_and_b32 {t5}, {sM}, 7")
    elif ROT == 7:
        P(f"s_lshr_b32 {t5}, {sM}, 2")
        P(f"s_lshl_b32 {t5}, {t5}, 1")
    elif ROT == 8:
        P(f"s_lshl_b32 {t5}, {t5}, 1")
        P(f"s_lshr_b32 {t0}, {sM}, 3")
        P(f"s_or_b32 {t5}, {t5}, {t0}")
    if opt("ROTX", 0):
        P(f"s_and_b32 {t0}, s2, 7")
        P(f"s_xor_b32 {t5}, {t5}, {t0}")
    P(f"s_lshl_b32 {t3}, {sT}, 15")
    P(f"s_mul_i32 {t4}, {sW}, {16 * 3072}")
    P(f"s_lshl_b32 {d2}, {sM}, 6")
    P(f"s_add_u32 {t4}, {t4}, {d2}")
    P(f"s_lshl_b32 {d2}, {sW}, 10")
    P(f"s_lshl_b32 {d3}, {sW}, 14")
    def srd(n, src, size):
        P(f"s_mov_b64 s[{n}:{n + 1}], s[{src}:{src + 1}]")
        P(f"s_mov_b32 s{n + 2}, {size}")
        P(f"s_mov_b32 s{n + 3}, 0x00020000")
    ini = init_l0()
    P.add(I(ini[0]))
    srd(28, 84, 64 * MB)
    srd(8, 64, 2 * MB)
    srd(12, 66, 512 * 1536 * 2)
    IP = [int(c) for c in OPT.get("IP", "11020")]
    assert sum(IP) == 4
    global INI
    INI = ini[1:5]
    P.add(I(ini[5:] + INI[:IP[0]] + x0_items(0) + w0_items(0) + INI[IP[0]:IP[0] + IP[1]] + x0_items(1) + w0_items(1) + INI[IP[0] + IP[1]:sum(IP[:3])]))
    INI = [INI[sum(IP[:3]):sum(IP[:4])], INI[sum(IP[:4]):]]
    P.add(tick("s.c0"))
    srd(44, 82, 256)
    P(f"s_getreg_b32 {sMODE}, hwreg(HW_REG_XCC_ID, 0, 4)")
    P(f"s_or_b32 {sMODE}, {sMODE}, 0x10")
    P.add(lead_init())
    srd(16, 68, 512 * 512 * 2)
    srd(20, 72, 512 * 1792 * 2)
    srd(24, 76, 1792 * 512 * 2)
    srd(32, 80, 2 * MB)
    srd(36, 78, 1024)
    srd(40, 74, 3584)
    P(f"v_bfe_u32 {x0}, {vL}, 2, 2")
    P(f"v_lshl_add_u32 {x0}, {x1}, 3, {x0}")
    P(f"v_lshlrev_b32 {x0}, 6, {x0}")
    P(f"v_bfe_u32 {x2}, {vL}, 4, 1")
    P(f"v_lshl_add_u32 {x0}, {x2}, 5, {x0}")
    P(f"v_and_b32 {x2}, 1, {vL}")
    P(f"v_lshl_add_u32 {x0}, {x2}, 4, {x0}")
    P(f"v_bfe_u32 {x2}, {vL}, 1, 1")
    P(f"v_lshl_add_u32 {vTR}, {x2}, 3, {x0}")
    P(f"v_add_u32 {vTR1}, 0x10000, {vTR}")
    P(f"v_lshl_add_u32 {vTP}, {x1}, 9, {vTR}")
    P(f"v_add_u32 {vTP1}, 0x10000, {vTP}")
    P(f"s_and_b32 {t0}, {sM}, 1")
    P(f"s_lshl_b32 {t0}, {t0}, 1")
    P(f"s_lshl_b32 {sTP}, {sC}, 2")
    P(f"s_add_u32 {sTP}, {sTP}, {t0}")
    P(f"s_lshr_b32 {t0}, {sW}, 1")
    P(f"s_add_u32 {sTP}, {sTP}, {t0}")
    P(f"s_and_b32 {u0}, {sM}, 14")
    P(f"s_and_b32 {u1}, {sW}, 1")
    P(f"s_add_u32 {sCT}, {u0}, {u1}")
    P(f"s_mul_i32 {sW2B}, {t0}, {896 * 1024}")
    P(f"s_lshl_b32 {t0}, {u1}, 14")
    P(f"s_add_u32 {sW2B}, {sW2B}, {t0}")
    P(f"s_lshl_b32 {u0}, {u0}, 6")
    P(f"s_add_u32 {sW2B}, {sW2B}, {u0}")
    P(f"v_bfe_u32 {x0}, {vL}, 2, 3")
    P(f"v_and_b32 {x2}, 0x30, {vL16}")
    P(f"v_mul_u32_u24 {vo1}, 3584, {x0}")
    P(f"v_lshl_add_u32 {vo2}, {x0}, 10, {x2}")
    P(f"v_add_u32 {vo1}, {vo1}, {x2}")
    P(f"v_lshl_add_u32 {vo1}, {x1}, 6, {vo1}")
    P(f"v_xor_b32 {x0}, {u1}, {x1}")
    P(f"v_lshl_add_u32 {vo2}, {x0}, 6, {vo2}")
    P(f"v_and_b32 {x0}, 31, {vL}")
    P(f"v_lshlrev_b32 {x2}, 2, {x1}")
    P(f"v_sub_u32 {x0}, {x0}, {x2}")
    for r in range(16):
        P(f"v_cmp_le_i32_e64 {sMASK(r)}, {(r & 3) + 8 * (r >> 2)}, {x0}")
    P(f"v_mov_b32 {x0}, 0xffff")
    P(f"v_mov_b32 {x2}, 0xffff0000")
    for d in range(8):
        P(f"v_cndmask_b32_e64 v16, 0, {x0}, {sMASK(2 * d)}")
        P(f"v_cndmask_b32_e64 v17, 0, {x2}, {sMASK(2 * d + 1)}")
        P(f"v_or_b32 v16, v16, v17")
        P(f"v_accvgpr_write_b32 a{240 + d}, v16")


def init_kv(L, tag):
    it = []
    if L:
        it.append(I(f"s_add_u32 {u2}, {u2}, {LSTRIDE}"))
    for j in range(4):
        it.append([Ins(f"buffer_store_dwordx4 a[236:239], {vL16}, {sWS}, {u2} offen offset:{1024 * j} sc1", xdst=[tag])])
    return it


def init_l0():
    it = [I([f"v_accvgpr_write_b32 a{236 + i}, -1" for i in range(4)] +
            [f"s_lshl_b32 {u2}, {sT}, 4", f"s_add_u32 {u2}, {u2}, {sM}", f"s_lshl_b32 {u2}, {u2}, 12", f"s_add_u32 {u2}, {u2}, {LB(0) + KV_O}",
             "v_mov_b32 v20, 0", f"s_lshl_b32 {u0}, {sC}, 4", f"s_add_u32 {u0}, {u0}, {sM}", f"s_lshl_b32 {sFP}, {u0}, 7", f"s_add_u32 {sFP}, {sFP}, {MBOX}",
             f"s_lshl_b32 {u0}, {u0}, 2", f"s_add_u32 {sFA}, {u0}, {sW}",
             f"s_lshl_b32 {t1}, {sC}, 9", f"s_lshl_b32 {u0}, {sM}, 2", f"s_add_u32 {t1}, {t1}, {u0}", f"s_add_u32 {t1}, {t1}, {ARR}",
             f"v_lshrrev_b32 v21, 4, {vL}", f"v_and_b32 {vPO}, 15, {vL}", f"v_lshlrev_b32 {vPO}, 2, {vPO}", f"v_lshl_add_u32 v22, v21, 7, {vPO}",
             f"s_or_b32 {t2}, {sM}, {sW}"])]
    it += init_kv(0, "init")
    lsk = P.label()
    it.append(I([f"s_cmp_lg_u32 {t2}, 0", f"s_cbranch_scc1 {lsk}", f"buffer_store_dword v20, v22, {sWS}, {t1} offen sc1", lsk + ":"]))
    it.append([Ins(f"buffer_store_dword v20, off, {sWS}, {sFP} sc1", xdst=["init"])])
    return it


def lead_init():
    lsk = P.label()
    return I([f"s_cmp_lg_u32 {t2}, 0", f"s_cbranch_scc1 {lsk}",
              f"s_min_u32 {u0}, {sC}, 2", f"v_cmp_ge_u32 vcc, {u0}, v21", f"v_cndmask_b32 {vPO}, {vPO}, v22, vcc",
              f"v_lshlrev_b32 v21, 2, {vL}", f"v_lshlrev_b32 v22, 7, {vL}", f"s_lshl_b32 {u0}, {sC}, 8", f"s_add_u32 {u0}, {u0}, {FPACK}", f"s_lshl_b32 {u1}, {sC}, 13",
              f"buffer_store_dword v20, v21, {sWS}, {u0} offen sc1", f"buffer_store_dword v20, v22, {sWS}, {u1} offen sc1", lsk + ":"])


def arrive(vd, so):
    return ["s_mov_b64 exec, 7", f"buffer_store_dword {vd}, {vPX}, {sWS}, {so} offen sc1", "s_mov_b64 exec, -1"]


def misc_l0():
    it = []
    it.append(I([f"v_and_b32 v21, 31, {vL}", f"v_lshrrev_b32 v22, 5, {vL}", "v_lshlrev_b32 v21, 10, v21", "v_lshlrev_b32 v22, 4, v22",
                 "v_add_u32 v21, v21, v22",
                 f"s_lshl_b32 {u0}, {sTP}, 15", f"s_lshl_b32 {u1}, {sCT}, 6", f"s_add_u32 {u0}, {u0}, {u1}"]))
    it.append(I(f"buffer_load_dwordx4 a[224:227], v21, {sX}, {u0} offen"))
    it.append(I(f"buffer_load_dwordx4 a[228:231], v21, {sX}, {u0} offen offset:32"))
    it.append(I(f"buffer_load_dwordx4 a[248:251], v22, {sB2}, {u1} offen"))
    it.append(I(f"buffer_load_dwordx4 a[252:255], v22, {sB2}, {u1} offen offset:32"))
    return it


def touch(srd, total, vt, va, st=u0, sh=7):
    share, pb = total // 128, 64 << sh
    it = [I([f"s_lshr_b32 {st}, s2, 3", f"s_lshl_b32 {st}, {st}, 2", f"s_add_u32 {st}, {st}, {sW}", f"s_mul_i32 {st}, {st}, {share}",
             f"v_lshlrev_b32 {va}, {sh}, {vL}"])]
    pos, base = 0, 0
    while pos < share:
        a = min(pos, share - pb)
        assert a >= 0
        o = []
        if a - base >= 4096:
            o.append(f"s_add_u32 {st}, {st}, {a - base}")
            base = a
        o.append(f"buffer_load_dword {vt}, {va}, {srd}, {st} offen offset:{a - base}")
        it.append(I(o))
        pos += pb
    it[1] = it[0] + it[1]
    return it[1:]


def touch_wq(vt, st):
    return [I([f"s_lshr_b32 {st}, s2, 3", f"s_mul_i32 {st}, {st}, {16 * 3072}", f"s_lshl_b32 {d0}, {sW}, 8", f"s_add_u32 {st}, {st}, {d0}",
               f"buffer_load_dword {vt}, {voQ}, {sWQ}, {st} offen"]),
            I(f"buffer_load_dword {vt}, {voQ}, {sWQ}, {st} offen offset:128")]


aK, aV, aQ, RING, STV, EX, TABS = 16, 32, 48, 64, 96, 112, 116
HB = XF


def kv_epilogue(L):
    r = x0
    it = []
    for i in range(16):
        it.append(f"v_mul_f32 v{aK + i}, v{aK + i}, {r}")
    for i in range(8):
        it.append(f"v_cvt_pk_bf16_f32 v{aK + i}, v{aK + 2 * i}, v{aK + 2 * i + 1}")
    it.append([f"s_lshl_b32 {u0}, {sT}, 4", f"s_add_u32 {u0}, {u0}, {sM}", f"s_lshl_b32 {u0}, {u0}, 12", f"s_add_u32 {u0}, {u0}, {LB(L) + KV_O}"])
    it.append(f"buffer_store_dwordx4 {V(aK)}, {vL16}, {sWS}, {u0} offen sc1")
    it.append(f"buffer_store_dwordx4 {V(aK + 4)}, {vL16}, {sWS}, {u0} offen offset:2048 sc1")
    for i in range(16):
        it.append(f"v_mul_f32 v{aV + i}, v{aV + i}, v{STV + i}")
    for i in range(8):
        it.append(f"v_cvt_pk_bf16_f32 v{aV + i}, v{aV + 2 * i}, v{aV + 2 * i + 1}")
    it.append(f"buffer_store_dwordx4 {V(aV)}, {x2}, {sWS}, {u0} offen offset:1024 sc1")
    it.append(f"buffer_store_dwordx4 {V(aV + 4)}, {x2}, {sWS}, {u0} offen offset:1536 sc1")
    it.append([f"s_mul_i32 {u1}, {sW}, {PITCH}", f"s_add_u32 {u1}, {u1}, {SL + 8 * PITCH}"])
    it.append(f"v_add_u32 {x1}, {u1}, {vL16}")
    it.append(f"v_add_u32 {x2}, {u1}, {x2}")
    it.append(f"ds_write_b128 {x1}, {V(aK)}")
    it.append(f"ds_write_b128 {x1}, {V(aK + 4)} offset:2048")
    it.append(f"ds_write_b128 {x2}, {V(aV)} offset:1024")
    it.append(f"ds_write_b128 {x2}, {V(aV + 4)} offset:1536")
    it.append(f"v_mul_f32 {r}, {fc(0.25 * LOG2E)}, {r}")
    return [I(x) for x in it]


def r_bcast():
    it = [[f"s_lshl_b32 {u0}, {sW}, 7", f"s_add_u32 {u0}, {u0}, {RBC}"],
          f"v_and_b32 {x1}, 31, {vL}", f"v_lshl_add_u32 {x1}, {x1}, 2, {u0}", f"ds_write_b32 {x1}, {x0}",
          f"v_lshrrev_b32 {x2}, 5, {vL}", f"v_lshl_add_u32 {x1}, {x2}, 4, {u0}"]
    for g in range(4):
        it.append(f"ds_read_b128 {V(STV + 4 * g)}, {x1} offset:{32 * g}")
    it += [f"v_lshlrev_b32 {x2}, 8, {x2}", f"v_and_b32 {x1}, 0xf0, {vL16}", f"v_add_u32 {x2}, {x2}, {x1}",
           f"v_bfe_u32 {x1}, {vL}, 4, 1", f"v_lshl_add_u32 {x2}, {x1}, 11, {x2}"]
    return [I(x) for x in it]


def kv_groups(ts, D=3, lo=0, hi=32):
    g = []
    for k in ts:
        it = []
        t = k + D
        if lo <= t < hi:
            it += tr1(RING + 8 * (t % 4), R0 + t * 1024) + tr1(RING + 8 * (t % 4) + 4, R1 + t * 1024)
        it += I([f"{MF} {V(aK, 16)}, {V(RING + 8 * (k % 4))}, {V(XF + 4 * k)}, {V(aK, 16) if k else 0}",
                 f"{MF} {V(aV, 16)}, {V(XF + 4 * k)}, {V(RING + 8 * (k % 4) + 4)}, {V(aV, 16) if k else 0}"])
        g.append(it)
    return g


def kv_pre(t0_, n=3):
    o = []
    for t in range(t0_, t0_ + n):
        o += tr1(RING + 8 * (t % 4), R0 + t * 1024) + tr1(RING + 8 * (t % 4) + 4, R1 + t * 1024)
    return o


def tab_reads(js, va):
    return [I(f"v_add_u32 {va}, {TAB0}, {vL16}")] + [I(f"ds_read_b128 {V(TABS + 4 * j)}, {va} offset:{1024 * j}") for j in js]


def halo_setup(L):
    o = []
    for i, (back, sk, sv) in enumerate(((8, d1, d2), (4, d3, t5))):
        o += [f"s_sub_u32 {u0}, {sT}, {back}", f"s_cselect_b32 {u0}, 0, {u0}", f"s_cselect_b32 {u1}, 0x200, -1", f"s_cselect_b32 {u2}, {OOB}, 0",
              f"s_lshl_b32 {u0}, {u0}, 4", f"s_add_u32 {u0}, {u0}, {sM}", f"s_lshl_b32 {u0}, {u0}, 12", f"s_add_u32 {sk}, {u0}, {LB(L) + KV_O}",
              f"s_add_u32 {sv}, {sk}, {u2}", f"v_and_b32 v{STV + i}, {u1}, {vL16}"]
    return [I(o)]


def halo_loads():
    o = []
    for i, (sk, sv) in enumerate(((d1, d2), (d3, t5))):
        for j in range(4):
            va, so = (f"v{STV + i}", sk) if j % 2 == 0 else (vL16, sv)
            o.append(f"buffer_load_dwordx4 {V(HB + 16 * i + 4 * j)}, {va}, {sWS}, {so} offen offset:{1024 * j} sc1")
    return [I(x) for x in o]


def lead_try(chk, iss, ta, tb, final=False):
    lsk, lag, lp = P.label(), P.label(), P.label()
    o = [f"s_cmp_lg_u32 {t2}, 0", f"s_cbranch_scc1 {lsk}"]
    if final:
        o += [f"s_mov_b32 {sCNT}, 30000"]
    if chk:
        o += [f"v_accvgpr_read_b32 {ta}, {chk}"] + ([lp + ":"] if final else [])
        o += [f"v_cmp_eq_u32 vcc, 0, {ta}", f"s_cbranch_vccnz {lag}",
              f"v_cmp_ne_u32 vcc, {sMODE}, {ta}", f"v_lshlrev_b32 {tb}, 7, {vL}", f"s_lshl_b32 {u1}, {sC}, 2", f"s_and_b32 {u0}, vcc_lo, 0xffff", f"s_cselect_b32 {t2}, 1, 2",
              f"v_mov_b32 {ta}, {t2}", "s_mov_b64 exec, 0xffff", f"buffer_store_dword {ta}, {tb}, {sWS}, {sFP} offen sc1",
              "s_mov_b64 exec, 1", f"buffer_store_dword {ta}, off, {sDBG}, {u1} sc1", "s_mov_b64 exec, -1"]
        if final:
            OUTL.extend(I([lag + ":", f"v_mov_b32 {ta}, {sMODE}", f"v_lshrrev_b32 {tb}, 7, {vPO}", f"v_sub_u32 {tb}, {sC}, {tb}", f"v_lshlrev_b32 {tb}, 2, {tb}"] + arrive(ta, t1) +
                          [f"buffer_load_dword {ta}, {vPO}, {sWS}, {t1} offen sc1", f"buffer_load_dword {tb}, {tb}, {sDBG}, 0 offen sc1",
                           f"v_or_b32 {ta}, {ta}, {tb}", f"s_sub_u32 {sCNT}, {sCNT}, 1", f"s_cbranch_scc0 {lp}", "s_endpgm"]))
        elif iss:
            o += [f"s_branch {lsk}", lag + ":"]
        else:
            o += [lag + ":"]
    if iss:
        o += [f"buffer_load_dword {iss}, {vPO}, {sWS}, {t1} offen sc1"]
    return I(o + [lsk + ":"])


def handshake_issue():
    return [I([f"s_buffer_load_dword {t3}, {sWS}, {sFP} glc"])]


def handshake_check():
    b, c = f"v{STV + 3}", f"v{STV + 4}"
    ls, lr, lp = P.label(), P.label(), P.label()
    l2 = P.label()
    OUTL.extend(I([ls + ":", f"s_mov_b32 {sCNT}, 30003", f"v_mov_b32 {b}, {sMODE}", lp + ":", f"s_buffer_load_dword {t3}, {sWS}, {sFP} glc",
                   f"s_cmp_lg_u32 {t3}, 0", f"s_cbranch_scc1 {lr}",
                   f"s_and_b32 {u0}, {sCNT}, 3", f"s_or_b32 {u0}, {u0}, {sW}", f"s_cbranch_scc1 {l2}"] + arrive(b, t1) +
                  [l2 + ":", f"s_sub_u32 {sCNT}, {sCNT}, 1", f"s_cbranch_scc0 {lp}", "s_endpgm"]))
    o = [f"s_cmp_eq_u32 {t3}, 0", f"s_cbranch_scc1 {ls}", lr + ":"]
    it = [I(o)]
    o = [f"s_cmp_eq_u32 {t3}, 1"]
    if OPT.get("SLOW"):
        o.append("s_cmp_eq_u32 0, 0")
    o += [f"s_cselect_b32 {sMODE}, 0, 1", f"s_cselect_b32 {u0}, 7, {opt('FSH', 2)}", f"s_cselect_b32 {u1}, 0, {FPACK if opt('FSH', 2) == 2 else 0}",
          f"s_lshl_b32 {sFA}, {sFA}, {u0}", f"s_add_u32 {sFA}, {sFA}, {u1}",
          f"s_lshl_b32 {sFP}, {sC}, 6", f"s_lshl_b32 {sFP}, {sFP}, {u0}", f"s_add_u32 {sFP}, {sFP}, {u1}"]
    it.append(I(o))
    it.append(I([f"s_lshr_b32 {u1}, {sW}, 1", f"s_lshl_b32 {u1}, {u1}, 2", f"s_and_b32 {u2}, {sW}, 1", f"s_lshl_b32 {u3}, {u2}, 1", f"s_add_u32 {u1}, {u1}, {u3}",
                 f"v_and_b32 {b}, 14, {vL}", f"v_and_b32 {c}, 1, {vL}", f"v_lshl_add_u32 {b}, {b}, 2, {c}", f"v_add_u32 {b}, {u1}, {b}",
                 f"v_lshlrev_b32 {vPX}, {u0}, {b}"]))
    it.append(I([f"s_lshl_b32 {u2}, {u2}, 5", f"s_and_b32 {u1}, {sTP}, 3", f"s_add_u32 {u1}, {u1}, {u2}",
                 f"v_and_b32 {b}, 7, {vL}", f"v_lshl_add_u32 {b}, {b}, 2, {u1}", f"v_lshlrev_b32 {vPO}, {u0}, {b}"]))
    it.append(I([f"s_lshr_b32 {u1}, {sW}, 1", f"s_mul_i32 {u1}, {u1}, 28", f"s_and_b32 {u2}, {sTP}, 2", f"s_add_u32 {u1}, {u1}, {u2}",
                 f"v_bfe_u32 {b}, {vL}, 1, 3", f"v_min_u32 {b}, 6, {b}", f"v_lshl_add_u32 {b}, {b}, 2, {c}", f"v_add_u32 {b}, {u1}, {b}",
                 f"v_lshlrev_b32 {vPH}, {u0}, {b}"]))
    return it


def phase1(L):
    ext = I([f"{MF} {V(aK, 16)}, {V(TABS)}, {V(EX)}, {V(aK, 16)}", f"{MF} {V(aV, 16)}, {V(EX)}, {V(TABS + 4)}, {V(aV, 16)}"])
    D = 6
    qg = []
    for k in range(32):
        it = tr1(RING + 4 * ((k + D) % 8), R2 + (k + D) * 1024) if k + D < 32 else []
        qg.append(it + I(f"{MF} {V(aQ, 16)}, {V(RING + 4 * (k % 8))}, {V(XF + 4 * k)}, {V(aQ, 16) if k else 0}"))
    qpre = []
    for t in range(D):
        qpre += tr1(RING + 4 * t, R2 + t * 1024)
    HL = opt("HL", 20)
    if L == 0:
        AS, S1, S2, CK, CV, CF = 124, 96, 100, 104, 108, 48
        P.add(asel(AS))
        for i in range(4):
            P(f"v_mov_b32 v{S2 + i}, 0")
        P(f"v_lshrrev_b32 {x0}, 5, {vL}")
        P(f"v_bfe_u32 {x1}, {vL}, 3, 1")
        P(f"v_xor_b32 {x0}, {x0}, {x1}")
        P(f"v_xor_b32 {x0}, {x0}, {vL}")
        P(f"v_and_b32 {x0}, 7, {x0}")
        P(f"v_and_b32 {x1}, 31, {vL}")
        P(f"v_lshlrev_b32 {x1}, 7, {x1}")
        P(f"v_lshl_add_u32 {x0}, {x0}, 4, {x1}")
        P(f"s_add_u32 {t0}, {d3}, {SL}")
        P(f"v_add_u32 v{XA}, {t0}, {x0}")
        for k in range(1, 4):
            P(f"v_xor_b32 v{XA + k}, {32 * k}, v{XA}")
        P(f"v_add_u32 {x1}, {d2}, {vTR}")
        P.add(table_addr(x2))
        P(f"v_mov_b32 v118, {sMODE}")
        P(f"v_mul_u32_u24 {vPX}, 640, {vL}")
        P.add(tick("s.setup"))
        TS = opt("TS", 5)
        tw2 = touch(sW2, 1792 * 1024, "a232", vPH, t0, TS)
        tw2b = touch(sW2, 1792 * 1024, "a232", "v119", t0, TS)
        TW = [int(c, 16) for c in OPT.get("TW", "000000003")]
        I1 = [int(c) for c in OPT.get("I1", "001111000")]
        i1 = init_kv(1, "init1")
        i1 = [i1[0] + i1[1]] + i1[2:]
        wq = sum((w0_items(h, (2,), "wq") for h in range(8)), [])
        WQ1 = opt("WQ1", 5)
        strm = {h: x0_items(h) + w0_items(h) for h in range(2, 8)}
        strm.update({8: wq[:WQ1], 9: wq[WQ1:], 10: []})
        strm[2] = INI[0] + strm[2]
        strm[3] = INI[1] + strm[3]
        if opt("TQ", 4):
            strm[opt("TQ", 4)] += touch_wq("a232", u0)
        for n in range(2, 11):
            strm[n] = i1[:I1[n - 2]] + strm[n] + tw2[:TW[n - 2]]
            tw2, i1 = tw2[TW[n - 2]:], i1[I1[n - 2]:]
        assert not i1
        SIG = 3 if INI[1] else (2 if INI[0] else opt("SIG", 1))
        LT0 = opt("LT0", SIG + 1)
        def sync(h):
            o = [need_ins(f"x{h}")]
            o += [f"ds_read_b128 {V(XF + 16 * h + 4 * t)}, v{XA + t} offset:{4096 * (h & 3)}" for t in range(4)]
            if h >= LT0:
                o += lead_try(f"a{233 + (h & 1)}" if h >= LT0 + 2 else None, f"a{233 + (h & 1)}", "v114", "v115")
            o += [need_ins(f"kv{h}")] + tr("v", CF + 8 * (h & 1), x1, R0 + 4096 * h) + tr("v", CF + 8 * (h & 1) + 4, x1, R1 + 4096 * h)
            if h >= SIG and (h - SIG) % opt("SIGS", 2) == 0:
                lsk = P.label()
                o += [f"s_cmp_lg_u32 {sW}, {1 + (h >> 1) % 3}", need_ins("init"), "s_barrier", f"s_cbranch_scc1 {lsk}"] + arrive("v118", t1) + [lsk + ":"]
            else:
                o += ["s_barrier"]
            return I(o) + tick(f"s.b{h}")
        def stats(h):
            o = []
            for t in range(4 * h, 4 * h + 4):
                o.append(I([f"v_dot2c_f32_bf16 v{S2 + j}, v{XF + 4 * t + j}, v{XF + 4 * t + j}" for j in range(4)] +
                           [f"{MF16} {V(S1)}, {V(AS)}, {V(XF + 4 * t)}, {V(S1) if t else 0}"]))
            return [I([f"{MF16} {V(CK)}, {V(AS)}, {V(CF + 8 * (h & 1))}, {V(CK) if h else 0}",
                       f"{MF16} {V(CV)}, {V(AS)}, {V(CF + 8 * (h & 1) + 4)}, {V(CV) if h else 0}"]) + o[0], o[1] + o[2], o[3]]
        P.add(sync(0))
        P.add(kv_pre(0))
        P.add(I(spread(stats(0), strm[2], 0.0, 0.7)))
        g = kv_groups(range(32))
        for i in range(8):
            lt = strm[i + 3]
            if i < 7:
                g[4 * i] += sync(i + 1)
                n = (len(lt) + 2) // 3
                for e in range(3):
                    g[4 * i + 1 + e] += I(lt[n * e:n * e + n]) + stats(i + 1)[e]
            else:
                attach(g, lt, 28, (len(lt) + 3) // 4)
        fin = [f"v_add_f32 v{S2}, v{S2}, v{S2 + 1}", f"v_add_f32 v{S2 + 2}, v{S2 + 2}, v{S2 + 3}", f"v_add_f32 v{S2}, v{S2}, v{S2 + 2}",
               f"v_mov_b32 v{S2 + 1}, v{S2}", f"v_permlane32_swap_b32 v{S2}, v{S2 + 1}", f"v_add_f32 v{S2}, v{S2}, v{S2 + 1}"]
        fin = [I(x) for x in fin] + stats_finish(f"v{S1}", f"v{S2}", f"v{S2 + 1}", f"v{S2 + 2}", EX, False, x0, None)
        P.add(I(g[:26]))
        fill = table_write(CK, 0, x2) + table_write(CV, 1, x2) + [(2, lead_try("a233", None, "v114", "v115"))] + [(2, x) for x in fin[:6]] + [barrier()] + tab_reads([0, 1], x2) + fin[6:] + r_bcast()
        P.add(weave(g[26:], fill))
        P.add(tick("s.kv"))
        P.need("init1")
        P.add(ext)
        P.add(I(kv_epilogue(0)))
        P.add(lead_try("a234", None, "v116", "v117", True))
        P.add(tick("0.kv"))
        CQ = 104
        P(f"v_add_u32 {x1}, {d2}, {vTR1}")
        P.add(table_addr(x2))
        P.need("wq")
        for h in range(8):
            P.add(tr("v", 16 + 4 * h, x1, 4096 * h))
        P("s_barrier")
        P.add(qpre)
        for j in range(8):
            P(f"{MF16} {V(CQ)}, {V(AS)}, {V(16 + 4 * j)}, {V(CQ) if j else 0}")
        tw2 = tw2b[len(tw2b) - len(tw2):]
        if tw2:
            tw2[0] = I(f"v_lshlrev_b32 v119, {TS}, {vL}") + tw2[0]
        fill = [(1, x) for x in table_write(CQ, 2, x2)] + [(opt("HSI", 6), x) for x in handshake_issue()] + [(8, barrier())] + tab_reads([2], x2) \
            + [(opt("HSC", 16), x) for x in handshake_check()] + halo_setup(0) + [(HL, x) for x in halo_loads()] + misc_l0()
        if opt("QT", 0):
            fill += tw2 + touch(sWO, 512 * 1024, "a232", "v119", t0, min(TS, 6))
        P.add(tick("0.qs"))
        P.add(weave(qg, fill))
    else:
        P.add(wq_setup())
        P.add(I(wq_items(2)))
        P.add(I(tab_reads([0, 1, 2], x2)))
        P.add(kv_pre(0))
        xs, xi = x_loads(LB(1) + XIN_O, LB(1) + ST2_O, STV)
        NB = opt("NB", 14)
        P.add(xs)
        P.add(poll(vPX, x1, 8))
        P.add(tick("1.pollx"))
        P.add(I(xi[:NB]))
        P.add(tick("1.xiss"))
        s = [f"v{STV + i}" for i in range(4)]
        fill = stats_sum(STV) + stats_finish(s[0], s[1], s[2], s[3], EX, False, x0, None) + r_bcast()
        P.add(weave(attach(kv_groups(range(32)), xi[NB:]), [(opt("XSP", 16) + 2, x) for x in fill]))
        P.add(ext)
        P.add(tick("1.kv"))
        P.add(barrier("wq"))
        P.add(qpre)
        fill = [(1, x) for x in kv_epilogue(1)] + halo_setup(1) + [(HL, x) for x in halo_loads()]
        P.add(weave(qg, fill))
    P(f"{MF} {V(aQ, 16)}, {V(TABS + 8)}, {V(EX)}, {V(aQ, 16)}")
```

```python
import sys, struct, re
from asmgen import Prog, Ins, emit, need_ins

KN = "interleave_layers__sliding_block__mixer_channel_mlp__prompt_kernel"
OPT = dict(a.split("=") for a in sys.argv[2:])
STOP = OPT.get("STOP")
PROF = int(OPT.get("PROF", 0))
def opt(name, default): return int(OPT.get(name, default))

MB = 1 << 20
KV_O, O_O, X1_O, XIN_O, ST1_O, ST2_O, H_O = 0, 4 * MB, 6 * MB, 8 * MB, 10 * MB, 10 * MB + 256 * 1024, 11 * MB
LSTRIDE = 20 * MB
def LB(L): return MB + L * LSTRIDE
FPACK = 131072
MBOX = FPACK + 8192
ARR = FPACK + 65536
OOB = 0x40000000
R0, R1, R2, SL, PITCH = 0, 32768, 65536, 98304, 4112
SCR3, SPARE, TAB0, RBC = 131072, 147648, 156160, 163328

sC, sM, sW, sCNT = "s4", "s5", "s6", "s7"
sX, sWQ, sWO, sW1, sW2, sWS, sOUT, sB2, sB1, sDBG = [f"s[{8 + 4 * i}:{11 + 4 * i}]" for i in range(10)]
sT, sTP, sCT, sMODE, sFA, sFP = "s48", "s49", "s50", "s51", "s52", "s53"
t0, t1, t2, t3, t4, t5 = "s54", "s55", "s56", "s57", "s58", "s59"
d0, d1, d2, d3 = "s60", "s61", "s62", "s63"
u0, u1, u2, u3 = "s96", "s97", "s98", "s99"
def sMASK(r): return f"s[{64 + 2 * r}:{65 + 2 * r}]"
vL, vL16, vTR, vTR1, vTP, vTP1, vPX, vPO, vPH, vPROF, voQ, vo1, vo2 = [f"v{i}" for i in range(13)]
x0, x1, x2 = "v13", "v14", "v15"
XF = 128

def f2u(x): return struct.unpack("<I", struct.pack("<f", x))[0]
def fc(x): return hex(f2u(x))
def V(n, k=4): return f"v[{n}:{n + k - 1}]" if k > 1 else f"v{n}"
def A(n, k=4): return f"a[{n}:{n + k - 1}]" if k > 1 else f"a{n}"
def R(f, n, k=4): return f"{f}[{n}:{n + k - 1}]"

PL = opt("PL", 0)
PMOD = OPT.get("PMOD", "")
LOG2E = 1.4426950408889634
EPS = 1e-5
P = Prog()
MF = "v_mfma_f32_32x32x16_bf16"
MF16 = "v_mfma_f32_16x16x32_bf16"
OUTL = []


def I(x):
    if isinstance(x, str):
        return [Ins(x)]
    if isinstance(x, Ins):
        return [x]
    out = []
    for e in x:
        out += I(e)
    return out


def cost(ins):
    c = 0
    for i in ins:
        if i.kind in ("label", "dir"):
            continue
        c += 8 if (i.kind in ("mfma", "trans") or i.op.startswith("v_permlane")) else 4
    return c


def weave(groups, fill, slack=4, start=0, rate=1.0):
    out, f, credit = [], [], 0
    for it in fill:
        if isinstance(it, tuple):
            f.append((it[0], I(it[1])))
        else:
            f.append((0, I(it)))
    for n, g in enumerate(groups):
        g = I(g)
        out += g
        pipe = sum(4 * i.passes for i in g if i.kind == "mfma")
        if n < start:
            continue
        credit = min(credit, 8) + (pipe - cost(g) - slack) * rate
        while f and f[0][0] <= n and credit > 0:
            it = f.pop(0)[1]
            out += it
            credit -= cost(it)
    for _, it in f:
        out += it
    return out


def spread(main, fill, lo=0.0, hi=1.0):
    main = [I(m) for m in main]
    fill = [I(x) for x in fill]
    tot = sum(cost(m) for m in main)
    out, acc, k = [], 0, 0
    for m in main:
        out.append(m)
        acc += cost(m)
        while k < len(fill) and acc >= tot * (lo + (hi - lo) * k / max(1, len(fill))):
            out.append(fill[k]); k += 1
    out += fill[k:]
    return out


def tr(f, n, base, off):
    assert 0 <= off and off + 256 < 65536
    return [Ins(f"ds_read_b64_tr_b16 {R(f, n, 2)}, {base} offset:{off}"),
            Ins(f"ds_read_b64_tr_b16 {R(f, n + 2, 2)}, {base} offset:{off + 256}")]

def tr1(n, addr):
    return tr("v", n, vTR, addr) if addr < 65536 else tr("v", n, vTR1, addr - 65536)

def trp(n, addr):
    return tr("v", n, vTP, addr) if addr < 65536 else tr("v", n, vTP1, addr - 65536)


def dma(srd, voff, sbase, goffs, lds_s, lds_imm, tag, st=d0):
    out = []
    for j, g in enumerate(goffs):
        it = []
        if j % 4 == 0:
            it.append(Ins(f"s_add_u32 m0, {lds_s}, {lds_imm + 1024 * j}") if lds_s else Ins(f"s_mov_b32 m0, {lds_imm + 1024 * j}"))
        o = g - (j % 4) * 1024
        assert o >= 0
        it.append(Ins(f"s_add_u32 {st}, {sbase}, {o}"))
        it.append(Ins(f"buffer_load_dwordx4 {voff}, {srd}, {st} offen offset:{(j % 4) * 1024} lds", xdst=[tag]))
        out.append(it)
    return out


def barrier(*extra):
    return [need_ins("ds_any", *extra), Ins("s_barrier")]


def poll_issue(vaddr, vt):
    return [Ins(f"buffer_load_dword {vt}, {vaddr}, {sWS}, {sFP} offen sc1")]


def poll_check(vaddr, vt, target):
    ls, lr, lp = P.label(), P.label(), P.label()
    OUTL.extend(I([ls + ":", f"s_mov_b32 {sCNT}, 30000", lp + ":",
                   f"buffer_load_dword {vt}, {vaddr}, {sWS}, {sFP} offen sc1",
                   f"v_cmp_gt_u32 vcc, {target}, {vt}", f"s_cbranch_vccz {lr}",
                   f"s_sub_u32 {sCNT}, {sCNT}, 1", f"s_cbranch_scc0 {lp}", "s_endpgm"]))
    return I([f"v_cmp_gt_u32 vcc, {target}, {vt}", f"s_cbranch_vccnz {ls}", lr + ":"])


def poll(vaddr, vt, target):
    lp, lr = P.label(), P.label()
    return I([f"s_mov_b32 {sCNT}, 30000", lp + ":",
              f"buffer_load_dword {vt}, {vaddr}, {sWS}, {sFP} offen sc1",
              f"v_cmp_gt_u32 vcc, {target}, {vt}", f"s_cbranch_vccz {lr}",
              f"s_sub_u32 {sCNT}, {sCNT}, 1", f"s_cbranch_scc0 {lp}", "s_endpgm", lr + ":"])


def publish(val, vt, tag="stores"):
    ls, lr = P.label(), P.label()
    st = f"buffer_store_dword {vt}, off, {sWS}, {sFA}"
    OUTL.extend(I([ls + ":", st + " sc1", f"s_branch {lr}"]))
    return I([f"v_mov_b32 {vt}, {val}", f"s_cmp_eq_u32 {sMODE}, 0", need_ins(tag), f"s_cbranch_scc1 {ls}", st, lr + ":"])


def xstore(txt, bit, tag=None):
    kw = dict(xdst=[tag]) if tag else {}
    if not PL & bit:
        return [Ins(txt + " sc1", **kw)]
    ls, lr = P.label(), P.label()
    OUTL.extend(I([ls + ":", Ins(txt + " sc1", **kw), f"s_branch {lr}"]))
    return I([f"s_cmp_eq_u32 {sMODE}, 0", f"s_cbranch_scc1 {ls}", Ins(txt + (" " + PMOD if PMOD else ""), **kw), lr + ":"])


PNAMES = []
def tick(name):
    if not PROF:
        return []
    if OPT.get("TK") and not re.match(OPT["TK"], name):
        return []
    idx = len(PNAMES)
    PNAMES.append(name)
    assert idx < 64
    op = "s_memtime" if opt("CLK", 0) else "s_memrealtime"
    return I([f"{op} s[100:101]", "s_waitcnt lgkmcnt(0)", f"v_writelane_b32 {vPROF}, s100, {idx}"])


def prof_dump():
    if not PROF:
        return []
    return I([f"s_lshl_b32 {t0}, s2, 2", f"s_add_u32 {t0}, {t0}, {sW}", f"s_lshl_b32 {t0}, {t0}, 8",
              f"s_add_u32 {t0}, {t0}, {LB(1) + 19 * MB}", f"v_lshlrev_b32 {x0}, 2, {vL}",
              f"buffer_store_dword {vPROF}, {x0}, {sWS}, {t0} offen"])


def stop(L, ph):
    if STOP == f"{L}.{ph}":
        P.add(prof_dump())
        P("s_endpgm")
        return True
    return False


def finish():
    import asmgen
    asmgen.SCHED = bool(opt('SCHED', 1))
    asmgen.MINW = opt('MINW', 2)
    P.put("L_end")
    P("s_endpgm")
    P.add(OUTL)
    body, ins = emit(P)
    hdr = open("interleave_layers__sliding_block__mixer_channel_mlp__prompt.s.ref").read()
    top = hdr.split("; @launch")[0]
    txt = top + "; @launch grid=(256,1,1) block=(256,1,1) lds=163840\n"
    txt += f""".amdgcn_target "amdgcn-amd-amdhsa--gfx950"
.text
.globl {KN}
.p2align 8
.type {KN},@function
{KN}:
{body}
.section .rodata,"a"
.p2align 6
.amdhsa_kernel {KN}
  .amdhsa_next_free_vgpr 512
  .amdhsa_next_free_sgpr 102
  .amdhsa_accum_offset 256
  .amdhsa_group_segment_fixed_size 0
  .amdhsa_kernarg_size 88
  .amdhsa_user_sgpr_count 2
  .amdhsa_user_sgpr_kernarg_segment_ptr 1
  .amdhsa_system_sgpr_workgroup_id_x 1
.end_amdhsa_kernel
"""
    open(sys.argv[1], "w").write(txt)
    print("instructions:", len(ins))
    open(sys.argv[1] + ".names", "w").write(" ".join(PNAMES))
```

```python
from k2_base import *
from k2_p1 import *

B1V, CC, CD_, AS4 = 48, 52, 56, 60


def tile_out(x, pk, tmp, bit):
    for i in range(8):
        P(f"v_cvt_pk_bf16_f32 v{pk + i}, v{x + 2 * i}, v{x + 2 * i + 1}")
    P.add(xstore(f"buffer_store_dwordx4 {V(pk)}, {vL16}, {sWS}, {t1} offen", bit))
    P.add(xstore(f"buffer_store_dwordx4 {V(pk + 4)}, {vL16}, {sWS}, {t1} offen offset:1024", bit))
    a, b = V(tmp, 2), V(tmp + 2, 2)
    P(f"v_pk_add_f32 {a}, {V(x, 2)}, {V(x + 2, 2)}")
    P(f"v_pk_mul_f32 {b}, {V(x, 2)}, {V(x, 2)}")
    for i in range(1, 8):
        if i >= 2:
            P(f"v_pk_add_f32 {a}, {a}, {V(x + 2 * i, 2)}")
        P(f"v_pk_fma_f32 {b}, {V(x + 2 * i, 2)}, {V(x + 2 * i, 2)}, {b}")
    P(f"v_add_f32 v{tmp}, v{tmp}, v{tmp + 1}")
    P(f"v_add_f32 v{tmp + 2}, v{tmp + 2}, v{tmp + 3}")
    P(f"v_permlane32_swap_b32 v{tmp}, v{tmp + 2}")
    P(f"v_add_f32 v{tmp}, v{tmp}, v{tmp + 2}")
    P.add(xstore(f"buffer_store_dword v{tmp}, {x2}, {sWS}, {t2} offen", bit))


def tile_addr(xo, so):
    return I([f"s_lshl_b32 {t2}, {sTP}, 4", f"s_add_u32 {t2}, {t2}, {sCT}", f"s_lshl_b32 {t1}, {t2}, 11", f"s_add_u32 {t1}, {t1}, {xo}",
              f"s_lshl_b32 {t2}, {t2}, 8", f"s_add_u32 {t2}, {t2}, {so}", f"v_lshlrev_b32 {x2}, 2, {vL}"])


def phase3(L, late_rd):
    a0, a1, OF, WO = 16, 32, 64, 128
    P.add(barrier("wo"))
    if L == 0:
        d4, r4 = w2_round(4, x0)
        P.add(I(late_rd))
        P.add(I(d4[:8]))
    else:
        P.add(I(w1_items("CD2")))
        r4 = []
    P(f"s_and_b32 {t0}, {sW}, 1")
    P(f"s_lshl_b32 {t0}, {t0}, 14")
    P(f"v_add_u32 {x1}, {t0}, {vTP}")
    for ks in range(16):
        for ct in range(2):
            P.add(tr("v", WO + (ks * 2 + ct) * 4, x1, (ks >> 3) * 32768 + 2048 * (ks & 7) + 512 * ct))
    if L == 0:
        for d in range(8):
            P(f"v_accvgpr_read_b32 {x2}, a{224 + d}")
            P(f"v_lshlrev_b32 v{a0 + 2 * d}, 16, {x2}")
            P(f"v_and_b32 v{a0 + 2 * d + 1}, 0xffff0000, {x2}")
        P(f"v_and_b32 {x1}, 0x13, {vL}")
        P(f"v_bfe_u32 {x2}, {vL}, 2, 1")
        P(f"v_lshl_add_u32 {x1}, {x2}, 3, {x1}")
        P(f"v_bfe_u32 {x2}, {vL}, 3, 1")
        P(f"v_lshl_add_u32 {x1}, {x2}, 2, {x1}")
        P(f"v_lshlrev_b32 {x1}, 1, {x1}")
        P(f"s_lshl_b32 {t1}, {sM}, 8")
        P(f"s_cmp_ge_u32 {sW}, 2")
        P(f"s_cselect_b32 {t1}, {OOB}, {t1}")
        for e in range(4):
            P(f"buffer_load_ushort v{B1V + e}, {x1}, {sB1}, {t1} offen offset:{64 * e}")
        P.need("ds_any")
        P.add(I(d4[8:]))
    else:
        for i in range(16):
            P(f"v_accvgpr_read_b32 v{a0 + i}, a{224 + i}")
    P(f"s_lshl_b32 {t3}, {sTP}, 15")
    P(f"s_add_u32 {t3}, {t3}, {t0}")
    P(f"s_add_u32 {t3}, {t3}, {LB(L) + O_O}")
    P(f"s_xor_b32 {t0}, {sW}, 1")
    P(f"s_lshl_b32 {t0}, {t0}, 12")
    P(f"s_add_u32 {t0}, {t0}, {SCR3}")
    P(f"v_add_u32 {x0 if L else 'v52'}, {t0}, {vL16}")
    vw = x0 if L else "v52"
    P.add(tile_addr(LB(L) + X1_O, LB(L) + ST1_O))
    P.add(barrier())
    P.add(tick(f"{L}.B3b"))
    P.add(poll(vPO, x1, 16 * L + 1))
    P.add(tick(f"{L}.pollo"))
    for ks in range(16):
        if ks % 4 == 0 and ks:
            P(f"s_add_u32 {t3}, {t3}, 4096")
        P(f"buffer_load_dwordx4 {V(OF + 4 * ks)}, {vL16}, {sWS}, {t3} offen offset:{(ks % 4) * 1024} sc1")
    def mf(ks, ct):
        a = V(a0 if ct == 0 else a1, 16)
        return f"{MF} {a}, {V(WO + (ks * 2 + ct) * 4)}, {V(OF + 4 * ks)}, {a if (ks or ct == 0) else 0}"
    NT = 4
    g = [[mf(ks, 1), mf(ks, 0)] for ks in range(16 - NT)] + [[mf(ks, 1)] for ks in range(16 - NT, 16)]
    fill = w1_items("AB") + (w1_items("CD1") if L == 0 else [])
    P.add(I(spread(g, fill, 0.0, 1.0)))
    for n, ks in enumerate(range(16 - NT, 16)):
        P(mf(ks, 0))
        if n >= 1:
            for j in ([n - 1] if n < NT - 1 else range(n - 1, 4)):
                P(f"ds_write_b128 {vw}, {V(a1 + 4 * j)} offset:{1024 * j}")
    P(f"v_xor_b32 {vw}, 0x1000, {vw}")
    P.add(tick(f"{L}.p3mm"))
    P.add(barrier())
    for j in range(4):
        P(f"ds_read_b128 {V(OF + 4 * j)}, {vw} offset:{1024 * j}")
    for i in range(8):
        P(f"v_pk_add_f32 {V(a0 + 2 * i, 2)}, {V(a0 + 2 * i, 2)}, {V(OF + 2 * i, 2)}")
    tile_out(a0, OF + 16, OF + 24, 2 << (4 * L))
    for d in range(8):
        P(f"v_accvgpr_read_b32 {x1}, a{248 + d}")
        P(f"v_lshlrev_b32 v{OF}, 16, {x1}")
        P(f"v_and_b32 v{OF + 1}, 0xffff0000, {x1}")
        P(f"v_pk_add_f32 {V(a0 + 2 * d, 2)}, {V(a0 + 2 * d, 2)}, {V(OF, 2)}")
        P(f"v_accvgpr_write_b32 a{224 + 2 * d}, v{a0 + 2 * d}")
        P(f"v_accvgpr_write_b32 a{225 + 2 * d}, v{a0 + 2 * d + 1}")
    P.add(publish(16 * L + 3, x1))
    P.add(tick(f"{L}.p3end"))
    return r4


def gelu(a, c0, c1, ir, tmp, so, tag, bit, pk=False):
    res = []
    for g in range(4):
        if pk:
            xs = [V(a + 4 * g + 2 * e, 2) for e in range(2)]
            ts = [V(tmp + 2 * e, 2) for e in range(2)]
            bc = lambda r: f"v[{r[1:]}:{int(r[1:]) + 1}]"
            res += [f"v_pk_mul_f32 {t}, {x}, {x}" for x, t in zip(xs, ts)]
            res += [f"v_pk_fma_f32 {t}, {t}, {bc(c1)}, {bc(c0)} op_sel_hi:[1,0,0]" for t in ts]
            res += [f"v_pk_mul_f32 {t}, {t}, {x}" for x, t in zip(xs, ts)]
            res += [f"v_exp_f32 v{tmp + e}, v{tmp + e}" for e in range(4)]
            res += [f"v_pk_fma_f32 {t}, {t}, {bc(ir)}, {bc(ir)} op_sel_hi:[1,0,0]" for t in ts]
            res += [f"v_rcp_f32 v{tmp + e}, v{tmp + e}" for e in range(4)]
            res += [f"v_pk_mul_f32 {x}, {x}, {t}" for x, t in zip(xs, ts)]
        else:
            blk = []
            for e in range(4):
                x, t = f"v{a + 4 * g + e}", f"v{tmp + e}"
                blk.append([f"v_mul_f32 {t}, {x}, {x}", f"v_fma_f32 {t}, {t}, {c1}, {c0}", f"v_mul_f32 {t}, {t}, {x}",
                            f"v_exp_f32 {t}, {t}", f"v_fma_f32 {t}, {t}, {ir}, {ir}", f"v_rcp_f32 {t}, {t}", f"v_mul_f32 {x}, {x}, {t}"])
            for s in range(7):
                for e in range(4):
                    res.append(blk[e][s])
        for i in (2 * g, 2 * g + 1):
            res.append(f"v_cvt_pk_bf16_f32 v{a + i}, v{a + 2 * i}, v{a + 2 * i + 1}")
        if g & 1:
            s, off = so
            res.append(xstore(f"buffer_store_dwordx4 {V(a + 2 * (g - 1))}, {vL16}, {sWS}, {s} offen offset:{off + 1024 * (g >> 1)}", bit, tag))
    return [I(x) for x in res]


def phase45(L, r4):
    T = [16, 32, 48, 16]
    C0R, C1R, IRR, RR, GT = "v116", "v118", "v120", "v122", 124
    FB = 16 * L
    vtb = x2
    if L == 0:
        P.add(I(r4))
        P.add(asel(AS4))
        P(f"s_lshl_b32 {t0}, {sW}, 14")
        P(f"v_add_u32 {x1}, {t0}, {vTP}")
        P(f"s_lshl_b32 {t0}, {sW}, 13")
        P(f"v_add_u32 {x0}, {t0}, {vTP1}")
        P.add(table_addr(x2))
        P.need("w1AB")
        for j in range(16):
            P.add(tr("v", XF + 4 * j, x1, 2048 * (j >> 1) + 512 * (j & 1)))
        P.need("w1CD1")
        for j in range(8):
            P.add(tr("v", XF + 64 + 4 * j, x0, 2048 * (j >> 1) + 512 * (j & 1)))
        for j in range(16):
            c = V(16 + 4 * (j & 1))
            P(f"{MF16} {c}, {V(AS4)}, {V(XF + 4 * j)}, {c if j >= 2 else 0}")
        for j in range(8):
            c = V(CC + 4 * (j & 1))
            P(f"{MF16} {c}, {V(AS4)}, {V(XF + 64 + 4 * j)}, {c if j >= 2 else 0}")
        P.add(I(table_write(16, 3, x2, f"v{B1V}") + table_write(20, 4, x2, f"v{B1V + 1}")))
        P.add(barrier())
        vtw = "v123"
        P(f"v_mov_b32 {vtw}, {x2}")
    else:
        P.add(barrier("w1AB", "w1CD1", "w1CD2"))
    P(f"v_add_u32 {vtb}, {TAB0 + 3072}, {vL16}")
    D = 3
    def rdA(t):
        if t < 32:
            return trp(RING + 8 * (t % 4), 2048 * t) + trp(RING + 8 * (t % 4) + 4, 2048 * t + 512)
        if t == 32:
            return I([f"ds_read_b128 {V(RING + 8 * (t % 4) + 4 * e)}, {vtb} offset:{1024 * e}" for e in range(2)])
        return []
    for t in range(D):
        P.add(rdA(t))
    P(f"s_lshl_b32 {t3}, {sT}, 17")
    P(f"s_lshl_b32 {t4}, {sM}, 13")
    P(f"s_add_u32 {t3}, {t3}, {t4}")
    P(f"s_add_u32 {t3}, {t3}, {LB(L) + H_O}")
    P(f"s_add_u32 {t4}, {t3}, 4096")
    xs, xi = x_loads(LB(L) + X1_O, LB(L) + ST1_O, STV)
    NB = opt("NB", 14)
    P.add(xs)
    P.add(tick(f"{L}.B4b"))
    P.add(poll(vPX, x1, FB + 3))
    P.add(tick(f"{L}.pollx1"))
    P.add(I(xi[:NB]))
    xi = xi[NB:] + (w1_items("CD2") if L == 0 else [])
    gA = []
    for k in range(33):
        xb = V(XF + 4 * k) if k < 32 else V(EX)
        gA.append(rdA(k + D) + I([f"{MF} {V(T[e], 16)}, {V(RING + 8 * (k % 4) + 4 * e)}, {xb}, {V(T[e], 16) if k else 0}" for e in range(2)]))
    s = [f"v{STV + i}" for i in range(4)]
    C0 = -2.0 * LOG2E * 0.7978845608028654
    fill = stats_sum(STV) + stats_finish(s[0], s[1], s[2], s[3], EX, True, RR, IRR)
    fill += [I(x) for x in [f"v_mul_f32 {C0R}, {fc(C0)}, {RR}", f"v_mul_f32 {C1R}, {RR}, {RR}", f"v_mul_f32 {C1R}, {C1R}, {C0R}",
                            f"v_mul_f32 {C1R}, {fc(0.044715)}, {C1R}"]]
    P.add(weave(attach(gA, xi), [(opt("XSP", 16) + 2, x) for x in fill]))
    P.add(tick(f"{L}.pA"))
    D1 = 6
    def rd1(e, t):
        if t < 32:
            return trp(RING + 4 * (t % 8), R2 + 2048 * t + 512 * e)
        if t == 32:
            return I(f"ds_read_b128 {V(RING + 4 * (t % 8))}, {vtb} offset:{2048 + 1024 * e}")
        if e == 0 and t - 34 >= 0:
            pass
        return []
    def g1(e, off):
        def rd(t):
            n = RING + 4 * ((t + off) % 8)
            if t < 32:
                return trp(n, R2 + 2048 * t + 512 * e)
            if t == 32:
                return I(f"ds_read_b128 {V(n)}, {vtb} offset:{2048 + 1024 * e}")
            if e == 0:
                return trp(n, R2 + 2048 * (t - 33) + 512)
            return []
        a = V(T[2 + e], 16)
        out = []
        for k in range(33):
            xb = V(XF + 4 * k) if k < 32 else V(EX)
            it = rd(k + D1)
            if k % 2 == 0 and k + 1 < 33:
                it = it + [need_ins(("v", RING + 4 * ((k + 1 + off) % 8) + 3))]
            out.append(it + I(f"{MF} {a}, {V(RING + 4 * ((k + off) % 8))}, {xb}, {a if k else 0}"))
        return out, [rd(t) for t in range(D1)]
    gB, preB = g1(0, 0)
    gC, _ = g1(1, 33)
    PUBD = opt("PUBD", 14)
    GHI = opt("GHI", 90) / 100
    def G(i, pk=False):
        return gelu(T[i], C0R, C1R, IRR, GT, (t3 if i < 2 else t4, 2048 * (i & 1)), f"h{i}", 4 << (4 * L), pk)
    def at(groups, n, item):
        groups[n] = groups[n] + I(item)
    if L == 0:
        cs = [I([need_ins("w1CD2")] + tr("v", STV + 4 * (j & 3), x0, 32768 + 2048 * (j >> 1) + 512 * (j & 1))) for j in range(4)]
        for j in range(8):
            c = V(CC + 4 * (j & 1))
            cs.append(I(f"{MF16} {c}, {V(AS4)}, {V(STV + 4 * (j & 3))}, {c}"))
            if j + 4 < 8:
                cs.append(tr("v", STV + 4 * (j & 3), x0, 32768 + 2048 * ((j + 4) >> 1) + 512 * (j & 1)))
        cs += [[]] + table_write(CC, 5, vtw, f"v{B1V + 2}") + table_write(CD_, 6, vtw, f"v{B1V + 3}")
        P.add(I(spread(G(0), cs + preB, 0.1, 0.95)))
        P.add(barrier())
        kv = wq_items(0, tag="wkv") + wq_items(1, tag="wkv")
        kv[0] = wq_setup() + kv[0]
        for j in range(8):
            at(gB, 1 + j, kv[j]); at(gC, 1 + j, kv[8 + j])
    else:
        P.add(I(spread(G(0, True), preB, 0.5, 0.95)))
    P.add(tick(f"{L}.G0"))
    ACC = [A(224, 16), V(32, 16), V(48, 16), V(240, 16)]
    def hf(s, i, tt): return XF + 4 * (14 * (s & 1) + 2 * i + tt)
    def hloads(s):
        out = []
        for i in range(7):
            for tt in range(2):
                out.append(I([f"s_add_u32 {u0}, {t5 if tt == 0 else d3}, {(8 * i + 2 * s) * 1024}",
                              f"buffer_load_dwordx4 {V(hf(s, i, tt))}, {vL16}, {sWS}, {u0} offen sc1"]))
        return out
    def mf(s, i, n):
        tt, ct = n >> 1, n & 1
        a = ACC[n]
        return f"{MF} {a}, {A(((7 * s + i) * 2 + ct) * 4)}, {V(hf(s, i, tt))}, {a if (s or i or n == 0) else 0}"
    def gS(s): return [I(mf(s, i, n)) for i in range(7) for n in range(4)]
    hb = I([f"s_lshr_b32 {u0}, {sW}, 1", f"s_mul_i32 {u0}, {u0}, {56 * 1024}", f"s_and_b32 {u1}, {sW}, 1", f"s_lshl_b32 {u1}, {u1}, 10",
            f"s_add_u32 {u0}, {u0}, {u1}", f"s_add_u32 {u0}, {u0}, {LB(L) + H_O}", f"s_lshl_b32 {t5}, {sTP}, 17", f"s_xor_b32 {d3}, {t5}, 0x20000",
            f"s_add_u32 {t5}, {t5}, {u0}", f"s_add_u32 {d3}, {d3}, {u0}"])
    for n, x in enumerate(hb):
        at(gB, 16 + n, x)
    st = gB + gC + gS(0) + gS(1) + gS(2)
    CK = [opt("CK0", 41), opt("CK1", 66), opt("CK2", 96), opt("CK3", 124)]
    PB = [opt("PB0", 14), opt("PB1", 47), opt("PB2", 78), opt("PB3", 108)]
    PD = opt("PD", 12)
    for s in range(4):
        at(st, PB[s], publish(FB + 4 + s, x1, f"h{s}"))
        at(st, CK[s] - PD, poll_issue(vPH, x0))
        at(st, CK[s], poll_check(vPH, x0, FB + 4 + s))
        n = CK[s] + 1
        for j, x in enumerate(hloads(s)):
            lo = {0: 33 + j, 1: 33 + 14 + j}.get(s, 66 + 28 * (s - 2) + 4 * (j >> 1) + 3)
            n = max(n, lo)
            at(st, n, x)
            n += 1 if j < opt("HBU", 6) else opt("HST", 2)
        assert n <= len(st) + 1
    at(st, opt("B6", 110), barrier())
    P.add(I(spread(st[:33], G(1), 0.03, GHI)))
    P.add(tick(f"{L}.pB"))
    P.add(I(spread(st[33:66], G(2), 0.03, GHI)))
    P.add(tick(f"{L}.pC"))
    P.add(weave(st[66:94], [(1, x) for x in G(3)], slack=0))
    P.add(tick(f"{L}.S0"))
    P.add(I(st[94:122]))
    P.add(tick(f"{L}.S1"))
    P.add(I(st[122:150]))
    P.add(tick(f"{L}.S2"))
    NT = opt("NT5", 2)
    wa = ["v16", "v17", "v18", "v19"]
    pre = []
    for i in range(4):
        pre.append(I([f"s_xor_b32 {u0}, {sW}, {i}", f"s_mul_i32 {u0}, {u0}, 12288", f"s_add_u32 {u0}, {u0}, {SL + 4096 * max(0, i - 1)}",
                      f"v_add_u32 {wa[i]}, {u0}, {vL16}"]))
    if L == 0:
        pre.append(tile_addr(LB(1) + XIN_O, LB(1) + ST2_O))
    else:
        pre.append(I([f"v_and_b32 {x2}, 31, {vL}", f"v_lshrrev_b32 {x1}, 5, {vL}", f"v_lshlrev_b32 {x2}, 10, {x2}", f"v_lshl_add_u32 {x2}, {x1}, 4, {x2}",
                      f"s_lshl_b32 {t1}, {sTP}, 15", f"s_lshl_b32 {t2}, {sCT}, 6", f"s_add_u32 {t1}, {t1}, {t2}"]))
    P.add(I(pre))
    g = [I(mf(3, i, n)) for i in range(7 - NT) for n in range(4)]
    base = [0, 32, 48, 240]
    wr = []
    for n in (3, 2, 1, 0):
        for e, i in enumerate(range(7 - NT, 7)):
            g.append(I(mf(3, i, n)))
            if e >= 1 or NT == 1:
                k = (len(wr) + (NT - e) - 1) // (NT - e)
                g.append(I(wr[:k])); wr = wr[k:]
        if n:
            wr = [f"ds_write_b128 {wa[n]}, {V(base[n] + 4 * j)} offset:{1024 * j}" for j in range(4)]
    P.add(I(g))
    x, tmp = 64, 80
    for i in range(16):
        P(f"v_accvgpr_read_b32 v{x + i}, a{224 + i}")
    P.add(tick(f"{L}.S3"))
    P.add(barrier(*(["wkv"] if L == 0 else [])))
    for j in range(12):
        P(f"ds_read_b128 {V(tmp + 4 * j)}, {wa[0]} offset:{1024 * j}")
    for p in range(3):
        for i in range(8):
            P(f"v_pk_add_f32 {V(x + 2 * i, 2)}, {V(x + 2 * i, 2)}, {V(tmp + 16 * p + 2 * i, 2)}")
    if L == 0:
        tile_out(x, 16, 24, 8)
        for i in range(16):
            P(f"v_accvgpr_write_b32 a{224 + i}, v{x + i}")
        P.add(publish(8, x1))
        P.add(tick("0.p5end"))
    else:
        for i in range(8):
            P(f"v_cvt_pk_bf16_f32 v{16 + i}, v{x + 2 * i}, v{x + 2 * i + 1}")
        P(f"buffer_store_dwordx4 {V(16)}, {x2}, {sOUT}, {t1} offen")
        P(f"buffer_store_dwordx4 {V(20)}, {x2}, {sOUT}, {t1} offen offset:32")
        if PROF:
            P.need("stores")
            P.add(tick("1.final"))
            P.add(prof_dump())
```

```python
import sys, struct, re
from asmgen import Prog, Ins, emit, need_ins

KN = "interleave_layers__sliding_block__mixer_channel_mlp__prompt_kernel"
OPT = dict(a.split("=") for a in sys.argv[2:])
STOP = OPT.get("STOP")
PROF = int(OPT.get("PROF", 0))
def opt(name, default): return int(OPT.get(name, default))

MB = 1 << 20
KV_O, O_O, X1_O, XIN_O, ST1_O, ST2_O, H_O = 0, 4 * MB, 6 * MB, 8 * MB, 10 * MB, 10 * MB + 256 * 1024, 11 * MB
LSTRIDE = 20 * MB
def LB(L): return MB + L * LSTRIDE
FPACK = 131072
MBOX = FPACK + 8192
ARR = FPACK + 65536
OOB = 0x40000000
R0, R1, R2, SL, PITCH = 0, 32768, 65536, 98304, 4112
SCR3, SPARE, TAB0, RBC = 131072, 147648, 156160, 163328

sC, sM, sW, sCNT = "s4", "s5", "s6", "s7"
sX, sWQ, sWO, sW1, sW2, sWS, sOUT, sB2, sB1, sDBG = [f"s[{8 + 4 * i}:{11 + 4 * i}]" for i in range(10)]
sT, sTP, sCT, sMODE, sFA, sFP = "s48", "s49", "s50", "s51", "s52", "s53"
t0, t1, t2, t3, t4, t5 = "s54", "s55", "s56", "s57", "s58", "s59"
d0, d1, d2, d3 = "s60", "s61", "s62", "s63"
u0, u1, u2, u3 = "s96", "s97", "s98", "s99"
def sMASK(r): return f"s[{64 + 2 * r}:{65 + 2 * r}]"
vL, vL16, vTR, vTR1, vTP, vTP1, vPX, vPO, vPH, vPROF, voQ, vo1, vo2 = [f"v{i}" for i in range(13)]
x0, x1, x2 = "v13", "v14", "v15"
XF = 128

def f2u(x): return struct.unpack("<I", struct.pack("<f", x))[0]
def fc(x): return hex(f2u(x))
def V(n, k=4): return f"v[{n}:{n + k - 1}]" if k > 1 else f"v{n}"
def A(n, k=4): return f"a[{n}:{n + k - 1}]" if k > 1 else f"a{n}"
def R(f, n, k=4): return f"{f}[{n}:{n + k - 1}]"

PL = opt("PL", 0)
PMOD = OPT.get("PMOD", "")
LOG2E = 1.4426950408889634
EPS = 1e-5
P = Prog()
MF = "v_mfma_f32_32x32x16_bf16"
MF16 = "v_mfma_f32_16x16x32_bf16"
OUTL = []


def I(x):
    if isinstance(x, str):
        return [Ins(x)]
    if isinstance(x, Ins):
        return [x]
    out = []
    for e in x:
        out += I(e)
    return out


def cost(ins):
    c = 0
    for i in ins:
        if i.kind in ("label", "dir"):
            continue
        c += 8 if (i.kind in ("mfma", "trans") or i.op.startswith("v_permlane")) else 4
    return c


def weave(groups, fill, slack=4, start=0, rate=1.0):
    out, f, credit = [], [], 0
    for it in fill:
        if isinstance(it, tuple):
            f.append((it[0], I(it[1])))
        else:
            f.append((0, I(it)))
    for n, g in enumerate(groups):
        g = I(g)
        out += g
        pipe = sum(4 * i.passes for i in g if i.kind == "mfma")
        if n < start:
            continue
        credit = min(credit, 8) + (pipe - cost(g) - slack) * rate
        while f and f[0][0] <= n and credit > 0:
            it = f.pop(0)[1]
            out += it
            credit -= cost(it)
    for _, it in f:
        out += it
    return out


def spread(main, fill, lo=0.0, hi=1.0):
    main = [I(m) for m in main]
    fill = [I(x) for x in fill]
    tot = sum(cost(m) for m in main)
    out, acc, k = [], 0, 0
    for m in main:
        out.append(m)
        acc += cost(m)
        while k < len(fill) and acc >= tot * (lo + (hi - lo) * k / max(1, len(fill))):
            out.append(fill[k]); k += 1
    out += fill[k:]
    return out


def tr(f, n, base, off):
    assert 0 <= off and off + 256 < 65536
    return [Ins(f"ds_read_b64_tr_b16 {R(f, n, 2)}, {base} offset:{off}"),
            Ins(f"ds_read_b64_tr_b16 {R(f, n + 2, 2)}, {base} offset:{off + 256}")]

def tr1(n, addr):
    return tr("v", n, vTR, addr) if addr < 65536 else tr("v", n, vTR1, addr - 65536)

def trp(n, addr):
    return tr("v", n, vTP, addr) if addr < 65536 else tr("v", n, vTP1, addr - 65536)


def ntm(srd):
    b = {sW2: 1, sW1: 2, sWO: 4, sWQ: 8, "H": 16, "X": 32, "O": 64, "KV": 128, sX: 256}[srd]
    return " nt" if opt("NT", 0) & b else ""


def dma(srd, voff, sbase, goffs, lds_s, lds_imm, tag, st=d0):
    out = []
    for j, g in enumerate(goffs):
        it = []
        if j % 4 == 0:
            it.append(Ins(f"s_add_u32 m0, {lds_s}, {lds_imm + 1024 * j}") if lds_s else Ins(f"s_mov_b32 m0, {lds_imm + 1024 * j}"))
        o = g - (j % 4) * 1024
        assert o >= 0
        it.append(Ins(f"s_add_u32 {st}, {sbase}, {o}"))
        it.append(Ins(f"buffer_load_dwordx4 {voff}, {srd}, {st} offen offset:{(j % 4) * 1024}{ntm(srd)} lds", xdst=[tag]))
        out.append(it)
    return out


def barrier(*extra):
    return [need_ins("ds_any", *extra), Ins("s_barrier")]


def poll_issue(vaddr, vt):
    return [Ins(f"buffer_load_dword {vt}, {vaddr}, {sWS}, {sFP} offen sc1")]


def poll_check(vaddr, vt, target):
    ls, lr, lp = P.label(), P.label(), P.label()
    OUTL.extend(I([ls + ":", f"s_mov_b32 {sCNT}, 30000", lp + ":",
                   f"buffer_load_dword {vt}, {vaddr}, {sWS}, {sFP} offen sc1",
                   f"v_cmp_gt_u32 vcc, {target}, {vt}", f"s_cbranch_vccz {lr}",
                   f"s_sub_u32 {sCNT}, {sCNT}, 1", f"s_cbranch_scc0 {lp}", "s_endpgm"]))
    return I([f"v_cmp_gt_u32 vcc, {target}, {vt}", f"s_cbranch_vccnz {ls}", lr + ":"])


def poll(vaddr, vt, target):
    lp, lr = P.label(), P.label()
    return I([f"s_mov_b32 {sCNT}, 30000", lp + ":",
              f"buffer_load_dword {vt}, {vaddr}, {sWS}, {sFP} offen sc1",
              f"v_cmp_gt_u32 vcc, {target}, {vt}", f"s_cbranch_vccz {lr}",
              f"s_sub_u32 {sCNT}, {sCNT}, 1", f"s_cbranch_scc0 {lp}", "s_endpgm", lr + ":"])


def publish(val, vt, tag="stores"):
    ls, lr = P.label(), P.label()
    st = f"buffer_store_dword {vt}, off, {sWS}, {sFA}"
    OUTL.extend(I([ls + ":", st + " sc1", f"s_branch {lr}"]))
    return I([f"v_mov_b32 {vt}, {val}", f"s_cmp_eq_u32 {sMODE}, 0", need_ins(tag), f"s_cbranch_scc1 {ls}", st, lr + ":"])


def xstore(txt, bit, tag=None):
    kw = dict(xdst=[tag]) if tag else {}
    if not PL & bit:
        return [Ins(txt + " sc1", **kw)]
    ls, lr = P.label(), P.label()
    OUTL.extend(I([ls + ":", Ins(txt + " sc1", **kw), f"s_branch {lr}"]))
    return I([f"s_cmp_eq_u32 {sMODE}, 0", f"s_cbranch_scc1 {ls}", Ins(txt + (" " + PMOD if PMOD else ""), **kw), lr + ":"])


PNAMES = []
def tick(name):
    if not PROF:
        return []
    if OPT.get("TK") and not re.match(OPT["TK"], name):
        return []
    idx = len(PNAMES)
    PNAMES.append(name)
    assert idx < 64
    op = "s_memtime" if opt("CLK", 0) else "s_memrealtime"
    return I([f"{op} s[100:101]", "s_waitcnt lgkmcnt(0)", f"v_writelane_b32 {vPROF}, s100, {idx}"])


def prof_dump():
    if not PROF:
        return []
    return I([f"s_lshl_b32 {t0}, s2, 2", f"s_add_u32 {t0}, {t0}, {sW}", f"s_lshl_b32 {t0}, {t0}, 8",
              f"s_add_u32 {t0}, {t0}, {LB(1) + 19 * MB}", f"v_lshlrev_b32 {x0}, 2, {vL}",
              f"buffer_store_dword {vPROF}, {x0}, {sWS}, {t0} offen"])


def stop(L, ph):
    if STOP == f"{L}.{ph}":
        P.add(prof_dump())
        P("s_endpgm")
        return True
    return False


def finish():
    import asmgen
    asmgen.SCHED = bool(opt('SCHED', 1))
    asmgen.MINW = opt('MINW', 2)
    P.put("L_end")
    P("s_endpgm")
    P.add(OUTL)
    body, ins = emit(P)
    hdr = open("interleave_layers__sliding_block__mixer_channel_mlp__prompt.s.ref").read()
    top = hdr.split("; @launch")[0]
    txt = top + "; @launch grid=(256,1,1) block=(256,1,1) lds=163840\n"
    txt += f""".amdgcn_target "amdgcn-amd-amdhsa--gfx950"
.text
.globl {KN}
.p2align 8
.type {KN},@function
{KN}:
{body}
.section .rodata,"a"
.p2align 6
.amdhsa_kernel {KN}
  .amdhsa_next_free_vgpr 512
  .amdhsa_next_free_sgpr 102
  .amdhsa_accum_offset 256
  .amdhsa_group_segment_fixed_size 0
  .amdhsa_kernarg_size 88
  .amdhsa_user_sgpr_count 2
  .amdhsa_user_sgpr_kernarg_segment_ptr 1
  .amdhsa_system_sgpr_workgroup_id_x 1
.end_amdhsa_kernel
"""
    open(sys.argv[1], "w").write(txt)
    print("instructions:", len(ins))
    open(sys.argv[1] + ".names", "w").write(" ".join(PNAMES))
```

```python
from k2_base import *

sW2B = "s3"

def wq_items(img, chunks=(0, 1, 2, 3), tag="wq"):
    cb = (1024, 2048, 0)[img]
    out = []
    for q in chunks:
        out += dma(sWQ, voQ, d1, [q * 128 * 3072 + cb + i * 16 * 3072 for i in range(2)], d2, img * 32768 + q * 8192, tag)
    return out

def wq_setup():
    return I([f"s_mul_i32 {d1}, {sW}, {32 * 3072}", f"s_lshl_b32 {d2}, {sM}, 6", f"s_add_u32 {d1}, {d1}, {d2}",
              f"s_lshl_b32 {d2}, {sW}, 11"])

vX0, vX1, XA = "v112", "v113", 120

def x0_items(h):
    out = []
    for j in range(4):
        it = []
        if j == 0:
            it += [f"s_xor_b32 {d1}, {t5}, {h}", f"s_lshl_b32 {d1}, {d1}, 7", f"s_add_u32 {d1}, {d1}, {t3}", f"s_add_u32 m0, {d3}, {SL + 4096 * (h & 3)}"]
        else:
            it.append(f"s_add_u32 {d1}, {d1}, 7168")
        it.append(Ins(f"buffer_load_dwordx4 {vX1 if j & 1 else vX0}, {sX}, {d1} offen offset:{j * 1024}{ntm(sX)} lds", xdst=[f"x{h}"]))
        out.append(I(it))
    return out

def w0_items(h, imgs=(0, 1), tag=None):
    out = []
    for img in imgs:
        cb = (1024, 2048, 0)[img]
        out += dma(sWQ, voQ, d1, [cb], d2, img * 32768 + h * 4096, tag or f"kv{h}")
    out[0] = I([f"s_xor_b32 {d1}, {t5}, {h}", f"s_mul_i32 {d1}, {d1}, {64 * 3072}", f"s_add_u32 {d1}, {d1}, {t4}"]) + out[0]
    return out

def w2_piece(kks, mul, imm, tag, vb):
    goffs = []
    for kk in kks:
        s, i = kk // 7, kk % 7
        goffs += [(128 * i + 32 * s + 8 * h) * 1024 for h in range(2)]
    dm = dma(sW2, vo2, sW2B, goffs, d2, imm, tag)
    dm[0] = I(f"s_mul_i32 {d2}, {sW}, {mul}") + dm[0]
    rd = [I([f"s_mul_i32 {u0}, {sW}, {mul}", f"s_add_u32 {u0}, {u0}, {imm}", f"v_add_u32 {vb}, {u0}, {vTP}", need_ins(tag)])]
    for j, kk in enumerate(kks):
        for ct in range(2):
            rd.append(tr("a", (kk * 2 + ct) * 4, vb, 2048 * j + 512 * ct))
    return dm, rd

def w2_round(rnd, vb):
    k = {1: 13, 2: 0, 3: 18, 4: 23}[rnd]
    pieces = {1: [(5, 16384, 0)],
              2: [(8, 16384, 0), (4, 8192, R2), (1, 2048, SPARE)],
              3: [(4, 8192, R2), (1, 2048, SPARE)],
              4: [(4, 8192, SL), (1, 2048, SPARE)]}[rnd]
    dm, rd = [], []
    for n, (cnt, mul, imm) in enumerate(pieces):
        a, b = w2_piece(list(range(k, k + cnt)), mul, imm, f"w2r{rnd}_{n}", vb)
        dm += a; rd += b
        k += cnt
    return dm, rd

def wo_items():
    it = dma(sWO, vo2, d1, [j * 8 * 1024 for j in range(16)], d2, 0, "wo")
    it[0] = I([f"s_and_b32 {d1}, {sW}, 1", f"s_lshl_b32 {d1}, {d1}, 18", f"s_lshr_b32 {d2}, {sW}, 1", f"s_lshl_b32 {d2}, {d2}, 17",
               f"s_add_u32 {d1}, {d1}, {d2}", f"s_and_b32 {d2}, {sCT}, 14", f"s_lshl_b32 {d2}, {d2}, 6", f"s_add_u32 {d1}, {d1}, {d2}",
               f"s_lshl_b32 {d2}, {sW}, 14"]) + it[0]
    return it

def w1_items(part):
    if part == "AB":
        rows, n, g0, sh, imm = 128, 16, 0, 14, 0
    else:
        rows, n, sh = 64, 8, 13
        g0, imm = (128, R2) if part == "CD1" else (128 + 256 * 3584, SL)
    it = dma(sW1, vo1, d1, [g0 + j * 8 * 3584 for j in range(n)], d2, imm, "w1" + part)
    it[0] = I([f"s_mul_i32 {d1}, {sW}, {rows * 3584}", f"s_lshl_b32 {d2}, {sM}, 8", f"s_add_u32 {d1}, {d1}, {d2}",
               f"s_lshl_b32 {d2}, {sW}, {sh}"]) + it[0]
    return it


def asel(n):
    return I([f"v_lshrrev_b32 v{n}, 2, {vL}", f"v_xor_b32 v{n}, v{n}, {vL}", f"v_bfe_u32 v{n}, v{n}, 2, 1",
              f"v_add_u32 v{n}, -1, v{n}", f"v_and_b32 v{n}, 0x3f803f80, v{n}",
              f"v_mov_b32 v{n + 1}, v{n}", f"v_mov_b64 {V(n + 2, 2)}, {V(n, 2)}"])


def table_write(c, tab, va, bias=None):
    o = [f"v_cvt_pk_bf16_f32 v{c + 2}, v{c}, v{c}",
         f"v_lshlrev_b32 v{c + 1}, 16, v{c + 2}",
         f"v_sub_f32 v{c + 1}, v{c}, v{c + 1}",
         f"v_and_b32 v{c + 3}, 0xffff, v{c + 2}",
         f"v_cvt_pk_bf16_f32 v{c + 2}, v{c}, v{c + 1}"]
    if bias:
        o.append(f"v_lshl_or_b32 v{c + 3}, {bias}, 16, v{c + 3}")
    o.append(f"ds_write_b64 {va}, {V(c + 2, 2)} offset:{tab * 1024}")
    return [I(x) for x in o]


def table_addr(va):
    return I([f"s_lshr_b32 {u0}, {sW}, 1", f"s_lshl_b32 {u0}, {u0}, 9", f"s_and_b32 {u1}, {sW}, 1", f"s_lshl_b32 {u1}, {u1}, 3",
              f"s_add_u32 {u0}, {u0}, {u1}", f"s_add_u32 {u0}, {u0}, {TAB0}",
              f"v_and_b32 {va}, 0x1f0, {vL16}", f"v_add_u32 {va}, {u0}, {va}"])


def stats_finish(a, b, c, d, ex, mlp, r, ir):
    o = [f"v_mul_f32 {a}, {fc(-1.0 / 512)}, {a}",
         f"v_mul_f32 {c}, {a}, {a}",
         f"v_fma_f32 {b}, {b}, {u3}, -{c}",
         f"v_cvt_pk_bf16_f32 v{ex}, {a}, {a}",
         f"v_max_f32 {b}, 0, {b}",
         f"v_add_f32 {c}, {fc(EPS)}, {b}",
         f"v_rsq_f32 {r}, {c}",
         f"v_lshlrev_b32 {d}, 16, v{ex}",
         f"v_sub_f32 {d}, {a}, {d}"]
    o = [f"s_mov_b32 {u3}, {fc(1.0 / 512)}"] + o
    if mlp:
        o += [f"v_mul_f32 {b}, {b}, {r}", f"v_mul_f32 {b}, {b}, {r}", f"v_add_f32 {b}, {fc(EPS)}, {b}",
              f"v_rsq_f32 {b}, {b}", f"v_mov_b32 v{ex + 2}, v{ex}", f"v_mul_f32 {r}, {b}, {r}", f"v_rcp_f32 {ir}, {r}",
              f"v_cvt_pk_bf16_f32 v{ex + 1}, {d}, {ir}", f"v_and_b32 {a}, 0xffff0000, v{ex + 1}", f"v_sub_f32 {a}, {ir}, {a}",
              f"v_cvt_pk_bf16_f32 v{ex + 3}, {d}, {a}"]
    else:
        o += [f"v_mov_b32 v{ex + 2}, v{ex}", f"v_cvt_pk_bf16_f32 v{ex + 1}, {d}, {d}", f"v_mov_b32 v{ex + 3}, v{ex + 1}"]
    return [I(x) for x in o]


def x_loads(xoff, stoff, stv):
    setup = I([f"s_lshl_b32 {t1}, {sT}, 15", f"s_lshl_b32 {t2}, {sT}, 12", f"s_add_u32 {t2}, {t2}, {stoff}", f"v_lshlrev_b32 v{stv + 15}, 2, {vL}"])
    items = []
    for t in range(32):
        if t == opt("XSP", 16):
            for s in range(0, 16, 4):
                items.append(I([f"buffer_load_dword v{stv + s + e}, v{stv + 15}, {sWS}, {t2} offen offset:{(s + e) * 256} sc1" for e in range(4)]))
        o = []
        if t % 4 == 0:
            o.append(f"s_add_u32 {t0}, {t1}, {xoff + t * 1024}")
        o.append(f"buffer_load_dwordx4 {V(XF + 4 * t)}, {vL16}, {sWS}, {t0} offen offset:{(t % 4) * 1024} sc1{ntm('X')}")
        items.append(I(o))
    return setup, items


def attach(groups, items, start=0, per=1):
    items = list(items)
    for n in range(start, len(groups)):
        for _ in range(per):
            if items:
                groups[n] = groups[n] + I(items.pop(0))
    assert not items
    return groups


def stats_sum(stv):
    o = []
    for st in (8, 4, 2, 1):
        for i in range(st):
            o.append(f"v_add_f32 v{stv + i}, v{stv + i}, v{stv + i + st}")
    o += [f"v_mov_b32 v{stv + 1}, v{stv}", "s_nop 0", f"v_permlane32_swap_b32 v{stv}, v{stv + 1}"]
    return [I(x) for x in o]


def prologue():
    P("s_cmp_ge_u32 s2, 256")
    P("s_cbranch_scc1 L_end")
    P.add(tick("s.start"))
    P("s_load_dwordx16 s[64:79], s[0:1], 0")
    P("s_load_dwordx4 s[80:83], s[0:1], 64")
    P("s_load_dwordx2 s[84:85], s[0:1], 80")
    P(f"v_lshrrev_b32 {x0}, 6, v0")
    P("v_and_b32 v0, 63, v0")
    P(f"v_readfirstlane_b32 {sW}, {x0}")
    P("s_and_b32 s3, s2, 7")
    P(f"s_lshl_b32 {sC}, s3, 1")
    P("s_bfe_u32 s3, s2, 0x10003")
    P(f"s_or_b32 {sC}, {sC}, s3")
    P(f"s_lshr_b32 {sM}, s2, 4")
    P(f"v_lshlrev_b32 {vL16}, 4, {vL}")
    P(f"s_lshl_b32 {sT}, {sC}, 2")
    P(f"s_add_u32 {sT}, {sT}, {sW}")
    P(f"v_lshrrev_b32 {x0}, 3, {vL}")
    P(f"v_xor_b32 {x2}, {x0}, {vL}")
    P(f"v_and_b32 {x2}, 7, {x2}")
    P(f"v_lshlrev_b32 {x2}, 4, {x2}")
    P(f"v_lshl_add_u32 {vX0}, {x0}, 10, {x2}")
    P(f"v_xor_b32 {vX1}, 16, {vX0}")
    P(f"v_lshrrev_b32 {x1}, 5, {vL}")
    P(f"v_lshrrev_b32 {voQ}, 2, {vL}")
    P(f"v_mul_u32_u24 {voQ}, 3072, {voQ}")
    P(f"v_and_b32 {x0}, 0x30, {vL16}")
    P(f"v_add_u32 {voQ}, {voQ}, {x0}")
    P(f"s_lshl_b32 {t5}, s3, 1")
    P(f"s_and_b32 {t0}, {sM}, 1")
    P(f"s_or_b32 {t5}, {t5}, {t0}")
    P(f"s_bfe_u32 {t0}, {sM}, 0x20001")
    P(f"s_xor_b32 {t5}, {t5}, {t0}")
    ROT = opt("ROT", 0)
    if ROT == 0:
        P(f"s_mov_b32 {t5}, 0")
    elif ROT == 1:
        P(f"s_and_b32 {t5}, {t5}, 1")
        P(f"s_lshl_b32 {t5}, {t5}, 1")
    elif ROT == 2:
        P(f"s_lshl_b32 {t5}, {t5}, 1")
    elif ROT == 3:
        P(f"s_and_b32 {t5}, {t5}, 1")
    elif ROT == 4:
        P(f"s_lshr_b32 {t5}, {sM}, 1")
    elif ROT == 5:
        P(f"s_lshr_b32 {t5}, {sM}, 1")
        P(f"s_lshl_b32 {t0}, s3, 2")
        P(f"s_xor_b32 {t5}, {t5}, {t0}")
    elif ROT == 6:
        P(f"s_and_b32 {t5}, {sM}, 7")
    elif ROT == 7:
        P(f"s_lshr_b32 {t5}, {sM}, 2")
        P(f"s_lshl_b32 {t5}, {t5}, 1")
    elif ROT == 8:
        P(f"s_lshl_b32 {t5}, {t5}, 1")
        P(f"s_lshr_b32 {t0}, {sM}, 3")
        P(f"s_or_b32 {t5}, {t5}, {t0}")
    if opt("ROTX", 0):
        P(f"s_and_b32 {t0}, s2, 7")
        P(f"s_xor_b32 {t5}, {t5}, {t0}")
    P(f"s_lshl_b32 {t3}, {sT}, 15")
    P(f"s_mul_i32 {t4}, {sW}, {16 * 3072}")
    P(f"s_lshl_b32 {d2}, {sM}, 6")
    P(f"s_add_u32 {t4}, {t4}, {d2}")
    P(f"s_lshl_b32 {d2}, {sW}, 10")
    P(f"s_lshl_b32 {d3}, {sW}, 14")
    def srd(n, src, size):
        P(f"s_mov_b64 s[{n}:{n + 1}], s[{src}:{src + 1}]")
        P(f"s_mov_b32 s{n + 2}, {size}")
        P(f"s_mov_b32 s{n + 3}, 0x00020000")
    ini = init_l0()
    P.add(I(ini[0]))
    srd(28, 84, 64 * MB)
    srd(8, 64, 2 * MB)
    srd(12, 66, 512 * 1536 * 2)
    IP = [int(c) for c in OPT.get("IP", "11020")]
    assert sum(IP) == 4
    global INI
    INI = ini[1:5]
    P.add(I(ini[5:] + INI[:IP[0]] + x0_items(0) + w0_items(0) + INI[IP[0]:IP[0] + IP[1]] + x0_items(1) + w0_items(1) + INI[IP[0] + IP[1]:sum(IP[:3])]))
    INI = [INI[sum(IP[:3]):sum(IP[:4])], INI[sum(IP[:4]):]]
    P.add(tick("s.c0"))
    srd(44, 82, 256)
    P(f"s_getreg_b32 {sMODE}, hwreg(HW_REG_XCC_ID, 0, 4)")
    P(f"s_or_b32 {sMODE}, {sMODE}, 0x10")
    P.add(lead_init())
    srd(16, 68, 512 * 512 * 2)
    srd(20, 72, 512 * 1792 * 2)
    srd(24, 76, 1792 * 512 * 2)
    srd(32, 80, 2 * MB)
    srd(36, 78, 1024)
    srd(40, 74, 3584)
    P(f"v_bfe_u32 {x0}, {vL}, 2, 2")
    P(f"v_lshl_add_u32 {x0}, {x1}, 3, {x0}")
    P(f"v_lshlrev_b32 {x0}, 6, {x0}")
    P(f"v_bfe_u32 {x2}, {vL}, 4, 1")
    P(f"v_lshl_add_u32 {x0}, {x2}, 5, {x0}")
    P(f"v_and_b32 {x2}, 1, {vL}")
    P(f"v_lshl_add_u32 {x0}, {x2}, 4, {x0}")
    P(f"v_bfe_u32 {x2}, {vL}, 1, 1")
    P(f"v_lshl_add_u32 {vTR}, {x2}, 3, {x0}")
    P(f"v_add_u32 {vTR1}, 0x10000, {vTR}")
    P(f"v_lshl_add_u32 {vTP}, {x1}, 9, {vTR}")
    P(f"v_add_u32 {vTP1}, 0x10000, {vTP}")
    P(f"s_and_b32 {t0}, {sM}, 1")
    P(f"s_lshl_b32 {t0}, {t0}, 1")
    P(f"s_lshl_b32 {sTP}, {sC}, 2")
    P(f"s_add_u32 {sTP}, {sTP}, {t0}")
    P(f"s_lshr_b32 {t0}, {sW}, 1")
    P(f"s_add_u32 {sTP}, {sTP}, {t0}")
    P(f"s_and_b32 {u0}, {sM}, 14")
    P(f"s_and_b32 {u1}, {sW}, 1")
    P(f"s_add_u32 {sCT}, {u0}, {u1}")
    P(f"s_mul_i32 {sW2B}, {t0}, {896 * 1024}")
    P(f"s_lshl_b32 {t0}, {u1}, 14")
    P(f"s_add_u32 {sW2B}, {sW2B}, {t0}")
    P(f"s_lshl_b32 {u0}, {u0}, 6")
    P(f"s_add_u32 {sW2B}, {sW2B}, {u0}")
    P(f"v_bfe_u32 {x0}, {vL}, 2, 3")
    P(f"v_and_b32 {x2}, 0x30, {vL16}")
    P(f"v_mul_u32_u24 {vo1}, 3584, {x0}")
    P(f"v_lshl_add_u32 {vo2}, {x0}, 10, {x2}")
    P(f"v_add_u32 {vo1}, {vo1}, {x2}")
    P(f"v_lshl_add_u32 {vo1}, {x1}, 6, {vo1}")
    P(f"v_xor_b32 {x0}, {u1}, {x1}")
    P(f"v_lshl_add_u32 {vo2}, {x0}, 6, {vo2}")
    P(f"v_and_b32 {x0}, 31, {vL}")
    P(f"v_lshlrev_b32 {x2}, 2, {x1}")
    P(f"v_sub_u32 {x0}, {x0}, {x2}")
    for r in range(16):
        P(f"v_cmp_le_i32_e64 {sMASK(r)}, {(r & 3) + 8 * (r >> 2)}, {x0}")
    P(f"v_mov_b32 {x0}, 0xffff")
    P(f"v_mov_b32 {x2}, 0xffff0000")
    for d in range(8):
        P(f"v_cndmask_b32_e64 v16, 0, {x0}, {sMASK(2 * d)}")
        P(f"v_cndmask_b32_e64 v17, 0, {x2}, {sMASK(2 * d + 1)}")
        P(f"v_or_b32 v16, v16, v17")
        P(f"v_accvgpr_write_b32 a{240 + d}, v16")


def init_kv(L, tag):
    it = []
    if L:
        it.append(I(f"s_add_u32 {u2}, {u2}, {LSTRIDE}"))
    for j in range(4):
        it.append([Ins(f"buffer_store_dwordx4 a[236:239], {vL16}, {sWS}, {u2} offen offset:{1024 * j} sc1", xdst=[tag])])
    return it


def init_l0():
    it = [I([f"v_accvgpr_write_b32 a{236 + i}, -1" for i in range(4)] +
            [f"s_lshl_b32 {u2}, {sT}, 4", f"s_add_u32 {u2}, {u2}, {sM}", f"s_lshl_b32 {u2}, {u2}, 12", f"s_add_u32 {u2}, {u2}, {LB(0) + KV_O}",
             "v_mov_b32 v20, 0", f"s_lshl_b32 {u0}, {sC}, 4", f"s_add_u32 {u0}, {u0}, {sM}", f"s_lshl_b32 {sFP}, {u0}, 7", f"s_add_u32 {sFP}, {sFP}, {MBOX}",
             f"s_lshl_b32 {u0}, {u0}, 2", f"s_add_u32 {sFA}, {u0}, {sW}",
             f"s_lshl_b32 {t1}, {sC}, 9", f"s_lshl_b32 {u0}, {sM}, 2", f"s_add_u32 {t1}, {t1}, {u0}", f"s_add_u32 {t1}, {t1}, {ARR}",
             f"v_lshrrev_b32 v21, 4, {vL}", f"v_and_b32 {vPO}, 15, {vL}", f"v_lshlrev_b32 {vPO}, 2, {vPO}", f"v_lshl_add_u32 v22, v21, 7, {vPO}",
             f"s_or_b32 {t2}, {sM}, {sW}"])]
    it += init_kv(0, "init")
    lsk = P.label()
    it.append(I([f"s_cmp_lg_u32 {t2}, 0", f"s_cbranch_scc1 {lsk}", f"buffer_store_dword v20, v22, {sWS}, {t1} offen sc1", lsk + ":"]))
    it.append([Ins(f"buffer_store_dword v20, off, {sWS}, {sFP} sc1", xdst=["init"])])
    return it


def lead_init():
    lsk = P.label()
    return I([f"s_cmp_lg_u32 {t2}, 0", f"s_cbranch_scc1 {lsk}",
              f"s_min_u32 {u0}, {sC}, 2", f"v_cmp_ge_u32 vcc, {u0}, v21", f"v_cndmask_b32 {vPO}, {vPO}, v22, vcc",
              f"v_lshlrev_b32 v21, 2, {vL}", f"v_lshlrev_b32 v22, 7, {vL}", f"s_lshl_b32 {u0}, {sC}, 8", f"s_add_u32 {u0}, {u0}, {FPACK}", f"s_lshl_b32 {u1}, {sC}, 13",
              f"buffer_store_dword v20, v21, {sWS}, {u0} offen sc1", f"buffer_store_dword v20, v22, {sWS}, {u1} offen sc1", lsk + ":"])


def arrive(vd, so):
    return ["s_mov_b64 exec, 7", f"buffer_store_dword {vd}, {vPX}, {sWS}, {so} offen sc1", "s_mov_b64 exec, -1"]


def misc_l0():
    it = []
    it.append(I([f"v_and_b32 v21, 31, {vL}", f"v_lshrrev_b32 v22, 5, {vL}", "v_lshlrev_b32 v21, 10, v21", "v_lshlrev_b32 v22, 4, v22",
                 "v_add_u32 v21, v21, v22",
                 f"s_lshl_b32 {u0}, {sTP}, 15", f"s_lshl_b32 {u1}, {sCT}, 6", f"s_add_u32 {u0}, {u0}, {u1}"]))
    it.append(I(f"buffer_load_dwordx4 a[224:227], v21, {sX}, {u0} offen"))
    it.append(I(f"buffer_load_dwordx4 a[228:231], v21, {sX}, {u0} offen offset:32"))
    it.append(I(f"buffer_load_dwordx4 a[248:251], v22, {sB2}, {u1} offen"))
    it.append(I(f"buffer_load_dwordx4 a[252:255], v22, {sB2}, {u1} offen offset:32"))
    return it


def touch(srd, total, vt, va, st=u0, sh=7):
    share, pb = total // 128, 64 << sh
    it = [I([f"s_lshr_b32 {st}, s2, 3", f"s_lshl_b32 {st}, {st}, 2", f"s_add_u32 {st}, {st}, {sW}", f"s_mul_i32 {st}, {st}, {share}",
             f"v_lshlrev_b32 {va}, {sh}, {vL}"])]
    pos, base = 0, 0
    while pos < share:
        a = min(pos, share - pb)
        assert a >= 0
        o = []
        if a - base >= 4096:
            o.append(f"s_add_u32 {st}, {st}, {a - base}")
            base = a
        o.append(f"buffer_load_dword {vt}, {va}, {srd}, {st} offen offset:{a - base}{ntm(srd)}")
        it.append(I(o))
        pos += pb
    it[1] = it[0] + it[1]
    return it[1:]


def touch_wq(vt, st):
    return [I([f"s_lshr_b32 {st}, s2, 3", f"s_mul_i32 {st}, {st}, {16 * 3072}", f"s_lshl_b32 {d0}, {sW}, 8", f"s_add_u32 {st}, {st}, {d0}",
               f"buffer_load_dword {vt}, {voQ}, {sWQ}, {st} offen"]),
            I(f"buffer_load_dword {vt}, {voQ}, {sWQ}, {st} offen offset:128")]


aK, aV, aQ, RING, STV, EX, TABS = 16, 32, 48, 64, 96, 112, 116
HB = XF


def kv_epilogue(L):
    r = x0
    it = []
    for i in range(16):
        it.append(f"v_mul_f32 v{aK + i}, v{aK + i}, {r}")
    for i in range(8):
        it.append(f"v_cvt_pk_bf16_f32 v{aK + i}, v{aK + 2 * i}, v{aK + 2 * i + 1}")
    it.append([f"s_lshl_b32 {u0}, {sT}, 4", f"s_add_u32 {u0}, {u0}, {sM}", f"s_lshl_b32 {u0}, {u0}, 12", f"s_add_u32 {u0}, {u0}, {LB(L) + KV_O}"])
    it.append(f"buffer_store_dwordx4 {V(aK)}, {vL16}, {sWS}, {u0} offen sc1")
    it.append(f"buffer_store_dwordx4 {V(aK + 4)}, {vL16}, {sWS}, {u0} offen offset:2048 sc1")
    for i in range(16):
        it.append(f"v_mul_f32 v{aV + i}, v{aV + i}, v{STV + i}")
    for i in range(8):
        it.append(f"v_cvt_pk_bf16_f32 v{aV + i}, v{aV + 2 * i}, v{aV + 2 * i + 1}")
    it.append(f"buffer_store_dwordx4 {V(aV)}, {x2}, {sWS}, {u0} offen offset:1024 sc1")
    it.append(f"buffer_store_dwordx4 {V(aV + 4)}, {x2}, {sWS}, {u0} offen offset:1536 sc1")
    it.append([f"s_mul_i32 {u1}, {sW}, {PITCH}", f"s_add_u32 {u1}, {u1}, {SL + 8 * PITCH}"])
    it.append(f"v_add_u32 {x1}, {u1}, {vL16}")
    it.append(f"v_add_u32 {x2}, {u1}, {x2}")
    it.append(f"ds_write_b128 {x1}, {V(aK)}")
    it.append(f"ds_write_b128 {x1}, {V(aK + 4)} offset:2048")
    it.append(f"ds_write_b128 {x2}, {V(aV)} offset:1024")
    it.append(f"ds_write_b128 {x2}, {V(aV + 4)} offset:1536")
    it.append(f"v_mul_f32 {r}, {fc(0.25 * LOG2E)}, {r}")
    return [I(x) for x in it]


def r_bcast():
    it = [[f"s_lshl_b32 {u0}, {sW}, 7", f"s_add_u32 {u0}, {u0}, {RBC}"],
          f"v_and_b32 {x1}, 31, {vL}", f"v_lshl_add_u32 {x1}, {x1}, 2, {u0}", f"ds_write_b32 {x1}, {x0}",
          f"v_lshrrev_b32 {x2}, 5, {vL}", f"v_lshl_add_u32 {x1}, {x2}, 4, {u0}"]
    for g in range(4):
        it.append(f"ds_read_b128 {V(STV + 4 * g)}, {x1} offset:{32 * g}")
    it += [f"v_lshlrev_b32 {x2}, 8, {x2}", f"v_and_b32 {x1}, 0xf0, {vL16}", f"v_add_u32 {x2}, {x2}, {x1}",
           f"v_bfe_u32 {x1}, {vL}, 4, 1", f"v_lshl_add_u32 {x2}, {x1}, 11, {x2}"]
    return [I(x) for x in it]


def kv_groups(ts, D=3, lo=0, hi=32):
    g = []
    for k in ts:
        it = []
        t = k + D
        if lo <= t < hi:
            it += tr1(RING + 8 * (t % 4), R0 + t * 1024) + tr1(RING + 8 * (t % 4) + 4, R1 + t * 1024)
        it += I([f"{MF} {V(aK, 16)}, {V(RING + 8 * (k % 4))}, {V(XF + 4 * k)}, {V(aK, 16) if k else 0}",
                 f"{MF} {V(aV, 16)}, {V(XF + 4 * k)}, {V(RING + 8 * (k % 4) + 4)}, {V(aV, 16) if k else 0}"])
        g.append(it)
    return g


def kv_pre(t0_, n=3):
    o = []
    for t in range(t0_, t0_ + n):
        o += tr1(RING + 8 * (t % 4), R0 + t * 1024) + tr1(RING + 8 * (t % 4) + 4, R1 + t * 1024)
    return o


def tab_reads(js, va):
    return [I(f"v_add_u32 {va}, {TAB0}, {vL16}")] + [I(f"ds_read_b128 {V(TABS + 4 * j)}, {va} offset:{1024 * j}") for j in js]


def halo_setup(L):
    o = []
    for i, (back, sk, sv) in enumerate(((8, d1, d2), (4, d3, t5))):
        o += [f"s_sub_u32 {u0}, {sT}, {back}", f"s_cselect_b32 {u0}, 0, {u0}", f"s_cselect_b32 {u1}, 0x200, -1", f"s_cselect_b32 {u2}, {OOB}, 0",
              f"s_lshl_b32 {u0}, {u0}, 4", f"s_add_u32 {u0}, {u0}, {sM}", f"s_lshl_b32 {u0}, {u0}, 12", f"s_add_u32 {sk}, {u0}, {LB(L) + KV_O}",
              f"s_add_u32 {sv}, {sk}, {u2}", f"v_and_b32 v{STV + i}, {u1}, {vL16}"]
    return [I(o)]


def halo_loads():
    o = []
    for i, (sk, sv) in enumerate(((d1, d2), (d3, t5))):
        for j in range(4):
            va, so = (f"v{STV + i}", sk) if j % 2 == 0 else (vL16, sv)
            o.append(f"buffer_load_dwordx4 {V(HB + 16 * i + 4 * j)}, {va}, {sWS}, {so} offen offset:{1024 * j} sc1{ntm('KV')}")
    return [I(x) for x in o]


def lead_try(chk, iss, ta, tb, final=False):
    lsk, lag, lp = P.label(), P.label(), P.label()
    o = [f"s_cmp_lg_u32 {t2}, 0", f"s_cbranch_scc1 {lsk}"]
    if final:
        o += [f"s_mov_b32 {sCNT}, 30000"]
    if chk:
        o += [f"v_accvgpr_read_b32 {ta}, {chk}"] + ([lp + ":"] if final else [])
        o += [f"v_cmp_eq_u32 vcc, 0, {ta}", f"s_cbranch_vccnz {lag}",
              f"v_cmp_ne_u32 vcc, {sMODE}, {ta}", f"v_lshlrev_b32 {tb}, 7, {vL}", f"s_lshl_b32 {u1}, {sC}, 2", f"s_and_b32 {u0}, vcc_lo, 0xffff", f"s_cselect_b32 {t2}, 1, 2",
              f"v_mov_b32 {ta}, {t2}", "s_mov_b64 exec, 0xffff", f"buffer_store_dword {ta}, {tb}, {sWS}, {sFP} offen sc1",
              "s_mov_b64 exec, 1", f"buffer_store_dword {ta}, off, {sDBG}, {u1} sc1", "s_mov_b64 exec, -1"]
        if final:
            OUTL.extend(I([lag + ":", f"v_mov_b32 {ta}, {sMODE}", f"v_lshrrev_b32 {tb}, 7, {vPO}", f"v_sub_u32 {tb}, {sC}, {tb}", f"v_lshlrev_b32 {tb}, 2, {tb}"] + arrive(ta, t1) +
                          [f"buffer_load_dword {ta}, {vPO}, {sWS}, {t1} offen sc1", f"buffer_load_dword {tb}, {tb}, {sDBG}, 0 offen sc1",
                           f"v_or_b32 {ta}, {ta}, {tb}", f"s_sub_u32 {sCNT}, {sCNT}, 1", f"s_cbranch_scc0 {lp}", "s_endpgm"]))
        elif iss:
            o += [f"s_branch {lsk}", lag + ":"]
        else:
            o += [lag + ":"]
    if iss:
        o += [f"buffer_load_dword {iss}, {vPO}, {sWS}, {t1} offen sc1"]
    return I(o + [lsk + ":"])


def handshake_issue():
    return [I([f"s_buffer_load_dword {t3}, {sWS}, {sFP} glc"])]


def handshake_check():
    b, c = f"v{STV + 3}", f"v{STV + 4}"
    ls, lr, lp = P.label(), P.label(), P.label()
    l2 = P.label()
    OUTL.extend(I([ls + ":", f"s_mov_b32 {sCNT}, 30003", f"v_mov_b32 {b}, {sMODE}", lp + ":", f"s_buffer_load_dword {t3}, {sWS}, {sFP} glc",
                   f"s_cmp_lg_u32 {t3}, 0", f"s_cbranch_scc1 {lr}",
                   f"s_and_b32 {u0}, {sCNT}, 3", f"s_or_b32 {u0}, {u0}, {sW}", f"s_cbranch_scc1 {l2}"] + arrive(b, t1) +
                  [l2 + ":", f"s_sub_u32 {sCNT}, {sCNT}, 1", f"s_cbranch_scc0 {lp}", "s_endpgm"]))
    o = [f"s_cmp_eq_u32 {t3}, 0", f"s_cbranch_scc1 {ls}", lr + ":"]
    it = [I(o)]
    o = [f"s_cmp_eq_u32 {t3}, 1"]
    if OPT.get("SLOW"):
        o.append("s_cmp_eq_u32 0, 0")
    o += [f"s_cselect_b32 {sMODE}, 0, 1", f"s_cselect_b32 {u0}, 7, {opt('FSH', 2)}", f"s_cselect_b32 {u1}, 0, {FPACK if opt('FSH', 2) == 2 else 0}",
          f"s_lshl_b32 {sFA}, {sFA}, {u0}", f"s_add_u32 {sFA}, {sFA}, {u1}",
          f"s_lshl_b32 {sFP}, {sC}, 6", f"s_lshl_b32 {sFP}, {sFP}, {u0}", f"s_add_u32 {sFP}, {sFP}, {u1}"]
    it.append(I(o))
    it.append(I([f"s_lshr_b32 {u1}, {sW}, 1", f"s_lshl_b32 {u1}, {u1}, 2", f"s_and_b32 {u2}, {sW}, 1", f"s_lshl_b32 {u3}, {u2}, 1", f"s_add_u32 {u1}, {u1}, {u3}",
                 f"v_and_b32 {b}, 14, {vL}", f"v_and_b32 {c}, 1, {vL}", f"v_lshl_add_u32 {b}, {b}, 2, {c}", f"v_add_u32 {b}, {u1}, {b}",
                 f"v_lshlrev_b32 {vPX}, {u0}, {b}"]))
    it.append(I([f"s_lshl_b32 {u2}, {u2}, 5", f"s_and_b32 {u1}, {sTP}, 3", f"s_add_u32 {u1}, {u1}, {u2}",
                 f"v_and_b32 {b}, 7, {vL}", f"v_lshl_add_u32 {b}, {b}, 2, {u1}", f"v_lshlrev_b32 {vPO}, {u0}, {b}"]))
    it.append(I([f"s_lshr_b32 {u1}, {sW}, 1", f"s_mul_i32 {u1}, {u1}, 28", f"s_and_b32 {u2}, {sTP}, 2", f"s_add_u32 {u1}, {u1}, {u2}",
                 f"v_bfe_u32 {b}, {vL}, 1, 3", f"v_min_u32 {b}, 6, {b}", f"v_lshl_add_u32 {b}, {b}, 2, {c}", f"v_add_u32 {b}, {u1}, {b}",
                 f"v_lshlrev_b32 {vPH}, {u0}, {b}"]))
    return it


def phase1(L):
    ext = I([f"{MF} {V(aK, 16)}, {V(TABS)}, {V(EX)}, {V(aK, 16)}", f"{MF} {V(aV, 16)}, {V(EX)}, {V(TABS + 4)}, {V(aV, 16)}"])
    D = 6
    qg = []
    for k in range(32):
        it = tr1(RING + 4 * ((k + D) % 8), R2 + (k + D) * 1024) if k + D < 32 else []
        qg.append(it + I(f"{MF} {V(aQ, 16)}, {V(RING + 4 * (k % 8))}, {V(XF + 4 * k)}, {V(aQ, 16) if k else 0}"))
    qpre = []
    for t in range(D):
        qpre += tr1(RING + 4 * t, R2 + t * 1024)
    HL = opt("HL", 20)
    if L == 0:
        AS, S1, S2, CK, CV, CF = 124, 96, 100, 104, 108, 48
        P.add(asel(AS))
        for i in range(4):
            P(f"v_mov_b32 v{S2 + i}, 0")
        P(f"v_lshrrev_b32 {x0}, 5, {vL}")
        P(f"v_bfe_u32 {x1}, {vL}, 3, 1")
        P(f"v_xor_b32 {x0}, {x0}, {x1}")
        P(f"v_xor_b32 {x0}, {x0}, {vL}")
        P(f"v_and_b32 {x0}, 7, {x0}")
        P(f"v_and_b32 {x1}, 31, {vL}")
        P(f"v_lshlrev_b32 {x1}, 7, {x1}")
        P(f"v_lshl_add_u32 {x0}, {x0}, 4, {x1}")
        P(f"s_add_u32 {t0}, {d3}, {SL}")
        P(f"v_add_u32 v{XA}, {t0}, {x0}")
        for k in range(1, 4):
            P(f"v_xor_b32 v{XA + k}, {32 * k}, v{XA}")
        P(f"v_add_u32 {x1}, {d2}, {vTR}")
        P.add(table_addr(x2))
        P(f"v_mov_b32 v118, {sMODE}")
        P(f"v_mul_u32_u24 {vPX}, 640, {vL}")
        P.add(tick("s.setup"))
        TS = opt("TS", 5)
        tw2 = touch(sW2, 1792 * 1024, "a232", vPH, t0, TS)
        tw2b = touch(sW2, 1792 * 1024, "a232", "v119", t0, TS)
        TW = [int(c, 16) for c in OPT.get("TW", "000000003")]
        I1 = [int(c) for c in OPT.get("I1", "001111000")]
        i1 = init_kv(1, "init1")
        i1 = [i1[0] + i1[1]] + i1[2:]
        wq = sum((w0_items(h, (2,), "wq") for h in range(8)), [])
        WQ1 = opt("WQ1", 5)
        strm = {h: x0_items(h) + w0_items(h) for h in range(2, 8)}
        strm.update({8: wq[:WQ1], 9: wq[WQ1:], 10: []})
        strm[2] = INI[0] + strm[2]
        strm[3] = INI[1] + strm[3]
        if opt("TQ", 4):
            strm[opt("TQ", 4)] += touch_wq("a232", u0)
        for n in range(2, 11):
            strm[n] = i1[:I1[n - 2]] + strm[n] + tw2[:TW[n - 2]]
            tw2, i1 = tw2[TW[n - 2]:], i1[I1[n - 2]:]
        assert not i1
        SIG = 3 if INI[1] else (2 if INI[0] else opt("SIG", 1))
        LT0 = opt("LT0", SIG + 1)
        def sync(h):
            o = [need_ins(f"x{h}")]
            o += [f"ds_read_b128 {V(XF + 16 * h + 4 * t)}, v{XA + t} offset:{4096 * (h & 3)}" for t in range(4)]
            if h >= LT0:
                o += lead_try(f"a{233 + (h & 1)}" if h >= LT0 + 2 else None, f"a{233 + (h & 1)}", "v114", "v115")
            o += [need_ins(f"kv{h}")] + tr("v", CF + 8 * (h & 1), x1, R0 + 4096 * h) + tr("v", CF + 8 * (h & 1) + 4, x1, R1 + 4096 * h)
            if h >= SIG and (h - SIG) % opt("SIGS", 2) == 0:
                lsk = P.label()
                o += [f"s_cmp_lg_u32 {sW}, {1 + (h >> 1) % 3}", need_ins("init"), "s_barrier", f"s_cbranch_scc1 {lsk}"] + arrive("v118", t1) + [lsk + ":"]
            else:
                o += ["s_barrier"]
            return I(o) + tick(f"s.b{h}")
        def stats(h):
            o = []
            for t in range(4 * h, 4 * h + 4):
                o.append(I([f"v_dot2c_f32_bf16 v{S2 + j}, v{XF + 4 * t + j}, v{XF + 4 * t + j}" for j in range(4)] +
                           [f"{MF16} {V(S1)}, {V(AS)}, {V(XF + 4 * t)}, {V(S1) if t else 0}"]))
            return [I([f"{MF16} {V(CK)}, {V(AS)}, {V(CF + 8 * (h & 1))}, {V(CK) if h else 0}",
                       f"{MF16} {V(CV)}, {V(AS)}, {V(CF + 8 * (h & 1) + 4)}, {V(CV) if h else 0}"]) + o[0], o[1] + o[2], o[3]]
        P.add(sync(0))
        P.add(kv_pre(0))
        P.add(I(spread(stats(0), strm[2], 0.0, 0.7)))
        g = kv_groups(range(32))
        for i in range(8):
            lt = strm[i + 3]
            if i < 7:
                g[4 * i] += sync(i + 1)
                n = (len(lt) + 2) // 3
                for e in range(3):
                    g[4 * i + 1 + e] += I(lt[n * e:n * e + n]) + stats(i + 1)[e]
            else:
                attach(g, lt, 28, (len(lt) + 3) // 4)
        fin = [f"v_add_f32 v{S2}, v{S2}, v{S2 + 1}", f"v_add_f32 v{S2 + 2}, v{S2 + 2}, v{S2 + 3}", f"v_add_f32 v{S2}, v{S2}, v{S2 + 2}",
               f"v_mov_b32 v{S2 + 1}, v{S2}", f"v_permlane32_swap_b32 v{S2}, v{S2 + 1}", f"v_add_f32 v{S2}, v{S2}, v{S2 + 1}"]
        fin = [I(x) for x in fin] + stats_finish(f"v{S1}", f"v{S2}", f"v{S2 + 1}", f"v{S2 + 2}", EX, False, x0, None)
        P.add(I(g[:26]))
        fill = table_write(CK, 0, x2) + table_write(CV, 1, x2) + [(2, lead_try("a233", None, "v114", "v115"))] + [(2, x) for x in fin[:6]] + [barrier()] + tab_reads([0, 1], x2) + fin[6:] + r_bcast()
        P.add(weave(g[26:], fill))
        P.add(tick("s.kv"))
        P.need("init1")
        P.add(ext)
        P.add(I(kv_epilogue(0)))
        P.add(lead_try("a234", None, "v116", "v117", True))
        P.add(tick("0.kv"))
        CQ = 104
        P(f"v_add_u32 {x1}, {d2}, {vTR1}")
        P.add(table_addr(x2))
        P.need("wq")
        for h in range(8):
            P.add(tr("v", 16 + 4 * h, x1, 4096 * h))
        P("s_barrier")
        P.add(qpre)
        for j in range(8):
            P(f"{MF16} {V(CQ)}, {V(AS)}, {V(16 + 4 * j)}, {V(CQ) if j else 0}")
        tw2 = tw2b[len(tw2b) - len(tw2):]
        if tw2:
            tw2[0] = I(f"v_lshlrev_b32 v119, {TS}, {vL}") + tw2[0]
        fill = [(1, x) for x in table_write(CQ, 2, x2)] + [(opt("HSI", 6), x) for x in handshake_issue()] + [(8, barrier())] + tab_reads([2], x2) \
            + [(opt("HSC", 16), x) for x in handshake_check()] + halo_setup(0) + [(HL, x) for x in halo_loads()] + misc_l0()
        if opt("QT", 0):
            fill += tw2 + touch(sWO, 512 * 1024, "a232", "v119", t0, min(TS, 6))
        P.add(tick("0.qs"))
        P.add(weave(qg, fill))
    else:
        P.add(wq_setup())
        P.add(I(wq_items(2)))
        P.add(I(tab_reads([0, 1, 2], x2)))
        P.add(kv_pre(0))
        xs, xi = x_loads(LB(1) + XIN_O, LB(1) + ST2_O, STV)
        NB = opt("NB", 14)
        P.add(xs)
        P.add(poll(vPX, x1, 8))
        P.add(tick("1.pollx"))
        P.add(I(xi[:NB]))
        P.add(tick("1.xiss"))
        s = [f"v{STV + i}" for i in range(4)]
        fill = stats_sum(STV) + stats_finish(s[0], s[1], s[2], s[3], EX, False, x0, None) + r_bcast()
        P.add(weave(attach(kv_groups(range(32)), xi[NB:]), [(opt("XSP", 16) + 2, x) for x in fill]))
        P.add(ext)
        P.add(tick("1.kv"))
        P.add(barrier("wq"))
        P.add(qpre)
        fill = [(1, x) for x in kv_epilogue(1)] + halo_setup(1) + [(HL, x) for x in halo_loads()]
        P.add(weave(qg, fill))
    P(f"{MF} {V(aQ, 16)}, {V(TABS + 8)}, {V(EX)}, {V(aQ, 16)}")
```

```python
from k2_base import *
from k2_p1 import *

B1V, CC, CD_, AS4 = 48, 52, 56, 60
OM = OPT.get("OM", "").replace("_", " ")


def tile_out(x, pk, tmp, bit):
    for i in range(8):
        P(f"v_cvt_pk_bf16_f32 v{pk + i}, v{x + 2 * i}, v{x + 2 * i + 1}")
    P.add(xstore(f"buffer_store_dwordx4 {V(pk)}, {vL16}, {sWS}, {t1} offen", bit))
    P.add(xstore(f"buffer_store_dwordx4 {V(pk + 4)}, {vL16}, {sWS}, {t1} offen offset:1024", bit))
    a, b = V(tmp, 2), V(tmp + 2, 2)
    P(f"v_pk_add_f32 {a}, {V(x, 2)}, {V(x + 2, 2)}")
    P(f"v_pk_mul_f32 {b}, {V(x, 2)}, {V(x, 2)}")
    for i in range(1, 8):
        if i >= 2:
            P(f"v_pk_add_f32 {a}, {a}, {V(x + 2 * i, 2)}")
        P(f"v_pk_fma_f32 {b}, {V(x + 2 * i, 2)}, {V(x + 2 * i, 2)}, {b}")
    P(f"v_add_f32 v{tmp}, v{tmp}, v{tmp + 1}")
    P(f"v_add_f32 v{tmp + 2}, v{tmp + 2}, v{tmp + 3}")
    P(f"v_permlane32_swap_b32 v{tmp}, v{tmp + 2}")
    P(f"v_add_f32 v{tmp}, v{tmp}, v{tmp + 2}")
    P.add(xstore(f"buffer_store_dword v{tmp}, {x2}, {sWS}, {t2} offen", bit))


def tile_addr(xo, so):
    return I([f"s_lshl_b32 {t2}, {sTP}, 4", f"s_add_u32 {t2}, {t2}, {sCT}", f"s_lshl_b32 {t1}, {t2}, 11", f"s_add_u32 {t1}, {t1}, {xo}",
              f"s_lshl_b32 {t2}, {t2}, 8", f"s_add_u32 {t2}, {t2}, {so}", f"v_lshlrev_b32 {x2}, 2, {vL}"])


def phase3(L, late_rd):
    a0, a1, OF, WO = 16, 32, 64, 128
    P.add(barrier("wo"))
    if L == 0:
        d4, r4 = w2_round(4, x0)
        P.add(I(late_rd))
        P.add(I(d4[:8]))
    else:
        P.add(I(w1_items("CD2")))
        r4 = []
    P(f"s_and_b32 {t0}, {sW}, 1")
    P(f"s_lshl_b32 {t0}, {t0}, 14")
    P(f"v_add_u32 {x1}, {t0}, {vTP}")
    for ks in range(16):
        for ct in range(2):
            P.add(tr("v", WO + (ks * 2 + ct) * 4, x1, (ks >> 3) * 32768 + 2048 * (ks & 7) + 512 * ct))
    if L == 0:
        for d in range(8):
            P(f"v_accvgpr_read_b32 {x2}, a{224 + d}")
            P(f"v_lshlrev_b32 v{a0 + 2 * d}, 16, {x2}")
            P(f"v_and_b32 v{a0 + 2 * d + 1}, 0xffff0000, {x2}")
        P(f"v_and_b32 {x1}, 0x13, {vL}")
        P(f"v_bfe_u32 {x2}, {vL}, 2, 1")
        P(f"v_lshl_add_u32 {x1}, {x2}, 3, {x1}")
        P(f"v_bfe_u32 {x2}, {vL}, 3, 1")
        P(f"v_lshl_add_u32 {x1}, {x2}, 2, {x1}")
        P(f"v_lshlrev_b32 {x1}, 1, {x1}")
        P(f"s_lshl_b32 {t1}, {sM}, 8")
        P(f"s_cmp_ge_u32 {sW}, 2")
        P(f"s_cselect_b32 {t1}, {OOB}, {t1}")
        for e in range(4):
            P(f"buffer_load_ushort v{B1V + e}, {x1}, {sB1}, {t1} offen offset:{64 * e}")
        P.need("ds_any")
        P.add(I(d4[8:]))
    else:
        for i in range(16):
            P(f"v_accvgpr_read_b32 v{a0 + i}, a{224 + i}")
    P(f"s_lshl_b32 {t3}, {sTP}, 15")
    P(f"s_add_u32 {t3}, {t3}, {t0}")
    P(f"s_add_u32 {t3}, {t3}, {LB(L) + O_O}")
    P(f"s_xor_b32 {t0}, {sW}, 1")
    P(f"s_lshl_b32 {t0}, {t0}, 12")
    P(f"s_add_u32 {t0}, {t0}, {SCR3}")
    P(f"v_add_u32 {x0 if L else 'v52'}, {t0}, {vL16}")
    vw = x0 if L else "v52"
    P.add(tile_addr(LB(L) + X1_O, LB(L) + ST1_O))
    P.add(barrier())
    P.add(tick(f"{L}.B3b"))
    P.add(poll(vPO, x1, 16 * L + 1))
    P.add(tick(f"{L}.pollo"))
    for ks in range(16):
        if ks % 4 == 0 and ks:
            P(f"s_add_u32 {t3}, {t3}, 4096")
        P(f"buffer_load_dwordx4 {V(OF + 4 * ks)}, {vL16}, {sWS}, {t3} offen offset:{(ks % 4) * 1024} sc1{ntm('O')}")
    def mf(ks, ct):
        a = V(a0 if ct == 0 else a1, 16)
        return f"{MF} {a}, {V(WO + (ks * 2 + ct) * 4)}, {V(OF + 4 * ks)}, {a if (ks or ct == 0) else 0}"
    NT = 4
    g = [[mf(ks, 1), mf(ks, 0)] for ks in range(16 - NT)] + [[mf(ks, 1)] for ks in range(16 - NT, 16)]
    fill = w1_items("AB") + (w1_items("CD1") if L == 0 else [])
    P.add(I(spread(g, fill, 0.0, 1.0)))
    for n, ks in enumerate(range(16 - NT, 16)):
        P(mf(ks, 0))
        if n >= 1:
            for j in ([n - 1] if n < NT - 1 else range(n - 1, 4)):
                P(f"ds_write_b128 {vw}, {V(a1 + 4 * j)} offset:{1024 * j}")
    P(f"v_xor_b32 {vw}, 0x1000, {vw}")
    P.add(tick(f"{L}.p3mm"))
    P.add(barrier())
    for j in range(4):
        P(f"ds_read_b128 {V(OF + 4 * j)}, {vw} offset:{1024 * j}")
    for i in range(8):
        P(f"v_pk_add_f32 {V(a0 + 2 * i, 2)}, {V(a0 + 2 * i, 2)}, {V(OF + 2 * i, 2)}")
    tile_out(a0, OF + 16, OF + 24, 2 << (4 * L))
    for d in range(8):
        P(f"v_accvgpr_read_b32 {x1}, a{248 + d}")
        P(f"v_lshlrev_b32 v{OF}, 16, {x1}")
        P(f"v_and_b32 v{OF + 1}, 0xffff0000, {x1}")
        P(f"v_pk_add_f32 {V(a0 + 2 * d, 2)}, {V(a0 + 2 * d, 2)}, {V(OF, 2)}")
        P(f"v_accvgpr_write_b32 a{224 + 2 * d}, v{a0 + 2 * d}")
        P(f"v_accvgpr_write_b32 a{225 + 2 * d}, v{a0 + 2 * d + 1}")
    P.add(publish(16 * L + 3, x1))
    P.add(tick(f"{L}.p3end"))
    return r4


def gelu(a, c0, c1, ir, tmp, so, tag, bit, pk=False):
    res = []
    for g in range(4):
        if pk:
            xs = [V(a + 4 * g + 2 * e, 2) for e in range(2)]
            ts = [V(tmp + 2 * e, 2) for e in range(2)]
            bc = lambda r: f"v[{r[1:]}:{int(r[1:]) + 1}]"
            res += [f"v_pk_mul_f32 {t}, {x}, {x}" for x, t in zip(xs, ts)]
            res += [f"v_pk_fma_f32 {t}, {t}, {bc(c1)}, {bc(c0)} op_sel_hi:[1,0,0]" for t in ts]
            res += [f"v_pk_mul_f32 {t}, {t}, {x}" for x, t in zip(xs, ts)]
            res += [f"v_exp_f32 v{tmp + e}, v{tmp + e}" for e in range(4)]
            res += [f"v_pk_fma_f32 {t}, {t}, {bc(ir)}, {bc(ir)} op_sel_hi:[1,0,0]" for t in ts]
            res += [f"v_rcp_f32 v{tmp + e}, v{tmp + e}" for e in range(4)]
            res += [f"v_pk_mul_f32 {x}, {x}, {t}" for x, t in zip(xs, ts)]
        else:
            blk = []
            for e in range(4):
                x, t = f"v{a + 4 * g + e}", f"v{tmp + e}"
                blk.append([f"v_mul_f32 {t}, {x}, {x}", f"v_fma_f32 {t}, {t}, {c1}, {c0}", f"v_mul_f32 {t}, {t}, {x}",
                            f"v_exp_f32 {t}, {t}", f"v_fma_f32 {t}, {t}, {ir}, {ir}", f"v_rcp_f32 {t}, {t}", f"v_mul_f32 {x}, {x}, {t}"])
            for s in range(7):
                for e in range(4):
                    res.append(blk[e][s])
        for i in (2 * g, 2 * g + 1):
            res.append(f"v_cvt_pk_bf16_f32 v{a + i}, v{a + 2 * i}, v{a + 2 * i + 1}")
        if g & 1:
            s, off = so
            res.append(xstore(f"buffer_store_dwordx4 {V(a + 2 * (g - 1))}, {vL16}, {sWS}, {s} offen offset:{off + 1024 * (g >> 1)}", bit, tag))
    return [I(x) for x in res]


def phase45(L, r4):
    T = [16, 32, 48, 16]
    C0R, C1R, IRR, RR, GT = "v116", "v118", "v120", "v122", 124
    FB = 16 * L
    vtb = x2
    if L == 0:
        P.add(I(r4))
        P.add(asel(AS4))
        P(f"s_lshl_b32 {t0}, {sW}, 14")
        P(f"v_add_u32 {x1}, {t0}, {vTP}")
        P(f"s_lshl_b32 {t0}, {sW}, 13")
        P(f"v_add_u32 {x0}, {t0}, {vTP1}")
        P.add(table_addr(x2))
        P.need("w1AB")
        for j in range(16):
            P.add(tr("v", XF + 4 * j, x1, 2048 * (j >> 1) + 512 * (j & 1)))
        P.need("w1CD1")
        for j in range(8):
            P.add(tr("v", XF + 64 + 4 * j, x0, 2048 * (j >> 1) + 512 * (j & 1)))
        for j in range(16):
            c = V(16 + 4 * (j & 1))
            P(f"{MF16} {c}, {V(AS4)}, {V(XF + 4 * j)}, {c if j >= 2 else 0}")
        for j in range(8):
            c = V(CC + 4 * (j & 1))
            P(f"{MF16} {c}, {V(AS4)}, {V(XF + 64 + 4 * j)}, {c if j >= 2 else 0}")
        P.add(I(table_write(16, 3, x2, f"v{B1V}") + table_write(20, 4, x2, f"v{B1V + 1}")))
        P.add(barrier())
        vtw = "v123"
        P(f"v_mov_b32 {vtw}, {x2}")
    else:
        P.add(barrier("w1AB", "w1CD1", "w1CD2"))
    P(f"v_add_u32 {vtb}, {TAB0 + 3072}, {vL16}")
    D = 3
    def rdA(t):
        if t < 32:
            return trp(RING + 8 * (t % 4), 2048 * t) + trp(RING + 8 * (t % 4) + 4, 2048 * t + 512)
        if t == 32:
            return I([f"ds_read_b128 {V(RING + 8 * (t % 4) + 4 * e)}, {vtb} offset:{1024 * e}" for e in range(2)])
        return []
    for t in range(D):
        P.add(rdA(t))
    P(f"s_lshl_b32 {t3}, {sT}, 17")
    P(f"s_lshl_b32 {t4}, {sM}, 13")
    P(f"s_add_u32 {t3}, {t3}, {t4}")
    P(f"s_add_u32 {t3}, {t3}, {LB(L) + H_O}")
    P(f"s_add_u32 {t4}, {t3}, 4096")
    xs, xi = x_loads(LB(L) + X1_O, LB(L) + ST1_O, STV)
    NB = opt("NB", 14)
    P.add(xs)
    P.add(tick(f"{L}.B4b"))
    P.add(poll(vPX, x1, FB + 3))
    P.add(tick(f"{L}.pollx1"))
    P.add(I(xi[:NB]))
    xi = xi[NB:] + (w1_items("CD2") if L == 0 else [])
    gA = []
    for k in range(33):
        xb = V(XF + 4 * k) if k < 32 else V(EX)
        gA.append(rdA(k + D) + I([f"{MF} {V(T[e], 16)}, {V(RING + 8 * (k % 4) + 4 * e)}, {xb}, {V(T[e], 16) if k else 0}" for e in range(2)]))
    s = [f"v{STV + i}" for i in range(4)]
    C0 = -2.0 * LOG2E * 0.7978845608028654
    fill = stats_sum(STV) + stats_finish(s[0], s[1], s[2], s[3], EX, True, RR, IRR)
    fill += [I(x) for x in [f"v_mul_f32 {C0R}, {fc(C0)}, {RR}", f"v_mul_f32 {C1R}, {RR}, {RR}", f"v_mul_f32 {C1R}, {C1R}, {C0R}",
                            f"v_mul_f32 {C1R}, {fc(0.044715)}, {C1R}"]]
    P.add(weave(attach(gA, xi), [(opt("XSP", 16) + 2, x) for x in fill]))
    P.add(tick(f"{L}.pA"))
    D1 = 6
    def rd1(e, t):
        if t < 32:
            return trp(RING + 4 * (t % 8), R2 + 2048 * t + 512 * e)
        if t == 32:
            return I(f"ds_read_b128 {V(RING + 4 * (t % 8))}, {vtb} offset:{2048 + 1024 * e}")
        if e == 0 and t - 34 >= 0:
            pass
        return []
    def g1(e, off):
        def rd(t):
            n = RING + 4 * ((t + off) % 8)
            if t < 32:
                return trp(n, R2 + 2048 * t + 512 * e)
            if t == 32:
                return I(f"ds_read_b128 {V(n)}, {vtb} offset:{2048 + 1024 * e}")
            if e == 0:
                return trp(n, R2 + 2048 * (t - 33) + 512)
            return []
        a = V(T[2 + e], 16)
        out = []
        for k in range(33):
            xb = V(XF + 4 * k) if k < 32 else V(EX)
            it = rd(k + D1)
            if k % 2 == 0 and k + 1 < 33:
                it = it + [need_ins(("v", RING + 4 * ((k + 1 + off) % 8) + 3))]
            out.append(it + I(f"{MF} {a}, {V(RING + 4 * ((k + off) % 8))}, {xb}, {a if k else 0}"))
        return out, [rd(t) for t in range(D1)]
    gB, preB = g1(0, 0)
    gC, _ = g1(1, 33)
    PUBD = opt("PUBD", 14)
    GHI = opt("GHI", 90) / 100
    def G(i, pk=False):
        return gelu(T[i], C0R, C1R, IRR, GT, (t3 if i < 2 else t4, 2048 * (i & 1)), f"h{i}", 4 << (4 * L), pk)
    def at(groups, n, item):
        groups[n] = groups[n] + I(item)
    if L == 0:
        cs = [I([need_ins("w1CD2")] + tr("v", STV + 4 * (j & 3), x0, 32768 + 2048 * (j >> 1) + 512 * (j & 1))) for j in range(4)]
        for j in range(8):
            c = V(CC + 4 * (j & 1))
            cs.append(I(f"{MF16} {c}, {V(AS4)}, {V(STV + 4 * (j & 3))}, {c}"))
            if j + 4 < 8:
                cs.append(tr("v", STV + 4 * (j & 3), x0, 32768 + 2048 * ((j + 4) >> 1) + 512 * (j & 1)))
        cs += [[]] + table_write(CC, 5, vtw, f"v{B1V + 2}") + table_write(CD_, 6, vtw, f"v{B1V + 3}")
        P.add(I(spread(G(0), cs + preB, 0.1, 0.95)))
        P.add(barrier())
        kv = wq_items(0, tag="wkv") + wq_items(1, tag="wkv")
        kv[0] = wq_setup() + kv[0]
        for j in range(8):
            at(gB, 1 + j, kv[j]); at(gC, 1 + j, kv[8 + j])
    else:
        P.add(I(spread(G(0, True), preB, 0.5, 0.95)))
    P.add(tick(f"{L}.G0"))
    ACC = [A(224, 16), V(32, 16), V(48, 16), V(240, 16)]
    def hf(s, i, tt): return XF + 4 * (14 * (s & 1) + 2 * i + tt)
    def hloads(s):
        out = []
        for i in range(7):
            for tt in range(2):
                out.append(I([f"s_add_u32 {u0}, {t5 if tt == 0 else d3}, {(8 * i + 2 * s) * 1024}",
                              f"buffer_load_dwordx4 {V(hf(s, i, tt))}, {vL16}, {sWS}, {u0} offen sc1{ntm('H')}"]))
        return out
    def mf(s, i, n):
        tt, ct = n >> 1, n & 1
        a = ACC[n]
        return f"{MF} {a}, {A(((7 * s + i) * 2 + ct) * 4)}, {V(hf(s, i, tt))}, {a if (s or i or n == 0) else 0}"
    def gS(s): return [I(mf(s, i, n)) for i in range(7) for n in range(4)]
    hb = I([f"s_lshr_b32 {u0}, {sW}, 1", f"s_mul_i32 {u0}, {u0}, {56 * 1024}", f"s_and_b32 {u1}, {sW}, 1", f"s_lshl_b32 {u1}, {u1}, 10",
            f"s_add_u32 {u0}, {u0}, {u1}", f"s_add_u32 {u0}, {u0}, {LB(L) + H_O}", f"s_lshl_b32 {t5}, {sTP}, 17", f"s_xor_b32 {d3}, {t5}, 0x20000",
            f"s_add_u32 {t5}, {t5}, {u0}", f"s_add_u32 {d3}, {d3}, {u0}"])
    for n, x in enumerate(hb):
        at(gB, 16 + n, x)
    st = gB + gC + gS(0) + gS(1) + gS(2)
    CK = [opt("CK0", 41), opt("CK1", 66), opt("CK2", 96), opt("CK3", 124)]
    PB = [opt("PB0", 14), opt("PB1", 47), opt("PB2", 78), opt("PB3", 108)]
    PD = opt("PD", 12)
    for s in range(4):
        at(st, PB[s], publish(FB + 4 + s, x1, f"h{s}"))
        at(st, CK[s] - PD, poll_issue(vPH, x0))
        at(st, CK[s], poll_check(vPH, x0, FB + 4 + s))
        n = CK[s] + 1
        for j, x in enumerate(hloads(s)):
            lo = {0: 33 + j, 1: 33 + 14 + j}.get(s, 66 + 28 * (s - 2) + 4 * (j >> 1) + 3)
            n = max(n, lo)
            at(st, n, x)
            n += 1 if j < opt("HBU", 6) else opt("HST", 2)
        assert n <= len(st) + 1
    at(st, opt("B6", 110), barrier())
    P.add(I(spread(st[:33], G(1), 0.03, GHI)))
    P.add(tick(f"{L}.pB"))
    P.add(I(spread(st[33:66], G(2), 0.03, GHI)))
    P.add(tick(f"{L}.pC"))
    P.add(weave(st[66:94], [(1, x) for x in G(3)], slack=0))
    P.add(tick(f"{L}.S0"))
    P.add(I(st[94:122]))
    P.add(tick(f"{L}.S1"))
    P.add(I(st[122:150]))
    P.add(tick(f"{L}.S2"))
    NT = opt("NT5", 2)
    wa = ["v16", "v17", "v18", "v19"]
    pre = []
    for i in range(4):
        pre.append(I([f"s_xor_b32 {u0}, {sW}, {i}", f"s_mul_i32 {u0}, {u0}, 12288", f"s_add_u32 {u0}, {u0}, {SL + 4096 * max(0, i - 1)}",
                      f"v_add_u32 {wa[i]}, {u0}, {vL16}"]))
    if L == 0:
        pre.append(tile_addr(LB(1) + XIN_O, LB(1) + ST2_O))
    else:
        pre.append(I([f"v_and_b32 {x2}, 31, {vL}", f"v_lshrrev_b32 {x1}, 5, {vL}", f"v_lshlrev_b32 {x2}, 10, {x2}", f"v_lshl_add_u32 {x2}, {x1}, 4, {x2}",
                      f"s_lshl_b32 {t1}, {sTP}, 15", f"s_lshl_b32 {t2}, {sCT}, 6", f"s_add_u32 {t1}, {t1}, {t2}"]))
    P.add(I(pre))
    g = [I(mf(3, i, n)) for i in range(7 - NT) for n in range(4)]
    base = [0, 32, 48, 240]
    wr = []
    for n in (3, 2, 1, 0):
        for e, i in enumerate(range(7 - NT, 7)):
            g.append(I(mf(3, i, n)))
            if e >= 1 or NT == 1:
                k = (len(wr) + (NT - e) - 1) // (NT - e)
                g.append(I(wr[:k])); wr = wr[k:]
        if n:
            wr = [f"ds_write_b128 {wa[n]}, {V(base[n] + 4 * j)} offset:{1024 * j}" for j in range(4)]
    P.add(I(g))
    x, tmp = 64, 80
    for i in range(16):
        P(f"v_accvgpr_read_b32 v{x + i}, a{224 + i}")
    P.add(tick(f"{L}.S3"))
    P.add(barrier(*(["wkv"] if L == 0 else [])))
    for j in range(12):
        P(f"ds_read_b128 {V(tmp + 4 * j)}, {wa[0]} offset:{1024 * j}")
    for p in range(3):
        for i in range(8):
            P(f"v_pk_add_f32 {V(x + 2 * i, 2)}, {V(x + 2 * i, 2)}, {V(tmp + 16 * p + 2 * i, 2)}")
    if L == 0:
        tile_out(x, 16, 24, 8)
        for i in range(16):
            P(f"v_accvgpr_write_b32 a{224 + i}, v{x + i}")
        P.add(publish(8, x1))
        P.add(tick("0.p5end"))
    else:
        for i in range(8):
            P(f"v_cvt_pk_bf16_f32 v{16 + i}, v{x + 2 * i}, v{x + 2 * i + 1}")
        P(f"buffer_store_dwordx4 {V(16)}, {x2}, {sOUT}, {t1} offen {OM}")
        P(f"buffer_store_dwordx4 {V(20)}, {x2}, {sOUT}, {t1} offen offset:32 {OM}")
        if PROF:
            P.need("stores")
            P.add(tick("1.final"))
            P.add(prof_dump())
```

```python
import sys, struct, re
from asmgen import Prog, Ins, emit, need_ins

KN = "interleave_layers__sliding_block__mixer_channel_mlp__prompt_kernel"
OPT = dict(a.split("=") for a in sys.argv[2:])
STOP = OPT.get("STOP")
PROF = int(OPT.get("PROF", 0))
def opt(name, default): return int(OPT.get(name, default))

MB = 1 << 20
KV_O, O_O, X1_O, XIN_O, ST1_O, ST2_O, H_O = 0, 4 * MB, 6 * MB, 8 * MB, 10 * MB, 10 * MB + 256 * 1024, 11 * MB
LSTRIDE = 20 * MB
def LB(L): return MB + L * LSTRIDE
FPACK = 131072
MBOX = FPACK + 8192
ARR = FPACK + 65536
OOB = 0x40000000
R0, R1, R2, SL, PITCH = 0, 32768, 65536, 98304, 4112
SCR3, SPARE, TAB0, RBC = 131072, 147648, 156160, 163328

sC, sM, sW, sCNT = "s4", "s5", "s6", "s7"
sRR = "s0"
sX, sWQ, sWO, sW1, sW2, sWS, sOUT, sB2, sB1, sDBG = [f"s[{8 + 4 * i}:{11 + 4 * i}]" for i in range(10)]
sT, sTP, sCT, sMODE, sFA, sFP = "s48", "s49", "s50", "s51", "s52", "s53"
t0, t1, t2, t3, t4, t5 = "s54", "s55", "s56", "s57", "s58", "s59"
d0, d1, d2, d3 = "s60", "s61", "s62", "s63"
u0, u1, u2, u3 = "s96", "s97", "s98", "s99"
def sMASK(r): return f"s[{64 + 2 * r}:{65 + 2 * r}]"
vL, vL16, vTR, vTR1, vTP, vTP1, vPX, vPO, vPH, vPROF, voQ, vo1, vo2 = [f"v{i}" for i in range(13)]
x0, x1, x2 = "v13", "v14", "v15"
XF = 128

def f2u(x): return struct.unpack("<I", struct.pack("<f", x))[0]
def fc(x): return hex(f2u(x))
def V(n, k=4): return f"v[{n}:{n + k - 1}]" if k > 1 else f"v{n}"
def A(n, k=4): return f"a[{n}:{n + k - 1}]" if k > 1 else f"a{n}"
def R(f, n, k=4): return f"{f}[{n}:{n + k - 1}]"

PL = opt("PL", 0)
PMOD = OPT.get("PMOD", "")
LOG2E = 1.4426950408889634
EPS = 1e-5
P = Prog()
MF = "v_mfma_f32_32x32x16_bf16"
MF16 = "v_mfma_f32_16x16x32_bf16"
OUTL = []


def I(x):
    if isinstance(x, str):
        return [Ins(x)]
    if isinstance(x, Ins):
        return [x]
    out = []
    for e in x:
        out += I(e)
    return out


def cost(ins):
    c = 0
    for i in ins:
        if i.kind in ("label", "dir"):
            continue
        c += 8 if (i.kind in ("mfma", "trans") or i.op.startswith("v_permlane")) else 4
    return c


def weave(groups, fill, slack=4, start=0, rate=1.0):
    out, f, credit = [], [], 0
    for it in fill:
        if isinstance(it, tuple):
            f.append((it[0], I(it[1])))
        else:
            f.append((0, I(it)))
    for n, g in enumerate(groups):
        g = I(g)
        out += g
        pipe = sum(4 * i.passes for i in g if i.kind == "mfma")
        if n < start:
            continue
        credit = min(credit, 8) + (pipe - cost(g) - slack) * rate
        while f and f[0][0] <= n and credit > 0:
            it = f.pop(0)[1]
            out += it
            credit -= cost(it)
    for _, it in f:
        out += it
    return out


def spread(main, fill, lo=0.0, hi=1.0):
    main = [I(m) for m in main]
    fill = [I(x) for x in fill]
    tot = sum(cost(m) for m in main)
    out, acc, k = [], 0, 0
    for m in main:
        out.append(m)
        acc += cost(m)
        while k < len(fill) and acc >= tot * (lo + (hi - lo) * k / max(1, len(fill))):
            out.append(fill[k]); k += 1
    out += fill[k:]
    return out


def tr(f, n, base, off):
    assert 0 <= off and off + 256 < 65536
    return [Ins(f"ds_read_b64_tr_b16 {R(f, n, 2)}, {base} offset:{off}"),
            Ins(f"ds_read_b64_tr_b16 {R(f, n + 2, 2)}, {base} offset:{off + 256}")]

def tr1(n, addr):
    return tr("v", n, vTR, addr) if addr < 65536 else tr("v", n, vTR1, addr - 65536)

def trp(n, addr):
    return tr("v", n, vTP, addr) if addr < 65536 else tr("v", n, vTP1, addr - 65536)


def ntm(srd):
    b = {sW2: 1, sW1: 2, sWO: 4, sWQ: 8, "H": 16, "X": 32, "O": 64, "KV": 128, sX: 256}[srd]
    return " nt" if opt("NT", 0) & b else ""


def dma(srd, voff, sbase, goffs, lds_s, lds_imm, tag, st=d0):
    out = []
    for j, g in enumerate(goffs):
        it = []
        if j % 4 == 0:
            it.append(Ins(f"s_add_u32 m0, {lds_s}, {lds_imm + 1024 * j}") if lds_s else Ins(f"s_mov_b32 m0, {lds_imm + 1024 * j}"))
        o = g - (j % 4) * 1024
        assert o >= 0
        it.append(Ins(f"s_add_u32 {st}, {sbase}, {o}"))
        it.append(Ins(f"buffer_load_dwordx4 {voff}, {srd}, {st} offen offset:{(j % 4) * 1024}{ntm(srd)} lds", xdst=[tag]))
        out.append(it)
    return out


def barrier(*extra):
    return [need_ins("ds_any", *extra), Ins("s_barrier")]


def poll_issue(vaddr, vt):
    return [Ins(f"buffer_load_dword {vt}, {vaddr}, {sWS}, {sFP} offen sc1")]


def poll_check(vaddr, vt, target):
    ls, lr, lp = P.label(), P.label(), P.label()
    OUTL.extend(I([ls + ":", f"s_mov_b32 {sCNT}, 30000", lp + ":",
                   f"buffer_load_dword {vt}, {vaddr}, {sWS}, {sFP} offen sc1",
                   f"v_cmp_gt_u32 vcc, {target}, {vt}", f"s_cbranch_vccz {lr}",
                   f"s_sub_u32 {sCNT}, {sCNT}, 1", f"s_cbranch_scc0 {lp}", "s_endpgm"]))
    return I([f"v_cmp_gt_u32 vcc, {target}, {vt}", f"s_cbranch_vccnz {ls}", lr + ":"])


def poll(vaddr, vt, target):
    lp, lr = P.label(), P.label()
    return I([f"s_mov_b32 {sCNT}, 30000", lp + ":",
              f"buffer_load_dword {vt}, {vaddr}, {sWS}, {sFP} offen sc1",
              f"v_cmp_gt_u32 vcc, {target}, {vt}", f"s_cbranch_vccz {lr}",
              f"s_sub_u32 {sCNT}, {sCNT}, 1", f"s_cbranch_scc0 {lp}", "s_endpgm", lr + ":"])


EF = opt("EF", 0)
sRT = "s1"


def publish(val, vt, tag="stores", early=None):
    ls, lr = P.label(), P.label()
    st = f"buffer_store_dword {vt}, off, {sWS}, {sFA}"
    OUTL.extend(I([ls + ":", need_ins(tag), st + " sc1", f"s_branch {lr}"]))
    return I([f"v_mov_b32 {vt}, {val}", f"s_cmp_eq_u32 {sMODE}, 0", need_ins(early or tag), f"s_cbranch_scc1 {ls}", st, lr + ":"])


INAMES = ["O0", "X0", "H00", "H01", "H02", "H03", "Y0", "O1", "X1", "H10", "H11", "H12", "H13"]
IW = dict(zip(INAMES, OPT.get("IW", "AAAAAAACCaaaa")))
def efbit(n): return EF & {"O": 1, "X": 2, "H": 4, "Y": 8}[n[0]]


def inits(win, r):
    out = []
    for n in INAMES:
        if IW[n] != win or not efbit(n):
            continue
        L = int(n[1])
        def st(off): return Ins(f"buffer_store_dwordx4 {V(r)}, {vL16}, {sWS}, {u0} offen offset:{off} sc1", xdst=["i" + n])
        if n[0] == "O":
            o = [f"s_lshl_b32 {u0}, {sT}, 4", f"s_add_u32 {u0}, {u0}, {sM}", f"s_lshl_b32 {u0}, {u0}, 11", f"s_add_u32 {u0}, {u0}, {LB(L) + O_O}", st(0), st(1024)]
        elif n[0] == "H":
            o = [f"s_lshl_b32 {u0}, {sT}, 4", f"s_add_u32 {u0}, {u0}, {sM}", f"s_lshl_b32 {u0}, {u0}, 13", f"s_add_u32 {u0}, {u0}, {LB(L) + H_O + 2048 * int(n[2])}",
                 f"s_cmp_ge_u32 {sM}, 14", f"s_cselect_b32 {u0}, {OOB}, {u0}", st(0), st(1024)]
        else:
            xo, so = (LB(L) + X1_O, LB(L) + ST1_O) if n[0] == "X" else (LB(1) + XIN_O, LB(1) + ST2_O)
            o = [f"s_lshl_b32 {u1}, {sTP}, 4", f"s_add_u32 {u1}, {u1}, {sCT}", f"s_lshl_b32 {u0}, {u1}, 11", f"s_add_u32 {u0}, {u0}, {xo}", st(0), st(1024),
                 f"s_lshl_b32 {u0}, {u1}, 8", f"s_add_u32 {u0}, {u0}, {so}", "s_mov_b64 exec, 0xffff", st(0), "s_mov_b64 exec, -1"]
        out.append(I(o))
    if out:
        out[0] = I([f"v_mov_b64 {V(r, 2)}, -1", f"v_mov_b64 {V(r + 2, 2)}, -1"]) + out[0]
    return out


def redo(vc, back, extra=()):
    ls, lr = P.label(), P.label()
    OUTL.extend(I([ls + ":", f"s_cmp_eq_u32 {sRT}, 0", f"s_cbranch_scc1 {lr}", f"s_sub_u32 {sRT}, {sRT}, 1", "s_nop 15"] + list(extra) + ["s_waitcnt vmcnt(0) lgkmcnt(0)", f"s_branch {back}"]))
    return I([f"v_cmp_eq_u32 vcc, -1, {vc}", f"s_cbranch_vccnz {ls}", lr + ":"])


def chain(vc, base, n):
    return [(t + 1, f"v_max3_u32 {vc}, {vc}, v{base + 4 * t}, v{base + 4 * t + 4}" if t else f"v_max_u32 {vc}, v{base}, v{base + 4}") for t in range(0, n, 2)]


def xstore(txt, bit, tag=None, ini=None):
    kw = dict(xdst=[tag]) if tag else {}
    if ini:
        kw["xsrc"] = [ini]
    if not PL & bit:
        return [Ins(txt + " sc1" + (" nt" if opt("NTS", 0) & 1 else ""), **kw)]
    ls, lr = P.label(), P.label()
    OUTL.extend(I([ls + ":", Ins(txt + " sc1", **kw), f"s_branch {lr}"]))
    return I([f"s_cmp_eq_u32 {sMODE}, 0", f"s_cbranch_scc1 {ls}", Ins(txt + (" " + PMOD if PMOD else ""), **kw), lr + ":"])


PNAMES = []
def tick(name):
    if not PROF:
        return []
    if OPT.get("TK") and not re.match(OPT["TK"], name):
        return []
    op = "s_memtime" if opt("CLK", 0) else "s_memrealtime"
    return I([f"{op} s[100:101]", "s_waitcnt lgkmcnt(0)", Ins(f"v_writelane_b32 {vPROF}, s100, 0", comment="T:" + name)])


def prof_dump():
    if not PROF:
        return []
    return I([f"v_writelane_b32 {vPROF}, {sRT}, 63", f"s_lshl_b32 {t0}, s2, 2", f"s_add_u32 {t0}, {t0}, {sW}", f"s_lshl_b32 {t0}, {t0}, 8",
              f"s_add_u32 {t0}, {t0}, {LB(1) + 19 * MB}", f"v_lshlrev_b32 {x0}, 2, {vL}",
              f"buffer_store_dword {vPROF}, {x0}, {sWS}, {t0} offen"])


def stop(L, ph):
    if STOP == f"{L}.{ph}":
        P.add(prof_dump())
        P("s_endpgm")
        return True
    return False


def finish():
    import asmgen
    asmgen.SCHED = bool(opt('SCHED', 1))
    asmgen.MINW = opt('MINW', 2)
    P.put("L_end")
    P("s_endpgm")
    P.add(OUTL)
    for i in P.ins:
        if i.comment and i.comment.startswith("T:"):
            i.text = i.text[:-1] + str(len(PNAMES))
            PNAMES.append(i.comment[2:])
    assert len(PNAMES) <= 63
    body, ins = emit(P)
    hdr = open("interleave_layers__sliding_block__mixer_channel_mlp__prompt.s.ref").read()
    top = hdr.split("; @launch")[0]
    txt = top + "; @launch grid=(256,1,1) block=(256,1,1) lds=163840\n"
    txt += f""".amdgcn_target "amdgcn-amd-amdhsa--gfx950"
.text
.globl {KN}
.p2align 8
.type {KN},@function
{KN}:
{body}
.section .rodata,"a"
.p2align 6
.amdhsa_kernel {KN}
  .amdhsa_next_free_vgpr 512
  .amdhsa_next_free_sgpr 102
  .amdhsa_accum_offset 256
  .amdhsa_group_segment_fixed_size 0
  .amdhsa_kernarg_size 88
  .amdhsa_user_sgpr_count 2
  .amdhsa_user_sgpr_kernarg_segment_ptr 1
  .amdhsa_system_sgpr_workgroup_id_x 1
.end_amdhsa_kernel
"""
    open(sys.argv[1], "w").write(txt)
    print("instructions:", len(ins))
    open(sys.argv[1] + ".names", "w").write(" ".join(PNAMES))
```

```python
from k2_base import *

sW2B = "s3"

def wq_items(imgs, tag="wq"):
    out = []
    for q in range(4):
        for img in imgs:
            cb = (0, 1024, 0)[img]
            out.append(I([f"s_xor_b32 {d0}, {sRR}, {q}", f"s_mul_i32 {d0}, {d0}, {128 * 3072}", f"s_add_u32 m0, {d2}, {img * 32768 + q * 8192 - cb}", f"s_add_u32 {d0}, {d0}, {d1}",
                          Ins(f"buffer_load_dwordx4 {voQ}, {sWQ}, {d0} offen offset:{cb} lds", xdst=[tag])]))
            out.append(I([f"s_add_u32 {d0}, {d0}, {16 * 3072 - 1024}",
                          Ins(f"buffer_load_dwordx4 {voQ}, {sWQ}, {d0} offen offset:{cb + 1024} lds", xdst=[tag])]))
    return out

def wq_setup(cb=0):
    return I([f"s_mul_i32 {d1}, {sW}, {32 * 3072}", f"s_lshl_b32 {d2}, {sM}, 6", f"s_add_u32 {d1}, {d1}, {d2}",
              f"s_lshl_b32 {d2}, {sW}, 11"] + ([f"s_add_u32 {d1}, {d1}, {cb}"] if cb else []))

vX0, vX1, XA = "v112", "v113", 120

def x0_items(h):
    out = []
    for j in range(4):
        it = []
        if j == 0:
            it += [f"s_xor_b32 {d1}, {t5}, {h}", f"s_lshl_b32 {d1}, {d1}, 7", f"s_add_u32 {d1}, {d1}, {t3}", f"s_add_u32 m0, {d3}, {SL + 4096 * (h & 3)}"]
        else:
            it.append(f"s_add_u32 {d1}, {d1}, 7168")
        it.append(Ins(f"buffer_load_dwordx4 {vX1 if j & 1 else vX0}, {sX}, {d1} offen offset:{j * 1024}{ntm(sX)} lds", xdst=[f"x{h}"]))
        out.append(I(it))
    return out

def w0_items(h, imgs=(0, 1), tag=None):
    out = []
    for img in imgs:
        cb = (1024, 2048, 0)[img]
        out += dma(sWQ, voQ, d1, [cb], d2, img * 32768 + h * 4096, tag or f"kv{h}")
    out[0] = I([f"s_xor_b32 {d1}, {t5}, {h}", f"s_mul_i32 {d1}, {d1}, {64 * 3072}", f"s_add_u32 {d1}, {d1}, {t4}"]) + out[0]
    return out

def w2_piece(kks, mul, imm, tag, vb):
    goffs = []
    for kk in kks:
        s, i = kk // 7, kk % 7
        goffs += [(128 * i + 32 * s + 8 * h) * 1024 for h in range(2)]
    dm = dma(sW2, vo2, sW2B, goffs, d2, imm, tag)
    dm[0] = I(f"s_mul_i32 {d2}, {sW}, {mul}") + dm[0]
    rd = [I([f"s_mul_i32 {u0}, {sW}, {mul}", f"s_add_u32 {u0}, {u0}, {imm}", f"v_add_u32 {vb}, {u0}, {vTP}", need_ins(tag)])]
    for j, kk in enumerate(kks):
        for ct in range(2):
            rd.append(tr("a", (kk * 2 + ct) * 4, vb, 2048 * j + 512 * ct))
    return dm, rd

def w2_round(rnd, vb):
    k = {1: 13, 2: 0, 3: 18, 4: 23}[rnd]
    pieces = {1: [(5, 16384, 0)],
              2: [(8, 16384, 0), (4, 8192, R2), (1, 2048, SPARE)],
              3: [(4, 8192, R2), (1, 2048, SPARE)],
              4: [(4, 8192, SL), (1, 2048, SPARE)]}[rnd]
    dm, rd = [], []
    for n, (cnt, mul, imm) in enumerate(pieces):
        a, b = w2_piece(list(range(k, k + cnt)), mul, imm, f"w2r{rnd}_{n}", vb)
        dm += a; rd += b
        k += cnt
    return dm, rd

def wo_items():
    it = dma(sWO, vo2, d1, [j * 8 * 1024 for j in range(16)], d2, 0, "wo")
    it[0] = I([f"s_and_b32 {d1}, {sW}, 1", f"s_lshl_b32 {d1}, {d1}, 18", f"s_lshr_b32 {d2}, {sW}, 1", f"s_xor_b32 {d2}, {d2}, {sRR}", f"s_and_b32 {d2}, {d2}, 1", f"s_lshl_b32 {d2}, {d2}, 17",
               f"s_add_u32 {d1}, {d1}, {d2}", f"s_and_b32 {d2}, {sCT}, 14", f"s_lshl_b32 {d2}, {d2}, 6", f"s_add_u32 {d1}, {d1}, {d2}",
               f"s_lshl_b32 {d2}, {sW}, 14"]) + it[0]
    return it

def idle(*regs):
    if not opt("IDL", 1):
        return []
    return [f"s_cmp_ge_u32 {sM}, 14"] + [f"s_cselect_b32 {r}, {OOB}, {r}" for r in regs]

def w1_items(part):
    if part == "AB":
        rows, n, g0, sh, imm = 128, 16, 0, 14, 0
        pre = [f"s_xor_b32 {d1}, {sW}, {sRR}"]
    else:
        rows, n, sh, g0 = 64, 8, 13, 128
        imm = R2 if part == "CD1" else SL
        pre = [f"s_lshl_b32 {d1}, {sRR}, 1", f"s_xor_b32 {d1}, {d1}, {sW}"] + ([f"s_xor_b32 {d1}, {d1}, 4"] if part == "CD2" else [])
    it = dma(sW1, vo1, d1, [g0 + j * 8 * 3584 for j in range(n)], d2, imm, "w1" + part)
    it[0] = I(pre + [f"s_mul_i32 {d1}, {d1}, {rows * 3584}", f"s_lshl_b32 {d2}, {sM}, 8", f"s_add_u32 {d1}, {d1}, {d2}"] + idle(d1) +
              [f"s_lshl_b32 {d2}, {sW}, {sh}"]) + it[0]
    return it


def asel(n):
    return I([f"v_lshrrev_b32 v{n}, 2, {vL}", f"v_xor_b32 v{n}, v{n}, {vL}", f"v_bfe_u32 v{n}, v{n}, 2, 1",
              f"v_add_u32 v{n}, -1, v{n}", f"v_and_b32 v{n}, 0x3f803f80, v{n}",
              f"v_mov_b32 v{n + 1}, v{n}", f"v_mov_b64 {V(n + 2, 2)}, {V(n, 2)}"])


def table_write(c, tab, va, bias=None):
    o = [f"v_cvt_pk_bf16_f32 v{c + 2}, v{c}, v{c}",
         f"v_lshlrev_b32 v{c + 1}, 16, v{c + 2}",
         f"v_sub_f32 v{c + 1}, v{c}, v{c + 1}",
         f"v_and_b32 v{c + 3}, 0xffff, v{c + 2}",
         f"v_cvt_pk_bf16_f32 v{c + 2}, v{c}, v{c + 1}"]
    if bias:
        o.append(f"v_lshl_or_b32 v{c + 3}, {bias}, 16, v{c + 3}")
    o.append(f"ds_write_b64 {va}, {V(c + 2, 2)} offset:{tab * 1024}")
    return [I(x) for x in o]


def table_addr(va):
    return I([f"s_lshr_b32 {u0}, {sW}, 1", f"s_lshl_b32 {u0}, {u0}, 9", f"s_and_b32 {u1}, {sW}, 1", f"s_lshl_b32 {u1}, {u1}, 3",
              f"s_add_u32 {u0}, {u0}, {u1}", f"s_add_u32 {u0}, {u0}, {TAB0}",
              f"v_and_b32 {va}, 0x1f0, {vL16}", f"v_add_u32 {va}, {u0}, {va}"])


def stats_finish(a, b, c, d, ex, mlp, r, ir):
    o = [f"v_mul_f32 {a}, {fc(-1.0 / 512)}, {a}",
         f"v_mul_f32 {c}, {a}, {a}",
         f"v_fma_f32 {b}, {b}, {u3}, -{c}",
         f"v_cvt_pk_bf16_f32 v{ex}, {a}, {a}",
         f"v_max_f32 {b}, 0, {b}",
         f"v_add_f32 {c}, {fc(EPS)}, {b}",
         f"v_rsq_f32 {r}, {c}",
         f"v_lshlrev_b32 {d}, 16, v{ex}",
         f"v_sub_f32 {d}, {a}, {d}"]
    o = [f"s_mov_b32 {u3}, {fc(1.0 / 512)}"] + o
    if mlp:
        o += [f"v_mul_f32 {b}, {b}, {r}", f"v_mul_f32 {b}, {b}, {r}", f"v_add_f32 {b}, {fc(EPS)}, {b}",
              f"v_rsq_f32 {b}, {b}", f"v_mov_b32 v{ex + 2}, v{ex}", f"v_mul_f32 {r}, {b}, {r}", f"v_rcp_f32 {ir}, {r}",
              f"v_cvt_pk_bf16_f32 v{ex + 1}, {d}, {ir}", f"v_and_b32 {a}, 0xffff0000, v{ex + 1}", f"v_sub_f32 {a}, {ir}, {a}",
              f"v_cvt_pk_bf16_f32 v{ex + 3}, {d}, {a}"]
    else:
        o += [f"v_mov_b32 v{ex + 2}, v{ex}", f"v_cvt_pk_bf16_f32 v{ex + 1}, {d}, {d}", f"v_mov_b32 v{ex + 3}, v{ex + 1}"]
    return [I(x) for x in o]


def x_loads(xoff, stoff, stv):
    setup = I([f"s_lshl_b32 {t1}, {sT}, 2", f"s_add_u32 {t1}, {t1}, {sRR}", f"s_lshl_b32 {t1}, {t1}, 13", f"s_add_u32 {t1}, {t1}, {xoff}", f"s_lshl_b32 {t2}, {sT}, 12", f"s_add_u32 {t2}, {t2}, {stoff}", f"v_lshlrev_b32 v{stv + 15}, 2, {vL}"])
    items = []
    for t in range(32):
        if t == opt("XSP", 16):
            for s in range(0, 16, 4):
                items.append(I([f"buffer_load_dword v{stv + s + e}, v{stv + 15}, {sWS}, {t2} offen offset:{(s + e) * 256} sc1" for e in range(4)]))
        o = []
        if t % 4 == 0:
            o.append(f"s_xor_b32 {t0}, {t1}, {t * 1024}")
        o.append(f"buffer_load_dwordx4 {V(XF + 4 * t)}, {vL16}, {sWS}, {t0} offen offset:{(t % 4) * 1024} sc1{ntm('X')}")
        items.append(I(o))
    return setup, items


def attach(groups, items, start=0, per=1):
    items = list(items)
    for n in range(start, len(groups)):
        for _ in range(per):
            if items:
                groups[n] = groups[n] + I(items.pop(0))
    assert not items
    return groups


def stats_sum(stv, vc=None):
    o = []
    for st in (8, 4, 2, 1):
        for i in range(st):
            o.append(f"v_add_f32 v{stv + i}, v{stv + i}, v{stv + i + st}")
    if vc:
        o += [[f"v_cmp_u_f32 vcc, v{stv}, v{stv}", f"v_mov_b32 v{stv + 1}, v{stv}", "s_nop 0", f"v_cndmask_b32_e64 {vc}, {vc}, -1, vcc"], f"v_permlane32_swap_b32 v{stv}, v{stv + 1}"]
    else:
        o += [f"v_mov_b32 v{stv + 1}, v{stv}", "s_nop 0", f"v_permlane32_swap_b32 v{stv}, v{stv + 1}"]
    return [I(x) for x in o]


def prologue():
    P("s_cmp_ge_u32 s2, 256")
    P("s_cbranch_scc1 L_end")
    P.add(tick("s.start"))
    P("s_load_dwordx16 s[64:79], s[0:1], 0")
    P("s_load_dwordx4 s[80:83], s[0:1], 64")
    P("s_load_dwordx2 s[84:85], s[0:1], 80")
    P(f"v_lshrrev_b32 {x0}, 6, v0")
    P("v_and_b32 v0, 63, v0")
    P(f"v_readfirstlane_b32 {sW}, {x0}")
    P("s_and_b32 s3, s2, 7")
    P(f"s_lshl_b32 {sC}, s3, 1")
    P("s_bfe_u32 s3, s2, 0x10003")
    P(f"s_or_b32 {sC}, {sC}, s3")
    P(f"s_lshr_b32 {sM}, s2, 4")
    P(f"v_lshlrev_b32 {vL16}, 4, {vL}")
    P(f"s_lshl_b32 {sT}, {sC}, 2")
    P(f"s_add_u32 {sT}, {sT}, {sW}")
    P(f"v_lshrrev_b32 {x0}, 3, {vL}")
    P(f"v_xor_b32 {x2}, {x0}, {vL}")
    P(f"v_and_b32 {x2}, 7, {x2}")
    P(f"v_lshlrev_b32 {x2}, 4, {x2}")
    P(f"v_lshl_add_u32 {vX0}, {x0}, 10, {x2}")
    P(f"v_xor_b32 {vX1}, 16, {vX0}")
    P(f"v_lshrrev_b32 {x1}, 5, {vL}")
    P(f"v_lshrrev_b32 {voQ}, 2, {vL}")
    P(f"v_mul_u32_u24 {voQ}, 3072, {voQ}")
    P(f"v_and_b32 {x0}, 0x30, {vL16}")
    P(f"v_add_u32 {voQ}, {voQ}, {x0}")
    P(f"s_lshl_b32 {t5}, s3, 1")
    P(f"s_and_b32 {t0}, {sM}, 1")
    P(f"s_or_b32 {t5}, {t5}, {t0}")
    P(f"s_bfe_u32 {t0}, {sM}, 0x20001")
    P(f"s_xor_b32 {t5}, {t5}, {t0}")
    ROT = opt("ROT", 0)
    if ROT == 0:
        P(f"s_mov_b32 {t5}, 0")
    elif ROT == 1:
        P(f"s_and_b32 {t5}, {t5}, 1")
        P(f"s_lshl_b32 {t5}, {t5}, 1")
    elif ROT == 2:
        P(f"s_lshl_b32 {t5}, {t5}, 1")
    elif ROT == 3:
        P(f"s_and_b32 {t5}, {t5}, 1")
    elif ROT == 4:
        P(f"s_lshr_b32 {t5}, {sM}, 1")
    elif ROT == 5:
        P(f"s_lshr_b32 {t5}, {sM}, 1")
        P(f"s_lshl_b32 {t0}, s3, 2")
        P(f"s_xor_b32 {t5}, {t5}, {t0}")
    elif ROT == 6:
        P(f"s_and_b32 {t5}, {sM}, 7")
    elif ROT == 7:
        P(f"s_lshr_b32 {t5}, {sM}, 2")
        P(f"s_lshl_b32 {t5}, {t5}, 1")
    elif ROT == 8:
        P(f"s_lshl_b32 {t5}, {t5}, 1")
        P(f"s_lshr_b32 {t0}, {sM}, 3")
        P(f"s_or_b32 {t5}, {t5}, {t0}")
    if opt("ROTX", 0):
        P(f"s_and_b32 {t0}, s2, 7")
        P(f"s_xor_b32 {t5}, {t5}, {t0}")
    P(f"s_lshl_b32 {t3}, {sT}, 15")
    P(f"s_mul_i32 {t4}, {sW}, {16 * 3072}")
    P(f"s_lshl_b32 {d2}, {sM}, 6")
    P(f"s_add_u32 {t4}, {t4}, {d2}")
    P(f"s_lshl_b32 {d2}, {sW}, 10")
    P(f"s_lshl_b32 {d3}, {sW}, 14")
    def srd(n, src, size):
        P(f"s_mov_b64 s[{n}:{n + 1}], s[{src}:{src + 1}]")
        P(f"s_mov_b32 s{n + 2}, {size}")
        P(f"s_mov_b32 s{n + 3}, 0x00020000")
    ini = init_l0()
    P.add(I(ini[0]))
    srd(28, 84, 64 * MB)
    srd(8, 64, 2 * MB)
    srd(12, 66, 512 * 1536 * 2)
    IP = [int(c) for c in OPT.get("IP", "11020")]
    assert sum(IP) == 4
    global INI
    INI = ini[1:5]
    P.add(I(ini[5:] + INI[:IP[0]] + x0_items(0) + w0_items(0) + INI[IP[0]:IP[0] + IP[1]] + x0_items(1) + w0_items(1) + INI[IP[0] + IP[1]:sum(IP[:3])]))
    INI = [INI[sum(IP[:3]):sum(IP[:4])], INI[sum(IP[:4]):]]
    P.add(tick("s.c0"))
    srd(44, 82, 256)
    P(f"s_getreg_b32 {sMODE}, hwreg(HW_REG_XCC_ID, 0, 4)")
    P(f"s_or_b32 {sMODE}, {sMODE}, 0x10")
    P.add(lead_init())
    srd(16, 68, 512 * 512 * 2)
    srd(20, 72, 512 * 1792 * 2)
    srd(24, 76, 1792 * 512 * 2)
    srd(32, 80, 2 * MB)
    srd(36, 78, 1024)
    srd(40, 74, 3584)
    P(f"s_lshr_b32 s1, s2, 2")
    P(f"s_xor_b32 s1, s1, s2")
    P(f"s_bfe_u32 {sRR}, s1, 0x20003")
    P(f"s_mov_b32 {sRT}, 1000")
    if not opt("RR", 1):
        P(f"s_mov_b32 {sRR}, 0")
    P(f"v_bfe_u32 {x0}, {vL}, 2, 2")
    P(f"v_lshl_add_u32 {x0}, {x1}, 3, {x0}")
    P(f"v_lshlrev_b32 {x0}, 6, {x0}")
    P(f"v_bfe_u32 {x2}, {vL}, 4, 1")
    P(f"v_lshl_add_u32 {x0}, {x2}, 5, {x0}")
    P(f"v_and_b32 {x2}, 1, {vL}")
    P(f"v_lshl_add_u32 {x0}, {x2}, 4, {x0}")
    P(f"v_bfe_u32 {x2}, {vL}, 1, 1")
    P(f"v_lshl_add_u32 {vTR}, {x2}, 3, {x0}")
    P(f"v_add_u32 {vTR1}, 0x10000, {vTR}")
    P(f"v_lshl_add_u32 {vTP}, {x1}, 9, {vTR}")
    P(f"v_add_u32 {vTP1}, 0x10000, {vTP}")
    P(f"s_and_b32 {t0}, {sM}, 1")
    P(f"s_lshl_b32 {t0}, {t0}, 1")
    P(f"s_lshl_b32 {sTP}, {sC}, 2")
    P(f"s_add_u32 {sTP}, {sTP}, {t0}")
    P(f"s_lshr_b32 {t0}, {sW}, 1")
    P(f"s_add_u32 {sTP}, {sTP}, {t0}")
    P(f"s_and_b32 {u0}, {sM}, 14")
    P(f"s_and_b32 {u1}, {sW}, 1")
    P(f"s_add_u32 {sCT}, {u0}, {u1}")
    P(f"s_mul_i32 {sW2B}, {t0}, {896 * 1024}")
    P(f"s_lshl_b32 {t0}, {u1}, 14")
    P(f"s_add_u32 {sW2B}, {sW2B}, {t0}")
    P(f"s_lshl_b32 {u0}, {u0}, 6")
    P(f"s_add_u32 {sW2B}, {sW2B}, {u0}")
    P(f"v_bfe_u32 {x0}, {vL}, 2, 3")
    P(f"v_and_b32 {x2}, 0x30, {vL16}")
    P(f"v_mul_u32_u24 {vo1}, 3584, {x0}")
    P(f"v_lshl_add_u32 {vo2}, {x0}, 10, {x2}")
    P(f"v_add_u32 {vo1}, {vo1}, {x2}")
    P(f"v_lshl_add_u32 {vo1}, {x1}, 6, {vo1}")
    P(f"v_xor_b32 {x0}, {u1}, {x1}")
    P(f"v_lshl_add_u32 {vo2}, {x0}, 6, {vo2}")
    P(f"v_and_b32 {x0}, 31, {vL}")
    P(f"v_lshlrev_b32 {x2}, 2, {x1}")
    P(f"v_sub_u32 {x0}, {x0}, {x2}")
    for r in range(16):
        P(f"v_cmp_le_i32_e64 {sMASK(r)}, {(r & 3) + 8 * (r >> 2)}, {x0}")
    P(f"v_mov_b32 {x0}, 0xffff")
    P(f"v_mov_b32 {x2}, 0xffff0000")
    for d in range(8):
        P(f"v_cndmask_b32_e64 v16, 0, {x0}, {sMASK(2 * d)}")
        P(f"v_cndmask_b32_e64 v17, 0, {x2}, {sMASK(2 * d + 1)}")
        P(f"v_or_b32 v16, v16, v17")
        P(f"v_accvgpr_write_b32 a{240 + d}, v16")


def init_kv(L, tag):
    it = []
    if L:
        it.append(I(f"s_add_u32 {u2}, {u2}, {LSTRIDE}"))
    for j in range(4):
        it.append([Ins(f"buffer_store_dwordx4 a[236:239], {vL16}, {sWS}, {u2} offen offset:{1024 * j} sc1", xdst=[tag])])
    return it


def init_l0():
    it = [I([f"v_accvgpr_write_b32 a{236 + i}, -1" for i in range(4)] +
            [f"s_lshl_b32 {u2}, {sT}, 4", f"s_add_u32 {u2}, {u2}, {sM}", f"s_lshl_b32 {u2}, {u2}, 12", f"s_add_u32 {u2}, {u2}, {LB(0) + KV_O}",
             "v_mov_b32 v20, 0", f"s_lshl_b32 {u0}, {sC}, 4", f"s_add_u32 {u0}, {u0}, {sM}", f"s_lshl_b32 {sFP}, {u0}, 7", f"s_add_u32 {sFP}, {sFP}, {MBOX}",
             f"s_lshl_b32 {u0}, {u0}, 2", f"s_add_u32 {sFA}, {u0}, {sW}",
             f"s_lshl_b32 {t1}, {sC}, 9", f"s_lshl_b32 {u0}, {sM}, 2", f"s_add_u32 {t1}, {t1}, {u0}", f"s_add_u32 {t1}, {t1}, {ARR}",
             f"v_lshrrev_b32 v21, 4, {vL}", f"v_and_b32 {vPO}, 15, {vL}", f"v_lshlrev_b32 {vPO}, 2, {vPO}", f"v_lshl_add_u32 v22, v21, 7, {vPO}",
             f"s_or_b32 {t2}, {sM}, {sW}"])]
    it += init_kv(0, "init")
    lsk = P.label()
    it.append(I([f"s_cmp_lg_u32 {t2}, 0", f"s_cbranch_scc1 {lsk}", f"buffer_store_dword v20, v22, {sWS}, {t1} offen sc1", lsk + ":"]))
    it.append([Ins(f"buffer_store_dword v20, off, {sWS}, {sFP} sc1", xdst=["init"])])
    return it


def lead_init():
    lsk = P.label()
    return I([f"s_cmp_lg_u32 {t2}, 0", f"s_cbranch_scc1 {lsk}",
              f"s_min_u32 {u0}, {sC}, 2", f"v_cmp_ge_u32 vcc, {u0}, v21", f"v_cndmask_b32 {vPO}, {vPO}, v22, vcc",
              f"v_lshlrev_b32 v21, 2, {vL}", f"v_lshlrev_b32 v22, 7, {vL}", f"s_lshl_b32 {u0}, {sC}, 8", f"s_add_u32 {u0}, {u0}, {FPACK}", f"s_lshl_b32 {u1}, {sC}, 13",
              f"buffer_store_dword v20, v21, {sWS}, {u0} offen sc1", f"buffer_store_dword v20, v22, {sWS}, {u1} offen sc1", lsk + ":"])


def arrive(vd, so):
    return ["s_mov_b64 exec, 7", f"buffer_store_dword {vd}, {vPX}, {sWS}, {so} offen sc1", "s_mov_b64 exec, -1"]


def misc_l0():
    it = []
    it.append(I([f"v_and_b32 v21, 31, {vL}", f"v_lshrrev_b32 v22, 5, {vL}", "v_lshlrev_b32 v21, 10, v21", "v_lshlrev_b32 v22, 4, v22",
                 "v_add_u32 v21, v21, v22",
                 f"s_lshl_b32 {u0}, {sTP}, 15", f"s_lshl_b32 {u1}, {sCT}, 6", f"s_add_u32 {u0}, {u0}, {u1}"]))
    it.append(I(f"buffer_load_dwordx4 a[224:227], v21, {sX}, {u0} offen"))
    it.append(I(f"buffer_load_dwordx4 a[228:231], v21, {sX}, {u0} offen offset:32"))
    it.append(I(f"buffer_load_dwordx4 a[248:251], v22, {sB2}, {u1} offen"))
    it.append(I(f"buffer_load_dwordx4 a[252:255], v22, {sB2}, {u1} offen offset:32"))
    return it


def touch(srd, total, vt, va, st=u0, sh=7):
    share, pb = total // 128, 64 << sh
    it = [I([f"s_lshr_b32 {st}, s2, 3", f"s_lshl_b32 {st}, {st}, 2", f"s_add_u32 {st}, {st}, {sW}", f"s_mul_i32 {st}, {st}, {share}",
             f"v_lshlrev_b32 {va}, {sh}, {vL}"])]
    pos, base = 0, 0
    while pos < share:
        a = min(pos, share - pb)
        assert a >= 0
        o = []
        if a - base >= 4096:
            o.append(f"s_add_u32 {st}, {st}, {a - base}")
            base = a
        o.append(f"buffer_load_dword {vt}, {va}, {srd}, {st} offen offset:{a - base}{ntm(srd)}")
        it.append(I(o))
        pos += pb
    it[1] = it[0] + it[1]
    return it[1:]


def touch_qkv(va, vb):
    return [I([f"s_lshr_b32 {u0}, s2, 3", f"s_lshl_b32 {u0}, {u0}, 2", f"s_add_u32 {u0}, {u0}, {sW}", f"s_mul_i32 {u0}, {u0}, {4 * 3072}",
               f"v_lshrrev_b32 {va}, 4, {vL}", f"v_mul_u32_u24 {va}, 3072, {va}", f"v_and_b32 {vb}, 15, {vL}", f"v_lshl_add_u32 {va}, {vb}, 6, {va}",
               f"v_lshl_add_u32 {vb}, {vb}, 6, {va}",
               f"buffer_load_dword {vb}, {vb}, {sWQ}, {u0} offen offset:1024"] +
              ([f"buffer_load_dword {va}, {va}, {sWQ}, {u0} offen"] if opt("TKV", 0) > 1 else []))]


def touch_wq(vt, st):
    return [I([f"s_lshr_b32 {st}, s2, 3", f"s_mul_i32 {st}, {st}, {16 * 3072}", f"s_lshl_b32 {d0}, {sW}, 8", f"s_add_u32 {st}, {st}, {d0}",
               f"buffer_load_dword {vt}, {voQ}, {sWQ}, {st} offen"]),
            I(f"buffer_load_dword {vt}, {voQ}, {sWQ}, {st} offen offset:128")]


aK, aV, aQ, RING, STV, EX, TABS = 16, 32, 48, 64, 96, 112, 116
HB = XF


def kv_epilogue(L):
    r = x0
    it = []
    for i in range(16):
        it.append(f"v_mul_f32 v{aK + i}, v{aK + i}, {r}")
    for i in range(8):
        it.append(f"v_cvt_pk_bf16_f32 v{aK + i}, v{aK + 2 * i}, v{aK + 2 * i + 1}")
    it.append([f"s_lshl_b32 {u0}, {sT}, 4", f"s_add_u32 {u0}, {u0}, {sM}", f"s_lshl_b32 {u0}, {u0}, 12", f"s_add_u32 {u0}, {u0}, {LB(L) + KV_O}"])
    it.append(f"buffer_store_dwordx4 {V(aK)}, {vL16}, {sWS}, {u0} offen sc1")
    it.append(f"buffer_store_dwordx4 {V(aK + 4)}, {vL16}, {sWS}, {u0} offen offset:2048 sc1")
    for i in range(16):
        it.append(f"v_mul_f32 v{aV + i}, v{aV + i}, v{STV + i}")
    for i in range(8):
        it.append(f"v_cvt_pk_bf16_f32 v{aV + i}, v{aV + 2 * i}, v{aV + 2 * i + 1}")
    it.append(f"buffer_store_dwordx4 {V(aV)}, {x2}, {sWS}, {u0} offen offset:1024 sc1")
    it.append(f"buffer_store_dwordx4 {V(aV + 4)}, {x2}, {sWS}, {u0} offen offset:1536 sc1")
    it.append([f"s_mul_i32 {u1}, {sW}, {PITCH}", f"s_add_u32 {u1}, {u1}, {SL + 8 * PITCH}"])
    it.append(f"v_add_u32 {x1}, {u1}, {vL16}")
    it.append(f"v_add_u32 {x2}, {u1}, {x2}")
    it.append(f"ds_write_b128 {x1}, {V(aK)}")
    it.append(f"ds_write_b128 {x1}, {V(aK + 4)} offset:2048")
    it.append(f"ds_write_b128 {x2}, {V(aV)} offset:1024")
    it.append(f"ds_write_b128 {x2}, {V(aV + 4)} offset:1536")
    it.append(f"v_mul_f32 {r}, {fc(0.25 * LOG2E)}, {r}")
    return [I(x) for x in it]


def r_bcast():
    it = [[f"s_lshl_b32 {u0}, {sW}, 7", f"s_add_u32 {u0}, {u0}, {RBC}"],
          f"v_and_b32 {x1}, 31, {vL}", f"v_lshl_add_u32 {x1}, {x1}, 2, {u0}", f"ds_write_b32 {x1}, {x0}",
          f"v_lshrrev_b32 {x2}, 5, {vL}", f"v_lshl_add_u32 {x1}, {x2}, 4, {u0}"]
    for g in range(4):
        it.append(f"ds_read_b128 {V(STV + 4 * g)}, {x1} offset:{32 * g}")
    it += [f"v_lshlrev_b32 {x2}, 8, {x2}", f"v_and_b32 {x1}, 0xf0, {vL16}", f"v_add_u32 {x2}, {x2}, {x1}",
           f"v_bfe_u32 {x1}, {vL}, 4, 1", f"v_lshl_add_u32 {x2}, {x1}, 11, {x2}"]
    return [I(x) for x in it]


def kv_groups(ts, D=3, lo=0, hi=32):
    g = []
    for k in ts:
        it = []
        t = k + D
        if lo <= t < hi:
            it += tr1(RING + 8 * (t % 4), R0 + t * 1024) + tr1(RING + 8 * (t % 4) + 4, R1 + t * 1024)
        it += I([f"{MF} {V(aK, 16)}, {V(RING + 8 * (k % 4))}, {V(XF + 4 * k)}, {V(aK, 16) if k else 0}",
                 f"{MF} {V(aV, 16)}, {V(XF + 4 * k)}, {V(RING + 8 * (k % 4) + 4)}, {V(aV, 16) if k else 0}"])
        g.append(it)
    return g


def kv_pre(t0_, n=3):
    o = []
    for t in range(t0_, t0_ + n):
        o += tr1(RING + 8 * (t % 4), R0 + t * 1024) + tr1(RING + 8 * (t % 4) + 4, R1 + t * 1024)
    return o


def tab_reads(js, va):
    return [I(f"v_add_u32 {va}, {TAB0}, {vL16}")] + [I(f"ds_read_b128 {V(TABS + 4 * j)}, {va} offset:{1024 * j}") for j in js]


def halo_setup(L):
    o = []
    for i, (back, sk, sv) in enumerate(((8, d1, d2), (4, d3, t5))):
        o += [f"s_sub_u32 {u0}, {sT}, {back}", f"s_cselect_b32 {u0}, 0, {u0}", f"s_cselect_b32 {u1}, 0x200, -1", f"s_cselect_b32 {u2}, {OOB}, 0",
              f"s_lshl_b32 {u0}, {u0}, 4", f"s_add_u32 {u0}, {u0}, {sM}", f"s_lshl_b32 {u0}, {u0}, 12", f"s_add_u32 {sk}, {u0}, {LB(L) + KV_O}",
              f"s_add_u32 {sv}, {sk}, {u2}", f"v_and_b32 v{STV + i}, {u1}, {vL16}"]
    return [I(o)]


def halo_loads():
    o = []
    for i, (sk, sv) in enumerate(((d1, d2), (d3, t5))):
        for j in range(4):
            va, so = (f"v{STV + i}", sk) if j % 2 == 0 else (vL16, sv)
            o.append(f"buffer_load_dwordx4 {V(HB + 16 * i + 4 * j)}, {va}, {sWS}, {so} offen offset:{1024 * j} sc1{ntm('KV')}")
    return [I(x) for x in o]


def lead_try(chk, iss, ta, tb, final=False):
    lsk, lag, lp = P.label(), P.label(), P.label()
    o = [f"s_cmp_lg_u32 {t2}, 0", f"s_cbranch_scc1 {lsk}"]
    if final:
        o += [f"s_mov_b32 {sCNT}, 30000"]
    if chk:
        o += [f"v_accvgpr_read_b32 {ta}, {chk}"] + ([lp + ":"] if final else [])
        o += [f"v_cmp_eq_u32 vcc, 0, {ta}", f"s_cbranch_vccnz {lag}",
              f"v_cmp_ne_u32 vcc, {sMODE}, {ta}", f"v_lshlrev_b32 {tb}, 7, {vL}", f"s_lshl_b32 {u1}, {sC}, 2", f"s_and_b32 {u0}, vcc_lo, 0xffff", f"s_cselect_b32 {t2}, 1, 2",
              f"v_mov_b32 {ta}, {t2}", "s_mov_b64 exec, 0xffff", f"buffer_store_dword {ta}, {tb}, {sWS}, {sFP} offen sc1",
              "s_mov_b64 exec, 1", f"buffer_store_dword {ta}, off, {sDBG}, {u1} sc1", "s_mov_b64 exec, -1"]
        if final:
            OUTL.extend(I([lag + ":", f"v_mov_b32 {ta}, {sMODE}", f"v_lshrrev_b32 {tb}, 7, {vPO}", f"v_sub_u32 {tb}, {sC}, {tb}", f"v_lshlrev_b32 {tb}, 2, {tb}"] + arrive(ta, t1) +
                          [f"buffer_load_dword {ta}, {vPO}, {sWS}, {t1} offen sc1", f"buffer_load_dword {tb}, {tb}, {sDBG}, 0 offen sc1",
                           f"v_or_b32 {ta}, {ta}, {tb}", f"s_sub_u32 {sCNT}, {sCNT}, 1", f"s_cbranch_scc0 {lp}", "s_endpgm"]))
        elif iss:
            o += [f"s_branch {lsk}", lag + ":"]
        else:
            o += [lag + ":"]
    if iss:
        o += [f"buffer_load_dword {iss}, {vPO}, {sWS}, {t1} offen sc1"]
    return I(o + [lsk + ":"])


def handshake_issue():
    return [I([f"s_buffer_load_dword {t3}, {sWS}, {sFP} glc"])]


def handshake_check():
    b, c = f"v{STV + 3}", f"v{STV + 4}"
    ls, lr, lp = P.label(), P.label(), P.label()
    l2 = P.label()
    OUTL.extend(I([ls + ":", f"s_mov_b32 {sCNT}, 30003", f"v_mov_b32 {b}, {sMODE}", lp + ":", f"s_buffer_load_dword {t3}, {sWS}, {sFP} glc",
                   f"s_cmp_lg_u32 {t3}, 0", f"s_cbranch_scc1 {lr}",
                   f"s_and_b32 {u0}, {sCNT}, 3", f"s_or_b32 {u0}, {u0}, {sW}", f"s_cbranch_scc1 {l2}"] + arrive(b, t1) +
                  [l2 + ":", f"s_sub_u32 {sCNT}, {sCNT}, 1", f"s_cbranch_scc0 {lp}", "s_endpgm"]))
    o = [f"s_cmp_eq_u32 {t3}, 0", f"s_cbranch_scc1 {ls}", lr + ":"]
    it = [I(o)]
    o = [f"s_cmp_eq_u32 {t3}, 1"]
    if OPT.get("SLOW"):
        o.append("s_cmp_eq_u32 0, 0")
    o += [f"s_cselect_b32 {sMODE}, 0, 1", f"s_cselect_b32 {u0}, 7, {opt('FSH', 2)}", f"s_cselect_b32 {u1}, 0, {FPACK if opt('FSH', 2) == 2 else 0}",
          f"s_lshl_b32 {sFA}, {sFA}, {u0}", f"s_add_u32 {sFA}, {sFA}, {u1}",
          f"s_lshl_b32 {sFP}, {sC}, 6", f"s_lshl_b32 {sFP}, {sFP}, {u0}", f"s_add_u32 {sFP}, {sFP}, {u1}"]
    it.append(I(o))
    it.append(I([f"s_lshr_b32 {u1}, {sW}, 1", f"s_lshl_b32 {u1}, {u1}, 2", f"s_and_b32 {u2}, {sW}, 1", f"s_lshl_b32 {u3}, {u2}, 1", f"s_add_u32 {u1}, {u1}, {u3}",
                 f"v_and_b32 {b}, 14, {vL}", f"v_and_b32 {c}, 1, {vL}", f"v_lshl_add_u32 {b}, {b}, 2, {c}", f"v_add_u32 {b}, {u1}, {b}",
                 f"v_lshlrev_b32 {vPX}, {u0}, {b}"]))
    it.append(I([f"s_lshl_b32 {u2}, {u2}, 5", f"s_and_b32 {u1}, {sTP}, 3", f"s_add_u32 {u1}, {u1}, {u2}",
                 f"v_and_b32 {b}, 7, {vL}", f"v_lshl_add_u32 {b}, {b}, 2, {u1}", f"v_lshlrev_b32 {vPO}, {u0}, {b}"]))
    it.append(I([f"s_lshr_b32 {u1}, {sW}, 1", f"s_mul_i32 {u1}, {u1}, 28", f"s_and_b32 {u2}, {sTP}, 2", f"s_add_u32 {u1}, {u1}, {u2}",
                 f"v_bfe_u32 {b}, {vL}, 1, 3", f"v_min_u32 {b}, 6, {b}", f"v_lshl_add_u32 {b}, {b}, 2, {c}", f"v_add_u32 {b}, {u1}, {b}",
                 f"v_lshlrev_b32 {vPH}, {u0}, {b}"]))
    return it


def phase1(L):
    ext = I([f"{MF} {V(aK, 16)}, {V(TABS)}, {V(EX)}, {V(aK, 16)}", f"{MF} {V(aV, 16)}, {V(EX)}, {V(TABS + 4)}, {V(aV, 16)}"])
    D = 6
    qg = []
    for k in range(32):
        it = tr1(RING + 4 * ((k + D) % 8), R2 + (k + D) * 1024) if k + D < 32 else []
        qg.append(it + I(f"{MF} {V(aQ, 16)}, {V(RING + 4 * (k % 8))}, {V(XF + 4 * k)}, {V(aQ, 16) if k else 0}"))
    qpre = []
    for t in range(D):
        qpre += tr1(RING + 4 * t, R2 + t * 1024)
    HL = opt("HL", 20)
    if L == 0:
        AS, S1, S2, CK, CV, CF = 124, 96, 100, 104, 108, 48
        P.add(asel(AS))
        for i in range(4):
            P(f"v_mov_b32 v{S2 + i}, 0")
        P(f"v_lshrrev_b32 {x0}, 5, {vL}")
        P(f"v_bfe_u32 {x1}, {vL}, 3, 1")
        P(f"v_xor_b32 {x0}, {x0}, {x1}")
        P(f"v_xor_b32 {x0}, {x0}, {vL}")
        P(f"v_and_b32 {x0}, 7, {x0}")
        P(f"v_and_b32 {x1}, 31, {vL}")
        P(f"v_lshlrev_b32 {x1}, 7, {x1}")
        P(f"v_lshl_add_u32 {x0}, {x0}, 4, {x1}")
        P(f"s_add_u32 {t0}, {d3}, {SL}")
        P(f"v_add_u32 v{XA}, {t0}, {x0}")
        for k in range(1, 4):
            P(f"v_xor_b32 v{XA + k}, {32 * k}, v{XA}")
        P(f"v_add_u32 {x1}, {d2}, {vTR}")
        P.add(table_addr(x2))
        P(f"v_mov_b32 v118, {sMODE}")
        P(f"v_mul_u32_u24 {vPX}, 640, {vL}")
        P.add(tick("s.setup"))
        TS = opt("TS", 5)
        tw2 = touch(sW2, 1792 * 1024, "a232", vPH, t0, TS)
        tw2b = touch(sW2, 1792 * 1024, "a232", "v119", t0, TS)
        TW = [int(c, 16) for c in OPT.get("TW", "000000003")]
        I1 = [int(c) for c in OPT.get("I1", "001111000")]
        i1 = init_kv(1, "init1")
        i1 = [i1[0] + i1[1]] + i1[2:]
        wq = sum((w0_items(h, (2,), "wq") for h in range(8)), [])
        WQ1 = opt("WQ1", 5)
        strm = {h: x0_items(h) + w0_items(h) for h in range(2, 8)}
        strm.update({8: wq[:WQ1], 9: wq[WQ1:], 10: []})
        strm[2] = INI[0] + strm[2]
        strm[3] = INI[1] + strm[3]
        if opt("TQ", 4):
            strm[opt("TQ", 4)] += touch_wq("a232", u0)
        for n in range(2, 11):
            strm[n] = i1[:I1[n - 2]] + strm[n] + tw2[:TW[n - 2]]
            tw2, i1 = tw2[TW[n - 2]:], i1[I1[n - 2]:]
        assert not i1
        SIG = 3 if INI[1] else (2 if INI[0] else opt("SIG", 1))
        LT0 = opt("LT0", SIG + 1)
        def sync(h):
            o = [need_ins(f"x{h}")]
            o += [f"ds_read_b128 {V(XF + 16 * h + 4 * t)}, v{XA + t} offset:{4096 * (h & 3)}" for t in range(4)]
            if h >= LT0:
                o += lead_try(f"a{233 + (h & 1)}" if h >= LT0 + 2 else None, f"a{233 + (h & 1)}", "v114", "v115")
            o += [need_ins(f"kv{h}")] + tr("v", CF + 8 * (h & 1), x1, R0 + 4096 * h) + tr("v", CF + 8 * (h & 1) + 4, x1, R1 + 4096 * h)
            if h >= SIG and (h - SIG) % opt("SIGS", 2) == 0:
                lsk = P.label()
                o += [f"s_cmp_lg_u32 {sW}, {1 + (h >> 1) % 3}", need_ins("init"), "s_barrier", f"s_cbranch_scc1 {lsk}"] + arrive("v118", t1) + [lsk + ":"]
            else:
                o += ["s_barrier"]
            return I(o) + tick(f"s.b{h}")
        def stats(h):
            o = []
            for t in range(4 * h, 4 * h + 4):
                o.append(I([f"v_dot2c_f32_bf16 v{S2 + j}, v{XF + 4 * t + j}, v{XF + 4 * t + j}" for j in range(4)] +
                           [f"{MF16} {V(S1)}, {V(AS)}, {V(XF + 4 * t)}, {V(S1) if t else 0}"]))
            return [I([f"{MF16} {V(CK)}, {V(AS)}, {V(CF + 8 * (h & 1))}, {V(CK) if h else 0}",
                       f"{MF16} {V(CV)}, {V(AS)}, {V(CF + 8 * (h & 1) + 4)}, {V(CV) if h else 0}"]) + o[0], o[1] + o[2], o[3]]
        P.add(sync(0))
        P.add(kv_pre(0))
        P.add(I(spread(stats(0), strm[2], 0.0, 0.7)))
        g = kv_groups(range(32))
        for i in range(8):
            lt = strm[i + 3]
            if i < 7:
                g[4 * i] += sync(i + 1)
                n = (len(lt) + 2) // 3
                for e in range(3):
                    g[4 * i + 1 + e] += I(lt[n * e:n * e + n]) + stats(i + 1)[e]
            else:
                attach(g, lt, 28, (len(lt) + 3) // 4)
        fin = [f"v_add_f32 v{S2}, v{S2}, v{S2 + 1}", f"v_add_f32 v{S2 + 2}, v{S2 + 2}, v{S2 + 3}", f"v_add_f32 v{S2}, v{S2}, v{S2 + 2}",
               f"v_mov_b32 v{S2 + 1}, v{S2}", f"v_permlane32_swap_b32 v{S2}, v{S2 + 1}", f"v_add_f32 v{S2}, v{S2}, v{S2 + 1}"]
        fin = [I(x) for x in fin] + stats_finish(f"v{S1}", f"v{S2}", f"v{S2 + 1}", f"v{S2 + 2}", EX, False, x0, None)
        P.add(I(g[:26]))
        fill = table_write(CK, 0, x2) + table_write(CV, 1, x2) + [(2, lead_try("a233", None, "v114", "v115"))] + [(2, x) for x in fin[:6]] + [barrier()] + tab_reads([0, 1], x2) + fin[6:] + r_bcast()
        P.add(weave(g[26:], fill))
        P.add(tick("s.kv"))
        P.need("init1")
        P.add(ext)
        P.add(I(kv_epilogue(0)))
        P.add(lead_try("a234", None, "v116", "v117", True))
        P.add(tick("0.kv"))
        CQ = 104
        P(f"v_add_u32 {x1}, {d2}, {vTR1}")
        P.add(table_addr(x2))
        P.need("wq")
        for h in range(8):
            P.add(tr("v", 16 + 4 * h, x1, 4096 * h))
        P("s_barrier")
        P.add(qpre)
        for j in range(8):
            P(f"{MF16} {V(CQ)}, {V(AS)}, {V(16 + 4 * j)}, {V(CQ) if j else 0}")
        tw2 = tw2b[len(tw2b) - len(tw2):]
        if tw2:
            tw2[0] = I(f"v_lshlrev_b32 v119, {TS}, {vL}") + tw2[0]
        fill = [(1, x) for x in table_write(CQ, 2, x2)] + [(opt("HSI", 6), x) for x in handshake_issue()] + [(8, barrier())] + tab_reads([2], x2) \
            + [(opt("HSC", 16), x) for x in handshake_check()] + halo_setup(0) + [(HL, x) for x in halo_loads()] + misc_l0()
        if opt("QT", 0):
            fill += tw2 + touch(sWO, 512 * 1024, "a232", "v119", t0, min(TS, 6))
        P.add(tick("0.qs"))
        P.add(weave(qg, fill))
    else:
        if not opt("WQE", 0):
            P.add(wq_setup())
            P.add(I(wq_items([2])))
        P.add(I(tab_reads([0, 1, 2], x2)))
        back, vc = P.label(), (f"v{aQ}" if EF & 8 else None)
        P.put(back)
        P.add(kv_pre(0))
        xs, xi = x_loads(LB(1) + XIN_O, LB(1) + ST2_O, STV)
        NB = opt("NB", 14)
        P.add(xs)
        P.add(poll(vPX, x1, 8))
        P.add(tick("1.pollx"))
        P.add(I(xi[:NB]))
        P.add(tick("1.xiss"))
        s = [f"v{STV + i}" for i in range(4)]
        fill = stats_sum(STV, vc) + stats_finish(s[0], s[1], s[2], s[3], EX, False, x0, None) + r_bcast()
        g = attach(kv_groups(range(32)), xi[NB:] + inits("k", aQ + 4))
        if vc:
            for n, x in chain(vc, XF, 32):
                g[n] += I(x)
        P.add(weave(g, [(opt("XSP", 16) + 2, x) for x in fill]))
        if vc:
            P.add(redo(vc, back))
        P.add(ext)
        P.add(tick("1.kv"))
        P.add(barrier("wq"))
        P.add(qpre)
        fill = [(1, x) for x in kv_epilogue(1)] + halo_setup(1) + [(HL, x) for x in halo_loads()]
        P.add(weave(qg, fill))
    P(f"{MF} {V(aQ, 16)}, {V(TABS + 8)}, {V(EX)}, {V(aQ, 16)}")
```

```python
from k2_base import *
from k2_p1 import *

QF, KA, VA, LC, TMP, PM, KR, SB, DG, KD, OA0 = 16, 24, 25, 29, 31, 32, 40, 64, 160, 192, 224
VS = [112, 120, 200, 208, 216]


def q(h): return V(QF + 4 * h)
def kread(n, j, h): return f"ds_read_b128 {V(n)}, v{KA} offset:{PITCH * j + 2048 * h}"
def vread(n, j, h): return [f"ds_read_b128 {V(n + 4 * s)}, v{VA + 2 * h + s} offset:{PITCH * j + 2048 * h + 1024 + 512 * s}" for s in range(2)]
def merge(s, d): return [f"v_cndmask_b32_e64 v{s + r}, v{s + r}, v{d + r}, {sMASK(r)}" for r in range(16)]
def exps(s): return [f"v_exp_f32 v{s + i}, v{s + i}" for i in range(16)]
def cvts(s): return [f"v_cvt_pk_bf16_f32 v{s + i}, v{s + 2 * i}, v{s + 2 * i + 1}" for i in range(8)]
def split(s): return [x for i in range(8) for x in (f"v_and_b32 v{s + 8 + i}, v{s + i}, v{PM + i}", f"v_xor_b32 v{s + i}, v{s + i}, v{s + 8 + i}")]


def epi(L, h, o):
    e = [f"v_mul_f32 v{o + i}, v{o + i}, v{TMP}" for i in range(8)]
    e += [f"v_cvt_pk_bf16_f32 v{o + 8 + i}, v{o + 2 * i}, v{o + 2 * i + 1}" for i in range(4)]
    e += [xstore(f"buffer_store_dwordx4 {V(o + 8)}, {vL16}, {sWS}, {t0} offen offset:{1024 * h}", 1 << (4 * L), ini=f"iO{L}")]
    return e


def att_safe(L):
    K, SA_, SB_, NM, VV, O, m = 40, 96, 112, 128, 144, 160, f"v{LC}"
    o = []
    for h in range(2):
        o += [kread(K + 4 * j, j, h) for j in range(9)]
        for ps in range(2):
            c = V(NM, 16) if ps else 0
            for j in range(8):
                s = SB_ if j % 2 == 0 else SA_
                if j == 0:
                    o.append(f"{MF} {V(SA_, 16)}, {V(K + 32)}, {q(h)}, {c}")
                o.append(f"{MF} {V(s, 16)}, {V(K + 4 * j)}, {q(h)}, {c}")
                if j == 0:
                    o += merge(s, SA_)
                if ps == 0:
                    if j == 0:
                        o.append(f"v_mov_b32 {m}, v{s}")
                    o += [f"v_max3_f32 {m}, {m}, v{s + 2 * i}, v{s + 2 * i + 1}" for i in range(8)]
                    continue
                o += vread(VV, j, h) + exps(s) + cvts(s)
                if j == 0:
                    o += vread(VV + 8, 8, h) + split(s)
                    o += [f"{MF} {V(O, 16)}, {V(VV + 8)}, {V(s + 8)}, 0", f"{MF} {V(O, 16)}, {V(VV + 12)}, {V(s + 12)}, {V(O, 16)}"]
                o += [f"{MF} {V(O, 16)}, {V(VV)}, {V(s)}, {V(O, 16)}", f"{MF} {V(O, 16)}, {V(VV + 4)}, {V(s + 4)}, {V(O, 16)}", "s_nop 15"]
            if ps == 0:
                o += [f"v_mov_b32 v{TMP}, {m}", f"v_permlane32_swap_b32 {m}, v{TMP}", f"v_max_f32 {m}, {m}, v{TMP}"]
                o += [f"v_sub_f32 v{NM + i}, 0, {m}" for i in range(16)]
        o += [f"v_rcp_f32 v{TMP}, v{O + 8}"] + epi(L, h, O)
    return I(o + ["s_waitcnt vmcnt(0)"])


def phase2(L):
    P(f"s_mul_i32 {t0}, {sW}, {PITCH}")
    P(f"s_add_u32 {t0}, {t0}, {SL}")
    P(f"v_add_u32 v{KA}, {t0}, {vL16}")
    P(f"v_and_b32 {x1}, 0xf0, {vL16}")
    P(f"v_lshrrev_b32 {x2}, 5, {vL}")
    P(f"v_lshl_add_u32 {x1}, {x2}, 8, {x1}")
    P(f"v_add_u32 {x1}, {t0}, {x1}")
    P(f"s_mov_b32 vcc_lo, 0xffff0000")
    P(f"s_mov_b32 vcc_hi, 0xffff0000")
    P(kread(KD, 8, 0))
    P(kread(KD + 4, 8, 1))
    for hs in range(4):
        P(f"s_add_u32 {t1}, {t0}, {4096 - (2048 * (hs >> 1) + 1024 + 512 * (hs & 1))}")
        P(f"v_mov_b32 {x2}, {t1}")
        P(f"v_cndmask_b32 v{VA + hs}, {x1}, {x2}, vcc")
    P(f"v_lshrrev_b32 {x1}, 2, {vL}")
    P(f"v_min_u32 {x1}, 2, {x1}")
    P(f"v_lshlrev_b32 {x2}, 2, {x1}")
    P(f"v_add_u32 {x2}, {sT}, {x2}")
    P(f"v_cmp_le_u32 vcc, 8, {x2}")
    P(f"v_mul_u32_u24 {x1}, {4 * PITCH}, {x1}")
    P(f"v_and_b32 {x2}, 3, {vL}")
    P(f"v_lshl_add_u32 {x1}, {x2}, 2, {x1}")
    P(f"v_add_u32 {x1}, {t0}, {x1}")
    P(f"v_mov_b32 {x2}, 0x3f803f80")
    P(f"v_cndmask_b32 {x2}, 0, {x2}, vcc")
    P(f"ds_write_b32 {x1}, {x2} offset:4096")
    tiles = [(8, 0), (0, 0), (8, 1), (0, 1), (4, 0), (4, 1)] + [(j, h) for h in range(2) for j in (1, 2, 3, 5, 6, 7)]
    def vs(t): return VS[t % 5]
    def vl(t): return vread(vs(t), *tiles[t])
    def hd(u): return tiles[u + 2][1] if u >= 2 else u
    def sb(u): return SB + 16 * (u % 3)
    def oa(h): return OA0 + 16 * h
    def qk(u): return f"{MF} {V(sb(u), 16)}, {V(HB + 8 * u if u < 4 else KR + 4 * (u % 4))}, {q(hd(u))}, 0"
    P.add(I(vl(0) + vl(2)))
    for h in range(2):
        for i in range(8 * h, 8 * h + 8):
            P(f"v_mul_f32 v{aQ + i}, v{aQ + i}, {x0}")
        for i in range(4 * h, 4 * h + 4):
            P(f"v_cvt_pk_bf16_f32 v{QF + i}, v{aQ + 2 * i}, v{aQ + 2 * i + 1}")
        for d in range(4 * h, 4 * h + 4):
            P(f"v_accvgpr_read_b32 v{PM + d}, a{240 + d}")
        P(f"{MF} {V(DG + 16 * h, 16)}, {V(KD + 4 * h)}, {q(h)}, 0")
    P.add(I([f"s_lshl_b32 {t0}, {sT}, 4", f"s_add_u32 {t0}, {t0}, {sM}", f"s_lshl_b32 {t0}, {t0}, 11", f"s_add_u32 {t0}, {t0}, {LB(L) + O_O}"]))
    P.add(tick(f"{L}.p1end"))
    lp, lr, ls = P.label(), P.label(), P.label()
    P(f"s_mov_b32 {sCNT}, 20000")
    P.put(lp)
    for i in range(2):
        for j in range(4):
            b = HB + 16 * i + 4 * j
            if i == 0 and j % 2 == 0:
                P(qk(j >> 1))
            P(f"ds_write_b128 v{KA}, {V(b)} offset:{4 * PITCH * i + 1024 * j}")
            if i == 0 and j == 3:
                P.add(I(vl(1) + vl(3)))
            if i == 0 and j == 0:
                P(f"v_max3_u32 {x1}, v{b}, v{b + 1}, v{b + 2}")
                P(f"v_max_u32 {x1}, {x1}, v{b + 3}")
            else:
                P(f"v_max3_u32 {x1}, {x1}, v{b}, v{b + 1}")
                P(f"v_max3_u32 {x1}, {x1}, v{b + 2}, v{b + 3}")
    P(f"v_cmp_eq_u32 vcc, -1, {x1}")
    P(f"s_cbranch_vccnz {ls}")
    P.put(lr)
    OUTL.extend(I([ls + ":", f"s_sub_u32 {sCNT}, {sCNT}, 1", f"s_cbranch_scc1 {lr}"] + halo_loads() + [f"s_branch {lp}"]))
    P.add(tick(f"{L}.halo"))

    def mix(a, b):
        out, b = [], list(b)
        for x in a:
            out.append(x)
            if b:
                y = b.pop(0)
                if y is not None:
                    out.append(y)
        return out + [y for y in b if y is not None]
    BU = opt("BU", 1)
    head, main, pend = [], [], []
    for u in range(16):
        h, s = hd(u), sb(u)
        o = V(oa(h), 16)
        if u < 2:
            valu = merge(s, DG + 16 * u) + exps(s) + cvts(s) + split(s)
            pv = [f"{MF} {o}, {V(vs(2 * u))}, {V(s + 8)}, 0", f"{MF} {o}, {V(vs(2 * u) + 4)}, {V(s + 12)}, {o}",
                  f"{MF} {o}, {V(vs(2 * u + 1))}, {V(s)}, {o}", f"{MF} {o}, {V(vs(2 * u + 1) + 4)}, {V(s + 4)}, {o}"]
        else:
            valu = exps(s) + cvts(s)
            pv = [f"{MF} {o}, {V(vs(u + 2))}, {V(s)}, {o}", f"{MF} {o}, {V(vs(u + 2) + 4)}, {V(s + 4)}, {o}"]
        if u == 11:
            valu = valu[:12] + mix(valu[12:], [f"v_rcp_f32 v{TMP}, v{oa(0) + 8}", f"v_add_u32 v{LC}, 0xe0800000, v{oa(0) + 8}"] + epi(L, 0, oa(0)))
        if u == 15:
            valu = valu[:8] + valu[16:20] + valu[8:10] + [pv.pop(0)] + valu[10:16] + valu[20:]
        mf = list(pend) + ([qk(u + 2)] if u + 2 < 16 else [])
        rd = (vl(u + 3) if 1 <= u <= 14 else []) + ([kread(KR + 4 * ((u + 3) % 4), *tiles[u + 5])] if 1 <= u <= 12 else [])
        rd = [None] * (len(mf) - len(rd)) + rd
        out, acc = [], 32
        for x in valu:
            if acc >= 28 and mf:
                r = rd.pop(0)
                out.append(I([mf.pop(0)] + ([r] if r else []))); acc = 4 if r else 0
            out.append(I(x)); acc += cost(I(x))
        assert not mf and not rd
        pend = pv
        if u < BU:
            head += out
        else:
            main += out
    main += pend
    P.add(I(head))
    P.add(barrier())
    P.add(tick(f"{L}.B2"))
    if L == 0:
        d2_, r2_ = w2_round(2, x0)
        d3_, r3_ = w2_round(3, x0)
        d1_, r1_ = w2_round(1, x0)
        a = spread(main, d2_, 0.0, 0.25)
        a = spread(a, r2_ + [[need_ins("ds_any")]] + d1_ + d3_, 0.35, 0.62)
        a = spread(a, r1_ + [[need_ins("ds_any")]] + wo_items() + touch(sW1, 1792 * 1024, "a232", x1, u2), 0.72, 0.92)
        a = spread(a, inits("A", 56), opt("IA0", 5) / 100, opt("IA1", 70) / 100)
        late_rd = r3_
    else:
        a = spread(main, (touch(sW1, 1792 * 1024, "v60", x1, u2, opt("TW1", 0)) if opt("TW1", 0) else []) + wo_items() + w1_items("CD1"), 0.0, 0.6)
        a = spread(a, inits("a", 56), opt("Ia0", 5) / 100, opt("Ia1", 60) / 100)
        late_rd = []
    P.add(I(a))
    lf, lj = P.label(), P.label()
    P(f"v_rcp_f32 v{TMP}, v{oa(1) + 8}")
    P(f"v_add_u32 {x1}, 0xe0800000, v{oa(1) + 8}")
    P(f"v_max_u32 {x1}, {x1}, v{LC}")
    P(f"v_cmp_le_u32 vcc, {0 if opt('FB', 0) else '0x40000000'}, {x1}")
    e = epi(L, 1, oa(1))
    P.add(I(e[:4]))
    P(f"s_cbranch_vccnz {lf}")
    P.add(I(e[4:]))
    P.put(lj)
    OUTL.extend(I([lf + ":"]) + att_safe(L) + I(f"s_branch {lj}"))
    P.add(tick(f"{L}.att"))
    P.add(publish(16 * L + 1, x1, early=f"iO{L}" if EF & 1 else None))
    P.add(tick(f"{L}.p2end"))
    return late_rd
```

```python
from k2_base import *
from k2_p1 import *

B1V, CC, CD_, AS4 = 48, 52, 56, 60
OM = OPT.get("OM", "").replace("_", " ")


def tile_out(x, pk, tmp, bit, pub, ini):
    XE = opt("XE", 1)
    if XE == 0:
        P.add(pub)
    for i in range(8):
        P(f"v_cvt_pk_bf16_f32 v{pk + i}, v{x + 2 * i}, v{x + 2 * i + 1}")
    P.add(xstore(f"buffer_store_dwordx4 {V(pk)}, {vL16}, {sWS}, {t1} offen", bit, ini=ini))
    P.add(xstore(f"buffer_store_dwordx4 {V(pk + 4)}, {vL16}, {sWS}, {t1} offen offset:1024", bit))
    if XE == 1:
        P.add(pub)
    a, b = V(tmp, 2), V(tmp + 2, 2)
    P(f"v_pk_add_f32 {a}, {V(x, 2)}, {V(x + 2, 2)}")
    P(f"v_pk_mul_f32 {b}, {V(x, 2)}, {V(x, 2)}")
    for i in range(1, 8):
        if i >= 2:
            P(f"v_pk_add_f32 {a}, {a}, {V(x + 2 * i, 2)}")
        P(f"v_pk_fma_f32 {b}, {V(x + 2 * i, 2)}, {V(x + 2 * i, 2)}, {b}")
    P(f"v_add_f32 v{tmp}, v{tmp}, v{tmp + 1}")
    P(f"v_add_f32 v{tmp + 2}, v{tmp + 2}, v{tmp + 3}")
    P(f"v_permlane32_swap_b32 v{tmp}, v{tmp + 2}")
    P(f"v_add_f32 v{tmp}, v{tmp}, v{tmp + 2}")
    P.add(xstore(f"buffer_store_dword v{tmp}, {x2}, {sWS}, {t2} offen", bit))
    if XE == 2:
        P.add(pub)


def tile_addr(xo, so):
    return I([f"s_lshl_b32 {t2}, {sTP}, 4", f"s_add_u32 {t2}, {t2}, {sCT}", f"s_lshl_b32 {t1}, {t2}, 11", f"s_add_u32 {t1}, {t1}, {xo}",
              f"s_lshl_b32 {t2}, {t2}, 8", f"s_add_u32 {t2}, {t2}, {so}", f"v_lshlrev_b32 {x2}, 2, {vL}"])


def phase3(L, late_rd):
    a0, a1, OF, WO = 16, 32, 64, 128
    vp, vc = "v53", "v54"
    P(f"s_and_b32 {t0}, {sW}, 1")
    P(f"s_lshl_b32 {t0}, {t0}, 14")
    P(f"v_add_u32 {x1}, {t0}, {vTP}")
    P(f"s_lshl_b32 {t3}, {sTP}, 15")
    P(f"s_add_u32 {t3}, {t3}, {t0}")
    P(f"s_add_u32 {t3}, {t3}, {LB(L) + O_O}")
    P(f"s_and_b32 {t4}, {sRR}, 1")
    P(f"s_lshl_b32 {t4}, {t4}, 13")
    P(f"s_add_u32 {t3}, {t3}, {t4}")
    P.add(barrier("wo"))
    P.add(tick(f"{L}.B3"))
    CD2E = opt("CD2E", 1)
    if L and CD2E:
        P.add(I(w1_items("CD2")))
    rd = [tr("v", WO + (ks * 2 + ct) * 4, x1, (ks >> 3) * 32768 + 2048 * (ks & 7) + 512 * ct) for ks in range(16) for ct in range(2)]
    PO1, PO2 = opt("PO1", 6), opt("PO2", 14)
    def oloads():
        o = []
        for ks in range(16):
            if ks % 4 == 0:
                o.append(f"s_xor_b32 {t4}, {t3}, {4096 * (ks // 4)}")
            o.append(f"buffer_load_dwordx4 {V(OF + 4 * ks)}, {vL16}, {sWS}, {t4} offen offset:{(ks % 4) * 1024} sc1{ntm('O')}")
        return o
    def res(tmpv):
        if L:
            return [f"v_accvgpr_read_b32 v{a0 + i}, a{224 + i}" for i in range(16)]
        return [x for d in range(8) for x in (f"v_accvgpr_read_b32 {tmpv}, a{224 + d}", f"v_lshlrev_b32 v{a0 + 2 * d}, 16, {tmpv}", f"v_and_b32 v{a0 + 2 * d + 1}, 0xffff0000, {tmpv}")]
    P.add(I(rd[:PO1]))
    P.add(poll_issue(vPO, vp))
    P.add(I(rd[PO1:PO2]))
    P.add(I(res(x2)))
    P.add(poll_check(vPO, vp, 16 * L + 1))
    P.add(tick(f"{L}.pollo"))
    P.add(I(oloads()))
    if L and not CD2E:
        P.add(I(w1_items("CD2")))
    P.add(I(rd[PO2:]))
    r4 = []
    if L == 0:
        d4, r4 = w2_round(4, x0)
        P.add(I(late_rd))
        P.add(I(d4[:8]))
        P(f"v_and_b32 {x1}, 0x13, {vL}")
        P(f"v_bfe_u32 {x2}, {vL}, 2, 1")
        P(f"v_lshl_add_u32 {x1}, {x2}, 3, {x1}")
        P(f"v_bfe_u32 {x2}, {vL}, 3, 1")
        P(f"v_lshl_add_u32 {x1}, {x2}, 2, {x1}")
        P(f"v_lshlrev_b32 {x1}, 1, {x1}")
        P(f"s_lshl_b32 {t1}, {sM}, 8")
        P(f"s_cmp_ge_u32 {sW}, 2")
        P(f"s_cselect_b32 {t1}, {OOB}, {t1}")
        for e in range(4):
            P(f"buffer_load_ushort v{B1V + e}, {x1}, {sB1}, {t1} offen offset:{64 * e}")
        P.need("ds_any")
        P.add(I(d4[8:]))
    P(f"s_xor_b32 {t0}, {sW}, 1")
    P(f"s_lshl_b32 {t0}, {t0}, 12")
    P(f"s_add_u32 {t0}, {t0}, {SCR3}")
    P(f"v_add_u32 {x0 if L else 'v52'}, {t0}, {vL16}")
    vw = x0 if L else "v52"
    P.add(tile_addr(LB(L) + X1_O, LB(L) + ST1_O))
    P.add(barrier())
    P.add(tick(f"{L}.B3b"))
    back = P.label()
    P.put(back)
    def mf(ks, ct):
        a = V(a0 if ct == 0 else a1, 16)
        return f"{MF} {a}, {V(WO + (ks * 2 + ct) * 4)}, {V(OF + 4 * ks)}, {a if (ks or ct == 0) else 0}"
    NT = 4
    g = [[mf(ks, 1), mf(ks, 0)] for ks in range(16 - NT)] + [[mf(ks, 1)] for ks in range(16 - NT, 16)]
    fill = w1_items("AB") + (w1_items("CD1") if L == 0 else [])
    if EF & 1:
        for n, x in chain(vc, OF, 16):
            g[n].append(x)
    P.add(I(spread(g, fill, 0.0, 1.0)))
    if EF & 1:
        P.add(redo(vc, back, oloads() + res(x1)))
    for n, ks in enumerate(range(16 - NT, 16)):
        P(mf(ks, 0))
        if n >= 1:
            for j in ([n - 1] if n < NT - 1 else range(n - 1, 4)):
                P(f"ds_write_b128 {vw}, {V(a1 + 4 * j)} offset:{1024 * j}")
    P(f"v_xor_b32 {vw}, 0x1000, {vw}")
    P.add(tick(f"{L}.p3mm"))
    P.add(barrier())
    for j in range(4):
        P(f"ds_read_b128 {V(OF + 4 * j)}, {vw} offset:{1024 * j}")
    for i in range(8):
        P(f"v_pk_add_f32 {V(a0 + 2 * i, 2)}, {V(a0 + 2 * i, 2)}, {V(OF + 2 * i, 2)}")
    tile_out(a0, OF + 16, OF + 24, 2 << (4 * L), publish(16 * L + 3, x1, early=f"iX{L}") if EF & 2 else [], f"iX{L}")
    for d in range(8):
        P(f"v_accvgpr_read_b32 {x1}, a{248 + d}")
        P(f"v_lshlrev_b32 v{OF}, 16, {x1}")
        P(f"v_and_b32 v{OF + 1}, 0xffff0000, {x1}")
        P(f"v_pk_add_f32 {V(a0 + 2 * d, 2)}, {V(a0 + 2 * d, 2)}, {V(OF, 2)}")
        P(f"v_accvgpr_write_b32 a{224 + 2 * d}, v{a0 + 2 * d}")
        P(f"v_accvgpr_write_b32 a{225 + 2 * d}, v{a0 + 2 * d + 1}")
    if not EF & 2:
        P.add(publish(16 * L + 3, x1))
    P.add(tick(f"{L}.p3end"))
    return r4


def gelu(a, c0, c1, ir, tmp, so, tag, bit, pk=False, ini=None):
    res = []
    for g in range(4):
        if pk:
            xs = [V(a + 4 * g + 2 * e, 2) for e in range(2)]
            ts = [V(tmp + 2 * e, 2) for e in range(2)]
            bc = lambda r: f"v[{r[1:]}:{int(r[1:]) + 1}]"
            res += [f"v_pk_mul_f32 {t}, {x}, {x}" for x, t in zip(xs, ts)]
            res += [f"v_pk_fma_f32 {t}, {t}, {bc(c1)}, {bc(c0)} op_sel_hi:[1,0,0]" for t in ts]
            res += [f"v_pk_mul_f32 {t}, {t}, {x}" for x, t in zip(xs, ts)]
            res += [f"v_exp_f32 v{tmp + e}, v{tmp + e}" for e in range(4)]
            res += [f"v_pk_fma_f32 {t}, {t}, {bc(ir)}, {bc(ir)} op_sel_hi:[1,0,0]" for t in ts]
            res += [f"v_rcp_f32 v{tmp + e}, v{tmp + e}" for e in range(4)]
            res += [f"v_pk_mul_f32 {x}, {x}, {t}" for x, t in zip(xs, ts)]
        else:
            blk = []
            for e in range(4):
                x, t = f"v{a + 4 * g + e}", f"v{tmp + e}"
                blk.append([f"v_mul_f32 {t}, {x}, {x}", f"v_fma_f32 {t}, {t}, {c1}, {c0}", f"v_mul_f32 {t}, {t}, {x}",
                            f"v_exp_f32 {t}, {t}", f"v_fma_f32 {t}, {t}, {ir}, {ir}", f"v_rcp_f32 {t}, {t}", f"v_mul_f32 {x}, {x}, {t}"])
            for s in range(7):
                for e in range(4):
                    res.append(blk[e][s])
        for i in (2 * g, 2 * g + 1):
            res.append(f"v_cvt_pk_bf16_f32 v{a + i}, v{a + 2 * i}, v{a + 2 * i + 1}")
        if g & 1:
            s, off = so
            res.append(xstore(f"buffer_store_dwordx4 {V(a + 2 * (g - 1))}, {vL16}, {sWS}, {s} offen offset:{off + 1024 * (g >> 1)}", bit, tag, ini))
    return [I(x) for x in res]


def phase45(L, r4):
    T = [16, 32, 48, 16]
    C0R, C1R, IRR, RR, GT = "v116", "v118", "v120", "v122", 124
    FB = 16 * L
    vtb = x2
    if L == 0:
        P.add(I(r4))
        P.add(asel(AS4))
        P(f"s_lshl_b32 {t0}, {sW}, 14")
        P(f"v_add_u32 {x1}, {t0}, {vTP}")
        P(f"s_lshl_b32 {t0}, {sW}, 13")
        P(f"v_add_u32 {x0}, {t0}, {vTP1}")
        P.add(table_addr(x2))
        P.need("w1AB")
        for j in range(16):
            P.add(tr("v", XF + 4 * j, x1, 2048 * (j >> 1) + 512 * (j & 1)))
        P.need("w1CD1")
        for j in range(8):
            P.add(tr("v", XF + 64 + 4 * j, x0, 2048 * (j >> 1) + 512 * (j & 1)))
        for j in range(16):
            c = V(16 + 4 * (j & 1))
            P(f"{MF16} {c}, {V(AS4)}, {V(XF + 4 * j)}, {c if j >= 2 else 0}")
        for j in range(8):
            c = V(CC + 4 * (j & 1))
            P(f"{MF16} {c}, {V(AS4)}, {V(XF + 64 + 4 * j)}, {c if j >= 2 else 0}")
        P.add(I(table_write(16, 3, x2, f"v{B1V}") + table_write(20, 4, x2, f"v{B1V + 1}")))
        P.add(barrier())
        vtw = "v123"
        P(f"v_mov_b32 {vtw}, {x2}")
    else:
        P.add(barrier("w1AB", "w1CD1", "w1CD2"))
    P(f"v_add_u32 {vtb}, {TAB0 + 3072}, {vL16}")
    D = 3
    def rdA(t):
        if t < 32:
            return trp(RING + 8 * (t % 4), 2048 * t) + trp(RING + 8 * (t % 4) + 4, 2048 * t + 512)
        if t == 32:
            return I([f"ds_read_b128 {V(RING + 8 * (t % 4) + 4 * e)}, {vtb} offset:{1024 * e}" for e in range(2)])
        return []
    back, vc = P.label(), (f"v{GT}" if EF & 2 else None)
    P.put(back)
    for t in range(D):
        P.add(rdA(t))
    P(f"s_lshl_b32 {t3}, {sT}, 17")
    P(f"s_lshl_b32 {t4}, {sM}, 13")
    P(f"s_add_u32 {t3}, {t3}, {t4}")
    P(f"s_add_u32 {t3}, {t3}, {LB(L) + H_O}")
    P.add(I(idle(t3)))
    P(f"s_add_u32 {t4}, {t3}, 4096")
    xs, xi = x_loads(LB(L) + X1_O, LB(L) + ST1_O, STV)
    NB = opt("NB", 14)
    P.add(xs)
    P.add(I(idle(t1, t2)))
    P.add(tick(f"{L}.B4b"))
    P.add(poll(vPX, x1, FB + 3))
    P.add(tick(f"{L}.pollx1"))
    P.add(I(xi[:NB]))
    xi = xi[NB:] + (w1_items("CD2") if L == 0 else [])
    if L == 0 and opt("TKV", 0):
        xi += touch_qkv("v117", "v119")
    gA = []
    for k in range(33):
        xb = V(XF + 4 * k) if k < 32 else V(EX)
        gA.append(rdA(k + D) + I([f"{MF} {V(T[e], 16)}, {V(RING + 8 * (k % 4) + 4 * e)}, {xb}, {V(T[e], 16) if k else 0}" for e in range(2)]))
    s = [f"v{STV + i}" for i in range(4)]
    C0 = -2.0 * LOG2E * 0.7978845608028654
    fill = stats_sum(STV, vc) + stats_finish(s[0], s[1], s[2], s[3], EX, True, RR, IRR)
    fill += [I(x) for x in [f"v_mul_f32 {C0R}, {fc(C0)}, {RR}", f"v_mul_f32 {C1R}, {RR}, {RR}", f"v_mul_f32 {C1R}, {C1R}, {C0R}",
                            f"v_mul_f32 {C1R}, {fc(0.044715)}, {C1R}"]]
    for k in range(0, 32, 4):
        gA[k] = gA[k] + tick(f"{L}.zA{k}")
    attach(gA, xi)
    if vc:
        for n, x in chain(vc, XF, 32):
            gA[n] += I(x)
    P.add(weave(gA, [(opt("XSP", 16) + 2, x) for x in fill] + [(len(xi), x) for x in inits("Bb"[L], STV + 8)]))
    if vc:
        P.add(redo(vc, back))
    P.add(tick(f"{L}.pA"))
    D1 = 6
    def rd1(e, t):
        if t < 32:
            return trp(RING + 4 * (t % 8), R2 + 2048 * t + 512 * e)
        if t == 32:
            return I(f"ds_read_b128 {V(RING + 4 * (t % 8))}, {vtb} offset:{2048 + 1024 * e}")
        if e == 0 and t - 34 >= 0:
            pass
        return []
    def g1(e, off):
        def rd(t):
            n = RING + 4 * ((t + off) % 8)
            if t < 32:
                return trp(n, R2 + 2048 * t + 512 * e)
            if t == 32:
                return I(f"ds_read_b128 {V(n)}, {vtb} offset:{2048 + 1024 * e}")
            if e == 0:
                return trp(n, R2 + 2048 * (t - 33) + 512)
            return []
        a = V(T[2 + e], 16)
        out = []
        for k in range(33):
            xb = V(XF + 4 * k) if k < 32 else V(EX)
            it = rd(k + D1)
            if k % 2 == 0 and k + 1 < 33:
                it = it + [need_ins(("v", RING + 4 * ((k + 1 + off) % 8) + 3))]
            out.append(it + I(f"{MF} {a}, {V(RING + 4 * ((k + off) % 8))}, {xb}, {a if k else 0}"))
        return out, [rd(t) for t in range(D1)]
    gB, preB = g1(0, 0)
    gC, _ = g1(1, 33)
    PUBD = opt("PUBD", 14)
    GHI = opt("GHI", 90) / 100
    def G(i, pk=False):
        o = gelu(T[i], C0R, C1R, IRR, GT, (t3 if i < 2 else t4, 2048 * (i & 1)), f"h{i}", 4 << (4 * L), pk, f"iH{L}{i}")
        if EF & 4:
            o.insert(len(o) - opt("HE", 0), tick(f"{L}.zpb{i}") + publish(FB + 4 + i, x1, f"h{i}", f"iH{L}{i}"))
        return o
    def at(groups, n, item):
        groups[n] = groups[n] + I(item)
    if L == 0:
        cs = [I([need_ins("w1CD2")] + tr("v", STV + 4 * (j & 3), x0, 32768 + 2048 * (j >> 1) + 512 * (j & 1))) for j in range(4)]
        for j in range(8):
            c = V(CC + 4 * (j & 1))
            cs.append(I(f"{MF16} {c}, {V(AS4)}, {V(STV + 4 * (j & 3))}, {c}"))
            if j + 4 < 8:
                cs.append(tr("v", STV + 4 * (j & 3), x0, 32768 + 2048 * ((j + 4) >> 1) + 512 * (j & 1)))
        cs += [[]] + table_write(CC, 5, vtw, f"v{B1V + 2}") + table_write(CD_, 6, vtw, f"v{B1V + 3}")
        P.add(I(spread(G(0), cs + preB, 0.1, 0.95)))
        P.add(barrier())
        kv = wq_items([0, 1], "wkv")
        kv[0] = wq_setup(1024) + kv[0]
        if not opt("KV0", 0):
            for j in range(8):
                at(gB, 1 + j, kv[j]); at(gC, 1 + j, kv[8 + j])
    else:
        P.add(I(spread(G(0, True), preB, 0.5, 0.95)))
    P.add(tick(f"{L}.G0"))
    ACC = [A(224, 16), V(32, 16), V(48, 16), V(240, 16)]
    def hf(s, i, tt): return XF + 4 * (14 * (s & 1) + 2 * i + tt)
    def hloads(s):
        out = []
        for i in range(7):
            for tt in range(2):
                out.append(I([f"s_add_u32 {u0}, {t5 if tt == 0 else d3}, {(8 * i + 2 * s) * 1024}",
                              f"buffer_load_dwordx4 {V(hf(s, i, tt))}, {vL16}, {sWS}, {u0} offen sc1{ntm('H')}"]))
        return out
    def mf(s, i, n):
        tt, ct = n >> 1, n & 1
        a = ACC[n]
        return f"{MF} {a}, {A(((7 * s + i) * 2 + ct) * 4)}, {V(hf(s, i, tt))}, {a if (s or i or n == 0) else 0}"
    def hchk(s, i):
        if not EF & 4:
            return []
        ls, lr = P.label(), P.label()
        c = [f"v_cmp_u_f32 vcc, v{hf(s, i, 0)}, v{hf(s, i, 1)}", f"s_cbranch_vccnz {ls}"]
        OUTL.extend(I([ls + ":", f"s_cmp_eq_u32 {sRT}, 0", f"s_cbranch_scc1 {lr}", f"s_sub_u32 {sRT}, {sRT}, 1"] + hloads(s)[2 * i:2 * i + 2] + c + [f"s_branch {lr}"]))
        return I(c + [lr + ":"])
    def gS(s, ni=7): return [(hchk(s, i) if n == 0 else []) + I(mf(s, i, n)) for i in range(ni) for n in range(4)]
    hb = I([f"s_lshr_b32 {u0}, {sW}, 1", f"s_mul_i32 {u0}, {u0}, {56 * 1024}", f"s_and_b32 {u1}, {sW}, 1", f"s_lshl_b32 {u1}, {u1}, 10",
            f"s_add_u32 {u0}, {u0}, {u1}", f"s_add_u32 {u0}, {u0}, {LB(L) + H_O}", f"s_lshl_b32 {t5}, {sTP}, 17", f"s_xor_b32 {d3}, {t5}, 0x20000",
            f"s_add_u32 {t5}, {t5}, {u0}", f"s_add_u32 {d3}, {d3}, {u0}"])
    for n, x in enumerate(hb):
        at(gB, 16 + n, x)
    st = gB + gC + gS(0) + gS(1) + gS(2)
    CK = [opt(f"CK{i}", ((41, 66, 96, 124), (33, 48, 80, 110))[EF >> 2 & 1][i]) for i in range(4)]
    PB = [opt("PB0", 14), opt("PB1", 47), opt("PB2", 78), opt("PB3", 108)]
    PD = opt("PD", 12)
    for s in range(4):
        if not EF & 4:
            at(st, PB[s], tick(f"{L}.zpb{s}") + publish(FB + 4 + s, x1, f"h{s}") + tick(f"{L}.zPB{s}"))
        at(st, CK[s] - PD, poll_issue(vPH, x0))
        at(st, CK[s], tick(f"{L}.zck{s}") + poll_check(vPH, x0, FB + 4 + s) + tick(f"{L}.zCK{s}"))
        n = CK[s] + 1
        for j, x in enumerate(hloads(s)):
            lo = {0: 33 + j, 1: 33 + 14 + j}.get(s, 66 + 28 * (s - 2) + 4 * (j >> 1) + 3)
            n = max(n, lo)
            at(st, n, x)
            n += 1 if j < opt("HBU", 6) else opt("HST", 2)
        assert n <= len(st) + 1
    at(st, opt("B6", 110), barrier() + tick(f"{L}.zB6"))
    if L == 0 and opt("KV0", 0):
        for j in range(16):
            at(st, opt("KV0", 0) + j * opt("KVS", 10) // 10, kv[j])
    if L == 0 and opt("WQE", 0):
        assert opt("WQE", 0) > opt("B6", 110)
        for j, x in enumerate(wq_items([2])):
            at(st, opt("WQE", 0) + j * opt("WQS", 1), (I(f"s_sub_u32 {d1}, {d1}, 1024") if j == 0 else []) + x)
    P.add(I(spread(st[:33], G(1), 0.03, GHI)))
    P.add(tick(f"{L}.pB"))
    P.add(I(spread(st[33:66], G(2), 0.03, GHI)))
    P.add(tick(f"{L}.pC"))
    P.add(weave(st[66:94], [(1, x) for x in G(3)], slack=0))
    P.add(tick(f"{L}.S0"))
    P.add(I(st[94:122]))
    P.add(tick(f"{L}.S1"))
    P.add(I(st[122:150]))
    P.add(tick(f"{L}.S2"))
    NT = opt("NT5", 2)
    wa = ["v16", "v17", "v18", "v19"]
    pre = []
    for i in range(4):
        pre.append(I([f"s_xor_b32 {u0}, {sW}, {i}", f"s_mul_i32 {u0}, {u0}, 12288", f"s_add_u32 {u0}, {u0}, {SL + 4096 * max(0, i - 1)}",
                      f"v_add_u32 {wa[i]}, {u0}, {vL16}"]))
    if L == 0:
        pre.append(tile_addr(LB(1) + XIN_O, LB(1) + ST2_O))
    else:
        pre.append(I([f"v_and_b32 {x2}, 31, {vL}", f"v_lshrrev_b32 {x1}, 5, {vL}", f"v_lshlrev_b32 {x2}, 10, {x2}", f"v_lshl_add_u32 {x2}, {x1}, 4, {x2}",
                      f"s_lshl_b32 {t1}, {sTP}, 15", f"s_lshl_b32 {t2}, {sCT}, 6", f"s_add_u32 {t1}, {t1}, {t2}"]))
    P.add(I(pre))
    g = gS(3, 7 - NT)
    if L == 0:
        attach(g, inits("C", RING), 1, 1)
    base = [0, 32, 48, 240]
    wr = []
    for n in (3, 2, 1, 0):
        for e, i in enumerate(range(7 - NT, 7)):
            g.append((hchk(3, i) if n == 3 else []) + I(mf(3, i, n)))
            if e >= 1 or NT == 1:
                k = (len(wr) + (NT - e) - 1) // (NT - e)
                g.append(I(wr[:k])); wr = wr[k:]
        if n:
            wr = [f"ds_write_b128 {wa[n]}, {V(base[n] + 4 * j)} offset:{1024 * j}" for j in range(4)]
    P.add(I(g))
    x, tmp = 64, 80
    for i in range(16):
        P(f"v_accvgpr_read_b32 v{x + i}, a{224 + i}")
    P.add(tick(f"{L}.S3"))
    P.add(barrier(*(["wkv"] if L == 0 else [])))
    for j in range(12):
        P(f"ds_read_b128 {V(tmp + 4 * j)}, {wa[0]} offset:{1024 * j}")
    for p in range(3):
        for i in range(8):
            P(f"v_pk_add_f32 {V(x + 2 * i, 2)}, {V(x + 2 * i, 2)}, {V(tmp + 16 * p + 2 * i, 2)}")
    if L == 0:
        tile_out(x, 16, 24, 8, publish(8, x1, early="iY0") if EF & 8 else [], "iY0")
        for i in range(16):
            P(f"v_accvgpr_write_b32 a{224 + i}, v{x + i}")
        if not EF & 8:
            P.add(publish(8, x1))
        P.add(tick("0.p5end"))
    else:
        for i in range(8):
            P(f"v_cvt_pk_bf16_f32 v{16 + i}, v{x + 2 * i}, v{x + 2 * i + 1}")
        P(f"buffer_store_dwordx4 {V(16)}, {x2}, {sOUT}, {t1} offen {OM}")
        P(f"buffer_store_dwordx4 {V(20)}, {x2}, {sOUT}, {t1} offen offset:32 {OM}")
        if PROF:
            P.need("stores")
            P.add(tick("1.final"))
            P.add(prof_dump())
```

```python
from k2_base import *

sW2B = "s3"
NK = " nt" if opt("NTS", 0) & 2 else ""

def wq_items(imgs, tag="wq"):
    out = []
    for q in range(4):
        for img in imgs:
            cb = (0, 1024, 0)[img]
            out.append(I([f"s_xor_b32 {d0}, {sRR}, {q}", f"s_mul_i32 {d0}, {d0}, {128 * 3072}", f"s_add_u32 m0, {d2}, {img * 32768 + q * 8192 - cb}", f"s_add_u32 {d0}, {d0}, {d1}",
                          Ins(f"buffer_load_dwordx4 {voQ}, {sWQ}, {d0} offen offset:{cb} lds", xdst=[tag])]))
            out.append(I([f"s_add_u32 {d0}, {d0}, {16 * 3072 - 1024}",
                          Ins(f"buffer_load_dwordx4 {voQ}, {sWQ}, {d0} offen offset:{cb + 1024} lds", xdst=[tag])]))
    return out

def wq_setup(cb=0):
    return I([f"s_mul_i32 {d1}, {sW}, {32 * 3072}", f"s_lshl_b32 {d2}, {sM}, 6", f"s_add_u32 {d1}, {d1}, {d2}",
              f"s_lshl_b32 {d2}, {sW}, 11"] + ([f"s_add_u32 {d1}, {d1}, {cb}"] if cb else []))

vX0, vX1, XA = "v112", "v113", 120

def x0_items(h):
    out = []
    for j in range(4):
        it = []
        if j == 0:
            it += [f"s_xor_b32 {d1}, {t5}, {h}", f"s_lshl_b32 {d1}, {d1}, 7", f"s_add_u32 {d1}, {d1}, {t3}", f"s_add_u32 m0, {d3}, {SL + 4096 * (h & 3)}"]
        else:
            it.append(f"s_add_u32 {d1}, {d1}, 7168")
        it.append(Ins(f"buffer_load_dwordx4 {vX1 if j & 1 else vX0}, {sX}, {d1} offen offset:{j * 1024}{ntm(sX)} lds", xdst=[f"x{h}"]))
        out.append(I(it))
    return out

def w0_items(h, imgs=(0, 1), tag=None):
    out = []
    for img in imgs:
        cb = (1024, 2048, 0)[img]
        out += dma(sWQ, voQ, d1, [cb], d2, img * 32768 + h * 4096, tag or f"kv{h}")
    out[0] = I([f"s_xor_b32 {d1}, {t5}, {h}", f"s_mul_i32 {d1}, {d1}, {64 * 3072}", f"s_add_u32 {d1}, {d1}, {t4}"]) + out[0]
    return out

def w2_piece(kks, mul, imm, tag, vb):
    goffs = []
    for kk in kks:
        s, i = kk // 7, kk % 7
        goffs += [(128 * i + 32 * s + 8 * h) * 1024 for h in range(2)]
    dm = dma(sW2, vo2, sW2B, goffs, d2, imm, tag)
    dm[0] = I(f"s_mul_i32 {d2}, {sW}, {mul}") + dm[0]
    rd = [I([f"s_mul_i32 {u0}, {sW}, {mul}", f"s_add_u32 {u0}, {u0}, {imm}", f"v_add_u32 {vb}, {u0}, {vTP}", need_ins(tag)])]
    for j, kk in enumerate(kks):
        for ct in range(2):
            rd.append(tr("a", (kk * 2 + ct) * 4, vb, 2048 * j + 512 * ct))
    return dm, rd

def w2_round(rnd, vb):
    k = {1: 13, 2: 0, 3: 18, 4: 23}[rnd]
    pieces = {1: [(5, 16384, 0)],
              2: [(8, 16384, 0), (4, 8192, R2), (1, 2048, SPARE)],
              3: [(4, 8192, R2), (1, 2048, SPARE)],
              4: [(4, 8192, SL), (1, 2048, SPARE)]}[rnd]
    dm, rd = [], []
    for n, (cnt, mul, imm) in enumerate(pieces):
        a, b = w2_piece(list(range(k, k + cnt)), mul, imm, f"w2r{rnd}_{n}", vb)
        dm += a; rd += b
        k += cnt
    return dm, rd

def wo_items():
    it = dma(sWO, vo2, d1, [j * 8 * 1024 for j in range(16)], d2, 0, "wo")
    it[0] = I([f"s_and_b32 {d1}, {sW}, 1", f"s_lshl_b32 {d1}, {d1}, 18", f"s_lshr_b32 {d2}, {sW}, 1", f"s_xor_b32 {d2}, {d2}, {sRR}", f"s_and_b32 {d2}, {d2}, 1", f"s_lshl_b32 {d2}, {d2}, 17",
               f"s_add_u32 {d1}, {d1}, {d2}", f"s_and_b32 {d2}, {sCT}, 14", f"s_lshl_b32 {d2}, {d2}, 6", f"s_add_u32 {d1}, {d1}, {d2}",
               f"s_lshl_b32 {d2}, {sW}, 14"]) + it[0]
    return it

def idle(*regs):
    if not opt("IDL", 1):
        return []
    return [f"s_cmp_ge_u32 {sM}, 14"] + [f"s_cselect_b32 {r}, {OOB}, {r}" for r in regs]

def w1_items(part):
    if part == "AB":
        rows, n, g0, sh, imm = 128, 16, 0, 14, 0
        pre = [f"s_xor_b32 {d1}, {sW}, {sRR}"]
    else:
        rows, n, sh, g0 = 64, 8, 13, 128
        imm = R2 if part == "CD1" else SL
        pre = [f"s_lshl_b32 {d1}, {sRR}, 1", f"s_xor_b32 {d1}, {d1}, {sW}"] + ([f"s_xor_b32 {d1}, {d1}, 4"] if part == "CD2" else [])
    it = dma(sW1, vo1, d1, [g0 + j * 8 * 3584 for j in range(n)], d2, imm, "w1" + part)
    it[0] = I(pre + [f"s_mul_i32 {d1}, {d1}, {rows * 3584}", f"s_lshl_b32 {d2}, {sM}, 8", f"s_add_u32 {d1}, {d1}, {d2}"] + idle(d1) +
              [f"s_lshl_b32 {d2}, {sW}, {sh}"]) + it[0]
    return it


def asel(n):
    return I([f"v_lshrrev_b32 v{n}, 2, {vL}", f"v_xor_b32 v{n}, v{n}, {vL}", f"v_bfe_u32 v{n}, v{n}, 2, 1",
              f"v_add_u32 v{n}, -1, v{n}", f"v_and_b32 v{n}, 0x3f803f80, v{n}",
              f"v_mov_b32 v{n + 1}, v{n}", f"v_mov_b64 {V(n + 2, 2)}, {V(n, 2)}"])


def table_write(c, tab, va, bias=None):
    o = [f"v_cvt_pk_bf16_f32 v{c + 2}, v{c}, v{c}",
         f"v_lshlrev_b32 v{c + 1}, 16, v{c + 2}",
         f"v_sub_f32 v{c + 1}, v{c}, v{c + 1}",
         f"v_and_b32 v{c + 3}, 0xffff, v{c + 2}",
         f"v_cvt_pk_bf16_f32 v{c + 2}, v{c}, v{c + 1}"]
    if bias:
        o.append(f"v_lshl_or_b32 v{c + 3}, {bias}, 16, v{c + 3}")
    o.append(f"ds_write_b64 {va}, {V(c + 2, 2)} offset:{tab * 1024}")
    return [I(x) for x in o]


def table_addr(va):
    return I([f"s_lshr_b32 {u0}, {sW}, 1", f"s_lshl_b32 {u0}, {u0}, 9", f"s_and_b32 {u1}, {sW}, 1", f"s_lshl_b32 {u1}, {u1}, 3",
              f"s_add_u32 {u0}, {u0}, {u1}", f"s_add_u32 {u0}, {u0}, {TAB0}",
              f"v_and_b32 {va}, 0x1f0, {vL16}", f"v_add_u32 {va}, {u0}, {va}"])


def stats_finish(a, b, c, d, ex, mlp, r, ir):
    o = [f"v_mul_f32 {a}, {fc(-1.0 / 512)}, {a}",
         f"v_mul_f32 {c}, {a}, {a}",
         f"v_fma_f32 {b}, {b}, {u3}, -{c}",
         f"v_cvt_pk_bf16_f32 v{ex}, {a}, {a}",
         f"v_max_f32 {b}, 0, {b}",
         f"v_add_f32 {c}, {fc(EPS)}, {b}",
         f"v_rsq_f32 {r}, {c}",
         f"v_lshlrev_b32 {d}, 16, v{ex}",
         f"v_sub_f32 {d}, {a}, {d}"]
    o = [f"s_mov_b32 {u3}, {fc(1.0 / 512)}"] + o
    if mlp:
        o += [f"v_mul_f32 {b}, {b}, {r}", f"v_mul_f32 {b}, {b}, {r}", f"v_add_f32 {b}, {fc(EPS)}, {b}",
              f"v_rsq_f32 {b}, {b}", f"v_mov_b32 v{ex + 2}, v{ex}", f"v_mul_f32 {r}, {b}, {r}", f"v_rcp_f32 {ir}, {r}",
              f"v_cvt_pk_bf16_f32 v{ex + 1}, {d}, {ir}", f"v_and_b32 {a}, 0xffff0000, v{ex + 1}", f"v_sub_f32 {a}, {ir}, {a}",
              f"v_cvt_pk_bf16_f32 v{ex + 3}, {d}, {a}"]
    else:
        o += [f"v_mov_b32 v{ex + 2}, v{ex}", f"v_cvt_pk_bf16_f32 v{ex + 1}, {d}, {d}", f"v_mov_b32 v{ex + 3}, v{ex + 1}"]
    return [I(x) for x in o]


def x_loads(xoff, stoff, stv):
    setup = I([f"s_lshl_b32 {t1}, {sT}, 2", f"s_add_u32 {t1}, {t1}, {sRR}", f"s_lshl_b32 {t1}, {t1}, 13", f"s_add_u32 {t1}, {t1}, {xoff}", f"s_lshl_b32 {t2}, {sT}, 12", f"s_add_u32 {t2}, {t2}, {stoff}", f"v_lshlrev_b32 v{stv + 15}, 2, {vL}"])
    items = []
    for t in range(32):
        if t == opt("XSP", 16):
            for s in range(0, 16, 4):
                items.append(I([f"buffer_load_dword v{stv + s + e}, v{stv + 15}, {sWS}, {t2} offen offset:{(s + e) * 256} sc1" for e in range(4)]))
        o = []
        if t % 4 == 0:
            o.append(f"s_xor_b32 {t0}, {t1}, {t * 1024}")
        o.append(f"buffer_load_dwordx4 {V(XF + 4 * t)}, {vL16}, {sWS}, {t0} offen offset:{(t % 4) * 1024} sc1{ntm('X')}")
        items.append(I(o))
    return setup, items


def attach(groups, items, start=0, per=1):
    items = list(items)
    for n in range(start, len(groups)):
        for _ in range(per):
            if items:
                groups[n] = groups[n] + I(items.pop(0))
    assert not items
    return groups


def stats_sum(stv, vc=None):
    o = []
    for st in (8, 4, 2, 1):
        for i in range(st):
            o.append(f"v_add_f32 v{stv + i}, v{stv + i}, v{stv + i + st}")
    if vc:
        o += [[f"v_cmp_u_f32 vcc, v{stv}, v{stv}", f"v_mov_b32 v{stv + 1}, v{stv}", "s_nop 0", f"v_cndmask_b32_e64 {vc}, {vc}, -1, vcc"], f"v_permlane32_swap_b32 v{stv}, v{stv + 1}"]
    else:
        o += [f"v_mov_b32 v{stv + 1}, v{stv}", "s_nop 0", f"v_permlane32_swap_b32 v{stv}, v{stv + 1}"]
    return [I(x) for x in o]


def prologue():
    P("s_cmp_ge_u32 s2, 256")
    P("s_cbranch_scc1 L_end")
    P.add(tick("s.start"))
    P("s_load_dwordx16 s[64:79], s[0:1], 0")
    P("s_load_dwordx4 s[80:83], s[0:1], 64")
    P("s_load_dwordx2 s[84:85], s[0:1], 80")
    P(f"v_lshrrev_b32 {x0}, 6, v0")
    P("v_and_b32 v0, 63, v0")
    P(f"v_readfirstlane_b32 {sW}, {x0}")
    P("s_and_b32 s3, s2, 7")
    P(f"s_lshl_b32 {sC}, s3, 1")
    P("s_bfe_u32 s3, s2, 0x10003")
    P(f"s_or_b32 {sC}, {sC}, s3")
    P(f"s_lshr_b32 {sM}, s2, 4")
    if opt("MX", 0):
        P(f"s_xor_b32 {sM}, {sM}, {opt('MX', 0)}")
    P(f"v_lshlrev_b32 {vL16}, 4, {vL}")
    P(f"s_lshl_b32 {sT}, {sC}, 2")
    P(f"s_add_u32 {sT}, {sT}, {sW}")
    P(f"v_lshrrev_b32 {x0}, 3, {vL}")
    P(f"v_xor_b32 {x2}, {x0}, {vL}")
    P(f"v_and_b32 {x2}, 7, {x2}")
    P(f"v_lshlrev_b32 {x2}, 4, {x2}")
    P(f"v_lshl_add_u32 {vX0}, {x0}, 10, {x2}")
    P(f"v_xor_b32 {vX1}, 16, {vX0}")
    P(f"v_lshrrev_b32 {x1}, 5, {vL}")
    P(f"v_lshrrev_b32 {voQ}, 2, {vL}")
    P(f"v_mul_u32_u24 {voQ}, 3072, {voQ}")
    P(f"v_and_b32 {x0}, 0x30, {vL16}")
    P(f"v_add_u32 {voQ}, {voQ}, {x0}")
    P(f"s_lshl_b32 {t5}, s3, 1")
    P(f"s_and_b32 {t0}, {sM}, 1")
    P(f"s_or_b32 {t5}, {t5}, {t0}")
    P(f"s_bfe_u32 {t0}, {sM}, 0x20001")
    P(f"s_xor_b32 {t5}, {t5}, {t0}")
    ROT = opt("ROT", 0)
    if ROT == 0:
        P(f"s_mov_b32 {t5}, 0")
    elif ROT == 1:
        P(f"s_and_b32 {t5}, {t5}, 1")
        P(f"s_lshl_b32 {t5}, {t5}, 1")
    elif ROT == 2:
        P(f"s_lshl_b32 {t5}, {t5}, 1")
    elif ROT == 3:
        P(f"s_and_b32 {t5}, {t5}, 1")
    elif ROT == 4:
        P(f"s_lshr_b32 {t5}, {sM}, 1")
    elif ROT == 5:
        P(f"s_lshr_b32 {t5}, {sM}, 1")
        P(f"s_lshl_b32 {t0}, s3, 2")
        P(f"s_xor_b32 {t5}, {t5}, {t0}")
    elif ROT == 6:
        P(f"s_and_b32 {t5}, {sM}, 7")
    elif ROT == 7:
        P(f"s_lshr_b32 {t5}, {sM}, 2")
        P(f"s_lshl_b32 {t5}, {t5}, 1")
    elif ROT == 8:
        P(f"s_lshl_b32 {t5}, {t5}, 1")
        P(f"s_lshr_b32 {t0}, {sM}, 3")
        P(f"s_or_b32 {t5}, {t5}, {t0}")
    if opt("ROTX", 0):
        P(f"s_and_b32 {t0}, s2, 7")
        P(f"s_xor_b32 {t5}, {t5}, {t0}")
    P(f"s_lshl_b32 {t3}, {sT}, 15")
    P(f"s_mul_i32 {t4}, {sW}, {16 * 3072}")
    P(f"s_lshl_b32 {d2}, {sM}, 6")
    P(f"s_add_u32 {t4}, {t4}, {d2}")
    P(f"s_lshl_b32 {d2}, {sW}, 10")
    P(f"s_lshl_b32 {d3}, {sW}, 14")
    def srd(n, src, size):
        P(f"s_mov_b64 s[{n}:{n + 1}], s[{src}:{src + 1}]")
        P(f"s_mov_b32 s{n + 2}, {size}")
        P(f"s_mov_b32 s{n + 3}, 0x00020000")
    ini = init_l0()
    P.add(I(ini[0]))
    srd(28, 84, 64 * MB)
    srd(8, 64, 2 * MB)
    srd(12, 66, 512 * 1536 * 2)
    IP = [int(c) for c in OPT.get("IP", "11020")]
    assert sum(IP) == 4
    global INI
    INI = ini[1:5]
    P.add(I(ini[5:] + INI[:IP[0]] + x0_items(0) + w0_items(0) + INI[IP[0]:IP[0] + IP[1]] + x0_items(1) + w0_items(1) + INI[IP[0] + IP[1]:sum(IP[:3])]))
    INI = [INI[sum(IP[:3]):sum(IP[:4])], INI[sum(IP[:4]):]]
    P.add(tick("s.c0"))
    srd(44, 82, 256)
    P(f"s_getreg_b32 {sMODE}, hwreg(HW_REG_XCC_ID, 0, 4)")
    P(f"s_or_b32 {sMODE}, {sMODE}, 0x10")
    P.add(lead_init())
    srd(16, 68, 512 * 512 * 2)
    srd(20, 72, 512 * 1792 * 2)
    srd(24, 76, 1792 * 512 * 2)
    srd(32, 80, 2 * MB)
    srd(36, 78, 1024)
    srd(40, 74, 3584)
    P(f"s_lshr_b32 s1, s2, 2")
    P(f"s_xor_b32 s1, s1, s2")
    P(f"s_bfe_u32 {sRR}, s1, 0x20003")
    P(f"s_mov_b32 {sRT}, 1000")
    if not opt("RR", 1):
        P(f"s_mov_b32 {sRR}, 0")
    P(f"v_bfe_u32 {x0}, {vL}, 2, 2")
    P(f"v_lshl_add_u32 {x0}, {x1}, 3, {x0}")
    P(f"v_lshlrev_b32 {x0}, 6, {x0}")
    P(f"v_bfe_u32 {x2}, {vL}, 4, 1")
    P(f"v_lshl_add_u32 {x0}, {x2}, 5, {x0}")
    P(f"v_and_b32 {x2}, 1, {vL}")
    P(f"v_lshl_add_u32 {x0}, {x2}, 4, {x0}")
    P(f"v_bfe_u32 {x2}, {vL}, 1, 1")
    P(f"v_lshl_add_u32 {vTR}, {x2}, 3, {x0}")
    P(f"v_add_u32 {vTR1}, 0x10000, {vTR}")
    P(f"v_lshl_add_u32 {vTP}, {x1}, 9, {vTR}")
    P(f"v_add_u32 {vTP1}, 0x10000, {vTP}")
    P(f"s_and_b32 {t0}, {sM}, 1")
    P(f"s_lshl_b32 {t0}, {t0}, 1")
    P(f"s_lshl_b32 {sTP}, {sC}, 2")
    P(f"s_add_u32 {sTP}, {sTP}, {t0}")
    P(f"s_lshr_b32 {t0}, {sW}, 1")
    P(f"s_add_u32 {sTP}, {sTP}, {t0}")
    P(f"s_and_b32 {u0}, {sM}, 14")
    P(f"s_and_b32 {u1}, {sW}, 1")
    P(f"s_add_u32 {sCT}, {u0}, {u1}")
    P(f"s_mul_i32 {sW2B}, {t0}, {896 * 1024}")
    P(f"s_lshl_b32 {t0}, {u1}, 14")
    P(f"s_add_u32 {sW2B}, {sW2B}, {t0}")
    P(f"s_lshl_b32 {u0}, {u0}, 6")
    P(f"s_add_u32 {sW2B}, {sW2B}, {u0}")
    P(f"v_bfe_u32 {x0}, {vL}, 2, 3")
    P(f"v_and_b32 {x2}, 0x30, {vL16}")
    P(f"v_mul_u32_u24 {vo1}, 3584, {x0}")
    P(f"v_lshl_add_u32 {vo2}, {x0}, 10, {x2}")
    P(f"v_add_u32 {vo1}, {vo1}, {x2}")
    P(f"v_lshl_add_u32 {vo1}, {x1}, 6, {vo1}")
    P(f"v_xor_b32 {x0}, {u1}, {x1}")
    P(f"v_lshl_add_u32 {vo2}, {x0}, 6, {vo2}")
    P(f"v_and_b32 {x0}, 31, {vL}")
    P(f"v_lshlrev_b32 {x2}, 2, {x1}")
    P(f"v_sub_u32 {x0}, {x0}, {x2}")
    for r in range(16):
        P(f"v_cmp_le_i32_e64 {sMASK(r)}, {(r & 3) + 8 * (r >> 2)}, {x0}")
    P(f"v_mov_b32 {x0}, 0xffff")
    P(f"v_mov_b32 {x2}, 0xffff0000")
    for d in range(8):
        P(f"v_cndmask_b32_e64 v16, 0, {x0}, {sMASK(2 * d)}")
        P(f"v_cndmask_b32_e64 v17, 0, {x2}, {sMASK(2 * d + 1)}")
        P(f"v_or_b32 v16, v16, v17")
        P(f"v_accvgpr_write_b32 a{240 + d}, v16")


def init_kv(L, tag):
    it = []
    if L:
        it.append(I(f"s_add_u32 {u2}, {u2}, {LSTRIDE}"))
    for j in range(4):
        it.append([Ins(f"buffer_store_dwordx4 a[236:239], {vL16}, {sWS}, {u2} offen offset:{1024 * j} sc1{NK}", xdst=[tag])])
    return it


def init_l0():
    it = [I([f"v_accvgpr_write_b32 a{236 + i}, -1" for i in range(4)] +
            [f"s_lshl_b32 {u2}, {sT}, 4", f"s_add_u32 {u2}, {u2}, {sM}", f"s_lshl_b32 {u2}, {u2}, 12", f"s_add_u32 {u2}, {u2}, {LB(0) + KV_O}",
             "v_mov_b32 v20, 0", f"s_lshl_b32 {u0}, {sC}, 4", f"s_add_u32 {u0}, {u0}, {sM}", f"s_lshl_b32 {sFP}, {u0}, 7", f"s_add_u32 {sFP}, {sFP}, {MBOX}",
             f"s_lshl_b32 {u0}, {u0}, 2", f"s_add_u32 {sFA}, {u0}, {sW}",
             f"s_lshl_b32 {t1}, {sC}, 9", f"s_lshl_b32 {u0}, {sM}, 2", f"s_add_u32 {t1}, {t1}, {u0}", f"s_add_u32 {t1}, {t1}, {ARR}",
             f"v_lshrrev_b32 v21, 4, {vL}", f"v_and_b32 {vPO}, 15, {vL}", f"v_lshlrev_b32 {vPO}, 2, {vPO}", f"v_lshl_add_u32 v22, v21, 7, {vPO}",
             f"s_or_b32 {t2}, {sM}, {sW}"])]
    it += init_kv(0, "init")
    lsk = P.label()
    it.append(I([f"s_cmp_lg_u32 {t2}, 0", f"s_cbranch_scc1 {lsk}", f"buffer_store_dword v20, v22, {sWS}, {t1} offen sc1", lsk + ":"]))
    it.append([Ins(f"buffer_store_dword v20, off, {sWS}, {sFP} sc1", xdst=["init"])])
    return it


def lead_init():
    lsk = P.label()
    return I([f"s_cmp_lg_u32 {t2}, 0", f"s_cbranch_scc1 {lsk}",
              f"s_min_u32 {u0}, {sC}, 2", f"v_cmp_ge_u32 vcc, {u0}, v21", f"v_cndmask_b32 {vPO}, {vPO}, v22, vcc",
              f"v_lshlrev_b32 v21, 2, {vL}", f"v_lshlrev_b32 v22, 7, {vL}", f"s_lshl_b32 {u0}, {sC}, 8", f"s_add_u32 {u0}, {u0}, {FPACK}", f"s_lshl_b32 {u1}, {sC}, 13",
              f"buffer_store_dword v20, v21, {sWS}, {u0} offen sc1", f"buffer_store_dword v20, v22, {sWS}, {u1} offen sc1", lsk + ":"])


def arrive(vd, so):
    return ["s_mov_b64 exec, 7", f"buffer_store_dword {vd}, {vPX}, {sWS}, {so} offen sc1", "s_mov_b64 exec, -1"]


def misc_l0():
    it = []
    it.append(I([f"v_and_b32 v21, 31, {vL}", f"v_lshrrev_b32 v22, 5, {vL}", "v_lshlrev_b32 v21, 10, v21", "v_lshlrev_b32 v22, 4, v22",
                 "v_add_u32 v21, v21, v22",
                 f"s_lshl_b32 {u0}, {sTP}, 15", f"s_lshl_b32 {u1}, {sCT}, 6", f"s_add_u32 {u0}, {u0}, {u1}"]))
    it.append(I(f"buffer_load_dwordx4 a[224:227], v21, {sX}, {u0} offen"))
    it.append(I(f"buffer_load_dwordx4 a[228:231], v21, {sX}, {u0} offen offset:32"))
    it.append(I(f"buffer_load_dwordx4 a[248:251], v22, {sB2}, {u1} offen"))
    it.append(I(f"buffer_load_dwordx4 a[252:255], v22, {sB2}, {u1} offen offset:32"))
    return it


def touch(srd, total, vt, va, st=u0, sh=7):
    share, pb = total // 128, 64 << sh
    it = [I([f"s_lshr_b32 {st}, s2, 3", f"s_lshl_b32 {st}, {st}, 2", f"s_add_u32 {st}, {st}, {sW}", f"s_mul_i32 {st}, {st}, {share}",
             f"v_lshlrev_b32 {va}, {sh}, {vL}"])]
    pos, base = 0, 0
    while pos < share:
        a = min(pos, share - pb)
        assert a >= 0
        o = []
        if a - base >= 4096:
            o.append(f"s_add_u32 {st}, {st}, {a - base}")
            base = a
        o.append(f"buffer_load_dword {vt}, {va}, {srd}, {st} offen offset:{a - base}{ntm(srd)}")
        it.append(I(o))
        pos += pb
    it[1] = it[0] + it[1]
    return it[1:]


def touch_qkv(va, vb):
    return [I([f"s_lshr_b32 {u0}, s2, 3", f"s_lshl_b32 {u0}, {u0}, 2", f"s_add_u32 {u0}, {u0}, {sW}", f"s_mul_i32 {u0}, {u0}, {4 * 3072}",
               f"v_lshrrev_b32 {va}, 4, {vL}", f"v_mul_u32_u24 {va}, 3072, {va}", f"v_and_b32 {vb}, 15, {vL}", f"v_lshl_add_u32 {va}, {vb}, 6, {va}",
               f"v_lshl_add_u32 {vb}, {vb}, 6, {va}",
               f"buffer_load_dword {vb}, {vb}, {sWQ}, {u0} offen offset:1024"] +
              ([f"buffer_load_dword {va}, {va}, {sWQ}, {u0} offen"] if opt("TKV", 0) > 1 else []))]


def touch_wq(vt, st):
    return [I([f"s_lshr_b32 {st}, s2, 3", f"s_mul_i32 {st}, {st}, {16 * 3072}", f"s_lshl_b32 {d0}, {sW}, 8", f"s_add_u32 {st}, {st}, {d0}",
               f"buffer_load_dword {vt}, {voQ}, {sWQ}, {st} offen"]),
            I(f"buffer_load_dword {vt}, {voQ}, {sWQ}, {st} offen offset:128")]


aK, aV, aQ, RING, STV, EX, TABS = 16, 32, 48, 64, 96, 112, 116
HB = XF


def kv_epilogue(L):
    r = x0
    it = []
    for i in range(16):
        it.append(f"v_mul_f32 v{aK + i}, v{aK + i}, {r}")
    for i in range(8):
        it.append(f"v_cvt_pk_bf16_f32 v{aK + i}, v{aK + 2 * i}, v{aK + 2 * i + 1}")
    it.append([f"s_lshl_b32 {u0}, {sT}, 4", f"s_add_u32 {u0}, {u0}, {sM}", f"s_lshl_b32 {u0}, {u0}, 12", f"s_add_u32 {u0}, {u0}, {LB(L) + KV_O}"])
    it.append(f"buffer_store_dwordx4 {V(aK)}, {vL16}, {sWS}, {u0} offen sc1{NK}")
    it.append(f"buffer_store_dwordx4 {V(aK + 4)}, {vL16}, {sWS}, {u0} offen offset:2048 sc1{NK}")
    for i in range(16):
        it.append(f"v_mul_f32 v{aV + i}, v{aV + i}, v{STV + i}")
    for i in range(8):
        it.append(f"v_cvt_pk_bf16_f32 v{aV + i}, v{aV + 2 * i}, v{aV + 2 * i + 1}")
    it.append(f"buffer_store_dwordx4 {V(aV)}, {x2}, {sWS}, {u0} offen offset:1024 sc1{NK}")
    it.append(f"buffer_store_dwordx4 {V(aV + 4)}, {x2}, {sWS}, {u0} offen offset:1536 sc1{NK}")
    it.append([f"s_mul_i32 {u1}, {sW}, {PITCH}", f"s_add_u32 {u1}, {u1}, {SL + 8 * PITCH}"])
    it.append(f"v_add_u32 {x1}, {u1}, {vL16}")
    it.append(f"v_add_u32 {x2}, {u1}, {x2}")
    it.append(f"ds_write_b128 {x1}, {V(aK)}")
    it.append(f"ds_write_b128 {x1}, {V(aK + 4)} offset:2048")
    it.append(f"ds_write_b128 {x2}, {V(aV)} offset:1024")
    it.append(f"ds_write_b128 {x2}, {V(aV + 4)} offset:1536")
    it.append(f"v_mul_f32 {r}, {fc(0.25 * LOG2E)}, {r}")
    return [I(x) for x in it]


def r_bcast():
    it = [[f"s_lshl_b32 {u0}, {sW}, 7", f"s_add_u32 {u0}, {u0}, {RBC}"],
          f"v_and_b32 {x1}, 31, {vL}", f"v_lshl_add_u32 {x1}, {x1}, 2, {u0}", f"ds_write_b32 {x1}, {x0}",
          f"v_lshrrev_b32 {x2}, 5, {vL}", f"v_lshl_add_u32 {x1}, {x2}, 4, {u0}"]
    for g in range(4):
        it.append(f"ds_read_b128 {V(STV + 4 * g)}, {x1} offset:{32 * g}")
    it += [f"v_lshlrev_b32 {x2}, 8, {x2}", f"v_and_b32 {x1}, 0xf0, {vL16}", f"v_add_u32 {x2}, {x2}, {x1}",
           f"v_bfe_u32 {x1}, {vL}, 4, 1", f"v_lshl_add_u32 {x2}, {x1}, 11, {x2}"]
    return [I(x) for x in it]


def kv_groups(ts, D=3, lo=0, hi=32):
    g = []
    for k in ts:
        it = []
        t = k + D
        if lo <= t < hi:
            it += tr1(RING + 8 * (t % 4), R0 + t * 1024) + tr1(RING + 8 * (t % 4) + 4, R1 + t * 1024)
        it += I([f"{MF} {V(aK, 16)}, {V(RING + 8 * (k % 4))}, {V(XF + 4 * k)}, {V(aK, 16) if k else 0}",
                 f"{MF} {V(aV, 16)}, {V(XF + 4 * k)}, {V(RING + 8 * (k % 4) + 4)}, {V(aV, 16) if k else 0}"])
        g.append(it)
    return g


def kv_pre(t0_, n=3):
    o = []
    for t in range(t0_, t0_ + n):
        o += tr1(RING + 8 * (t % 4), R0 + t * 1024) + tr1(RING + 8 * (t % 4) + 4, R1 + t * 1024)
    return o


def tab_reads(js, va):
    return [I(f"v_add_u32 {va}, {TAB0}, {vL16}")] + [I(f"ds_read_b128 {V(TABS + 4 * j)}, {va} offset:{1024 * j}") for j in js]


def halo_setup(L):
    o = []
    for i, (back, sk, sv) in enumerate(((8, d1, d2), (4, d3, t5))):
        o += [f"s_sub_u32 {u0}, {sT}, {back}", f"s_cselect_b32 {u0}, 0, {u0}", f"s_cselect_b32 {u1}, 0x200, -1", f"s_cselect_b32 {u2}, {OOB}, 0",
              f"s_lshl_b32 {u0}, {u0}, 4", f"s_add_u32 {u0}, {u0}, {sM}", f"s_lshl_b32 {u0}, {u0}, 12", f"s_add_u32 {sk}, {u0}, {LB(L) + KV_O}",
              f"s_add_u32 {sv}, {sk}, {u2}", f"v_and_b32 v{STV + i}, {u1}, {vL16}"]
    return [I(o)]


def halo_loads():
    o = []
    for i, (sk, sv) in enumerate(((d1, d2), (d3, t5))):
        for j in range(4):
            va, so = (f"v{STV + i}", sk) if j % 2 == 0 else (vL16, sv)
            o.append(f"buffer_load_dwordx4 {V(HB + 16 * i + 4 * j)}, {va}, {sWS}, {so} offen offset:{1024 * j} sc1{ntm('KV')}")
    return [I(x) for x in o]


def lead_try(chk, iss, ta, tb, final=False):
    lsk, lag, lp = P.label(), P.label(), P.label()
    o = [f"s_cmp_lg_u32 {t2}, 0", f"s_cbranch_scc1 {lsk}"]
    if final:
        o += [f"s_mov_b32 {sCNT}, 30000"]
    if chk:
        o += [f"v_accvgpr_read_b32 {ta}, {chk}"] + ([lp + ":"] if final else [])
        o += [f"v_cmp_eq_u32 vcc, 0, {ta}", f"s_cbranch_vccnz {lag}",
              f"v_cmp_ne_u32 vcc, {sMODE}, {ta}", f"v_lshlrev_b32 {tb}, 7, {vL}", f"s_lshl_b32 {u1}, {sC}, 2", f"s_and_b32 {u0}, vcc_lo, 0xffff", f"s_cselect_b32 {t2}, 1, 2",
              f"v_mov_b32 {ta}, {t2}", "s_mov_b64 exec, 0xffff", f"buffer_store_dword {ta}, {tb}, {sWS}, {sFP} offen sc1",
              "s_mov_b64 exec, 1", f"buffer_store_dword {ta}, off, {sDBG}, {u1} sc1", "s_mov_b64 exec, -1"]
        if final:
            OUTL.extend(I([lag + ":", f"v_mov_b32 {ta}, {sMODE}", f"v_lshrrev_b32 {tb}, 7, {vPO}", f"v_sub_u32 {tb}, {sC}, {tb}", f"v_lshlrev_b32 {tb}, 2, {tb}"] + arrive(ta, t1) +
                          [f"buffer_load_dword {ta}, {vPO}, {sWS}, {t1} offen sc1", f"buffer_load_dword {tb}, {tb}, {sDBG}, 0 offen sc1",
                           f"v_or_b32 {ta}, {ta}, {tb}", f"s_sub_u32 {sCNT}, {sCNT}, 1", f"s_cbranch_scc0 {lp}", "s_endpgm"]))
        elif iss:
            o += [f"s_branch {lsk}", lag + ":"]
        else:
            o += [lag + ":"]
    if iss:
        o += [f"buffer_load_dword {iss}, {vPO}, {sWS}, {t1} offen sc1"]
    return I(o + [lsk + ":"])


def handshake_issue():
    return [I([f"s_buffer_load_dword {t3}, {sWS}, {sFP} glc"])]


def handshake_check():
    b, c = f"v{STV + 3}", f"v{STV + 4}"
    ls, lr, lp = P.label(), P.label(), P.label()
    l2 = P.label()
    OUTL.extend(I([ls + ":", f"s_mov_b32 {sCNT}, 30003", f"v_mov_b32 {b}, {sMODE}", lp + ":", f"s_buffer_load_dword {t3}, {sWS}, {sFP} glc",
                   f"s_cmp_lg_u32 {t3}, 0", f"s_cbranch_scc1 {lr}",
                   f"s_and_b32 {u0}, {sCNT}, 3", f"s_or_b32 {u0}, {u0}, {sW}", f"s_cbranch_scc1 {l2}"] + arrive(b, t1) +
                  [l2 + ":", f"s_sub_u32 {sCNT}, {sCNT}, 1", f"s_cbranch_scc0 {lp}", "s_endpgm"]))
    o = [f"s_cmp_eq_u32 {t3}, 0", f"s_cbranch_scc1 {ls}", lr + ":"]
    it = [I(o)]
    o = [f"s_cmp_eq_u32 {t3}, 1"]
    if OPT.get("SLOW"):
        o.append("s_cmp_eq_u32 0, 0")
    o += [f"s_cselect_b32 {sMODE}, 0, 1", f"s_cselect_b32 {u0}, 7, {opt('FSH', 2)}", f"s_cselect_b32 {u1}, 0, {FPACK if opt('FSH', 2) == 2 else 0}",
          f"s_lshl_b32 {sFA}, {sFA}, {u0}", f"s_add_u32 {sFA}, {sFA}, {u1}",
          f"s_lshl_b32 {sFP}, {sC}, 6", f"s_lshl_b32 {sFP}, {sFP}, {u0}", f"s_add_u32 {sFP}, {sFP}, {u1}"]
    it.append(I(o))
    it.append(I([f"s_lshr_b32 {u1}, {sW}, 1", f"s_lshl_b32 {u1}, {u1}, 2", f"s_and_b32 {u2}, {sW}, 1", f"s_lshl_b32 {u3}, {u2}, 1", f"s_add_u32 {u1}, {u1}, {u3}",
                 f"v_and_b32 {b}, 14, {vL}", f"v_and_b32 {c}, 1, {vL}", f"v_lshl_add_u32 {b}, {b}, 2, {c}", f"v_add_u32 {b}, {u1}, {b}",
                 f"v_lshlrev_b32 {vPX}, {u0}, {b}"]))
    it.append(I([f"s_lshl_b32 {u2}, {u2}, 5", f"s_and_b32 {u1}, {sTP}, 3", f"s_add_u32 {u1}, {u1}, {u2}",
                 f"v_and_b32 {b}, 7, {vL}", f"v_lshl_add_u32 {b}, {b}, 2, {u1}", f"v_lshlrev_b32 {vPO}, {u0}, {b}"]))
    it.append(I([f"s_lshr_b32 {u1}, {sW}, 1", f"s_mul_i32 {u1}, {u1}, 28", f"s_and_b32 {u2}, {sTP}, 2", f"s_add_u32 {u1}, {u1}, {u2}",
                 f"v_bfe_u32 {b}, {vL}, 1, 3", f"v_min_u32 {b}, 6, {b}", f"v_lshl_add_u32 {b}, {b}, 2, {c}", f"v_add_u32 {b}, {u1}, {b}",
                 f"v_lshlrev_b32 {vPH}, {u0}, {b}"]))
    return it


def phase1(L):
    ext = I([f"{MF} {V(aK, 16)}, {V(TABS)}, {V(EX)}, {V(aK, 16)}", f"{MF} {V(aV, 16)}, {V(EX)}, {V(TABS + 4)}, {V(aV, 16)}"])
    D = 6
    qg = []
    for k in range(32):
        it = tr1(RING + 4 * ((k + D) % 8), R2 + (k + D) * 1024) if k + D < 32 else []
        qg.append(it + I(f"{MF} {V(aQ, 16)}, {V(RING + 4 * (k % 8))}, {V(XF + 4 * k)}, {V(aQ, 16) if k else 0}"))
    qpre = []
    for t in range(D):
        qpre += tr1(RING + 4 * t, R2 + t * 1024)
    HL = opt("HL", 20)
    if L == 0:
        AS, S1, S2, CK, CV, CF = 124, 96, 100, 104, 108, 48
        P.add(asel(AS))
        for i in range(4):
            P(f"v_mov_b32 v{S2 + i}, 0")
        P(f"v_lshrrev_b32 {x0}, 5, {vL}")
        P(f"v_bfe_u32 {x1}, {vL}, 3, 1")
        P(f"v_xor_b32 {x0}, {x0}, {x1}")
        P(f"v_xor_b32 {x0}, {x0}, {vL}")
        P(f"v_and_b32 {x0}, 7, {x0}")
        P(f"v_and_b32 {x1}, 31, {vL}")
        P(f"v_lshlrev_b32 {x1}, 7, {x1}")
        P(f"v_lshl_add_u32 {x0}, {x0}, 4, {x1}")
        P(f"s_add_u32 {t0}, {d3}, {SL}")
        P(f"v_add_u32 v{XA}, {t0}, {x0}")
        for k in range(1, 4):
            P(f"v_xor_b32 v{XA + k}, {32 * k}, v{XA}")
        P(f"v_add_u32 {x1}, {d2}, {vTR}")
        P.add(table_addr(x2))
        P(f"v_mov_b32 v118, {sMODE}")
        P(f"v_mul_u32_u24 {vPX}, 640, {vL}")
        P.add(tick("s.setup"))
        TS = opt("TS", 5)
        tw2 = touch(sW2, 1792 * 1024, "a232", vPH, t0, TS)
        tw2b = touch(sW2, 1792 * 1024, "a232", "v119", t0, TS)
        TW = [int(c, 16) for c in OPT.get("TW", "000000003")]
        I1 = [int(c) for c in OPT.get("I1", "001111000")]
        i1 = init_kv(1, "init1")
        i1 = [i1[0] + i1[1]] + i1[2:]
        wq = sum((w0_items(h, (2,), "wq") for h in range(8)), [])
        WQ1 = opt("WQ1", 5)
        strm = {h: x0_items(h) + w0_items(h) for h in range(2, 8)}
        strm.update({8: wq[:WQ1], 9: wq[WQ1:], 10: []})
        strm[2] = INI[0] + strm[2]
        strm[3] = INI[1] + strm[3]
        if opt("TQ", 4):
            strm[opt("TQ", 4)] += touch_wq("a232", u0)
        for n in range(2, 11):
            strm[n] = i1[:I1[n - 2]] + strm[n] + tw2[:TW[n - 2]]
            tw2, i1 = tw2[TW[n - 2]:], i1[I1[n - 2]:]
        assert not i1
        SIG = 3 if INI[1] else (2 if INI[0] else opt("SIG", 1))
        LT0 = opt("LT0", SIG + 1)
        def sync(h):
            o = [need_ins(f"x{h}")]
            o += [f"ds_read_b128 {V(XF + 16 * h + 4 * t)}, v{XA + t} offset:{4096 * (h & 3)}" for t in range(4)]
            if h >= LT0:
                o += lead_try(f"a{233 + (h & 1)}" if h >= LT0 + 2 else None, f"a{233 + (h & 1)}", "v114", "v115")
            o += [need_ins(f"kv{h}")] + tr("v", CF + 8 * (h & 1), x1, R0 + 4096 * h) + tr("v", CF + 8 * (h & 1) + 4, x1, R1 + 4096 * h)
            if h >= SIG and (h - SIG) % opt("SIGS", 2) == 0:
                lsk = P.label()
                o += [f"s_cmp_lg_u32 {sW}, {1 + (h >> 1) % 3}", need_ins("init"), "s_barrier", f"s_cbranch_scc1 {lsk}"] + arrive("v118", t1) + [lsk + ":"]
            else:
                o += ["s_barrier"]
            return I(o) + tick(f"s.b{h}")
        def stats(h):
            o = []
            for t in range(4 * h, 4 * h + 4):
                o.append(I([f"v_dot2c_f32_bf16 v{S2 + j}, v{XF + 4 * t + j}, v{XF + 4 * t + j}" for j in range(4)] +
                           [f"{MF16} {V(S1)}, {V(AS)}, {V(XF + 4 * t)}, {V(S1) if t else 0}"]))
            return [I([f"{MF16} {V(CK)}, {V(AS)}, {V(CF + 8 * (h & 1))}, {V(CK) if h else 0}",
                       f"{MF16} {V(CV)}, {V(AS)}, {V(CF + 8 * (h & 1) + 4)}, {V(CV) if h else 0}"]) + o[0], o[1] + o[2], o[3]]
        P.add(sync(0))
        P.add(kv_pre(0))
        P.add(I(spread(stats(0), strm[2], 0.0, 0.7)))
        g = kv_groups(range(32))
        for i in range(8):
            lt = strm[i + 3]
            if i < 7:
                g[4 * i] += sync(i + 1)
                n = (len(lt) + 2) // 3
                for e in range(3):
                    g[4 * i + 1 + e] += I(lt[n * e:n * e + n]) + stats(i + 1)[e]
            else:
                attach(g, lt, 28, (len(lt) + 3) // 4)
        fin = [f"v_add_f32 v{S2}, v{S2}, v{S2 + 1}", f"v_add_f32 v{S2 + 2}, v{S2 + 2}, v{S2 + 3}", f"v_add_f32 v{S2}, v{S2}, v{S2 + 2}",
               f"v_mov_b32 v{S2 + 1}, v{S2}", f"v_permlane32_swap_b32 v{S2}, v{S2 + 1}", f"v_add_f32 v{S2}, v{S2}, v{S2 + 1}"]
        fin = [I(x) for x in fin] + stats_finish(f"v{S1}", f"v{S2}", f"v{S2 + 1}", f"v{S2 + 2}", EX, False, x0, None)
        P.add(I(g[:26]))
        fill = table_write(CK, 0, x2) + table_write(CV, 1, x2) + [(2, lead_try("a233", None, "v114", "v115"))] + [(2, x) for x in fin[:6]] + [barrier()] + tab_reads([0, 1], x2) + fin[6:] + r_bcast()
        P.add(weave(g[26:], fill))
        P.add(tick("s.kv"))
        P.need("init1")
        P.add(ext)
        P.add(I(kv_epilogue(0)))
        P.add(lead_try("a234", None, "v116", "v117", True))
        P.add(tick("0.kv"))
        CQ = 104
        P(f"v_add_u32 {x1}, {d2}, {vTR1}")
        P.add(table_addr(x2))
        P.need("wq")
        for h in range(8):
            P.add(tr("v", 16 + 4 * h, x1, 4096 * h))
        P("s_barrier")
        P.add(qpre)
        for j in range(8):
            P(f"{MF16} {V(CQ)}, {V(AS)}, {V(16 + 4 * j)}, {V(CQ) if j else 0}")
        tw2 = tw2b[len(tw2b) - len(tw2):]
        if tw2:
            tw2[0] = I(f"v_lshlrev_b32 v119, {TS}, {vL}") + tw2[0]
        fill = [(1, x) for x in table_write(CQ, 2, x2)] + [(opt("HSI", 6), x) for x in handshake_issue()] + [(8, barrier())] + tab_reads([2], x2) \
            + [(opt("HSC", 16), x) for x in handshake_check()] + halo_setup(0) + [(HL, x) for x in halo_loads()] + misc_l0()
        if opt("QT", 0):
            fill += tw2 + touch(sWO, 512 * 1024, "a232", "v119", t0, min(TS, 6))
        P.add(tick("0.qs"))
        P.add(weave(qg, fill))
    else:
        if not opt("WQE", 0) and not opt("WQ3", 0):
            P.add(wq_setup())
            P.add(I(wq_items([2])))
        P.add(I(tab_reads([0, 1, 2], x2)))
        back, vc = P.label(), (f"v{aQ}" if EF & 8 else None)
        P.put(back)
        P.add(kv_pre(0))
        xs, xi = x_loads(LB(1) + XIN_O, LB(1) + ST2_O, STV)
        NB = opt("NB", 14)
        P.add(xs)
        P.add(poll(vPX, x1, 8))
        P.add(tick("1.pollx"))
        P.add(I(xi[:NB]))
        P.add(tick("1.xiss"))
        s = [f"v{STV + i}" for i in range(4)]
        fill = stats_sum(STV, vc) + stats_finish(s[0], s[1], s[2], s[3], EX, False, x0, None) + r_bcast()
        g = attach(kv_groups(range(32)), xi[NB:] + inits("k", aQ + 4))
        if vc:
            for n, x in chain(vc, XF, 32):
                g[n] += I(x)
        P.add(weave(g, [(opt("XSP", 16) + 2, x) for x in fill]))
        if vc:
            P.add(redo(vc, back))
        P.add(ext)
        P.add(tick("1.kv"))
        P.add(barrier("wq"))
        P.add(qpre)
        fill = [(1, x) for x in kv_epilogue(1)] + halo_setup(1) + [(HL, x) for x in halo_loads()]
        P.add(weave(qg, fill))
    P(f"{MF} {V(aQ, 16)}, {V(TABS + 8)}, {V(EX)}, {V(aQ, 16)}")
```

```python
from k2_base import *
from k2_p1 import *

B1V, CC, CD_, AS4 = 48, 52, 56, 60
OM = OPT.get("OM", "").replace("_", " ")


def tile_out(x, pk, tmp, bit, pub, ini):
    XE = opt("XE", 1)
    if XE == 0:
        P.add(pub)
    for i in range(8):
        P(f"v_cvt_pk_bf16_f32 v{pk + i}, v{x + 2 * i}, v{x + 2 * i + 1}")
    P.add(xstore(f"buffer_store_dwordx4 {V(pk)}, {vL16}, {sWS}, {t1} offen", bit, ini=ini))
    P.add(xstore(f"buffer_store_dwordx4 {V(pk + 4)}, {vL16}, {sWS}, {t1} offen offset:1024", bit))
    if XE == 1:
        P.add(pub)
    a, b = V(tmp, 2), V(tmp + 2, 2)
    P(f"v_pk_add_f32 {a}, {V(x, 2)}, {V(x + 2, 2)}")
    P(f"v_pk_mul_f32 {b}, {V(x, 2)}, {V(x, 2)}")
    for i in range(1, 8):
        if i >= 2:
            P(f"v_pk_add_f32 {a}, {a}, {V(x + 2 * i, 2)}")
        P(f"v_pk_fma_f32 {b}, {V(x + 2 * i, 2)}, {V(x + 2 * i, 2)}, {b}")
    P(f"v_add_f32 v{tmp}, v{tmp}, v{tmp + 1}")
    P(f"v_add_f32 v{tmp + 2}, v{tmp + 2}, v{tmp + 3}")
    P(f"v_permlane32_swap_b32 v{tmp}, v{tmp + 2}")
    P(f"v_add_f32 v{tmp}, v{tmp}, v{tmp + 2}")
    P.add(xstore(f"buffer_store_dword v{tmp}, {x2}, {sWS}, {t2} offen", bit))
    if XE == 2:
        P.add(pub)


def tile_addr(xo, so):
    return I([f"s_lshl_b32 {t2}, {sTP}, 4", f"s_add_u32 {t2}, {t2}, {sCT}", f"s_lshl_b32 {t1}, {t2}, 11", f"s_add_u32 {t1}, {t1}, {xo}",
              f"s_lshl_b32 {t2}, {t2}, 8", f"s_add_u32 {t2}, {t2}, {so}", f"v_lshlrev_b32 {x2}, 2, {vL}"])


def phase3(L, late_rd):
    a0, a1, OF, WO = 16, 32, 64, 128
    vp, vc = "v53", "v54"
    P(f"s_and_b32 {t0}, {sW}, 1")
    P(f"s_lshl_b32 {t0}, {t0}, 14")
    P(f"v_add_u32 {x1}, {t0}, {vTP}")
    P(f"s_lshl_b32 {t3}, {sTP}, 15")
    P(f"s_add_u32 {t3}, {t3}, {t0}")
    P(f"s_add_u32 {t3}, {t3}, {LB(L) + O_O}")
    P(f"s_and_b32 {t4}, {sRR}, 1")
    P(f"s_lshl_b32 {t4}, {t4}, 13")
    P(f"s_add_u32 {t3}, {t3}, {t4}")
    P.add(barrier("wo"))
    P.add(tick(f"{L}.B3"))
    CD2E = opt("CD2E", 1)
    if L and CD2E:
        P.add(I(w1_items("CD2")))
    rd = [tr("v", WO + (ks * 2 + ct) * 4, x1, (ks >> 3) * 32768 + 2048 * (ks & 7) + 512 * ct) for ks in range(16) for ct in range(2)]
    PO1, PO2 = opt("PO1", 6), opt("PO2", 14)
    def oloads():
        o = []
        for ks in range(16):
            if ks % 4 == 0:
                o.append(f"s_xor_b32 {t4}, {t3}, {4096 * (ks // 4)}")
            o.append(f"buffer_load_dwordx4 {V(OF + 4 * ks)}, {vL16}, {sWS}, {t4} offen offset:{(ks % 4) * 1024} sc1{ntm('O')}")
        return o
    def res(tmpv):
        if L:
            return [f"v_accvgpr_read_b32 v{a0 + i}, a{224 + i}" for i in range(16)]
        return [x for d in range(8) for x in (f"v_accvgpr_read_b32 {tmpv}, a{224 + d}", f"v_lshlrev_b32 v{a0 + 2 * d}, 16, {tmpv}", f"v_and_b32 v{a0 + 2 * d + 1}, 0xffff0000, {tmpv}")]
    P.add(I(rd[:PO1]))
    P.add(poll_issue(vPO, vp))
    P.add(I(rd[PO1:PO2]))
    P.add(I(res(x2)))
    P.add(poll_check(vPO, vp, 16 * L + 1))
    P.add(tick(f"{L}.pollo"))
    P.add(I(oloads()))
    if L and not CD2E:
        P.add(I(w1_items("CD2")))
    P.add(I(rd[PO2:]))
    r4 = []
    if L == 0:
        d4, r4 = w2_round(4, x0)
        P.add(I(late_rd))
        P.add(I(d4[:8]))
        P(f"v_and_b32 {x1}, 0x13, {vL}")
        P(f"v_bfe_u32 {x2}, {vL}, 2, 1")
        P(f"v_lshl_add_u32 {x1}, {x2}, 3, {x1}")
        P(f"v_bfe_u32 {x2}, {vL}, 3, 1")
        P(f"v_lshl_add_u32 {x1}, {x2}, 2, {x1}")
        P(f"v_lshlrev_b32 {x1}, 1, {x1}")
        P(f"s_lshl_b32 {t1}, {sM}, 8")
        P(f"s_cmp_ge_u32 {sW}, 2")
        P(f"s_cselect_b32 {t1}, {OOB}, {t1}")
        for e in range(4):
            P(f"buffer_load_ushort v{B1V + e}, {x1}, {sB1}, {t1} offen offset:{64 * e}")
        P.need("ds_any")
        P.add(I(d4[8:]))
    P(f"s_xor_b32 {t0}, {sW}, 1")
    P(f"s_lshl_b32 {t0}, {t0}, 12")
    P(f"s_add_u32 {t0}, {t0}, {SCR3}")
    P(f"v_add_u32 {x0 if L else 'v52'}, {t0}, {vL16}")
    vw = x0 if L else "v52"
    P.add(tile_addr(LB(L) + X1_O, LB(L) + ST1_O))
    P.add(barrier())
    P.add(tick(f"{L}.B3b"))
    back = P.label()
    P.put(back)
    def mf(ks, ct):
        a = V(a0 if ct == 0 else a1, 16)
        return f"{MF} {a}, {V(WO + (ks * 2 + ct) * 4)}, {V(OF + 4 * ks)}, {a if (ks or ct == 0) else 0}"
    NT = 4
    g = [[mf(ks, 1), mf(ks, 0)] for ks in range(16 - NT)] + [[mf(ks, 1)] for ks in range(16 - NT, 16)]
    fill = w1_items("AB") + (w1_items("CD1") if L == 0 else [])
    if EF & 1:
        for n, x in chain(vc, OF, 16):
            g[n].append(x)
    P.add(I(spread(g, fill, 0.0, 1.0)))
    if EF & 1:
        P.add(redo(vc, back, oloads() + res(x1)))
    for n, ks in enumerate(range(16 - NT, 16)):
        P(mf(ks, 0))
        if n >= 1:
            for j in ([n - 1] if n < NT - 1 else range(n - 1, 4)):
                P(f"ds_write_b128 {vw}, {V(a1 + 4 * j)} offset:{1024 * j}")
    P(f"v_xor_b32 {vw}, 0x1000, {vw}")
    P.add(tick(f"{L}.p3mm"))
    P.add(barrier())
    for j in range(4):
        P(f"ds_read_b128 {V(OF + 4 * j)}, {vw} offset:{1024 * j}")
    for i in range(8):
        P(f"v_pk_add_f32 {V(a0 + 2 * i, 2)}, {V(a0 + 2 * i, 2)}, {V(OF + 2 * i, 2)}")
    tile_out(a0, OF + 16, OF + 24, 2 << (4 * L), publish(16 * L + 3, x1, early=f"iX{L}") if EF & 2 else [], f"iX{L}")
    for d in range(8):
        P(f"v_accvgpr_read_b32 {x1}, a{248 + d}")
        P(f"v_lshlrev_b32 v{OF}, 16, {x1}")
        P(f"v_and_b32 v{OF + 1}, 0xffff0000, {x1}")
        P(f"v_pk_add_f32 {V(a0 + 2 * d, 2)}, {V(a0 + 2 * d, 2)}, {V(OF, 2)}")
        P(f"v_accvgpr_write_b32 a{224 + 2 * d}, v{a0 + 2 * d}")
        P(f"v_accvgpr_write_b32 a{225 + 2 * d}, v{a0 + 2 * d + 1}")
    if not EF & 2:
        P.add(publish(16 * L + 3, x1))
    P.add(tick(f"{L}.p3end"))
    return r4


def gelu(a, c0, c1, ir, tmp, so, tag, bit, pk=False, ini=None):
    res = []
    for g in range(4):
        if pk:
            xs = [V(a + 4 * g + 2 * e, 2) for e in range(2)]
            ts = [V(tmp + 2 * e, 2) for e in range(2)]
            bc = lambda r: f"v[{r[1:]}:{int(r[1:]) + 1}]"
            res += [f"v_pk_mul_f32 {t}, {x}, {x}" for x, t in zip(xs, ts)]
            res += [f"v_pk_fma_f32 {t}, {t}, {bc(c1)}, {bc(c0)} op_sel_hi:[1,0,0]" for t in ts]
            res += [f"v_pk_mul_f32 {t}, {t}, {x}" for x, t in zip(xs, ts)]
            res += [f"v_exp_f32 v{tmp + e}, v{tmp + e}" for e in range(4)]
            res += [f"v_pk_fma_f32 {t}, {t}, {bc(ir)}, {bc(ir)} op_sel_hi:[1,0,0]" for t in ts]
            res += [f"v_rcp_f32 v{tmp + e}, v{tmp + e}" for e in range(4)]
            res += [f"v_pk_mul_f32 {x}, {x}, {t}" for x, t in zip(xs, ts)]
        else:
            blk = []
            for e in range(4):
                x, t = f"v{a + 4 * g + e}", f"v{tmp + e}"
                blk.append([f"v_mul_f32 {t}, {x}, {x}", f"v_fma_f32 {t}, {t}, {c1}, {c0}", f"v_mul_f32 {t}, {t}, {x}",
                            f"v_exp_f32 {t}, {t}", f"v_fma_f32 {t}, {t}, {ir}, {ir}", f"v_rcp_f32 {t}, {t}", f"v_mul_f32 {x}, {x}, {t}"])
            for s in range(7):
                for e in range(4):
                    res.append(blk[e][s])
        for i in (2 * g, 2 * g + 1):
            res.append(f"v_cvt_pk_bf16_f32 v{a + i}, v{a + 2 * i}, v{a + 2 * i + 1}")
        if g & 1:
            s, off = so
            res.append(xstore(f"buffer_store_dwordx4 {V(a + 2 * (g - 1))}, {vL16}, {sWS}, {s} offen offset:{off + 1024 * (g >> 1)}", bit, tag, ini))
    return [I(x) for x in res]


def phase45(L, r4):
    T = [16, 32, 48, 16]
    C0R, C1R, IRR, RR, GT = "v116", "v118", "v120", "v122", 124
    FB = 16 * L
    vtb = x2
    if L == 0:
        P.add(I(r4))
        P.add(asel(AS4))
        P(f"s_lshl_b32 {t0}, {sW}, 14")
        P(f"v_add_u32 {x1}, {t0}, {vTP}")
        P(f"s_lshl_b32 {t0}, {sW}, 13")
        P(f"v_add_u32 {x0}, {t0}, {vTP1}")
        P.add(table_addr(x2))
        P.need("w1AB")
        for j in range(16):
            P.add(tr("v", XF + 4 * j, x1, 2048 * (j >> 1) + 512 * (j & 1)))
        P.need("w1CD1")
        for j in range(8):
            P.add(tr("v", XF + 64 + 4 * j, x0, 2048 * (j >> 1) + 512 * (j & 1)))
        for j in range(16):
            c = V(16 + 4 * (j & 1))
            P(f"{MF16} {c}, {V(AS4)}, {V(XF + 4 * j)}, {c if j >= 2 else 0}")
        for j in range(8):
            c = V(CC + 4 * (j & 1))
            P(f"{MF16} {c}, {V(AS4)}, {V(XF + 64 + 4 * j)}, {c if j >= 2 else 0}")
        P.add(I(table_write(16, 3, x2, f"v{B1V}") + table_write(20, 4, x2, f"v{B1V + 1}")))
        P.add(barrier())
        vtw = "v123"
        P(f"v_mov_b32 {vtw}, {x2}")
    else:
        P.add(barrier("w1AB", "w1CD1", "w1CD2"))
    P(f"v_add_u32 {vtb}, {TAB0 + 3072}, {vL16}")
    D = 3
    def rdA(t):
        if t < 32:
            return trp(RING + 8 * (t % 4), 2048 * t) + trp(RING + 8 * (t % 4) + 4, 2048 * t + 512)
        if t == 32:
            return I([f"ds_read_b128 {V(RING + 8 * (t % 4) + 4 * e)}, {vtb} offset:{1024 * e}" for e in range(2)])
        return []
    back, vc = P.label(), (f"v{GT}" if EF & 2 else None)
    P.put(back)
    for t in range(D):
        P.add(rdA(t))
    P(f"s_lshl_b32 {t3}, {sT}, 17")
    P(f"s_lshl_b32 {t4}, {sM}, 13")
    P(f"s_add_u32 {t3}, {t3}, {t4}")
    P(f"s_add_u32 {t3}, {t3}, {LB(L) + H_O}")
    P.add(I(idle(t3)))
    P(f"s_add_u32 {t4}, {t3}, 4096")
    xs, xi = x_loads(LB(L) + X1_O, LB(L) + ST1_O, STV)
    NB = opt("NB", 14)
    P.add(xs)
    P.add(I(idle(t1, t2)))
    P.add(tick(f"{L}.B4b"))
    P.add(poll(vPX, x1, FB + 3))
    P.add(tick(f"{L}.pollx1"))
    P.add(I(xi[:NB]))
    xi = xi[NB:] + (w1_items("CD2") if L == 0 else [])
    if L == 0 and opt("TKV", 0):
        xi += touch_qkv("v117", "v119")
    gA = []
    for k in range(33):
        xb = V(XF + 4 * k) if k < 32 else V(EX)
        gA.append(rdA(k + D) + I([f"{MF} {V(T[e], 16)}, {V(RING + 8 * (k % 4) + 4 * e)}, {xb}, {V(T[e], 16) if k else 0}" for e in range(2)]))
    s = [f"v{STV + i}" for i in range(4)]
    C0 = -2.0 * LOG2E * 0.7978845608028654
    fill = stats_sum(STV, vc) + stats_finish(s[0], s[1], s[2], s[3], EX, True, RR, IRR)
    fill += [I(x) for x in [f"v_mul_f32 {C0R}, {fc(C0)}, {RR}", f"v_mul_f32 {C1R}, {RR}, {RR}", f"v_mul_f32 {C1R}, {C1R}, {C0R}",
                            f"v_mul_f32 {C1R}, {fc(0.044715)}, {C1R}"]]
    for k in range(0, 32, 4):
        gA[k] = gA[k] + tick(f"{L}.zA{k}")
    attach(gA, xi)
    if opt("WB", 0) >> L & 1:
        lsk = P.label()
        gA[opt("WBP", 24)] += I([f"s_lshl_b32 {u0}, {sM}, 2", f"s_or_b32 {u0}, {u0}, {sW}"] + ([f"s_lshl_b32 {u0}, {u0}, 1", f"s_and_b32 {u1}, {sC}, 1", f"s_or_b32 {u0}, {u0}, {u1}"] if opt("WB1", 1) else []) +
                                [f"s_cmp_lg_u32 {u0}, {120 if opt('WB1', 1) else 60}", f"s_cbranch_scc1 {lsk}", "buffer_wbl2 sc1", lsk + ":"])
    if vc:
        for n, x in chain(vc, XF, 32):
            gA[n] += I(x)
    P.add(weave(gA, [(opt("XSP", 16) + 2, x) for x in fill] + [(len(xi), x) for x in inits("Bb"[L], STV + 8)]))
    if vc:
        P.add(redo(vc, back))
    P.add(tick(f"{L}.pA"))
    if opt("N45", 1):
        return tail45(L, vtb, vtw if L == 0 else None)
    D1 = 6
    def rd1(e, t):
        if t < 32:
            return trp(RING + 4 * (t % 8), R2 + 2048 * t + 512 * e)
        if t == 32:
            return I(f"ds_read_b128 {V(RING + 4 * (t % 8))}, {vtb} offset:{2048 + 1024 * e}")
        if e == 0 and t - 34 >= 0:
            pass
        return []
    def g1(e, off):
        def rd(t):
            n = RING + 4 * ((t + off) % 8)
            if t < 32:
                return trp(n, R2 + 2048 * t + 512 * e)
            if t == 32:
                return I(f"ds_read_b128 {V(n)}, {vtb} offset:{2048 + 1024 * e}")
            if e == 0:
                return trp(n, R2 + 2048 * (t - 33) + 512)
            return []
        a = V(T[2 + e], 16)
        out = []
        for k in range(33):
            xb = V(XF + 4 * k) if k < 32 else V(EX)
            it = rd(k + D1)
            if k % 2 == 0 and k + 1 < 33:
                it = it + [need_ins(("v", RING + 4 * ((k + 1 + off) % 8) + 3))]
            out.append(it + I(f"{MF} {a}, {V(RING + 4 * ((k + off) % 8))}, {xb}, {a if k else 0}"))
        return out, [rd(t) for t in range(D1)]
    gB, preB = g1(0, 0)
    gC, _ = g1(1, 33)
    PUBD = opt("PUBD", 14)
    GHI = opt("GHI", 90) / 100
    def G(i, pk=False):
        o = gelu(T[i], C0R, C1R, IRR, GT, (t3 if i < 2 else t4, 2048 * (i & 1)), f"h{i}", 4 << (4 * L), pk, f"iH{L}{i}")
        if EF & 4:
            o.insert(len(o) - opt("HE", 0), tick(f"{L}.zpb{i}") + publish(FB + 4 + i, x1, f"h{i}", f"iH{L}{i}"))
        return o
    def at(groups, n, item):
        groups[n] = groups[n] + I(item)
    if L == 0:
        cs = [I([need_ins("w1CD2")] + tr("v", STV + 4 * (j & 3), x0, 32768 + 2048 * (j >> 1) + 512 * (j & 1))) for j in range(4)]
        for j in range(8):
            c = V(CC + 4 * (j & 1))
            cs.append(I(f"{MF16} {c}, {V(AS4)}, {V(STV + 4 * (j & 3))}, {c}"))
            if j + 4 < 8:
                cs.append(tr("v", STV + 4 * (j & 3), x0, 32768 + 2048 * ((j + 4) >> 1) + 512 * (j & 1)))
        cs += [[]] + table_write(CC, 5, vtw, f"v{B1V + 2}") + table_write(CD_, 6, vtw, f"v{B1V + 3}")
        P.add(I(spread(G(0), cs + preB, 0.1, 0.95)))
        P.add(barrier())
        kv = wq_items([0, 1], "wkv")
        kv[0] = wq_setup(1024) + kv[0]
        if not opt("KV0", 0):
            for j in range(8):
                at(gB, 1 + j, kv[j]); at(gC, 1 + j, kv[8 + j])
    else:
        P.add(I(spread(G(0, True), preB, 0.5, 0.95)))
    P.add(tick(f"{L}.G0"))
    ACC = [A(224, 16), V(32, 16), V(48, 16), V(240, 16)]
    def hf(s, i, tt): return XF + 4 * (14 * (s & 1) + 2 * i + tt)
    def hloads(s):
        out = []
        for i in range(7):
            for tt in range(2):
                out.append(I([f"s_add_u32 {u0}, {t5 if tt == 0 else d3}, {(8 * i + 2 * s) * 1024}",
                              f"buffer_load_dwordx4 {V(hf(s, i, tt))}, {vL16}, {sWS}, {u0} offen sc1{ntm('H')}"]))
        return out
    def mf(s, i, n):
        tt, ct = n >> 1, n & 1
        a = ACC[n]
        return f"{MF} {a}, {A(((7 * s + i) * 2 + ct) * 4)}, {V(hf(s, i, tt))}, {a if (s or i or n == 0) else 0}"
    def hchk(s, i):
        if not EF & 4:
            return []
        ls, lr = P.label(), P.label()
        c = [f"v_cmp_u_f32 vcc, v{hf(s, i, 0)}, v{hf(s, i, 1)}", f"s_cbranch_vccnz {ls}"]
        OUTL.extend(I([ls + ":", f"s_cmp_eq_u32 {sRT}, 0", f"s_cbranch_scc1 {lr}", f"s_sub_u32 {sRT}, {sRT}, 1"] + hloads(s)[2 * i:2 * i + 2] + c + [f"s_branch {lr}"]))
        return I(c + [lr + ":"])
    def gS(s, ni=7): return [(hchk(s, i) if n == 0 else []) + I(mf(s, i, n)) for i in range(ni) for n in range(4)]
    hb = I([f"s_lshr_b32 {u0}, {sW}, 1", f"s_mul_i32 {u0}, {u0}, {56 * 1024}", f"s_and_b32 {u1}, {sW}, 1", f"s_lshl_b32 {u1}, {u1}, 10",
            f"s_add_u32 {u0}, {u0}, {u1}", f"s_add_u32 {u0}, {u0}, {LB(L) + H_O}", f"s_lshl_b32 {t5}, {sTP}, 17", f"s_xor_b32 {d3}, {t5}, 0x20000",
            f"s_add_u32 {t5}, {t5}, {u0}", f"s_add_u32 {d3}, {d3}, {u0}"])
    for n, x in enumerate(hb):
        at(gB, 16 + n, x)
    st = gB + gC + gS(0) + gS(1) + gS(2)
    CK = [opt(f"CK{i}", ((41, 66, 96, 124), (33, 48, 80, 110))[EF >> 2 & 1][i]) for i in range(4)]
    PB = [opt("PB0", 14), opt("PB1", 47), opt("PB2", 78), opt("PB3", 108)]
    PD = opt("PD", 12)
    for s in range(4):
        if not EF & 4:
            at(st, PB[s], tick(f"{L}.zpb{s}") + publish(FB + 4 + s, x1, f"h{s}") + tick(f"{L}.zPB{s}"))
        at(st, CK[s] - PD, poll_issue(vPH, x0))
        at(st, CK[s], tick(f"{L}.zck{s}") + poll_check(vPH, x0, FB + 4 + s) + tick(f"{L}.zCK{s}"))
        n = CK[s] + 1
        for j, x in enumerate(hloads(s)):
            lo = {0: 33 + j, 1: 33 + 14 + j}.get(s, 66 + 28 * (s - 2) + 4 * (j >> 1) + 3)
            n = max(n, lo)
            at(st, n, x)
            n += 1 if j < opt("HBU", 6) else opt("HST", 2)
        assert n <= len(st) + 1
    at(st, opt("B6", 110), barrier() + tick(f"{L}.zB6"))
    if L == 0 and opt("KV0", 0):
        for j in range(16):
            at(st, opt("KV0", 0) + j * opt("KVS", 10) // 10, kv[j])
    if L == 0 and opt("WQE", 0):
        assert opt("WQE", 0) > opt("B6", 110)
        for j, x in enumerate(wq_items([2])):
            at(st, opt("WQE", 0) + j * opt("WQS", 1), (I(f"s_sub_u32 {d1}, {d1}, 1024") if j == 0 else []) + x)
    P.add(I(spread(st[:33], G(1), 0.03, GHI)))
    P.add(tick(f"{L}.pB"))
    P.add(I(spread(st[33:66], G(2), 0.03, GHI)))
    P.add(tick(f"{L}.pC"))
    P.add(weave(st[66:94], [(1, x) for x in G(3)], slack=0))
    P.add(tick(f"{L}.S0"))
    P.add(I(st[94:122]))
    P.add(tick(f"{L}.S1"))
    P.add(I(st[122:150]))
    P.add(tick(f"{L}.S2"))
    NT = opt("NT5", 2)
    wa = ["v16", "v17", "v18", "v19"]
    pre = []
    for i in range(4):
        pre.append(I([f"s_xor_b32 {u0}, {sW}, {i}", f"s_mul_i32 {u0}, {u0}, 12288", f"s_add_u32 {u0}, {u0}, {SL + 4096 * max(0, i - 1)}",
                      f"v_add_u32 {wa[i]}, {u0}, {vL16}"]))
    if L == 0:
        pre.append(tile_addr(LB(1) + XIN_O, LB(1) + ST2_O))
    else:
        pre.append(I([f"v_and_b32 {x2}, 31, {vL}", f"v_lshrrev_b32 {x1}, 5, {vL}", f"v_lshlrev_b32 {x2}, 10, {x2}", f"v_lshl_add_u32 {x2}, {x1}, 4, {x2}",
                      f"s_lshl_b32 {t1}, {sTP}, 15", f"s_lshl_b32 {t2}, {sCT}, 6", f"s_add_u32 {t1}, {t1}, {t2}"]))
    P.add(I(pre))
    g = gS(3, 7 - NT)
    if L == 0:
        attach(g, inits("C", RING), 1, 1)
        if opt("WQ3", 0):
            wq = wq_items([2])
            wq[0] = I(f"s_sub_u32 {d1}, {d1}, 1024") + wq[0]
            attach(g, wq, opt("WQ3", 0) - 1, 1)
    base = [0, 32, 48, 240]
    wr = []
    for n in (3, 2, 1, 0):
        for e, i in enumerate(range(7 - NT, 7)):
            g.append((hchk(3, i) if n == 3 else []) + I(mf(3, i, n)))
            if e >= 1 or NT == 1:
                k = (len(wr) + (NT - e) - 1) // (NT - e)
                g.append(I(wr[:k])); wr = wr[k:]
        if n:
            wr = [f"ds_write_b128 {wa[n]}, {V(base[n] + 4 * j)} offset:{1024 * j}" for j in range(4)]
    P.add(I(g))
    x, tmp = 64, 80
    for i in range(16):
        P(f"v_accvgpr_read_b32 v{x + i}, a{224 + i}")
    P.add(tick(f"{L}.S3"))
    P.add(barrier(*(["wkv"] if L == 0 else [])))
    for j in range(12):
        P(f"ds_read_b128 {V(tmp + 4 * j)}, {wa[0]} offset:{1024 * j}")
    for p in range(3):
        for i in range(8):
            P(f"v_pk_add_f32 {V(x + 2 * i, 2)}, {V(x + 2 * i, 2)}, {V(tmp + 16 * p + 2 * i, 2)}")
    if L == 0:
        tile_out(x, 16, 24, 8, publish(8, x1, early="iY0") if EF & 8 else [], "iY0")
        for i in range(16):
            P(f"v_accvgpr_write_b32 a{224 + i}, v{x + i}")
        if not EF & 8:
            P.add(publish(8, x1))
        P.add(tick("0.p5end"))
    else:
        for i in range(8):
            P(f"v_cvt_pk_bf16_f32 v{16 + i}, v{x + 2 * i}, v{x + 2 * i + 1}")
        P(f"buffer_store_dwordx4 {V(16)}, {x2}, {sOUT}, {t1} offen {OM}")
        P(f"buffer_store_dwordx4 {V(20)}, {x2}, {sOUT}, {t1} offen offset:32 {OM}")
        if PROF:
            P.need("stores")
            P.add(tick("1.final"))
            P.add(prof_dump())


def tail45(L, vtb, vtw):
    o = lambda n, d: opt(f"{n}_{L}", opt(n, d))
    G0X, G2X, G3X = (1 if L == 0 else o("G0X", 1)), o("G2X", 1), o("G3X", 0)
    T = [16, 32, 48, 16 if G0X else STV]
    C0R, C1R, IRR, RR, GT = "v116", "v118", "v120", "v122", 124
    FB, D = 16 * L, 3
    def rd(t):
        n = RING + 8 * (t % 4)
        if t < 32:
            return trp(n, R2 + 2048 * t) + trp(n + 4, R2 + 2048 * t + 512)
        if t == 32:
            return I([f"ds_read_b128 {V(n + 4 * e)}, {vtb} offset:{2048 + 1024 * e}" for e in range(2)])
        return []
    gBC = []
    for k in range(33):
        xb = V(XF + 4 * k) if k < 32 else V(EX)
        r = rd(k + D)
        for e in range(2):
            gBC.append(I(f"{MF} {V(T[2 + e], 16)}, {V(RING + 8 * (k % 4) + 4 * e)}, {xb}, {V(T[2 + e], 16) if k else 0}") + r[len(r) // 2 * e:len(r) // 2 * (e + 1)])
    pre = [rd(t) for t in range(D)]
    def G(i, pk=False):
        return gelu(T[i], C0R, C1R, IRR, GT, (t3 if i < 2 else t4, 2048 * (i & 1)), f"h{i}", 4 << (4 * L), pk)
    def at(groups, n, item):
        groups[n] = groups[n] + I(item)
    kv = []
    if L == 0:
        cs = [I([need_ins("w1CD2")] + tr("v", STV + 4 * (j & 3), x0, 32768 + 2048 * (j >> 1) + 512 * (j & 1))) for j in range(4)]
        for j in range(8):
            c = V(CC + 4 * (j & 1))
            cs.append(I(f"{MF16} {c}, {V(AS4)}, {V(STV + 4 * (j & 3))}, {c}"))
            if j + 4 < 8:
                cs.append(tr("v", STV + 4 * (j & 3), x0, 32768 + 2048 * ((j + 4) >> 1) + 512 * (j & 1)))
        cs += [[]] + table_write(CC, 5, vtw, f"v{B1V + 2}") + table_write(CD_, 6, vtw, f"v{B1V + 3}")
        P.add(I(spread(G(0), cs + pre, 0.1, 0.95)))
        P.add(barrier())
        kv = wq_items([0, 1], "wkv")
        kv[0] = wq_setup(1024) + kv[0]
    elif G0X:
        P.add(I(spread(G(0, True), pre, 0.5, 0.95)))
    else:
        P.add(I(pre))
    P.add(tick(f"{L}.G0"))
    AB = [0, 32, RING, RING + 16]
    ACC = [A(224, 16)] + [V(b, 16) for b in AB[1:]]
    NR = 32
    def hf(s, i, tt): return XF + 4 * ((14 * s + 2 * i + tt) % NR)
    def hloads(s):
        return [I([f"s_add_u32 {u0}, {t5 if tt == 0 else d3}, {(8 * i + 2 * s) * 1024}",
                   f"buffer_load_dwordx4 {V(hf(s, i, tt))}, {vL16}, {sWS}, {u0} offen sc1"]) for i in range(7) for tt in range(2)]
    def mf(s, i, n):
        tt, ct = n >> 1, n & 1
        a = ACC[n]
        return f"{MF} {a}, {A(((7 * s + i) * 2 + ct) * 4)}, {V(hf(s, i, tt))}, {a if (s or i or n == 0) else 0}"
    def gS(s, ni=7): return [I(mf(s, i, n)) for i in range(ni) for n in range(4)]
    hb = I([f"s_lshr_b32 {u0}, {sW}, 1", f"s_mul_i32 {u0}, {u0}, {56 * 1024}", f"s_and_b32 {u1}, {sW}, 1", f"s_lshl_b32 {u1}, {u1}, 10",
            f"s_add_u32 {u0}, {u0}, {u1}", f"s_add_u32 {u0}, {u0}, {LB(L) + H_O}", f"s_lshl_b32 {t5}, {sTP}, 17", f"s_xor_b32 {d3}, {t5}, 0x20000",
            f"s_add_u32 {t5}, {t5}, {u0}", f"s_add_u32 {d3}, {d3}, {u0}"])
    for n in range(0, 10, 2):
        at(gBC, 1 + n, hb[n:n + 2])
    gx = []
    for i, x in ((2, G2X), (3, G3X)):
        if x:
            g = G(i, True)
            gx += [I(g[len(g) * n // 10:len(g) * (n + 1) // 10]) for n in range(10)]
    NT = opt("NT5", 2)
    S0 = 66 + len(gx)
    st = gBC + gx + gS(0) + gS(1) + gS(2) + gS(3, 7 - NT)
    def pos(p): return p if p < 100 else (66 + p - 100 if p < 200 else S0 + p - 200)
    PB = [pos(o(f"PB{i}", (18, 58, 216, 246)[i])) for i in range(4)]
    PI = [pos(o(f"PI{i}", (30, 103, 228, 256)[i])) for i in range(4)]
    CK = [pos(o(f"CK{i}", (42, 202, 240, 268)[i])) for i in range(4)]
    for s in range(4):
        at(st, PB[s], tick(f"{L}.zpb{s}") + publish(FB + 4 + s, x1, f"h{s}") + tick(f"{L}.zPB{s}"))
        at(st, PI[s], poll_issue(vPH, x0))
        at(st, CK[s], tick(f"{L}.zck{s}") + poll_check(vPH, x0, FB + 4 + s) + tick(f"{L}.zCK{s}"))
        n = CK[s]
        HS = o(f"HS{s}", (14, 10, 15, 10)[s])
        for j, x in enumerate(hloads(s)):
            q = 14 * s + j
            lo = 2 * q + 1 if q < NR else S0 + 4 * ((q - NR) >> 1) + 3
            n = max(n, lo)
            assert n < S0 + 4 * (q >> 1), (s, j, n)
            at(st, n, x)
            n = max(n, CK[s] + (j + 1) * HS // 10)
    at(st, pos(o("B6", 210)), barrier() + tick(f"{L}.zB6"))
    for j, x in enumerate(kv):
        at(st, pos(o("KV0", 1)) + j * o("KVS", 20) // 10, x)
    if L == 0 and opt("WQ3", 0):
        wq = wq_items([2])
        wq[0] = I(f"s_sub_u32 {d1}, {d1}, 1024") + wq[0]
        for j, x in enumerate(wq):
            at(st, pos(opt("WQ3", 0)) + j * opt("WQS", 20) // 10, x)
    wa = [f"v{EX + i}" for i in range(4)]
    for i in range(4):
        at(st, S0 + 60 + i, [f"s_xor_b32 {u0}, {sW}, {i}", f"s_mul_i32 {u0}, {u0}, 12288", f"s_add_u32 {u0}, {u0}, {SL + 4096 * max(0, i - 1)}",
                             f"v_add_u32 {wa[i]}, {u0}, {vL16}"])
    if L == 0:
        at(st, S0 + 64, tile_addr(LB(1) + XIN_O, LB(1) + ST2_O))
    else:
        at(st, S0 + 64, [f"v_and_b32 {x2}, 31, {vL}", f"v_lshrrev_b32 v{GT}, 5, {vL}", f"v_lshlrev_b32 {x2}, 10, {x2}", f"v_lshl_add_u32 {x2}, v{GT}, 4, {x2}",
                         f"s_lshl_b32 {t1}, {sTP}, 15", f"s_lshl_b32 {t2}, {sCT}, 6", f"s_add_u32 {t1}, {t1}, {t2}"])
    P.add(I(spread(st[:66], ([] if G0X else G(0)) + G(1), 0.02, o("GHI", 62 if G0X else 97) / 100)))
    P.add(tick(f"{L}.pC"))
    P.add(I(st[66:S0]))
    P.add(tick(f"{L}.GX"))
    wv = ([] if G2X else G(2)) + ([] if G3X else G(3))
    P.add(I(spread(st[S0:S0 + 28], wv, 0.02, o("GH2", 95) / 100)))
    P.add(tick(f"{L}.S0"))
    P.add(I(st[S0 + 28:S0 + 56]))
    P.add(tick(f"{L}.S1"))
    P.add(I(st[S0 + 56:S0 + 84]))
    P.add(tick(f"{L}.S2"))
    g = st[S0 + 84:]
    wr = []
    for n in (3, 2, 1, 0):
        for e, i in enumerate(range(7 - NT, 7)):
            g.append(I(mf(3, i, n)))
            if e >= 1 or NT == 1:
                k = (len(wr) + (NT - e) - 1) // (NT - e)
                g.append(I(wr[:k])); wr = wr[k:]
        if n:
            wr = [f"ds_write_b128 {wa[n]}, {V(AB[n] + 4 * j)} offset:{1024 * j}" for j in range(4)]
    P.add(I(g))
    x, tmp = 48, XF
    for i in range(16):
        P(f"v_accvgpr_read_b32 v{x + i}, a{224 + i}")
    P.add(tick(f"{L}.S3"))
    P.add(barrier(*(["wkv"] if L == 0 else [])))
    for j in range(12):
        P(f"ds_read_b128 {V(tmp + 4 * j)}, {wa[0]} offset:{1024 * j}")
    for p in range(3):
        for i in range(8):
            P(f"v_pk_add_f32 {V(x + 2 * i, 2)}, {V(x + 2 * i, 2)}, {V(tmp + 16 * p + 2 * i, 2)}")
    if L == 0:
        tile_out(x, 16, 24, 8, [], None)
        for i in range(16):
            P(f"v_accvgpr_write_b32 a{224 + i}, v{x + i}")
        P.add(publish(8, x1))
        P.add(tick("0.p5end"))
    else:
        for i in range(8):
            P(f"v_cvt_pk_bf16_f32 v{16 + i}, v{x + 2 * i}, v{x + 2 * i + 1}")
        P(f"buffer_store_dwordx4 {V(16)}, {x2}, {sOUT}, {t1} offen {OM}")
        P(f"buffer_store_dwordx4 {V(20)}, {x2}, {sOUT}, {t1} offen offset:32 {OM}")
        if PROF:
            P.need("stores")
            P.add(tick("1.final"))
            P.add(prof_dump())
```

```python
import sys, struct, re
from asmgen import Prog, Ins, emit, need_ins

KN = "interleave_layers__sliding_block__mixer_channel_mlp__prompt_kernel"
OPT = dict(a.split("=") for a in sys.argv[2:])
STOP = OPT.get("STOP")
PROF = int(OPT.get("PROF", 0))
def opt(name, default): return int(OPT.get(name, default))

MB = 1 << 20
KV_O, O_O, X1_O, XIN_O, ST1_O, ST2_O, H_O = 0, 4 * MB, 6 * MB, 8 * MB, 10 * MB, 10 * MB + 256 * 1024, 11 * MB
LSTRIDE = 20 * MB
def LB(L): return MB + L * LSTRIDE
FPACK = 131072
MBOX = FPACK + 8192
ARR = FPACK + 65536
OOB = 0x40000000
R0, R1, R2, SL, PITCH = 0, 32768, 65536, 98304, 4112
SCR3, SPARE, TAB0, RBC = 131072, 147648, 156160, 163328

sC, sM, sW, sCNT = "s4", "s5", "s6", "s7"
sRR = "s0"
sX, sWQ, sWO, sW1, sW2, sWS, sOUT, sB2, sB1, sDBG = [f"s[{8 + 4 * i}:{11 + 4 * i}]" for i in range(10)]
sT, sTP, sCT, sMODE, sFA, sFP = "s48", "s49", "s50", "s51", "s52", "s53"
t0, t1, t2, t3, t4, t5 = "s54", "s55", "s56", "s57", "s58", "s59"
d0, d1, d2, d3 = "s60", "s61", "s62", "s63"
u0, u1, u2, u3 = "s96", "s97", "s98", "s99"
def sMASK(r): return f"s[{64 + 2 * r}:{65 + 2 * r}]"
vL, vL16, vTR, vTR1, vTP, vTP1, vPX, vPO, vPH, vPROF, voQ, vo1, vo2 = [f"v{i}" for i in range(13)]
x0, x1, x2 = "v13", "v14", "v15"
XF = 128

def f2u(x): return struct.unpack("<I", struct.pack("<f", x))[0]
def fc(x): return hex(f2u(x))
def V(n, k=4): return f"v[{n}:{n + k - 1}]" if k > 1 else f"v{n}"
def A(n, k=4): return f"a[{n}:{n + k - 1}]" if k > 1 else f"a{n}"
def R(f, n, k=4): return f"{f}[{n}:{n + k - 1}]"

PL = opt("PL", 0)
P3N = opt("P3N", 1)
PMOD = OPT.get("PMOD", "")
LOG2E = 1.4426950408889634
EPS = 1e-5
P = Prog()
MF = "v_mfma_f32_32x32x16_bf16"
MF16 = "v_mfma_f32_16x16x32_bf16"
OUTL = []


def I(x):
    if isinstance(x, str):
        return [Ins(x)]
    if isinstance(x, Ins):
        return [x]
    out = []
    for e in x:
        out += I(e)
    return out


def cost(ins):
    c = 0
    for i in ins:
        if i.kind in ("label", "dir"):
            continue
        c += 8 if (i.kind in ("mfma", "trans") or i.op.startswith("v_permlane")) else 4
    return c


def weave(groups, fill, slack=4, start=0, rate=1.0):
    out, f, credit = [], [], 0
    for it in fill:
        if isinstance(it, tuple):
            f.append((it[0], I(it[1])))
        else:
            f.append((0, I(it)))
    for n, g in enumerate(groups):
        g = I(g)
        out += g
        pipe = sum(4 * i.passes for i in g if i.kind == "mfma")
        if n < start:
            continue
        credit = min(credit, 8) + (pipe - cost(g) - slack) * rate
        while f and f[0][0] <= n and credit > 0:
            it = f.pop(0)[1]
            out += it
            credit -= cost(it)
    for _, it in f:
        out += it
    return out


def spread(main, fill, lo=0.0, hi=1.0):
    main = [I(m) for m in main]
    fill = [I(x) for x in fill]
    tot = sum(cost(m) for m in main)
    out, acc, k = [], 0, 0
    for m in main:
        out.append(m)
        acc += cost(m)
        while k < len(fill) and acc >= tot * (lo + (hi - lo) * k / max(1, len(fill))):
            out.append(fill[k]); k += 1
    out += fill[k:]
    return out


def tr(f, n, base, off):
    assert 0 <= off and off + 256 < 65536
    return [Ins(f"ds_read_b64_tr_b16 {R(f, n, 2)}, {base} offset:{off}"),
            Ins(f"ds_read_b64_tr_b16 {R(f, n + 2, 2)}, {base} offset:{off + 256}")]

def tr1(n, addr):
    return tr("v", n, vTR, addr) if addr < 65536 else tr("v", n, vTR1, addr - 65536)

def trp(n, addr):
    return tr("v", n, vTP, addr) if addr < 65536 else tr("v", n, vTP1, addr - 65536)


def ntm(srd):
    b = {sW2: 1, sW1: 2, sWO: 4, sWQ: 8, "H": 16, "X": 32, "O": 64, "KV": 128, sX: 256}[srd]
    return " nt" if opt("NT", 0) & b else ""


def dma(srd, voff, sbase, goffs, lds_s, lds_imm, tag, st=d0):
    out = []
    for j, g in enumerate(goffs):
        it = []
        if j % 4 == 0:
            it.append(Ins(f"s_add_u32 m0, {lds_s}, {lds_imm + 1024 * j}") if lds_s else Ins(f"s_mov_b32 m0, {lds_imm + 1024 * j}"))
        o = g - (j % 4) * 1024
        assert o >= 0
        it.append(Ins(f"s_add_u32 {st}, {sbase}, {o}"))
        it.append(Ins(f"buffer_load_dwordx4 {voff}, {srd}, {st} offen offset:{(j % 4) * 1024}{ntm(srd)} lds", xdst=[tag]))
        out.append(it)
    return out


def dma_rot(srd, voff, sbase, n, gstep, g0, lds_s, lds_imm, tag, rot):
    out = []
    for j in range(n):
        it = []
        if j % 4 == 0:
            it += [f"s_xor_b32 {d0}, {rot}, {j // 4}", f"s_lshl_b32 {d3}, {d0}, 12", f"s_mul_i32 {d0}, {d0}, {4 * gstep}", f"s_add_u32 {d3}, {d3}, {lds_s}",
                   f"s_add_u32 {d0}, {d0}, {sbase}", f"s_add_u32 m0, {d3}, {lds_imm - g0}"]
        else:
            it.append(f"s_add_u32 {d0}, {d0}, {gstep - 1024}")
        it.append(Ins(f"buffer_load_dwordx4 {voff}, {srd}, {d0} offen offset:{(j % 4) * 1024 + g0} lds", xdst=[tag]))
        out.append(I(it))
    return out


def barrier(*extra):
    return [need_ins("ds_any", *extra), Ins("s_barrier")]


def poll_issue(vaddr, vt):
    return [Ins(f"buffer_load_dword {vt}, {vaddr}, {sWS}, {sFP} offen sc1")]


def poll_check(vaddr, vt, target):
    ls, lr, lp = P.label(), P.label(), P.label()
    OUTL.extend(I([ls + ":", f"s_mov_b32 {sCNT}, 30000", lp + ":",
                   f"buffer_load_dword {vt}, {vaddr}, {sWS}, {sFP} offen sc1",
                   f"v_cmp_gt_u32 vcc, {target}, {vt}", f"s_cbranch_vccz {lr}",
                   f"s_sub_u32 {sCNT}, {sCNT}, 1", f"s_cbranch_scc0 {lp}", "s_endpgm"]))
    return I([f"v_cmp_gt_u32 vcc, {target}, {vt}", f"s_cbranch_vccnz {ls}", lr + ":"])


def poll(vaddr, vt, target):
    lp, lr = P.label(), P.label()
    return I([f"s_mov_b32 {sCNT}, 30000", lp + ":",
              f"buffer_load_dword {vt}, {vaddr}, {sWS}, {sFP} offen sc1",
              f"v_cmp_gt_u32 vcc, {target}, {vt}", f"s_cbranch_vccz {lr}",
              f"s_sub_u32 {sCNT}, {sCNT}, 1", f"s_cbranch_scc0 {lp}", "s_endpgm", lr + ":"])


EF = opt("EF", 0)
sRT = "s1"


def publish(val, vt, tag="stores", early=None):
    ls, lr = P.label(), P.label()
    st = f"buffer_store_dword {vt}, off, {sWS}, {sFA}"
    OUTL.extend(I([ls + ":", need_ins(tag), st + " sc1", f"s_branch {lr}"]))
    return I([f"v_mov_b32 {vt}, {val}", f"s_cmp_eq_u32 {sMODE}, 0", need_ins(early or tag), f"s_cbranch_scc1 {ls}", st, lr + ":"])


INAMES = ["O0", "X0", "H00", "H01", "H02", "H03", "Y0", "O1", "X1", "H10", "H11", "H12", "H13"]
IW = dict(zip(INAMES, OPT.get("IW", "AAAAAAACCaaaa")))
def efbit(n): return EF & {"O": 1, "X": 2, "H": 4, "Y": 8}[n[0]]


def inits(win, r):
    out = []
    for n in INAMES:
        if IW[n] != win or not efbit(n):
            continue
        L = int(n[1])
        def st(off): return Ins(f"buffer_store_dwordx4 {V(r)}, {vL16}, {sWS}, {u0} offen offset:{off} sc1", xdst=["i" + n])
        if n[0] == "O":
            o = [f"s_lshl_b32 {u0}, {sT}, 4", f"s_add_u32 {u0}, {u0}, {sM}", f"s_lshl_b32 {u0}, {u0}, 11", f"s_add_u32 {u0}, {u0}, {LB(L) + O_O}", st(0), st(1024)]
        elif n[0] == "H":
            o = [f"s_lshl_b32 {u0}, {sT}, 4", f"s_add_u32 {u0}, {u0}, {sM}", f"s_lshl_b32 {u0}, {u0}, 13", f"s_add_u32 {u0}, {u0}, {LB(L) + H_O + 2048 * int(n[2])}",
                 f"s_cmp_ge_u32 {sM}, 14", f"s_cselect_b32 {u0}, {OOB}, {u0}", st(0), st(1024)]
        else:
            xo, so = (LB(L) + X1_O, LB(L) + ST1_O) if n[0] == "X" else (LB(1) + XIN_O, LB(1) + ST2_O)
            o = [f"s_lshl_b32 {u1}, {sTP}, 4", f"s_add_u32 {u1}, {u1}, {sCT}", f"s_lshl_b32 {u0}, {u1}, 11", f"s_add_u32 {u0}, {u0}, {xo}", st(0), st(1024),
                 f"s_lshl_b32 {u0}, {u1}, 8", f"s_add_u32 {u0}, {u0}, {so}", "s_mov_b64 exec, 0xffff", st(0), "s_mov_b64 exec, -1"]
        out.append(I(o))
    if out:
        out[0] = I([f"v_mov_b64 {V(r, 2)}, -1", f"v_mov_b64 {V(r + 2, 2)}, -1"]) + out[0]
    return out


def redo(vc, back, extra=()):
    ls, lr = P.label(), P.label()
    OUTL.extend(I([ls + ":", f"s_cmp_eq_u32 {sRT}, 0", f"s_cbranch_scc1 {lr}", f"s_sub_u32 {sRT}, {sRT}, 1", "s_nop 15"] + list(extra) + ["s_waitcnt vmcnt(0) lgkmcnt(0)", f"s_branch {back}"]))
    return I([f"v_cmp_eq_u32 vcc, -1, {vc}", f"s_cbranch_vccnz {ls}", lr + ":"])


def chain(vc, base, n):
    return [(t + 1, f"v_max3_u32 {vc}, {vc}, v{base + 4 * t}, v{base + 4 * t + 4}" if t else f"v_max_u32 {vc}, v{base}, v{base + 4}") for t in range(0, n, 2)]


def xstore(txt, bit, tag=None, ini=None):
    kw = dict(xdst=[tag]) if tag else {}
    if ini:
        kw["xsrc"] = [ini]
    if not PL & bit:
        return [Ins(txt + " sc1" + (" nt" if opt("NTS", 0) & 1 else ""), **kw)]
    ls, lr = P.label(), P.label()
    OUTL.extend(I([ls + ":", Ins(txt + " sc1", **kw), f"s_branch {lr}"]))
    return I([f"s_cmp_eq_u32 {sMODE}, 0", f"s_cbranch_scc1 {ls}", Ins(txt + (" " + PMOD if PMOD else ""), **kw), lr + ":"])


PNAMES = []
def tick(name):
    if not PROF:
        return []
    if OPT.get("TK") and not re.match(OPT["TK"], name):
        return []
    op = "s_memtime" if opt("CLK", 0) else "s_memrealtime"
    return I([f"{op} s[100:101]", "s_waitcnt lgkmcnt(0)", Ins(f"v_writelane_b32 {vPROF}, s100, 0", comment="T:" + name)])


def prof_dump():
    if not PROF:
        return []
    return I([f"v_writelane_b32 {vPROF}, {sRT}, 63", f"s_lshl_b32 {t0}, s2, 2", f"s_add_u32 {t0}, {t0}, {sW}", f"s_lshl_b32 {t0}, {t0}, 8",
              f"s_add_u32 {t0}, {t0}, {LB(1) + 19 * MB}", f"v_lshlrev_b32 {x0}, 2, {vL}",
              f"buffer_store_dword {vPROF}, {x0}, {sWS}, {t0} offen"])


def stop(L, ph):
    if STOP == f"{L}.{ph}":
        P.add(prof_dump())
        P("s_endpgm")
        return True
    return False


def finish():
    import asmgen
    asmgen.SCHED = bool(opt('SCHED', 1))
    asmgen.MINW = opt('MINW', 2)
    P.put("L_end")
    P("s_endpgm")
    P.add(OUTL)
    for i in P.ins:
        if i.comment and i.comment.startswith("T:"):
            i.text = i.text[:-1] + str(len(PNAMES))
            PNAMES.append(i.comment[2:])
    assert len(PNAMES) <= 63
    body, ins = emit(P)
    hdr = open("interleave_layers__sliding_block__mixer_channel_mlp__prompt.s.ref").read()
    top = hdr.split("; @launch")[0]
    txt = top + "; @launch grid=(256,1,1) block=(256,1,1) lds=163840\n"
    txt += f""".amdgcn_target "amdgcn-amd-amdhsa--gfx950"
.text
.globl {KN}
.p2align 8
.type {KN},@function
{KN}:
{body}
.section .rodata,"a"
.p2align 6
.amdhsa_kernel {KN}
  .amdhsa_next_free_vgpr 512
  .amdhsa_next_free_sgpr 102
  .amdhsa_accum_offset 256
  .amdhsa_group_segment_fixed_size 0
  .amdhsa_kernarg_size 88
  .amdhsa_user_sgpr_count 2
  .amdhsa_user_sgpr_kernarg_segment_ptr 1
  .amdhsa_system_sgpr_workgroup_id_x 1
.end_amdhsa_kernel
"""
    open(sys.argv[1], "w").write(txt)
    print("instructions:", len(ins))
    open(sys.argv[1] + ".names", "w").write(" ".join(PNAMES))
```

```python
from k2_base import *

sW2B = "s3"
sTI = "s1"
X3 = opt("X3", 0)
NK = " nt" if opt("NTS", 0) & 2 else ""

def wq_items(imgs, tag="wq"):
    out = []
    for q in range(4):
        for img in imgs:
            cb = (0, 1024, 0)[img]
            out.append(I([f"s_xor_b32 {d0}, {sRR}, {q}", f"s_mul_i32 {d0}, {d0}, {128 * 3072}", f"s_add_u32 m0, {d2}, {img * 32768 + q * 8192 - cb}", f"s_add_u32 {d0}, {d0}, {d1}",
                          Ins(f"buffer_load_dwordx4 {voQ}, {sWQ}, {d0} offen offset:{cb} lds", xdst=[tag])]))
            out.append(I([f"s_add_u32 {d0}, {d0}, {16 * 3072 - 1024}",
                          Ins(f"buffer_load_dwordx4 {voQ}, {sWQ}, {d0} offen offset:{cb + 1024} lds", xdst=[tag])]))
    return out

def wq_setup(cb=0):
    return I([f"s_mul_i32 {d1}, {sW}, {32 * 3072}", f"s_lshl_b32 {d2}, {sM}, 6", f"s_add_u32 {d1}, {d1}, {d2}",
              f"s_lshl_b32 {d2}, {sW}, 11"] + ([f"s_add_u32 {d1}, {d1}, {cb}"] if cb else []))

vX0, vX1, XA = "v112", "v113", 120

def x0_items(h):
    out = []
    for j in range(4):
        it = []
        if j == 0:
            it += [f"s_xor_b32 {d1}, {t5}, {h}", f"s_lshl_b32 {d1}, {d1}, 7", f"s_add_u32 {d1}, {d1}, {t3}", f"s_add_u32 m0, {d3}, {SL + 4096 * (h & 3)}"]
        else:
            it.append(f"s_add_u32 {d1}, {d1}, 7168")
        it.append(Ins(f"buffer_load_dwordx4 {vX1 if j & 1 else vX0}, {sX}, {d1} offen offset:{j * 1024}{ntm(sX)} lds", xdst=[f"x{h}"]))
        out.append(I(it))
    return out

def w0_items(h, imgs=(0, 1), tag=None):
    out = []
    for img in imgs:
        cb = (1024, 2048, 0)[img]
        out += dma(sWQ, voQ, d1, [cb], d2, img * 32768 + h * 4096, tag or f"kv{h}")
    out[0] = I([f"s_xor_b32 {d1}, {t5}, {h}", f"s_mul_i32 {d1}, {d1}, {64 * 3072}", f"s_add_u32 {d1}, {d1}, {t4}"]) + out[0]
    return out

def w2_piece(kks, mul, imm, tag, vb):
    goffs = []
    for kk in kks:
        s, i = kk // 7, kk % 7
        goffs += [(128 * i + 32 * s + 8 * h) * 1024 for h in range(2)]
    dm = dma(sW2, vo2, sW2B, goffs, d2, imm, tag)
    dm[0] = I(f"s_mul_i32 {d2}, {sW}, {mul}") + dm[0]
    rd = [I([f"s_mul_i32 {u0}, {sW}, {mul}", f"s_add_u32 {u0}, {u0}, {imm}", f"v_add_u32 {vb}, {u0}, {vTP}", need_ins(tag)])]
    for j, kk in enumerate(kks):
        for ct in range(2):
            rd.append(tr("a", (kk * 2 + ct) * 4, vb, 2048 * j + 512 * ct))
    return dm, rd

def w2_round(rnd, vb):
    k = {1: 13, 2: 0, 3: 18, 4: 23}[rnd]
    pieces = {1: [(5, 16384, 0)],
              2: [(8, 16384, 0), (4, 8192, R2), (1, 2048, SPARE)],
              3: [(4, 8192, R2), (1, 2048, SPARE)],
              4: [(4, 8192, SL), (1, 2048, SPARE)]}[rnd]
    dm, rd = [], []
    for n, (cnt, mul, imm) in enumerate(pieces):
        a, b = w2_piece(list(range(k, k + cnt)), mul, imm, f"w2r{rnd}_{n}", vb)
        dm += a; rd += b
        k += cnt
    return dm, rd

def wo_items(rot=False):
    it = dma_rot(sWO, vo2, d1, 16, 8192, 0, d2, 0, "wo", sRR) if rot else dma(sWO, vo2, d1, [j * 8 * 1024 for j in range(16)], d2, 0, "wo")
    it[0] = I([f"s_and_b32 {d1}, {sW}, 1", f"s_lshl_b32 {d1}, {d1}, 18", f"s_lshr_b32 {d2}, {sW}, 1", f"s_xor_b32 {d2}, {d2}, {sRR}", f"s_and_b32 {d2}, {d2}, 1", f"s_lshl_b32 {d2}, {d2}, 17",
               f"s_add_u32 {d1}, {d1}, {d2}", f"s_and_b32 {d2}, {sCT}, 14", f"s_lshl_b32 {d2}, {d2}, 6", f"s_add_u32 {d1}, {d1}, {d2}",
               f"s_lshl_b32 {d2}, {sW}, 14"]) + it[0]
    return it

def wo_reads(va):
    rd = [I([f"s_lshl_b32 {u0}, {sW}, 14", f"v_add_u32 {va}, {u0}, {vTP}", need_ins("wo")])]
    return rd + [tr("v", 128 + (ks * 2 + ct) * 4, va, 2048 * ks + 512 * ct) for ks in (0, 2, 4, 6, 1, 3, 5, 7) for ct in range(2)]

def idle(*regs):
    if not opt("IDL", 1):
        return []
    return [f"s_cmp_ge_u32 {sM}, 14"] + [f"s_cselect_b32 {r}, {OOB}, {r}" for r in regs]

def w1_items(part, rot=False):
    if part == "AB":
        rows, n, g0, sh, imm = 128, 16, 0, 14, 0
        pre = [f"s_xor_b32 {d1}, {sW}, {sRR}"]
    else:
        rows, n, sh, g0 = 64, 8, 13, 128
        imm = R2 if part == "CD1" else SL
        pre = [f"s_lshl_b32 {d1}, {sRR}, 1", f"s_xor_b32 {d1}, {d1}, {sW}"] + ([f"s_xor_b32 {d1}, {d1}, 4"] if part == "CD2" else [])
    if rot:
        it = dma_rot(sW1, vo1, d1, n, 8 * 3584, g0, d2, imm, "w1" + part, u3)
        pre = pre + [f"s_and_b32 {u3}, {sRR}, 1"] + ([f"s_lshl_b32 {u3}, {u3}, 1"] if n == 16 else [])
    else:
        it = dma(sW1, vo1, d1, [g0 + j * 8 * 3584 for j in range(n)], d2, imm, "w1" + part)
    it[0] = I(pre + [f"s_mul_i32 {d1}, {d1}, {rows * 3584}", f"s_lshl_b32 {d2}, {sM}, 8", f"s_add_u32 {d1}, {d1}, {d2}"] + idle(d1) +
              [f"s_lshl_b32 {d2}, {sW}, {sh}"]) + it[0]
    return it


def asel(n):
    return I([f"v_lshrrev_b32 v{n}, 2, {vL}", f"v_xor_b32 v{n}, v{n}, {vL}", f"v_bfe_u32 v{n}, v{n}, 2, 1",
              f"v_add_u32 v{n}, -1, v{n}", f"v_and_b32 v{n}, 0x3f803f80, v{n}",
              f"v_mov_b32 v{n + 1}, v{n}", f"v_mov_b64 {V(n + 2, 2)}, {V(n, 2)}"])


def table_write(c, tab, va, bias=None, tag=None):
    o = [f"v_cvt_pk_bf16_f32 v{c + 2}, v{c}, v{c}",
         f"v_lshlrev_b32 v{c + 1}, 16, v{c + 2}",
         f"v_sub_f32 v{c + 1}, v{c}, v{c + 1}",
         f"v_and_b32 v{c + 3}, 0xffff, v{c + 2}",
         f"v_cvt_pk_bf16_f32 v{c + 2}, v{c}, v{c + 1}"]
    if bias:
        o.append(f"v_lshl_or_b32 v{c + 3}, {bias}, 16, v{c + 3}")
    o.append(Ins(f"ds_write_b64 {va}, {V(c + 2, 2)} offset:{tab * 1024}", **(dict(xdst=[tag]) if tag else {})))
    return [I(x) for x in o]


def table_addr(va):
    return I([f"s_lshr_b32 {u0}, {sW}, 1", f"s_lshl_b32 {u0}, {u0}, 9", f"s_and_b32 {u1}, {sW}, 1", f"s_lshl_b32 {u1}, {u1}, 3",
              f"s_add_u32 {u0}, {u0}, {u1}", f"s_add_u32 {u0}, {u0}, {TAB0}",
              f"v_and_b32 {va}, 0x1f0, {vL16}", f"v_add_u32 {va}, {u0}, {va}"])


def stats_finish(a, b, c, d, ex, mlp, r, ir):
    o = [f"v_mul_f32 {a}, {fc(-1.0 / 512)}, {a}",
         f"v_mul_f32 {c}, {a}, {a}",
         f"v_fma_f32 {b}, {b}, {u3}, -{c}",
         f"v_cvt_pk_bf16_f32 v{ex}, {a}, {a}",
         f"v_max_f32 {b}, 0, {b}",
         f"v_add_f32 {c}, {fc(EPS)}, {b}",
         f"v_rsq_f32 {r}, {c}",
         f"v_lshlrev_b32 {d}, 16, v{ex}",
         f"v_sub_f32 {d}, {a}, {d}"]
    o = [f"s_mov_b32 {u3}, {fc(1.0 / 512)}"] + o
    if mlp:
        o += [f"v_mul_f32 {b}, {b}, {r}", f"v_mul_f32 {b}, {b}, {r}", f"v_add_f32 {b}, {fc(EPS)}, {b}",
              f"v_rsq_f32 {b}, {b}", f"v_mov_b32 v{ex + 2}, v{ex}", f"v_mul_f32 {r}, {b}, {r}", f"v_rcp_f32 {ir}, {r}",
              f"v_cvt_pk_bf16_f32 v{ex + 1}, {d}, {ir}", f"v_and_b32 {a}, 0xffff0000, v{ex + 1}", f"v_sub_f32 {a}, {ir}, {a}",
              f"v_cvt_pk_bf16_f32 v{ex + 3}, {d}, {a}"]
    else:
        o += [f"v_mov_b32 v{ex + 2}, v{ex}", f"v_cvt_pk_bf16_f32 v{ex + 1}, {d}, {d}", f"v_mov_b32 v{ex + 3}, v{ex + 1}"]
    return [I(x) for x in o]


def x_loads(xoff, stoff, stv):
    setup = I([f"s_lshl_b32 {t1}, {sT}, 2", f"s_add_u32 {t1}, {t1}, {sRR}", f"s_lshl_b32 {t1}, {t1}, 13", f"s_add_u32 {t1}, {t1}, {xoff}", f"s_lshl_b32 {t2}, {sT}, 12", f"s_add_u32 {t2}, {t2}, {stoff}", f"v_lshlrev_b32 v{stv + 15}, 2, {vL}"])
    items = []
    for t in range(32):
        if t == opt("XSP", 16):
            for s in range(0, 16, 4):
                items.append(I([f"buffer_load_dword v{stv + s + e}, v{stv + 15}, {sWS}, {t2} offen offset:{(s + e) * 256} sc1" for e in range(4)]))
        o = []
        if t % 4 == 0:
            o.append(f"s_xor_b32 {t0}, {t1}, {t * 1024}")
        o.append(f"buffer_load_dwordx4 {V(XF + 4 * t)}, {vL16}, {sWS}, {t0} offen offset:{(t % 4) * 1024} sc1{ntm('X')}")
        items.append(I(o))
    return setup, items


def attach(groups, items, start=0, per=1):
    items = list(items)
    for n in range(start, len(groups)):
        for _ in range(per):
            if items:
                groups[n] = groups[n] + I(items.pop(0))
    assert not items
    return groups


def stats_sum(stv, vc=None):
    o = []
    for st in (8, 4, 2, 1):
        for i in range(st):
            o.append(f"v_add_f32 v{stv + i}, v{stv + i}, v{stv + i + st}")
    if vc:
        o += [[f"v_cmp_u_f32 vcc, v{stv}, v{stv}", f"v_mov_b32 v{stv + 1}, v{stv}", "s_nop 0", f"v_cndmask_b32_e64 {vc}, {vc}, -1, vcc"], f"v_permlane32_swap_b32 v{stv}, v{stv + 1}"]
    else:
        o += [f"v_mov_b32 v{stv + 1}, v{stv}", "s_nop 0", f"v_permlane32_swap_b32 v{stv}, v{stv + 1}"]
    return [I(x) for x in o]


def prologue():
    P("s_cmp_ge_u32 s2, 256")
    P("s_cbranch_scc1 L_end")
    P.add(tick("s.start"))
    P("s_load_dwordx16 s[64:79], s[0:1], 0")
    P("s_load_dwordx4 s[80:83], s[0:1], 64")
    P("s_load_dwordx2 s[84:85], s[0:1], 80")
    P(f"v_lshrrev_b32 {x0}, 6, v0")
    P("v_and_b32 v0, 63, v0")
    P(f"v_readfirstlane_b32 {sW}, {x0}")
    P("s_and_b32 s3, s2, 7")
    P(f"s_lshl_b32 {sC}, s3, 1")
    P("s_bfe_u32 s3, s2, 0x10003")
    P(f"s_or_b32 {sC}, {sC}, s3")
    P(f"s_lshr_b32 {sM}, s2, 4")
    if opt("MX", 0):
        P(f"s_xor_b32 {sM}, {sM}, {opt('MX', 0)}")
    P(f"v_lshlrev_b32 {vL16}, 4, {vL}")
    P(f"s_lshl_b32 {sT}, {sC}, 2")
    P(f"s_add_u32 {sT}, {sT}, {sW}")
    P(f"v_lshrrev_b32 {x0}, 3, {vL}")
    P(f"v_xor_b32 {x2}, {x0}, {vL}")
    P(f"v_and_b32 {x2}, 7, {x2}")
    P(f"v_lshlrev_b32 {x2}, 4, {x2}")
    P(f"v_lshl_add_u32 {vX0}, {x0}, 10, {x2}")
    P(f"v_xor_b32 {vX1}, 16, {vX0}")
    P(f"v_lshrrev_b32 {x1}, 5, {vL}")
    P(f"v_lshrrev_b32 {voQ}, 2, {vL}")
    P(f"v_mul_u32_u24 {voQ}, 3072, {voQ}")
    P(f"v_and_b32 {x0}, 0x30, {vL16}")
    P(f"v_add_u32 {voQ}, {voQ}, {x0}")
    P(f"s_lshl_b32 {t5}, s3, 1")
    P(f"s_and_b32 {t0}, {sM}, 1")
    P(f"s_or_b32 {t5}, {t5}, {t0}")
    P(f"s_bfe_u32 {t0}, {sM}, 0x20001")
    P(f"s_xor_b32 {t5}, {t5}, {t0}")
    ROT = opt("ROT", 0)
    if ROT == 0:
        P(f"s_mov_b32 {t5}, 0")
    elif ROT == 1:
        P(f"s_and_b32 {t5}, {t5}, 1")
        P(f"s_lshl_b32 {t5}, {t5}, 1")
    elif ROT == 2:
        P(f"s_lshl_b32 {t5}, {t5}, 1")
    elif ROT == 3:
        P(f"s_and_b32 {t5}, {t5}, 1")
    elif ROT == 4:
        P(f"s_lshr_b32 {t5}, {sM}, 1")
    elif ROT == 5:
        P(f"s_lshr_b32 {t5}, {sM}, 1")
        P(f"s_lshl_b32 {t0}, s3, 2")
        P(f"s_xor_b32 {t5}, {t5}, {t0}")
    elif ROT == 6:
        P(f"s_and_b32 {t5}, {sM}, 7")
    elif ROT == 7:
        P(f"s_lshr_b32 {t5}, {sM}, 2")
        P(f"s_lshl_b32 {t5}, {t5}, 1")
    elif ROT == 8:
        P(f"s_lshl_b32 {t5}, {t5}, 1")
        P(f"s_lshr_b32 {t0}, {sM}, 3")
        P(f"s_or_b32 {t5}, {t5}, {t0}")
    if opt("ROTX", 0):
        P(f"s_and_b32 {t0}, s2, 7")
        P(f"s_xor_b32 {t5}, {t5}, {t0}")
    P(f"s_lshl_b32 {t3}, {sT}, 15")
    P(f"s_mul_i32 {t4}, {sW}, {16 * 3072}")
    P(f"s_lshl_b32 {d2}, {sM}, 6")
    P(f"s_add_u32 {t4}, {t4}, {d2}")
    P(f"s_lshl_b32 {d2}, {sW}, 10")
    P(f"s_lshl_b32 {d3}, {sW}, 14")
    def srd(n, src, size):
        P(f"s_mov_b64 s[{n}:{n + 1}], s[{src}:{src + 1}]")
        P(f"s_mov_b32 s{n + 2}, {size}")
        P(f"s_mov_b32 s{n + 3}, 0x00020000")
    ini = init_l0()
    P.add(I(ini[0]))
    srd(28, 84, 64 * MB)
    srd(8, 64, 2 * MB)
    srd(12, 66, 512 * 1536 * 2)
    IP = [int(c) for c in OPT.get("IP", "11020")]
    assert sum(IP) == 4
    global INI
    INI = ini[1:5]
    H3 = opt("H3", 0)
    h3 = I([f"s_lshr_b32 {sTI}, s2, 3", f"s_cmp_ge_u32 {sM}, 8", f"s_cselect_b32 {u0}, 4, 0", f"s_sub_u32 {sTI}, {sTI}, {u0}", f"s_lshl_b32 {sTI}, {sTI}, 2", f"s_add_u32 {sTI}, {sTI}, {sW}",
            f"s_lshr_b32 {u0}, {sM}, 1", f"s_cmp_eq_u32 {u0}, 3", f"s_cselect_b32 {sTI}, 0x10000, {sTI}"]) if X3 or H3 else []
    if H3:
        h3 += help3("a232", "v23", u0)
    P.add(I(ini[5:] + INI[:IP[0]] + (h3 if H3 == 3 else []) + x0_items(0) + w0_items(0) + (h3 if H3 == 2 else []) + INI[IP[0]:IP[0] + IP[1]] + x0_items(1) + w0_items(1) + INI[IP[0] + IP[1]:sum(IP[:3])]))
    if H3 < 2:
        P.add(h3)
    INI = [INI[sum(IP[:3]):sum(IP[:4])], INI[sum(IP[:4]):]]
    P.add(tick("s.c0"))
    srd(44, 82, 256)
    P(f"s_getreg_b32 {sMODE}, hwreg(HW_REG_XCC_ID, 0, 4)")
    P(f"s_or_b32 {sMODE}, {sMODE}, 0x10")
    P.add(lead_init())
    srd(16, 68, 512 * 512 * 2)
    srd(20, 72, 512 * 1792 * 2)
    srd(24, 76, 1792 * 512 * 2)
    srd(32, 80, 2 * MB)
    srd(36, 78, 1024)
    srd(40, 74, 3584)
    P(f"s_lshr_b32 {u0}, s2, 2")
    P(f"s_xor_b32 {u0}, {u0}, s2")
    P(f"s_bfe_u32 {sRR}, {u0}, 0x20003")
    if not (X3 or H3):
        P(f"s_mov_b32 {sRT}, 1000")
    if not opt("RR", 1):
        P(f"s_mov_b32 {sRR}, 0")
    P(f"v_bfe_u32 {x0}, {vL}, 2, 2")
    P(f"v_lshl_add_u32 {x0}, {x1}, 3, {x0}")
    P(f"v_lshlrev_b32 {x0}, 6, {x0}")
    P(f"v_bfe_u32 {x2}, {vL}, 4, 1")
    P(f"v_lshl_add_u32 {x0}, {x2}, 5, {x0}")
    P(f"v_and_b32 {x2}, 1, {vL}")
    P(f"v_lshl_add_u32 {x0}, {x2}, 4, {x0}")
    P(f"v_bfe_u32 {x2}, {vL}, 1, 1")
    P(f"v_lshl_add_u32 {vTR}, {x2}, 3, {x0}")
    P(f"v_add_u32 {vTR1}, 0x10000, {vTR}")
    P(f"v_lshl_add_u32 {vTP}, {x1}, 9, {vTR}")
    P(f"v_add_u32 {vTP1}, 0x10000, {vTP}")
    P(f"s_and_b32 {t0}, {sM}, 1")
    P(f"s_lshl_b32 {t0}, {t0}, 1")
    P(f"s_lshl_b32 {sTP}, {sC}, 2")
    P(f"s_add_u32 {sTP}, {sTP}, {t0}")
    P(f"s_lshr_b32 {t0}, {sW}, 1")
    P(f"s_add_u32 {sTP}, {sTP}, {t0}")
    P(f"s_and_b32 {u0}, {sM}, 14")
    P(f"s_and_b32 {u1}, {sW}, 1")
    P(f"s_add_u32 {sCT}, {u0}, {u1}")
    P(f"s_mul_i32 {sW2B}, {t0}, {896 * 1024}")
    P(f"s_lshl_b32 {t0}, {u1}, 14")
    P(f"s_add_u32 {sW2B}, {sW2B}, {t0}")
    P(f"s_lshl_b32 {u0}, {u0}, 6")
    P(f"s_add_u32 {sW2B}, {sW2B}, {u0}")
    P(f"v_bfe_u32 {x0}, {vL}, 2, 3")
    P(f"v_and_b32 {x2}, 0x30, {vL16}")
    P(f"v_mul_u32_u24 {vo1}, 3584, {x0}")
    P(f"v_lshl_add_u32 {vo2}, {x0}, 10, {x2}")
    P(f"v_add_u32 {vo1}, {vo1}, {x2}")
    P(f"v_lshl_add_u32 {vo1}, {x1}, 6, {vo1}")
    P(f"v_xor_b32 {x0}, {u1}, {x1}")
    P(f"v_lshl_add_u32 {vo2}, {x0}, 6, {vo2}")
    P(f"v_and_b32 {x0}, 31, {vL}")
    P(f"v_lshlrev_b32 {x2}, 2, {x1}")
    P(f"v_sub_u32 {x0}, {x0}, {x2}")
    for r in range(16):
        P(f"v_cmp_le_i32_e64 {sMASK(r)}, {(r & 3) + 8 * (r >> 2)}, {x0}")
    P(f"v_mov_b32 {x0}, 0xffff")
    P(f"v_mov_b32 {x2}, 0xffff0000")
    for d in range(8):
        P(f"v_cndmask_b32_e64 v16, 0, {x0}, {sMASK(2 * d)}")
        P(f"v_cndmask_b32_e64 v17, 0, {x2}, {sMASK(2 * d + 1)}")
        P(f"v_or_b32 v16, v16, v17")
        P(f"v_accvgpr_write_b32 a{240 + d}, v16")


def init_kv(L, tag):
    it = []
    if L:
        it.append(I(f"s_add_u32 {u2}, {u2}, {LSTRIDE}"))
    for j in range(4):
        it.append([Ins(f"buffer_store_dwordx4 a[236:239], {vL16}, {sWS}, {u2} offen offset:{1024 * j} sc1{NK}", xdst=[tag])])
    return it


def init_l0():
    it = [I([f"v_accvgpr_write_b32 a{236 + i}, -1" for i in range(4)] +
            [f"s_lshl_b32 {u2}, {sT}, 4", f"s_add_u32 {u2}, {u2}, {sM}", f"s_lshl_b32 {u2}, {u2}, 12", f"s_add_u32 {u2}, {u2}, {LB(0) + KV_O}",
             "v_mov_b32 v20, 0", f"s_lshl_b32 {u0}, {sC}, 4", f"s_add_u32 {u0}, {u0}, {sM}", f"s_lshl_b32 {sFP}, {u0}, 7", f"s_add_u32 {sFP}, {sFP}, {MBOX}",
             f"s_lshl_b32 {u0}, {u0}, 2", f"s_add_u32 {sFA}, {u0}, {sW}",
             f"s_lshl_b32 {t1}, {sC}, 9", f"s_lshl_b32 {u0}, {sM}, 2", f"s_add_u32 {t1}, {t1}, {u0}", f"s_add_u32 {t1}, {t1}, {ARR}",
             f"v_lshrrev_b32 v21, 4, {vL}", f"v_and_b32 {vPO}, 15, {vL}", f"v_lshlrev_b32 {vPO}, 2, {vPO}", f"v_lshl_add_u32 v22, v21, 7, {vPO}",
             f"s_or_b32 {t2}, {sM}, {sW}"])]
    it += init_kv(0, "init")
    lsk = P.label()
    it.append(I([f"s_cmp_lg_u32 {t2}, 0", f"s_cbranch_scc1 {lsk}", f"buffer_store_dword v20, v22, {sWS}, {t1} offen sc1", lsk + ":"]))
    it.append([Ins(f"buffer_store_dword v20, off, {sWS}, {sFP} sc1", xdst=["init"])])
    return it


def lead_init():
    lsk = P.label()
    return I([f"s_cmp_lg_u32 {t2}, 0", f"s_cbranch_scc1 {lsk}",
              f"s_min_u32 {u0}, {sC}, 2", f"v_cmp_ge_u32 vcc, {u0}, v21", f"v_cndmask_b32 {vPO}, {vPO}, v22, vcc",
              f"v_lshlrev_b32 v21, 2, {vL}", f"v_lshlrev_b32 v22, 7, {vL}", f"s_lshl_b32 {u0}, {sC}, 8", f"s_add_u32 {u0}, {u0}, {FPACK}", f"s_lshl_b32 {u1}, {sC}, 13",
              f"buffer_store_dword v20, v21, {sWS}, {u0} offen sc1", f"buffer_store_dword v20, v22, {sWS}, {u1} offen sc1", lsk + ":"])


def arrive(vd, so):
    return ["s_mov_b64 exec, 7", f"buffer_store_dword {vd}, {vPX}, {sWS}, {so} offen sc1", "s_mov_b64 exec, -1"]


def misc_l0():
    it = []
    it.append(I([f"v_and_b32 v21, 31, {vL}", f"v_lshrrev_b32 v22, 5, {vL}", "v_lshlrev_b32 v21, 10, v21", "v_lshlrev_b32 v22, 4, v22",
                 "v_add_u32 v21, v21, v22",
                 f"s_lshl_b32 {u0}, {sTP}, 15", f"s_lshl_b32 {u1}, {sCT}, 6", f"s_add_u32 {u0}, {u0}, {u1}"]))
    it.append(I(f"buffer_load_dwordx4 a[224:227], v21, {sX}, {u0} offen"))
    it.append(I(f"buffer_load_dwordx4 a[228:231], v21, {sX}, {u0} offen offset:32"))
    it.append(I(f"buffer_load_dwordx4 a[248:251], v22, {sB2}, {u1} offen"))
    it.append(I(f"buffer_load_dwordx4 a[252:255], v22, {sB2}, {u1} offen offset:32"))
    return it


def touch(srd, total, vt, va, st=u0, sh=7, grp=None):
    share, pb = total // 128, 64 << sh
    it = [I([f"s_lshr_b32 {st}, s2, 3", f"s_lshl_b32 {st}, {st}, 2", f"s_add_u32 {st}, {st}, {sW}", f"s_mul_i32 {st}, {st}, {share}",
             f"v_lshlrev_b32 {va}, {sh}, {vL}"])]
    if X3:
        share = (total + 112 * 128 - 1) // (112 * 128) * 128
        it = [I([f"s_mul_i32 {st}, {sTI}, {share}", f"v_lshlrev_b32 {va}, {sh}, {vL}"])]
    if grp is not None:
        it[0] += I([f"s_bitcmp{grp}_b32 s2, {opt('GB', 3)}", f"s_cselect_b32 {st}, {st}, {OOB}"])
    pos, base = 0, 0
    while pos < share:
        a = min(pos, share - pb)
        assert a >= 0
        o = []
        if a - base >= 4096:
            o.append(f"s_add_u32 {st}, {st}, {a - base}")
            base = a
        o.append(f"buffer_load_dword {vt}, {va}, {srd}, {st} offen offset:{a - base}{ntm(srd)}")
        it.append(I(o))
        pos += pb
    it[1] = it[0] + it[1]
    return it[1:]


def help3(vt, va, st):
    return I([f"s_mul_i32 {st}, {sTI}, 14336", f"v_min_u32 {va}, 13, {vL}", f"v_lshlrev_b32 {va}, 10, {va}",
              f"buffer_load_dword {vt}, {va}, {sWQ}, {st} offen offset:384"])


def touch_ab(vt, va, st, odd=0):
    it = [I([f"s_lshr_b32 {st}, s2, 3", f"s_lshl_b32 {st}, {st}, 2", f"s_add_u32 {st}, {st}, {sW}", f"s_mul_i32 {st}, {st}, 14336",
             f"v_lshrrev_b32 {va}, 2, {vL}", f"v_lshlrev_b32 {va}, 8, {va}", f"buffer_load_dword {vt}, {va}, {sW1}, {st} offen offset:{128 * odd}"])]
    for d in (4096, 4096, 2048):
        it.append(I([f"s_add_u32 {st}, {st}, {d}", f"buffer_load_dword {vt}, {va}, {sW1}, {st} offen offset:{128 * odd}"]))
    return it


def touch_qkv(va, vb):
    return [I([f"s_lshr_b32 {u0}, s2, 3", f"s_lshl_b32 {u0}, {u0}, 2", f"s_add_u32 {u0}, {u0}, {sW}", f"s_mul_i32 {u0}, {u0}, {4 * 3072}",
               f"v_lshrrev_b32 {va}, 4, {vL}", f"v_mul_u32_u24 {va}, 3072, {va}", f"v_and_b32 {vb}, 15, {vL}", f"v_lshl_add_u32 {va}, {vb}, 6, {va}",
               f"v_lshl_add_u32 {vb}, {vb}, 6, {va}",
               f"buffer_load_dword {vb}, {vb}, {sWQ}, {u0} offen offset:1024"] +
              ([f"buffer_load_dword {va}, {va}, {sWQ}, {u0} offen"] if opt("TKV", 0) > 1 else []))]


def touch_wq(vt, st):
    return [I([f"s_lshr_b32 {st}, s2, 3", f"s_mul_i32 {st}, {st}, {16 * 3072}", f"s_lshl_b32 {d0}, {sW}, 8", f"s_add_u32 {st}, {st}, {d0}",
               f"buffer_load_dword {vt}, {voQ}, {sWQ}, {st} offen"]),
            I(f"buffer_load_dword {vt}, {voQ}, {sWQ}, {st} offen offset:128")]


aK, aV, aQ, RING, STV, EX, TABS = 16, 32, 48, 64, 96, 112, 116
HB = XF


def kv_epilogue(L):
    r = x0
    it = []
    for i in range(16):
        it.append(f"v_mul_f32 v{aK + i}, v{aK + i}, {r}")
    for i in range(8):
        it.append(f"v_cvt_pk_bf16_f32 v{aK + i}, v{aK + 2 * i}, v{aK + 2 * i + 1}")
    it.append([f"s_lshl_b32 {u0}, {sT}, 4", f"s_add_u32 {u0}, {u0}, {sM}", f"s_lshl_b32 {u0}, {u0}, 12", f"s_add_u32 {u0}, {u0}, {LB(L) + KV_O}"])
    it.append(f"buffer_store_dwordx4 {V(aK)}, {vL16}, {sWS}, {u0} offen sc1{NK}")
    it.append(f"buffer_store_dwordx4 {V(aK + 4)}, {vL16}, {sWS}, {u0} offen offset:2048 sc1{NK}")
    for i in range(16):
        it.append(f"v_mul_f32 v{aV + i}, v{aV + i}, v{STV + i}")
    for i in range(8):
        it.append(f"v_cvt_pk_bf16_f32 v{aV + i}, v{aV + 2 * i}, v{aV + 2 * i + 1}")
    it.append(f"buffer_store_dwordx4 {V(aV)}, {x2}, {sWS}, {u0} offen offset:1024 sc1{NK}")
    it.append(f"buffer_store_dwordx4 {V(aV + 4)}, {x2}, {sWS}, {u0} offen offset:1536 sc1{NK}")
    it.append([f"s_mul_i32 {u1}, {sW}, {PITCH}", f"s_add_u32 {u1}, {u1}, {SL + 8 * PITCH}"])
    it.append(f"v_add_u32 {x1}, {u1}, {vL16}")
    it.append(f"v_add_u32 {x2}, {u1}, {x2}")
    it.append(f"ds_write_b128 {x1}, {V(aK)}")
    it.append(f"ds_write_b128 {x1}, {V(aK + 4)} offset:2048")
    it.append(f"ds_write_b128 {x2}, {V(aV)} offset:1024")
    it.append(f"ds_write_b128 {x2}, {V(aV + 4)} offset:1536")
    it.append(f"v_mul_f32 {r}, {fc(0.25 * LOG2E)}, {r}")
    return [I(x) for x in it]


def r_bcast():
    it = [[f"s_lshl_b32 {u0}, {sW}, 7", f"s_add_u32 {u0}, {u0}, {RBC}"],
          f"v_and_b32 {x1}, 31, {vL}", f"v_lshl_add_u32 {x1}, {x1}, 2, {u0}", f"ds_write_b32 {x1}, {x0}",
          f"v_lshrrev_b32 {x2}, 5, {vL}", f"v_lshl_add_u32 {x1}, {x2}, 4, {u0}"]
    for g in range(4):
        it.append(f"ds_read_b128 {V(STV + 4 * g)}, {x1} offset:{32 * g}")
    it += [f"v_lshlrev_b32 {x2}, 8, {x2}", f"v_and_b32 {x1}, 0xf0, {vL16}", f"v_add_u32 {x2}, {x2}, {x1}",
           f"v_bfe_u32 {x1}, {vL}, 4, 1", f"v_lshl_add_u32 {x2}, {x1}, 11, {x2}"]
    return [I(x) for x in it]


def kv_groups(ts, D=3, lo=0, hi=32):
    g = []
    for k in ts:
        it = []
        t = k + D
        if lo <= t < hi:
            it += tr1(RING + 8 * (t % 4), R0 + t * 1024) + tr1(RING + 8 * (t % 4) + 4, R1 + t * 1024)
        it += I([f"{MF} {V(aK, 16)}, {V(RING + 8 * (k % 4))}, {V(XF + 4 * k)}, {V(aK, 16) if k else 0}",
                 f"{MF} {V(aV, 16)}, {V(XF + 4 * k)}, {V(RING + 8 * (k % 4) + 4)}, {V(aV, 16) if k else 0}"])
        g.append(it)
    return g


def kv_pre(t0_, n=3):
    o = []
    for t in range(t0_, t0_ + n):
        o += tr1(RING + 8 * (t % 4), R0 + t * 1024) + tr1(RING + 8 * (t % 4) + 4, R1 + t * 1024)
    return o


def tab_reads(js, va):
    return [I(f"v_add_u32 {va}, {TAB0}, {vL16}")] + [I(f"ds_read_b128 {V(TABS + 4 * j)}, {va} offset:{1024 * j}") for j in js]


def halo_setup(L):
    o = []
    for i, (back, sk, sv) in enumerate(((8, d1, d2), (4, d3, t5))):
        o += [f"s_sub_u32 {u0}, {sT}, {back}", f"s_cselect_b32 {u0}, 0, {u0}", f"s_cselect_b32 {u1}, 0x200, -1", f"s_cselect_b32 {u2}, {OOB}, 0",
              f"s_lshl_b32 {u0}, {u0}, 4", f"s_add_u32 {u0}, {u0}, {sM}", f"s_lshl_b32 {u0}, {u0}, 12", f"s_add_u32 {sk}, {u0}, {LB(L) + KV_O}",
              f"s_add_u32 {sv}, {sk}, {u2}", f"v_and_b32 v{STV + i}, {u1}, {vL16}"]
    return [I(o)]


def halo_loads():
    o = []
    for i, (sk, sv) in enumerate(((d1, d2), (d3, t5))):
        for j in range(4):
            va, so = (f"v{STV + i}", sk) if j % 2 == 0 else (vL16, sv)
            o.append(f"buffer_load_dwordx4 {V(HB + 16 * i + 4 * j)}, {va}, {sWS}, {so} offen offset:{1024 * j} sc1{ntm('KV')}")
    return [I(x) for x in o]


def lead_try(chk, iss, ta, tb, final=False):
    lsk, lag, lp = P.label(), P.label(), P.label()
    o = [f"s_cmp_lg_u32 {t2}, 0", f"s_cbranch_scc1 {lsk}"]
    if final:
        o += [f"s_mov_b32 {sCNT}, 30000"]
    if chk:
        o += [f"v_accvgpr_read_b32 {ta}, {chk}"] + ([lp + ":"] if final else [])
        o += [f"v_cmp_eq_u32 vcc, 0, {ta}", f"s_cbranch_vccnz {lag}",
              f"v_cmp_ne_u32 vcc, {sMODE}, {ta}", f"v_lshlrev_b32 {tb}, 7, {vL}", f"s_lshl_b32 {u1}, {sC}, 2", f"s_and_b32 {u0}, vcc_lo, 0xffff", f"s_cselect_b32 {t2}, 1, 2",
              f"v_mov_b32 {ta}, {t2}", "s_mov_b64 exec, 0xffff", f"buffer_store_dword {ta}, {tb}, {sWS}, {sFP} offen sc1",
              "s_mov_b64 exec, 1", f"buffer_store_dword {ta}, off, {sDBG}, {u1} sc1", "s_mov_b64 exec, -1"]
        if final:
            OUTL.extend(I([lag + ":", f"v_mov_b32 {ta}, {sMODE}", f"v_lshrrev_b32 {tb}, 7, {vPO}", f"v_sub_u32 {tb}, {sC}, {tb}", f"v_lshlrev_b32 {tb}, 2, {tb}"] + arrive(ta, t1) +
                          [f"buffer_load_dword {ta}, {vPO}, {sWS}, {t1} offen sc1", f"buffer_load_dword {tb}, {tb}, {sDBG}, 0 offen sc1",
                           f"v_or_b32 {ta}, {ta}, {tb}", f"s_sub_u32 {sCNT}, {sCNT}, 1", f"s_cbranch_scc0 {lp}", "s_endpgm"]))
        elif iss:
            o += [f"s_branch {lsk}", lag + ":"]
        else:
            o += [lag + ":"]
    if iss:
        o += [f"buffer_load_dword {iss}, {vPO}, {sWS}, {t1} offen sc1"]
    return I(o + [lsk + ":"])


def handshake_issue():
    return [I([f"s_buffer_load_dword {t3}, {sWS}, {sFP} glc"])]


def handshake_check():
    b, c = f"v{STV + 3}", f"v{STV + 4}"
    ls, lr, lp = P.label(), P.label(), P.label()
    l2 = P.label()
    OUTL.extend(I([ls + ":", f"s_mov_b32 {sCNT}, 30003", f"v_mov_b32 {b}, {sMODE}", lp + ":", f"s_buffer_load_dword {t3}, {sWS}, {sFP} glc",
                   f"s_cmp_lg_u32 {t3}, 0", f"s_cbranch_scc1 {lr}",
                   f"s_and_b32 {u0}, {sCNT}, 3", f"s_or_b32 {u0}, {u0}, {sW}", f"s_cbranch_scc1 {l2}"] + arrive(b, t1) +
                  [l2 + ":", f"s_sub_u32 {sCNT}, {sCNT}, 1", f"s_cbranch_scc0 {lp}", "s_endpgm"]))
    o = [f"s_cmp_eq_u32 {t3}, 0", f"s_cbranch_scc1 {ls}", lr + ":"]
    it = [I(o)]
    o = [f"s_cmp_eq_u32 {t3}, 1"]
    if OPT.get("SLOW"):
        o.append("s_cmp_eq_u32 0, 0")
    o += [f"s_cselect_b32 {sMODE}, 0, 1", f"s_cselect_b32 {u0}, 7, {opt('FSH', 2)}", f"s_cselect_b32 {u1}, 0, {FPACK if opt('FSH', 2) == 2 else 0}",
          f"s_lshl_b32 {sFA}, {sFA}, {u0}", f"s_add_u32 {sFA}, {sFA}, {u1}",
          f"s_lshl_b32 {sFP}, {sC}, 6", f"s_lshl_b32 {sFP}, {sFP}, {u0}", f"s_add_u32 {sFP}, {sFP}, {u1}"]
    it.append(I(o))
    it.append(I([f"s_lshr_b32 {u1}, {sW}, 1", f"s_lshl_b32 {u1}, {u1}, 2", f"s_and_b32 {u2}, {sW}, 1", f"s_lshl_b32 {u3}, {u2}, 1", f"s_add_u32 {u1}, {u1}, {u3}",
                 f"v_and_b32 {b}, 14, {vL}", f"v_and_b32 {c}, 1, {vL}", f"v_lshl_add_u32 {b}, {b}, 2, {c}", f"v_add_u32 {b}, {u1}, {b}",
                 f"v_lshlrev_b32 {vPX}, {u0}, {b}"]))
    if P3N:
        it.append(I([f"s_lshr_b32 {u1}, {sW}, 1", f"s_xor_b32 {u1}, {u1}, {sRR}", f"s_and_b32 {u1}, {u1}, 1", f"s_add_u32 {u1}, {u1}, {u3}", f"s_lshl_b32 {u1}, {u1}, 4",
                     f"s_and_b32 {u2}, {sTP}, 2", f"s_add_u32 {u1}, {u1}, {u2}",
                     f"v_and_b32 {b}, 6, {vL}", f"v_lshl_add_u32 {b}, {b}, 1, {c}", f"v_add_u32 {b}, {u1}, {b}", f"v_lshlrev_b32 {vPO}, {u0}, {b}"]))
    else:
        it.append(I([f"s_lshl_b32 {u2}, {u2}, 5", f"s_and_b32 {u1}, {sTP}, 3", f"s_add_u32 {u1}, {u1}, {u2}",
                     f"v_and_b32 {b}, 7, {vL}", f"v_lshl_add_u32 {b}, {b}, 2, {u1}", f"v_lshlrev_b32 {vPO}, {u0}, {b}"]))
    it.append(I([f"s_lshr_b32 {u1}, {sW}, 1", f"s_mul_i32 {u1}, {u1}, 28", f"s_and_b32 {u2}, {sTP}, 2", f"s_add_u32 {u1}, {u1}, {u2}",
                 f"v_bfe_u32 {b}, {vL}, 1, 3", f"v_min_u32 {b}, 6, {b}", f"v_lshl_add_u32 {b}, {b}, 2, {c}", f"v_add_u32 {b}, {u1}, {b}",
                 f"v_lshlrev_b32 {vPH}, {u0}, {b}"]))
    return it


def phase1(L):
    ext = I([f"{MF} {V(aK, 16)}, {V(TABS)}, {V(EX)}, {V(aK, 16)}", f"{MF} {V(aV, 16)}, {V(EX)}, {V(TABS + 4)}, {V(aV, 16)}"])
    D = 6
    qg = []
    for k in range(32):
        it = tr1(RING + 4 * ((k + D) % 8), R2 + (k + D) * 1024) if k + D < 32 else []
        qg.append(it + I(f"{MF} {V(aQ, 16)}, {V(RING + 4 * (k % 8))}, {V(XF + 4 * k)}, {V(aQ, 16) if k else 0}"))
    qpre = []
    for t in range(D):
        qpre += tr1(RING + 4 * t, R2 + t * 1024)
    HL = opt("HL", 20)
    if L == 0:
        AS, S1, S2, CK, CV, CF = 124, 96, 100, 104, 108, 48
        P.add(asel(AS))
        for i in range(4):
            P(f"v_mov_b32 v{S2 + i}, 0")
        P(f"v_lshrrev_b32 {x0}, 5, {vL}")
        P(f"v_bfe_u32 {x1}, {vL}, 3, 1")
        P(f"v_xor_b32 {x0}, {x0}, {x1}")
        P(f"v_xor_b32 {x0}, {x0}, {vL}")
        P(f"v_and_b32 {x0}, 7, {x0}")
        P(f"v_and_b32 {x1}, 31, {vL}")
        P(f"v_lshlrev_b32 {x1}, 7, {x1}")
        P(f"v_lshl_add_u32 {x0}, {x0}, 4, {x1}")
        P(f"s_add_u32 {t0}, {d3}, {SL}")
        P(f"v_add_u32 v{XA}, {t0}, {x0}")
        for k in range(1, 4):
            P(f"v_xor_b32 v{XA + k}, {32 * k}, v{XA}")
        P(f"v_add_u32 {x1}, {d2}, {vTR}")
        P.add(table_addr(x2))
        P(f"v_mov_b32 v118, {sMODE}")
        P(f"v_mul_u32_u24 {vPX}, 640, {vL}")
        P.add(tick("s.setup"))
        TS = opt("TS", 5)
        tw2 = touch(sW2, 1792 * 1024, "a232", vPH, t0, TS)
        tw2b = touch(sW2, 1792 * 1024, "a232", "v119", t0, TS)
        TW = [int(c, 16) for c in OPT.get("TW", "000000003")]
        I1 = [int(c) for c in OPT.get("I1", "001111000")]
        i1 = init_kv(1, "init1")
        i1 = [i1[0] + i1[1]] + i1[2:]
        if opt("NOI1", 0):
            i1 = []
        wq = sum((w0_items(h, (2,), "wq") for h in range(8)), [])
        WQ1 = opt("WQ1", 5)
        strm = {h: x0_items(h) + w0_items(h) for h in range(2, 8)}
        strm.update({8: wq[:WQ1], 9: wq[WQ1:], 10: []})
        strm[2] = INI[0] + strm[2]
        strm[3] = INI[1] + strm[3]
        if opt("TQ", 4):
            strm[opt("TQ", 4)] += touch_wq("a232", u0)
        for n in range(2, 11):
            strm[n] = i1[:I1[n - 2]] + strm[n] + tw2[:TW[n - 2]]
            tw2, i1 = tw2[TW[n - 2]:], i1[I1[n - 2]:]
        assert not i1
        SIG = 3 if INI[1] else (2 if INI[0] else opt("SIG", 1))
        LT0 = opt("LT0", SIG + 1)
        def sync(h):
            o = [need_ins(f"x{h}")]
            o += [f"ds_read_b128 {V(XF + 16 * h + 4 * t)}, v{XA + t} offset:{4096 * (h & 3)}" for t in range(4)]
            if h >= LT0:
                o += lead_try(f"a{233 + (h & 1)}" if h >= LT0 + 2 else None, f"a{233 + (h & 1)}", "v114", "v115")
            o += [need_ins(f"kv{h}")] + tr("v", CF + 8 * (h & 1), x1, R0 + 4096 * h) + tr("v", CF + 8 * (h & 1) + 4, x1, R1 + 4096 * h)
            if h >= SIG and (h - SIG) % opt("SIGS", 2) == 0:
                lsk = P.label()
                o += [f"s_cmp_lg_u32 {sW}, {1 + (h >> 1) % 3}", need_ins("init"), "s_barrier", f"s_cbranch_scc1 {lsk}"] + arrive("v118", t1) + [lsk + ":"]
            else:
                o += ["s_barrier"]
            return I(o) + tick(f"s.b{h}")
        def stats(h):
            o = []
            for t in range(4 * h, 4 * h + 4):
                o.append(I([f"v_dot2c_f32_bf16 v{S2 + j}, v{XF + 4 * t + j}, v{XF + 4 * t + j}" for j in range(4)] +
                           [f"{MF16} {V(S1)}, {V(AS)}, {V(XF + 4 * t)}, {V(S1) if t else 0}"]))
            return [I([f"{MF16} {V(CK)}, {V(AS)}, {V(CF + 8 * (h & 1))}, {V(CK) if h else 0}",
                       f"{MF16} {V(CV)}, {V(AS)}, {V(CF + 8 * (h & 1) + 4)}, {V(CV) if h else 0}"]) + o[0], o[1] + o[2], o[3]]
        P.add(sync(0))
        P.add(kv_pre(0))
        P.add(I(spread(stats(0), strm[2], 0.0, 0.7)))
        g = kv_groups(range(32))
        for i in range(8):
            lt = strm[i + 3]
            if i < 7:
                g[4 * i] += sync(i + 1)
                n = (len(lt) + 2) // 3
                for e in range(3):
                    g[4 * i + 1 + e] += I(lt[n * e:n * e + n]) + stats(i + 1)[e]
            else:
                attach(g, lt, 28, (len(lt) + 3) // 4)
        fin = [f"v_add_f32 v{S2}, v{S2}, v{S2 + 1}", f"v_add_f32 v{S2 + 2}, v{S2 + 2}, v{S2 + 3}", f"v_add_f32 v{S2}, v{S2}, v{S2 + 2}",
               f"v_mov_b32 v{S2 + 1}, v{S2}", f"v_permlane32_swap_b32 v{S2}, v{S2 + 1}", f"v_add_f32 v{S2}, v{S2}, v{S2 + 1}"]
        fin = [I(x) for x in fin] + stats_finish(f"v{S1}", f"v{S2}", f"v{S2 + 1}", f"v{S2 + 2}", EX, False, x0, None)
        P.add(I(g[:26]))
        fill = table_write(CK, 0, x2) + table_write(CV, 1, x2) + [(2, lead_try("a233", None, "v114", "v115"))] + [(2, x) for x in fin[:6]] + [barrier()] + tab_reads([0, 1], x2) + fin[6:] + r_bcast()
        P.add(weave(g[26:], fill))
        P.add(tick("s.kv"))
        P.need("init1")
        P.add(ext)
        P.add(I(kv_epilogue(0)))
        P.add(lead_try("a234", None, "v116", "v117", True))
        P.add(tick("0.kv"))
        CQ = 104
        P(f"v_add_u32 {x1}, {d2}, {vTR1}")
        P.add(table_addr(x2))
        P.need("wq")
        for h in range(8):
            P.add(tr("v", 16 + 4 * h, x1, 4096 * h))
        P("s_barrier")
        P.add(qpre)
        for j in range(8):
            P(f"{MF16} {V(CQ)}, {V(AS)}, {V(16 + 4 * j)}, {V(CQ) if j else 0}")
        tw2 = tw2b[len(tw2b) - len(tw2):]
        if tw2:
            tw2[0] = I(f"v_lshlrev_b32 v119, {TS}, {vL}") + tw2[0]
        fill = [(1, x) for x in table_write(CQ, 2, x2)] + [(opt("HSI", 6), x) for x in handshake_issue()] + [(8, barrier())] + tab_reads([2], x2) \
            + [(opt("HSC", 16), x) for x in handshake_check()] + halo_setup(0) + [(HL, x) for x in halo_loads()] + misc_l0()
        if opt("T0", 0) == 1:
            fill += touch(sWO, 512 * 1024, "a232", "v119", t0, min(TS, 6)) + touch(sW1, 1792 * 1024, "a232", "v119", t0, opt("TS1", 5))
        elif opt("T0", 0) == 2:
            fill += tw2[:opt("TW2N", 0)] + touch(sW1, 1792 * 1024, "a232", "v119", t0, opt("TS1", 5))
        elif opt("QT", 0):
            fill += tw2 + touch(sWO, 512 * 1024, "a232", "v119", t0, min(TS, 6))
        P.add(tick("0.qs"))
        P.add(weave(qg, fill))
    else:
        if not opt("WQE", 0) and not opt("WQ3", 0):
            P.add(wq_setup())
            P.add(I(wq_items([2])))
        P.add(I(tab_reads([0, 1, 2], x2)))
        back, vc = P.label(), (f"v{aQ}" if EF & 8 else None)
        P.put(back)
        P.add(kv_pre(0))
        xs, xi = x_loads(LB(1) + XIN_O, LB(1) + ST2_O, STV)
        NB = opt("NB", 14)
        P.add(xs)
        P.add(poll(vPX, x1, 8))
        P.add(tick("1.pollx"))
        P.add(I(xi[:NB]))
        P.add(tick("1.xiss"))
        s = [f"v{STV + i}" for i in range(4)]
        fill = stats_sum(STV, vc) + stats_finish(s[0], s[1], s[2], s[3], EX, False, x0, None) + r_bcast()
        if opt("TWO", 0):
            xi += touch(sWO, 512 * 1024, f"v{aQ}", f"v{aQ + 1}", d0, opt("TWO", 0))
        g = attach(kv_groups(range(32)), xi[NB:] + inits("k", aQ + 4))
        if vc:
            for n, x in chain(vc, XF, 32):
                g[n] += I(x)
        P.add(weave(g, [(opt("XSP", 16) + 2, x) for x in fill]))
        if vc:
            P.add(redo(vc, back))
        P.add(ext)
        P.add(tick("1.kv"))
        P.add(barrier("wq"))
        P.add(qpre)
        fill = [(1, x) for x in kv_epilogue(1)] + halo_setup(1) + [(HL, x) for x in halo_loads()]
        P.add(weave(qg, fill))
    P(f"{MF} {V(aQ, 16)}, {V(TABS + 8)}, {V(EX)}, {V(aQ, 16)}")
```

```python
from k2_base import *
from k2_p1 import *

QF, KA, VA, LC, TMP, PM, KR, SB, DG, KD, OA0 = 16, 24, 25, 29, 31, 32, 40, 64, 160, 192, 224
VS = [112, 120, 200, 208, 216]


def q(h): return V(QF + 4 * h)
def kread(n, j, h): return f"ds_read_b128 {V(n)}, v{KA} offset:{PITCH * j + 2048 * h}"
def vread(n, j, h): return [f"ds_read_b128 {V(n + 4 * s)}, v{VA + 2 * h + s} offset:{PITCH * j + 2048 * h + 1024 + 512 * s}" for s in range(2)]
def merge(s, d): return [f"v_cndmask_b32_e64 v{s + r}, v{s + r}, v{d + r}, {sMASK(r)}" for r in range(16)]
def exps(s): return [f"v_exp_f32 v{s + i}, v{s + i}" for i in range(16)]
def cvts(s): return [f"v_cvt_pk_bf16_f32 v{s + i}, v{s + 2 * i}, v{s + 2 * i + 1}" for i in range(8)]
def split(s): return [x for i in range(8) for x in (f"v_and_b32 v{s + 8 + i}, v{s + i}, v{PM + i}", f"v_xor_b32 v{s + i}, v{s + i}, v{s + 8 + i}")]


def epi(L, h, o):
    e = [f"v_mul_f32 v{o + i}, v{o + i}, v{TMP}" for i in range(8)]
    e += [f"v_cvt_pk_bf16_f32 v{o + 8 + i}, v{o + 2 * i}, v{o + 2 * i + 1}" for i in range(4)]
    e += [xstore(f"buffer_store_dwordx4 {V(o + 8)}, {vL16}, {sWS}, {t0} offen offset:{1024 * h}", 1 << (4 * L), f"o{h}", ini=f"iO{L}")]
    return e


def att_safe(L):
    K, SA_, SB_, NM, VV, O, m = 40, 96, 112, 192, 208, 224, f"v{LC}"
    o = []
    for h in range(2):
        o += [kread(K + 4 * j, j, h) for j in range(9)]
        for ps in range(2):
            c = V(NM, 16) if ps else 0
            for j in range(8):
                s = SB_ if j % 2 == 0 else SA_
                if j == 0:
                    o.append(f"{MF} {V(SA_, 16)}, {V(K + 32)}, {q(h)}, {c}")
                o.append(f"{MF} {V(s, 16)}, {V(K + 4 * j)}, {q(h)}, {c}")
                if j == 0:
                    o += merge(s, SA_)
                if ps == 0:
                    if j == 0:
                        o.append(f"v_mov_b32 {m}, v{s}")
                    o += [f"v_max3_f32 {m}, {m}, v{s + 2 * i}, v{s + 2 * i + 1}" for i in range(8)]
                    continue
                o += vread(VV, j, h) + exps(s) + cvts(s)
                if j == 0:
                    o += vread(VV + 8, 8, h) + split(s)
                    o += [f"{MF} {V(O, 16)}, {V(VV + 8)}, {V(s + 8)}, 0", f"{MF} {V(O, 16)}, {V(VV + 12)}, {V(s + 12)}, {V(O, 16)}"]
                o += [f"{MF} {V(O, 16)}, {V(VV)}, {V(s)}, {V(O, 16)}", f"{MF} {V(O, 16)}, {V(VV + 4)}, {V(s + 4)}, {V(O, 16)}", "s_nop 15"]
            if ps == 0:
                o += [f"v_mov_b32 v{TMP}, {m}", f"v_permlane32_swap_b32 {m}, v{TMP}", f"v_max_f32 {m}, {m}, v{TMP}"]
                o += [f"v_sub_f32 v{NM + i}, 0, {m}" for i in range(16)]
        o += [f"v_rcp_f32 v{TMP}, v{O + 8}"] + epi(L, h, O)
    return I(o + ["s_waitcnt vmcnt(0)", "v_mov_b32 v56, 0"])


def phase2(L):
    P(f"s_mul_i32 {t0}, {sW}, {PITCH}")
    P(f"s_add_u32 {t0}, {t0}, {SL}")
    P(f"v_add_u32 v{KA}, {t0}, {vL16}")
    P(f"v_and_b32 {x1}, 0xf0, {vL16}")
    P(f"v_lshrrev_b32 {x2}, 5, {vL}")
    P(f"v_lshl_add_u32 {x1}, {x2}, 8, {x1}")
    P(f"v_add_u32 {x1}, {t0}, {x1}")
    P(f"s_mov_b32 vcc_lo, 0xffff0000")
    P(f"s_mov_b32 vcc_hi, 0xffff0000")
    P(kread(KD, 8, 0))
    P(kread(KD + 4, 8, 1))
    for hs in range(4):
        P(f"s_add_u32 {t1}, {t0}, {4096 - (2048 * (hs >> 1) + 1024 + 512 * (hs & 1))}")
        P(f"v_mov_b32 {x2}, {t1}")
        P(f"v_cndmask_b32 v{VA + hs}, {x1}, {x2}, vcc")
    P(f"v_lshrrev_b32 {x1}, 2, {vL}")
    P(f"v_min_u32 {x1}, 2, {x1}")
    P(f"v_lshlrev_b32 {x2}, 2, {x1}")
    P(f"v_add_u32 {x2}, {sT}, {x2}")
    P(f"v_cmp_le_u32 vcc, 8, {x2}")
    P(f"v_mul_u32_u24 {x1}, {4 * PITCH}, {x1}")
    P(f"v_and_b32 {x2}, 3, {vL}")
    P(f"v_lshl_add_u32 {x1}, {x2}, 2, {x1}")
    P(f"v_add_u32 {x1}, {t0}, {x1}")
    P(f"v_mov_b32 {x2}, 0x3f803f80")
    P(f"v_cndmask_b32 {x2}, 0, {x2}, vcc")
    P(f"ds_write_b32 {x1}, {x2} offset:4096")
    tiles = [(8, 0), (0, 0), (8, 1), (0, 1), (4, 0), (4, 1)] + [(j, h) for h in range(2) for j in (1, 2, 3, 5, 6, 7)]
    def vs(t): return VS[t % 5]
    def vl(t): return vread(vs(t), *tiles[t])
    def hd(u): return tiles[u + 2][1] if u >= 2 else u
    def sb(u): return SB + 16 * (u % 3)
    def oa(h): return OA0 + 16 * h
    def qk(u): return f"{MF} {V(sb(u), 16)}, {V(HB + 8 * u if u < 4 else KR + 4 * (u % 4))}, {q(hd(u))}, 0"
    P.add(I(vl(0) + vl(2)))
    for h in range(2):
        for i in range(8 * h, 8 * h + 8):
            P(f"v_mul_f32 v{aQ + i}, v{aQ + i}, {x0}")
        for i in range(4 * h, 4 * h + 4):
            P(f"v_cvt_pk_bf16_f32 v{QF + i}, v{aQ + 2 * i}, v{aQ + 2 * i + 1}")
        for d in range(4 * h, 4 * h + 4):
            P(f"v_accvgpr_read_b32 v{PM + d}, a{240 + d}")
        P(f"{MF} {V(DG + 16 * h, 16)}, {V(KD + 4 * h)}, {q(h)}, 0")
    P.add(I([f"s_lshl_b32 {t0}, {sT}, 4", f"s_add_u32 {t0}, {t0}, {sM}", f"s_lshl_b32 {t0}, {t0}, 11", f"s_add_u32 {t0}, {t0}, {LB(L) + O_O}"]))
    P.add(tick(f"{L}.p1end"))
    lp, lr, ls = P.label(), P.label(), P.label()
    P(f"s_mov_b32 {sCNT}, 20000")
    P.put(lp)
    for i in range(2):
        for j in range(4):
            b = HB + 16 * i + 4 * j
            if i == 0 and j % 2 == 0:
                P(qk(j >> 1))
            P(f"ds_write_b128 v{KA}, {V(b)} offset:{4 * PITCH * i + 1024 * j}")
            if i == 0 and j == 3:
                P.add(I(vl(1) + vl(3)))
            if i == 0 and j == 0:
                P(f"v_max3_u32 {x1}, v{b}, v{b + 1}, v{b + 2}")
                P(f"v_max_u32 {x1}, {x1}, v{b + 3}")
            else:
                P(f"v_max3_u32 {x1}, {x1}, v{b}, v{b + 1}")
                P(f"v_max3_u32 {x1}, {x1}, v{b + 2}, v{b + 3}")
    P(f"v_cmp_eq_u32 vcc, -1, {x1}")
    P(f"s_cbranch_vccnz {ls}")
    P.put(lr)
    OUTL.extend(I([ls + ":", f"s_sub_u32 {sCNT}, {sCNT}, 1", f"s_cbranch_scc1 {lr}"] + halo_loads() + [f"s_branch {lp}"]))
    P.add(tick(f"{L}.halo"))

    def mix(a, b):
        out, b = [], list(b)
        for x in a:
            out.append(x)
            if b:
                y = b.pop(0)
                if y is not None:
                    out.append(y)
        return out + [y for y in b if y is not None]
    BU, DR = opt("BU", 1), opt("DR", 0)
    head, main, pend = [], [], []
    for u in range(16):
        h, s = hd(u), sb(u)
        o = V(oa(h), 16)
        if u < 2:
            valu = merge(s, DG + 16 * u) + exps(s) + cvts(s) + split(s)
            pv = [f"{MF} {o}, {V(vs(2 * u))}, {V(s + 8)}, 0", f"{MF} {o}, {V(vs(2 * u) + 4)}, {V(s + 12)}, {o}",
                  f"{MF} {o}, {V(vs(2 * u + 1))}, {V(s)}, {o}", f"{MF} {o}, {V(vs(2 * u + 1) + 4)}, {V(s + 4)}, {o}"]
        else:
            valu = exps(s) + cvts(s)
            pv = [f"{MF} {o}, {V(vs(u + 2))}, {V(s)}, {o}", f"{MF} {o}, {V(vs(u + 2) + 4)}, {V(s + 4)}, {o}"]
        if u == 11:
            valu = valu[:12] + mix(valu[12:], [f"v_rcp_f32 v{TMP}, v{oa(0) + 8}", f"v_add_u32 v{LC}, 0xe0800000, v{oa(0) + 8}"] + epi(L, 0, oa(0)))
        if u == 15:
            valu = valu[:8] + valu[16:20] + valu[8:10] + [pv.pop(0)] + valu[10:16] + valu[20:]
        mf = list(pend) + ([qk(u + 2)] if u + 2 < 16 else [])
        rd = (vl(u + 3) if 1 <= u <= 14 else []) + ([kread(KR + 4 * ((u + 3) % 4), *tiles[u + 5])] if 1 <= u <= 12 else [])
        rd = [None] * (len(mf) - len(rd)) + rd
        out, acc = [], 32
        for x in valu:
            if acc >= 28 and mf:
                r = rd.pop(0)
                out.append(I([mf.pop(0)] + ([r] if r else []))); acc = 4 if r else 0
            out.append(I(x)); acc += cost(I(x))
        assert not mf and not rd
        pend = pv
        if u < BU:
            head += out
        else:
            main += out
    main += pend
    if P3N and L:
        head = spread(head, wo_items(DR & 1)[:opt("WOH", 0)], 0.0, 0.9)
    P.add(I(head))
    P.add(barrier())
    P.add(tick(f"{L}.B2"))
    if L == 0:
        d2_, r2_ = w2_round(2, x0)
        d3_, r3_ = w2_round(3, x0)
        d1_, r1_ = w2_round(1, x0)
        A0 = [int(x) / 100 for x in OPT.get("A0", "0,25,35,62,72,92").split(",")]
        tw1 = touch(sW1, 1792 * 1024, "a232", x1, u2, opt("TS1", 7))
        T0 = opt("T0", 0)
        if T0 == 6:
            tw1 = touch(sW1, 1792 * 1024, "a232", x1, u2, opt("TS1", 7), 0)
            twe = touch(sW1, 1792 * 1024, "a232", x1, u2, opt("TS1", 7), 1)
        a = spread(main, d2_ + (tw1 if T0 == 3 else []), A0[0], A0[1])
        a = spread(a, r2_ + [[need_ins("ds_any")]] + d1_ + d3_ + (tw1 if T0 == 4 else []), A0[2], A0[3])
        a = spread(a, r1_ + [[need_ins("ds_any")]] + wo_items() + (tw1 if T0 == 0 or (T0 == 6 and not opt("TB0", 0)) else []), A0[4], A0[5])
        if T0 == 6:
            a = spread(a, twe, opt("TA0", 22) / 100, opt("TA1", 24) / 100)
            if opt("TB0", 0):
                a = spread(a, tw1, opt("TB0", 0) / 100, opt("TB1", opt("TB0", 0) + 2) / 100)
        if T0 == 5:
            a = spread(a, tw1, opt("TA0", 5) / 100, opt("TA1", 80) / 100)
        a = spread(a, inits("A", 56), opt("IA0", 5) / 100, opt("IA1", 70) / 100)
        late_rd = r3_
    elif P3N and opt("ABT", 1):
        A1 = [int(x) / 100 for x in OPT.get("A1", "0,60,10,60").split(",")]
        a = spread(main, wo_items(DR & 1)[opt("WOH", 0):] + w1_items("CD1", DR & 4), A1[0], A1[1])
        if opt("ABT", 1) == 1:
            a = spread(a, touch_ab("v60", "v61", u2), A1[2], A1[3])
        late_rd = []
    elif P3N:
        A1 = [int(x) / 100 for x in OPT.get("A1", "0,12,30,66").split(",")]
        C1 = opt("C1P", 0)
        a = spread(main, wo_items(DR & 1)[opt("WOH", 0):] + (w1_items("CD1", DR & 4) if C1 == 0 else []), A1[0], A1[1])
        wr = wo_reads(x0)
        wr = [wr[0] + wr[1] + wr[2]] + [wr[i] + wr[i + 1] for i in range(3, 17, 2)]
        a = spread(a, wr + [[need_ins(("v", 191))]] + w1_items("AB", DR & 2) + (w1_items("CD1", DR & 4) if C1 == 1 else []), A1[2], A1[3])
        late_rd = []
    else:
        a = spread(main, (touch(sW1, 1792 * 1024, "v60", x1, u2, opt("TW1", 0)) if opt("TW1", 0) else []) + wo_items() + w1_items("CD1"), 0.0, 0.6)
        a = spread(a, inits("a", 56), opt("Ia0", 5) / 100, opt("Ia1", 60) / 100)
        late_rd = []
    if P3N:
        lsk = P.label()
        pf = opt(f"PF_{L}", opt("PF", 90)) / 100
        a = spread(a, [I([f"v_cmp_le_u32 vcc, {0 if opt('FB', 0) else '0x40000000'}, v{LC}", f"s_cbranch_vccnz {lsk}"]) + tick(f"{L}.zpf") + publish(16 * L + 1, "v57", "o0") + tick(f"{L}.zPF") + I(lsk + ":")], pf, pf)
        pf = opt(f"PG_{L}", opt("PG", 98)) / 100
        a = spread(a, [poll_issue(vPO, "v56")], pf, pf)
    P.add(I(a))
    lf, lj = P.label(), P.label()
    P(f"v_rcp_f32 v{TMP}, v{oa(1) + 8}")
    P(f"v_add_u32 {x1}, 0xe0800000, v{oa(1) + 8}")
    P(f"v_max_u32 {x1}, {x1}, v{LC}")
    P(f"v_cmp_le_u32 vcc, {0 if opt('FB', 0) else '0x40000000'}, {x1}")
    e = epi(L, 1, oa(1))
    P.add(I(e[:4]))
    P(f"s_cbranch_vccnz {lf}")
    P.add(I(e[4:]))
    P.put(lj)
    OUTL.extend(I([lf + ":"]) + att_safe(L) + I(f"s_branch {lj}"))
    P.add(tick(f"{L}.att"))
    if P3N:
        return late_rd
    P.add(publish(16 * L + 1, x1, early=f"iO{L}" if EF & 1 else None))
    P.add(tick(f"{L}.p2end"))
    return late_rd
```

```python
from k2_base import *
from k2_p1 import *

B1V, CC, CD_, AS4 = 48, 52, 56, 60
OM = OPT.get("OM", "").replace("_", " ")


def tile_out(x, pk, tmp, bit, pub, ini):
    XE = opt("XE", 1)
    if XE == 0:
        P.add(pub)
    for i in range(8):
        P(f"v_cvt_pk_bf16_f32 v{pk + i}, v{x + 2 * i}, v{x + 2 * i + 1}")
    P.add(xstore(f"buffer_store_dwordx4 {V(pk)}, {vL16}, {sWS}, {t1} offen", bit, ini=ini))
    P.add(xstore(f"buffer_store_dwordx4 {V(pk + 4)}, {vL16}, {sWS}, {t1} offen offset:1024", bit))
    if XE == 1:
        P.add(pub)
    a, b = V(tmp, 2), V(tmp + 2, 2)
    P(f"v_pk_add_f32 {a}, {V(x, 2)}, {V(x + 2, 2)}")
    P(f"v_pk_mul_f32 {b}, {V(x, 2)}, {V(x, 2)}")
    for i in range(1, 8):
        if i >= 2:
            P(f"v_pk_add_f32 {a}, {a}, {V(x + 2 * i, 2)}")
        P(f"v_pk_fma_f32 {b}, {V(x + 2 * i, 2)}, {V(x + 2 * i, 2)}, {b}")
    P(f"v_add_f32 v{tmp}, v{tmp}, v{tmp + 1}")
    P(f"v_add_f32 v{tmp + 2}, v{tmp + 2}, v{tmp + 3}")
    P(f"v_permlane32_swap_b32 v{tmp}, v{tmp + 2}")
    P(f"v_add_f32 v{tmp}, v{tmp}, v{tmp + 2}")
    P.add(xstore(f"buffer_store_dword v{tmp}, {x2}, {sWS}, {t2} offen", bit))
    if XE == 2:
        P.add(pub)


def tile_addr(xo, so):
    return I([f"s_lshl_b32 {t2}, {sTP}, 4", f"s_add_u32 {t2}, {t2}, {sCT}", f"s_lshl_b32 {t1}, {t2}, 11", f"s_add_u32 {t1}, {t1}, {xo}",
              f"s_lshl_b32 {t2}, {t2}, 8", f"s_add_u32 {t2}, {t2}, {so}", f"v_lshlrev_b32 {x2}, 2, {vL}"])


def b1_loads():
    return I([f"v_and_b32 {x1}, 0x13, {vL}", f"v_bfe_u32 {x2}, {vL}, 2, 1", f"v_lshl_add_u32 {x1}, {x2}, 3, {x1}", f"v_bfe_u32 {x2}, {vL}, 3, 1",
              f"v_lshl_add_u32 {x1}, {x2}, 2, {x1}", f"v_lshlrev_b32 {x1}, 1, {x1}", f"s_lshl_b32 {t1}, {sM}, 8", f"s_cmp_ge_u32 {sW}, 2", f"s_cselect_b32 {t1}, {OOB}, {t1}"] +
             [f"buffer_load_ushort v{B1V + e}, {x1}, {sB1}, {t1} offen offset:{64 * e}" for e in range(4)])


def phase3n(L, late_rd):
    o = lambda n, d: opt(f"{n}_{L}", opt(n, d))
    a0, OF, WO = 16, 64, 128
    AB = [a0, 192, 208, 224]
    wa = [f"v{32 + i}" for i in range(5)]
    v4k = "v37"
    P.add(I([f"s_lshr_b32 {t3}, {sW}, 1", f"s_xor_b32 {t3}, {t3}, {sRR}", f"s_and_b32 {t3}, {t3}, 1", f"s_and_b32 {t4}, {sW}, 1", f"s_lshl_b32 {t4}, {t4}, 1",
             f"s_add_u32 {t3}, {t3}, {t4}", f"s_lshl_b32 {t4}, {sTP}, 2", f"s_add_u32 {t3}, {t3}, {t4}", f"s_lshl_b32 {t3}, {t3}, 13",
             f"s_add_u32 {t3}, {t3}, {LB(L) + O_O}", f"s_xor_b32 {t4}, {t3}, 0x8000", f"v_add_u32 {v4k}, 0x1000, {vL16}"]))
    if L == 0:
        P.add(I(late_rd))
        P.add(I(wo_reads(x0)))
        P.add(b1_loads())
        P.add(I([x for d in range(8) for x in (f"v_accvgpr_read_b32 {x2}, a{224 + d}", f"v_lshlrev_b32 v{a0 + 2 * d}, 16, {x2}", f"v_and_b32 v{a0 + 2 * d + 1}, 0xffff0000, {x2}")]))
    else:
        if opt("ABT", 1):
            P.add(I(wo_reads(x0)))
        P.add(I([f"v_accvgpr_read_b32 v{a0 + i}, a{224 + i}" for i in range(16)]))
    for i in range(5):
        n = i & 3 if i < 4 else 0
        hi = i == 3 or i == 4
        P.add(I([f"s_xor_b32 {u0}, {sW}, {n}", f"s_lshl_b32 {u0}, {u0}, {12 if hi else 13}", f"s_add_u32 {u0}, {u0}, {SCR3 if hi else SL + 4096 * max(0, n - 1)}",
                 f"v_add_u32 {wa[i]}, {u0}, {vL16}"]))
    P.add(tile_addr(LB(L) + X1_O, LB(L) + ST1_O))
    fill = (w1_items("AB") + w1_items("CD1")) if L == 0 else (w1_items("CD1", opt("DR", 0) & 4) if opt("C1P", 0) == 2 else [])
    if L and opt("ABT", 1):
        fill = w1_items("AB")
    if L == 0 or opt("ABT", 1):
        fill[0] = [need_ins("ds_any")] + fill[0]
    FE, FM = o("FE", 0), o("FM", 0)
    P.add(I(fill[:FE]))
    P.add(publish(16 * L + 2, x1, "o1"))
    P.add(tick(f"{L}.p2end"))
    def of(ks, tt): return OF + (ks * 2 + tt) * 4
    def oloads(h): return [f"buffer_load_dwordx4 {V(of(ks, tt))}, {v4k if ks >= 4 else vL16}, {sWS}, {t4 if tt else t3} offen offset:{(ks & 3) * 1024} sc1"
                           for ks in range(h, 8, 2) for tt in range(2)]
    def mf(ks, n):
        a = V(AB[n], 16)
        return f"{MF} {a}, {V(WO + (ks * 2 + (n & 1)) * 4)}, {V(of(ks, n >> 1))}, {a if (ks or n == 0) else 0}"
    P.add(poll_check(vPO, "v56", 16 * L + 1))
    P.add(tick(f"{L}.yck0"))
    P.add(I(oloads(0)))
    P.add(I(fill[FE:FM]))
    P.add(poll_issue(vPO, "v56"))
    P.add(barrier())
    P.add(tick(f"{L}.B3"))
    NT, NH0 = o("NT3", 2), o("NH0", 12)
    g = [mf(ks, n) for ks in (0, 2, 4, 6) + (1, 3, 5, 7)[:4 - NT] for n in range(4)]
    P.add(I(g[:NH0]))
    P.add(tick(f"{L}.ymf0"))
    P.add(poll_check(vPO, "v56", 16 * L + 2))
    P.add(tick(f"{L}.pollo"))
    P.add(I(oloads(1)))
    g = g[NH0:]
    wr = []
    for n in (3, 2, 1, 0):
        for e, ks in enumerate((1, 3, 5, 7)[4 - NT:]):
            g.append(mf(ks, n))
            if e >= 1 or NT == 1:
                k = (len(wr) + (NT - e) - 1) // (NT - e)
                g.append(wr[:k]); wr = wr[k:]
        if n:
            wr = [f"ds_write_b128 {wa[n]}, {V(AB[n] + 4 * j)} offset:{1024 * j}" for j in range(4)]
    P.add(I(spread(g, fill[max(FE, FM):], 0.0, 1.0)))
    P.add(tick(f"{L}.p3mm"))
    P.add(barrier())
    P.add(tick(f"{L}.yB4"))
    for j in range(12):
        P(f"ds_read_b128 {V(OF + 4 * j)}, {wa[0 if j < 8 else 4]} offset:{1024 * (j & 7 if j < 8 else j - 8)}")
    for p in range(3):
        for i in range(8):
            P(f"v_pk_add_f32 {V(a0 + 2 * i, 2)}, {V(a0 + 2 * i, 2)}, {V(OF + 16 * p + 2 * i, 2)}")
    tile_out(a0, OF + 16, OF + 24, 2 << (4 * L), [], None)
    P.add(tick(f"{L}.yst"))
    r4 = []
    if L == 0:
        d4, r4 = w2_round(4, x0)
        P.add(I(d4))
    elif o("CD2P", 1) == 0:
        P.add(I(w1_items("CD2")))
    for d in range(8):
        P(f"v_accvgpr_read_b32 {x1}, a{248 + d}")
        P(f"v_lshlrev_b32 v{OF}, 16, {x1}")
        P(f"v_and_b32 v{OF + 1}, 0xffff0000, {x1}")
        P(f"v_pk_add_f32 {V(a0 + 2 * d, 2)}, {V(a0 + 2 * d, 2)}, {V(OF, 2)}")
        P(f"v_accvgpr_write_b32 a{224 + 2 * d}, v{a0 + 2 * d}")
        P(f"v_accvgpr_write_b32 a{225 + 2 * d}, v{a0 + 2 * d + 1}")
    P.add(publish(16 * L + 3, x1))
    P.add(tick(f"{L}.p3end"))
    return r4


def phase3(L, late_rd):
    if P3N:
        return phase3n(L, late_rd)
    a0, a1, OF, WO = 16, 32, 64, 128
    vp, vc = "v53", "v54"
    P(f"s_and_b32 {t0}, {sW}, 1")
    P(f"s_lshl_b32 {t0}, {t0}, 14")
    P(f"v_add_u32 {x1}, {t0}, {vTP}")
    P(f"s_lshl_b32 {t3}, {sTP}, 15")
    P(f"s_add_u32 {t3}, {t3}, {t0}")
    P(f"s_add_u32 {t3}, {t3}, {LB(L) + O_O}")
    P(f"s_and_b32 {t4}, {sRR}, 1")
    P(f"s_lshl_b32 {t4}, {t4}, 13")
    P(f"s_add_u32 {t3}, {t3}, {t4}")
    P.add(barrier("wo"))
    P.add(tick(f"{L}.B3"))
    CD2E = opt("CD2E", 1)
    if L and CD2E:
        P.add(I(w1_items("CD2")))
    rd = [tr("v", WO + (ks * 2 + ct) * 4, x1, (ks >> 3) * 32768 + 2048 * (ks & 7) + 512 * ct) for ks in range(16) for ct in range(2)]
    PO1, PO2 = opt("PO1", 6), opt("PO2", 14)
    def oloads():
        o = []
        for ks in range(16):
            if ks % 4 == 0:
                o.append(f"s_xor_b32 {t4}, {t3}, {4096 * (ks // 4)}")
            o.append(f"buffer_load_dwordx4 {V(OF + 4 * ks)}, {vL16}, {sWS}, {t4} offen offset:{(ks % 4) * 1024} sc1{ntm('O')}")
        return o
    def res(tmpv):
        if L:
            return [f"v_accvgpr_read_b32 v{a0 + i}, a{224 + i}" for i in range(16)]
        return [x for d in range(8) for x in (f"v_accvgpr_read_b32 {tmpv}, a{224 + d}", f"v_lshlrev_b32 v{a0 + 2 * d}, 16, {tmpv}", f"v_and_b32 v{a0 + 2 * d + 1}, 0xffff0000, {tmpv}")]
    P.add(I(rd[:PO1]))
    P.add(poll_issue(vPO, vp))
    P.add(I(rd[PO1:PO2]))
    P.add(I(res(x2)))
    P.add(poll_check(vPO, vp, 16 * L + 1))
    P.add(tick(f"{L}.pollo"))
    P.add(I(oloads()))
    if L and not CD2E:
        P.add(I(w1_items("CD2")))
    P.add(I(rd[PO2:]))
    r4 = []
    if L == 0:
        d4, r4 = w2_round(4, x0)
        P.add(I(late_rd))
        P.add(I(d4[:8]))
        P(f"v_and_b32 {x1}, 0x13, {vL}")
        P(f"v_bfe_u32 {x2}, {vL}, 2, 1")
        P(f"v_lshl_add_u32 {x1}, {x2}, 3, {x1}")
        P(f"v_bfe_u32 {x2}, {vL}, 3, 1")
        P(f"v_lshl_add_u32 {x1}, {x2}, 2, {x1}")
        P(f"v_lshlrev_b32 {x1}, 1, {x1}")
        P(f"s_lshl_b32 {t1}, {sM}, 8")
        P(f"s_cmp_ge_u32 {sW}, 2")
        P(f"s_cselect_b32 {t1}, {OOB}, {t1}")
        for e in range(4):
            P(f"buffer_load_ushort v{B1V + e}, {x1}, {sB1}, {t1} offen offset:{64 * e}")
        P.need("ds_any")
        P.add(I(d4[8:]))
    P(f"s_xor_b32 {t0}, {sW}, 1")
    P(f"s_lshl_b32 {t0}, {t0}, 12")
    P(f"s_add_u32 {t0}, {t0}, {SCR3}")
    P(f"v_add_u32 {x0 if L else 'v52'}, {t0}, {vL16}")
    vw = x0 if L else "v52"
    P.add(tile_addr(LB(L) + X1_O, LB(L) + ST1_O))
    P.add(barrier())
    P.add(tick(f"{L}.B3b"))
    back = P.label()
    P.put(back)
    def mf(ks, ct):
        a = V(a0 if ct == 0 else a1, 16)
        return f"{MF} {a}, {V(WO + (ks * 2 + ct) * 4)}, {V(OF + 4 * ks)}, {a if (ks or ct == 0) else 0}"
    NT = 4
    g = [[mf(ks, 1), mf(ks, 0)] for ks in range(16 - NT)] + [[mf(ks, 1)] for ks in range(16 - NT, 16)]
    fill = w1_items("AB") + (w1_items("CD1") if L == 0 else [])
    if EF & 1:
        for n, x in chain(vc, OF, 16):
            g[n].append(x)
    P.add(I(spread(g, fill, 0.0, 1.0)))
    if EF & 1:
        P.add(redo(vc, back, oloads() + res(x1)))
    for n, ks in enumerate(range(16 - NT, 16)):
        P(mf(ks, 0))
        if n >= 1:
            for j in ([n - 1] if n < NT - 1 else range(n - 1, 4)):
                P(f"ds_write_b128 {vw}, {V(a1 + 4 * j)} offset:{1024 * j}")
    P(f"v_xor_b32 {vw}, 0x1000, {vw}")
    P.add(tick(f"{L}.p3mm"))
    P.add(barrier())
    for j in range(4):
        P(f"ds_read_b128 {V(OF + 4 * j)}, {vw} offset:{1024 * j}")
    for i in range(8):
        P(f"v_pk_add_f32 {V(a0 + 2 * i, 2)}, {V(a0 + 2 * i, 2)}, {V(OF + 2 * i, 2)}")
    tile_out(a0, OF + 16, OF + 24, 2 << (4 * L), publish(16 * L + 3, x1, early=f"iX{L}") if EF & 2 else [], f"iX{L}")
    rs = [I([f"v_accvgpr_read_b32 {x1}, a{248 + d}", f"v_lshlrev_b32 v{OF}, 16, {x1}", f"v_and_b32 v{OF + 1}, 0xffff0000, {x1}",
             f"v_pk_add_f32 {V(a0 + 2 * d, 2)}, {V(a0 + 2 * d, 2)}, {V(OF, 2)}", f"v_accvgpr_write_b32 a{224 + 2 * d}, v{a0 + 2 * d}",
             f"v_accvgpr_write_b32 a{225 + 2 * d}, v{a0 + 2 * d + 1}"]) for d in range(8)]
    if L == 0 and opt("CSN", 0) >= 4:
        cs = [I([f"s_lshl_b32 {t0}, {sW}, 14", f"v_add_u32 v122, {t0}, {vTP}", f"s_lshl_b32 {t0}, {sW}, 13", f"v_add_u32 {x0}, {t0}, {vTP1}", need_ins("w1AB")])]
        cs += [tr("v", XF + 4 * j, "v122", 2048 * (j >> 1) + 512 * (j & 1)) for j in range(16)]
        cs += [[need_ins("w1CD1")] + tr("v", XF + 64 + 4 * j, x0, 2048 * (j >> 1) + 512 * (j & 1)) for j in range(8)]
        cs += [asel(AS4), table_addr("v123")]
        cs += [I(f"{MF16} {V(STV + 4 * (j & 1))}, {V(AS4)}, {V(XF + 4 * j)}, {V(STV + 4 * (j & 1)) if j >= 2 else 0}") for j in range(16)]
        cs += [I(f"{MF16} {V(CC + 4 * (j & 1))}, {V(AS4)}, {V(XF + 64 + 4 * j)}, {V(CC + 4 * (j & 1)) if j >= 2 else 0}") for j in range(8)]
        cs += table_write(STV, 3, "v123", f"v{B1V}") + table_write(STV + 4, 4, "v123", f"v{B1V + 1}")
        NP = opt("NP", 8)
        P.add(I(spread(r4 + cs[:NP], rs)))
        r4 = cs[NP:]
    else:
        P.add(I(rs))
    if not EF & 2:
        P.add(publish(16 * L + 3, x1))
    P.add(tick(f"{L}.p3end"))
    return r4


def gelu(a, c0, c1, ir, tmp, so, tag, bit, pk=False, ini=None):
    res = []
    for g in range(4):
        if pk:
            xs = [V(a + 4 * g + 2 * e, 2) for e in range(2)]
            ts = [V(tmp + 2 * e, 2) for e in range(2)]
            bc = lambda r: f"v[{r[1:]}:{int(r[1:]) + 1}]"
            res += [f"v_pk_mul_f32 {t}, {x}, {x}" for x, t in zip(xs, ts)]
            res += [f"v_pk_fma_f32 {t}, {t}, {bc(c1)}, {bc(c0)} op_sel_hi:[1,0,0]" for t in ts]
            res += [f"v_pk_mul_f32 {t}, {t}, {x}" for x, t in zip(xs, ts)]
            res += [f"v_exp_f32 v{tmp + e}, v{tmp + e}" for e in range(4)]
            res += [f"v_pk_fma_f32 {t}, {t}, {bc(ir)}, {bc(ir)} op_sel_hi:[1,0,0]" for t in ts]
            res += [f"v_rcp_f32 v{tmp + e}, v{tmp + e}" for e in range(4)]
            res += [f"v_pk_mul_f32 {x}, {x}, {t}" for x, t in zip(xs, ts)]
        else:
            blk = []
            for e in range(4):
                x, t = f"v{a + 4 * g + e}", f"v{tmp + e}"
                blk.append([f"v_mul_f32 {t}, {x}, {x}", f"v_fma_f32 {t}, {t}, {c1}, {c0}", f"v_mul_f32 {t}, {t}, {x}",
                            f"v_exp_f32 {t}, {t}", f"v_fma_f32 {t}, {t}, {ir}, {ir}", f"v_rcp_f32 {t}, {t}", f"v_mul_f32 {x}, {x}, {t}"])
            for s in range(7):
                for e in range(4):
                    res.append(blk[e][s])
        for i in (2 * g, 2 * g + 1):
            res.append(f"v_cvt_pk_bf16_f32 v{a + i}, v{a + 2 * i}, v{a + 2 * i + 1}")
        if g & 1:
            s, off = so
            res.append(xstore(f"buffer_store_dwordx4 {V(a + 2 * (g - 1))}, {vL16}, {sWS}, {s} offen offset:{off + 1024 * (g >> 1)}", bit, tag, ini))
    return [I(x) for x in res]


def phase45(L, r4):
    T = [16, 32, 48, 16]
    C0R, C1R, IRR, RR, GT = "v116", "v118", "v120", "v122", 124
    FB = 16 * L
    vtb = x2
    CSN = opt("CSN", 0) if L == 0 else 0
    CS5 = False
    if L == 0:
        if CSN < 4:
            P.add(I(r4))
        IM = opt("IM", 0)
        if IM:
            lid, ljn = P.label(), P.label()
            P(f"s_cmp_ge_u32 {sM}, 14")
            P(f"s_cbranch_scc1 {lid}")
            o = [lid + ":", f"s_bfe_u32 {u0}, s2, 0x20003", f"s_lshl_b32 {u0}, {u0}, 2", f"s_add_u32 {u0}, {u0}, {sW}", f"s_mul_i32 {u0}, {u0}, {4 * 3072}",
                 f"v_lshrrev_b32 {x0}, 4, {vL}", f"v_mul_u32_u24 {x0}, 3072, {x0}", f"v_and_b32 {x1}, 15, {vL}", f"v_lshl_add_u32 {x0}, {x1}, 7, {x0}",
                 f"s_mov_b32 {t3}, {OOB}", f"s_mov_b32 {t4}, {OOB}", f"v_add_u32 {vtb}, {TAB0 + 3072}, {vL16}"]
            for i in range(8):
                o += [f"s_add_u32 {u1}, {u0}, {64 * 3072 * ((2 * i) % 8 + (i >> 2))}", f"buffer_load_dword {x1}, {x0}, {sWQ}, {u1} offen offset:1024"]
            if IM > 1:
                o += [f"v_lshrrev_b32 {x0}, 3, {vL}", f"v_mul_u32_u24 {x0}, 3072, {x0}", f"v_and_b32 v16, 7, {vL}", f"v_lshl_add_u32 {x0}, v16, 7, {x0}", f"s_lshl_b32 {u0}, {u0}, 1"]
                for i in range(4):
                    o += [f"s_add_u32 {u1}, {u0}, {128 * 3072 * i}", f"buffer_load_dword {x1}, {x0}, {sWQ}, {u1} offen"]
            o += ["s_waitcnt vmcnt(0) lgkmcnt(0)", "s_barrier"] + tick("0.idle") + [f"s_branch {ljn}"]
            OUTL.extend(I(o))
        vtw = "v123"
        if CSN < 4:
            P.add(asel(AS4))
            P(f"s_lshl_b32 {t0}, {sW}, 14")
            P(f"v_add_u32 {'v122' if CSN else x1}, {t0}, {vTP}")
            P(f"s_lshl_b32 {t0}, {sW}, 13")
            P(f"v_add_u32 {x0}, {t0}, {vTP1}")
        if CSN >= 4:
            P.add(I(r4))
            P.add(barrier())
            if CSN == 5:
                T[2] = STV
            CS5, CSN = CSN == 5, 0
        elif CSN:
            P.add(table_addr(vtw))
            P.add(barrier("w1AB"))
            if CSN == 1:
                P.add(I(w1_items("CD2")))
        else:
            P.add(table_addr(x2))
            P.need("w1AB")
            for j in range(16):
                P.add(tr("v", XF + 4 * j, x1, 2048 * (j >> 1) + 512 * (j & 1)))
            P.need("w1CD1")
            for j in range(8):
                P.add(tr("v", XF + 64 + 4 * j, x0, 2048 * (j >> 1) + 512 * (j & 1)))
            for j in range(16):
                c = V(16 + 4 * (j & 1))
                P(f"{MF16} {c}, {V(AS4)}, {V(XF + 4 * j)}, {c if j >= 2 else 0}")
            for j in range(8):
                c = V(CC + 4 * (j & 1))
                P(f"{MF16} {c}, {V(AS4)}, {V(XF + 64 + 4 * j)}, {c if j >= 2 else 0}")
            P.add(I(table_write(16, 3, x2, f"v{B1V}") + table_write(20, 4, x2, f"v{B1V + 1}")))
            P.add(barrier())
            P(f"v_mov_b32 {vtw}, {x2}")
    else:
        P.add(barrier("w1AB", "w1CD1", *([] if P3N else ["w1CD2"])))
    P(f"v_add_u32 {vtb}, {TAB0 + 3072}, {vL16}")
    D = 3
    def rdA(t):
        if t < 32:
            return trp(RING + 8 * (t % 4), 2048 * t) + trp(RING + 8 * (t % 4) + 4, 2048 * t + 512)
        if t == 32:
            return I([f"ds_read_b128 {V(RING + 8 * (t % 4) + 4 * e)}, {vtb} offset:{1024 * e}" for e in range(2)])
        return []
    back, vc = P.label(), (f"v{GT}" if EF & 2 else None)
    P.put(back)
    for t in range(D):
        P.add(rdA(t))
    P(f"s_lshl_b32 {t3}, {sT}, 17")
    P(f"s_lshl_b32 {t4}, {sM}, 13")
    P(f"s_add_u32 {t3}, {t3}, {t4}")
    P(f"s_add_u32 {t3}, {t3}, {LB(L) + H_O}")
    P.add(I(idle(t3)))
    P(f"s_add_u32 {t4}, {t3}, 4096")
    xs, xi = x_loads(LB(L) + X1_O, LB(L) + ST1_O, STV)
    NB = opt("NB", 14)
    P.add(xs)
    P.add(I(idle(t1, t2)))
    P.add(tick(f"{L}.B4b"))
    P.add(poll(vPX, x1, FB + 3))
    P.add(tick(f"{L}.pollx1"))
    if CSN:
        assert NB <= 16
        csr = [tr("v", XF + 64 + 4 * j, "v122", 2048 * (j >> 1) + 512 * (j & 1)) for j in range(16)]
        P.add(I(spread(xi[:NB], csr)))
        if CSN == 2:
            P.add(I(w1_items("CD2")))
        for j in range(16):
            c = V(STV + 4 * (j & 1))
            P(f"{MF16} {c}, {V(AS4)}, {V(XF + 64 + 4 * j)}, {c if j >= 2 else 0}")
        tw = table_write(STV, 3, vtw, f"v{B1V}") + table_write(STV + 4, 4, vtw, f"v{B1V + 1}", "tw1")
    else:
        P.add(I(xi[:NB]))
    xi = xi[NB:] + (w1_items("CD2") if (L == 0 and CSN in (0, 3)) or (L and P3N and opt("CD2P", 1) == 1) else [])
    if L == 0 and opt("TKV", 0):
        xi += touch_qkv("v117", "v119")
    if L == 0 and opt("H3B", 0):
        xi += [help3("v117", "v119", u0)]
    gA = []
    for k in range(33):
        xb = V(XF + 4 * k) if k < 32 else V(EX)
        gA.append(rdA(k + D) + I([f"{MF} {V(T[e], 16)}, {V(RING + 8 * (k % 4) + 4 * e)}, {xb}, {V(T[e], 16) if k else 0}" for e in range(2)]))
    s = [f"v{STV + i}" for i in range(4)]
    C0 = -2.0 * LOG2E * 0.7978845608028654
    fill = stats_sum(STV, vc) + stats_finish(s[0], s[1], s[2], s[3], EX, True, RR, IRR)
    fill += [I(x) for x in [f"v_mul_f32 {C0R}, {fc(C0)}, {RR}", f"v_mul_f32 {C1R}, {RR}, {RR}", f"v_mul_f32 {C1R}, {C1R}, {C0R}",
                            f"v_mul_f32 {C1R}, {fc(0.044715)}, {C1R}"]]
    for k in range(0, 32, 4):
        gA[k] = gA[k] + tick(f"{L}.zA{k}")
    if CSN:
        gA[0] = I(tw[:7]) + gA[0] + I(tw[7:])
        CR = [112, 116, 124]
        ncd = 8 if CSN == 3 else 16
        def crd(j): return I([need_ins("w1CD1" if j < 8 else "w1CD2")] + tr("v", CR[j % 3], x0, 32768 * (j >> 3) + 2048 * ((j >> 1) & 3) + 512 * (j & 1))) if j < ncd else []
        for j in range(ncd + 2):
            c = V(CC + 4 * (j & 1))
            gA[j] = gA[j] + ((I(f"{MF16} {c}, {V(AS4)}, {V(CR[(j - 2) % 3])}, {c if j >= 4 else 0}") if j >= 2 else []) + crd(j))
        if CSN != 3:
            tw = table_write(CC, 5, vtw, f"v{B1V + 2}") + table_write(CD_, 6, vtw, f"v{B1V + 3}", "tw2")
            for j in range(7):
                gA[ncd + 3 + j] += I(tw[2 * j:2 * j + 2])
        gA[opt("BAP", 20)] += I([need_ins("tw1", "w1CD1", *([] if CSN == 3 else ["w1CD2"])), "s_barrier"])
    attach(gA, xi)
    if opt("WB", 0) >> L & 1:
        lsk = P.label()
        gA[opt("WBP", 24)] += I([f"s_lshl_b32 {u0}, {sM}, 2", f"s_or_b32 {u0}, {u0}, {sW}"] + ([f"s_lshl_b32 {u0}, {u0}, 1", f"s_and_b32 {u1}, {sC}, 1", f"s_or_b32 {u0}, {u0}, {u1}"] if opt("WB1", 1) else []) +
                                [f"s_cmp_lg_u32 {u0}, {120 if opt('WB1', 1) else 60}", f"s_cbranch_scc1 {lsk}", "buffer_wbl2 sc1", lsk + ":"])
    if vc:
        for n, x in chain(vc, XF, 32):
            gA[n] += I(x)
    P.add(weave(gA, [(opt("XSP", 16) + 2, x) for x in fill] + [(len(xi), x) for x in inits("Bb"[L], STV + 8)]))
    if vc:
        P.add(redo(vc, back))
    P.add(tick(f"{L}.pA"))
    if opt("N45", 0):
        return tail45(L, vtb, vtw if L == 0 else None)
    D1 = 6
    def rd1(e, t):
        if t < 32:
            return trp(RING + 4 * (t % 8), R2 + 2048 * t + 512 * e)
        if t == 32:
            return I(f"ds_read_b128 {V(RING + 4 * (t % 8))}, {vtb} offset:{2048 + 1024 * e}")
        if e == 0 and t - 34 >= 0:
            pass
        return []
    def g1(e, off):
        def rd(t):
            n = RING + 4 * ((t + off) % 8)
            if t < 32:
                return trp(n, R2 + 2048 * t + 512 * e)
            if t == 32:
                return I(f"ds_read_b128 {V(n)}, {vtb} offset:{2048 + 1024 * e}")
            if e == 0:
                return trp(n, R2 + 2048 * (t - 33) + 512)
            return []
        a = V(T[2 + e], 16)
        out = []
        for k in range(33):
            xb = V(XF + 4 * k) if k < 32 else V(EX)
            it = rd(k + D1)
            if k % 2 == 0 and k + 1 < 33:
                it = it + [need_ins(("v", RING + 4 * ((k + 1 + off) % 8) + 3))]
            out.append(it + I(f"{MF} {a}, {V(RING + 4 * ((k + off) % 8))}, {xb}, {a if k else 0}"))
        return out, [rd(t) for t in range(D1)]
    gB, preB = g1(0, 0)
    gC, _ = g1(1, 33)
    PUBD = opt("PUBD", 14)
    GHI = opt("GHI", 90) / 100
    def G(i, pk=False):
        o = gelu(T[i], C0R, C1R, IRR, GT, (t3 if i < 2 else t4, 2048 * (i & 1)), f"h{i}", 4 << (4 * L), pk, f"iH{L}{i}")
        if EF & 4:
            o.insert(len(o) - opt("HE", 0), tick(f"{L}.zpb{i}") + publish(FB + 4 + i, x1, f"h{i}", f"iH{L}{i}"))
        return o
    def at(groups, n, item):
        groups[n] = groups[n] + I(item)
    if L == 0:
        cs = [I([need_ins("w1CD2")] + tr("v", STV + 4 * (j & 3), x0, 32768 + 2048 * (j >> 1) + 512 * (j & 1))) for j in range(4)]
        for j in range(8):
            c = V(CC + 4 * (j & 1))
            cs.append(I(f"{MF16} {c}, {V(AS4)}, {V(STV + 4 * (j & 3))}, {c}"))
            if j + 4 < 8:
                cs.append(tr("v", STV + 4 * (j & 3), x0, 32768 + 2048 * ((j + 4) >> 1) + 512 * (j & 1)))
        cs += [[]] + table_write(CC, 5, vtw, f"v{B1V + 2}") + table_write(CD_, 6, vtw, f"v{B1V + 3}")
        if CS5:
            P.add(I(spread(G(0, True), preB, 0.5, 0.95)))
            C2 = opt("C2P", 5)
            LA = opt("C2L", 4)
            for j in range(8):
                at(gB, C2 + j, [need_ins("w1CD2")] + tr("v", 16 + 4 * (j & 3), x0, 32768 + 2048 * (j >> 1) + 512 * (j & 1)))
            for j in range(8):
                c = V(CC + 4 * (j & 1))
                gB[C2 + j + LA] = I(f"{MF16} {c}, {V(AS4)}, {V(16 + 4 * (j & 3))}, {c}") + gB[C2 + j + LA]
            gB[C2 + 1] = I("s_barrier") + gB[C2 + 1]
            tw = table_write(CC, 5, vtw, f"v{B1V + 2}") + table_write(CD_, 6, vtw, f"v{B1V + 3}", "tw2")
            for j in range(5):
                at(gB, C2 + 8 + LA + j, tw[3 * j:3 * j + 3])
            assert C2 + 1 <= 10 and C2 + 8 + LA + 4 < 25 and LA <= 4 and opt("KV0", 0) > C2
            at(gB, 25, [need_ins("tw2"), "s_barrier"])
        elif CSN in (1, 2):
            P.add(I(spread(G(0, True), preB, 0.5, 0.95)))
            P.add(I([need_ins("tw2"), "s_barrier"]))
        else:
            P.add(I(spread(G(0), cs + preB, 0.1, 0.95)))
            P.add(barrier())
        if IM:
            P.put(ljn)
        kv = wq_items([0, 1], "wkv")
        kv[0] = wq_setup(1024) + kv[0]
        if not opt("KV0", 0):
            for j in range(8):
                at(gB, 1 + j, kv[j]); at(gC, 1 + j, kv[8 + j])
    else:
        P.add(I(spread(G(0, True), preB, 0.5, 0.95)))
        if P3N:
            at(gB, opt("B5P", 4), [need_ins("w1CD2"), "s_barrier"])
    P.add(tick(f"{L}.G0"))
    ACC = [A(224, 16), V(32, 16), V(48, 16), V(240, 16)]
    def hf(s, i, tt): return XF + 4 * (14 * (s & 1) + 2 * i + tt)
    def hloads(s):
        out = []
        for i in range(7):
            for tt in range(2):
                out.append(I([f"s_add_u32 {u0}, {t5 if tt == 0 else d3}, {(8 * i + 2 * s) * 1024}",
                              f"buffer_load_dwordx4 {V(hf(s, i, tt))}, {vL16}, {sWS}, {u0} offen sc1{ntm('H')}"]))
        return out
    def mf(s, i, n):
        tt, ct = n >> 1, n & 1
        a = ACC[n]
        return f"{MF} {a}, {A(((7 * s + i) * 2 + ct) * 4)}, {V(hf(s, i, tt))}, {a if (s or i or n == 0) else 0}"
    def hchk(s, i):
        if not EF & 4:
            return []
        ls, lr = P.label(), P.label()
        c = [f"v_cmp_u_f32 vcc, v{hf(s, i, 0)}, v{hf(s, i, 1)}", f"s_cbranch_vccnz {ls}"]
        OUTL.extend(I([ls + ":", f"s_cmp_eq_u32 {sRT}, 0", f"s_cbranch_scc1 {lr}", f"s_sub_u32 {sRT}, {sRT}, 1"] + hloads(s)[2 * i:2 * i + 2] + c + [f"s_branch {lr}"]))
        return I(c + [lr + ":"])
    def gS(s, ni=7): return [(hchk(s, i) if n == 0 else []) + I(mf(s, i, n)) for i in range(ni) for n in range(4)]
    hb = I([f"s_lshr_b32 {u0}, {sW}, 1", f"s_mul_i32 {u0}, {u0}, {56 * 1024}", f"s_and_b32 {u1}, {sW}, 1", f"s_lshl_b32 {u1}, {u1}, 10",
            f"s_add_u32 {u0}, {u0}, {u1}", f"s_add_u32 {u0}, {u0}, {LB(L) + H_O}", f"s_lshl_b32 {t5}, {sTP}, 17", f"s_xor_b32 {d3}, {t5}, 0x20000",
            f"s_add_u32 {t5}, {t5}, {u0}", f"s_add_u32 {d3}, {d3}, {u0}"])
    for n, x in enumerate(hb):
        at(gB, 16 + n, x)
    st = gB + gC + gS(0) + gS(1) + gS(2)
    CK = [opt(f"CK{i}", ((41, 66, 96, 124), (33, 48, 80, 110))[EF >> 2 & 1][i]) for i in range(4)]
    PB = [opt("PB0", 14), opt("PB1", 47), opt("PB2", 78), opt("PB3", 108)]
    PD = opt("PD", 12)
    for s in range(4):
        if not EF & 4:
            at(st, PB[s], tick(f"{L}.zpb{s}") + publish(FB + 4 + s, x1, f"h{s}") + tick(f"{L}.zPB{s}"))
        at(st, CK[s] - PD, poll_issue(vPH, x0))
        at(st, CK[s], tick(f"{L}.zck{s}") + poll_check(vPH, x0, FB + 4 + s) + tick(f"{L}.zCK{s}"))
        n = CK[s] + 1
        for j, x in enumerate(hloads(s)):
            lo = {0: 33 + j, 1: 33 + 14 + j}.get(s, 66 + 28 * (s - 2) + 4 * (j >> 1) + 3)
            n = max(n, lo)
            at(st, n, x)
            n += 1 if j < opt("HBU", 6) else opt("HST", 2)
        assert n <= len(st) + 1
    at(st, opt("B6", 110), barrier() + tick(f"{L}.zB6"))
    if L == 0 and opt("KV0", 0):
        for j in range(16):
            at(st, opt("KV0", 0) + j * opt("KVS", 10) // 10, kv[j])
    if L == 0 and opt("WQE", 0):
        assert opt("WQE", 0) > opt("B6", 110)
        for j, x in enumerate(wq_items([2])):
            at(st, opt("WQE", 0) + j * opt("WQS", 1), (I(f"s_sub_u32 {d1}, {d1}, 1024") if j == 0 else []) + x)
    P.add(I(spread(st[:33], G(1), 0.03, GHI)))
    P.add(tick(f"{L}.pB"))
    P.add(I(spread(st[33:66], G(2), 0.03, GHI)))
    P.add(tick(f"{L}.pC"))
    P.add(weave(st[66:94], [(1, x) for x in G(3)], slack=0))
    P.add(tick(f"{L}.S0"))
    P.add(I(st[94:122]))
    P.add(tick(f"{L}.S1"))
    P.add(I(st[122:150]))
    P.add(tick(f"{L}.S2"))
    NT = opt("NT5", 2)
    wa = ["v16", "v17", "v18", "v19"]
    pre = []
    for i in range(4):
        pre.append(I([f"s_xor_b32 {u0}, {sW}, {i}", f"s_mul_i32 {u0}, {u0}, 12288", f"s_add_u32 {u0}, {u0}, {SL + 4096 * max(0, i - 1)}",
                      f"v_add_u32 {wa[i]}, {u0}, {vL16}"]))
    if L == 0:
        pre.append(tile_addr(LB(1) + XIN_O, LB(1) + ST2_O))
    else:
        pre.append(I([f"v_and_b32 {x2}, 31, {vL}", f"v_lshrrev_b32 {x1}, 5, {vL}", f"v_lshlrev_b32 {x2}, 10, {x2}", f"v_lshl_add_u32 {x2}, {x1}, 4, {x2}",
                      f"s_lshl_b32 {t1}, {sTP}, 15", f"s_lshl_b32 {t2}, {sCT}, 6", f"s_add_u32 {t1}, {t1}, {t2}"]))
    P.add(I(pre))
    g = gS(3, 7 - NT)
    if L == 0:
        attach(g, inits("C", RING), 1, 1)
        if opt("WQ3", 0):
            wq = wq_items([2])
            wq[0] = I(f"s_sub_u32 {d1}, {d1}, 1024") + wq[0]
            attach(g, wq, opt("WQ3", 0) - 1, 1)
    base = [0, 32, 48, 240]
    wr = []
    for n in (3, 2, 1, 0):
        for e, i in enumerate(range(7 - NT, 7)):
            g.append((hchk(3, i) if n == 3 else []) + I(mf(3, i, n)))
            if e >= 1 or NT == 1:
                k = (len(wr) + (NT - e) - 1) // (NT - e)
                g.append(I(wr[:k])); wr = wr[k:]
        if n:
            wr = [f"ds_write_b128 {wa[n]}, {V(base[n] + 4 * j)} offset:{1024 * j}" for j in range(4)]
    P.add(I(g))
    x, tmp = 64, 80
    for i in range(16):
        P(f"v_accvgpr_read_b32 v{x + i}, a{224 + i}")
    P.add(tick(f"{L}.S3"))
    P.add(barrier(*(["wkv"] if L == 0 else [])))
    for j in range(12):
        P(f"ds_read_b128 {V(tmp + 4 * j)}, {wa[0]} offset:{1024 * j}")
    for p in range(3):
        for i in range(8):
            P(f"v_pk_add_f32 {V(x + 2 * i, 2)}, {V(x + 2 * i, 2)}, {V(tmp + 16 * p + 2 * i, 2)}")
    if L == 0:
        tile_out(x, 16, 24, 8, publish(8, x1, early="iY0") if EF & 8 else [], "iY0")
        for i in range(16):
            P(f"v_accvgpr_write_b32 a{224 + i}, v{x + i}")
        if not EF & 8:
            P.add(publish(8, x1))
        P.add(tick("0.p5end"))
    else:
        for i in range(8):
            P(f"v_cvt_pk_bf16_f32 v{16 + i}, v{x + 2 * i}, v{x + 2 * i + 1}")
        P(f"buffer_store_dwordx4 {V(16)}, {x2}, {sOUT}, {t1} offen {OM}")
        P(f"buffer_store_dwordx4 {V(20)}, {x2}, {sOUT}, {t1} offen offset:32 {OM}")
        if PROF:
            P.need("stores")
            P.add(tick("1.final"))
            P.add(prof_dump())


def tail45(L, vtb, vtw):
    o = lambda n, d: opt(f"{n}_{L}", opt(n, d))
    G0X, G2X, G3X = (1 if L == 0 else o("G0X", 1)), o("G2X", 1), o("G3X", 0)
    T = [16, 32, 48, 16 if G0X else STV]
    C0R, C1R, IRR, RR, GT = "v116", "v118", "v120", "v122", 124
    FB, D = 16 * L, 3
    def rd(t):
        n = RING + 8 * (t % 4)
        if t < 32:
            return trp(n, R2 + 2048 * t) + trp(n + 4, R2 + 2048 * t + 512)
        if t == 32:
            return I([f"ds_read_b128 {V(n + 4 * e)}, {vtb} offset:{2048 + 1024 * e}" for e in range(2)])
        return []
    gBC = []
    for k in range(33):
        xb = V(XF + 4 * k) if k < 32 else V(EX)
        r = rd(k + D)
        for e in range(2):
            gBC.append(I(f"{MF} {V(T[2 + e], 16)}, {V(RING + 8 * (k % 4) + 4 * e)}, {xb}, {V(T[2 + e], 16) if k else 0}") + r[len(r) // 2 * e:len(r) // 2 * (e + 1)])
    pre = [rd(t) for t in range(D)]
    def G(i, pk=False):
        return gelu(T[i], C0R, C1R, IRR, GT, (t3 if i < 2 else t4, 2048 * (i & 1)), f"h{i}", 4 << (4 * L), pk)
    def at(groups, n, item):
        groups[n] = groups[n] + I(item)
    kv = []
    if L == 0:
        cs = [I([need_ins("w1CD2")] + tr("v", STV + 4 * (j & 3), x0, 32768 + 2048 * (j >> 1) + 512 * (j & 1))) for j in range(4)]
        for j in range(8):
            c = V(CC + 4 * (j & 1))
            cs.append(I(f"{MF16} {c}, {V(AS4)}, {V(STV + 4 * (j & 3))}, {c}"))
            if j + 4 < 8:
                cs.append(tr("v", STV + 4 * (j & 3), x0, 32768 + 2048 * ((j + 4) >> 1) + 512 * (j & 1)))
        cs += [[]] + table_write(CC, 5, vtw, f"v{B1V + 2}") + table_write(CD_, 6, vtw, f"v{B1V + 3}")
        P.add(I(spread(G(0), cs + pre, 0.1, 0.95)))
        P.add(barrier())
        kv = wq_items([0, 1], "wkv")
        kv[0] = wq_setup(1024) + kv[0]
    elif G0X:
        P.add(I(spread(G(0, True), pre, 0.5, 0.95)))
    else:
        P.add(I(pre))
    P.add(tick(f"{L}.G0"))
    AB = [0, 32, RING, RING + 16]
    ACC = [A(224, 16)] + [V(b, 16) for b in AB[1:]]
    NR = 32
    def hf(s, i, tt): return XF + 4 * ((14 * s + 2 * i + tt) % NR)
    def hloads(s):
        return [I([f"s_add_u32 {u0}, {t5 if tt == 0 else d3}, {(8 * i + 2 * s) * 1024}",
                   f"buffer_load_dwordx4 {V(hf(s, i, tt))}, {vL16}, {sWS}, {u0} offen sc1"]) for i in range(7) for tt in range(2)]
    def mf(s, i, n):
        tt, ct = n >> 1, n & 1
        a = ACC[n]
        return f"{MF} {a}, {A(((7 * s + i) * 2 + ct) * 4)}, {V(hf(s, i, tt))}, {a if (s or i or n == 0) else 0}"
    def gS(s, ni=7): return [I(mf(s, i, n)) for i in range(ni) for n in range(4)]
    hb = I([f"s_lshr_b32 {u0}, {sW}, 1", f"s_mul_i32 {u0}, {u0}, {56 * 1024}", f"s_and_b32 {u1}, {sW}, 1", f"s_lshl_b32 {u1}, {u1}, 10",
            f"s_add_u32 {u0}, {u0}, {u1}", f"s_add_u32 {u0}, {u0}, {LB(L) + H_O}", f"s_lshl_b32 {t5}, {sTP}, 17", f"s_xor_b32 {d3}, {t5}, 0x20000",
            f"s_add_u32 {t5}, {t5}, {u0}", f"s_add_u32 {d3}, {d3}, {u0}"])
    for n in range(0, 10, 2):
        at(gBC, 1 + n, hb[n:n + 2])
    gx = []
    for i, x in ((2, G2X), (3, G3X)):
        if x:
            g = G(i, True)
            gx += [I(g[len(g) * n // 10:len(g) * (n + 1) // 10]) for n in range(10)]
    NT = opt("NT5", 2)
    S0 = 66 + len(gx)
    st = gBC + gx + gS(0) + gS(1) + gS(2) + gS(3, 7 - NT)
    def pos(p): return p if p < 100 else (66 + p - 100 if p < 200 else S0 + p - 200)
    PB = [pos(o(f"PB{i}", (18, 58, 216, 246)[i])) for i in range(4)]
    PI = [pos(o(f"PI{i}", (30, 103, 228, 256)[i])) for i in range(4)]
    CK = [pos(o(f"CK{i}", (42, 202, 240, 268)[i])) for i in range(4)]
    for s in range(4):
        at(st, PB[s], tick(f"{L}.zpb{s}") + publish(FB + 4 + s, x1, f"h{s}") + tick(f"{L}.zPB{s}"))
        at(st, PI[s], poll_issue(vPH, x0))
        at(st, CK[s], tick(f"{L}.zck{s}") + poll_check(vPH, x0, FB + 4 + s) + tick(f"{L}.zCK{s}"))
        n = CK[s]
        HS = o(f"HS{s}", (14, 10, 15, 10)[s])
        for j, x in enumerate(hloads(s)):
            q = 14 * s + j
            lo = 2 * q + 1 if q < NR else S0 + 4 * ((q - NR) >> 1) + 3
            n = max(n, lo)
            assert n < S0 + 4 * (q >> 1), (s, j, n)
            at(st, n, x)
            n = max(n, CK[s] + (j + 1) * HS // 10)
    at(st, pos(o("B6", 210)), barrier() + tick(f"{L}.zB6"))
    for j, x in enumerate(kv):
        at(st, pos(o("KV0", 1)) + j * o("KVS", 20) // 10, x)
    if L == 0 and opt("WQ3", 0):
        wq = wq_items([2])
        wq[0] = I(f"s_sub_u32 {d1}, {d1}, 1024") + wq[0]
        for j, x in enumerate(wq):
            at(st, pos(opt("WQ3", 0)) + j * opt("WQS", 20) // 10, x)
    wa = [f"v{EX + i}" for i in range(4)]
    for i in range(4):
        at(st, S0 + 60 + i, [f"s_xor_b32 {u0}, {sW}, {i}", f"s_mul_i32 {u0}, {u0}, 12288", f"s_add_u32 {u0}, {u0}, {SL + 4096 * max(0, i - 1)}",
                             f"v_add_u32 {wa[i]}, {u0}, {vL16}"])
    if L == 0:
        at(st, S0 + 64, tile_addr(LB(1) + XIN_O, LB(1) + ST2_O))
    else:
        at(st, S0 + 64, [f"v_and_b32 {x2}, 31, {vL}", f"v_lshrrev_b32 v{GT}, 5, {vL}", f"v_lshlrev_b32 {x2}, 10, {x2}", f"v_lshl_add_u32 {x2}, v{GT}, 4, {x2}",
                         f"s_lshl_b32 {t1}, {sTP}, 15", f"s_lshl_b32 {t2}, {sCT}, 6", f"s_add_u32 {t1}, {t1}, {t2}"])
    P.add(I(spread(st[:66], ([] if G0X else G(0)) + G(1), 0.02, o("GHI", 62 if G0X else 97) / 100)))
    P.add(tick(f"{L}.pC"))
    P.add(I(st[66:S0]))
    P.add(tick(f"{L}.GX"))
    wv = ([] if G2X else G(2)) + ([] if G3X else G(3))
    P.add(I(spread(st[S0:S0 + 28], wv, 0.02, o("GH2", 95) / 100)))
    P.add(tick(f"{L}.S0"))
    P.add(I(st[S0 + 28:S0 + 56]))
    P.add(tick(f"{L}.S1"))
    P.add(I(st[S0 + 56:S0 + 84]))
    P.add(tick(f"{L}.S2"))
    g = st[S0 + 84:]
    wr = []
    for n in (3, 2, 1, 0):
        for e, i in enumerate(range(7 - NT, 7)):
            g.append(I(mf(3, i, n)))
            if e >= 1 or NT == 1:
                k = (len(wr) + (NT - e) - 1) // (NT - e)
                g.append(I(wr[:k])); wr = wr[k:]
        if n:
            wr = [f"ds_write_b128 {wa[n]}, {V(AB[n] + 4 * j)} offset:{1024 * j}" for j in range(4)]
    P.add(I(g))
    x, tmp = 48, XF
    for i in range(16):
        P(f"v_accvgpr_read_b32 v{x + i}, a{224 + i}")
    P.add(tick(f"{L}.S3"))
    P.add(barrier(*(["wkv"] if L == 0 else [])))
    for j in range(12):
        P(f"ds_read_b128 {V(tmp + 4 * j)}, {wa[0]} offset:{1024 * j}")
    for p in range(3):
        for i in range(8):
            P(f"v_pk_add_f32 {V(x + 2 * i, 2)}, {V(x + 2 * i, 2)}, {V(tmp + 16 * p + 2 * i, 2)}")
    if L == 0:
        tile_out(x, 16, 24, 8, [], None)
        for i in range(16):
            P(f"v_accvgpr_write_b32 a{224 + i}, v{x + i}")
        P.add(publish(8, x1))
        P.add(tick("0.p5end"))
    else:
        for i in range(8):
            P(f"v_cvt_pk_bf16_f32 v{16 + i}, v{x + 2 * i}, v{x + 2 * i + 1}")
        P(f"buffer_store_dwordx4 {V(16)}, {x2}, {sOUT}, {t1} offen {OM}")
        P(f"buffer_store_dwordx4 {V(20)}, {x2}, {sOUT}, {t1} offen offset:32 {OM}")
        if PROF:
            P.need("stores")
            P.add(tick("1.final"))
            P.add(prof_dump())
```

```python
import sys, struct, re
from asmgen import Prog, Ins, emit, need_ins

KN = "interleave_layers__sliding_block__mixer_channel_mlp__prompt_kernel"
OPT = dict(a.split("=") for a in sys.argv[2:])
STOP = OPT.get("STOP")
PROF = int(OPT.get("PROF", 0))
def opt(name, default): return int(OPT.get(name, default))

MB = 1 << 20
KV_O, O_O, X1_O, XIN_O, ST1_O, ST2_O, H_O = 0, 4 * MB, 6 * MB, 8 * MB, 10 * MB, 10 * MB + 256 * 1024, 11 * MB
LSTRIDE = 20 * MB
def LB(L): return MB + L * LSTRIDE
FPACK = 131072
MBOX = FPACK + 8192
ARR = FPACK + 65536
OOB = 0x40000000
R0, R1, R2, SL, PITCH = 0, 32768, 65536, 98304, 4112
SCR3, SPARE, TAB0, RBC = 131072, 147648, 156160, 163328

sC, sM, sW, sCNT = "s4", "s5", "s6", "s7"
sRR = "s0"
sX, sWQ, sWO, sW1, sW2, sWS, sOUT, sB2, sB1, sDBG = [f"s[{8 + 4 * i}:{11 + 4 * i}]" for i in range(10)]
sT, sTP, sCT, sMODE, sFA, sFP = "s48", "s49", "s50", "s51", "s52", "s53"
t0, t1, t2, t3, t4, t5 = "s54", "s55", "s56", "s57", "s58", "s59"
d0, d1, d2, d3 = "s60", "s61", "s62", "s63"
u0, u1, u2, u3 = "s96", "s97", "s98", "s99"
def sMASK(r): return f"s[{64 + 2 * r}:{65 + 2 * r}]"
vL, vL16, vTR, vTR1, vTP, vTP1, vPX, vPO, vPH, vPROF, voQ, vo1, vo2 = [f"v{i}" for i in range(13)]
x0, x1, x2 = "v13", "v14", "v15"
XF = 128

def f2u(x): return struct.unpack("<I", struct.pack("<f", x))[0]
def fc(x): return hex(f2u(x))
def V(n, k=4): return f"v[{n}:{n + k - 1}]" if k > 1 else f"v{n}"
def A(n, k=4): return f"a[{n}:{n + k - 1}]" if k > 1 else f"a{n}"
def R(f, n, k=4): return f"{f}[{n}:{n + k - 1}]"

PL = opt("PL", 0)
P3N = opt("P3N", 1)
PMOD = OPT.get("PMOD", "")
LOG2E = 1.4426950408889634
EPS = 1e-5
P = Prog()
MF = "v_mfma_f32_32x32x16_bf16"
MF16 = "v_mfma_f32_16x16x32_bf16"
OUTL = []


def I(x):
    if isinstance(x, str):
        return [Ins(x)]
    if isinstance(x, Ins):
        return [x]
    out = []
    for e in x:
        out += I(e)
    return out


def cost(ins):
    c = 0
    for i in ins:
        if i.kind in ("label", "dir"):
            continue
        c += 8 if (i.kind in ("mfma", "trans") or i.op.startswith("v_permlane")) else 4
    return c


def weave(groups, fill, slack=4, start=0, rate=1.0):
    out, f, credit = [], [], 0
    for it in fill:
        if isinstance(it, tuple):
            f.append((it[0], I(it[1])))
        else:
            f.append((0, I(it)))
    for n, g in enumerate(groups):
        g = I(g)
        out += g
        pipe = sum(4 * i.passes for i in g if i.kind == "mfma")
        if n < start:
            continue
        credit = min(credit, 8) + (pipe - cost(g) - slack) * rate
        while f and f[0][0] <= n and credit > 0:
            it = f.pop(0)[1]
            out += it
            credit -= cost(it)
    for _, it in f:
        out += it
    return out


def spread(main, fill, lo=0.0, hi=1.0):
    main = [I(m) for m in main]
    fill = [I(x) for x in fill]
    tot = sum(cost(m) for m in main)
    out, acc, k = [], 0, 0
    for m in main:
        out.append(m)
        acc += cost(m)
        while k < len(fill) and acc >= tot * (lo + (hi - lo) * k / max(1, len(fill))):
            out.append(fill[k]); k += 1
    out += fill[k:]
    return out


def tr(f, n, base, off):
    assert 0 <= off and off + 256 < 65536
    return [Ins(f"ds_read_b64_tr_b16 {R(f, n, 2)}, {base} offset:{off}"),
            Ins(f"ds_read_b64_tr_b16 {R(f, n + 2, 2)}, {base} offset:{off + 256}")]

def tr1(n, addr):
    return tr("v", n, vTR, addr) if addr < 65536 else tr("v", n, vTR1, addr - 65536)

def trp(n, addr):
    return tr("v", n, vTP, addr) if addr < 65536 else tr("v", n, vTP1, addr - 65536)


def ntm(srd):
    b = {sW2: 1, sW1: 2, sWO: 4, sWQ: 8, "H": 16, "X": 32, "O": 64, "KV": 128, sX: 256}[srd]
    return " nt" if opt("NT", 0) & b else ""


def dma(srd, voff, sbase, goffs, lds_s, lds_imm, tag, st=d0):
    out = []
    for j, g in enumerate(goffs):
        it = []
        if j % 4 == 0:
            it.append(Ins(f"s_add_u32 m0, {lds_s}, {lds_imm + 1024 * j}") if lds_s else Ins(f"s_mov_b32 m0, {lds_imm + 1024 * j}"))
        o = g - (j % 4) * 1024
        assert o >= 0
        it.append(Ins(f"s_add_u32 {st}, {sbase}, {o}"))
        it.append(Ins(f"buffer_load_dwordx4 {voff}, {srd}, {st} offen offset:{(j % 4) * 1024}{ntm(srd)} lds", xdst=[tag]))
        out.append(it)
    return out


def dma_rot(srd, voff, sbase, n, gstep, g0, lds_s, lds_imm, tag, rot):
    out = []
    for j in range(n):
        it = []
        if j % 4 == 0:
            it += [f"s_xor_b32 {d0}, {rot}, {j // 4}", f"s_lshl_b32 {d3}, {d0}, 12", f"s_mul_i32 {d0}, {d0}, {4 * gstep}", f"s_add_u32 {d3}, {d3}, {lds_s}",
                   f"s_add_u32 {d0}, {d0}, {sbase}", f"s_add_u32 m0, {d3}, {lds_imm - g0}"]
        else:
            it.append(f"s_add_u32 {d0}, {d0}, {gstep - 1024}")
        it.append(Ins(f"buffer_load_dwordx4 {voff}, {srd}, {d0} offen offset:{(j % 4) * 1024 + g0} lds", xdst=[tag]))
        out.append(I(it))
    return out


def barrier(*extra):
    return [need_ins("ds_any", *extra), Ins("s_barrier")]


SP = opt("SP", 0)
SFB, SBIAS = 20 * MB, 0xFF0000
cO, cH, cX, sAT, pO, pX, pH = "s36", "s37", "s38", "s39", "s8", "s9", "s10"


def spk(val):
    L, e = val >> 4, val & 15
    if e == 1 and SP & 1: return cO, 512 * L, pO, 512 * L, "O"
    if e == 3 and SP & 2: return cX, 4096 * L + 3072, pX, 3072, "X"
    if 4 <= e < 8 and SP & 4: return cH, 4096 * L + 512 * (e - 2), pH, 512 * (e - 2), "H"
    if e == 8 and SP & 8: return cX, 3584, pX, 3584, "X"
    return None


def sload(k, base):
    return f"s_buffer_load_dwordx2 s[44:45], {sWS}, {base} offset:{k[1]}" if k[4] == "O" else f"s_buffer_load_dwordx4 s[44:47], {sWS}, {base} offset:{k[1]}"


def stest(k):
    if k[4] == "O":
        return ["s_nand_b32 s44, s44, s45"]
    return (["s_or_b32 s47, s47, 0xffff0000"] if k[4] == "H" else []) + ["s_nand_b64 s[44:45], s[44:45], s[46:47]"]


def poll_issue(vaddr, vt, target=0):
    k = spk(target)
    if k:
        return I(sload(k, k[0]))
    return [Ins(f"buffer_load_dword {vt}, {vaddr}, {sWS}, {sFP} offen sc1")]


def poll_check(vaddr, vt, target):
    ls, lr, lp = P.label(), P.label(), P.label()
    k = spk(target)
    o = [ls + ":"]
    if k:
        l1, lv = P.label(), P.label()
        o += [f"s_mov_b32 {sAT}, {k[0]}", f"s_cmp_eq_u32 {sMODE}, 0", f"s_cbranch_scc1 {lv}", l1 + ":", f"s_add_u32 {sAT}, {sAT}, 64",
              f"s_and_b32 s44, {sAT}, {0xc0 if k[4] == 'H' else 0x1c0}", f"s_cbranch_scc0 {lv}", sload(k, sAT)] + stest(k) + [f"s_cbranch_scc0 {lr}", f"s_branch {l1}", lv + ":"]
    OUTL.extend(I(o + [f"s_mov_b32 {sCNT}, 30000", lp + ":",
                       f"buffer_load_dword {vt}, {vaddr}, {sWS}, {sFP} offen sc1",
                       f"v_cmp_gt_u32 vcc, {target}, {vt}", f"s_cbranch_vccz {lr}",
                       f"s_sub_u32 {sCNT}, {sCNT}, 1", f"s_cbranch_scc0 {lp}", "s_endpgm"]))
    if k:
        return I(stest(k) + [f"s_cbranch_scc1 {ls}", lr + ":"])
    return I([f"v_cmp_gt_u32 vcc, {target}, {vt}", f"s_cbranch_vccnz {ls}", lr + ":"])


def poll(vaddr, vt, target):
    if spk(target):
        return poll_issue(vaddr, vt, target) + poll_check(vaddr, vt, target)
    lp, lr = P.label(), P.label()
    return I([f"s_mov_b32 {sCNT}, 30000", lp + ":",
              f"buffer_load_dword {vt}, {vaddr}, {sWS}, {sFP} offen sc1",
              f"v_cmp_gt_u32 vcc, {target}, {vt}", f"s_cbranch_vccz {lr}",
              f"s_sub_u32 {sCNT}, {sCNT}, 1", f"s_cbranch_scc0 {lp}", "s_endpgm", lr + ":"])


def sp_setup():
    if not SP:
        return []
    b = [f"s_lshl_b32 {u0}, {sC}, 15", f"s_add_u32 {u0}, {u0}, {SFB}", f"s_cmp_eq_u32 {sMODE}, 0", f"s_cselect_b32 {u0}, {OOB}, {u0}"]
    a = b + [f"s_and_b32 {u1}, {sTP}, 3", f"s_lshl_b32 {u1}, {u1}, 13", f"s_add_u32 {u1}, {u1}, {u0}", f"s_and_b32 {u2}, {sW}, 1",
             f"s_lshl_b32 {u3}, {u2}, 12", f"s_add_u32 {cO}, {u1}, {u3}", f"s_lshl_b32 {u3}, {u2}, 8", f"s_add_u32 {cH}, {u1}, {u3}",
             f"s_add_u32 {pX}, {u1}, {sCT}", f"s_sub_u32 {pX}, {pX}, {SBIAS}",
             f"s_lshl_b32 {u3}, {sW}, 13", f"s_add_u32 {cX}, {u0}, {u3}", f"s_buffer_load_dword s44, {sWS}, {cX} offset:{4096 + 3584}"]
    c = [f"s_lshr_b32 {u1}, {sM}, 3", f"s_lshl_b32 {u1}, {u1}, 12", f"s_and_b32 {u2}, {sM}, 7", f"s_add_u32 {u1}, {u1}, {u2}",
         f"s_add_u32 {pO}, {cX}, {u1}", f"s_sub_u32 {pO}, {pO}, {SBIAS}",
         f"s_cmp_ge_u32 {sM}, 7", f"s_cselect_b32 {u1}, {8192 - 14}, 0", f"s_lshl_b32 {u2}, {sM}, 1", f"s_add_u32 {u1}, {u1}, {u2}",
         f"s_and_b32 {u2}, {sW}, 1", f"s_add_u32 {u1}, {u1}, {u2}", f"s_andn2_b32 {u2}, {cX}, 8192", f"s_add_u32 {u1}, {u1}, {u2}",
         f"s_sub_u32 {pH}, {u1}, {SBIAS}", f"s_cmp_ge_u32 {sM}, 14", f"s_cselect_b32 {pH}, {OOB}, {pH}"]
    return [I(a), I(c)]


def sp_touch(bit, vt, va):
    if not opt("SPT", 0) & bit:
        return []
    return [I([f"s_lshl_b32 {u0}, {sC}, 4", f"s_add_u32 {u0}, {u0}, {sM}", f"s_lshl_b32 {u0}, {u0}, 2", f"s_add_u32 {u0}, {u0}, {sW}", f"s_lshl_b32 {u0}, {u0}, 9", f"s_add_u32 {u0}, {u0}, {SFB}",
               f"v_and_b32 {va}, 0x180, {vL16}", f"buffer_load_dword {vt}, {va}, {sWS}, {u0} offen sc1"])]


EF = opt("EF", 0)
sRT = "s1"


def publish(val, vt, tag="stores", early=None):
    ls, lr = P.label(), P.label()
    st = f"buffer_store_dword {vt}, off, {sWS}, {sFA}"
    OUTL.extend(I([ls + ":", need_ins(tag), st + " sc1", f"s_branch {lr}"]))
    k = spk(val)
    nx = [f"s_add_u32 {pX}, {pX}, 4096", f"s_add_u32 {pH}, {pH}, 4096"] if SP and val == 8 else []
    if k:
        assert not early
        return I([f"v_and_b32 {vt}, 0x1c0, {vL16}", f"v_or_b32 {vt}, {SBIAS}, {vt}", f"s_cmp_eq_u32 {sMODE}, 0", need_ins(tag),
                  f"buffer_store_byte_d16_hi {vt}, {vt}, {sWS}, {k[2]} offen offset:{k[3]}", f"v_mov_b32 {vt}, {val}", f"s_cbranch_scc1 {ls}", st, lr + ":"] + nx)
    return I([f"v_mov_b32 {vt}, {val}", f"s_cmp_eq_u32 {sMODE}, 0", need_ins(early or tag), f"s_cbranch_scc1 {ls}", st, lr + ":"] + nx)


INAMES = ["O0", "X0", "H00", "H01", "H02", "H03", "Y0", "O1", "X1", "H10", "H11", "H12", "H13"]
IW = dict(zip(INAMES, OPT.get("IW", "AAAAAAACCaaaa")))
def efbit(n): return EF & {"O": 1, "X": 2, "H": 4, "Y": 8}[n[0]]


def inits(win, r):
    out = []
    for n in INAMES:
        if IW[n] != win or not efbit(n):
            continue
        L = int(n[1])
        def st(off): return Ins(f"buffer_store_dwordx4 {V(r)}, {vL16}, {sWS}, {u0} offen offset:{off} sc1", xdst=["i" + n])
        if n[0] == "O":
            o = [f"s_lshl_b32 {u0}, {sT}, 4", f"s_add_u32 {u0}, {u0}, {sM}", f"s_lshl_b32 {u0}, {u0}, 11", f"s_add_u32 {u0}, {u0}, {LB(L) + O_O}", st(0), st(1024)]
        elif n[0] == "H":
            o = [f"s_lshl_b32 {u0}, {sT}, 4", f"s_add_u32 {u0}, {u0}, {sM}", f"s_lshl_b32 {u0}, {u0}, 13", f"s_add_u32 {u0}, {u0}, {LB(L) + H_O + 2048 * int(n[2])}",
                 f"s_cmp_ge_u32 {sM}, 14", f"s_cselect_b32 {u0}, {OOB}, {u0}", st(0), st(1024)]
        else:
            xo, so = (LB(L) + X1_O, LB(L) + ST1_O) if n[0] == "X" else (LB(1) + XIN_O, LB(1) + ST2_O)
            o = [f"s_lshl_b32 {u1}, {sTP}, 4", f"s_add_u32 {u1}, {u1}, {sCT}", f"s_lshl_b32 {u0}, {u1}, 11", f"s_add_u32 {u0}, {u0}, {xo}", st(0), st(1024),
                 f"s_lshl_b32 {u0}, {u1}, 8", f"s_add_u32 {u0}, {u0}, {so}", "s_mov_b64 exec, 0xffff", st(0), "s_mov_b64 exec, -1"]
        out.append(I(o))
    if out:
        out[0] = I([f"v_mov_b64 {V(r, 2)}, -1", f"v_mov_b64 {V(r + 2, 2)}, -1"]) + out[0]
    return out


def redo(vc, back, extra=()):
    ls, lr = P.label(), P.label()
    OUTL.extend(I([ls + ":", f"s_cmp_eq_u32 {sRT}, 0", f"s_cbranch_scc1 {lr}", f"s_sub_u32 {sRT}, {sRT}, 1", "s_nop 15"] + list(extra) + ["s_waitcnt vmcnt(0) lgkmcnt(0)", f"s_branch {back}"]))
    return I([f"v_cmp_eq_u32 vcc, -1, {vc}", f"s_cbranch_vccnz {ls}", lr + ":"])


def chain(vc, base, n):
    return [(t + 1, f"v_max3_u32 {vc}, {vc}, v{base + 4 * t}, v{base + 4 * t + 4}" if t else f"v_max_u32 {vc}, v{base}, v{base + 4}") for t in range(0, n, 2)]


def xstore(txt, bit, tag=None, ini=None):
    kw = dict(xdst=[tag]) if tag else {}
    if ini:
        kw["xsrc"] = [ini]
    if not PL & bit:
        return [Ins(txt + " sc1" + (" nt" if opt("NTS", 0) & 1 else ""), **kw)]
    ls, lr = P.label(), P.label()
    OUTL.extend(I([ls + ":", Ins(txt + " sc1", **kw), f"s_branch {lr}"]))
    return I([f"s_cmp_eq_u32 {sMODE}, 0", f"s_cbranch_scc1 {ls}", Ins(txt + (" " + PMOD if PMOD else ""), **kw), lr + ":"])


PNAMES = []
def tick(name):
    if not PROF:
        return []
    if OPT.get("TK") and not re.match(OPT["TK"], name):
        return []
    op = "s_memtime" if opt("CLK", 0) else "s_memrealtime"
    return I([f"{op} s[100:101]", "s_waitcnt lgkmcnt(0)", Ins(f"v_writelane_b32 {vPROF}, s100, 0", comment="T:" + name)])


def prof_dump():
    if not PROF:
        return []
    return I([f"v_writelane_b32 {vPROF}, {sRT}, 63", f"s_lshl_b32 {t0}, s2, 2", f"s_add_u32 {t0}, {t0}, {sW}", f"s_lshl_b32 {t0}, {t0}, 8",
              f"s_add_u32 {t0}, {t0}, {LB(1) + 19 * MB}", f"v_lshlrev_b32 {x0}, 2, {vL}",
              f"buffer_store_dword {vPROF}, {x0}, {sWS}, {t0} offen"])


def stop(L, ph):
    if STOP == f"{L}.{ph}":
        P.add(prof_dump())
        P("s_endpgm")
        return True
    return False


def finish():
    import asmgen
    asmgen.SCHED = bool(opt('SCHED', 1))
    asmgen.MINW = opt('MINW', 2)
    P.put("L_end")
    P("s_endpgm")
    P.add(OUTL)
    for i in P.ins:
        if i.comment and i.comment.startswith("T:"):
            i.text = i.text[:-1] + str(len(PNAMES))
            PNAMES.append(i.comment[2:])
    assert len(PNAMES) <= 63
    body, ins = emit(P)
    hdr = open("interleave_layers__sliding_block__mixer_channel_mlp__prompt.s.ref").read()
    top = hdr.split("; @launch")[0]
    txt = top + "; @launch grid=(256,1,1) block=(256,1,1) lds=163840\n"
    txt += f""".amdgcn_target "amdgcn-amd-amdhsa--gfx950"
.text
.globl {KN}
.p2align 8
.type {KN},@function
{KN}:
{body}
.section .rodata,"a"
.p2align 6
.amdhsa_kernel {KN}
  .amdhsa_next_free_vgpr 512
  .amdhsa_next_free_sgpr 102
  .amdhsa_accum_offset 256
  .amdhsa_group_segment_fixed_size 0
  .amdhsa_kernarg_size 88
  .amdhsa_user_sgpr_count 2
  .amdhsa_user_sgpr_kernarg_segment_ptr 1
  .amdhsa_system_sgpr_workgroup_id_x 1
.end_amdhsa_kernel
"""
    open(sys.argv[1], "w").write(txt)
    print("instructions:", len(ins))
    open(sys.argv[1] + ".names", "w").write(" ".join(PNAMES))
```

```python
from k2_base import *

sW2B = "s3"
sTI = "s1"
X3 = opt("X3", 0)
NK = " nt" if opt("NTS", 0) & 2 else ""

def wq_items(imgs, tag="wq"):
    out = []
    for q in range(4):
        for img in imgs:
            cb = (0, 1024, 0)[img]
            out.append(I([f"s_xor_b32 {d0}, {sRR}, {q}", f"s_mul_i32 {d0}, {d0}, {128 * 3072}", f"s_add_u32 m0, {d2}, {img * 32768 + q * 8192 - cb}", f"s_add_u32 {d0}, {d0}, {d1}",
                          Ins(f"buffer_load_dwordx4 {voQ}, {sWQ}, {d0} offen offset:{cb} lds", xdst=[tag])]))
            out.append(I([f"s_add_u32 {d0}, {d0}, {16 * 3072 - 1024}",
                          Ins(f"buffer_load_dwordx4 {voQ}, {sWQ}, {d0} offen offset:{cb + 1024} lds", xdst=[tag])]))
    return out

def wq_setup(cb=0):
    return I([f"s_mul_i32 {d1}, {sW}, {32 * 3072}", f"s_lshl_b32 {d2}, {sM}, 6", f"s_add_u32 {d1}, {d1}, {d2}",
              f"s_lshl_b32 {d2}, {sW}, 11"] + ([f"s_add_u32 {d1}, {d1}, {cb}"] if cb else []))

vX0, vX1, XA = "v112", "v113", 120

def x0_items(h):
    out = []
    for j in range(4):
        it = []
        if j == 0:
            it += [f"s_xor_b32 {d1}, {t5}, {h}", f"s_lshl_b32 {d1}, {d1}, 7", f"s_add_u32 {d1}, {d1}, {t3}", f"s_add_u32 m0, {d3}, {SL + 4096 * (h & 3)}"]
        else:
            it.append(f"s_add_u32 {d1}, {d1}, 7168")
        it.append(Ins(f"buffer_load_dwordx4 {vX1 if j & 1 else vX0}, {sX}, {d1} offen offset:{j * 1024}{ntm(sX)} lds", xdst=[f"x{h}"]))
        out.append(I(it))
    return out

def w0_items(h, imgs=(0, 1), tag=None):
    out = []
    for img in imgs:
        cb = (1024, 2048, 0)[img]
        out += dma(sWQ, voQ, d1, [cb], d2, img * 32768 + h * 4096, tag or f"kv{h}")
    out[0] = I([f"s_xor_b32 {d1}, {t5}, {h}", f"s_mul_i32 {d1}, {d1}, {64 * 3072}", f"s_add_u32 {d1}, {d1}, {t4}"]) + out[0]
    return out

def w2_piece(kks, mul, imm, tag, vb):
    goffs = []
    for kk in kks:
        s, i = kk // 7, kk % 7
        goffs += [(128 * i + 32 * s + 8 * h) * 1024 for h in range(2)]
    dm = dma(sW2, vo2, sW2B, goffs, d2, imm, tag)
    dm[0] = I(f"s_mul_i32 {d2}, {sW}, {mul}") + dm[0]
    rd = [I([f"s_mul_i32 {u0}, {sW}, {mul}", f"s_add_u32 {u0}, {u0}, {imm}", f"v_add_u32 {vb}, {u0}, {vTP}", need_ins(tag)])]
    for j, kk in enumerate(kks):
        for ct in range(2):
            rd.append(tr("a", (kk * 2 + ct) * 4, vb, 2048 * j + 512 * ct))
    return dm, rd

def w2_round(rnd, vb):
    k = {1: 13, 2: 0, 3: 18, 4: 23}[rnd]
    pieces = {1: [(5, 16384, 0)],
              2: [(8, 16384, 0), (4, 8192, R2), (1, 2048, SPARE)],
              3: [(4, 8192, R2), (1, 2048, SPARE)],
              4: [(4, 8192, SL), (1, 2048, SPARE)]}[rnd]
    dm, rd = [], []
    for n, (cnt, mul, imm) in enumerate(pieces):
        a, b = w2_piece(list(range(k, k + cnt)), mul, imm, f"w2r{rnd}_{n}", vb)
        dm += a; rd += b
        k += cnt
    return dm, rd

def wo_items(rot=False):
    it = dma_rot(sWO, vo2, d1, 16, 8192, 0, d2, 0, "wo", sRR) if rot else dma(sWO, vo2, d1, [j * 8 * 1024 for j in range(16)], d2, 0, "wo")
    it[0] = I([f"s_and_b32 {d1}, {sW}, 1", f"s_lshl_b32 {d1}, {d1}, 18", f"s_lshr_b32 {d2}, {sW}, 1", f"s_xor_b32 {d2}, {d2}, {sRR}", f"s_and_b32 {d2}, {d2}, 1", f"s_lshl_b32 {d2}, {d2}, 17",
               f"s_add_u32 {d1}, {d1}, {d2}", f"s_and_b32 {d2}, {sCT}, 14", f"s_lshl_b32 {d2}, {d2}, 6", f"s_add_u32 {d1}, {d1}, {d2}",
               f"s_lshl_b32 {d2}, {sW}, 14"]) + it[0]
    return it

def wo_reads(va):
    rd = [I([f"s_lshl_b32 {u0}, {sW}, 14", f"v_add_u32 {va}, {u0}, {vTP}", need_ins("wo")])]
    return rd + [tr("v", 128 + (ks * 2 + ct) * 4, va, 2048 * ks + 512 * ct) for ks in (0, 2, 4, 6, 1, 3, 5, 7) for ct in range(2)]

def idle(*regs):
    if not opt("IDL", 1):
        return []
    return [f"s_cmp_ge_u32 {sM}, 14"] + [f"s_cselect_b32 {r}, {OOB}, {r}" for r in regs]

def w1_items(part, rot=False):
    if part == "AB":
        rows, n, g0, sh, imm = 128, 16, 0, 14, 0
        pre = [f"s_xor_b32 {d1}, {sW}, {sRR}"]
    else:
        rows, n, sh, g0 = 64, 8, 13, 128
        imm = R2 if part == "CD1" else SL
        pre = [f"s_lshl_b32 {d1}, {sRR}, 1", f"s_xor_b32 {d1}, {d1}, {sW}"] + ([f"s_xor_b32 {d1}, {d1}, 4"] if part == "CD2" else [])
    if rot:
        it = dma_rot(sW1, vo1, d1, n, 8 * 3584, g0, d2, imm, "w1" + part, u3)
        pre = pre + [f"s_and_b32 {u3}, {sRR}, 1"] + ([f"s_lshl_b32 {u3}, {u3}, 1"] if n == 16 else [])
    else:
        it = dma(sW1, vo1, d1, [g0 + j * 8 * 3584 for j in range(n)], d2, imm, "w1" + part)
    it[0] = I(pre + [f"s_mul_i32 {d1}, {d1}, {rows * 3584}", f"s_lshl_b32 {d2}, {sM}, 8", f"s_add_u32 {d1}, {d1}, {d2}"] + idle(d1) +
              [f"s_lshl_b32 {d2}, {sW}, {sh}"]) + it[0]
    return it


def asel(n):
    return I([f"v_lshrrev_b32 v{n}, 2, {vL}", f"v_xor_b32 v{n}, v{n}, {vL}", f"v_bfe_u32 v{n}, v{n}, 2, 1",
              f"v_add_u32 v{n}, -1, v{n}", f"v_and_b32 v{n}, 0x3f803f80, v{n}",
              f"v_mov_b32 v{n + 1}, v{n}", f"v_mov_b64 {V(n + 2, 2)}, {V(n, 2)}"])


def table_write(c, tab, va, bias=None, tag=None):
    o = [f"v_cvt_pk_bf16_f32 v{c + 2}, v{c}, v{c}",
         f"v_lshlrev_b32 v{c + 1}, 16, v{c + 2}",
         f"v_sub_f32 v{c + 1}, v{c}, v{c + 1}",
         f"v_and_b32 v{c + 3}, 0xffff, v{c + 2}",
         f"v_cvt_pk_bf16_f32 v{c + 2}, v{c}, v{c + 1}"]
    if bias:
        o.append(f"v_lshl_or_b32 v{c + 3}, {bias}, 16, v{c + 3}")
    o.append(Ins(f"ds_write_b64 {va}, {V(c + 2, 2)} offset:{tab * 1024}", **(dict(xdst=[tag]) if tag else {})))
    return [I(x) for x in o]


def table_addr(va):
    return I([f"s_lshr_b32 {u0}, {sW}, 1", f"s_lshl_b32 {u0}, {u0}, 9", f"s_and_b32 {u1}, {sW}, 1", f"s_lshl_b32 {u1}, {u1}, 3",
              f"s_add_u32 {u0}, {u0}, {u1}", f"s_add_u32 {u0}, {u0}, {TAB0}",
              f"v_and_b32 {va}, 0x1f0, {vL16}", f"v_add_u32 {va}, {u0}, {va}"])


def stats_finish(a, b, c, d, ex, mlp, r, ir):
    o = [f"v_mul_f32 {a}, {fc(-1.0 / 512)}, {a}",
         f"v_mul_f32 {c}, {a}, {a}",
         f"v_fma_f32 {b}, {b}, {u3}, -{c}",
         f"v_cvt_pk_bf16_f32 v{ex}, {a}, {a}",
         f"v_max_f32 {b}, 0, {b}",
         f"v_add_f32 {c}, {fc(EPS)}, {b}",
         f"v_rsq_f32 {r}, {c}",
         f"v_lshlrev_b32 {d}, 16, v{ex}",
         f"v_sub_f32 {d}, {a}, {d}"]
    o = [f"s_mov_b32 {u3}, {fc(1.0 / 512)}"] + o
    if mlp:
        o += [f"v_mul_f32 {b}, {b}, {r}", f"v_mul_f32 {b}, {b}, {r}", f"v_add_f32 {b}, {fc(EPS)}, {b}",
              f"v_rsq_f32 {b}, {b}", f"v_mov_b32 v{ex + 2}, v{ex}", f"v_mul_f32 {r}, {b}, {r}", f"v_rcp_f32 {ir}, {r}",
              f"v_cvt_pk_bf16_f32 v{ex + 1}, {d}, {ir}", f"v_and_b32 {a}, 0xffff0000, v{ex + 1}", f"v_sub_f32 {a}, {ir}, {a}",
              f"v_cvt_pk_bf16_f32 v{ex + 3}, {d}, {a}"]
    else:
        o += [f"v_mov_b32 v{ex + 2}, v{ex}", f"v_cvt_pk_bf16_f32 v{ex + 1}, {d}, {d}", f"v_mov_b32 v{ex + 3}, v{ex + 1}"]
    return [I(x) for x in o]


def x_loads(xoff, stoff, stv):
    setup = I([f"s_lshl_b32 {t1}, {sT}, 2", f"s_add_u32 {t1}, {t1}, {sRR}", f"s_lshl_b32 {t1}, {t1}, 13", f"s_add_u32 {t1}, {t1}, {xoff}", f"s_lshl_b32 {t2}, {sT}, 12", f"s_add_u32 {t2}, {t2}, {stoff}", f"v_lshlrev_b32 v{stv + 15}, 2, {vL}"])
    items = []
    for t in range(32):
        if t == opt("XSP", 16):
            for s in range(0, 16, 4):
                items.append(I([f"buffer_load_dword v{stv + s + e}, v{stv + 15}, {sWS}, {t2} offen offset:{(s + e) * 256} sc1" for e in range(4)]))
        o = []
        if t % 4 == 0:
            o.append(f"s_xor_b32 {t0}, {t1}, {t * 1024}")
        o.append(f"buffer_load_dwordx4 {V(XF + 4 * t)}, {vL16}, {sWS}, {t0} offen offset:{(t % 4) * 1024} sc1{ntm('X')}")
        items.append(I(o))
    return setup, items


def attach(groups, items, start=0, per=1):
    items = list(items)
    for n in range(start, len(groups)):
        for _ in range(per):
            if items:
                groups[n] = groups[n] + I(items.pop(0))
    assert not items
    return groups


def stats_sum(stv, vc=None):
    o = []
    for st in (8, 4, 2, 1):
        for i in range(st):
            o.append(f"v_add_f32 v{stv + i}, v{stv + i}, v{stv + i + st}")
    if vc:
        o += [[f"v_cmp_u_f32 vcc, v{stv}, v{stv}", f"v_mov_b32 v{stv + 1}, v{stv}", "s_nop 0", f"v_cndmask_b32_e64 {vc}, {vc}, -1, vcc"], f"v_permlane32_swap_b32 v{stv}, v{stv + 1}"]
    else:
        o += [f"v_mov_b32 v{stv + 1}, v{stv}", "s_nop 0", f"v_permlane32_swap_b32 v{stv}, v{stv + 1}"]
    return [I(x) for x in o]


def prologue():
    P("s_cmp_ge_u32 s2, 256")
    P("s_cbranch_scc1 L_end")
    P.add(tick("s.start"))
    P("s_load_dwordx16 s[64:79], s[0:1], 0")
    P("s_load_dwordx4 s[80:83], s[0:1], 64")
    P("s_load_dwordx2 s[84:85], s[0:1], 80")
    P(f"v_lshrrev_b32 {x0}, 6, v0")
    P("v_and_b32 v0, 63, v0")
    P(f"v_readfirstlane_b32 {sW}, {x0}")
    P("s_and_b32 s3, s2, 7")
    P(f"s_lshl_b32 {sC}, s3, 1")
    P("s_bfe_u32 s3, s2, 0x10003")
    P(f"s_or_b32 {sC}, {sC}, s3")
    P(f"s_lshr_b32 {sM}, s2, 4")
    if opt("MX", 0):
        P(f"s_xor_b32 {sM}, {sM}, {opt('MX', 0)}")
    P(f"v_lshlrev_b32 {vL16}, 4, {vL}")
    P(f"s_lshl_b32 {sT}, {sC}, 2")
    P(f"s_add_u32 {sT}, {sT}, {sW}")
    P(f"v_lshrrev_b32 {x0}, 3, {vL}")
    P(f"v_xor_b32 {x2}, {x0}, {vL}")
    P(f"v_and_b32 {x2}, 7, {x2}")
    P(f"v_lshlrev_b32 {x2}, 4, {x2}")
    P(f"v_lshl_add_u32 {vX0}, {x0}, 10, {x2}")
    P(f"v_xor_b32 {vX1}, 16, {vX0}")
    P(f"v_lshrrev_b32 {x1}, 5, {vL}")
    P(f"v_lshrrev_b32 {voQ}, 2, {vL}")
    P(f"v_mul_u32_u24 {voQ}, 3072, {voQ}")
    P(f"v_and_b32 {x0}, 0x30, {vL16}")
    P(f"v_add_u32 {voQ}, {voQ}, {x0}")
    P(f"s_lshl_b32 {t5}, s3, 1")
    P(f"s_and_b32 {t0}, {sM}, 1")
    P(f"s_or_b32 {t5}, {t5}, {t0}")
    P(f"s_bfe_u32 {t0}, {sM}, 0x20001")
    P(f"s_xor_b32 {t5}, {t5}, {t0}")
    ROT = opt("ROT", 0)
    if ROT == 0:
        P(f"s_mov_b32 {t5}, 0")
    elif ROT == 1:
        P(f"s_and_b32 {t5}, {t5}, 1")
        P(f"s_lshl_b32 {t5}, {t5}, 1")
    elif ROT == 2:
        P(f"s_lshl_b32 {t5}, {t5}, 1")
    elif ROT == 3:
        P(f"s_and_b32 {t5}, {t5}, 1")
    elif ROT == 4:
        P(f"s_lshr_b32 {t5}, {sM}, 1")
    elif ROT == 5:
        P(f"s_lshr_b32 {t5}, {sM}, 1")
        P(f"s_lshl_b32 {t0}, s3, 2")
        P(f"s_xor_b32 {t5}, {t5}, {t0}")
    elif ROT == 6:
        P(f"s_and_b32 {t5}, {sM}, 7")
    elif ROT == 7:
        P(f"s_lshr_b32 {t5}, {sM}, 2")
        P(f"s_lshl_b32 {t5}, {t5}, 1")
    elif ROT == 8:
        P(f"s_lshl_b32 {t5}, {t5}, 1")
        P(f"s_lshr_b32 {t0}, {sM}, 3")
        P(f"s_or_b32 {t5}, {t5}, {t0}")
    if opt("ROTX", 0):
        P(f"s_and_b32 {t0}, s2, 7")
        P(f"s_xor_b32 {t5}, {t5}, {t0}")
    P(f"s_lshl_b32 {t3}, {sT}, 15")
    P(f"s_mul_i32 {t4}, {sW}, {16 * 3072}")
    P(f"s_lshl_b32 {d2}, {sM}, 6")
    P(f"s_add_u32 {t4}, {t4}, {d2}")
    P(f"s_lshl_b32 {d2}, {sW}, 10")
    P(f"s_lshl_b32 {d3}, {sW}, 14")
    def srd(n, src, size):
        P(f"s_mov_b64 s[{n}:{n + 1}], s[{src}:{src + 1}]")
        P(f"s_mov_b32 s{n + 2}, {size}")
        P(f"s_mov_b32 s{n + 3}, 0x00020000")
    ini = init_l0()
    P.add(I(ini[0]))
    srd(28, 84, 64 * MB)
    srd(8, 64, 2 * MB)
    srd(12, 66, 512 * 1536 * 2)
    IP = [int(c) for c in OPT.get("IP", "11020")]
    assert sum(IP) == 4
    global INI
    INI = ini[1:5]
    H3 = opt("H3", 0)
    h3 = I([f"s_lshr_b32 {sTI}, s2, 3", f"s_cmp_ge_u32 {sM}, 8", f"s_cselect_b32 {u0}, 4, 0", f"s_sub_u32 {sTI}, {sTI}, {u0}", f"s_lshl_b32 {sTI}, {sTI}, 2", f"s_add_u32 {sTI}, {sTI}, {sW}",
            f"s_lshr_b32 {u0}, {sM}, 1", f"s_cmp_eq_u32 {u0}, 3", f"s_cselect_b32 {sTI}, 0x10000, {sTI}"]) if X3 or H3 else []
    if H3:
        h3 += help3("a232", "v23", u0)
    P.add(I(ini[5:] + INI[:IP[0]] + (h3 if H3 == 3 else []) + x0_items(0) + w0_items(0) + (h3 if H3 == 2 else []) + INI[IP[0]:IP[0] + IP[1]] + x0_items(1) + w0_items(1) + INI[IP[0] + IP[1]:sum(IP[:3])]))
    if H3 < 2:
        P.add(h3)
    INI = [INI[sum(IP[:3]):sum(IP[:4])], INI[sum(IP[:4]):]]
    P.add(tick("s.c0"))
    srd(44, 82, 256)
    P(f"s_getreg_b32 {sMODE}, hwreg(HW_REG_XCC_ID, 0, 4)")
    P(f"s_or_b32 {sMODE}, {sMODE}, 0x10")
    P.add(lead_init())
    srd(16, 68, 512 * 512 * 2)
    srd(20, 72, 512 * 1792 * 2)
    srd(24, 76, 1792 * 512 * 2)
    srd(32, 80, 2 * MB)
    srd(36, 78, 1024)
    srd(40, 74, 3584)
    P(f"s_lshr_b32 {u0}, s2, 2")
    P(f"s_xor_b32 {u0}, {u0}, s2")
    P(f"s_bfe_u32 {sRR}, {u0}, 0x20003")
    if not (X3 or H3):
        P(f"s_mov_b32 {sRT}, 1000")
    if not opt("RR", 1):
        P(f"s_mov_b32 {sRR}, 0")
    P(f"v_bfe_u32 {x0}, {vL}, 2, 2")
    P(f"v_lshl_add_u32 {x0}, {x1}, 3, {x0}")
    P(f"v_lshlrev_b32 {x0}, 6, {x0}")
    P(f"v_bfe_u32 {x2}, {vL}, 4, 1")
    P(f"v_lshl_add_u32 {x0}, {x2}, 5, {x0}")
    P(f"v_and_b32 {x2}, 1, {vL}")
    P(f"v_lshl_add_u32 {x0}, {x2}, 4, {x0}")
    P(f"v_bfe_u32 {x2}, {vL}, 1, 1")
    P(f"v_lshl_add_u32 {vTR}, {x2}, 3, {x0}")
    P(f"v_add_u32 {vTR1}, 0x10000, {vTR}")
    P(f"v_lshl_add_u32 {vTP}, {x1}, 9, {vTR}")
    P(f"v_add_u32 {vTP1}, 0x10000, {vTP}")
    P(f"s_and_b32 {t0}, {sM}, 1")
    P(f"s_lshl_b32 {t0}, {t0}, 1")
    P(f"s_lshl_b32 {sTP}, {sC}, 2")
    P(f"s_add_u32 {sTP}, {sTP}, {t0}")
    P(f"s_lshr_b32 {t0}, {sW}, 1")
    P(f"s_add_u32 {sTP}, {sTP}, {t0}")
    P(f"s_and_b32 {u0}, {sM}, 14")
    P(f"s_and_b32 {u1}, {sW}, 1")
    P(f"s_add_u32 {sCT}, {u0}, {u1}")
    P(f"s_mul_i32 {sW2B}, {t0}, {896 * 1024}")
    P(f"s_lshl_b32 {t0}, {u1}, 14")
    P(f"s_add_u32 {sW2B}, {sW2B}, {t0}")
    P(f"s_lshl_b32 {u0}, {u0}, 6")
    P(f"s_add_u32 {sW2B}, {sW2B}, {u0}")
    P(f"v_bfe_u32 {x0}, {vL}, 2, 3")
    P(f"v_and_b32 {x2}, 0x30, {vL16}")
    P(f"v_mul_u32_u24 {vo1}, 3584, {x0}")
    P(f"v_lshl_add_u32 {vo2}, {x0}, 10, {x2}")
    P(f"v_add_u32 {vo1}, {vo1}, {x2}")
    P(f"v_lshl_add_u32 {vo1}, {x1}, 6, {vo1}")
    P(f"v_xor_b32 {x0}, {u1}, {x1}")
    P(f"v_lshl_add_u32 {vo2}, {x0}, 6, {vo2}")
    P(f"v_and_b32 {x0}, 31, {vL}")
    P(f"v_lshlrev_b32 {x2}, 2, {x1}")
    P(f"v_sub_u32 {x0}, {x0}, {x2}")
    for r in range(16):
        P(f"v_cmp_le_i32_e64 {sMASK(r)}, {(r & 3) + 8 * (r >> 2)}, {x0}")
    P(f"v_mov_b32 {x0}, 0xffff")
    P(f"v_mov_b32 {x2}, 0xffff0000")
    for d in range(8):
        P(f"v_cndmask_b32_e64 v16, 0, {x0}, {sMASK(2 * d)}")
        P(f"v_cndmask_b32_e64 v17, 0, {x2}, {sMASK(2 * d + 1)}")
        P(f"v_or_b32 v16, v16, v17")
        P(f"v_accvgpr_write_b32 a{240 + d}, v16")


def init_kv(L, tag):
    it = []
    if L:
        it.append(I(f"s_add_u32 {u2}, {u2}, {LSTRIDE}"))
    for j in range(4):
        it.append([Ins(f"buffer_store_dwordx4 a[236:239], {vL16}, {sWS}, {u2} offen offset:{1024 * j} sc1{NK}", xdst=[tag])])
    return it


def init_l0():
    it = [I([f"v_accvgpr_write_b32 a{236 + i}, -1" for i in range(4)] +
            [f"s_lshl_b32 {u2}, {sT}, 4", f"s_add_u32 {u2}, {u2}, {sM}", f"s_lshl_b32 {u2}, {u2}, 12", f"s_add_u32 {u2}, {u2}, {LB(0) + KV_O}",
             "v_mov_b32 v20, 0", f"s_lshl_b32 {u0}, {sC}, 4", f"s_add_u32 {u0}, {u0}, {sM}", f"s_lshl_b32 {sFP}, {u0}, 7", f"s_add_u32 {sFP}, {sFP}, {MBOX}",
             f"s_lshl_b32 {u0}, {u0}, 2", f"s_add_u32 {sFA}, {u0}, {sW}",
             f"s_lshl_b32 {t1}, {sC}, 9", f"s_lshl_b32 {u0}, {sM}, 2", f"s_add_u32 {t1}, {t1}, {u0}", f"s_add_u32 {t1}, {t1}, {ARR}",
             f"v_lshrrev_b32 v21, 4, {vL}", f"v_and_b32 {vPO}, 15, {vL}", f"v_lshlrev_b32 {vPO}, 2, {vPO}", f"v_lshl_add_u32 v22, v21, 7, {vPO}",
             f"s_or_b32 {t2}, {sM}, {sW}"])]
    it += init_kv(0, "init")
    lsk = P.label()
    it.append(I([f"s_cmp_lg_u32 {t2}, 0", f"s_cbranch_scc1 {lsk}", f"buffer_store_dword v20, v22, {sWS}, {t1} offen sc1", lsk + ":"]))
    it.append([Ins(f"buffer_store_dword v20, off, {sWS}, {sFP} sc1", xdst=["init"])])
    if SP:
        it[opt("SPI", 4)] += I(["v_mov_b64 v[18:19], 0", f"v_lshlrev_b32 v17, 3, {vL}", f"s_lshl_b32 {u1}, {sFA}, 9", f"s_add_u32 {u1}, {u1}, {SFB}",
                                Ins(f"buffer_store_dwordx2 v[18:19], v17, {sWS}, {u1} offen sc1", xdst=["init"])])
    return it


def lead_init():
    lsk = P.label()
    return I([f"s_cmp_lg_u32 {t2}, 0", f"s_cbranch_scc1 {lsk}",
              f"s_min_u32 {u0}, {sC}, 2", f"v_cmp_ge_u32 vcc, {u0}, v21", f"v_cndmask_b32 {vPO}, {vPO}, v22, vcc",
              f"v_lshlrev_b32 v21, 2, {vL}", f"v_lshlrev_b32 v22, 7, {vL}", f"s_lshl_b32 {u0}, {sC}, 8", f"s_add_u32 {u0}, {u0}, {FPACK}", f"s_lshl_b32 {u1}, {sC}, 13",
              f"buffer_store_dword v20, v21, {sWS}, {u0} offen sc1", f"buffer_store_dword v20, v22, {sWS}, {u1} offen sc1", lsk + ":"])


def arrive(vd, so):
    return ["s_mov_b64 exec, 7", f"buffer_store_dword {vd}, {vPX}, {sWS}, {so} offen sc1", "s_mov_b64 exec, -1"]


def misc_l0():
    it = []
    it.append(I([f"v_and_b32 v21, 31, {vL}", f"v_lshrrev_b32 v22, 5, {vL}", "v_lshlrev_b32 v21, 10, v21", "v_lshlrev_b32 v22, 4, v22",
                 "v_add_u32 v21, v21, v22",
                 f"s_lshl_b32 {u0}, {sTP}, 15", f"s_lshl_b32 {u1}, {sCT}, 6", f"s_add_u32 {u0}, {u0}, {u1}"]))
    it.append(I(f"buffer_load_dwordx4 a[224:227], v21, {sX}, {u0} offen"))
    it.append(I(f"buffer_load_dwordx4 a[228:231], v21, {sX}, {u0} offen offset:32"))
    it.append(I(f"buffer_load_dwordx4 a[248:251], v22, {sB2}, {u1} offen"))
    it.append(I(f"buffer_load_dwordx4 a[252:255], v22, {sB2}, {u1} offen offset:32"))
    return it


def touch(srd, total, vt, va, st=u0, sh=7, grp=None):
    share, pb = total // 128, 64 << sh
    it = [I([f"s_lshr_b32 {st}, s2, 3", f"s_lshl_b32 {st}, {st}, 2", f"s_add_u32 {st}, {st}, {sW}", f"s_mul_i32 {st}, {st}, {share}",
             f"v_lshlrev_b32 {va}, {sh}, {vL}"])]
    if X3:
        share = (total + 112 * 128 - 1) // (112 * 128) * 128
        it = [I([f"s_mul_i32 {st}, {sTI}, {share}", f"v_lshlrev_b32 {va}, {sh}, {vL}"])]
    if grp is not None:
        it[0] += I([f"s_bitcmp{grp}_b32 s2, {opt('GB', 3)}", f"s_cselect_b32 {st}, {st}, {OOB}"])
    pos, base = 0, 0
    while pos < share:
        a = min(pos, share - pb)
        assert a >= 0
        o = []
        if a - base >= 4096:
            o.append(f"s_add_u32 {st}, {st}, {a - base}")
            base = a
        o.append(f"buffer_load_dword {vt}, {va}, {srd}, {st} offen offset:{a - base}{ntm(srd)}")
        it.append(I(o))
        pos += pb
    it[1] = it[0] + it[1]
    return it[1:]


def help3(vt, va, st):
    return I([f"s_mul_i32 {st}, {sTI}, 14336", f"v_min_u32 {va}, 13, {vL}", f"v_lshlrev_b32 {va}, 10, {va}",
              f"buffer_load_dword {vt}, {va}, {sWQ}, {st} offen offset:384"])


def touch_ab(vt, va, st, odd=0):
    it = [I([f"s_lshr_b32 {st}, s2, 3", f"s_lshl_b32 {st}, {st}, 2", f"s_add_u32 {st}, {st}, {sW}", f"s_mul_i32 {st}, {st}, 14336",
             f"v_lshrrev_b32 {va}, 2, {vL}", f"v_lshlrev_b32 {va}, 8, {va}", f"buffer_load_dword {vt}, {va}, {sW1}, {st} offen offset:{128 * odd}"])]
    for d in (4096, 4096, 2048):
        it.append(I([f"s_add_u32 {st}, {st}, {d}", f"buffer_load_dword {vt}, {va}, {sW1}, {st} offen offset:{128 * odd}"]))
    return it


def touch_qkv(va, vb):
    return [I([f"s_lshr_b32 {u0}, s2, 3", f"s_lshl_b32 {u0}, {u0}, 2", f"s_add_u32 {u0}, {u0}, {sW}", f"s_mul_i32 {u0}, {u0}, {4 * 3072}",
               f"v_lshrrev_b32 {va}, 4, {vL}", f"v_mul_u32_u24 {va}, 3072, {va}", f"v_and_b32 {vb}, 15, {vL}", f"v_lshl_add_u32 {va}, {vb}, 6, {va}",
               f"v_lshl_add_u32 {vb}, {vb}, 6, {va}",
               f"buffer_load_dword {vb}, {vb}, {sWQ}, {u0} offen offset:1024"] +
              ([f"buffer_load_dword {va}, {va}, {sWQ}, {u0} offen"] if opt("TKV", 0) > 1 else []))]


def touch_wq(vt, st):
    return [I([f"s_lshr_b32 {st}, s2, 3", f"s_mul_i32 {st}, {st}, {16 * 3072}", f"s_lshl_b32 {d0}, {sW}, 8", f"s_add_u32 {st}, {st}, {d0}",
               f"buffer_load_dword {vt}, {voQ}, {sWQ}, {st} offen"]),
            I(f"buffer_load_dword {vt}, {voQ}, {sWQ}, {st} offen offset:128")]


aK, aV, aQ, RING, STV, EX, TABS = 16, 32, 48, 64, 96, 112, 116
HB = XF


def kv_epilogue(L):
    r = x0
    it = []
    PKE = opt("PKE", 0)
    for i in range(16):
        if PKE:
            it.append([] if i & 1 else f"v_pk_mul_f32 {V(aK + i, 2)}, {V(aK + i, 2)}, v[12:13] op_sel:[0,1]")
        else:
            it.append(f"v_mul_f32 v{aK + i}, v{aK + i}, {r}")
    for i in range(8):
        it.append(f"v_cvt_pk_bf16_f32 v{aK + i}, v{aK + 2 * i}, v{aK + 2 * i + 1}")
    it.append([f"s_lshl_b32 {u0}, {sT}, 4", f"s_add_u32 {u0}, {u0}, {sM}", f"s_lshl_b32 {u0}, {u0}, 12", f"s_add_u32 {u0}, {u0}, {LB(L) + KV_O}"])
    it.append(f"buffer_store_dwordx4 {V(aK)}, {vL16}, {sWS}, {u0} offen sc1{NK}")
    it.append(f"buffer_store_dwordx4 {V(aK + 4)}, {vL16}, {sWS}, {u0} offen offset:2048 sc1{NK}")
    for i in range(16):
        if PKE:
            it.append([] if i & 1 else f"v_pk_mul_f32 {V(aV + i, 2)}, {V(aV + i, 2)}, {V(STV + i, 2)}")
        else:
            it.append(f"v_mul_f32 v{aV + i}, v{aV + i}, v{STV + i}")
    for i in range(8):
        it.append(f"v_cvt_pk_bf16_f32 v{aV + i}, v{aV + 2 * i}, v{aV + 2 * i + 1}")
    it.append(f"buffer_store_dwordx4 {V(aV)}, {x2}, {sWS}, {u0} offen offset:1024 sc1{NK}")
    it.append(f"buffer_store_dwordx4 {V(aV + 4)}, {x2}, {sWS}, {u0} offen offset:1536 sc1{NK}")
    it.append([f"s_mul_i32 {u1}, {sW}, {PITCH}", f"s_add_u32 {u1}, {u1}, {SL + 8 * PITCH}"])
    it.append(f"v_add_u32 {x1}, {u1}, {vL16}")
    it.append(f"v_add_u32 {x2}, {u1}, {x2}")
    it.append(f"ds_write_b128 {x1}, {V(aK)}")
    it.append(f"ds_write_b128 {x1}, {V(aK + 4)} offset:2048")
    it.append(f"ds_write_b128 {x2}, {V(aV)} offset:1024")
    it.append(f"ds_write_b128 {x2}, {V(aV + 4)} offset:1536")
    it.append(f"v_mul_f32 {r}, {fc(0.25 * LOG2E)}, {r}")
    return [I(x) for x in it]


def r_bcast():
    it = [[f"s_lshl_b32 {u0}, {sW}, 7", f"s_add_u32 {u0}, {u0}, {RBC}"],
          f"v_and_b32 {x1}, 31, {vL}", f"v_lshl_add_u32 {x1}, {x1}, 2, {u0}", f"ds_write_b32 {x1}, {x0}",
          f"v_lshrrev_b32 {x2}, 5, {vL}", f"v_lshl_add_u32 {x1}, {x2}, 4, {u0}"]
    for g in range(4):
        it.append(f"ds_read_b128 {V(STV + 4 * g)}, {x1} offset:{32 * g}")
    it += [f"v_lshlrev_b32 {x2}, 8, {x2}", f"v_and_b32 {x1}, 0xf0, {vL16}", f"v_add_u32 {x2}, {x2}, {x1}",
           f"v_bfe_u32 {x1}, {vL}, 4, 1", f"v_lshl_add_u32 {x2}, {x1}, 11, {x2}"]
    return [I(x) for x in it]


def kv_groups(ts, D=3, lo=0, hi=32):
    g = []
    for k in ts:
        it = []
        t = k + D
        if lo <= t < hi:
            it += tr1(RING + 8 * (t % 4), R0 + t * 1024) + tr1(RING + 8 * (t % 4) + 4, R1 + t * 1024)
        it += I([f"{MF} {V(aK, 16)}, {V(RING + 8 * (k % 4))}, {V(XF + 4 * k)}, {V(aK, 16) if k else 0}",
                 f"{MF} {V(aV, 16)}, {V(XF + 4 * k)}, {V(RING + 8 * (k % 4) + 4)}, {V(aV, 16) if k else 0}"])
        g.append(it)
    return g


def kv_pre(t0_, n=3):
    o = []
    for t in range(t0_, t0_ + n):
        o += tr1(RING + 8 * (t % 4), R0 + t * 1024) + tr1(RING + 8 * (t % 4) + 4, R1 + t * 1024)
    return o


def tab_reads(js, va):
    return [I(f"v_add_u32 {va}, {TAB0}, {vL16}")] + [I(f"ds_read_b128 {V(TABS + 4 * j)}, {va} offset:{1024 * j}") for j in js]


def halo_setup(L):
    o = []
    for i, (back, sk, sv) in enumerate(((8, d1, d2), (4, d3, t5))):
        o += [f"s_sub_u32 {u0}, {sT}, {back}", f"s_cselect_b32 {u0}, 0, {u0}", f"s_cselect_b32 {u1}, 0x200, -1", f"s_cselect_b32 {u2}, {OOB}, 0",
              f"s_lshl_b32 {u0}, {u0}, 4", f"s_add_u32 {u0}, {u0}, {sM}", f"s_lshl_b32 {u0}, {u0}, 12", f"s_add_u32 {sk}, {u0}, {LB(L) + KV_O}",
              f"s_add_u32 {sv}, {sk}, {u2}", f"v_and_b32 v{STV + i}, {u1}, {vL16}"]
    return [I(o)]


def halo_loads():
    o = []
    for i, (sk, sv) in enumerate(((d1, d2), (d3, t5))):
        for j in range(4):
            va, so = (f"v{STV + i}", sk) if j % 2 == 0 else (vL16, sv)
            o.append(f"buffer_load_dwordx4 {V(HB + 16 * i + 4 * j)}, {va}, {sWS}, {so} offen offset:{1024 * j} sc1{ntm('KV')}")
    return [I(x) for x in o]


def lead_try(chk, iss, ta, tb, final=False):
    lsk, lag, lp = P.label(), P.label(), P.label()
    o = [f"s_cmp_lg_u32 {t2}, 0", f"s_cbranch_scc1 {lsk}"]
    if final:
        o += [f"s_mov_b32 {sCNT}, 30000"]
    if chk:
        o += [f"v_accvgpr_read_b32 {ta}, {chk}"] + ([lp + ":"] if final else [])
        o += [f"v_cmp_eq_u32 vcc, 0, {ta}", f"s_cbranch_vccnz {lag}",
              f"v_cmp_ne_u32 vcc, {sMODE}, {ta}", f"v_lshlrev_b32 {tb}, 7, {vL}", f"s_lshl_b32 {u1}, {sC}, 2", f"s_and_b32 {u0}, vcc_lo, 0xffff", f"s_cselect_b32 {t2}, 1, 2",
              f"v_mov_b32 {ta}, {t2}", "s_mov_b64 exec, 0xffff", f"buffer_store_dword {ta}, {tb}, {sWS}, {sFP} offen sc1",
              "s_mov_b64 exec, 1", f"buffer_store_dword {ta}, off, {sDBG}, {u1} sc1", "s_mov_b64 exec, -1"]
        if final:
            OUTL.extend(I([lag + ":", f"v_mov_b32 {ta}, {sMODE}", f"v_lshrrev_b32 {tb}, 7, {vPO}", f"v_sub_u32 {tb}, {sC}, {tb}", f"v_lshlrev_b32 {tb}, 2, {tb}"] + arrive(ta, t1) +
                          [f"buffer_load_dword {ta}, {vPO}, {sWS}, {t1} offen sc1", f"buffer_load_dword {tb}, {tb}, {sDBG}, 0 offen sc1",
                           f"v_or_b32 {ta}, {ta}, {tb}", f"s_sub_u32 {sCNT}, {sCNT}, 1", f"s_cbranch_scc0 {lp}", "s_endpgm"]))
        elif iss:
            o += [f"s_branch {lsk}", lag + ":"]
        else:
            o += [lag + ":"]
    if iss:
        o += [f"buffer_load_dword {iss}, {vPO}, {sWS}, {t1} offen sc1"]
    return I(o + [lsk + ":"])


def handshake_issue():
    return [I([f"s_buffer_load_dword {t3}, {sWS}, {sFP} glc"])]


def handshake_check():
    b, c = f"v{STV + 3}", f"v{STV + 4}"
    ls, lr, lp = P.label(), P.label(), P.label()
    l2 = P.label()
    OUTL.extend(I([ls + ":", f"s_mov_b32 {sCNT}, 30003", f"v_mov_b32 {b}, {sMODE}", lp + ":", f"s_buffer_load_dword {t3}, {sWS}, {sFP} glc",
                   f"s_cmp_lg_u32 {t3}, 0", f"s_cbranch_scc1 {lr}",
                   f"s_and_b32 {u0}, {sCNT}, 3", f"s_or_b32 {u0}, {u0}, {sW}", f"s_cbranch_scc1 {l2}"] + arrive(b, t1) +
                  [l2 + ":", f"s_sub_u32 {sCNT}, {sCNT}, 1", f"s_cbranch_scc0 {lp}", "s_endpgm"]))
    o = [f"s_cmp_eq_u32 {t3}, 0", f"s_cbranch_scc1 {ls}", lr + ":"]
    it = [I(o)]
    o = [f"s_cmp_eq_u32 {t3}, 1"]
    if OPT.get("SLOW"):
        o.append("s_cmp_eq_u32 0, 0")
    o += [f"s_cselect_b32 {sMODE}, 0, 1", f"s_cselect_b32 {u0}, 7, {opt('FSH', 2)}", f"s_cselect_b32 {u1}, 0, {FPACK if opt('FSH', 2) == 2 else 0}",
          f"s_lshl_b32 {sFA}, {sFA}, {u0}", f"s_add_u32 {sFA}, {sFA}, {u1}",
          f"s_lshl_b32 {sFP}, {sC}, 6", f"s_lshl_b32 {sFP}, {sFP}, {u0}", f"s_add_u32 {sFP}, {sFP}, {u1}"]
    it.append(I(o))
    it.append(I([f"s_lshr_b32 {u1}, {sW}, 1", f"s_lshl_b32 {u1}, {u1}, 2", f"s_and_b32 {u2}, {sW}, 1", f"s_lshl_b32 {u3}, {u2}, 1", f"s_add_u32 {u1}, {u1}, {u3}",
                 f"v_and_b32 {b}, 14, {vL}", f"v_and_b32 {c}, 1, {vL}", f"v_lshl_add_u32 {b}, {b}, 2, {c}", f"v_add_u32 {b}, {u1}, {b}",
                 f"v_lshlrev_b32 {vPX}, {u0}, {b}"]))
    if P3N:
        it.append(I([f"s_lshr_b32 {u1}, {sW}, 1", f"s_xor_b32 {u1}, {u1}, {sRR}", f"s_and_b32 {u1}, {u1}, 1", f"s_add_u32 {u1}, {u1}, {u3}", f"s_lshl_b32 {u1}, {u1}, 4",
                     f"s_and_b32 {u2}, {sTP}, 2", f"s_add_u32 {u1}, {u1}, {u2}",
                     f"v_and_b32 {b}, 6, {vL}", f"v_lshl_add_u32 {b}, {b}, 1, {c}", f"v_add_u32 {b}, {u1}, {b}", f"v_lshlrev_b32 {vPO}, {u0}, {b}"]))
    else:
        it.append(I([f"s_lshl_b32 {u2}, {u2}, 5", f"s_and_b32 {u1}, {sTP}, 3", f"s_add_u32 {u1}, {u1}, {u2}",
                     f"v_and_b32 {b}, 7, {vL}", f"v_lshl_add_u32 {b}, {b}, 2, {u1}", f"v_lshlrev_b32 {vPO}, {u0}, {b}"]))
    it.append(I([f"s_lshr_b32 {u1}, {sW}, 1", f"s_mul_i32 {u1}, {u1}, 28", f"s_and_b32 {u2}, {sTP}, 2", f"s_add_u32 {u1}, {u1}, {u2}",
                 f"v_bfe_u32 {b}, {vL}, 1, 3", f"v_min_u32 {b}, 6, {b}", f"v_lshl_add_u32 {b}, {b}, 2, {c}", f"v_add_u32 {b}, {u1}, {b}",
                 f"v_lshlrev_b32 {vPH}, {u0}, {b}"]))
    return it


PRE = opt("PRE", 0)


def att_pre():
    KA, VA, PM, KD = 24, 25, 32, 192
    b = [f"s_mul_i32 {u0}, {sW}, {PITCH}", f"s_add_u32 {u0}, {u0}, {SL}"]
    it = [(1, b + [f"v_add_u32 v{KA}, {u0}, {vL16}", f"v_and_b32 v30, 0xf0, {vL16}", f"v_lshrrev_b32 v31, 5, {vL}", "v_lshl_add_u32 v30, v31, 8, v30",
                   f"v_add_u32 v30, {u0}, v30", f"v_bfe_i32 v31, {vL}, 4, 1"])]
    it.append((1, b + [x for hs in range(4) for x in (f"s_add_u32 {u1}, {u0}, {4096 - (2048 * (hs >> 1) + 1024 + 512 * (hs & 1))}", f"v_bfi_b32 v{VA + hs}, v31, {u1}, v30")]))
    it.append((1, b + [f"v_lshrrev_b32 v30, 2, {vL}", "v_min_u32 v30, 2, v30", "v_lshlrev_b32 v31, 2, v30", f"v_add_u32 v31, {sT}, v31", "v_cmp_le_u32 vcc, 8, v31",
                       f"v_mul_u32_u24 v30, {4 * PITCH}, v30", f"v_and_b32 v31, 3, {vL}", "v_lshl_add_u32 v30, v31, 2, v30", f"v_add_u32 v30, {u0}, v30",
                       "v_mov_b32 v31, 0x3f803f80", "v_cndmask_b32 v31, 0, v31, vcc", "ds_write_b32 v30, v31 offset:4096"]))
    it += [(1, f"v_accvgpr_read_b32 v{PM + d}, a{240 + d}") for d in range(8)]
    return it


def att_pre2():
    KA, VA, KD = 24, 25, 192
    it = [(opt("PR2", 26), f"ds_read_b128 {V(KD + 4 * h)}, v{KA} offset:{PITCH * 8 + 2048 * h}") for h in range(2)]
    it += [(opt("PR2", 26), f"ds_read_b128 {V(n + 4 * s)}, v{VA + 2 * h + s} offset:{PITCH * 8 + 2048 * h + 1024 + 512 * s}") for h, n in ((0, 112), (1, 200)) for s in range(2)]
    return it


def phase1(L):
    extq = f"{MF} {V(aQ, 16)}, {V(TABS + 8)}, {V(EX)}, {V(aQ, 16)}"
    vtq = "v23" if PRE else "v119"
    ext = I([f"{MF} {V(aK, 16)}, {V(TABS)}, {V(EX)}, {V(aK, 16)}", f"{MF} {V(aV, 16)}, {V(EX)}, {V(TABS + 4)}, {V(aV, 16)}"])
    D = 6
    qg = []
    for k in range(32):
        it = tr1(RING + 4 * ((k + D) % 8), R2 + (k + D) * 1024) if k + D < 32 else []
        qg.append(it + I(f"{MF} {V(aQ, 16)}, {V(RING + 4 * (k % 8))}, {V(XF + 4 * k)}, {V(aQ, 16) if k else 0}"))
    for k in range(3, 32, 4):
        qg[k] += tick(f"{L}.zq{k}")
    qpre = []
    for t in range(D):
        qpre += tr1(RING + 4 * t, R2 + t * 1024)
    HL = opt("HL", 20)
    if L == 0:
        AS, S1, S2, CK, CV, CF = 124, 96, 100, 104, 108, 48
        P.add(asel(AS))
        for i in range(4):
            P(f"v_mov_b32 v{S2 + i}, 0")
        P(f"v_lshrrev_b32 {x0}, 5, {vL}")
        P(f"v_bfe_u32 {x1}, {vL}, 3, 1")
        P(f"v_xor_b32 {x0}, {x0}, {x1}")
        P(f"v_xor_b32 {x0}, {x0}, {vL}")
        P(f"v_and_b32 {x0}, 7, {x0}")
        P(f"v_and_b32 {x1}, 31, {vL}")
        P(f"v_lshlrev_b32 {x1}, 7, {x1}")
        P(f"v_lshl_add_u32 {x0}, {x0}, 4, {x1}")
        P(f"s_add_u32 {t0}, {d3}, {SL}")
        P(f"v_add_u32 v{XA}, {t0}, {x0}")
        for k in range(1, 4):
            P(f"v_xor_b32 v{XA + k}, {32 * k}, v{XA}")
        P(f"v_add_u32 {x1}, {d2}, {vTR}")
        P.add(table_addr(x2))
        P(f"v_mov_b32 v118, {sMODE}")
        P(f"v_mul_u32_u24 {vPX}, 640, {vL}")
        P.add(tick("s.setup"))
        TS = opt("TS", 5)
        tw2 = touch(sW2, 1792 * 1024, "a232", vPH, t0, TS)
        tw2b = touch(sW2, 1792 * 1024, "a232", vtq, t0, TS)
        TW = [int(c, 16) for c in OPT.get("TW", "000000003")]
        I1 = [int(c) for c in OPT.get("I1", "001111000")]
        i1 = init_kv(1, "init1")
        i1 = [i1[0] + i1[1]] + i1[2:]
        if opt("NOI1", 0):
            i1 = []
        wq = sum((w0_items(h, (2,), "wq") for h in range(8)), [])
        WQ1 = opt("WQ1", 5)
        strm = {h: x0_items(h) + w0_items(h) for h in range(2, 8)}
        strm.update({8: wq[:WQ1], 9: wq[WQ1:], 10: []})
        strm[2] = INI[0] + strm[2]
        strm[3] = INI[1] + strm[3]
        if opt("TQ", 4):
            strm[opt("TQ", 4)] += touch_wq("a232", u0)
        for n in range(2, 11):
            strm[n] = i1[:I1[n - 2]] + strm[n] + tw2[:TW[n - 2]]
            tw2, i1 = tw2[TW[n - 2]:], i1[I1[n - 2]:]
        assert not i1
        SIG = 3 if INI[1] else (2 if INI[0] else opt("SIG", 1))
        LT0 = opt("LT0", SIG + 1)
        def sync(h):
            o = [need_ins(f"x{h}")]
            o += [f"ds_read_b128 {V(XF + 16 * h + 4 * t)}, v{XA + t} offset:{4096 * (h & 3)}" for t in range(4)]
            if h >= LT0:
                o += lead_try(f"a{233 + (h & 1)}" if h >= LT0 + 2 else None, f"a{233 + (h & 1)}", "v114", "v115")
            o += [need_ins(f"kv{h}")] + tr("v", CF + 8 * (h & 1), x1, R0 + 4096 * h) + tr("v", CF + 8 * (h & 1) + 4, x1, R1 + 4096 * h)
            if h >= SIG and (h - SIG) % opt("SIGS", 2) == 0:
                lsk = P.label()
                o += [f"s_cmp_lg_u32 {sW}, {1 + (h >> 1) % 3}", need_ins("init"), "s_barrier", f"s_cbranch_scc1 {lsk}"] + arrive("v118", t1) + [lsk + ":"]
            else:
                o += ["s_barrier"]
            return I(o) + tick(f"s.b{h}")
        def stats(h):
            o = []
            for t in range(4 * h, 4 * h + 4):
                o.append(I([f"v_dot2c_f32_bf16 v{S2 + j}, v{XF + 4 * t + j}, v{XF + 4 * t + j}" for j in range(4)] +
                           [f"{MF16} {V(S1)}, {V(AS)}, {V(XF + 4 * t)}, {V(S1) if t else 0}"]))
            return [I([f"{MF16} {V(CK)}, {V(AS)}, {V(CF + 8 * (h & 1))}, {V(CK) if h else 0}",
                       f"{MF16} {V(CV)}, {V(AS)}, {V(CF + 8 * (h & 1) + 4)}, {V(CV) if h else 0}"]) + o[0], o[1] + o[2], o[3]]
        P.add(sync(0))
        P.add(kv_pre(0))
        P.add(I(spread(stats(0), strm[2], 0.0, 0.7)))
        g = kv_groups(range(32))
        for i in range(8):
            lt = strm[i + 3]
            if i < 7:
                g[4 * i] += sync(i + 1)
                n = (len(lt) + 2) // 3
                for e in range(3):
                    g[4 * i + 1 + e] += I(lt[n * e:n * e + n]) + stats(i + 1)[e]
            else:
                attach(g, lt, 28, (len(lt) + 3) // 4)
        fin = [f"v_add_f32 v{S2}, v{S2}, v{S2 + 1}", f"v_add_f32 v{S2 + 2}, v{S2 + 2}, v{S2 + 3}", f"v_add_f32 v{S2}, v{S2}, v{S2 + 2}",
               f"v_mov_b32 v{S2 + 1}, v{S2}", f"v_permlane32_swap_b32 v{S2}, v{S2 + 1}", f"v_add_f32 v{S2}, v{S2}, v{S2 + 1}"]
        fin = [I(x) for x in fin] + stats_finish(f"v{S1}", f"v{S2}", f"v{S2 + 1}", f"v{S2 + 2}", EX, False, x0, None)
        P.add(I(g[:26]))
        fill = table_write(CK, 0, x2) + table_write(CV, 1, x2) + [(2, lead_try("a233", None, "v114", "v115"))] + [(2, x) for x in fin[:6]] + [barrier()] + tab_reads([0, 1], x2) + fin[6:] + r_bcast()
        P.add(weave(g[26:], fill))
        P.add(tick("s.kv"))
        P.need("init1")
        P.add(ext)
        QX = opt("QX", 0)
        P.add(I(kv_epilogue(0)))
        if QX:
            assert PRE
            P.add(I(handshake_issue()))
        P.add(lead_try("a234", None, "v116", "v117", True))
        P.add(tick("0.kv"))
        CQ = 104
        P(f"v_add_u32 {x1}, {d2}, {vTR1}")
        P.add(table_addr(x2))
        P.need("wq")
        for h in range(8):
            P.add(tr("v", 16 + 4 * h, x1, 4096 * h))
        P("s_barrier")
        P.add(qpre)
        for j in range(8):
            P(f"{MF16} {V(CQ)}, {V(AS)}, {V(16 + 4 * j)}, {V(CQ) if j else 0}")
        tw2 = tw2b[len(tw2b) - len(tw2):]
        if tw2:
            tw2[0] = I(f"v_lshlrev_b32 {vtq}, {TS}, {vL}") + tw2[0]
        hc = [(opt("HSC", 16), x) for x in handshake_check()]
        fill = [(1, x) for x in table_write(CQ, 2, x2)] + [(opt("HSI", 6), x) for x in handshake_issue()] + [(8, barrier())] + tab_reads([2], x2) + ([(12, extq)] if PRE else [])
        if opt("HF", 0):
            fill += halo_setup(0) + hc[:1] + [(HL, x) for x in halo_loads()] + hc[1:] + misc_l0()
        else:
            fill += hc + halo_setup(0) + [(HL, x) for x in halo_loads()] + misc_l0()
        if PRE:
            ap = [x for _, x in att_pre()]
            for n, x in zip((2, 3, 5, 7, 7, 7, 7, 9, 9, 9, 9), ap):
                qg[n] += I(x)
        if opt("T0", 0) == 1:
            fill += touch(sWO, 512 * 1024, "a232", "v119", t0, min(TS, 6)) + touch(sW1, 1792 * 1024, "a232", "v119", t0, opt("TS1", 5))
        elif opt("T0", 0) == 2:
            fill += tw2[:opt("TW2N", 0)] + touch(sW1, 1792 * 1024, "a232", "v119", t0, opt("TS1", 5))
        elif opt("QT", 0):
            fill += tw2 + touch(sWO, 512 * 1024, "a232", vtq, t0, min(TS, 6))
        if PRE:
            for n, x in att_pre2():
                qg[n] += I(x)
        P.add(tick("0.qs"))
        if QX:
            def place(n, items, per=1):
                for j, x in enumerate(items):
                    qg[min(31, n + int(j / per))] += I(x)
            place(1, table_write(CQ, 2, x2), 6)
            place(4, halo_setup(0))
            hc = [x for _, x in hc]
            place(8, [barrier() + hc[0] + I(tab_reads([2], x2))])
            place(10, hc[1:])
            place(14, [extq])
            ms = misc_l0()
            tt = tw2 + touch(sWO, 512 * 1024, "a232", vtq, t0, min(TS, 6))
            place(HL, halo_loads(), opt("HLP", 4))
            assert not 10 <= opt("MSP", 24) <= 13
            place(opt("MSP", 24), [I(ms)])
            place(opt("TTP", 26), tt, opt("TTR", 10) / 10)
            P.add(I(qg))
        else:
            P.add(weave(qg, fill))
    else:
        WQL = opt("WQL", 0)
        wql = []
        if not opt("WQE", 0) and not opt("WQ3", 0):
            P.add(wq_setup())
            wql = wq_items([2])
            P.add(I(wql[:8 - WQL]))
            wql = wql[8 - WQL:]
        P.add(I(tab_reads([0, 1, 2], x2)))
        back, vc = P.label(), (f"v{aQ}" if EF & 8 else None)
        P.put(back)
        P.add(kv_pre(0))
        xs, xi = x_loads(LB(1) + XIN_O, LB(1) + ST2_O, STV)
        NB = opt("NB", 14)
        P.add(xs)
        P.add(poll(vPX, x1, 8))
        P.add(tick("1.pollx"))
        P.add(I(xi[:NB]))
        P.add(tick("1.xiss"))
        s = [f"v{STV + i}" for i in range(4)]
        fill = stats_sum(STV, vc) + stats_finish(s[0], s[1], s[2], s[3], EX, False, x0, None) + r_bcast()
        if opt("TWO", 0):
            xi += touch(sWO, 512 * 1024, f"v{aQ}", f"v{aQ + 1}", d0, opt("TWO", 0))
        g = attach(kv_groups(range(32)), xi[NB:] + inits("k", aQ + 4) + wql)
        if vc:
            for n, x in chain(vc, XF, 32):
                g[n] += I(x)
        P.add(weave(g, [(opt("XSP", 16) + 2, x) for x in fill]))
        if vc:
            P.add(redo(vc, back))
        P.add(ext)
        P.add(tick("1.kv"))
        ke = kv_epilogue(1)
        KE = opt("KE", 0)
        P.add(I(ke[:KE]))
        P.add(tick("1.ke"))
        P.add(barrier("wq"))
        P.add(tick("1.B1"))
        P.add(qpre)
        fill = [(1, x) for x in ke[KE:]] + halo_setup(1) + [(opt("HL1", HL), x) for x in halo_loads()]
        if PRE:
            qg[0] += I(extq)
            fill += att_pre() + att_pre2()
        P.add(weave(qg, fill))
    P.add(tick(f"{L}.zqe"))
    if not PRE:
        P(extq)
```

```python
from k2_base import *
from k2_p1 import *

QF, KA, VA, LC, TMP, PM, KR, SB, DG, KD, OA0 = 16, 24, 25, 29, 31, 32, 40, 64, 160, 192, 224
VS = [112, 120, 200, 208, 216]


def q(h): return V(QF + 4 * h)
def kread(n, j, h): return f"ds_read_b128 {V(n)}, v{KA} offset:{PITCH * j + 2048 * h}"
def vread(n, j, h): return [f"ds_read_b128 {V(n + 4 * s)}, v{VA + 2 * h + s} offset:{PITCH * j + 2048 * h + 1024 + 512 * s}" for s in range(2)]
def merge(s, d): return [f"v_cndmask_b32_e64 v{s + r}, v{s + r}, v{d + r}, {sMASK(r)}" for r in range(16)]
def exps(s): return [f"v_exp_f32 v{s + i}, v{s + i}" for i in range(16)]
def cvts(s): return [f"v_cvt_pk_bf16_f32 v{s + i}, v{s + 2 * i}, v{s + 2 * i + 1}" for i in range(8)]
def split(s): return [x for i in range(8) for x in (f"v_and_b32 v{s + 8 + i}, v{s + i}, v{PM + i}", f"v_xor_b32 v{s + i}, v{s + i}, v{s + 8 + i}")]


def epi(L, h, o):
    e = [f"v_mul_f32 v{o + i}, v{o + i}, v{TMP}" for i in range(8)]
    e += [f"v_cvt_pk_bf16_f32 v{o + 8 + i}, v{o + 2 * i}, v{o + 2 * i + 1}" for i in range(4)]
    e += [xstore(f"buffer_store_dwordx4 {V(o + 8)}, {vL16}, {sWS}, {t0} offen offset:{1024 * h}", 1 << (4 * L), f"o{h}", ini=f"iO{L}")]
    return e


def att_safe(L):
    K, SA_, SB_, NM, VV, O, m = 40, 96, 112, 192, 208, 224, f"v{LC}"
    o = []
    for h in range(2):
        o += [kread(K + 4 * j, j, h) for j in range(9)]
        for ps in range(2):
            c = V(NM, 16) if ps else 0
            for j in range(8):
                s = SB_ if j % 2 == 0 else SA_
                if j == 0:
                    o.append(f"{MF} {V(SA_, 16)}, {V(K + 32)}, {q(h)}, {c}")
                o.append(f"{MF} {V(s, 16)}, {V(K + 4 * j)}, {q(h)}, {c}")
                if j == 0:
                    o += merge(s, SA_)
                if ps == 0:
                    if j == 0:
                        o.append(f"v_mov_b32 {m}, v{s}")
                    o += [f"v_max3_f32 {m}, {m}, v{s + 2 * i}, v{s + 2 * i + 1}" for i in range(8)]
                    continue
                o += vread(VV, j, h) + exps(s) + cvts(s)
                if j == 0:
                    o += vread(VV + 8, 8, h) + split(s)
                    o += [f"{MF} {V(O, 16)}, {V(VV + 8)}, {V(s + 8)}, 0", f"{MF} {V(O, 16)}, {V(VV + 12)}, {V(s + 12)}, {V(O, 16)}"]
                o += [f"{MF} {V(O, 16)}, {V(VV)}, {V(s)}, {V(O, 16)}", f"{MF} {V(O, 16)}, {V(VV + 4)}, {V(s + 4)}, {V(O, 16)}", "s_nop 15"]
            if ps == 0:
                o += [f"v_mov_b32 v{TMP}, {m}", f"v_permlane32_swap_b32 {m}, v{TMP}", f"v_max_f32 {m}, {m}, v{TMP}"]
                o += [f"v_sub_f32 v{NM + i}, 0, {m}" for i in range(16)]
        o += [f"v_rcp_f32 v{TMP}, v{O + 8}"] + epi(L, h, O)
    return I(o + ["s_waitcnt vmcnt(0)", "v_mov_b32 v56, 0"])


def phase2(L):
    if not PRE:
        P(f"s_mul_i32 {t0}, {sW}, {PITCH}")
        P(f"s_add_u32 {t0}, {t0}, {SL}")
        P(f"v_add_u32 v{KA}, {t0}, {vL16}")
        P(f"v_and_b32 {x1}, 0xf0, {vL16}")
        P(f"v_lshrrev_b32 {x2}, 5, {vL}")
        P(f"v_lshl_add_u32 {x1}, {x2}, 8, {x1}")
        P(f"v_add_u32 {x1}, {t0}, {x1}")
        P(f"s_mov_b32 vcc_lo, 0xffff0000")
        P(f"s_mov_b32 vcc_hi, 0xffff0000")
        P(kread(KD, 8, 0))
        P(kread(KD + 4, 8, 1))
        for hs in range(4):
            P(f"s_add_u32 {t1}, {t0}, {4096 - (2048 * (hs >> 1) + 1024 + 512 * (hs & 1))}")
            P(f"v_mov_b32 {x2}, {t1}")
            P(f"v_cndmask_b32 v{VA + hs}, {x1}, {x2}, vcc")
        P(f"v_lshrrev_b32 {x1}, 2, {vL}")
        P(f"v_min_u32 {x1}, 2, {x1}")
        P(f"v_lshlrev_b32 {x2}, 2, {x1}")
        P(f"v_add_u32 {x2}, {sT}, {x2}")
        P(f"v_cmp_le_u32 vcc, 8, {x2}")
        P(f"v_mul_u32_u24 {x1}, {4 * PITCH}, {x1}")
        P(f"v_and_b32 {x2}, 3, {vL}")
        P(f"v_lshl_add_u32 {x1}, {x2}, 2, {x1}")
        P(f"v_add_u32 {x1}, {t0}, {x1}")
        P(f"v_mov_b32 {x2}, 0x3f803f80")
        P(f"v_cndmask_b32 {x2}, 0, {x2}, vcc")
        P(f"ds_write_b32 {x1}, {x2} offset:4096")
    tiles = [(8, 0), (0, 0), (8, 1), (0, 1), (4, 0), (4, 1)] + [(j, h) for h in range(2) for j in (1, 2, 3, 5, 6, 7)]
    def vs(t): return VS[t % 5]
    def vl(t): return vread(vs(t), *tiles[t])
    def hd(u): return tiles[u + 2][1] if u >= 2 else u
    def sb(u): return SB + 16 * (u % 3)
    def oa(h): return OA0 + 16 * h
    def qk(u): return f"{MF} {V(sb(u), 16)}, {V(HB + 8 * u if u < 4 else KR + 4 * (u % 4))}, {q(hd(u))}, 0"
    if not PRE:
        P.add(I(vl(0) + vl(2)))
    for h in range(2):
        for i in range(8 * h, 8 * h + 8):
            if not opt("PKE", 0):
                P(f"v_mul_f32 v{aQ + i}, v{aQ + i}, {x0}")
            elif i % 2 == 0:
                P(f"v_pk_mul_f32 {V(aQ + i, 2)}, {V(aQ + i, 2)}, v[12:13] op_sel:[0,1]")
        for i in range(4 * h, 4 * h + 4):
            P(f"v_cvt_pk_bf16_f32 v{QF + i}, v{aQ + 2 * i}, v{aQ + 2 * i + 1}")
        for d in range(4 * h, 4 * h + 4):
            if not PRE:
                P(f"v_accvgpr_read_b32 v{PM + d}, a{240 + d}")
        P(f"{MF} {V(DG + 16 * h, 16)}, {V(KD + 4 * h)}, {q(h)}, 0")
    P.add(I([f"s_lshl_b32 {t0}, {sT}, 4", f"s_add_u32 {t0}, {t0}, {sM}", f"s_lshl_b32 {t0}, {t0}, 11", f"s_add_u32 {t0}, {t0}, {LB(L) + O_O}"]))
    P.add(tick(f"{L}.p1end"))
    lp, lr, ls = P.label(), P.label(), P.label()
    P(f"s_mov_b32 {sCNT}, 20000")
    P.put(lp)
    for i in range(2):
        for j in range(4):
            b = HB + 16 * i + 4 * j
            if i == 0 and j % 2 == 0:
                P(qk(j >> 1))
            P(f"ds_write_b128 v{KA}, {V(b)} offset:{4 * PITCH * i + 1024 * j}")
            if i == 0 and j == 3:
                P.add(I(vl(1) + vl(3)))
            if i == 0 and j == 0:
                P(f"v_max3_u32 {x1}, v{b}, v{b + 1}, v{b + 2}")
                P(f"v_max_u32 {x1}, {x1}, v{b + 3}")
            else:
                P(f"v_max3_u32 {x1}, {x1}, v{b}, v{b + 1}")
                P(f"v_max3_u32 {x1}, {x1}, v{b + 2}, v{b + 3}")
    P(f"v_cmp_eq_u32 vcc, -1, {x1}")
    P(f"s_cbranch_vccnz {ls}")
    P.put(lr)
    OUTL.extend(I([ls + ":", f"s_sub_u32 {sCNT}, {sCNT}, 1", f"s_cbranch_scc1 {lr}"] + halo_loads() +
                  [f"buffer_load_dword a232, off, {sWS}, {u0}" if n else f"s_mov_b32 {u0}, {OOB}" for n in range(opt("HD", 0) + 1 if L == 0 else 0)] + [f"s_branch {lp}"]))
    P.add(tick(f"{L}.halo"))

    def mix(a, b):
        out, b = [], list(b)
        for x in a:
            out.append(x)
            if b:
                y = b.pop(0)
                if y is not None:
                    out.append(y)
        return out + [y for y in b if y is not None]
    BU, DR = opt("BU", 1), opt("DR", 0)
    head, main, pend = [], [], []
    for u in range(16):
        h, s = hd(u), sb(u)
        o = V(oa(h), 16)
        if u < 2:
            valu = merge(s, DG + 16 * u) + exps(s) + cvts(s) + split(s)
            pv = [f"{MF} {o}, {V(vs(2 * u))}, {V(s + 8)}, 0", f"{MF} {o}, {V(vs(2 * u) + 4)}, {V(s + 12)}, {o}",
                  f"{MF} {o}, {V(vs(2 * u + 1))}, {V(s)}, {o}", f"{MF} {o}, {V(vs(2 * u + 1) + 4)}, {V(s + 4)}, {o}"]
        else:
            valu = exps(s) + cvts(s)
            pv = [f"{MF} {o}, {V(vs(u + 2))}, {V(s)}, {o}", f"{MF} {o}, {V(vs(u + 2) + 4)}, {V(s + 4)}, {o}"]
        if u == 11:
            valu = valu[:12] + mix(valu[12:], [f"v_rcp_f32 v{TMP}, v{oa(0) + 8}", f"v_add_u32 v{LC}, 0xe0800000, v{oa(0) + 8}"] + epi(L, 0, oa(0)))
        if u == 15:
            valu = valu[:8] + valu[16:20] + valu[8:10] + [pv.pop(0)] + valu[10:16] + valu[20:]
        mf = list(pend) + ([qk(u + 2)] if u + 2 < 16 else [])
        rd = (vl(u + 3) if 1 <= u <= 14 else []) + ([kread(KR + 4 * ((u + 3) % 4), *tiles[u + 5])] if 1 <= u <= 12 else [])
        rd = [None] * (len(mf) - len(rd)) + rd
        out, acc = [], 32
        for x in valu:
            if acc >= 28 and mf:
                r = rd.pop(0)
                out.append(I([mf.pop(0)] + ([r] if r else []))); acc = 4 if r else 0
            out.append(I(x)); acc += cost(I(x))
        assert not mf and not rd
        pend = pv
        if u < BU:
            head += out
        else:
            main += out
    main += pend
    if P3N and L:
        head = spread(head, wo_items(DR & 1)[:opt("WOH", 0)], 0.0, 0.9)
    P.add(I(head))
    P.add(barrier())
    P.add(tick(f"{L}.B2"))
    if L == 0:
        d2_, r2_ = w2_round(2, x0)
        d3_, r3_ = w2_round(3, x0)
        d1_, r1_ = w2_round(1, x0)
        A0 = [int(x) / 100 for x in OPT.get("A0", "0,25,35,62,72,92").split(",")]
        tw1 = touch(sW1, 1792 * 1024, "a232", x1, u2, opt("TS1", 7))
        T0 = opt("T0", 0)
        if T0 == 6:
            tw1 = touch(sW1, 1792 * 1024, "a232", x1, u2, opt("TS1", 7), 0)
            twe = touch(sW1, 1792 * 1024, "a232", x1, u2, opt("TS1", 7), 1)
        a = spread(main, d2_ + (tw1 if T0 == 3 else []), A0[0], A0[1])
        a = spread(a, r2_ + [[need_ins("ds_any")]] + d1_ + d3_ + (tw1 if T0 == 4 else []), A0[2], A0[3])
        a = spread(a, r1_ + [[need_ins("ds_any")]] + wo_items() + (tw1 if T0 == 0 or (T0 == 6 and not opt("TB0", 0)) else []), A0[4], A0[5])
        if T0 == 6:
            a = spread(a, twe, opt("TA0", 22) / 100, opt("TA1", 24) / 100)
            if opt("TB0", 0):
                a = spread(a, tw1, opt("TB0", 0) / 100, opt("TB1", opt("TB0", 0) + 2) / 100)
        if T0 == 5:
            a = spread(a, tw1, opt("TA0", 5) / 100, opt("TA1", 80) / 100)
        a = spread(a, inits("A", 56), opt("IA0", 5) / 100, opt("IA1", 70) / 100)
        a = spread(a, sp_setup(), 0.3, 0.34)
        a = spread(a, sp_touch(1, "a232", x1), opt("SPA", 10) / 100, 1)
        late_rd = r3_
    elif P3N and opt("ABT", 1):
        A1 = [int(x) / 100 for x in OPT.get("A1", "0,60,10,60").split(",")]
        a = spread(main, wo_items(DR & 1)[opt("WOH", 0):] + w1_items("CD1", DR & 4), A1[0], A1[1])
        if opt("ABT", 1) == 1:
            a = spread(a, touch_ab("v60", "v61", u2), A1[2], A1[3])
        late_rd = []
    elif P3N:
        A1 = [int(x) / 100 for x in OPT.get("A1", "0,12,30,66").split(",")]
        C1 = opt("C1P", 0)
        a = spread(main, wo_items(DR & 1)[opt("WOH", 0):] + (w1_items("CD1", DR & 4) if C1 == 0 else []), A1[0], A1[1])
        wr = wo_reads(x0)
        wr = [wr[0] + wr[1] + wr[2]] + [wr[i] + wr[i + 1] for i in range(3, 17, 2)]
        a = spread(a, wr + [[need_ins(("v", 191))]] + w1_items("AB", DR & 2) + (w1_items("CD1", DR & 4) if C1 == 1 else []), A1[2], A1[3])
        late_rd = []
    else:
        a = spread(main, (touch(sW1, 1792 * 1024, "v60", x1, u2, opt("TW1", 0)) if opt("TW1", 0) else []) + wo_items() + w1_items("CD1"), 0.0, 0.6)
        a = spread(a, inits("a", 56), opt("Ia0", 5) / 100, opt("Ia1", 60) / 100)
        a = spread(a, sp_touch(1, "v60", "v60"), opt("SPA", 10) / 100, 1)
        late_rd = []
    if P3N:
        lsk = P.label()
        pf = opt(f"PF_{L}", opt("PF", 90)) / 100
        a = spread(a, [I([f"v_cmp_le_u32 vcc, {0 if opt('FB', 0) else '0x40000000'}, v{LC}", f"s_cbranch_vccnz {lsk}"]) + tick(f"{L}.zpf") + publish(16 * L + 1, "v57", "o0") + tick(f"{L}.zPF") + I(lsk + ":")], pf, pf)
        pf = opt(f"PG_{L}", opt("PG", 98)) / 100
        a = spread(a, [poll_issue(vPO, "v56")], pf, pf)
    P.add(I(a))
    lf, lj = P.label(), P.label()
    P(f"v_rcp_f32 v{TMP}, v{oa(1) + 8}")
    P(f"v_add_u32 {x1}, 0xe0800000, v{oa(1) + 8}")
    P(f"v_max_u32 {x1}, {x1}, v{LC}")
    P(f"v_cmp_le_u32 vcc, {0 if opt('FB', 0) else '0x40000000'}, {x1}")
    e = epi(L, 1, oa(1))
    P.add(I(e[:4]))
    P(f"s_cbranch_vccnz {lf}")
    P.add(I(e[4:]))
    P.put(lj)
    OUTL.extend(I([lf + ":"]) + att_safe(L) + I(f"s_branch {lj}"))
    P.add(tick(f"{L}.att"))
    if P3N:
        return late_rd
    P.add(publish(16 * L + 1, x1, early=f"iO{L}" if EF & 1 else None))
    P.add(tick(f"{L}.p2end"))
    return late_rd
```

```python
from k2_base import *
from k2_p1 import *

B1V, CC, CD_, AS4 = 48, 52, 56, 60
OM = OPT.get("OM", "").replace("_", " ")


def tile_out(x, pk, tmp, bit, pub, ini):
    XE = opt("XE", 1)
    if XE == 0:
        P.add(pub)
    for i in range(8):
        P(f"v_cvt_pk_bf16_f32 v{pk + i}, v{x + 2 * i}, v{x + 2 * i + 1}")
    P.add(xstore(f"buffer_store_dwordx4 {V(pk)}, {vL16}, {sWS}, {t1} offen", bit, ini=ini))
    P.add(xstore(f"buffer_store_dwordx4 {V(pk + 4)}, {vL16}, {sWS}, {t1} offen offset:1024", bit))
    if XE == 1:
        P.add(pub)
    a, b = V(tmp, 2), V(tmp + 2, 2)
    P(f"v_pk_add_f32 {a}, {V(x, 2)}, {V(x + 2, 2)}")
    P(f"v_pk_mul_f32 {b}, {V(x, 2)}, {V(x, 2)}")
    for i in range(1, 8):
        if i >= 2:
            P(f"v_pk_add_f32 {a}, {a}, {V(x + 2 * i, 2)}")
        P(f"v_pk_fma_f32 {b}, {V(x + 2 * i, 2)}, {V(x + 2 * i, 2)}, {b}")
    P(f"v_add_f32 v{tmp}, v{tmp}, v{tmp + 1}")
    P(f"v_add_f32 v{tmp + 2}, v{tmp + 2}, v{tmp + 3}")
    P(f"v_permlane32_swap_b32 v{tmp}, v{tmp + 2}")
    P(f"v_add_f32 v{tmp}, v{tmp}, v{tmp + 2}")
    P.add(xstore(f"buffer_store_dword v{tmp}, {x2}, {sWS}, {t2} offen", bit))
    if XE == 2:
        P.add(pub)


def tile_addr(xo, so):
    return I([f"s_lshl_b32 {t2}, {sTP}, 4", f"s_add_u32 {t2}, {t2}, {sCT}", f"s_lshl_b32 {t1}, {t2}, 11", f"s_add_u32 {t1}, {t1}, {xo}",
              f"s_lshl_b32 {t2}, {t2}, 8", f"s_add_u32 {t2}, {t2}, {so}", f"v_lshlrev_b32 {x2}, 2, {vL}"])


def b1_loads():
    return I([f"v_and_b32 {x1}, 0x13, {vL}", f"v_bfe_u32 {x2}, {vL}, 2, 1", f"v_lshl_add_u32 {x1}, {x2}, 3, {x1}", f"v_bfe_u32 {x2}, {vL}, 3, 1",
              f"v_lshl_add_u32 {x1}, {x2}, 2, {x1}", f"v_lshlrev_b32 {x1}, 1, {x1}", f"s_lshl_b32 {t1}, {sM}, 8", f"s_cmp_ge_u32 {sW}, 2", f"s_cselect_b32 {t1}, {OOB}, {t1}"] +
             [f"buffer_load_ushort v{B1V + e}, {x1}, {sB1}, {t1} offen offset:{64 * e}" for e in range(4)])


def phase3n(L, late_rd):
    o = lambda n, d: opt(f"{n}_{L}", opt(n, d))
    a0, OF, WO = 16, 64, 128
    AB = [a0, 192, 208, 224]
    wa = [f"v{32 + i}" for i in range(5)]
    v4k = "v37"
    P.add(I([f"s_lshr_b32 {t3}, {sW}, 1", f"s_xor_b32 {t3}, {t3}, {sRR}", f"s_and_b32 {t3}, {t3}, 1", f"s_and_b32 {t4}, {sW}, 1", f"s_lshl_b32 {t4}, {t4}, 1",
             f"s_add_u32 {t3}, {t3}, {t4}", f"s_lshl_b32 {t4}, {sTP}, 2", f"s_add_u32 {t3}, {t3}, {t4}", f"s_lshl_b32 {t3}, {t3}, 13",
             f"s_add_u32 {t3}, {t3}, {LB(L) + O_O}", f"s_xor_b32 {t4}, {t3}, 0x8000", f"v_add_u32 {v4k}, 0x1000, {vL16}"]))
    if L == 0:
        P.add(I(late_rd))
        P.add(I(wo_reads(x0)))
        P.add(b1_loads())
        P.add(I([x for d in range(8) for x in (f"v_accvgpr_read_b32 {x2}, a{224 + d}", f"v_lshlrev_b32 v{a0 + 2 * d}, 16, {x2}", f"v_and_b32 v{a0 + 2 * d + 1}, 0xffff0000, {x2}")]))
    else:
        if opt("ABT", 1):
            P.add(I(wo_reads(x0)))
        P.add(I([f"v_accvgpr_read_b32 v{a0 + i}, a{224 + i}" for i in range(16)]))
    for i in range(5):
        n = i & 3 if i < 4 else 0
        hi = i == 3 or i == 4
        P.add(I([f"s_xor_b32 {u0}, {sW}, {n}", f"s_lshl_b32 {u0}, {u0}, {12 if hi else 13}", f"s_add_u32 {u0}, {u0}, {SCR3 if hi else SL + 4096 * max(0, n - 1)}",
                 f"v_add_u32 {wa[i]}, {u0}, {vL16}"]))
    P.add(tile_addr(LB(L) + X1_O, LB(L) + ST1_O))
    fill = (w1_items("AB") + w1_items("CD1")) if L == 0 else (w1_items("CD1", opt("DR", 0) & 4) if opt("C1P", 0) == 2 else [])
    if L and opt("ABT", 1):
        fill = w1_items("AB")
    if L == 0 or opt("ABT", 1):
        fill[0] = [need_ins("ds_any")] + fill[0]
    FE, FM = o("FE", 0), o("FM", 0)
    P.add(I(fill[:FE]))
    P.add(publish(16 * L + 2, x1, "o1"))
    P.add(tick(f"{L}.p2end"))
    def of(ks, tt): return OF + (ks * 2 + tt) * 4
    def oloads(h): return [f"buffer_load_dwordx4 {V(of(ks, tt))}, {v4k if ks >= 4 else vL16}, {sWS}, {t4 if tt else t3} offen offset:{(ks & 3) * 1024} sc1"
                           for ks in range(h, 8, 2) for tt in range(2)]
    def mf(ks, n):
        a = V(AB[n], 16)
        return f"{MF} {a}, {V(WO + (ks * 2 + (n & 1)) * 4)}, {V(of(ks, n >> 1))}, {a if (ks or n == 0) else 0}"
    P.add(poll_check(vPO, "v56", 16 * L + 1))
    P.add(tick(f"{L}.yck0"))
    P.add(I(oloads(0)))
    P.add(I(fill[FE:FM]))
    P.add(poll_issue(vPO, "v56"))
    P.add(barrier())
    P.add(tick(f"{L}.B3"))
    NT, NH0 = o("NT3", 2), o("NH0", 12)
    g = [mf(ks, n) for ks in (0, 2, 4, 6) + (1, 3, 5, 7)[:4 - NT] for n in range(4)]
    P.add(I(g[:NH0]))
    P.add(tick(f"{L}.ymf0"))
    P.add(poll_check(vPO, "v56", 16 * L + 2))
    P.add(tick(f"{L}.pollo"))
    P.add(I(oloads(1)))
    g = g[NH0:]
    wr = []
    for n in (3, 2, 1, 0):
        for e, ks in enumerate((1, 3, 5, 7)[4 - NT:]):
            g.append(mf(ks, n))
            if e >= 1 or NT == 1:
                k = (len(wr) + (NT - e) - 1) // (NT - e)
                g.append(wr[:k]); wr = wr[k:]
        if n:
            wr = [f"ds_write_b128 {wa[n]}, {V(AB[n] + 4 * j)} offset:{1024 * j}" for j in range(4)]
    P.add(I(spread(g, fill[max(FE, FM):], 0.0, 1.0)))
    P.add(tick(f"{L}.p3mm"))
    P.add(barrier())
    P.add(tick(f"{L}.yB4"))
    for j in range(12):
        P(f"ds_read_b128 {V(OF + 4 * j)}, {wa[0 if j < 8 else 4]} offset:{1024 * (j & 7 if j < 8 else j - 8)}")
    for p in range(3):
        for i in range(8):
            P(f"v_pk_add_f32 {V(a0 + 2 * i, 2)}, {V(a0 + 2 * i, 2)}, {V(OF + 16 * p + 2 * i, 2)}")
    tile_out(a0, OF + 16, OF + 24, 2 << (4 * L), [], None)
    P.add(tick(f"{L}.yst"))
    r4 = []
    if L == 0:
        d4, r4 = w2_round(4, x0)
        P.add(I(d4))
    elif o("CD2P", 1) == 0:
        P.add(I(w1_items("CD2")))
    for d in range(8):
        P(f"v_accvgpr_read_b32 {x1}, a{248 + d}")
        P(f"v_lshlrev_b32 v{OF}, 16, {x1}")
        P(f"v_and_b32 v{OF + 1}, 0xffff0000, {x1}")
        P(f"v_pk_add_f32 {V(a0 + 2 * d, 2)}, {V(a0 + 2 * d, 2)}, {V(OF, 2)}")
        P(f"v_accvgpr_write_b32 a{224 + 2 * d}, v{a0 + 2 * d}")
        P(f"v_accvgpr_write_b32 a{225 + 2 * d}, v{a0 + 2 * d + 1}")
    P.add(publish(16 * L + 3, x1))
    P.add(tick(f"{L}.p3end"))
    return r4


def phase3(L, late_rd):
    if P3N:
        return phase3n(L, late_rd)
    a0, a1, OF, WO = 16, 32, 64, 128
    vp, vc = "v53", "v54"
    P(f"s_and_b32 {t0}, {sW}, 1")
    P(f"s_lshl_b32 {t0}, {t0}, 14")
    P(f"v_add_u32 {x1}, {t0}, {vTP}")
    P(f"s_lshl_b32 {t3}, {sTP}, 15")
    P(f"s_add_u32 {t3}, {t3}, {t0}")
    P(f"s_add_u32 {t3}, {t3}, {LB(L) + O_O}")
    P(f"s_and_b32 {t4}, {sRR}, 1")
    P(f"s_lshl_b32 {t4}, {t4}, 13")
    P(f"s_add_u32 {t3}, {t3}, {t4}")
    P.add(barrier("wo"))
    P.add(tick(f"{L}.B3"))
    CD2E = opt("CD2E", 1)
    if L and CD2E:
        P.add(I(w1_items("CD2")))
    rd = [tr("v", WO + (ks * 2 + ct) * 4, x1, (ks >> 3) * 32768 + 2048 * (ks & 7) + 512 * ct) for ks in range(16) for ct in range(2)]
    PO1, PO2 = opt("PO1", 6), opt("PO2", 14)
    def oloads():
        o = []
        for ks in range(16):
            if ks % 4 == 0:
                o.append(f"s_xor_b32 {t4}, {t3}, {4096 * (ks // 4)}")
            o.append(f"buffer_load_dwordx4 {V(OF + 4 * ks)}, {vL16}, {sWS}, {t4} offen offset:{(ks % 4) * 1024} sc1{ntm('O')}")
        return o
    def res(tmpv):
        if L:
            return [f"v_accvgpr_read_b32 v{a0 + i}, a{224 + i}" for i in range(16)]
        return [x for d in range(8) for x in (f"v_accvgpr_read_b32 {tmpv}, a{224 + d}", f"v_lshlrev_b32 v{a0 + 2 * d}, 16, {tmpv}", f"v_and_b32 v{a0 + 2 * d + 1}, 0xffff0000, {tmpv}")]
    P.add(I(rd[:PO1]))
    P.add(poll_issue(vPO, vp, 16 * L + 1))
    P.add(I(rd[PO1:PO2]))
    P.add(I(res(x2)))
    P.add(poll_check(vPO, vp, 16 * L + 1))
    P.add(tick(f"{L}.pollo"))
    P.add(I(oloads()))
    if L and not CD2E:
        P.add(I(w1_items("CD2")))
    P.add(I(rd[PO2:]))
    r4 = []
    if L == 0:
        d4, r4 = w2_round(4, x0)
        P.add(I(late_rd))
        P.add(I(d4[:8]))
        P(f"v_and_b32 {x1}, 0x13, {vL}")
        P(f"v_bfe_u32 {x2}, {vL}, 2, 1")
        P(f"v_lshl_add_u32 {x1}, {x2}, 3, {x1}")
        P(f"v_bfe_u32 {x2}, {vL}, 3, 1")
        P(f"v_lshl_add_u32 {x1}, {x2}, 2, {x1}")
        P(f"v_lshlrev_b32 {x1}, 1, {x1}")
        P(f"s_lshl_b32 {t1}, {sM}, 8")
        P(f"s_cmp_ge_u32 {sW}, 2")
        P(f"s_cselect_b32 {t1}, {OOB}, {t1}")
        for e in range(4):
            P(f"buffer_load_ushort v{B1V + e}, {x1}, {sB1}, {t1} offen offset:{64 * e}")
        P.need("ds_any")
        P.add(I(d4[8:]))
    P(f"s_xor_b32 {t0}, {sW}, 1")
    P(f"s_lshl_b32 {t0}, {t0}, 12")
    P(f"s_add_u32 {t0}, {t0}, {SCR3}")
    P(f"v_add_u32 {x0 if L else 'v52'}, {t0}, {vL16}")
    vw = x0 if L else "v52"
    P.add(tile_addr(LB(L) + X1_O, LB(L) + ST1_O))
    P.add(barrier())
    P.add(tick(f"{L}.B3b"))
    back = P.label()
    P.put(back)
    def mf(ks, ct):
        a = V(a0 if ct == 0 else a1, 16)
        return f"{MF} {a}, {V(WO + (ks * 2 + ct) * 4)}, {V(OF + 4 * ks)}, {a if (ks or ct == 0) else 0}"
    NT = 4
    g = [[mf(ks, 1), mf(ks, 0)] for ks in range(16 - NT)] + [[mf(ks, 1)] for ks in range(16 - NT, 16)]
    fill = w1_items("AB") + (w1_items("CD1") if L == 0 else [])
    if EF & 1:
        for n, x in chain(vc, OF, 16):
            g[n].append(x)
    P.add(I(spread(g, fill, 0.0, 1.0)))
    if EF & 1:
        P.add(redo(vc, back, oloads() + res(x1)))
    for n, ks in enumerate(range(16 - NT, 16)):
        P(mf(ks, 0))
        if n >= 1:
            for j in ([n - 1] if n < NT - 1 else range(n - 1, 4)):
                P(f"ds_write_b128 {vw}, {V(a1 + 4 * j)} offset:{1024 * j}")
    P(f"v_xor_b32 {vw}, 0x1000, {vw}")
    P.add(tick(f"{L}.p3mm"))
    P.add(barrier())
    for j in range(4):
        P(f"ds_read_b128 {V(OF + 4 * j)}, {vw} offset:{1024 * j}")
    for i in range(8):
        P(f"v_pk_add_f32 {V(a0 + 2 * i, 2)}, {V(a0 + 2 * i, 2)}, {V(OF + 2 * i, 2)}")
    tile_out(a0, OF + 16, OF + 24, 2 << (4 * L), publish(16 * L + 3, x1, early=f"iX{L}") if EF & 2 else [], f"iX{L}")
    rs = [I([f"v_accvgpr_read_b32 {x1}, a{248 + d}", f"v_lshlrev_b32 v{OF}, 16, {x1}", f"v_and_b32 v{OF + 1}, 0xffff0000, {x1}",
             f"v_pk_add_f32 {V(a0 + 2 * d, 2)}, {V(a0 + 2 * d, 2)}, {V(OF, 2)}", f"v_accvgpr_write_b32 a{224 + 2 * d}, v{a0 + 2 * d}",
             f"v_accvgpr_write_b32 a{225 + 2 * d}, v{a0 + 2 * d + 1}"]) for d in range(8)]
    if L == 0 and opt("CSN", 0) >= 4:
        cs = [I([f"s_lshl_b32 {t0}, {sW}, 14", f"v_add_u32 v122, {t0}, {vTP}", f"s_lshl_b32 {t0}, {sW}, 13", f"v_add_u32 {x0}, {t0}, {vTP1}", need_ins("w1AB")])]
        cs += [tr("v", XF + 4 * j, "v122", 2048 * (j >> 1) + 512 * (j & 1)) for j in range(16)]
        cs += [[need_ins("w1CD1")] + tr("v", XF + 64 + 4 * j, x0, 2048 * (j >> 1) + 512 * (j & 1)) for j in range(8)]
        cs += [asel(AS4), table_addr("v123")]
        cs += [I(f"{MF16} {V(STV + 4 * (j & 1))}, {V(AS4)}, {V(XF + 4 * j)}, {V(STV + 4 * (j & 1)) if j >= 2 else 0}") for j in range(16)]
        cs += [I(f"{MF16} {V(CC + 4 * (j & 1))}, {V(AS4)}, {V(XF + 64 + 4 * j)}, {V(CC + 4 * (j & 1)) if j >= 2 else 0}") for j in range(8)]
        cs += table_write(STV, 3, "v123", f"v{B1V}") + table_write(STV + 4, 4, "v123", f"v{B1V + 1}")
        NP = opt("NP", 8)
        P.add(I(spread(r4 + cs[:NP], rs)))
        r4 = cs[NP:]
    else:
        P.add(I(rs))
    if not EF & 2:
        P.add(publish(16 * L + 3, x1))
    P.add(tick(f"{L}.p3end"))
    return r4


def gelu(a, c0, c1, ir, tmp, so, tag, bit, pk=False, ini=None):
    res = []
    for g in range(4):
        if pk:
            xs = [V(a + 4 * g + 2 * e, 2) for e in range(2)]
            ts = [V(tmp + 2 * e, 2) for e in range(2)]
            bc = lambda r: f"v[{r[1:]}:{int(r[1:]) + 1}]"
            res += [f"v_pk_mul_f32 {t}, {x}, {x}" for x, t in zip(xs, ts)]
            res += [f"v_pk_fma_f32 {t}, {t}, {bc(c1)}, {bc(c0)} op_sel_hi:[1,0,0]" for t in ts]
            res += [f"v_pk_mul_f32 {t}, {t}, {x}" for x, t in zip(xs, ts)]
            res += [f"v_exp_f32 v{tmp + e}, v{tmp + e}" for e in range(4)]
            res += [f"v_pk_fma_f32 {t}, {t}, {bc(ir)}, {bc(ir)} op_sel_hi:[1,0,0]" for t in ts]
            res += [f"v_rcp_f32 v{tmp + e}, v{tmp + e}" for e in range(4)]
            res += [f"v_pk_mul_f32 {x}, {x}, {t}" for x, t in zip(xs, ts)]
        else:
            blk = []
            for e in range(4):
                x, t = f"v{a + 4 * g + e}", f"v{tmp + e}"
                blk.append([f"v_mul_f32 {t}, {x}, {x}", f"v_fma_f32 {t}, {t}, {c1}, {c0}", f"v_mul_f32 {t}, {t}, {x}",
                            f"v_exp_f32 {t}, {t}", f"v_fma_f32 {t}, {t}, {ir}, {ir}", f"v_rcp_f32 {t}, {t}", f"v_mul_f32 {x}, {x}, {t}"])
            for s in range(7):
                for e in range(4):
                    res.append(blk[e][s])
        for i in (2 * g, 2 * g + 1):
            res.append(f"v_cvt_pk_bf16_f32 v{a + i}, v{a + 2 * i}, v{a + 2 * i + 1}")
        if g & 1:
            s, off = so
            res.append(xstore(f"buffer_store_dwordx4 {V(a + 2 * (g - 1))}, {vL16}, {sWS}, {s} offen offset:{off + 1024 * (g >> 1)}", bit, tag, ini))
    return [I(x) for x in res]


def phase45(L, r4):
    T = [16, 32, 48, 16]
    C0R, C1R, IRR, RR, GT = "v116", "v118", "v120", "v122", 124
    FB = 16 * L
    vtb = x2
    CSN = opt("CSN", 0) if L == 0 else 0
    CS5 = False
    if L == 0:
        if CSN < 4:
            P.add(I(r4))
        IM = opt("IM", 0)
        if IM:
            lid, ljn = P.label(), P.label()
            P(f"s_cmp_ge_u32 {sM}, 14")
            P(f"s_cbranch_scc1 {lid}")
            o = [lid + ":", f"s_bfe_u32 {u0}, s2, 0x20003", f"s_lshl_b32 {u0}, {u0}, 2", f"s_add_u32 {u0}, {u0}, {sW}", f"s_mul_i32 {u0}, {u0}, {4 * 3072}",
                 f"v_lshrrev_b32 {x0}, 4, {vL}", f"v_mul_u32_u24 {x0}, 3072, {x0}", f"v_and_b32 {x1}, 15, {vL}", f"v_lshl_add_u32 {x0}, {x1}, 7, {x0}",
                 f"s_mov_b32 {t3}, {OOB}", f"s_mov_b32 {t4}, {OOB}", f"v_add_u32 {vtb}, {TAB0 + 3072}, {vL16}"]
            for i in range(8):
                o += [f"s_add_u32 {u1}, {u0}, {64 * 3072 * ((2 * i) % 8 + (i >> 2))}", f"buffer_load_dword {x1}, {x0}, {sWQ}, {u1} offen offset:1024"]
            if IM > 1:
                o += [f"v_lshrrev_b32 {x0}, 3, {vL}", f"v_mul_u32_u24 {x0}, 3072, {x0}", f"v_and_b32 v16, 7, {vL}", f"v_lshl_add_u32 {x0}, v16, 7, {x0}", f"s_lshl_b32 {u0}, {u0}, 1"]
                for i in range(opt("IQ", 4)):
                    o += [f"s_add_u32 {u1}, {u0}, {128 * 3072 * i}", f"buffer_load_dword {x1}, {x0}, {sWQ}, {u1} offen"]
            if CSN == 5:
                o += [f"s_lshl_b32 {u0}, {sW}, 13", f"v_add_u32 {x0}, {u0}, {vTP1}"] + table_addr("v123")
            if IM < 3:
                o += ["s_waitcnt vmcnt(0) lgkmcnt(0)", "s_barrier"] + tick("0.idle") + [f"s_branch {ljn}"]
                OUTL.extend(I(o))
            idl = o
        vtw = "v123"
        if CSN < 4:
            P.add(asel(AS4))
            P(f"s_lshl_b32 {t0}, {sW}, 14")
            P(f"v_add_u32 {'v122' if CSN else x1}, {t0}, {vTP}")
            P(f"s_lshl_b32 {t0}, {sW}, 13")
            P(f"v_add_u32 {x0}, {t0}, {vTP1}")
        if CSN >= 4:
            P.add(I(r4))
            P.add(barrier())
            if CSN == 5:
                T[2] = STV
            CS5, CSN = CSN == 5, 0
        elif CSN:
            P.add(table_addr(vtw))
            P.add(barrier("w1AB"))
            if CSN == 1:
                P.add(I(w1_items("CD2")))
        else:
            P.add(table_addr(x2))
            P.need("w1AB")
            for j in range(16):
                P.add(tr("v", XF + 4 * j, x1, 2048 * (j >> 1) + 512 * (j & 1)))
            P.need("w1CD1")
            for j in range(8):
                P.add(tr("v", XF + 64 + 4 * j, x0, 2048 * (j >> 1) + 512 * (j & 1)))
            for j in range(16):
                c = V(16 + 4 * (j & 1))
                P(f"{MF16} {c}, {V(AS4)}, {V(XF + 4 * j)}, {c if j >= 2 else 0}")
            for j in range(8):
                c = V(CC + 4 * (j & 1))
                P(f"{MF16} {c}, {V(AS4)}, {V(XF + 64 + 4 * j)}, {c if j >= 2 else 0}")
            P.add(I(table_write(16, 3, x2, f"v{B1V}") + table_write(20, 4, x2, f"v{B1V + 1}")))
            P.add(barrier())
            P(f"v_mov_b32 {vtw}, {x2}")
    else:
        P.add(barrier("w1AB", "w1CD1", *([] if P3N else ["w1CD2"])))
    P(f"v_add_u32 {vtb}, {TAB0 + 3072}, {vL16}")
    D = 3
    def rdA(t):
        if t < 32:
            return trp(RING + 8 * (t % 4), 2048 * t) + trp(RING + 8 * (t % 4) + 4, 2048 * t + 512)
        if t == 32:
            return I([f"ds_read_b128 {V(RING + 8 * (t % 4) + 4 * e)}, {vtb} offset:{1024 * e}" for e in range(2)])
        return []
    N3 = opt("N3", 0) >> L & 1
    D3 = opt("D3", 7)
    def rdF(f):
        t, e = divmod(f, 3)
        n = RING + 4 * (f % 8)
        if t < 32:
            return trp(n, 2048 * t + 512 * e) if e < 2 else trp(n, R2 + 2048 * t)
        if t == 32:
            return I(f"ds_read_b128 {V(n)}, {vtb} offset:{1024 * e}")
        return []
    back, vc = P.label(), (f"v{GT}" if EF & 2 else None)
    P.put(back)
    for t in range(D3 if N3 else D):
        P.add(rdF(t) if N3 else rdA(t))
    P(f"s_lshl_b32 {t3}, {sT}, 17")
    P(f"s_lshl_b32 {t4}, {sM}, 13")
    P(f"s_add_u32 {t3}, {t3}, {t4}")
    P(f"s_add_u32 {t3}, {t3}, {LB(L) + H_O}")
    P.add(I(idle(t3)))
    P(f"s_add_u32 {t4}, {t3}, 4096")
    xs, xi = x_loads(LB(L) + X1_O, LB(L) + ST1_O, STV)
    NB = opt("NB", 14)
    P.add(xs)
    P.add(I(idle(t1, t2)))
    P.add(tick(f"{L}.B4b"))
    P.add(poll(vPX, x1, FB + 3))
    P.add(tick(f"{L}.pollx1"))
    if CSN:
        assert NB <= 16
        csr = [tr("v", XF + 64 + 4 * j, "v122", 2048 * (j >> 1) + 512 * (j & 1)) for j in range(16)]
        P.add(I(spread(xi[:NB], csr)))
        if CSN == 2:
            P.add(I(w1_items("CD2")))
        for j in range(16):
            c = V(STV + 4 * (j & 1))
            P(f"{MF16} {c}, {V(AS4)}, {V(XF + 64 + 4 * j)}, {c if j >= 2 else 0}")
        tw = table_write(STV, 3, vtw, f"v{B1V}") + table_write(STV + 4, 4, vtw, f"v{B1V + 1}", "tw1")
    else:
        P.add(I(xi[:NB]))
    xi = xi[NB:] + (w1_items("CD2") if (L == 0 and CSN in (0, 3)) or (L and P3N and opt("CD2P", 1) == 1) else [])
    if L == 0 and opt("TKV", 0):
        xi += touch_qkv("v117", "v119")
    if L == 0 and opt("H3B", 0):
        xi += [help3("v117", "v119", u0)]
    xi += sp_touch(2, x1, x1)
    gA = []
    for k in range(33):
        xb = V(XF + 4 * k) if k < 32 else V(EX)
        if N3:
            gA.append(sum((rdF(3 * k + e + D3) + I(f"{MF} {V(T[e], 16)}, {V(RING + 4 * ((3 * k + e) % 8))}, {xb}, {V(T[e], 16) if k else 0}") for e in range(3)), []))
            continue
        gA.append(rdA(k + D) + I([f"{MF} {V(T[e], 16)}, {V(RING + 8 * (k % 4) + 4 * e)}, {xb}, {V(T[e], 16) if k else 0}" for e in range(2)]))
    s = [f"v{STV + i}" for i in range(4)]
    C0 = -2.0 * LOG2E * 0.7978845608028654
    fill = stats_sum(STV, vc) + stats_finish(s[0], s[1], s[2], s[3], EX, True, RR, IRR)
    fill += [I(x) for x in [f"v_mul_f32 {C0R}, {fc(C0)}, {RR}", f"v_mul_f32 {C1R}, {RR}, {RR}", f"v_mul_f32 {C1R}, {C1R}, {C0R}",
                            f"v_mul_f32 {C1R}, {fc(0.044715)}, {C1R}"]]
    for k in range(0, 32, 4):
        gA[k] = gA[k] + tick(f"{L}.zA{k}")
    if CSN:
        gA[0] = I(tw[:7]) + gA[0] + I(tw[7:])
        CR = [112, 116, 124]
        ncd = 8 if CSN == 3 else 16
        def crd(j): return I([need_ins("w1CD1" if j < 8 else "w1CD2")] + tr("v", CR[j % 3], x0, 32768 * (j >> 3) + 2048 * ((j >> 1) & 3) + 512 * (j & 1))) if j < ncd else []
        for j in range(ncd + 2):
            c = V(CC + 4 * (j & 1))
            gA[j] = gA[j] + ((I(f"{MF16} {c}, {V(AS4)}, {V(CR[(j - 2) % 3])}, {c if j >= 4 else 0}") if j >= 2 else []) + crd(j))
        if CSN != 3:
            tw = table_write(CC, 5, vtw, f"v{B1V + 2}") + table_write(CD_, 6, vtw, f"v{B1V + 3}", "tw2")
            for j in range(7):
                gA[ncd + 3 + j] += I(tw[2 * j:2 * j + 2])
        gA[opt("BAP", 20)] += I([need_ins("tw1", "w1CD1", *([] if CSN == 3 else ["w1CD2"])), "s_barrier"])
    attach(gA, xi)
    if opt("WB", 0) >> L & 1:
        lsk = P.label()
        gA[opt("WBP", 24)] += I([f"s_lshl_b32 {u0}, {sM}, 2", f"s_or_b32 {u0}, {u0}, {sW}"] + ([f"s_lshl_b32 {u0}, {u0}, 1", f"s_and_b32 {u1}, {sC}, 1", f"s_or_b32 {u0}, {u0}, {u1}"] if opt("WB1", 1) else []) +
                                [f"s_cmp_lg_u32 {u0}, {120 if opt('WB1', 1) else 60}", f"s_cbranch_scc1 {lsk}", "buffer_wbl2 sc1", lsk + ":"])
    if vc:
        for n, x in chain(vc, XF, 32):
            gA[n] += I(x)
    P.add(weave(gA, [(opt("XSP", 16) + 2, x) for x in fill] + [(len(xi), x) for x in inits("Bb"[L], STV + 8)]))
    if vc:
        P.add(redo(vc, back))
    P.add(tick(f"{L}.pA"))
    if (opt("N45", 0) >> L & 1) or N3:
        return tail45(L, vtb, vtw if L == 0 else None, N3)
    D1 = 6
    def rd1(e, t):
        if t < 32:
            return trp(RING + 4 * (t % 8), R2 + 2048 * t + 512 * e)
        if t == 32:
            return I(f"ds_read_b128 {V(RING + 4 * (t % 8))}, {vtb} offset:{2048 + 1024 * e}")
        if e == 0 and t - 34 >= 0:
            pass
        return []
    def g1(e, off):
        def rd(t):
            n = RING + 4 * ((t + off) % 8)
            if t < 32:
                return trp(n, R2 + 2048 * t + 512 * e)
            if t == 32:
                return I(f"ds_read_b128 {V(n)}, {vtb} offset:{2048 + 1024 * e}")
            if e == 0:
                return trp(n, R2 + 2048 * (t - 33) + 512)
            return []
        a = V(T[2 + e], 16)
        out = []
        for k in range(33):
            xb = V(XF + 4 * k) if k < 32 else V(EX)
            it = rd(k + D1)
            if k % 2 == 0 and k + 1 < 33:
                it = it + [need_ins(("v", RING + 4 * ((k + 1 + off) % 8) + 3))]
            out.append(it + I(f"{MF} {a}, {V(RING + 4 * ((k + off) % 8))}, {xb}, {a if k else 0}"))
        return out, [rd(t) for t in range(D1)]
    gB, preB = g1(0, 0)
    gC, _ = g1(1, 33)
    PUBD = opt("PUBD", 14)
    GHI = opt("GHI", 90) / 100
    def G(i, pk=False):
        o = gelu(T[i], C0R, C1R, IRR, GT, (t3 if i < 2 else t4, 2048 * (i & 1)), f"h{i}", 4 << (4 * L), pk, f"iH{L}{i}")
        if EF & 4:
            o.insert(len(o) - opt("HE", 0), tick(f"{L}.zpb{i}") + publish(FB + 4 + i, x1, f"h{i}", f"iH{L}{i}"))
        return o
    def at(groups, n, item):
        groups[n] = groups[n] + I(item)
    if L == 0:
        cs = [I([need_ins("w1CD2")] + tr("v", STV + 4 * (j & 3), x0, 32768 + 2048 * (j >> 1) + 512 * (j & 1))) for j in range(4)]
        for j in range(8):
            c = V(CC + 4 * (j & 1))
            cs.append(I(f"{MF16} {c}, {V(AS4)}, {V(STV + 4 * (j & 3))}, {c}"))
            if j + 4 < 8:
                cs.append(tr("v", STV + 4 * (j & 3), x0, 32768 + 2048 * ((j + 4) >> 1) + 512 * (j & 1)))
        cs += [[]] + table_write(CC, 5, vtw, f"v{B1V + 2}") + table_write(CD_, 6, vtw, f"v{B1V + 3}")
        if CS5:
            P.add(I(spread(G(0, True), preB, 0.5, 0.95)))
            C2 = opt("C2P", 5)
            LA = opt("C2L", 4)
            for j in range(8):
                at(gB, C2 + j, [need_ins("w1CD2")] + tr("v", 16 + 4 * (j & 3), x0, 32768 + 2048 * (j >> 1) + 512 * (j & 1)))
            for j in range(8):
                c = V(CC + 4 * (j & 1))
                gB[C2 + j + LA] = I(f"{MF16} {c}, {V(AS4)}, {V(16 + 4 * (j & 3))}, {c}") + gB[C2 + j + LA]
            gB[C2 + 1] = I("s_barrier") + gB[C2 + 1]
            tw = table_write(CC, 5, vtw, f"v{B1V + 2}") + table_write(CD_, 6, vtw, f"v{B1V + 3}", "tw2")
            for j in range(5):
                at(gB, C2 + 8 + LA + j, tw[3 * j:3 * j + 3])
            assert C2 + 1 <= 10 and C2 + 8 + LA + 4 < 25 and LA <= 4 and opt("KV0", 0) > C2
            at(gB, 25, [need_ins("tw2"), "s_barrier"])
        elif CSN in (1, 2):
            P.add(I(spread(G(0, True), preB, 0.5, 0.95)))
            P.add(I([need_ins("tw2"), "s_barrier"]))
        else:
            P.add(I(spread(G(0), cs + preB, 0.1, 0.95)))
            P.add(barrier())
        if 0 < IM < 3:
            P.put(ljn)
        kv = wq_items([0, 1], "wkv")
        kv[0] = wq_setup(1024) + kv[0]
        if not opt("KV0", 0):
            for j in range(8):
                at(gB, 1 + j, kv[j]); at(gC, 1 + j, kv[8 + j])
    else:
        P.add(I(spread(G(0, True), preB, 0.5, 0.95)))
        if P3N:
            at(gB, opt("B5P", 4), [need_ins("w1CD2"), "s_barrier"])
    P.add(tick(f"{L}.G0"))
    ACC = [A(224, 16), V(32, 16), V(48, 16), V(240, 16)]
    def hf(s, i, tt): return XF + 4 * (14 * (s & 1) + 2 * i + tt)
    def hloads(s):
        out = []
        for i in range(7):
            for tt in range(2):
                out.append(I([f"s_add_u32 {u0}, {t5 if tt == 0 else d3}, {(8 * i + 2 * s) * 1024}",
                              f"buffer_load_dwordx4 {V(hf(s, i, tt))}, {vL16}, {sWS}, {u0} offen sc1{ntm('H')}"]))
        return out
    def mf(s, i, n):
        tt, ct = n >> 1, n & 1
        a = ACC[n]
        return f"{MF} {a}, {A(((7 * s + i) * 2 + ct) * 4)}, {V(hf(s, i, tt))}, {a if (s or i or n == 0) else 0}"
    def hchk(s, i):
        if not EF & 4:
            return []
        ls, lr = P.label(), P.label()
        c = [f"v_cmp_u_f32 vcc, v{hf(s, i, 0)}, v{hf(s, i, 1)}", f"s_cbranch_vccnz {ls}"]
        OUTL.extend(I([ls + ":", f"s_cmp_eq_u32 {sRT}, 0", f"s_cbranch_scc1 {lr}", f"s_sub_u32 {sRT}, {sRT}, 1"] + hloads(s)[2 * i:2 * i + 2] + c + [f"s_branch {lr}"]))
        return I(c + [lr + ":"])
    def gS(s, ni=7): return [(hchk(s, i) if n == 0 else []) + I(mf(s, i, n)) for i in range(ni) for n in range(4)]
    hb = I([f"s_lshr_b32 {u0}, {sW}, 1", f"s_mul_i32 {u0}, {u0}, {56 * 1024}", f"s_and_b32 {u1}, {sW}, 1", f"s_lshl_b32 {u1}, {u1}, 10",
            f"s_add_u32 {u0}, {u0}, {u1}", f"s_add_u32 {u0}, {u0}, {LB(L) + H_O}", f"s_lshl_b32 {t5}, {sTP}, 17", f"s_xor_b32 {d3}, {t5}, 0x20000",
            f"s_add_u32 {t5}, {t5}, {u0}", f"s_add_u32 {d3}, {d3}, {u0}"])
    for n, x in enumerate(hb):
        at(gB, 16 + n, x)
    DEF = opt("DEF", 0)
    NT = opt("NT5", 2)
    if DEF == 1:
        assert not EF & 4
        st = gB + gC + gS(0) + gS(1) + [I(mf(2, i, n)) for i in range(7) for n in (1, 2, 3)] + [I(mf(3, i, n)) for i in range(7 - NT) for n in (1, 2, 3)]
    else:
        st = gB + gC + gS(0) + gS(1) + gS(2)
    CK = [opt(f"CK{i}", ((41, 66, 96, 124), (33, 48, 80, 110))[EF >> 2 & 1][i]) for i in range(4)]
    PB = [opt("PB0", 14), opt("PB1", 47), opt("PB2", 78), opt("PB3", 108)]
    PD = opt("PD", 12)
    for s in range(4):
        if not EF & 4:
            at(st, PB[s], tick(f"{L}.zpb{s}") + publish(FB + 4 + s, x1, f"h{s}") + tick(f"{L}.zPB{s}"))
        at(st, CK[s] - PD, poll_issue(vPH, x0, FB + 4 + s))
        at(st, CK[s], tick(f"{L}.zck{s}") + poll_check(vPH, x0, FB + 4 + s) + tick(f"{L}.zCK{s}"))
        n = CK[s] + 1
        hl = list(enumerate(hloads(s)))
        if DEF == 2 and s == 3:
            hl = hl[1::2] + hl[0::2]
        for j, (q, x) in enumerate(hl):
            lo = {0: 33 + j, 1: 33 + 14 + j}.get(s, 66 + 28 * (s - 2) + 4 * (q >> 1) + 3)
            n = max(n, lo)
            at(st, n, x)
            assert DEF != 1 or s < 2 or n < 122 + 21 * (s - 2) + 3 * (j >> 1)
            n += 1 if j < opt(f"HBU{s}", opt("HBU", 6)) else opt("HST", 2)
        assert n <= len(st) + 1
    at(st, opt("B6", 110), barrier() + tick(f"{L}.zB6"))
    if L == 0 and opt("KV0", 0):
        for j in range(16):
            at(st, opt("KV0", 0) + j * opt("KVS", 10) // 10, kv[j])
    if L == 0 and opt("WQE", 0):
        assert opt("WQE", 0) > opt("B6", 110)
        for j, x in enumerate(wq_items([2])):
            at(st, opt("WQE", 0) + j * opt("WQS", 1), (I(f"s_sub_u32 {d1}, {d1}, 1024") if j == 0 else []) + x)
    P.add(I(spread(st[:33], G(1, opt("GPK", 0) & 1), 0.03, GHI)))
    P.add(tick(f"{L}.pB"))
    P.add(I(spread(st[33:66], G(2, opt("GPK", 0) & 2), 0.03, GHI)))
    P.add(tick(f"{L}.pC"))
    if L == 0 and IM == 3:
        assert CK[1] >= 66 and CK[1] - PD < 66 and opt("KV0", 0) + 15 * opt("KVS", 10) // 10 < 66
        kvi = wq_items([0, 1], "wkv")
        kvi[0] = wq_setup(1024) + kvi[0]
        hb2 = I([x.text for x in hb])
        idl += ["s_waitcnt lgkmcnt(0)", "s_barrier"] + hb2 + poll(vPH, x0, FB + 4) + tick("0.idle") + hloads(0) + poll_issue(vPH, x0, FB + 5) + kvi + [f"s_branch {ljn}"]
        OUTL.extend(I(idl))
        P.put(ljn)
    P.add(weave(st[66:94], [(1, x) for x in G(3, opt("GPK", 0) & 4)], slack=0))
    P.add(tick(f"{L}.S0"))
    P.add(I(st[94:122]))
    P.add(tick(f"{L}.S1"))
    x, tmp = 64, 80
    wa = ["v16", "v17", "v18", "v19"]
    pre = []
    for i in range(4):
        pre.append(I([f"s_xor_b32 {u0}, {sW}, {i}", f"s_mul_i32 {u0}, {u0}, 12288", f"s_add_u32 {u0}, {u0}, {SL + 4096 * max(0, i - 1)}",
                      f"v_add_u32 {wa[i]}, {u0}, {vL16}"]))
    if L == 0:
        pre.append(tile_addr(LB(1) + XIN_O, LB(1) + ST2_O))
    else:
        pre.append(I([f"v_and_b32 {x2}, 31, {vL}", f"v_lshrrev_b32 {x1}, 5, {vL}", f"v_lshlrev_b32 {x2}, 10, {x2}", f"v_lshl_add_u32 {x2}, {x1}, 4, {x2}",
                      f"s_lshl_b32 {t1}, {sTP}, 15", f"s_lshl_b32 {t2}, {sCT}, 6", f"s_add_u32 {t1}, {t1}, {t2}"]))
    base = [0, 32, 48, 240]
    if DEF == 2:
        for n, it in enumerate(pre):
            at(st, 140 + n, it)
        P.add(I(st[122:150]))
        P.add(tick(f"{L}.S2"))
        def wr(n): return [I(f"ds_write_b128 {wa[n]}, {V(base[n] + 4 * j)} offset:{1024 * j}") for j in range(4)]
        def rd(p): return [I(f"ds_read_b128 {V(tmp + 16 * p + 4 * j)}, {wa[0]} offset:{4096 * p + 1024 * j}") for j in range(4)]
        def ad(d, a, b): return [I(f"v_pk_add_f32 {V(d + 2 * i, 2)}, {V(a + 2 * i, 2)}, {V(b + 2 * i, 2)}") for i in range(8)]
        g = [I(mf(3, i, n)) for i in range(7) for n in (3, 2)]
        for j in range(4):
            g[1 + j] += I([f"v_accvgpr_read_b32 v{x + i}, a{224 + i}" for i in range(4 * j, 4 * j + 4)])
        P.add(I(g))
        g = [I(mf(3, i, 1) if n else f"{MF} {V(x, 16)}, {A((21 + i) * 8)}, {V(hf(3, i, 0))}, {V(x, 16)}") for i in range(7) for n in (1, 0)]
        W0, BA = opt("W0", 0), opt("BA", 6)
        attach(g, wr(3) + wr(2), W0, opt("WP", 4))
        g[BA] += barrier() + I(rd(1) + rd(2))
        attach(g, ad(tmp + 16, tmp + 16, tmp + 32), opt("AP", 10), 4)
        P.add(I(g + wr(1) + ad(x, x, tmp + 16)))
        P.add(tick(f"{L}.S3"))
        P.add(barrier(*(["wkv"] if L == 0 else [])))
        P.add(I(rd(0) + ad(x, x, tmp)))
    elif DEF:
        for n, it in enumerate(pre + [I([f"v_accvgpr_read_b32 v{x + i}, a{224 + i}" for i in range(j, j + 4)]) for j in range(0, 16, 4)]):
            at(st, 143 + n, it)
        P.add(I(st[122:143]))
        P.add(tick(f"{L}.S2"))
        own = [I(f"{MF} {V(x, 16)}, {A((7 * s + i) * 8)}, {V(hf(s, i, 0))}, {V(x, 16)}") for s in (2, 3) for i in range(7)]
        g, wr = st[143:], []
        for n in (3, 2, 1, 0):
            for e, i in enumerate(range(7 - NT, 7)):
                g.append(I(mf(3, i, n)) if n else own.pop(0))
                if e >= 1 or NT == 1:
                    k = (len(wr) + (NT - e) - 1) // (NT - e)
                    g.append(I(wr[:k])); wr = wr[k:]
            if n:
                wr = [f"ds_write_b128 {wa[n]}, {V(base[n] + 4 * j)} offset:{1024 * j}" for j in range(4)]
        K1 = opt("K1", 3)
        P.add(I(g + own[:K1]))
        own = own[K1:]
        P.add(tick(f"{L}.S3"))
        P.add(barrier(*(["wkv"] if L == 0 else [])))
        order = [j + 4 * p for j in range(4) for p in range(3)]
        rd = [I(f"ds_read_b128 {V(tmp + 4 * j)}, {wa[0]} offset:{1024 * j}") for j in order]
        ad = [I([f"v_pk_add_f32 {V(tmp + 2 * i, 2)}, {V(tmp + 2 * i, 2)}, {V(tmp + 16 * p + 2 * i, 2)}" for p in (1, 2) for i in (2 * j, 2 * j + 1)]) for j in range(4)]
        RP = opt("RP", 4)
        for n in range(0, 12, RP):
            P.add(I(rd[n:n + RP]))
            P.add(own.pop(0))
        assert len(own) >= 4
        while len(own) > 4:
            P.add(own.pop(0))
        for j in range(4):
            P.add(own.pop(0))
            P.add(ad[j])
        for i in range(8):
            P(f"v_pk_add_f32 {V(x + 2 * i, 2)}, {V(x + 2 * i, 2)}, {V(tmp + 2 * i, 2)}")
    else:
        P.add(I(st[122:150]))
        P.add(tick(f"{L}.S2"))
        NT = opt("NT5", 2)
        wa = ["v16", "v17", "v18", "v19"]
        pre = []
        for i in range(4):
            pre.append(I([f"s_xor_b32 {u0}, {sW}, {i}", f"s_mul_i32 {u0}, {u0}, 12288", f"s_add_u32 {u0}, {u0}, {SL + 4096 * max(0, i - 1)}",
                          f"v_add_u32 {wa[i]}, {u0}, {vL16}"]))
        if L == 0:
            pre.append(tile_addr(LB(1) + XIN_O, LB(1) + ST2_O))
        else:
            pre.append(I([f"v_and_b32 {x2}, 31, {vL}", f"v_lshrrev_b32 {x1}, 5, {vL}", f"v_lshlrev_b32 {x2}, 10, {x2}", f"v_lshl_add_u32 {x2}, {x1}, 4, {x2}",
                          f"s_lshl_b32 {t1}, {sTP}, 15", f"s_lshl_b32 {t2}, {sCT}, 6", f"s_add_u32 {t1}, {t1}, {t2}"]))
        P.add(I(pre))
        g = gS(3, 7 - NT)
        if L == 0:
            attach(g, inits("C", RING), 1, 1)
            if opt("WQ3", 0):
                wq = wq_items([2])
                wq[0] = I(f"s_sub_u32 {d1}, {d1}, 1024") + wq[0]
                attach(g, wq, opt("WQ3", 0) - 1, 1)
        base = [0, 32, 48, 240]
        wr = []
        for n in (3, 2, 1, 0):
            for e, i in enumerate(range(7 - NT, 7)):
                g.append((hchk(3, i) if n == 3 else []) + I(mf(3, i, n)))
                if e >= 1 or NT == 1:
                    k = (len(wr) + (NT - e) - 1) // (NT - e)
                    g.append(I(wr[:k])); wr = wr[k:]
            if n:
                wr = [f"ds_write_b128 {wa[n]}, {V(base[n] + 4 * j)} offset:{1024 * j}" for j in range(4)]
        P.add(I(g))
        x, tmp = 64, 80
        for i in range(16):
            P(f"v_accvgpr_read_b32 v{x + i}, a{224 + i}")
        P.add(tick(f"{L}.S3"))
        P.add(barrier(*(["wkv"] if L == 0 else [])))
        for j in range(12):
            P(f"ds_read_b128 {V(tmp + 4 * j)}, {wa[0]} offset:{1024 * j}")
        for p in range(3):
            for i in range(8):
                P(f"v_pk_add_f32 {V(x + 2 * i, 2)}, {V(x + 2 * i, 2)}, {V(tmp + 16 * p + 2 * i, 2)}")
    if L == 0:
        tile_out(x, 16, 24, 8, publish(8, x1, early="iY0") if EF & 8 else [], "iY0")
        for i in range(16):
            P(f"v_accvgpr_write_b32 a{224 + i}, v{x + i}")
        if not EF & 8:
            P.add(publish(8, x1))
        P.add(tick("0.p5end"))
    else:
        for i in range(8):
            P(f"v_cvt_pk_bf16_f32 v{16 + i}, v{x + 2 * i}, v{x + 2 * i + 1}")
        P(f"buffer_store_dwordx4 {V(16)}, {x2}, {sOUT}, {t1} offen {OM}")
        P(f"buffer_store_dwordx4 {V(20)}, {x2}, {sOUT}, {t1} offen offset:32 {OM}")
        if PROF:
            P.need("stores")
            P.add(tick("1.final"))
            P.add(prof_dump())


def tail45(L, vtb, vtw, N3=0):
    o = lambda n, d: opt(f"{n}_{L}", opt(n, d))
    G0X, G2X, G3X = (1 if L == 0 else o("G0X", 1)), o("G2X", 1), o("G3X", N3)
    T = [16, 32, 48, 16 if G0X else STV]
    C0R, C1R, IRR, RR, GT = "v116", "v118", "v120", "v122", 124
    FB, D = 16 * L, 3
    def rd(t):
        n = RING + 8 * (t % 4)
        if t < 32:
            return trp(n, R2 + 2048 * t) + trp(n + 4, R2 + 2048 * t + 512)
        if t == 32:
            return I([f"ds_read_b128 {V(n + 4 * e)}, {vtb} offset:{2048 + 1024 * e}" for e in range(2)])
        return []
    gBC = []
    for k in range(33):
        xb = V(XF + 4 * k) if k < 32 else V(EX)
        r = rd(k + D)
        for e in range(2):
            gBC.append(I(f"{MF} {V(T[2 + e], 16)}, {V(RING + 8 * (k % 4) + 4 * e)}, {xb}, {V(T[2 + e], 16) if k else 0}") + r[len(r) // 2 * e:len(r) // 2 * (e + 1)])
    pre = [rd(t) for t in range(D)]
    if N3:
        D = 6
        def rd(t):
            n = RING + 4 * (t % 8)
            if t < 32:
                return trp(n, R2 + 2048 * t + 512)
            return I(f"ds_read_b128 {V(n)}, {vtb} offset:3072") if t == 32 else []
        gBC = []
        for k in range(33):
            xb = V(XF + 4 * k) if k < 32 else V(EX)
            it = rd(k + D)
            if k % 2 == 0 and k + 1 < 33:
                it = it + [need_ins(("v", RING + 4 * ((k + 1) % 8) + 3))]
            gBC.append(it + I(f"{MF} {V(T[3], 16)}, {V(RING + 4 * (k % 8))}, {xb}, {V(T[3], 16) if k else 0}"))
        pre = [rd(t) for t in range(D)]
    NB_ = len(gBC)
    def G(i, pk=False):
        return gelu(T[i], C0R, C1R, IRR, GT, (t3 if i < 2 else t4, 2048 * (i & 1)), f"h{i}", 4 << (4 * L), pk)
    def at(groups, n, item):
        groups[n] = groups[n] + I(item)
    kv = []
    if L == 0:
        cs = [I([need_ins("w1CD2")] + tr("v", STV + 4 * (j & 3), x0, 32768 + 2048 * (j >> 1) + 512 * (j & 1))) for j in range(4)]
        for j in range(8):
            c = V(CC + 4 * (j & 1))
            cs.append(I(f"{MF16} {c}, {V(AS4)}, {V(STV + 4 * (j & 3))}, {c}"))
            if j + 4 < 8:
                cs.append(tr("v", STV + 4 * (j & 3), x0, 32768 + 2048 * ((j + 4) >> 1) + 512 * (j & 1)))
        cs += [[]] + table_write(CC, 5, vtw, f"v{B1V + 2}") + table_write(CD_, 6, vtw, f"v{B1V + 3}")
        P.add(I(spread(G(0), cs + pre, 0.1, 0.95)))
        P.add(barrier())
        kv = wq_items([0, 1], "wkv")
        kv[0] = wq_setup(1024) + kv[0]
    elif G0X:
        P.add(I(spread(G(0, True), pre, 0.5, 0.95)))
    else:
        P.add(I(pre))
    P.add(tick(f"{L}.G0"))
    AB = [0, 32, RING, RING + 16]
    ACC = [A(224, 16)] + [V(b, 16) for b in AB[1:]]
    NR = 32
    def hf(s, i, tt): return XF + 4 * ((14 * s + 2 * i + tt) % NR)
    def hloads(s):
        return [I([f"s_add_u32 {u0}, {t5 if tt == 0 else d3}, {(8 * i + 2 * s) * 1024}",
                   f"buffer_load_dwordx4 {V(hf(s, i, tt))}, {vL16}, {sWS}, {u0} offen sc1"]) for i in range(7) for tt in range(2)]
    def mf(s, i, n):
        tt, ct = n >> 1, n & 1
        a = ACC[n]
        return f"{MF} {a}, {A(((7 * s + i) * 2 + ct) * 4)}, {V(hf(s, i, tt))}, {a if (s or i or n == 0) else 0}"
    def gS(s, ni=7): return [I(mf(s, i, n)) for i in range(ni) for n in range(4)]
    hb = I([f"s_lshr_b32 {u0}, {sW}, 1", f"s_mul_i32 {u0}, {u0}, {56 * 1024}", f"s_and_b32 {u1}, {sW}, 1", f"s_lshl_b32 {u1}, {u1}, 10",
            f"s_add_u32 {u0}, {u0}, {u1}", f"s_add_u32 {u0}, {u0}, {LB(L) + H_O}", f"s_lshl_b32 {t5}, {sTP}, 17", f"s_xor_b32 {d3}, {t5}, 0x20000",
            f"s_add_u32 {t5}, {t5}, {u0}", f"s_add_u32 {d3}, {d3}, {u0}"])
    for n in range(0, 10, 2):
        at(gBC, 1 + n, hb[n:n + 2])
    gx = []
    for i, x in ((2, G2X), (3, G3X)):
        if x:
            g = G(i, True)
            gx += [I(g[len(g) * n // 10:len(g) * (n + 1) // 10]) for n in range(10)]
    NT = opt("NT5", 2)
    S0 = NB_ + len(gx)
    st = gBC + gx + gS(0) + gS(1) + gS(2) + gS(3, 7 - NT)
    def pos(p): return p if p < 100 else (NB_ + p - 100 if p < 200 else S0 + p - 200)
    PB = [pos(o(f"PB{i}", ((18, 58, 216, 246), (14, 109, 200, 218))[N3][i])) for i in range(4)]
    PI = [pos(o(f"PI{i}", ((30, 103, 228, 256), (27, 115, 212, 232))[N3][i])) for i in range(4)]
    CK = [pos(o(f"CK{i}", ((42, 202, 240, 268), (32, 119, 220, 240))[N3][i])) for i in range(4)]
    for s in range(4):
        at(st, PB[s], tick(f"{L}.zpb{s}") + publish(FB + 4 + s, x1, f"h{s}") + tick(f"{L}.zPB{s}"))
        at(st, PI[s], poll_issue(vPH, x0, FB + 4 + s))
        at(st, CK[s], tick(f"{L}.zck{s}") + poll_check(vPH, x0, FB + 4 + s) + tick(f"{L}.zCK{s}"))
        n = CK[s]
        HS = o(f"HS{s}", ((14, 10, 15, 10), (7, 10, 10, 10))[N3][s])
        for j, x in enumerate(hloads(s)):
            q = 14 * s + j
            lo = (q if N3 else 2 * q + 1) if q < NR else S0 + 4 * ((q - NR) >> 1) + 3
            n = max(n, lo)
            assert n < S0 + 4 * (q >> 1), (s, j, n)
            at(st, n, x)
            n = max(n, CK[s] + (j + 1) * HS // 10)
    at(st, pos(o("B6", 210)), barrier() + tick(f"{L}.zB6"))
    for j, x in enumerate(kv):
        at(st, pos(o("KV0", 1)) + j * o("KVS", 20) // 10, x)
    if L == 0 and opt("WQ3", 0):
        wq = wq_items([2])
        wq[0] = I(f"s_sub_u32 {d1}, {d1}, 1024") + wq[0]
        for j, x in enumerate(wq):
            at(st, pos(opt("WQ3", 0)) + j * opt("WQS", 20) // 10, x)
    wa = [f"v{EX + i}" for i in range(4)]
    for i in range(4):
        at(st, S0 + 60 + i, [f"s_xor_b32 {u0}, {sW}, {i}", f"s_mul_i32 {u0}, {u0}, 12288", f"s_add_u32 {u0}, {u0}, {SL + 4096 * max(0, i - 1)}",
                             f"v_add_u32 {wa[i]}, {u0}, {vL16}"])
    if L == 0:
        at(st, S0 + 64, tile_addr(LB(1) + XIN_O, LB(1) + ST2_O))
    else:
        at(st, S0 + 64, [f"v_and_b32 {x2}, 31, {vL}", f"v_lshrrev_b32 v{GT}, 5, {vL}", f"v_lshlrev_b32 {x2}, 10, {x2}", f"v_lshl_add_u32 {x2}, v{GT}, 4, {x2}",
                         f"s_lshl_b32 {t1}, {sTP}, 15", f"s_lshl_b32 {t2}, {sCT}, 6", f"s_add_u32 {t1}, {t1}, {t2}"])
    P.add(I(spread(st[:NB_], ([] if G0X else G(0)) + G(1), 0.02, o("GHI", 90 if N3 else 62 if G0X else 97) / 100)))
    P.add(tick(f"{L}.pC"))
    P.add(I(st[NB_:S0]))
    P.add(tick(f"{L}.GX"))
    wv = ([] if G2X else G(2)) + ([] if G3X else G(3))
    P.add(I(spread(st[S0:S0 + 28], wv, 0.02, o("GH2", 95) / 100)))
    P.add(tick(f"{L}.S0"))
    P.add(I(st[S0 + 28:S0 + 56]))
    P.add(tick(f"{L}.S1"))
    P.add(I(st[S0 + 56:S0 + 84]))
    P.add(tick(f"{L}.S2"))
    g = st[S0 + 84:]
    wr = []
    for n in (3, 2, 1, 0):
        for e, i in enumerate(range(7 - NT, 7)):
            g.append(I(mf(3, i, n)))
            if e >= 1 or NT == 1:
                k = (len(wr) + (NT - e) - 1) // (NT - e)
                g.append(I(wr[:k])); wr = wr[k:]
        if n:
            wr = [f"ds_write_b128 {wa[n]}, {V(AB[n] + 4 * j)} offset:{1024 * j}" for j in range(4)]
    P.add(I(g))
    x, tmp = 48, XF
    for i in range(16):
        P(f"v_accvgpr_read_b32 v{x + i}, a{224 + i}")
    P.add(tick(f"{L}.S3"))
    P.add(barrier(*(["wkv"] if L == 0 else [])))
    for j in range(12):
        P(f"ds_read_b128 {V(tmp + 4 * j)}, {wa[0]} offset:{1024 * j}")
    for p in range(3):
        for i in range(8):
            P(f"v_pk_add_f32 {V(x + 2 * i, 2)}, {V(x + 2 * i, 2)}, {V(tmp + 16 * p + 2 * i, 2)}")
    if L == 0:
        tile_out(x, 16, 24, 8, [], None)
        for i in range(16):
            P(f"v_accvgpr_write_b32 a{224 + i}, v{x + i}")
        P.add(publish(8, x1))
        P.add(tick("0.p5end"))
    else:
        for i in range(8):
            P(f"v_cvt_pk_bf16_f32 v{16 + i}, v{x + 2 * i}, v{x + 2 * i + 1}")
        P(f"buffer_store_dwordx4 {V(16)}, {x2}, {sOUT}, {t1} offen {OM}")
        P(f"buffer_store_dwordx4 {V(20)}, {x2}, {sOUT}, {t1} offen offset:32 {OM}")
        if PROF:
            P.need("stores")
            P.add(tick("1.final"))
            P.add(prof_dump())
```

```python
import sys, struct, re
from asmgen import Prog, Ins, emit, need_ins

KN = "interleave_layers__sliding_block__mixer_channel_mlp__prompt_kernel"
OPT = dict(a.split("=") for a in sys.argv[2:])
STOP = OPT.get("STOP")
PROF = int(OPT.get("PROF", 0))
def opt(name, default): return int(OPT.get(name, default))

MB = 1 << 20
KV_O, O_O, X1_O, XIN_O, ST1_O, ST2_O, H_O = 0, 4 * MB, 6 * MB, 8 * MB, 10 * MB, 10 * MB + 256 * 1024, 11 * MB
LSTRIDE = 20 * MB
def LB(L): return MB + L * LSTRIDE
FPACK = 131072
MBOX = FPACK + 8192
ARR = FPACK + 65536
OOB = 0x40000000
R0, R1, R2, SL, PITCH = 0, 32768, 65536, 98304, 4112
SCR3, SPARE, TAB0, RBC = 131072, 147648, 156160, 163328

sC, sM, sW, sCNT = "s4", "s5", "s6", "s7"
sRR = "s0"
sX, sWQ, sWO, sW1, sW2, sWS, sOUT, sB2, sB1, sDBG = [f"s[{8 + 4 * i}:{11 + 4 * i}]" for i in range(10)]
sT, sTP, sCT, sMODE, sFA, sFP = "s48", "s49", "s50", "s51", "s52", "s53"
t0, t1, t2, t3, t4, t5 = "s54", "s55", "s56", "s57", "s58", "s59"
d0, d1, d2, d3 = "s60", "s61", "s62", "s63"
u0, u1, u2, u3 = "s96", "s97", "s98", "s99"
def sMASK(r): return f"s[{64 + 2 * r}:{65 + 2 * r}]"
vL, vL16, vTR, vTR1, vTP, vTP1, vPX, vPO, vPH, vPROF, voQ, vo1, vo2 = [f"v{i}" for i in range(13)]
x0, x1, x2 = "v13", "v14", "v15"
XF = 128

def f2u(x): return struct.unpack("<I", struct.pack("<f", x))[0]
def fc(x): return hex(f2u(x))
def V(n, k=4): return f"v[{n}:{n + k - 1}]" if k > 1 else f"v{n}"
def A(n, k=4): return f"a[{n}:{n + k - 1}]" if k > 1 else f"a{n}"
def R(f, n, k=4): return f"{f}[{n}:{n + k - 1}]"

PL = opt("PL", 0)
P3N = opt("P3N", 1)
PMOD = OPT.get("PMOD", "")
LOG2E = 1.4426950408889634
EPS = 1e-5
P = Prog()
MF = "v_mfma_f32_32x32x16_bf16"
MF16 = "v_mfma_f32_16x16x32_bf16"
OUTL = []


def I(x):
    if isinstance(x, str):
        return [Ins(x)]
    if isinstance(x, Ins):
        return [x]
    out = []
    for e in x:
        out += I(e)
    return out


def cost(ins):
    c = 0
    for i in ins:
        if i.kind in ("label", "dir"):
            continue
        c += 8 if (i.kind in ("mfma", "trans") or i.op.startswith("v_permlane")) else 4
    return c


def weave(groups, fill, slack=4, start=0, rate=1.0):
    out, f, credit = [], [], 0
    for it in fill:
        if isinstance(it, tuple):
            f.append((it[0], I(it[1])))
        else:
            f.append((0, I(it)))
    for n, g in enumerate(groups):
        g = I(g)
        out += g
        pipe = sum(4 * i.passes for i in g if i.kind == "mfma")
        if n < start:
            continue
        credit = min(credit, 8) + (pipe - cost(g) - slack) * rate
        while f and f[0][0] <= n and credit > 0:
            it = f.pop(0)[1]
            out += it
            credit -= cost(it)
    for _, it in f:
        out += it
    return out


def spread(main, fill, lo=0.0, hi=1.0):
    main = [I(m) for m in main]
    fill = [I(x) for x in fill]
    tot = sum(cost(m) for m in main)
    out, acc, k = [], 0, 0
    for m in main:
        out.append(m)
        acc += cost(m)
        while k < len(fill) and acc >= tot * (lo + (hi - lo) * k / max(1, len(fill))):
            out.append(fill[k]); k += 1
    out += fill[k:]
    return out


def tr(f, n, base, off):
    assert 0 <= off and off + 256 < 65536
    return [Ins(f"ds_read_b64_tr_b16 {R(f, n, 2)}, {base} offset:{off}"),
            Ins(f"ds_read_b64_tr_b16 {R(f, n + 2, 2)}, {base} offset:{off + 256}")]

def tr1(n, addr):
    return tr("v", n, vTR, addr) if addr < 65536 else tr("v", n, vTR1, addr - 65536)

def trp(n, addr):
    return tr("v", n, vTP, addr) if addr < 65536 else tr("v", n, vTP1, addr - 65536)


def ntm(srd):
    b = {sW2: 1, sW1: 2, sWO: 4, sWQ: 8, "H": 16, "X": 32, "O": 64, "KV": 128, sX: 256}[srd]
    return " nt" if opt("NT", 0) & b else ""


def dma(srd, voff, sbase, goffs, lds_s, lds_imm, tag, st=d0):
    out = []
    for j, g in enumerate(goffs):
        it = []
        if j % 4 == 0:
            it.append(Ins(f"s_add_u32 m0, {lds_s}, {lds_imm + 1024 * j}") if lds_s else Ins(f"s_mov_b32 m0, {lds_imm + 1024 * j}"))
        o = g - (j % 4) * 1024
        assert o >= 0
        it.append(Ins(f"s_add_u32 {st}, {sbase}, {o}"))
        it.append(Ins(f"buffer_load_dwordx4 {voff}, {srd}, {st} offen offset:{(j % 4) * 1024}{ntm(srd)} lds", xdst=[tag]))
        out.append(it)
    return out


def dma_rot(srd, voff, sbase, n, gstep, g0, lds_s, lds_imm, tag, rot):
    out = []
    for j in range(n):
        it = []
        if j % 4 == 0:
            it += [f"s_xor_b32 {d0}, {rot}, {j // 4}", f"s_lshl_b32 {d3}, {d0}, 12", f"s_mul_i32 {d0}, {d0}, {4 * gstep}", f"s_add_u32 {d3}, {d3}, {lds_s}",
                   f"s_add_u32 {d0}, {d0}, {sbase}", f"s_add_u32 m0, {d3}, {lds_imm - g0}"]
        else:
            it.append(f"s_add_u32 {d0}, {d0}, {gstep - 1024}")
        it.append(Ins(f"buffer_load_dwordx4 {voff}, {srd}, {d0} offen offset:{(j % 4) * 1024 + g0} lds", xdst=[tag]))
        out.append(I(it))
    return out


def barrier(*extra):
    return [need_ins("ds_any", *extra), Ins("s_barrier")]


SP = opt("SP", 0)
SFB, SBIAS = 20 * MB, 0xFF0000
cO, cH, cX, sAT, pO, pX, pH = "s36", "s37", "s38", "s39", "s8", "s9", "s10"


def spk(val):
    L, e = val >> 4, val & 15
    if e == 1 and SP & 1: return cO, 512 * L, pO, 512 * L, "O"
    if e == 3 and SP & 2: return cX, 4096 * L + 3072, pX, 3072, "X"
    if 4 <= e < 8 and SP & 4: return cH, 4096 * L + 512 * (e - 2), pH, 512 * (e - 2), "H"
    if e == 8 and SP & 8: return cX, 3584, pX, 3584, "X"
    return None


def sload(k, base):
    return f"s_buffer_load_dwordx2 s[44:45], {sWS}, {base} offset:{k[1]}" if k[4] == "O" else f"s_buffer_load_dwordx4 s[44:47], {sWS}, {base} offset:{k[1]}"


def stest(k):
    if k[4] == "O":
        return ["s_nand_b32 s44, s44, s45"]
    return (["s_or_b32 s47, s47, 0xffff0000"] if k[4] == "H" else []) + ["s_nand_b64 s[44:45], s[44:45], s[46:47]"]


def poll_issue(vaddr, vt, target=0):
    k = spk(target)
    if k:
        return I(sload(k, k[0]))
    return [Ins(f"buffer_load_dword {vt}, {vaddr}, {sWS}, {sFP} offen sc1")]


def poll_check(vaddr, vt, target):
    ls, lr, lp = P.label(), P.label(), P.label()
    k = spk(target)
    o = [ls + ":"]
    if k:
        l1, lv = P.label(), P.label()
        o += [f"s_mov_b32 {sAT}, {k[0]}", f"s_cmp_eq_u32 {sMODE}, 0", f"s_cbranch_scc1 {lv}", l1 + ":", f"s_add_u32 {sAT}, {sAT}, 64",
              f"s_and_b32 s44, {sAT}, {0xc0 if k[4] == 'H' else 0x1c0}", f"s_cbranch_scc0 {lv}", sload(k, sAT)] + stest(k) + [f"s_cbranch_scc0 {lr}", f"s_branch {l1}", lv + ":"]
    OUTL.extend(I(o + [f"s_mov_b32 {sCNT}, 30000", lp + ":",
                       f"buffer_load_dword {vt}, {vaddr}, {sWS}, {sFP} offen sc1",
                       f"v_cmp_gt_u32 vcc, {target}, {vt}", f"s_cbranch_vccz {lr}",
                       f"s_sub_u32 {sCNT}, {sCNT}, 1", f"s_cbranch_scc0 {lp}", "s_endpgm"]))
    if k:
        return I(stest(k) + [f"s_cbranch_scc1 {ls}", lr + ":"])
    return I([f"v_cmp_gt_u32 vcc, {target}, {vt}", f"s_cbranch_vccnz {ls}", lr + ":"])


def poll(vaddr, vt, target):
    if spk(target):
        return poll_issue(vaddr, vt, target) + poll_check(vaddr, vt, target)
    lp, lr = P.label(), P.label()
    return I([f"s_mov_b32 {sCNT}, 30000", lp + ":",
              f"buffer_load_dword {vt}, {vaddr}, {sWS}, {sFP} offen sc1",
              f"v_cmp_gt_u32 vcc, {target}, {vt}", f"s_cbranch_vccz {lr}",
              f"s_sub_u32 {sCNT}, {sCNT}, 1", f"s_cbranch_scc0 {lp}", "s_endpgm", lr + ":"])


def sp_setup():
    if not SP:
        return []
    b = [f"s_lshl_b32 {u0}, {sC}, 15", f"s_add_u32 {u0}, {u0}, {SFB}", f"s_cmp_eq_u32 {sMODE}, 0", f"s_cselect_b32 {u0}, {OOB}, {u0}"]
    a = b + [f"s_and_b32 {u1}, {sTP}, 3", f"s_lshl_b32 {u1}, {u1}, 13", f"s_add_u32 {u1}, {u1}, {u0}", f"s_and_b32 {u2}, {sW}, 1",
             f"s_lshl_b32 {u3}, {u2}, 12", f"s_add_u32 {cO}, {u1}, {u3}", f"s_lshl_b32 {u3}, {u2}, 8", f"s_add_u32 {cH}, {u1}, {u3}",
             f"s_add_u32 {pX}, {u1}, {sCT}", f"s_sub_u32 {pX}, {pX}, {SBIAS}",
             f"s_lshl_b32 {u3}, {sW}, 13", f"s_add_u32 {cX}, {u0}, {u3}", f"s_buffer_load_dword s44, {sWS}, {cX} offset:{4096 + 3584}"]
    c = [f"s_lshr_b32 {u1}, {sM}, 3", f"s_lshl_b32 {u1}, {u1}, 12", f"s_and_b32 {u2}, {sM}, 7", f"s_add_u32 {u1}, {u1}, {u2}",
         f"s_add_u32 {pO}, {cX}, {u1}", f"s_sub_u32 {pO}, {pO}, {SBIAS}",
         f"s_cmp_ge_u32 {sM}, 7", f"s_cselect_b32 {u1}, {8192 - 14}, 0", f"s_lshl_b32 {u2}, {sM}, 1", f"s_add_u32 {u1}, {u1}, {u2}",
         f"s_and_b32 {u2}, {sW}, 1", f"s_add_u32 {u1}, {u1}, {u2}", f"s_andn2_b32 {u2}, {cX}, 8192", f"s_add_u32 {u1}, {u1}, {u2}",
         f"s_sub_u32 {pH}, {u1}, {SBIAS}", f"s_cmp_ge_u32 {sM}, 14", f"s_cselect_b32 {pH}, {OOB}, {pH}"]
    return [I(a), I(c)]


def sp_touch(bit, vt, va):
    if not opt("SPT", 0) & bit:
        return []
    return [I([f"s_lshl_b32 {u0}, {sC}, 4", f"s_add_u32 {u0}, {u0}, {sM}", f"s_lshl_b32 {u0}, {u0}, 2", f"s_add_u32 {u0}, {u0}, {sW}", f"s_lshl_b32 {u0}, {u0}, 9", f"s_add_u32 {u0}, {u0}, {SFB}",
               f"v_and_b32 {va}, 0x180, {vL16}", f"buffer_load_dword {vt}, {va}, {sWS}, {u0} offen sc1"])]


EF = opt("EF", 0)
sRT = "s1"


def publish(val, vt, tag="stores", early=None):
    ls, lr = P.label(), P.label()
    st = f"buffer_store_dword {vt}, off, {sWS}, {sFA}"
    OUTL.extend(I([ls + ":", need_ins(tag), st + " sc1", f"s_branch {lr}"]))
    k = spk(val)
    nx = [f"s_add_u32 {pX}, {pX}, 4096", f"s_add_u32 {pH}, {pH}, 4096"] if SP and val == 8 else []
    if k:
        assert not early
        return I([f"v_and_b32 {vt}, 0x1c0, {vL16}", f"v_or_b32 {vt}, {SBIAS}, {vt}", f"s_cmp_eq_u32 {sMODE}, 0", need_ins(tag),
                  f"buffer_store_byte_d16_hi {vt}, {vt}, {sWS}, {k[2]} offen offset:{k[3]}", f"v_mov_b32 {vt}, {val}", f"s_cbranch_scc1 {ls}", st, lr + ":"] + nx)
    return I([f"v_mov_b32 {vt}, {val}", f"s_cmp_eq_u32 {sMODE}, 0", need_ins(early or tag), f"s_cbranch_scc1 {ls}", st, lr + ":"] + nx)


INAMES = ["O0", "X0", "H00", "H01", "H02", "H03", "Y0", "O1", "X1", "H10", "H11", "H12", "H13"]
IW = dict(zip(INAMES, OPT.get("IW", "AAAAAAACCaaaa")))
def efbit(n): return EF & {"O": 1, "X": 2, "H": 4, "Y": 8}[n[0]]


def inits(win, r):
    out = []
    for n in INAMES:
        if IW[n] != win or not efbit(n):
            continue
        L = int(n[1])
        def st(off): return Ins(f"buffer_store_dwordx4 {V(r)}, {vL16}, {sWS}, {u0} offen offset:{off} sc1", xdst=["i" + n])
        if n[0] == "O":
            o = [f"s_lshl_b32 {u0}, {sT}, 4", f"s_add_u32 {u0}, {u0}, {sM}", f"s_lshl_b32 {u0}, {u0}, 11", f"s_add_u32 {u0}, {u0}, {LB(L) + O_O}", st(0), st(1024)]
        elif n[0] == "H":
            o = [f"s_lshl_b32 {u0}, {sT}, 4", f"s_add_u32 {u0}, {u0}, {sM}", f"s_lshl_b32 {u0}, {u0}, 13", f"s_add_u32 {u0}, {u0}, {LB(L) + H_O + 2048 * int(n[2])}",
                 f"s_cmp_ge_u32 {sM}, 14", f"s_cselect_b32 {u0}, {OOB}, {u0}", st(0), st(1024)]
        else:
            xo, so = (LB(L) + X1_O, LB(L) + ST1_O) if n[0] == "X" else (LB(1) + XIN_O, LB(1) + ST2_O)
            o = [f"s_lshl_b32 {u1}, {sTP}, 4", f"s_add_u32 {u1}, {u1}, {sCT}", f"s_lshl_b32 {u0}, {u1}, 11", f"s_add_u32 {u0}, {u0}, {xo}", st(0), st(1024),
                 f"s_lshl_b32 {u0}, {u1}, 8", f"s_add_u32 {u0}, {u0}, {so}", "s_mov_b64 exec, 0xffff", st(0), "s_mov_b64 exec, -1"]
        out.append(I(o))
    if out:
        out[0] = I([f"v_mov_b64 {V(r, 2)}, -1", f"v_mov_b64 {V(r + 2, 2)}, -1"]) + out[0]
    return out


def redo(vc, back, extra=()):
    ls, lr = P.label(), P.label()
    OUTL.extend(I([ls + ":", f"s_cmp_eq_u32 {sRT}, 0", f"s_cbranch_scc1 {lr}", f"s_sub_u32 {sRT}, {sRT}, 1", "s_nop 15"] + list(extra) + ["s_waitcnt vmcnt(0) lgkmcnt(0)", f"s_branch {back}"]))
    return I([f"v_cmp_eq_u32 vcc, -1, {vc}", f"s_cbranch_vccnz {ls}", lr + ":"])


def chain(vc, base, n):
    return [(t + 1, f"v_max3_u32 {vc}, {vc}, v{base + 4 * t}, v{base + 4 * t + 4}" if t else f"v_max_u32 {vc}, v{base}, v{base + 4}") for t in range(0, n, 2)]


def xstore(txt, bit, tag=None, ini=None):
    kw = dict(xdst=[tag]) if tag else {}
    if ini:
        kw["xsrc"] = [ini]
    if not PL & bit:
        return [Ins(txt + " sc1" + (" nt" if opt("NTS", 0) & 1 else ""), **kw)]
    ls, lr = P.label(), P.label()
    OUTL.extend(I([ls + ":", Ins(txt + " sc1", **kw), f"s_branch {lr}"]))
    return I([f"s_cmp_eq_u32 {sMODE}, 0", f"s_cbranch_scc1 {ls}", Ins(txt + (" " + PMOD if PMOD else ""), **kw), lr + ":"])


PNAMES = []
def tick(name):
    if not PROF:
        return []
    if OPT.get("TK") and not re.match(OPT["TK"], name):
        return []
    op = "s_memtime" if opt("CLK", 0) else "s_memrealtime"
    return I([f"{op} s[100:101]", "s_waitcnt lgkmcnt(0)", Ins(f"v_writelane_b32 {vPROF}, s100, 0", comment="T:" + name)])


def prof_dump():
    if not PROF:
        return []
    return I([f"v_writelane_b32 {vPROF}, {sRT}, 63", f"s_lshl_b32 {t0}, s2, 2", f"s_add_u32 {t0}, {t0}, {sW}", f"s_lshl_b32 {t0}, {t0}, 8",
              f"s_add_u32 {t0}, {t0}, {LB(1) + 19 * MB}", f"v_lshlrev_b32 {x0}, 2, {vL}",
              f"buffer_store_dword {vPROF}, {x0}, {sWS}, {t0} offen"])


def stop(L, ph):
    if STOP == f"{L}.{ph}":
        P.add(prof_dump())
        P("s_endpgm")
        return True
    return False


def finish():
    import asmgen
    asmgen.SCHED = bool(opt('SCHED', 1))
    asmgen.MINW = opt('MINW', 2)
    P.put("L_end")
    P("s_endpgm")
    P.add(OUTL)
    if opt("CPF", 0):
        P.put("L_ce")
        P("s_endpgm")
    for i in P.ins:
        if i.comment and i.comment.startswith("T:"):
            if i.comment[2:] not in PNAMES:
                PNAMES.append(i.comment[2:])
            i.text = i.text[:-1] + str(PNAMES.index(i.comment[2:]))
    assert len(PNAMES) <= 63
    body, ins = emit(P)
    hdr = open("interleave_layers__sliding_block__mixer_channel_mlp__prompt.s.ref").read()
    top = hdr.split("; @launch")[0]
    txt = top + "; @launch grid=(256,1,1) block=(256,1,1) lds=163840\n"
    txt += f""".amdgcn_target "amdgcn-amd-amdhsa--gfx950"
.text
.globl {KN}
.p2align 8
.type {KN},@function
{KN}:
{body}
.section .rodata,"a"
.p2align 6
.amdhsa_kernel {KN}
  .amdhsa_next_free_vgpr 512
  .amdhsa_next_free_sgpr 102
  .amdhsa_accum_offset 256
  .amdhsa_group_segment_fixed_size 0
  .amdhsa_kernarg_size 88
  .amdhsa_user_sgpr_count 2
  .amdhsa_user_sgpr_kernarg_segment_ptr 1
  .amdhsa_system_sgpr_workgroup_id_x 1
.end_amdhsa_kernel
"""
    open(sys.argv[1], "w").write(txt)
    print("instructions:", len(ins))
    open(sys.argv[1] + ".names", "w").write(" ".join(PNAMES))
```

```python
from k2_base import *

sW2B = "s3"
sTI = "s1"
X3 = opt("X3", 0)
NK = " nt" if opt("NTS", 0) & 2 else ""

def wq_items(imgs, tag="wq"):
    out = []
    for q in range(4):
        for img in imgs:
            cb = (0, 1024, 0)[img]
            out.append(I([f"s_xor_b32 {d0}, {sRR}, {q}", f"s_mul_i32 {d0}, {d0}, {128 * 3072}", f"s_add_u32 m0, {d2}, {img * 32768 + q * 8192 - cb}", f"s_add_u32 {d0}, {d0}, {d1}",
                          Ins(f"buffer_load_dwordx4 {voQ}, {sWQ}, {d0} offen offset:{cb} lds", xdst=[tag])]))
            out.append(I([f"s_add_u32 {d0}, {d0}, {16 * 3072 - 1024}",
                          Ins(f"buffer_load_dwordx4 {voQ}, {sWQ}, {d0} offen offset:{cb + 1024} lds", xdst=[tag])]))
    return out

KP = opt("KP", 0)
voK = "v119"

def kp_off(v):
    return [f"s_and_b32 {d0}, {sM}, 1", f"s_lshl_b32 {d0}, {d0}, 6", f"v_xor_b32 {v}, {d0}, {v}", f"s_mul_i32 {d0}, {d0}, 15", f"s_add_u32 {d0}, {d0}, 1024", f"v_add_u32 {v}, {d0}, {v}"]

def wkv_items():
    if not KP:
        kv = wq_items([0, 1], "wkv")
        kv[0] = wq_setup(1024) + kv[0]
        return kv
    out = []
    for q in range(4):
        for j in range(4):
            o = [f"s_xor_b32 {d0}, {sRR}, {q}", f"s_mul_i32 {d0}, {d0}, {128 * 3072}", f"s_lshl1_add_u32 m0, {d2}, {q * 16384}", f"s_add_u32 {d0}, {d0}, {d1}"] if j == 0 else [f"s_add_u32 {d0}, {d0}, {8 * 3072 - 1024}"]
            out.append(I(o + [Ins(f"buffer_load_dwordx4 {voQ}, {sWQ}, {d0} offen offset:{1024 * j} lds", xdst=["wkv"])]))
    out[0] = wq_setup() + I([f"v_bfe_u32 {voQ}, {vL}, 2, 3", f"v_lshlrev_b32 {voQ}, 9, {voQ}", f"v_sub_u32 {voQ}, {vo1}, {voQ}"] + kp_off(voQ)) + out[0]
    return out

def wq_setup(cb=0):
    return I([f"s_mul_i32 {d1}, {sW}, {32 * 3072}", f"s_lshl_b32 {d2}, {sM}, 6", f"s_add_u32 {d1}, {d1}, {d2}",
              f"s_lshl_b32 {d2}, {sW}, 11"] + ([f"s_add_u32 {d1}, {d1}, {cb}"] if cb else []))

vX0, vX1, XA = "v112", "v113", 120

def x0_items(h):
    out = []
    for j in range(4):
        it = []
        if j == 0:
            it += [f"s_xor_b32 {d1}, {t5}, {h}", f"s_lshl_b32 {d1}, {d1}, 7", f"s_add_u32 {d1}, {d1}, {t3}", f"s_add_u32 m0, {d3}, {SL + 4096 * (h & 3)}"]
        else:
            it.append(f"s_add_u32 {d1}, {d1}, 7168")
        it.append(Ins(f"buffer_load_dwordx4 {vX1 if j & 1 else vX0}, {sX}, {d1} offen offset:{j * 1024}{ntm(sX)} lds", xdst=[f"x{h}"]))
        out.append(I(it))
    return out

def w0_items(h, imgs=(0, 1), tag=None):
    out = []
    if KP and imgs == (0, 1):
        imgs = ()
        out = [I([f"s_lshl1_add_u32 m0, {d2}, {8192 * h}", Ins(f"buffer_load_dwordx4 {voK}, {sWQ}, {d1} offen lds", xdst=[f"kv{h}"])]),
               I([f"s_add_u32 {d0}, {d1}, {8 * 3072 - 1024}", Ins(f"buffer_load_dwordx4 {voK}, {sWQ}, {d0} offen offset:1024 lds", xdst=[f"kv{h}"])])]
    for img in imgs:
        cb = (1024, 2048, 0)[img]
        out += dma(sWQ, voQ, d1, [cb], d2, img * 32768 + h * 4096, tag or f"kv{h}")
    out[0] = I([f"s_xor_b32 {d1}, {t5}, {h}", f"s_mul_i32 {d1}, {d1}, {64 * 3072}", f"s_add_u32 {d1}, {d1}, {t4}"]) + out[0]
    return out

def w2_piece(kks, mul, imm, tag, vb):
    goffs = []
    for kk in kks:
        s, i = kk // 7, kk % 7
        goffs += [(128 * i + 32 * s + 8 * h) * 1024 for h in range(2)]
    dm = dma(sW2, vo2, sW2B, goffs, d2, imm, tag)
    dm[0] = I(f"s_mul_i32 {d2}, {sW}, {mul}") + dm[0]
    rd = [I([f"s_mul_i32 {u0}, {sW}, {mul}", f"s_add_u32 {u0}, {u0}, {imm}", f"v_add_u32 {vb}, {u0}, {vTP}", need_ins(tag)])]
    for j, kk in enumerate(kks):
        for ct in range(2):
            rd.append(tr("a", (kk * 2 + ct) * 4, vb, 2048 * j + 512 * ct))
    return dm, rd

def w2_round(rnd, vb):
    k = {1: 13, 2: 0, 3: 18, 4: 23}[rnd]
    pieces = {1: [(5, 16384, 0)],
              2: [(8, 16384, 0), (4, 8192, R2), (1, 2048, SPARE)],
              3: [(4, 8192, R2), (1, 2048, SPARE)],
              4: [(4, 8192, SL), (1, 2048, SPARE)]}[rnd]
    dm, rd = [], []
    for n, (cnt, mul, imm) in enumerate(pieces):
        a, b = w2_piece(list(range(k, k + cnt)), mul, imm, f"w2r{rnd}_{n}", vb)
        dm += a; rd += b
        k += cnt
    return dm, rd

def wo_items(rot=False):
    it = dma_rot(sWO, vo2, d1, 16, 8192, 0, d2, 0, "wo", sRR) if rot else dma(sWO, vo2, d1, [j * 8 * 1024 for j in range(16)], d2, 0, "wo")
    it[0] = I([f"s_and_b32 {d1}, {sW}, 1", f"s_lshl_b32 {d1}, {d1}, 18", f"s_lshr_b32 {d2}, {sW}, 1", f"s_xor_b32 {d2}, {d2}, {sRR}", f"s_and_b32 {d2}, {d2}, 1", f"s_lshl_b32 {d2}, {d2}, 17",
               f"s_add_u32 {d1}, {d1}, {d2}", f"s_and_b32 {d2}, {sCT}, 14", f"s_lshl_b32 {d2}, {d2}, 6", f"s_add_u32 {d1}, {d1}, {d2}",
               f"s_lshl_b32 {d2}, {sW}, 14"]) + it[0]
    return it

def wo_reads(va):
    rd = [I([f"s_lshl_b32 {u0}, {sW}, 14", f"v_add_u32 {va}, {u0}, {vTP}", need_ins("wo")])]
    return rd + [tr("v", 128 + (ks * 2 + ct) * 4, va, 2048 * ks + 512 * ct) for ks in (0, 2, 4, 6, 1, 3, 5, 7) for ct in range(2)]

def idle(*regs):
    if not opt("IDL", 1):
        return []
    return [f"s_cmp_ge_u32 {sM}, 14"] + [f"s_cselect_b32 {r}, {OOB}, {r}" for r in regs]

def w1_items(part, rot=False):
    if part == "AB":
        rows, n, g0, sh, imm = 128, 16, 0, 14, 0
        pre = [f"s_xor_b32 {d1}, {sW}, {sRR}"]
    else:
        rows, n, sh, g0 = 64, 8, 13, 128
        imm = R2 if part == "CD1" else SL
        pre = [f"s_lshl_b32 {d1}, {sRR}, 1", f"s_xor_b32 {d1}, {d1}, {sW}"] + ([f"s_xor_b32 {d1}, {d1}, 4"] if part == "CD2" else [])
    if rot:
        it = dma_rot(sW1, vo1, d1, n, 8 * 3584, g0, d2, imm, "w1" + part, u3)
        pre = pre + [f"s_and_b32 {u3}, {sRR}, 1"] + ([f"s_lshl_b32 {u3}, {u3}, 1"] if n == 16 else [])
    else:
        it = dma(sW1, vo1, d1, [g0 + j * 8 * 3584 for j in range(n)], d2, imm, "w1" + part)
    it[0] = I(pre + [f"s_mul_i32 {d1}, {d1}, {rows * 3584}", f"s_lshl_b32 {d2}, {sM}, 8", f"s_add_u32 {d1}, {d1}, {d2}"] + idle(d1) +
              [f"s_lshl_b32 {d2}, {sW}, {sh}"]) + it[0]
    return it


def asel(n):
    return I([f"v_lshrrev_b32 v{n}, 2, {vL}", f"v_xor_b32 v{n}, v{n}, {vL}", f"v_bfe_u32 v{n}, v{n}, 2, 1",
              f"v_add_u32 v{n}, -1, v{n}", f"v_and_b32 v{n}, 0x3f803f80, v{n}",
              f"v_mov_b32 v{n + 1}, v{n}", f"v_mov_b64 {V(n + 2, 2)}, {V(n, 2)}"])


def table_write(c, tab, va, bias=None, tag=None):
    o = [f"v_cvt_pk_bf16_f32 v{c + 2}, v{c}, v{c}",
         f"v_lshlrev_b32 v{c + 1}, 16, v{c + 2}",
         f"v_sub_f32 v{c + 1}, v{c}, v{c + 1}",
         f"v_and_b32 v{c + 3}, 0xffff, v{c + 2}",
         f"v_cvt_pk_bf16_f32 v{c + 2}, v{c}, v{c + 1}"]
    if bias:
        o.append(f"v_lshl_or_b32 v{c + 3}, {bias}, 16, v{c + 3}")
    o.append(Ins(f"ds_write_b64 {va}, {V(c + 2, 2)} offset:{tab * 1024}", **(dict(xdst=[tag]) if tag else {})))
    return [I(x) for x in o]


def table_addr(va):
    return I([f"s_lshr_b32 {u0}, {sW}, 1", f"s_lshl_b32 {u0}, {u0}, 9", f"s_and_b32 {u1}, {sW}, 1", f"s_lshl_b32 {u1}, {u1}, 3",
              f"s_add_u32 {u0}, {u0}, {u1}", f"s_add_u32 {u0}, {u0}, {TAB0}",
              f"v_and_b32 {va}, 0x1f0, {vL16}", f"v_add_u32 {va}, {u0}, {va}"])


def stats_finish(a, b, c, d, ex, mlp, r, ir):
    o = [f"v_mul_f32 {a}, {fc(-1.0 / 512)}, {a}",
         f"v_mul_f32 {c}, {a}, {a}",
         f"v_fma_f32 {b}, {b}, {u3}, -{c}",
         f"v_cvt_pk_bf16_f32 v{ex}, {a}, {a}",
         f"v_max_f32 {b}, 0, {b}",
         f"v_add_f32 {c}, {fc(EPS)}, {b}",
         f"v_rsq_f32 {r}, {c}",
         f"v_lshlrev_b32 {d}, 16, v{ex}",
         f"v_sub_f32 {d}, {a}, {d}"]
    o = [f"s_mov_b32 {u3}, {fc(1.0 / 512)}"] + o
    if mlp:
        o += [f"v_mul_f32 {b}, {b}, {r}", f"v_mul_f32 {b}, {b}, {r}", f"v_add_f32 {b}, {fc(EPS)}, {b}",
              f"v_rsq_f32 {b}, {b}", f"v_mov_b32 v{ex + 2}, v{ex}", f"v_mul_f32 {r}, {b}, {r}", f"v_rcp_f32 {ir}, {r}",
              f"v_cvt_pk_bf16_f32 v{ex + 1}, {d}, {ir}", f"v_and_b32 {a}, 0xffff0000, v{ex + 1}", f"v_sub_f32 {a}, {ir}, {a}",
              f"v_cvt_pk_bf16_f32 v{ex + 3}, {d}, {a}"]
    else:
        o += [f"v_mov_b32 v{ex + 2}, v{ex}", f"v_cvt_pk_bf16_f32 v{ex + 1}, {d}, {d}", f"v_mov_b32 v{ex + 3}, v{ex + 1}"]
    return [I(x) for x in o]


def x_loads(xoff, stoff, stv):
    setup = I([f"s_lshl_b32 {t1}, {sT}, 2", f"s_add_u32 {t1}, {t1}, {sRR}", f"s_lshl_b32 {t1}, {t1}, 13", f"s_add_u32 {t1}, {t1}, {xoff}", f"s_lshl_b32 {t2}, {sT}, 12", f"s_add_u32 {t2}, {t2}, {stoff}", f"v_lshlrev_b32 v{stv + 15}, 2, {vL}"])
    items = []
    for t in range(32):
        if t == opt("XSP", 16):
            for s in range(0, 16, 4):
                items.append(I([f"buffer_load_dword v{stv + s + e}, v{stv + 15}, {sWS}, {t2} offen offset:{(s + e) * 256} sc1" for e in range(4)]))
        o = []
        if t % 4 == 0:
            o.append(f"s_xor_b32 {t0}, {t1}, {t * 1024}")
        o.append(f"buffer_load_dwordx4 {V(XF + 4 * t)}, {vL16}, {sWS}, {t0} offen offset:{(t % 4) * 1024} sc1{ntm('X')}")
        items.append(I(o))
    return setup, items


def attach(groups, items, start=0, per=1):
    items = list(items)
    for n in range(start, len(groups)):
        for _ in range(per):
            if items:
                groups[n] = groups[n] + I(items.pop(0))
    assert not items
    return groups


def stats_sum(stv, vc=None):
    o = []
    for st in (8, 4, 2, 1):
        for i in range(st):
            o.append(f"v_add_f32 v{stv + i}, v{stv + i}, v{stv + i + st}")
    if vc:
        o += [[f"v_cmp_u_f32 vcc, v{stv}, v{stv}", f"v_mov_b32 v{stv + 1}, v{stv}", "s_nop 0", f"v_cndmask_b32_e64 {vc}, {vc}, -1, vcc"], f"v_permlane32_swap_b32 v{stv}, v{stv + 1}"]
    else:
        o += [f"v_mov_b32 v{stv + 1}, v{stv}", "s_nop 0", f"v_permlane32_swap_b32 v{stv}, v{stv + 1}"]
    return [I(x) for x in o]


def prologue():
    P("s_cmp_ge_u32 s2, 256")
    P("s_cbranch_scc1 L_end")
    P.add(tick("s.start"))
    P("s_load_dwordx16 s[64:79], s[0:1], 0")
    P("s_load_dwordx4 s[80:83], s[0:1], 64")
    P("s_load_dwordx2 s[84:85], s[0:1], 80")
    if opt("CPF", 0):
        P("s_getpc_b64 s[86:87]")
        P.put("L_pc")
        P("v_lshrrev_b32 v16, 3, v0")
        P("s_lshr_b32 s88, s2, 3")
        if opt("CPF", 0) == 1:
            P("v_lshl_add_u32 v16, v16, 5, s88")
        else:
            P("s_lshl_b32 s88, s88, 5")
            P("v_add_u32 v16, s88, v16")
        P("v_lshlrev_b32 v16, 7, v16")
        P("v_min_u32 v16, L_ce-L_pc, v16")
        P("global_load_dword a235, v16, s[86:87]")
    P(f"v_lshrrev_b32 {x0}, 6, v0")
    P("v_and_b32 v0, 63, v0")
    P(f"v_readfirstlane_b32 {sW}, {x0}")
    P("s_and_b32 s3, s2, 7")
    P(f"s_lshl_b32 {sC}, s3, 1")
    P("s_bfe_u32 s3, s2, 0x10003")
    P(f"s_or_b32 {sC}, {sC}, s3")
    P(f"s_lshr_b32 {sM}, s2, 4")
    if opt("MX", 0):
        P(f"s_xor_b32 {sM}, {sM}, {opt('MX', 0)}")
    P(f"v_lshlrev_b32 {vL16}, 4, {vL}")
    P(f"s_lshl_b32 {sT}, {sC}, 2")
    P(f"s_add_u32 {sT}, {sT}, {sW}")
    P(f"v_lshrrev_b32 {x0}, 3, {vL}")
    P(f"v_xor_b32 {x2}, {x0}, {vL}")
    P(f"v_and_b32 {x2}, 7, {x2}")
    P(f"v_lshlrev_b32 {x2}, 4, {x2}")
    P(f"v_lshl_add_u32 {vX0}, {x0}, 10, {x2}")
    P(f"v_xor_b32 {vX1}, 16, {vX0}")
    P(f"v_lshrrev_b32 {x1}, 5, {vL}")
    P(f"v_lshrrev_b32 {voQ}, 2, {vL}")
    P(f"v_mul_u32_u24 {voQ}, 3072, {voQ}")
    P(f"v_and_b32 {x0}, 0x30, {vL16}")
    P(f"v_add_u32 {voQ}, {voQ}, {x0}")
    if KP:
        P.add(I([f"v_bfe_u32 {voK}, {vL}, 2, 3", f"v_mul_u32_u24 {voK}, 3072, {voK}", f"v_add_u32 {voK}, {voK}, {x0}", f"v_lshl_add_u32 {voK}, {x1}, 6, {voK}"] + kp_off(voK)))
    P(f"s_lshl_b32 {t5}, s3, 1")
    P(f"s_and_b32 {t0}, {sM}, 1")
    P(f"s_or_b32 {t5}, {t5}, {t0}")
    P(f"s_bfe_u32 {t0}, {sM}, 0x20001")
    P(f"s_xor_b32 {t5}, {t5}, {t0}")
    ROT = opt("ROT", 0)
    if ROT == 0:
        P(f"s_mov_b32 {t5}, 0")
    elif ROT == 1:
        P(f"s_and_b32 {t5}, {t5}, 1")
        P(f"s_lshl_b32 {t5}, {t5}, 1")
    elif ROT == 2:
        P(f"s_lshl_b32 {t5}, {t5}, 1")
    elif ROT == 3:
        P(f"s_and_b32 {t5}, {t5}, 1")
    elif ROT == 4:
        P(f"s_lshr_b32 {t5}, {sM}, 1")
    elif ROT == 5:
        P(f"s_lshr_b32 {t5}, {sM}, 1")
        P(f"s_lshl_b32 {t0}, s3, 2")
        P(f"s_xor_b32 {t5}, {t5}, {t0}")
    elif ROT == 6:
        P(f"s_and_b32 {t5}, {sM}, 7")
    elif ROT == 7:
        P(f"s_lshr_b32 {t5}, {sM}, 2")
        P(f"s_lshl_b32 {t5}, {t5}, 1")
    elif ROT == 8:
        P(f"s_lshl_b32 {t5}, {t5}, 1")
        P(f"s_lshr_b32 {t0}, {sM}, 3")
        P(f"s_or_b32 {t5}, {t5}, {t0}")
    if opt("ROTX", 0):
        P(f"s_and_b32 {t0}, s2, 7")
        P(f"s_xor_b32 {t5}, {t5}, {t0}")
    P(f"s_lshl_b32 {t3}, {sT}, 15")
    P(f"s_mul_i32 {t4}, {sW}, {16 * 3072}")
    P(f"s_lshl_b32 {d2}, {sM}, 6")
    P(f"s_add_u32 {t4}, {t4}, {d2}")
    P(f"s_lshl_b32 {d2}, {sW}, 10")
    P(f"s_lshl_b32 {d3}, {sW}, 14")
    def srd(n, src, size):
        P(f"s_mov_b64 s[{n}:{n + 1}], s[{src}:{src + 1}]")
        P(f"s_mov_b32 s{n + 2}, {size}")
        P(f"s_mov_b32 s{n + 3}, 0x00020000")
    ini = init_l0()
    P.add(I(ini[0]))
    srd(28, 84, 64 * MB)
    srd(8, 64, 2 * MB)
    srd(12, 66, 512 * 1536 * 2)
    IP = [int(c) for c in OPT.get("IP", "11020")]
    assert sum(IP) == 4
    global INI
    INI = ini[1:5]
    H3 = opt("H3", 0)
    h3 = I([f"s_lshr_b32 {sTI}, s2, 3", f"s_cmp_ge_u32 {sM}, 8", f"s_cselect_b32 {u0}, 4, 0", f"s_sub_u32 {sTI}, {sTI}, {u0}", f"s_lshl_b32 {sTI}, {sTI}, 2", f"s_add_u32 {sTI}, {sTI}, {sW}",
            f"s_lshr_b32 {u0}, {sM}, 1", f"s_cmp_eq_u32 {u0}, 3", f"s_cselect_b32 {sTI}, 0x10000, {sTI}"]) if X3 or H3 else []
    if H3:
        h3 += help3("a232", "v23", u0)
    P.add(I(ini[5:] + INI[:IP[0]] + (h3 if H3 == 3 else []) + x0_items(0) + w0_items(0) + (h3 if H3 == 2 else []) + INI[IP[0]:IP[0] + IP[1]] + x0_items(1) + w0_items(1) + INI[IP[0] + IP[1]:sum(IP[:3])]))
    if H3 < 2:
        P.add(h3)
    INI = [INI[sum(IP[:3]):sum(IP[:4])], INI[sum(IP[:4]):]]
    P.add(tick("s.c0"))
    srd(44, 82, 256)
    P(f"s_getreg_b32 {sMODE}, hwreg(HW_REG_XCC_ID, 0, 4)")
    P(f"s_or_b32 {sMODE}, {sMODE}, 0x10")
    P.add(lead_init())
    srd(16, 68, 512 * 512 * 2)
    srd(20, 72, 512 * 1792 * 2)
    srd(24, 76, 1792 * 512 * 2)
    srd(32, 80, 2 * MB)
    srd(36, 78, 1024)
    srd(40, 74, 3584)
    P(f"s_lshr_b32 {u0}, s2, 2")
    P(f"s_xor_b32 {u0}, {u0}, s2")
    P(f"s_bfe_u32 {sRR}, {u0}, 0x20003")
    if not (X3 or H3):
        P(f"s_mov_b32 {sRT}, 1000")
    if not opt("RR", 1):
        P(f"s_mov_b32 {sRR}, 0")
    P(f"v_bfe_u32 {x0}, {vL}, 2, 2")
    P(f"v_lshl_add_u32 {x0}, {x1}, 3, {x0}")
    P(f"v_lshlrev_b32 {x0}, 6, {x0}")
    P(f"v_bfe_u32 {x2}, {vL}, 4, 1")
    P(f"v_lshl_add_u32 {x0}, {x2}, 5, {x0}")
    P(f"v_and_b32 {x2}, 1, {vL}")
    P(f"v_lshl_add_u32 {x0}, {x2}, 4, {x0}")
    P(f"v_bfe_u32 {x2}, {vL}, 1, 1")
    P(f"v_lshl_add_u32 {vTR}, {x2}, 3, {x0}")
    P(f"v_add_u32 {vTR1}, 0x10000, {vTR}")
    P(f"v_lshl_add_u32 {vTP}, {x1}, 9, {vTR}")
    P(f"v_add_u32 {vTP1}, 0x10000, {vTP}")
    P(f"s_and_b32 {t0}, {sM}, 1")
    P(f"s_lshl_b32 {t0}, {t0}, 1")
    P(f"s_lshl_b32 {sTP}, {sC}, 2")
    P(f"s_add_u32 {sTP}, {sTP}, {t0}")
    P(f"s_lshr_b32 {t0}, {sW}, 1")
    P(f"s_add_u32 {sTP}, {sTP}, {t0}")
    P(f"s_and_b32 {u0}, {sM}, 14")
    P(f"s_and_b32 {u1}, {sW}, 1")
    P(f"s_add_u32 {sCT}, {u0}, {u1}")
    P(f"s_mul_i32 {sW2B}, {t0}, {896 * 1024}")
    P(f"s_lshl_b32 {t0}, {u1}, 14")
    P(f"s_add_u32 {sW2B}, {sW2B}, {t0}")
    P(f"s_lshl_b32 {u0}, {u0}, 6")
    P(f"s_add_u32 {sW2B}, {sW2B}, {u0}")
    P(f"v_bfe_u32 {x0}, {vL}, 2, 3")
    P(f"v_and_b32 {x2}, 0x30, {vL16}")
    P(f"v_mul_u32_u24 {vo1}, 3584, {x0}")
    P(f"v_lshl_add_u32 {vo2}, {x0}, 10, {x2}")
    P(f"v_add_u32 {vo1}, {vo1}, {x2}")
    P(f"v_lshl_add_u32 {vo1}, {x1}, 6, {vo1}")
    P(f"v_xor_b32 {x0}, {u1}, {x1}")
    P(f"v_lshl_add_u32 {vo2}, {x0}, 6, {vo2}")
    P(f"v_and_b32 {x0}, 31, {vL}")
    P(f"v_lshlrev_b32 {x2}, 2, {x1}")
    P(f"v_sub_u32 {x0}, {x0}, {x2}")
    for r in range(16):
        P(f"v_cmp_le_i32_e64 {sMASK(r)}, {(r & 3) + 8 * (r >> 2)}, {x0}")
    P(f"v_mov_b32 {x0}, 0xffff")
    P(f"v_mov_b32 {x2}, 0xffff0000")
    for d in range(8):
        P(f"v_cndmask_b32_e64 v16, 0, {x0}, {sMASK(2 * d)}")
        P(f"v_cndmask_b32_e64 v17, 0, {x2}, {sMASK(2 * d + 1)}")
        P(f"v_or_b32 v16, v16, v17")
        P(f"v_accvgpr_write_b32 a{240 + d}, v16")


def init_kv(L, tag):
    it = []
    if L:
        it.append(I(f"s_add_u32 {u2}, {u2}, {LSTRIDE}"))
    for j in range(4):
        it.append(I([f"s_xor_b32 {u2}, {u2}, 4096"] if KP and j == 2 else []) +
                  [Ins(f"buffer_store_dwordx4 a[236:239], {vL16}, {sWS}, {u2} offen offset:{2048 * (j & 1) if KP else 1024 * j} sc1{NK}", xdst=[tag])])
    return it


def init_l0():
    it = [I([f"v_accvgpr_write_b32 a{236 + i}, -1" for i in range(4)] +
            [f"s_lshl_b32 {u2}, {sT}, 4", f"s_add_u32 {u2}, {u2}, {sM}", f"s_lshl_b32 {u2}, {u2}, 12", f"s_add_u32 {u2}, {u2}, {LB(0) + KV_O}"] +
            ([f"s_and_b32 {u0}, {sM}, 1", f"s_lshl_b32 {u0}, {u0}, 10", f"s_add_u32 {u2}, {u2}, {u0}"] if KP else []) +
            ["v_mov_b32 v20, 0", f"s_lshl_b32 {u0}, {sC}, 4", f"s_add_u32 {u0}, {u0}, {sM}", f"s_lshl_b32 {sFP}, {u0}, 7", f"s_add_u32 {sFP}, {sFP}, {MBOX}",
             f"s_lshl_b32 {u0}, {u0}, 2", f"s_add_u32 {sFA}, {u0}, {sW}",
             f"s_lshl_b32 {t1}, {sC}, 9", f"s_lshl_b32 {u0}, {sM}, 2", f"s_add_u32 {t1}, {t1}, {u0}", f"s_add_u32 {t1}, {t1}, {ARR}",
             f"v_lshrrev_b32 v21, 4, {vL}", f"v_and_b32 {vPO}, 15, {vL}", f"v_lshlrev_b32 {vPO}, 2, {vPO}", f"v_lshl_add_u32 v22, v21, 7, {vPO}",
             f"s_or_b32 {t2}, {sM}, {sW}"])]
    it += init_kv(0, "init")
    lsk = P.label()
    it.append(I([f"s_cmp_lg_u32 {t2}, 0", f"s_cbranch_scc1 {lsk}", f"buffer_store_dword v20, v22, {sWS}, {t1} offen sc1", lsk + ":"]))
    it.append([Ins(f"buffer_store_dword v20, off, {sWS}, {sFP} sc1", xdst=["init"])])
    if SP:
        it[opt("SPI", 4)] += I(["v_mov_b64 v[18:19], 0", f"v_lshlrev_b32 v17, 3, {vL}", f"s_lshl_b32 {u1}, {sFA}, 9", f"s_add_u32 {u1}, {u1}, {SFB}",
                                Ins(f"buffer_store_dwordx2 v[18:19], v17, {sWS}, {u1} offen sc1", xdst=["init"])])
    return it


def lead_init():
    lsk = P.label()
    return I([f"s_cmp_lg_u32 {t2}, 0", f"s_cbranch_scc1 {lsk}",
              f"s_min_u32 {u0}, {sC}, 2", f"v_cmp_ge_u32 vcc, {u0}, v21", f"v_cndmask_b32 {vPO}, {vPO}, v22, vcc",
              f"v_lshlrev_b32 v21, 2, {vL}", f"v_lshlrev_b32 v22, 7, {vL}", f"s_lshl_b32 {u0}, {sC}, 8", f"s_add_u32 {u0}, {u0}, {FPACK}", f"s_lshl_b32 {u1}, {sC}, 13",
              f"buffer_store_dword v20, v21, {sWS}, {u0} offen sc1", f"buffer_store_dword v20, v22, {sWS}, {u1} offen sc1", lsk + ":"])


def arrive(vd, so):
    return ["s_mov_b64 exec, 7", f"buffer_store_dword {vd}, {vPX}, {sWS}, {so} offen sc1", "s_mov_b64 exec, -1"]


def misc_l0():
    it = []
    it.append(I([f"v_and_b32 v21, 31, {vL}", f"v_lshrrev_b32 v22, 5, {vL}", "v_lshlrev_b32 v21, 10, v21", "v_lshlrev_b32 v22, 4, v22",
                 "v_add_u32 v21, v21, v22",
                 f"s_lshl_b32 {u0}, {sTP}, 15", f"s_lshl_b32 {u1}, {sCT}, 6", f"s_add_u32 {u0}, {u0}, {u1}"]))
    it.append(I(f"buffer_load_dwordx4 a[224:227], v21, {sX}, {u0} offen"))
    it.append(I(f"buffer_load_dwordx4 a[228:231], v21, {sX}, {u0} offen offset:32"))
    it.append(I(f"buffer_load_dwordx4 a[248:251], v22, {sB2}, {u1} offen"))
    it.append(I(f"buffer_load_dwordx4 a[252:255], v22, {sB2}, {u1} offen offset:32"))
    return it


def touch(srd, total, vt, va, st=u0, sh=7, grp=None):
    share, pb = total // 128, 64 << sh
    it = [I([f"s_lshr_b32 {st}, s2, 3", f"s_lshl_b32 {st}, {st}, 2", f"s_add_u32 {st}, {st}, {sW}", f"s_mul_i32 {st}, {st}, {share}",
             f"v_lshlrev_b32 {va}, {sh}, {vL}"])]
    if X3:
        share = (total + 112 * 128 - 1) // (112 * 128) * 128
        it = [I([f"s_mul_i32 {st}, {sTI}, {share}", f"v_lshlrev_b32 {va}, {sh}, {vL}"])]
    if grp is not None:
        it[0] += I([f"s_bitcmp{grp}_b32 s2, {opt('GB', 3)}", f"s_cselect_b32 {st}, {st}, {OOB}"])
    pos, base = 0, 0
    while pos < share:
        a = min(pos, share - pb)
        assert a >= 0
        o = []
        if a - base >= 4096:
            o.append(f"s_add_u32 {st}, {st}, {a - base}")
            base = a
        o.append(f"buffer_load_dword {vt}, {va}, {srd}, {st} offen offset:{a - base}{ntm(srd)}")
        it.append(I(o))
        pos += pb
    it[1] = it[0] + it[1]
    return it[1:]


def help3(vt, va, st):
    return I([f"s_mul_i32 {st}, {sTI}, 14336", f"v_min_u32 {va}, 13, {vL}", f"v_lshlrev_b32 {va}, 10, {va}",
              f"buffer_load_dword {vt}, {va}, {sWQ}, {st} offen offset:384"])


def touch_ab(vt, va, st, odd=0):
    it = [I([f"s_lshr_b32 {st}, s2, 3", f"s_lshl_b32 {st}, {st}, 2", f"s_add_u32 {st}, {st}, {sW}", f"s_mul_i32 {st}, {st}, 14336",
             f"v_lshrrev_b32 {va}, 2, {vL}", f"v_lshlrev_b32 {va}, 8, {va}", f"buffer_load_dword {vt}, {va}, {sW1}, {st} offen offset:{128 * odd}"])]
    for d in (4096, 4096, 2048):
        it.append(I([f"s_add_u32 {st}, {st}, {d}", f"buffer_load_dword {vt}, {va}, {sW1}, {st} offen offset:{128 * odd}"]))
    return it


def touch_qkv(va, vb):
    return [I([f"s_lshr_b32 {u0}, s2, 3", f"s_lshl_b32 {u0}, {u0}, 2", f"s_add_u32 {u0}, {u0}, {sW}", f"s_mul_i32 {u0}, {u0}, {4 * 3072}",
               f"v_lshrrev_b32 {va}, 4, {vL}", f"v_mul_u32_u24 {va}, 3072, {va}", f"v_and_b32 {vb}, 15, {vL}", f"v_lshl_add_u32 {va}, {vb}, 6, {va}",
               f"v_lshl_add_u32 {vb}, {vb}, 6, {va}",
               f"buffer_load_dword {vb}, {vb}, {sWQ}, {u0} offen offset:1024"] +
              ([f"buffer_load_dword {va}, {va}, {sWQ}, {u0} offen"] if opt("TKV", 0) > 1 else []))]


def touch_wq(vt, st):
    return [I([f"s_lshr_b32 {st}, s2, 3", f"s_mul_i32 {st}, {st}, {16 * 3072}", f"s_lshl_b32 {d0}, {sW}, 8", f"s_add_u32 {st}, {st}, {d0}",
               f"buffer_load_dword {vt}, {voQ}, {sWQ}, {st} offen"]),
            I(f"buffer_load_dword {vt}, {voQ}, {sWQ}, {st} offen offset:128")]


aK, aV, aQ, RING, STV, EX, TABS = 16, 32, 48, 64, 96, 112, 116
HB = XF


def kv_epilogue(L):
    r = x0
    it = []
    PKE = opt("PKE", 0)
    for i in range(16):
        if PKE:
            it.append([] if i & 1 else f"v_pk_mul_f32 {V(aK + i, 2)}, {V(aK + i, 2)}, v[12:13] op_sel:[0,1]")
        else:
            it.append(f"v_mul_f32 v{aK + i}, v{aK + i}, {r}")
    for i in range(8):
        it.append(f"v_cvt_pk_bf16_f32 v{aK + i}, v{aK + 2 * i}, v{aK + 2 * i + 1}")
    it.append([f"s_lshl_b32 {u0}, {sT}, 4", f"s_add_u32 {u0}, {u0}, {sM}", f"s_lshl_b32 {u0}, {u0}, 12", f"s_add_u32 {u0}, {u0}, {LB(L) + KV_O}"])
    it.append(f"buffer_store_dwordx4 {V(aK)}, {vL16}, {sWS}, {u0} offen sc1{NK}")
    it.append(f"buffer_store_dwordx4 {V(aK + 4)}, {vL16}, {sWS}, {u0} offen offset:2048 sc1{NK}")
    for i in range(16):
        if PKE:
            it.append([] if i & 1 else f"v_pk_mul_f32 {V(aV + i, 2)}, {V(aV + i, 2)}, {V(STV + i, 2)}")
        else:
            it.append(f"v_mul_f32 v{aV + i}, v{aV + i}, v{STV + i}")
    for i in range(8):
        it.append(f"v_cvt_pk_bf16_f32 v{aV + i}, v{aV + 2 * i}, v{aV + 2 * i + 1}")
    it.append(f"buffer_store_dwordx4 {V(aV)}, {x2}, {sWS}, {u0} offen offset:1024 sc1{NK}")
    it.append(f"buffer_store_dwordx4 {V(aV + 4)}, {x2}, {sWS}, {u0} offen offset:1536 sc1{NK}")
    it.append([f"s_mul_i32 {u1}, {sW}, {PITCH}", f"s_add_u32 {u1}, {u1}, {SL + 8 * PITCH}"])
    it.append(f"v_add_u32 {x1}, {u1}, {vL16}")
    it.append(f"v_add_u32 {x2}, {u1}, {x2}")
    it.append(f"ds_write_b128 {x1}, {V(aK)}")
    it.append(f"ds_write_b128 {x1}, {V(aK + 4)} offset:2048")
    it.append(f"ds_write_b128 {x2}, {V(aV)} offset:1024")
    it.append(f"ds_write_b128 {x2}, {V(aV + 4)} offset:1536")
    it.append(f"v_mul_f32 {r}, {fc(0.25 * LOG2E)}, {r}")
    return [I(x) for x in it]


def kp_epilogue(L, par):
    it = [[f"s_lshl_b32 {u0}, {sT}, 4", f"s_add_u32 {u0}, {u0}, {sM}", f"s_lshl_b32 {u0}, {u0}, 12", f"s_add_u32 {u0}, {u0}, {LB(L) + KV_O}", f"s_xor_b32 {u1}, {u0}, 4096"]]
    va, offs = (x2, (1024, 1536)) if par else (vL16, (0, 2048))
    for a, so in ((aV, u1), (aK, u0))[::opt("KPO", 1)]:
        for hf in range(2):
            for i in range(8 * hf, 8 * hf + 8, 2):
                it.append(f"v_pk_mul_f32 {V(a + i, 2)}, {V(a + i, 2)}, " + (V(STV + i, 2) if par else "v[12:13] op_sel:[0,1]"))
            for i in range(4 * hf, 4 * hf + 4):
                it.append(f"v_cvt_pk_bf16_f32 v{a + i}, v{a + 2 * i}, v{a + 2 * i + 1}")
            it.append(f"buffer_store_dwordx4 {V(a + 4 * hf)}, {va}, {sWS}, {so} offen offset:{offs[hf]} sc1{NK}")
    it.append([f"s_mul_i32 {u1}, {sW}, {PITCH}", f"s_add_u32 {u1}, {u1}, {SL + 8 * PITCH}"])
    it.append(f"v_add_u32 {x1}, {u1}, {va}")
    it.append(f"ds_write_b128 {x1}, {V(aK)} offset:{offs[0]}")
    it.append(f"ds_write_b128 {x1}, {V(aK + 4)} offset:{offs[1]}")
    it.append(f"v_mul_f32 {x0}, {fc(0.25 * LOG2E)}, {x0}")
    return [I(x) for x in it]


def kmf(a, w, x, c, par):
    return f"{MF} {V(a, 16)}, {V(x if par else w)}, {V(w if par else x)}, {V(a, 16) if c else 0}"


def fork(fn):
    if not KP:
        return P.add(I(fn(None)))
    l1, lj = P.label(), P.label()
    P(f"s_bitcmp1_b32 {sM}, 0")
    P(f"s_cbranch_scc1 {l1}")
    P.add(I(fn(0)))
    if opt("FKI", 0):
        P(f"s_branch {lj}")
        P.put(l1)
        P.add(I(fn(1)))
        return P.put(lj)
    P.put(lj)
    OUTL.extend(I([l1 + ":"]) + [x for x in I(fn(1))] + I(f"s_branch {lj}"))


def r_bcast():
    it = [[f"s_lshl_b32 {u0}, {sW}, 7", f"s_add_u32 {u0}, {u0}, {RBC}"],
          f"v_and_b32 {x1}, 31, {vL}", f"v_lshl_add_u32 {x1}, {x1}, 2, {u0}", f"ds_write_b32 {x1}, {x0}",
          f"v_lshrrev_b32 {x2}, 5, {vL}", f"v_lshl_add_u32 {x1}, {x2}, 4, {u0}"]
    for g in range(4):
        it.append(f"ds_read_b128 {V(STV + 4 * g)}, {x1} offset:{32 * g}")
    it += [f"v_lshlrev_b32 {x2}, 8, {x2}", f"v_and_b32 {x1}, 0xf0, {vL16}", f"v_add_u32 {x2}, {x2}, {x1}",
           f"v_bfe_u32 {x1}, {vL}, 4, 1", f"v_lshl_add_u32 {x2}, {x1}, 11, {x2}"]
    return [I(x) for x in it]


def kv_rd(t):
    if KP:
        return trp(RING + 8 * (t % 4), t * 2048) + trp(RING + 8 * (t % 4) + 4, t * 2048 + 512)
    return tr1(RING + 8 * (t % 4), R0 + t * 1024) + tr1(RING + 8 * (t % 4) + 4, R1 + t * 1024)


def kv_groups(ts, par=None, D=3, lo=0, hi=32):
    g = []
    for k in ts:
        it = []
        t = k + D
        if lo <= t < hi:
            it += kv_rd(t)
        it += I([kmf(aK, RING + 8 * (k % 4), XF + 4 * k, k, par == 1), kmf(aV, RING + 8 * (k % 4) + 4, XF + 4 * k, k, par != 0)])
        g.append(it)
    return g


def kv_pre(t0_, n=3):
    o = []
    for t in range(t0_, t0_ + n):
        o += kv_rd(t)
    return o


def tab_reads(js, va):
    return [I(f"v_add_u32 {va}, {TAB0}, {vL16}")] + [I(f"ds_read_b128 {V(TABS + 4 * j)}, {va} offset:{1024 * j}") for j in js]


def halo_setup(L):
    o = []
    for i, (back, sk, sv) in enumerate(((8, d1, d2), (4, d3, t5))):
        o += [f"s_sub_u32 {u0}, {sT}, {back}", f"s_cselect_b32 {u0}, 0, {u0}", f"s_cselect_b32 {u1}, 0x200, -1", f"s_cselect_b32 {u2}, {OOB}, 0",
              f"s_lshl_b32 {u0}, {u0}, 4", f"s_add_u32 {u0}, {u0}, {sM}", f"s_lshl_b32 {u0}, {u0}, 12", f"s_add_u32 {sk}, {u0}, {LB(L) + KV_O}",
              f"s_add_u32 {sv}, {sk}, {u2}", f"v_and_b32 v{STV + i}, {u1}, {vL16}"]
    if KP:
        o += [f"s_lshl_b32 {u0}, {sT}, 4", f"s_add_u32 {u0}, {u0}, {sM}", f"s_lshl_b32 {u0}, {u0}, 12", f"s_and_b32 {u1}, {sM}, 1", f"s_lshl_b32 {u1}, {u1}, 10",
              f"s_sub_u32 {u0}, {u0}, {u1}", f"s_add_u32 {t4}, {u0}, {LB(L) + KV_O + 1024}"]
    return [I(o)]


PLR = 160


def halo_loads():
    o = [f"buffer_load_dwordx4 {V(PLR + 4 * h)}, {vL16}, {sWS}, {t4} offen offset:{2048 * h} sc1{ntm('KV')}" for h in range(2 if KP else 0)]
    for i, (sk, sv) in enumerate(((d1, d2), (d3, t5))):
        for j in range(4):
            va, so = (f"v{STV + i}", sk) if j % 2 == 0 else (vL16, sv)
            o.append(f"buffer_load_dwordx4 {V(HB + 16 * i + 4 * j)}, {va}, {sWS}, {so} offen offset:{1024 * j} sc1{ntm('KV')}")
    if KP and opt("PLL", 0):
        o = o[2:] + o[:2]
    return [I(x) for x in o]


def lead_try(chk, iss, ta, tb, final=False):
    lsk, lag, lp = P.label(), P.label(), P.label()
    o = [f"s_cmp_lg_u32 {t2}, 0", f"s_cbranch_scc1 {lsk}"]
    if final:
        o += [f"s_mov_b32 {sCNT}, 30000"]
    if chk:
        o += [f"v_accvgpr_read_b32 {ta}, {chk}"] + ([lp + ":"] if final else [])
        o += [f"v_cmp_eq_u32 vcc, 0, {ta}", f"s_cbranch_vccnz {lag}",
              f"v_cmp_ne_u32 vcc, {sMODE}, {ta}", f"v_lshlrev_b32 {tb}, 7, {vL}", f"s_lshl_b32 {u1}, {sC}, 2", f"s_and_b32 {u0}, vcc_lo, 0xffff", f"s_cselect_b32 {t2}, 1, 2",
              f"v_mov_b32 {ta}, {t2}", "s_mov_b64 exec, 0xffff", f"buffer_store_dword {ta}, {tb}, {sWS}, {sFP} offen sc1",
              "s_mov_b64 exec, 1", f"buffer_store_dword {ta}, off, {sDBG}, {u1} sc1", "s_mov_b64 exec, -1"]
        if final:
            OUTL.extend(I([lag + ":", f"v_mov_b32 {ta}, {sMODE}", f"v_lshrrev_b32 {tb}, 7, {vPO}", f"v_sub_u32 {tb}, {sC}, {tb}", f"v_lshlrev_b32 {tb}, 2, {tb}"] + arrive(ta, t1) +
                          [f"buffer_load_dword {ta}, {vPO}, {sWS}, {t1} offen sc1", f"buffer_load_dword {tb}, {tb}, {sDBG}, 0 offen sc1",
                           f"v_or_b32 {ta}, {ta}, {tb}", f"s_sub_u32 {sCNT}, {sCNT}, 1", f"s_cbranch_scc0 {lp}", "s_endpgm"]))
        elif iss:
            o += [f"s_branch {lsk}", lag + ":"]
        else:
            o += [lag + ":"]
    if iss:
        o += [f"buffer_load_dword {iss}, {vPO}, {sWS}, {t1} offen sc1"]
    return I(o + [lsk + ":"])


def handshake_issue():
    return [I([f"s_buffer_load_dword {t3}, {sWS}, {sFP} glc"])]


def handshake_check():
    b, c = f"v{STV + 3}", f"v{STV + 4}"
    ls, lr, lp = P.label(), P.label(), P.label()
    l2 = P.label()
    OUTL.extend(I([ls + ":", f"s_mov_b32 {sCNT}, 30003", f"v_mov_b32 {b}, {sMODE}", lp + ":", f"s_buffer_load_dword {t3}, {sWS}, {sFP} glc",
                   f"s_cmp_lg_u32 {t3}, 0", f"s_cbranch_scc1 {lr}",
                   f"s_and_b32 {u0}, {sCNT}, 3", f"s_or_b32 {u0}, {u0}, {sW}", f"s_cbranch_scc1 {l2}"] + arrive(b, t1) +
                  [l2 + ":", f"s_sub_u32 {sCNT}, {sCNT}, 1", f"s_cbranch_scc0 {lp}", "s_endpgm"]))
    o = [f"s_cmp_eq_u32 {t3}, 0", f"s_cbranch_scc1 {ls}", lr + ":"]
    it = [I(o)]
    o = [f"s_cmp_eq_u32 {t3}, 1"]
    if OPT.get("SLOW"):
        o.append("s_cmp_eq_u32 0, 0")
    o += [f"s_cselect_b32 {sMODE}, 0, 1", f"s_cselect_b32 {u0}, 7, {opt('FSH', 2)}", f"s_cselect_b32 {u1}, 0, {FPACK if opt('FSH', 2) == 2 else 0}",
          f"s_lshl_b32 {sFA}, {sFA}, {u0}", f"s_add_u32 {sFA}, {sFA}, {u1}",
          f"s_lshl_b32 {sFP}, {sC}, 6", f"s_lshl_b32 {sFP}, {sFP}, {u0}", f"s_add_u32 {sFP}, {sFP}, {u1}"]
    it.append(I(o))
    it.append(I([f"s_lshr_b32 {u1}, {sW}, 1", f"s_lshl_b32 {u1}, {u1}, 2", f"s_and_b32 {u2}, {sW}, 1", f"s_lshl_b32 {u3}, {u2}, 1", f"s_add_u32 {u1}, {u1}, {u3}",
                 f"v_and_b32 {b}, 14, {vL}", f"v_and_b32 {c}, 1, {vL}", f"v_lshl_add_u32 {b}, {b}, 2, {c}", f"v_add_u32 {b}, {u1}, {b}",
                 f"v_lshlrev_b32 {vPX}, {u0}, {b}"]))
    if P3N:
        it.append(I([f"s_lshr_b32 {u1}, {sW}, 1", f"s_xor_b32 {u1}, {u1}, {sRR}", f"s_and_b32 {u1}, {u1}, 1", f"s_add_u32 {u1}, {u1}, {u3}", f"s_lshl_b32 {u1}, {u1}, 4",
                     f"s_and_b32 {u2}, {sTP}, 2", f"s_add_u32 {u1}, {u1}, {u2}",
                     f"v_and_b32 {b}, 6, {vL}", f"v_lshl_add_u32 {b}, {b}, 1, {c}", f"v_add_u32 {b}, {u1}, {b}", f"v_lshlrev_b32 {vPO}, {u0}, {b}"]))
    else:
        it.append(I([f"s_lshl_b32 {u2}, {u2}, 5", f"s_and_b32 {u1}, {sTP}, 3", f"s_add_u32 {u1}, {u1}, {u2}",
                     f"v_and_b32 {b}, 7, {vL}", f"v_lshl_add_u32 {b}, {b}, 2, {u1}", f"v_lshlrev_b32 {vPO}, {u0}, {b}"]))
    it.append(I([f"s_lshr_b32 {u1}, {sW}, 1", f"s_mul_i32 {u1}, {u1}, 28", f"s_and_b32 {u2}, {sTP}, 2", f"s_add_u32 {u1}, {u1}, {u2}",
                 f"v_bfe_u32 {b}, {vL}, 1, 3", f"v_min_u32 {b}, 6, {b}", f"v_lshl_add_u32 {b}, {b}, 2, {c}", f"v_add_u32 {b}, {u1}, {b}",
                 f"v_lshlrev_b32 {vPH}, {u0}, {b}"]))
    return it


PRE = opt("PRE", 0)


def att_pre():
    KA, VA, PM, KD = 24, 25, 32, 192
    b = [f"s_mul_i32 {u0}, {sW}, {PITCH}", f"s_add_u32 {u0}, {u0}, {SL}"]
    it = [(1, b + [f"v_add_u32 v{KA}, {u0}, {vL16}", f"v_and_b32 v30, 0xf0, {vL16}", f"v_lshrrev_b32 v31, 5, {vL}", "v_lshl_add_u32 v30, v31, 8, v30",
                   f"v_add_u32 v30, {u0}, v30", f"v_bfe_i32 v31, {vL}, 4, 1"])]
    it.append((1, b + [x for hs in range(4) for x in (f"s_add_u32 {u1}, {u0}, {4096 - (2048 * (hs >> 1) + 1024 + 512 * (hs & 1))}", f"v_bfi_b32 v{VA + hs}, v31, {u1}, v30")]))
    it.append((1, b + [f"v_lshrrev_b32 v30, 2, {vL}", "v_min_u32 v30, 2, v30", "v_lshlrev_b32 v31, 2, v30", f"v_add_u32 v31, {sT}, v31", "v_cmp_le_u32 vcc, 8, v31",
                       f"v_mul_u32_u24 v30, {4 * PITCH}, v30", f"v_and_b32 v31, 3, {vL}", "v_lshl_add_u32 v30, v31, 2, v30", f"v_add_u32 v30, {u0}, v30",
                       "v_mov_b32 v31, 0x3f803f80", "v_cndmask_b32 v31, 0, v31, vcc", "ds_write_b32 v30, v31 offset:4096"]))
    it += [(1, f"v_accvgpr_read_b32 v{PM + d}, a{240 + d}") for d in range(8)]
    return it


def att_pre2():
    KA, VA, KD = 24, 25, 192
    if KP:
        return []
    it = [(opt("PR2", 26), f"ds_read_b128 {V(KD + 4 * h)}, v{KA} offset:{PITCH * 8 + 2048 * h}") for h in range(2)]
    it += [(opt("PR2", 26), f"ds_read_b128 {V(n + 4 * s)}, v{VA + 2 * h + s} offset:{PITCH * 8 + 2048 * h + 1024 + 512 * s}") for h, n in ((0, 112), (1, 200)) for s in range(2)]
    return it


def phase1(L):
    extq = f"{MF} {V(aQ, 16)}, {V(TABS + 8)}, {V(EX)}, {V(aQ, 16)}"
    vtq = "v23" if PRE else "v119"
    def ext(par): return I([kmf(aK, TABS, EX, 1, par == 1), kmf(aV, TABS + 4, EX, 1, par != 0)])
    D = 6
    qg = []
    for k in range(32):
        it = tr1(RING + 4 * ((k + D) % 8), R2 + (k + D) * 1024) if k + D < 32 else []
        qg.append(it + I(f"{MF} {V(aQ, 16)}, {V(RING + 4 * (k % 8))}, {V(XF + 4 * k)}, {V(aQ, 16) if k else 0}"))
    for k in range(3, 32, 4):
        qg[k] += tick(f"{L}.zq{k}")
    qpre = []
    for t in range(D):
        qpre += tr1(RING + 4 * t, R2 + t * 1024)
    HL = opt("HL", 20)
    if L == 0:
        AS, S1, S2, CK, CV, CF = 124, 96, 100, 104, 108, 48
        P.add(asel(AS))
        for i in range(4):
            P(f"v_mov_b32 v{S2 + i}, 0")
        P(f"v_lshrrev_b32 {x0}, 5, {vL}")
        P(f"v_bfe_u32 {x1}, {vL}, 3, 1")
        P(f"v_xor_b32 {x0}, {x0}, {x1}")
        P(f"v_xor_b32 {x0}, {x0}, {vL}")
        P(f"v_and_b32 {x0}, 7, {x0}")
        P(f"v_and_b32 {x1}, 31, {vL}")
        P(f"v_lshlrev_b32 {x1}, 7, {x1}")
        P(f"v_lshl_add_u32 {x0}, {x0}, 4, {x1}")
        P(f"s_add_u32 {t0}, {d3}, {SL}")
        P(f"v_add_u32 v{XA}, {t0}, {x0}")
        for k in range(1, 4):
            P(f"v_xor_b32 v{XA + k}, {32 * k}, v{XA}")
        P(f"v_lshl_add_u32 {x1}, {d2}, 1, {vTP}" if KP else f"v_add_u32 {x1}, {d2}, {vTR}")
        P.add(table_addr(x2))
        P(f"v_mov_b32 v118, {sMODE}")
        P(f"v_mul_u32_u24 {vPX}, 640, {vL}")
        P.add(tick("s.setup"))
        TS = opt("TS", 5)
        tw2 = touch(sW2, 1792 * 1024, "a232", vPH, t0, TS)
        tw2b = touch(sW2, 1792 * 1024, "a232", vtq, t0, TS)
        TW = [int(c, 16) for c in OPT.get("TW", "000000003")]
        I1 = [int(c) for c in OPT.get("I1", "001111000")]
        def mkstrm():
            tw2 = touch(sW2, 1792 * 1024, "a232", vPH, t0, TS)
            i1 = init_kv(1, "init1")
            i1 = [i1[0] + i1[1]] + i1[2:]
            if opt("NOI1", 0):
                i1 = []
            wq = sum((w0_items(h, (2,), "wq") for h in range(8)), [])
            WQ1 = opt("WQ1", 5)
            strm = {h: x0_items(h) + w0_items(h) for h in range(2, 8)}
            strm.update({8: wq[:WQ1], 9: wq[WQ1:], 10: []})
            strm[2] = INI[0] + strm[2]
            strm[3] = INI[1] + strm[3]
            if opt("TQ", 4):
                strm[opt("TQ", 4)] += touch_wq("a232", u0)
            for n in range(2, 11):
                strm[n] = i1[:I1[n - 2]] + strm[n] + tw2[:TW[n - 2]]
                tw2, i1 = tw2[TW[n - 2]:], i1[I1[n - 2]:]
            assert not i1
            return strm, tw2
        assert not (KP and INI[1])
        strm, tw2 = mkstrm()
        SIG = 3 if INI[1] else (2 if INI[0] else opt("SIG", 1))
        LT0 = opt("LT0", SIG + 1)
        def sync(h):
            o = [need_ins(f"x{h}")]
            o += [f"ds_read_b128 {V(XF + 16 * h + 4 * t)}, v{XA + t} offset:{4096 * (h & 3)}" for t in range(4)]
            if h >= LT0:
                o += lead_try(f"a{233 + (h & 1)}" if h >= LT0 + 2 else None, f"a{233 + (h & 1)}", "v114", "v115")
            o += [need_ins(f"kv{h}")] + tr("v", CF + 8 * (h & 1), x1, (8192 if KP else 4096) * h) + tr("v", CF + 8 * (h & 1) + 4, x1, 8192 * h + 512 if KP else R1 + 4096 * h)
            if h >= SIG and (h - SIG) % opt("SIGS", 2) == 0:
                lsk = P.label()
                o += [f"s_cmp_lg_u32 {sW}, {1 + (h >> 1) % 3}", need_ins("init"), "s_barrier", f"s_cbranch_scc1 {lsk}"] + arrive("v118", t1) + [lsk + ":"]
            else:
                o += ["s_barrier"]
            return I(o) + tick(f"s.b{h}")
        def stats(h):
            o = []
            for t in range(4 * h, 4 * h + 4):
                o.append(I([f"v_dot2c_f32_bf16 v{S2 + j}, v{XF + 4 * t + j}, v{XF + 4 * t + j}" for j in range(4)] +
                           [f"{MF16} {V(S1)}, {V(AS)}, {V(XF + 4 * t)}, {V(S1) if t else 0}"]))
            return [I([f"{MF16} {V(CK)}, {V(AS)}, {V(CF + 8 * (h & 1))}, {V(CK) if h else 0}",
                       f"{MF16} {V(CV)}, {V(AS)}, {V(CF + 8 * (h & 1) + 4)}, {V(CV) if h else 0}"]) + o[0], o[1] + o[2], o[3]]
        PFD = opt("PFD", 0)
        for n in range(PFD):
            P.add(I(strm[2 + n]))
        P.add(sync(0))
        P.add(kv_pre(0))
        P.add(I(spread(stats(0), strm[2 + PFD], 0.0 if PFD < 2 else 0.99, 0.7 if PFD < 2 else 1)))
        QX = opt("QX", 0)
        def kv0(par):
            strm = mkstrm()[0]
            g = kv_groups(range(32), par)
            for i in range(8):
                lt = strm.get(i + 3 + PFD, [])
                if i < 7 and PFD == 2:
                    g[4 * i] += sync(i + 1)
                    for e in range(3):
                        g[4 * i + 1 + e] += stats(i + 1)[e]
                    g[4 * i + 3] += I(lt)
                elif i < 7:
                    g[4 * i] += sync(i + 1)
                    n = (len(lt) + 2) // 3
                    for e in range(3):
                        g[4 * i + 1 + e] += I(lt[n * e:n * e + n]) + stats(i + 1)[e]
                else:
                    attach(g, lt, 28, max(1, (len(lt) + 3) // 4))
            fin = [f"v_add_f32 v{S2}, v{S2}, v{S2 + 1}", f"v_add_f32 v{S2 + 2}, v{S2 + 2}, v{S2 + 3}", f"v_add_f32 v{S2}, v{S2}, v{S2 + 2}",
                   f"v_mov_b32 v{S2 + 1}, v{S2}", f"v_permlane32_swap_b32 v{S2}, v{S2 + 1}", f"v_add_f32 v{S2}, v{S2}, v{S2 + 1}"]
            fin = [I(x) for x in fin] + stats_finish(f"v{S1}", f"v{S2}", f"v{S2 + 1}", f"v{S2 + 2}", EX, False, x0, None)
            fill = table_write(CK, 0, x2) + table_write(CV, 1, x2) + [(2, lead_try("a233", None, "v114", "v115"))] + [(2, x) for x in fin[:6]] + [barrier()] + tab_reads([0, 1], x2) + fin[6:] + (r_bcast() if par != 0 else [])
            return I(g[:26]) + weave(g[26:], fill) + tick("s.kv") + [need_ins("init1")] + ext(par) + I(kp_epilogue(0, par) if KP else kv_epilogue(0))
        fork(kv0)
        if QX:
            assert PRE
            P.add(I(handshake_issue()))
        P.add(lead_try("a234", None, "v116", "v117", True))
        P.add(tick("0.kv"))
        CQ = 104
        P(f"v_add_u32 {x1}, {d2}, {vTR1}")
        P.add(table_addr(x2))
        P.need("wq")
        for h in range(8):
            P.add(tr("v", 16 + 4 * h, x1, 4096 * h))
        P("s_barrier")
        P.add(qpre)
        for j in range(8):
            P(f"{MF16} {V(CQ)}, {V(AS)}, {V(16 + 4 * j)}, {V(CQ) if j else 0}")
        tw2 = tw2b[len(tw2b) - len(tw2):]
        if tw2:
            tw2[0] = I(f"v_lshlrev_b32 {vtq}, {TS}, {vL}") + tw2[0]
        hc = [(opt("HSC", 16), x) for x in handshake_check()]
        fill = [(1, x) for x in table_write(CQ, 2, x2)] + [(opt("HSI", 6), x) for x in handshake_issue()] + [(8, barrier())] + tab_reads([2], x2) + ([(12, extq)] if PRE else [])
        if opt("HF", 0):
            fill += halo_setup(0) + hc[:1] + [(HL, x) for x in halo_loads()] + hc[1:] + misc_l0()
        else:
            fill += hc + halo_setup(0) + [(HL, x) for x in halo_loads()] + misc_l0()
        if PRE:
            ap = [x for _, x in att_pre()]
            for n, x in zip((2, 3, 5, 7, 7, 7, 7, 9, 9, 9, 9), ap):
                qg[n] += I(x)
        if opt("T0", 0) == 1:
            fill += touch(sWO, 512 * 1024, "a232", "v119", t0, min(TS, 6)) + touch(sW1, 1792 * 1024, "a232", "v119", t0, opt("TS1", 5))
        elif opt("T0", 0) == 2:
            fill += tw2[:opt("TW2N", 0)] + touch(sW1, 1792 * 1024, "a232", "v119", t0, opt("TS1", 5))
        elif opt("QT", 0):
            fill += tw2 + touch(sWO, 512 * 1024, "a232", vtq, t0, min(TS, 6))
        if PRE:
            for n, x in att_pre2():
                qg[n] += I(x)
        P.add(tick("0.qs"))
        if QX:
            def place(n, items, per=1):
                for j, x in enumerate(items):
                    qg[min(31, n + int(j / per))] += I(x)
            place(1, table_write(CQ, 2, x2), 6)
            place(4, halo_setup(0))
            hc = [x for _, x in hc]
            place(8, [barrier() + hc[0] + I(tab_reads([2], x2))])
            place(10, hc[1:])
            place(14, [extq])
            ms = misc_l0()
            tt = tw2 + touch(sWO, 512 * 1024, "a232", vtq, t0, min(TS, 6))
            place(HL, halo_loads()[:8], opt("HLP", 4))
            place(opt("HL3", 12), halo_loads()[8:], 2)
            assert not 10 <= opt("MSP", 24) <= 13
            place(opt("MSP", 24), [I(ms)])
            place(opt("TTP", 26), tt, opt("TTR", 10) / 10)
            P.add(I(qg))
        else:
            P.add(weave(qg, fill))
    else:
        WQL = opt("WQL", 0)
        wql = []
        if not opt("WQE", 0) and not opt("WQ3", 0):
            P.add(wq_setup())
            if KP:
                P.add(I([f"v_lshrrev_b32 {voQ}, 2, {vL}", f"v_mul_u32_u24 {voQ}, 3072, {voQ}", f"v_and_or_b32 {voQ}, {vL16}, 48, {voQ}"]))
            wql = wq_items([2])
            P.add(I(wql[:8 - WQL]))
            wql = wql[8 - WQL:]
        P.add(I(tab_reads([0, 1, 2], x2)))
        back, vc = P.label(), (f"v{aQ}" if EF & 8 else None)
        P.put(back)
        P.add(kv_pre(0))
        xs, xi = x_loads(LB(1) + XIN_O, LB(1) + ST2_O, STV)
        NB = opt("NB", 14)
        P.add(xs)
        P.add(poll(vPX, x1, 8))
        P.add(tick("1.pollx"))
        P.add(I(xi[:NB]))
        P.add(tick("1.xiss"))
        s = [f"v{STV + i}" for i in range(4)]
        ke = [] if KP else kv_epilogue(1)
        KE = opt("KE", 0)
        def kv1(par):
            fill = stats_sum(STV, vc) + stats_finish(s[0], s[1], s[2], s[3], EX, False, x0, None) + (r_bcast() if par != 0 else [])
            xi = x_loads(LB(1) + XIN_O, LB(1) + ST2_O, STV)[1]
            if opt("TWO", 0):
                xi += touch(sWO, 512 * 1024, f"v{aQ}", f"v{aQ + 1}", d0, opt("TWO", 0))
            g = attach(kv_groups(range(32), par), xi[NB:] + inits("k", aQ + 4) + (wq_items([2])[8 - WQL:] if wql else []))
            if vc:
                for n, x in chain(vc, XF, 32):
                    g[n] += I(x)
            return weave(g, [(opt("XSP", 16) + 2, x) for x in fill]) + (redo(vc, back) if vc else []) + ext(par) + tick("1.kv") + I(kp_epilogue(1, par) if KP else ke[:KE])
        fork(kv1)
        P.add(tick("1.ke"))
        P.add(barrier("wq"))
        P.add(tick("1.B1"))
        P.add(qpre)
        fill = [(1, x) for x in ke[KE:]] + halo_setup(1) + [(opt("HL1", HL), x) for x in halo_loads()[:8]]
        if PRE:
            qg[0] += I(extq)
            fill += att_pre() + att_pre2()
        fill += [(opt("HL2", 22), x) for x in halo_loads()[8:]]
        P.add(weave(qg, fill))
    P.add(tick(f"{L}.zqe"))
    if not PRE:
        P(extq)
```

```python
from k2_base import *
from k2_p1 import *

QF, KA, VA, LC, TMP, PM, KR, SB, DG, KD, OA0 = 16, 24, 25, 29, 31, 32, 40, 64, 160, 192, 224
VS = [112, 120, 200, 208, 216]


def q(h): return V(QF + 4 * h)
def kread(n, j, h): return f"ds_read_b128 {V(n)}, v{KA} offset:{PITCH * j + 2048 * h}"
def vread(n, j, h): return [f"ds_read_b128 {V(n + 4 * s)}, v{VA + 2 * h + s} offset:{PITCH * j + 2048 * h + 1024 + 512 * s}" for s in range(2)]
def merge(s, d): return [f"v_cndmask_b32_e64 v{s + r}, v{s + r}, v{d + r}, {sMASK(r)}" for r in range(16)]
def exps(s): return [f"v_exp_f32 v{s + i}, v{s + i}" for i in range(16)]
def cvts(s): return [f"v_cvt_pk_bf16_f32 v{s + i}, v{s + 2 * i}, v{s + 2 * i + 1}" for i in range(8)]
def split(s): return [x for i in range(8) for x in (f"v_and_b32 v{s + 8 + i}, v{s + i}, v{PM + i}", f"v_xor_b32 v{s + i}, v{s + i}, v{s + 8 + i}")]


def epi(L, h, o):
    e = [f"v_mul_f32 v{o + i}, v{o + i}, v{TMP}" for i in range(8)]
    e += [f"v_cvt_pk_bf16_f32 v{o + 8 + i}, v{o + 2 * i}, v{o + 2 * i + 1}" for i in range(4)]
    e += [xstore(f"buffer_store_dwordx4 {V(o + 8)}, {vL16}, {sWS}, {t0} offen offset:{1024 * h}", 1 << (4 * L), f"o{h}", ini=f"iO{L}")]
    return e


def att_safe(L):
    K, SA_, SB_, NM, VV, O, m = 40, 96, 112, 192, 208, 224, f"v{LC}"
    o = []
    for h in range(2):
        o += [kread(K + 4 * j, j, h) for j in range(9)]
        for ps in range(2):
            c = V(NM, 16) if ps else 0
            for j in range(8):
                s = SB_ if j % 2 == 0 else SA_
                if j == 0:
                    o.append(f"{MF} {V(SA_, 16)}, {V(K + 32)}, {q(h)}, {c}")
                o.append(f"{MF} {V(s, 16)}, {V(K + 4 * j)}, {q(h)}, {c}")
                if j == 0:
                    o += merge(s, SA_)
                if ps == 0:
                    if j == 0:
                        o.append(f"v_mov_b32 {m}, v{s}")
                    o += [f"v_max3_f32 {m}, {m}, v{s + 2 * i}, v{s + 2 * i + 1}" for i in range(8)]
                    continue
                o += vread(VV, j, h) + exps(s) + cvts(s)
                if j == 0:
                    o += vread(VV + 8, 8, h) + split(s)
                    o += [f"{MF} {V(O, 16)}, {V(VV + 8)}, {V(s + 8)}, 0", f"{MF} {V(O, 16)}, {V(VV + 12)}, {V(s + 12)}, {V(O, 16)}"]
                o += [f"{MF} {V(O, 16)}, {V(VV)}, {V(s)}, {V(O, 16)}", f"{MF} {V(O, 16)}, {V(VV + 4)}, {V(s + 4)}, {V(O, 16)}", "s_nop 15"]
            if ps == 0:
                o += [f"v_mov_b32 v{TMP}, {m}", f"v_permlane32_swap_b32 {m}, v{TMP}", f"v_max_f32 {m}, {m}, v{TMP}"]
                o += [f"v_sub_f32 v{NM + i}, 0, {m}" for i in range(16)]
        o += [f"v_rcp_f32 v{TMP}, v{O + 8}"] + epi(L, h, O)
    return I(o + ["s_waitcnt vmcnt(0)", "v_mov_b32 v56, 0"])


def phase2(L):
    if not PRE:
        P(f"s_mul_i32 {t0}, {sW}, {PITCH}")
        P(f"s_add_u32 {t0}, {t0}, {SL}")
        P(f"v_add_u32 v{KA}, {t0}, {vL16}")
        P(f"v_and_b32 {x1}, 0xf0, {vL16}")
        P(f"v_lshrrev_b32 {x2}, 5, {vL}")
        P(f"v_lshl_add_u32 {x1}, {x2}, 8, {x1}")
        P(f"v_add_u32 {x1}, {t0}, {x1}")
        P(f"s_mov_b32 vcc_lo, 0xffff0000")
        P(f"s_mov_b32 vcc_hi, 0xffff0000")
        P(kread(KD, 8, 0))
        P(kread(KD + 4, 8, 1))
        for hs in range(4):
            P(f"s_add_u32 {t1}, {t0}, {4096 - (2048 * (hs >> 1) + 1024 + 512 * (hs & 1))}")
            P(f"v_mov_b32 {x2}, {t1}")
            P(f"v_cndmask_b32 v{VA + hs}, {x1}, {x2}, vcc")
        P(f"v_lshrrev_b32 {x1}, 2, {vL}")
        P(f"v_min_u32 {x1}, 2, {x1}")
        P(f"v_lshlrev_b32 {x2}, 2, {x1}")
        P(f"v_add_u32 {x2}, {sT}, {x2}")
        P(f"v_cmp_le_u32 vcc, 8, {x2}")
        P(f"v_mul_u32_u24 {x1}, {4 * PITCH}, {x1}")
        P(f"v_and_b32 {x2}, 3, {vL}")
        P(f"v_lshl_add_u32 {x1}, {x2}, 2, {x1}")
        P(f"v_add_u32 {x1}, {t0}, {x1}")
        P(f"v_mov_b32 {x2}, 0x3f803f80")
        P(f"v_cndmask_b32 {x2}, 0, {x2}, vcc")
        P(f"ds_write_b32 {x1}, {x2} offset:4096")
    tiles = [(8, 0), (0, 0), (8, 1), (0, 1), (4, 0), (4, 1)] + [(j, h) for h in range(2) for j in (1, 2, 3, 5, 6, 7)]
    def vs(t): return VS[t % 5]
    def vl(t): return vread(vs(t), *tiles[t])
    def hd(u): return tiles[u + 2][1] if u >= 2 else u
    def sb(u): return SB + 16 * (u % 3)
    def oa(h): return OA0 + 16 * h
    def qk(u): return f"{MF} {V(sb(u), 16)}, {V(HB + 8 * u if u < 4 else KR + 4 * (u % 4))}, {q(hd(u))}, 0"
    if not PRE:
        P.add(I(vl(0) + vl(2)))
    for h in range(2):
        for i in range(8 * h, 8 * h + 8):
            if not opt("PKE", 0):
                P(f"v_mul_f32 v{aQ + i}, v{aQ + i}, {x0}")
            elif i % 2 == 0:
                P(f"v_pk_mul_f32 {V(aQ + i, 2)}, {V(aQ + i, 2)}, v[12:13] op_sel:[0,1]")
        for i in range(4 * h, 4 * h + 4):
            P(f"v_cvt_pk_bf16_f32 v{QF + i}, v{aQ + 2 * i}, v{aQ + 2 * i + 1}")
        for d in range(4 * h, 4 * h + 4):
            if not PRE:
                P(f"v_accvgpr_read_b32 v{PM + d}, a{240 + d}")
        if not KP:
            P(f"{MF} {V(DG + 16 * h, 16)}, {V(KD + 4 * h)}, {q(h)}, 0")
    if KP:
        assert PRE
        P.add(I([f"s_and_b32 {t0}, {t4}, 1024", f"v_add_u32 {x2}, {t0}, v{KA}"]))
    P.add(I([f"s_lshl_b32 {t0}, {sT}, 4", f"s_add_u32 {t0}, {t0}, {sM}", f"s_lshl_b32 {t0}, {t0}, 11", f"s_add_u32 {t0}, {t0}, {LX(L) + O_O}"]))
    P.add(tick(f"{L}.p1end"))
    lp, lr, ls = P.label(), P.label(), P.label()
    P(f"s_mov_b32 {sCNT}, 20000")
    P.put(lp)
    PLL = opt("PLL", 0)
    def plp():
        for h in range(2):
            P(f"ds_write_b128 {x2}, {V(PLR + 4 * h)} offset:{8 * PITCH + 2048 * h}")
        P.add(I([kread(KD, 8, 0), kread(KD + 4, 8, 1)] + vl(0) + vl(2)))
        P(f"v_max3_u32 {x1}, {x1}, v{PLR}, v{PLR + 1}" if PLL else f"v_max_u32 {x1}, v{PLR}, v{PLR + 1}")
        for n in range(2, 8, 2):
            P(f"v_max3_u32 {x1}, {x1}, v{PLR + n}, v{PLR + n + 1}")
    def dgp():
        for h in range(2):
            P(f"{MF} {V(DG + 16 * h, 16)}, {V(KD + 4 * h)}, {q(h)}, 0")
    if KP and not PLL:
        plp()
    for i in range(2):
        for j in range(4):
            b = HB + 16 * i + 4 * j
            if KP and 4 * i + j == opt("DGP", 0) and not PLL:
                dgp()
            if i == 0 and j % 2 == 0:
                P(qk(j >> 1))
            P(f"ds_write_b128 v{KA}, {V(b)} offset:{4 * PITCH * i + 1024 * j}")
            if i == 0 and j == 3:
                P.add(I(vl(1) + vl(3)))
            if i == 0 and j == 0 and (PLL or not KP):
                P(f"v_max3_u32 {x1}, v{b}, v{b + 1}, v{b + 2}")
                P(f"v_max_u32 {x1}, {x1}, v{b + 3}")
            else:
                P(f"v_max3_u32 {x1}, {x1}, v{b}, v{b + 1}")
                P(f"v_max3_u32 {x1}, {x1}, v{b + 2}, v{b + 3}")
    if KP and PLL:
        plp()
        dgp()
    P(f"v_cmp_eq_u32 vcc, -1, {x1}")
    P(f"s_cbranch_vccnz {ls}")
    P.put(lr)
    OUTL.extend(I([ls + ":", f"s_sub_u32 {sCNT}, {sCNT}, 1", f"s_cbranch_scc1 {lr}"] + halo_loads() +
                  [f"buffer_load_dword a232, off, {sWS}, {u0}" if n else f"s_mov_b32 {u0}, {OOB}" for n in range(opt("HD", 0) + 1 if L == 0 else 0)] + [f"s_branch {lp}"]))
    P.add(tick(f"{L}.halo"))

    def mix(a, b):
        out, b = [], list(b)
        for x in a:
            out.append(x)
            if b:
                y = b.pop(0)
                if y is not None:
                    out.append(y)
        return out + [y for y in b if y is not None]
    BU, DR = opt("BU", 1), opt("DR", 0)
    head, main, pend = [], [], []
    for u in range(16):
        h, s = hd(u), sb(u)
        o = V(oa(h), 16)
        if u < 2:
            valu = merge(s, DG + 16 * u) + exps(s) + cvts(s) + split(s)
            pv = [f"{MF} {o}, {V(vs(2 * u))}, {V(s + 8)}, 0", f"{MF} {o}, {V(vs(2 * u) + 4)}, {V(s + 12)}, {o}",
                  f"{MF} {o}, {V(vs(2 * u + 1))}, {V(s)}, {o}", f"{MF} {o}, {V(vs(2 * u + 1) + 4)}, {V(s + 4)}, {o}"]
        else:
            valu = exps(s) + cvts(s)
            pv = [f"{MF} {o}, {V(vs(u + 2))}, {V(s)}, {o}", f"{MF} {o}, {V(vs(u + 2) + 4)}, {V(s + 4)}, {o}"]
        if u == 11:
            valu = valu[:12] + mix(valu[12:], [f"v_rcp_f32 v{TMP}, v{oa(0) + 8}", f"v_add_u32 v{LC}, 0xe0800000, v{oa(0) + 8}"] + epi(L, 0, oa(0)))
        if u == 15:
            valu = valu[:8] + valu[16:20] + valu[8:10] + [pv.pop(0)] + valu[10:16] + valu[20:]
        mf = list(pend) + ([qk(u + 2)] if u + 2 < 16 else [])
        rd = (vl(u + 3) if 1 <= u <= 14 else []) + ([kread(KR + 4 * ((u + 3) % 4), *tiles[u + 5])] if 1 <= u <= 12 else [])
        rd = [None] * (len(mf) - len(rd)) + rd
        out, acc = [], 32
        for x in valu:
            if acc >= 28 and mf:
                r = rd.pop(0)
                out.append(I([mf.pop(0)] + ([r] if r else []))); acc = 4 if r else 0
            out.append(I(x)); acc += cost(I(x))
        assert not mf and not rd
        pend = pv
        if u < BU:
            head += out
        else:
            main += out
    main += pend
    if P3N and L:
        head = spread(head, wo_items(DR & 1)[:opt("WOH", 0)], 0.0, 0.9)
    P.add(I(head))
    P.add(barrier())
    P.add(tick(f"{L}.B2"))
    if L == 0:
        d2_, r2_ = w2_round(2, x0)
        d3_, r3_ = w2_round(3, x0)
        d1_, r1_ = w2_round(1, x0)
        A0 = [int(x) / 100 for x in OPT.get("A0", "0,25,35,62,72,92").split(",")]
        tw1 = touch(sW1, 1792 * 1024, "a232", x1, u2, opt("TS1", 7))
        T0 = opt("T0", 0)
        if T0 == 6:
            tw1 = touch(sW1, 1792 * 1024, "a232", x1, u2, opt("TS1", 7), 0)
            twe = touch(sW1, 1792 * 1024, "a232", x1, u2, opt("TS1", 7), 1)
        a = spread(main, d2_ + (tw1 if T0 == 3 else []), A0[0], A0[1])
        a = spread(a, r2_ + [[need_ins("ds_any")]] + d1_ + d3_ + (tw1 if T0 == 4 else []), A0[2], A0[3])
        a = spread(a, r1_ + [[need_ins("ds_any")]] + wo_items() + (tw1 if T0 == 0 or (T0 == 6 and not opt("TB0", 0)) else []), A0[4], A0[5])
        if T0 == 6:
            a = spread(a, twe, opt("TA0", 22) / 100, opt("TA1", 24) / 100)
            if opt("TB0", 0):
                a = spread(a, tw1, opt("TB0", 0) / 100, opt("TB1", opt("TB0", 0) + 2) / 100)
        if T0 == 5:
            a = spread(a, tw1, opt("TA0", 5) / 100, opt("TA1", 80) / 100)
        a = spread(a, inits("A", 56), opt("IA0", 5) / 100, opt("IA1", 70) / 100)
        a = spread(a, sp_setup(), 0.3, 0.34)
        a = spread(a, sp_touch(1, "a232", x1) + ctouch(1, "a232", x1, "L_p3_0", "L_p1_1"), opt("SPA", 10) / 100, opt("SPB", 20) / 100)
        late_rd = r3_
    elif P3N and opt("ABT", 1):
        A1 = [int(x) / 100 for x in OPT.get("A1", "0,60,10,60").split(",")]
        a = spread(main, wo_items(DR & 1)[opt("WOH", 0):] + w1_items("CD1", DR & 4), A1[0], A1[1])
        if opt("ABT", 1) == 1:
            a = spread(a, touch_ab("v60", "v61", u2), A1[2], A1[3])
        late_rd = []
    elif P3N:
        A1 = [int(x) / 100 for x in OPT.get("A1", "0,12,30,66").split(",")]
        C1 = opt("C1P", 0)
        a = spread(main, wo_items(DR & 1)[opt("WOH", 0):] + (w1_items("CD1", DR & 4) if C1 == 0 else []), A1[0], A1[1])
        wr = wo_reads(x0)
        wr = [wr[0] + wr[1] + wr[2]] + [wr[i] + wr[i + 1] for i in range(3, 17, 2)]
        a = spread(a, wr + [[need_ins(("v", 191))]] + w1_items("AB", DR & 2) + (w1_items("CD1", DR & 4) if C1 == 1 else []), A1[2], A1[3])
        late_rd = []
    else:
        a = spread(main, (touch(sW1, 1792 * 1024, "v60", x1, u2, opt("TW1", 0)) if opt("TW1", 0) else []) + wo_items() + w1_items("CD1"), 0.0, 0.6)
        a = spread(a, inits("a", 56), opt("Ia0", 5) / 100, opt("Ia1", 60) / 100)
        a = spread(a, sp_touch(1, "v60", "v60") + ctouch(4, "v61", "v61", "L_p3_1", "L_ce"), opt("SPA", 10) / 100, opt("SPB", 20) / 100)
        late_rd = []
    if P3N:
        lsk = P.label()
        pf = opt(f"PF_{L}", opt("PF", 90)) / 100
        a = spread(a, [I([f"v_cmp_le_u32 vcc, {0 if opt('FB', 0) else '0x40000000'}, v{LC}", f"s_cbranch_vccnz {lsk}"]) + tick(f"{L}.zpf") + publish(16 * L + 1, "v57", "o0") + tick(f"{L}.zPF") + I(lsk + ":")], pf, pf)
        pf = opt(f"PG_{L}", opt("PG", 98)) / 100
        a = spread(a, [poll_issue(vPO, "v56")], pf, pf)
    P.add(I(a))
    lf, lj = P.label(), P.label()
    P(f"v_rcp_f32 v{TMP}, v{oa(1) + 8}")
    P(f"v_add_u32 {x1}, 0xe0800000, v{oa(1) + 8}")
    P(f"v_max_u32 {x1}, {x1}, v{LC}")
    P(f"v_cmp_le_u32 vcc, {0 if opt('FB', 0) else '0x40000000'}, {x1}")
    e = epi(L, 1, oa(1))
    P.add(I(e[:4]))
    P(f"s_cbranch_vccnz {lf}")
    P.add(I(e[4:]))
    P.put(lj)
    OUTL.extend(I([lf + ":"]) + att_safe(L) + I(f"s_branch {lj}"))
    P.add(tick(f"{L}.att"))
    if P3N:
        return late_rd
    P.add(publish(16 * L + 1, x1, early=f"iO{L}" if EF & 1 else None))
    P.add(tick(f"{L}.p2end"))
    return late_rd
```

```python
from k2_base import *
from k2_p1 import *

B1V, CC, CD_, AS4 = 48, 52, 56, 60
OM = OPT.get("OM", "").replace("_", " ")


def tile_out(x, pk, tmp, bit, pub, ini):
    XE = opt("XE", 1)
    if XE == 0:
        P.add(pub)
    for i in range(8):
        P(f"v_cvt_pk_bf16_f32 v{pk + i}, v{x + 2 * i}, v{x + 2 * i + 1}")
    P.add(xstore(f"buffer_store_dwordx4 {V(pk)}, {vL16}, {sWS}, {t1} offen", bit, ini=ini))
    P.add(xstore(f"buffer_store_dwordx4 {V(pk + 4)}, {vL16}, {sWS}, {t1} offen offset:1024", bit))
    if XE == 1:
        P.add(pub)
    a, b = V(tmp, 2), V(tmp + 2, 2)
    P(f"v_pk_add_f32 {a}, {V(x, 2)}, {V(x + 2, 2)}")
    P(f"v_pk_mul_f32 {b}, {V(x, 2)}, {V(x, 2)}")
    for i in range(1, 8):
        if i >= 2:
            P(f"v_pk_add_f32 {a}, {a}, {V(x + 2 * i, 2)}")
        P(f"v_pk_fma_f32 {b}, {V(x + 2 * i, 2)}, {V(x + 2 * i, 2)}, {b}")
    P(f"v_add_f32 v{tmp}, v{tmp}, v{tmp + 1}")
    P(f"v_add_f32 v{tmp + 2}, v{tmp + 2}, v{tmp + 3}")
    P(f"v_permlane32_swap_b32 v{tmp}, v{tmp + 2}")
    P(f"v_add_f32 v{tmp}, v{tmp}, v{tmp + 2}")
    P.add(xstore(f"buffer_store_dword v{tmp}, {x2}, {sWS}, {t2} offen", bit))
    if XE == 2:
        P.add(pub)


def tile_addr(xo, so):
    return I([f"s_lshl_b32 {t2}, {sTP}, 4", f"s_add_u32 {t2}, {t2}, {sCT}", f"s_lshl_b32 {t1}, {t2}, 11", f"s_add_u32 {t1}, {t1}, {xo}",
              f"s_lshl_b32 {t2}, {t2}, 8", f"s_add_u32 {t2}, {t2}, {so}", f"v_lshlrev_b32 {x2}, 2, {vL}"])


def b1_loads():
    return I([f"v_and_b32 {x1}, 0x13, {vL}", f"v_bfe_u32 {x2}, {vL}, 2, 1", f"v_lshl_add_u32 {x1}, {x2}, 3, {x1}", f"v_bfe_u32 {x2}, {vL}, 3, 1",
              f"v_lshl_add_u32 {x1}, {x2}, 2, {x1}", f"v_lshlrev_b32 {x1}, 1, {x1}", f"s_lshl_b32 {t1}, {sM}, 8", f"s_cmp_ge_u32 {sW}, 2", f"s_cselect_b32 {t1}, {OOB}, {t1}"] +
             [f"buffer_load_ushort v{B1V + e}, {x1}, {sB1}, {t1} offen offset:{64 * e}" for e in range(4)])


def phase3n(L, late_rd):
    o = lambda n, d: opt(f"{n}_{L}", opt(n, d))
    a0, OF, WO = 16, 64, 128
    AB = [a0, 192, 208, 224]
    wa = [f"v{32 + i}" for i in range(5)]
    v4k = "v37"
    P.add(I([f"s_lshr_b32 {t3}, {sW}, 1", f"s_xor_b32 {t3}, {t3}, {sRR}", f"s_and_b32 {t3}, {t3}, 1", f"s_and_b32 {t4}, {sW}, 1", f"s_lshl_b32 {t4}, {t4}, 1",
             f"s_add_u32 {t3}, {t3}, {t4}", f"s_lshl_b32 {t4}, {sTP}, 2", f"s_add_u32 {t3}, {t3}, {t4}", f"s_lshl_b32 {t3}, {t3}, 13",
             f"s_add_u32 {t3}, {t3}, {LB(L) + O_O}", f"s_xor_b32 {t4}, {t3}, 0x8000", f"v_add_u32 {v4k}, 0x1000, {vL16}"]))
    if L == 0:
        P.add(I(late_rd))
        P.add(I(wo_reads(x0)))
        P.add(b1_loads())
        P.add(I([x for d in range(8) for x in (f"v_accvgpr_read_b32 {x2}, a{224 + d}", f"v_lshlrev_b32 v{a0 + 2 * d}, 16, {x2}", f"v_and_b32 v{a0 + 2 * d + 1}, 0xffff0000, {x2}")]))
    else:
        if opt("ABT", 1):
            P.add(I(wo_reads(x0)))
        P.add(I([f"v_accvgpr_read_b32 v{a0 + i}, a{224 + i}" for i in range(16)]))
    for i in range(5):
        n = i & 3 if i < 4 else 0
        hi = i == 3 or i == 4
        P.add(I([f"s_xor_b32 {u0}, {sW}, {n}", f"s_lshl_b32 {u0}, {u0}, {12 if hi else 13}", f"s_add_u32 {u0}, {u0}, {SCR3 if hi else SL + 4096 * max(0, n - 1)}",
                 f"v_add_u32 {wa[i]}, {u0}, {vL16}"]))
    P.add(tile_addr(LB(L) + X1_O, LB(L) + ST1_O))
    fill = (w1_items("AB") + w1_items("CD1")) if L == 0 else (w1_items("CD1", opt("DR", 0) & 4) if opt("C1P", 0) == 2 else [])
    if L and opt("ABT", 1):
        fill = w1_items("AB")
    if L == 0 or opt("ABT", 1):
        fill[0] = [need_ins("ds_any")] + fill[0]
    FE, FM = o("FE", 0), o("FM", 0)
    P.add(I(fill[:FE]))
    P.add(publish(16 * L + 2, x1, "o1"))
    P.add(tick(f"{L}.p2end"))
    def of(ks, tt): return OF + (ks * 2 + tt) * 4
    def oloads(h): return [f"buffer_load_dwordx4 {V(of(ks, tt))}, {v4k if ks >= 4 else vL16}, {sWS}, {t4 if tt else t3} offen offset:{(ks & 3) * 1024} sc1"
                           for ks in range(h, 8, 2) for tt in range(2)]
    def mf(ks, n):
        a = V(AB[n], 16)
        return f"{MF} {a}, {V(WO + (ks * 2 + (n & 1)) * 4)}, {V(of(ks, n >> 1))}, {a if (ks or n == 0) else 0}"
    P.add(poll_check(vPO, "v56", 16 * L + 1))
    P.add(tick(f"{L}.yck0"))
    P.add(I(oloads(0)))
    P.add(I(fill[FE:FM]))
    P.add(poll_issue(vPO, "v56"))
    P.add(barrier())
    P.add(tick(f"{L}.B3"))
    NT, NH0 = o("NT3", 2), o("NH0", 12)
    g = [mf(ks, n) for ks in (0, 2, 4, 6) + (1, 3, 5, 7)[:4 - NT] for n in range(4)]
    P.add(I(g[:NH0]))
    P.add(tick(f"{L}.ymf0"))
    P.add(poll_check(vPO, "v56", 16 * L + 2))
    P.add(tick(f"{L}.pollo"))
    P.add(I(oloads(1)))
    g = g[NH0:]
    wr = []
    for n in (3, 2, 1, 0):
        for e, ks in enumerate((1, 3, 5, 7)[4 - NT:]):
            g.append(mf(ks, n))
            if e >= 1 or NT == 1:
                k = (len(wr) + (NT - e) - 1) // (NT - e)
                g.append(wr[:k]); wr = wr[k:]
        if n:
            wr = [f"ds_write_b128 {wa[n]}, {V(AB[n] + 4 * j)} offset:{1024 * j}" for j in range(4)]
    P.add(I(spread(g, fill[max(FE, FM):], 0.0, 1.0)))
    P.add(tick(f"{L}.p3mm"))
    P.add(barrier())
    P.add(tick(f"{L}.yB4"))
    for j in range(12):
        P(f"ds_read_b128 {V(OF + 4 * j)}, {wa[0 if j < 8 else 4]} offset:{1024 * (j & 7 if j < 8 else j - 8)}")
    for p in range(3):
        for i in range(8):
            P(f"v_pk_add_f32 {V(a0 + 2 * i, 2)}, {V(a0 + 2 * i, 2)}, {V(OF + 16 * p + 2 * i, 2)}")
    tile_out(a0, OF + 16, OF + 24, 2 << (4 * L), [], None)
    P.add(tick(f"{L}.yst"))
    r4 = []
    if L == 0:
        d4, r4 = w2_round(4, x0)
        P.add(I(d4))
    elif o("CD2P", 1) == 0:
        P.add(I(w1_items("CD2")))
    for d in range(8):
        P(f"v_accvgpr_read_b32 {x1}, a{248 + d}")
        P(f"v_lshlrev_b32 v{OF}, 16, {x1}")
        P(f"v_and_b32 v{OF + 1}, 0xffff0000, {x1}")
        P(f"v_pk_add_f32 {V(a0 + 2 * d, 2)}, {V(a0 + 2 * d, 2)}, {V(OF, 2)}")
        P(f"v_accvgpr_write_b32 a{224 + 2 * d}, v{a0 + 2 * d}")
        P(f"v_accvgpr_write_b32 a{225 + 2 * d}, v{a0 + 2 * d + 1}")
    P.add(publish(16 * L + 3, x1))
    P.add(tick(f"{L}.p3end"))
    return r4


def phase3(L, late_rd):
    if P3N:
        return phase3n(L, late_rd)
    a0, a1, OF, WO = 16, 32, 64, 128
    vp, vc = "v53", "v54"
    P(f"s_and_b32 {t0}, {sW}, 1")
    P(f"s_lshl_b32 {t0}, {t0}, 14")
    P(f"v_add_u32 {x1}, {t0}, {vTP}")
    P(f"s_lshl_b32 {t3}, {sTP}, 15")
    P(f"s_add_u32 {t3}, {t3}, {t0}")
    P(f"s_add_u32 {t3}, {t3}, {LB(L) + O_O}")
    P(f"s_and_b32 {t4}, {sRR}, 1")
    P(f"s_lshl_b32 {t4}, {t4}, 13")
    P(f"s_add_u32 {t3}, {t3}, {t4}")
    P.add(barrier("wo"))
    P.add(tick(f"{L}.B3"))
    CD2E = opt("CD2E", 1)
    if L and CD2E:
        P.add(I(w1_items("CD2")))
    rd = [tr("v", WO + (ks * 2 + ct) * 4, x1, (ks >> 3) * 32768 + 2048 * (ks & 7) + 512 * ct) for ks in range(16) for ct in range(2)]
    PO1, PO2 = opt(f"PO1_{L}", opt("PO1", 6)), opt(f"PO2_{L}", opt("PO2", 14))
    def oloads():
        o = []
        for ks in range(16):
            if ks % 4 == 0:
                o.append(f"s_xor_b32 {t4}, {t3}, {4096 * (ks // 4)}")
            o.append(f"buffer_load_dwordx4 {V(OF + 4 * ks)}, {vL16}, {sWS}, {t4} offen offset:{(ks % 4) * 1024} sc1{ntm('O')}")
        return o
    def res(tmpv):
        if L:
            return [f"v_accvgpr_read_b32 v{a0 + i}, a{224 + i}" for i in range(16)]
        return [x for d in range(8) for x in (f"v_accvgpr_read_b32 {tmpv}, a{224 + d}", f"v_lshlrev_b32 v{a0 + 2 * d}, 16, {tmpv}", f"v_and_b32 v{a0 + 2 * d + 1}, 0xffff0000, {tmpv}")]
    P.add(I(rd[:PO1]))
    P.add(poll_issue(vPO, vp, 16 * L + 1))
    P.add(I(rd[PO1:PO2]))
    P.add(I(res(x2)))
    P.add(poll_check(vPO, vp, 16 * L + 1))
    P.add(tick(f"{L}.pollo"))
    if opt("OIL", 0):
        P.add(I(spread([I(x) for x in oloads()], rd[PO2:], opt("OI0", 10) / 100, opt("OI1", 100) / 100)))
    else:
        P.add(I(oloads()))
        if L and not CD2E:
            P.add(I(w1_items("CD2")))
        P.add(I(rd[PO2:]))
    r4 = []
    if L == 0:
        d4, r4 = w2_round(4, x0)
        P.add(I(late_rd))
        P.add(I(d4[:8]))
        P(f"v_and_b32 {x1}, 0x13, {vL}")
        P(f"v_bfe_u32 {x2}, {vL}, 2, 1")
        P(f"v_lshl_add_u32 {x1}, {x2}, 3, {x1}")
        P(f"v_bfe_u32 {x2}, {vL}, 3, 1")
        P(f"v_lshl_add_u32 {x1}, {x2}, 2, {x1}")
        P(f"v_lshlrev_b32 {x1}, 1, {x1}")
        P(f"s_lshl_b32 {t1}, {sM}, 8")
        P(f"s_cmp_ge_u32 {sW}, 2")
        P(f"s_cselect_b32 {t1}, {OOB}, {t1}")
        for e in range(4):
            P(f"buffer_load_ushort v{B1V + e}, {x1}, {sB1}, {t1} offen offset:{64 * e}")
        P.need("ds_any")
        P.add(I(d4[8:]))
    P(f"s_xor_b32 {t0}, {sW}, 1")
    P(f"s_lshl_b32 {t0}, {t0}, 12")
    P(f"s_add_u32 {t0}, {t0}, {SCR3}")
    P(f"v_add_u32 {x0 if L else 'v52'}, {t0}, {vL16}")
    vw = x0 if L else "v52"
    P.add(tile_addr(LB(L) + X1_O, LB(L) + ST1_O))
    P.add(barrier())
    P.add(tick(f"{L}.B3b"))
    back = P.label()
    P.put(back)
    def mf(ks, ct):
        a = V(a0 if ct == 0 else a1, 16)
        return f"{MF} {a}, {V(WO + (ks * 2 + ct) * 4)}, {V(OF + 4 * ks)}, {a if (ks or ct == 0) else 0}"
    NT = 4
    g = [[mf(ks, 1), mf(ks, 0)] for ks in range(16 - NT)] + [[mf(ks, 1)] for ks in range(16 - NT, 16)]
    fill = w1_items("AB") + (w1_items("CD1") if L == 0 else [])
    if EF & 1:
        for n, x in chain(vc, OF, 16):
            g[n].append(x)
    P.add(I(spread(g, fill, 0.0, 1.0)))
    if EF & 1:
        P.add(redo(vc, back, oloads() + res(x1)))
    for n, ks in enumerate(range(16 - NT, 16)):
        P(mf(ks, 0))
        if n >= 1:
            for j in ([n - 1] if n < NT - 1 else range(n - 1, 4)):
                P(f"ds_write_b128 {vw}, {V(a1 + 4 * j)} offset:{1024 * j}")
    P(f"v_xor_b32 {vw}, 0x1000, {vw}")
    P.add(tick(f"{L}.p3mm"))
    P.add(barrier())
    for j in range(4):
        P(f"ds_read_b128 {V(OF + 4 * j)}, {vw} offset:{1024 * j}")
    for i in range(8):
        P(f"v_pk_add_f32 {V(a0 + 2 * i, 2)}, {V(a0 + 2 * i, 2)}, {V(OF + 2 * i, 2)}")
    tile_out(a0, OF + 16, OF + 24, 2 << (4 * L), publish(16 * L + 3, x1, early=f"iX{L}") if EF & 2 else [], f"iX{L}")
    rs = [I([f"v_accvgpr_read_b32 {x1}, a{248 + d}", f"v_lshlrev_b32 v{OF}, 16, {x1}", f"v_and_b32 v{OF + 1}, 0xffff0000, {x1}",
             f"v_pk_add_f32 {V(a0 + 2 * d, 2)}, {V(a0 + 2 * d, 2)}, {V(OF, 2)}", f"v_accvgpr_write_b32 a{224 + 2 * d}, v{a0 + 2 * d}",
             f"v_accvgpr_write_b32 a{225 + 2 * d}, v{a0 + 2 * d + 1}"]) for d in range(8)]
    if L == 0 and opt("CSN", 0) >= 4:
        cs = [I([f"s_lshl_b32 {t0}, {sW}, 14", f"v_add_u32 v122, {t0}, {vTP}", f"s_lshl_b32 {t0}, {sW}, 13", f"v_add_u32 {x0}, {t0}, {vTP1}", need_ins("w1AB")])]
        cs += [tr("v", XF + 4 * j, "v122", 2048 * (j >> 1) + 512 * (j & 1)) for j in range(16)]
        cs += [[need_ins("w1CD1")] + tr("v", XF + 64 + 4 * j, x0, 2048 * (j >> 1) + 512 * (j & 1)) for j in range(8)]
        cs += [asel(AS4), table_addr("v123")]
        cs += [I(f"{MF16} {V(STV + 4 * (j & 1))}, {V(AS4)}, {V(XF + 4 * j)}, {V(STV + 4 * (j & 1)) if j >= 2 else 0}") for j in range(16)]
        cs += [I(f"{MF16} {V(CC + 4 * (j & 1))}, {V(AS4)}, {V(XF + 64 + 4 * j)}, {V(CC + 4 * (j & 1)) if j >= 2 else 0}") for j in range(8)]
        cs += table_write(STV, 3, "v123", f"v{B1V}") + table_write(STV + 4, 4, "v123", f"v{B1V + 1}")
        NP = opt("NP", 8)
        P.add(I(spread(r4 + cs[:NP], rs)))
        r4 = cs[NP:]
    else:
        P.add(I(rs))
    if not EF & 2:
        P.add(publish(16 * L + 3, x1))
    P.add(tick(f"{L}.p3end"))
    return r4


def gelu(a, c0, c1, ir, tmp, so, tag, bit, pk=False, ini=None):
    res = []
    for g in range(4):
        if pk:
            xs = [V(a + 4 * g + 2 * e, 2) for e in range(2)]
            ts = [V(tmp + 2 * e, 2) for e in range(2)]
            bc = lambda r: f"v[{r[1:]}:{int(r[1:]) + 1}]"
            res += [f"v_pk_mul_f32 {t}, {x}, {x}" for x, t in zip(xs, ts)]
            res += [f"v_pk_fma_f32 {t}, {t}, {bc(c1)}, {bc(c0)} op_sel_hi:[1,0,0]" for t in ts]
            res += [f"v_pk_mul_f32 {t}, {t}, {x}" for x, t in zip(xs, ts)]
            res += [f"v_exp_f32 v{tmp + e}, v{tmp + e}" for e in range(4)]
            res += [f"v_pk_fma_f32 {t}, {t}, {bc(ir)}, {bc(ir)} op_sel_hi:[1,0,0]" for t in ts]
            res += [f"v_rcp_f32 v{tmp + e}, v{tmp + e}" for e in range(4)]
            res += [f"v_pk_mul_f32 {x}, {x}, {t}" for x, t in zip(xs, ts)]
        else:
            blk = []
            for e in range(4):
                x, t = f"v{a + 4 * g + e}", f"v{tmp + e}"
                blk.append([f"v_mul_f32 {t}, {x}, {x}", f"v_fma_f32 {t}, {t}, {c1}, {c0}", f"v_mul_f32 {t}, {t}, {x}",
                            f"v_exp_f32 {t}, {t}", f"v_fma_f32 {t}, {t}, {ir}, {ir}", f"v_rcp_f32 {t}, {t}", f"v_mul_f32 {x}, {x}, {t}"])
            for s in range(7):
                for e in range(4):
                    res.append(blk[e][s])
        for i in (2 * g, 2 * g + 1):
            res.append(f"v_cvt_pk_bf16_f32 v{a + i}, v{a + 2 * i}, v{a + 2 * i + 1}")
        if g & 1:
            s, off = so
            res.append(xstore(f"buffer_store_dwordx4 {V(a + 2 * (g - 1))}, {vL16}, {sWS}, {s} offen offset:{off + 1024 * (g >> 1)}", bit, tag, ini))
    return [I(x) for x in res]


def phase45(L, r4):
    T = [16, 32, 48, 16]
    C0R, C1R, IRR, RR, GT = "v116", "v118", "v120", "v122", 124
    FB = 16 * L
    vtb = x2
    CSN = opt("CSN", 0) if L == 0 else 0
    CS5 = False
    if L == 0:
        if CSN < 4:
            P.add(I(r4))
        IM = opt("IM", 0)
        if IM:
            lid, ljn = P.label(), P.label()
            P(f"s_cmp_ge_u32 {sM}, 14")
            P(f"s_cbranch_scc1 {lid}")
            o = [lid + ":", f"s_bfe_u32 {u0}, s2, 0x20003", f"s_lshl_b32 {u0}, {u0}, 2", f"s_add_u32 {u0}, {u0}, {sW}", f"s_mul_i32 {u0}, {u0}, {4 * 3072}",
                 f"v_lshrrev_b32 {x0}, 4, {vL}", f"v_mul_u32_u24 {x0}, 3072, {x0}", f"v_and_b32 {x1}, 15, {vL}", f"v_lshl_add_u32 {x0}, {x1}, 7, {x0}",
                 f"s_mov_b32 {t3}, {OOB}", f"s_mov_b32 {t4}, {OOB}", f"v_add_u32 {vtb}, {TAB0 + 3072}, {vL16}"]
            for i in range(8):
                o += [f"s_add_u32 {u1}, {u0}, {64 * 3072 * ((2 * i) % 8 + (i >> 2))}", f"buffer_load_dword {x1}, {x0}, {sWQ}, {u1} offen offset:1024"]
            if IM > 1:
                o += [f"v_lshrrev_b32 {x0}, 3, {vL}", f"v_mul_u32_u24 {x0}, 3072, {x0}", f"v_and_b32 v16, 7, {vL}", f"v_lshl_add_u32 {x0}, v16, 7, {x0}", f"s_lshl_b32 {u0}, {u0}, 1"]
                for i in range(opt("IQ", 4)):
                    o += [f"s_add_u32 {u1}, {u0}, {128 * 3072 * i}", f"buffer_load_dword {x1}, {x0}, {sWQ}, {u1} offen"]
            if CSN == 5:
                o += [f"s_lshl_b32 {u0}, {sW}, 13", f"v_add_u32 {x0}, {u0}, {vTP1}"] + table_addr("v123")
            if IM < 3:
                o += ["s_waitcnt vmcnt(0) lgkmcnt(0)", "s_barrier"] + tick("0.idle") + [f"s_branch {ljn}"]
                OUTL.extend(I(o))
            idl = o
        vtw = "v123"
        if CSN < 4:
            P.add(asel(AS4))
            P(f"s_lshl_b32 {t0}, {sW}, 14")
            P(f"v_add_u32 {'v122' if CSN else x1}, {t0}, {vTP}")
            P(f"s_lshl_b32 {t0}, {sW}, 13")
            P(f"v_add_u32 {x0}, {t0}, {vTP1}")
        if CSN >= 4:
            P.add(I(r4))
            P.add(barrier())
            if CSN == 5:
                T[2] = STV
            CS5, CSN = CSN == 5, 0
        elif CSN:
            P.add(table_addr(vtw))
            P.add(barrier("w1AB"))
            if CSN == 1:
                P.add(I(w1_items("CD2")))
        else:
            P.add(table_addr(x2))
            P.need("w1AB")
            for j in range(16):
                P.add(tr("v", XF + 4 * j, x1, 2048 * (j >> 1) + 512 * (j & 1)))
            P.need("w1CD1")
            for j in range(8):
                P.add(tr("v", XF + 64 + 4 * j, x0, 2048 * (j >> 1) + 512 * (j & 1)))
            for j in range(16):
                c = V(16 + 4 * (j & 1))
                P(f"{MF16} {c}, {V(AS4)}, {V(XF + 4 * j)}, {c if j >= 2 else 0}")
            for j in range(8):
                c = V(CC + 4 * (j & 1))
                P(f"{MF16} {c}, {V(AS4)}, {V(XF + 64 + 4 * j)}, {c if j >= 2 else 0}")
            P.add(I(table_write(16, 3, x2, f"v{B1V}") + table_write(20, 4, x2, f"v{B1V + 1}")))
            P.add(barrier())
            P(f"v_mov_b32 {vtw}, {x2}")
    else:
        P.add(barrier("w1AB", "w1CD1", *([] if P3N else ["w1CD2"])))
    P(f"v_add_u32 {vtb}, {TAB0 + 3072}, {vL16}")
    D = 3
    def rdA(t):
        if t < 32:
            return trp(RING + 8 * (t % 4), 2048 * t) + trp(RING + 8 * (t % 4) + 4, 2048 * t + 512)
        if t == 32:
            return I([f"ds_read_b128 {V(RING + 8 * (t % 4) + 4 * e)}, {vtb} offset:{1024 * e}" for e in range(2)])
        return []
    N3 = opt("N3", 0) >> L & 1
    D3 = opt("D3", 7)
    def rdF(f):
        t, e = divmod(f, 3)
        n = RING + 4 * (f % 8)
        if t < 32:
            return trp(n, 2048 * t + 512 * e) if e < 2 else trp(n, R2 + 2048 * t)
        if t == 32:
            return I(f"ds_read_b128 {V(n)}, {vtb} offset:{1024 * e}")
        return []
    back, vc = P.label(), (f"v{GT}" if EF & 2 else None)
    P.put(back)
    for t in range(D3 if N3 else D):
        P.add(rdF(t) if N3 else rdA(t))
    P(f"s_lshl_b32 {t3}, {sT}, 17")
    P(f"s_lshl_b32 {t4}, {sM}, 13")
    P(f"s_add_u32 {t3}, {t3}, {t4}")
    P(f"s_add_u32 {t3}, {t3}, {LB(L) + H_O}")
    P.add(I(idle(t3)))
    P(f"s_add_u32 {t4}, {t3}, 4096")
    xs, xi = x_loads(LB(L) + X1_O, LB(L) + ST1_O, STV)
    NB = opt("NB", 14)
    P.add(xs)
    P.add(I(idle(t1, t2)))
    P.add(tick(f"{L}.B4b"))
    P.add(poll(vPX, x1, FB + 3))
    P.add(tick(f"{L}.pollx1"))
    if CSN:
        assert NB <= 16
        csr = [tr("v", XF + 64 + 4 * j, "v122", 2048 * (j >> 1) + 512 * (j & 1)) for j in range(16)]
        P.add(I(spread(xi[:NB], csr)))
        if CSN == 2:
            P.add(I(w1_items("CD2")))
        for j in range(16):
            c = V(STV + 4 * (j & 1))
            P(f"{MF16} {c}, {V(AS4)}, {V(XF + 64 + 4 * j)}, {c if j >= 2 else 0}")
        tw = table_write(STV, 3, vtw, f"v{B1V}") + table_write(STV + 4, 4, vtw, f"v{B1V + 1}", "tw1")
    else:
        P.add(I(xi[:NB]))
    xi = xi[NB:] + (w1_items("CD2") if (L == 0 and CSN in (0, 3)) or (L and P3N and opt("CD2P", 1) == 1) else [])
    if L == 0 and opt("TKV", 0):
        xi += touch_qkv("v117", "v119")
    if L == 0 and opt("H3B", 0):
        xi += [help3("v117", "v119", u0)]
    xi += sp_touch(2, x1, x1)
    gA = []
    for k in range(33):
        xb = V(XF + 4 * k) if k < 32 else V(EX)
        if N3:
            gA.append(sum((rdF(3 * k + e + D3) + I(f"{MF} {V(T[e], 16)}, {V(RING + 4 * ((3 * k + e) % 8))}, {xb}, {V(T[e], 16) if k else 0}") for e in range(3)), []))
            continue
        gA.append(rdA(k + D) + I([f"{MF} {V(T[e], 16)}, {V(RING + 8 * (k % 4) + 4 * e)}, {xb}, {V(T[e], 16) if k else 0}" for e in range(2)]))
    s = [f"v{STV + i}" for i in range(4)]
    C0 = -2.0 * LOG2E * 0.7978845608028654
    fill = stats_sum(STV, vc) + stats_finish(s[0], s[1], s[2], s[3], EX, True, RR, IRR)
    fill += [I(x) for x in [f"v_mul_f32 {C0R}, {fc(C0)}, {RR}", f"v_mul_f32 {C1R}, {RR}, {RR}", f"v_mul_f32 {C1R}, {C1R}, {C0R}",
                            f"v_mul_f32 {C1R}, {fc(0.044715)}, {C1R}"]]
    for k in range(0, 32, 4):
        gA[k] = gA[k] + tick(f"{L}.zA{k}")
    if CSN:
        gA[0] = I(tw[:7]) + gA[0] + I(tw[7:])
        CR = [112, 116, 124]
        ncd = 8 if CSN == 3 else 16
        def crd(j): return I([need_ins("w1CD1" if j < 8 else "w1CD2")] + tr("v", CR[j % 3], x0, 32768 * (j >> 3) + 2048 * ((j >> 1) & 3) + 512 * (j & 1))) if j < ncd else []
        for j in range(ncd + 2):
            c = V(CC + 4 * (j & 1))
            gA[j] = gA[j] + ((I(f"{MF16} {c}, {V(AS4)}, {V(CR[(j - 2) % 3])}, {c if j >= 4 else 0}") if j >= 2 else []) + crd(j))
        if CSN != 3:
            tw = table_write(CC, 5, vtw, f"v{B1V + 2}") + table_write(CD_, 6, vtw, f"v{B1V + 3}", "tw2")
            for j in range(7):
                gA[ncd + 3 + j] += I(tw[2 * j:2 * j + 2])
        gA[opt("BAP", 20)] += I([need_ins("tw1", "w1CD1", *([] if CSN == 3 else ["w1CD2"])), "s_barrier"])
    attach(gA, xi)
    if opt("WB", 0) >> L & 1:
        lsk = P.label()
        gA[opt("WBP", 24)] += I([f"s_lshl_b32 {u0}, {sM}, 2", f"s_or_b32 {u0}, {u0}, {sW}"] + ([f"s_lshl_b32 {u0}, {u0}, 1", f"s_and_b32 {u1}, {sC}, 1", f"s_or_b32 {u0}, {u0}, {u1}"] if opt("WB1", 1) else []) +
                                [f"s_cmp_lg_u32 {u0}, {120 if opt('WB1', 1) else 60}", f"s_cbranch_scc1 {lsk}", "buffer_wbl2 sc1", lsk + ":"])
    if vc:
        for n, x in chain(vc, XF, 32):
            gA[n] += I(x)
    P.add(weave(gA, [(opt("XSP", 16) + 2, x) for x in fill] + [(len(xi), x) for x in inits("Bb"[L], STV + 8)]))
    if vc:
        P.add(redo(vc, back))
    P.add(tick(f"{L}.pA"))
    if (opt("N45", 0) >> L & 1) or N3:
        return tail45(L, vtb, vtw if L == 0 else None, N3)
    D1 = 6
    def rd1(e, t):
        if t < 32:
            return trp(RING + 4 * (t % 8), R2 + 2048 * t + 512 * e)
        if t == 32:
            return I(f"ds_read_b128 {V(RING + 4 * (t % 8))}, {vtb} offset:{2048 + 1024 * e}")
        if e == 0 and t - 34 >= 0:
            pass
        return []
    def g1(e, off):
        def rd(t):
            n = RING + 4 * ((t + off) % 8)
            if t < 32:
                return trp(n, R2 + 2048 * t + 512 * e)
            if t == 32:
                return I(f"ds_read_b128 {V(n)}, {vtb} offset:{2048 + 1024 * e}")
            if e == 0:
                return trp(n, R2 + 2048 * (t - 33) + 512)
            return []
        a = V(T[2 + e], 16)
        out = []
        for k in range(33):
            xb = V(XF + 4 * k) if k < 32 else V(EX)
            it = rd(k + D1)
            if k % 2 == 0 and k + 1 < 33:
                it = it + [need_ins(("v", RING + 4 * ((k + 1 + off) % 8) + 3))]
            out.append(it + I(f"{MF} {a}, {V(RING + 4 * ((k + off) % 8))}, {xb}, {a if k else 0}"))
        return out, [rd(t) for t in range(D1)]
    gB, preB = g1(0, 0)
    gC, _ = g1(1, 33)
    PUBD = opt("PUBD", 14)
    GHI = opt("GHI", 90) / 100
    def G(i, pk=False):
        o = gelu(T[i], C0R, C1R, IRR, GT, (t3 if i < 2 else t4, 2048 * (i & 1)), f"h{i}", 4 << (4 * L), pk, f"iH{L}{i}")
        if EF & 4:
            o.insert(len(o) - opt("HE", 0), tick(f"{L}.zpb{i}") + publish(FB + 4 + i, x1, f"h{i}", f"iH{L}{i}"))
        return o
    def at(groups, n, item):
        groups[n] = groups[n] + I(item)
    if L == 0:
        cs = [I([need_ins("w1CD2")] + tr("v", STV + 4 * (j & 3), x0, 32768 + 2048 * (j >> 1) + 512 * (j & 1))) for j in range(4)]
        for j in range(8):
            c = V(CC + 4 * (j & 1))
            cs.append(I(f"{MF16} {c}, {V(AS4)}, {V(STV + 4 * (j & 3))}, {c}"))
            if j + 4 < 8:
                cs.append(tr("v", STV + 4 * (j & 3), x0, 32768 + 2048 * ((j + 4) >> 1) + 512 * (j & 1)))
        cs += [[]] + table_write(CC, 5, vtw, f"v{B1V + 2}") + table_write(CD_, 6, vtw, f"v{B1V + 3}")
        if CS5:
            P.add(I(spread(G(0, True), preB, 0.5, 0.95)))
            C2 = opt("C2P", 5)
            LA = opt("C2L", 4)
            for j in range(8):
                at(gB, C2 + j, [need_ins("w1CD2")] + tr("v", 16 + 4 * (j & 3), x0, 32768 + 2048 * (j >> 1) + 512 * (j & 1)))
            for j in range(8):
                c = V(CC + 4 * (j & 1))
                gB[C2 + j + LA] = I(f"{MF16} {c}, {V(AS4)}, {V(16 + 4 * (j & 3))}, {c}") + gB[C2 + j + LA]
            gB[C2 + 1] = I("s_barrier") + gB[C2 + 1]
            tw = table_write(CC, 5, vtw, f"v{B1V + 2}") + table_write(CD_, 6, vtw, f"v{B1V + 3}", "tw2")
            for j in range(5):
                at(gB, C2 + 8 + LA + j, tw[3 * j:3 * j + 3])
            assert C2 + 1 <= 10 and C2 + 8 + LA + 4 < 25 and LA <= 4 and opt("KV0", 0) > C2
            at(gB, 25, [need_ins("tw2"), "s_barrier"])
        elif CSN in (1, 2):
            P.add(I(spread(G(0, True), preB, 0.5, 0.95)))
            P.add(I([need_ins("tw2"), "s_barrier"]))
        else:
            P.add(I(spread(G(0), cs + preB, 0.1, 0.95)))
            P.add(barrier())
        if 0 < IM < 3:
            P.put(ljn)
        kv = wkv_items()
        if not opt("KV0", 0):
            for j in range(8):
                at(gB, 1 + j, kv[j]); at(gC, 1 + j, kv[8 + j])
    else:
        P.add(I(spread(G(0, True), preB, 0.5, 0.95)))
        if P3N:
            at(gB, opt("B5P", 4), [need_ins("w1CD2"), "s_barrier"])
    P.add(tick(f"{L}.G0"))
    ACC = [A(224, 16), V(32, 16), V(48, 16), V(240, 16)]
    def hf(s, i, tt): return XF + 4 * (14 * (s & 1) + 2 * i + tt)
    def hloads(s):
        out = []
        for i in range(7):
            for tt in range(2):
                out.append(I([f"s_add_u32 {u0}, {t5 if tt == 0 else d3}, {(8 * i + 2 * s) * 1024}",
                              f"buffer_load_dwordx4 {V(hf(s, i, tt))}, {vL16}, {sWS}, {u0} offen sc1{ntm('H')}"]))
        return out
    def mf(s, i, n):
        tt, ct = n >> 1, n & 1
        a = ACC[n]
        return f"{MF} {a}, {A(((7 * s + i) * 2 + ct) * 4)}, {V(hf(s, i, tt))}, {a if (s or i or n == 0) else 0}"
    def hchk(s, i):
        if not EF & 4:
            return []
        ls, lr = P.label(), P.label()
        c = [f"v_cmp_u_f32 vcc, v{hf(s, i, 0)}, v{hf(s, i, 1)}", f"s_cbranch_vccnz {ls}"]
        OUTL.extend(I([ls + ":", f"s_cmp_eq_u32 {sRT}, 0", f"s_cbranch_scc1 {lr}", f"s_sub_u32 {sRT}, {sRT}, 1"] + hloads(s)[2 * i:2 * i + 2] + c + [f"s_branch {lr}"]))
        return I(c + [lr + ":"])
    def gS(s, ni=7): return [(hchk(s, i) if n == 0 else []) + I(mf(s, i, n)) for i in range(ni) for n in range(4)]
    hb = I([f"s_lshr_b32 {u0}, {sW}, 1", f"s_mul_i32 {u0}, {u0}, {56 * 1024}", f"s_and_b32 {u1}, {sW}, 1", f"s_lshl_b32 {u1}, {u1}, 10",
            f"s_add_u32 {u0}, {u0}, {u1}", f"s_add_u32 {u0}, {u0}, {LB(L) + H_O}", f"s_lshl_b32 {t5}, {sTP}, 17", f"s_xor_b32 {d3}, {t5}, 0x20000",
            f"s_add_u32 {t5}, {t5}, {u0}", f"s_add_u32 {d3}, {d3}, {u0}"])
    for n, x in enumerate(hb):
        at(gB, 16 + n, x)
    DEF = opt("DEF", 0)
    NT = opt("NT5", 2)
    if DEF == 1:
        assert not EF & 4
        st = gB + gC + gS(0) + gS(1) + [I(mf(2, i, n)) for i in range(7) for n in (1, 2, 3)] + [I(mf(3, i, n)) for i in range(7 - NT) for n in (1, 2, 3)]
    else:
        st = gB + gC + gS(0) + gS(1) + gS(2)
    CK = [opt(f"CK{i}", ((41, 66, 96, 124), (33, 48, 80, 110))[EF >> 2 & 1][i]) for i in range(4)]
    PB = [opt("PB0", 14), opt("PB1", 47), opt("PB2", 78), opt("PB3", 108)]
    PD = opt("PD", 12)
    for s in range(4):
        if not EF & 4:
            at(st, PB[s], tick(f"{L}.zpb{s}") + publish(FB + 4 + s, x1, f"h{s}") + tick(f"{L}.zPB{s}"))
        at(st, CK[s] - PD, poll_issue(vPH, x0, FB + 4 + s))
        at(st, CK[s], tick(f"{L}.zck{s}") + poll_check(vPH, x0, FB + 4 + s) + tick(f"{L}.zCK{s}"))
        n = CK[s] + 1
        hl = list(enumerate(hloads(s)))
        if DEF == 2 and s == 3:
            hl = hl[1::2] + hl[0::2]
        for j, (q, x) in enumerate(hl):
            lo = {0: 33 + j, 1: 33 + 14 + j}.get(s, 66 + 28 * (s - 2) + 4 * (q >> 1) + 3)
            n = max(n, lo)
            at(st, n, x)
            assert DEF != 1 or s < 2 or n < 122 + 21 * (s - 2) + 3 * (j >> 1)
            n += 1 if j < opt(f"HBU{s}", opt("HBU", 6)) else opt("HST", 2)
        assert n <= len(st) + 1
    at(st, opt("B6", 110), barrier() + tick(f"{L}.zB6"))
    if L == 0 and opt("KV0", 0):
        for j in range(16):
            at(st, opt("KV0", 0) + j * opt("KVS", 10) // 10, kv[j])
    if L == 0 and opt("WQE", 0):
        assert opt("WQE", 0) > opt("B6", 110)
        for j, x in enumerate(wq_items([2])):
            at(st, opt("WQE", 0) + j * opt("WQS", 1), (I(f"s_sub_u32 {d1}, {d1}, 1024") if j == 0 else []) + x)
    P.add(I(spread(st[:33], G(1, opt("GPK", 0) & 1), 0.03, GHI)))
    P.add(tick(f"{L}.pB"))
    P.add(I(spread(st[33:66], G(2, opt("GPK", 0) & 2), 0.03, GHI)))
    P.add(tick(f"{L}.pC"))
    if L == 0 and IM == 3:
        assert CK[1] >= 66 and CK[1] - PD < 66 and opt("KV0", 0) + 15 * opt("KVS", 10) // 10 < 66
        kvi = wkv_items()
        hb2 = I([x.text for x in hb])
        idl += ["s_waitcnt lgkmcnt(0)", "s_barrier"] + hb2 + poll(vPH, x0, FB + 4) + tick("0.idle") + hloads(0) + poll_issue(vPH, x0, FB + 5) + kvi + [f"s_branch {ljn}"]
        OUTL.extend(I(idl))
        P.put(ljn)
    P.add(weave(st[66:94], [(1, x) for x in G(3, opt("GPK", 0) & 4)], slack=0))
    P.add(tick(f"{L}.S0"))
    P.add(I(st[94:122]))
    P.add(tick(f"{L}.S1"))
    x, tmp = 64, 80
    wa = ["v16", "v17", "v18", "v19"]
    pre = []
    for i in range(4):
        pre.append(I([f"s_xor_b32 {u0}, {sW}, {i}", f"s_mul_i32 {u0}, {u0}, 12288", f"s_add_u32 {u0}, {u0}, {SL + 4096 * max(0, i - 1)}",
                      f"v_add_u32 {wa[i]}, {u0}, {vL16}"]))
    if L == 0:
        pre.append(tile_addr(LB(1) + XIN_O, LB(1) + ST2_O))
    else:
        pre.append(I([f"v_and_b32 {x2}, 31, {vL}", f"v_lshrrev_b32 {x1}, 5, {vL}", f"v_lshlrev_b32 {x2}, 10, {x2}", f"v_lshl_add_u32 {x2}, {x1}, 4, {x2}",
                      f"s_lshl_b32 {t1}, {sTP}, 15", f"s_lshl_b32 {t2}, {sCT}, 6", f"s_add_u32 {t1}, {t1}, {t2}"]))
    base = [0, 32, 48, 240]
    if DEF == 2:
        for n, it in enumerate(pre):
            at(st, 140 + n, it)
        P.add(I(st[122:150]))
        P.add(tick(f"{L}.S2"))
        def wr(n): return [I(f"ds_write_b128 {wa[n]}, {V(base[n] + 4 * j)} offset:{1024 * j}") for j in range(4)]
        def rd(p): return [I(f"ds_read_b128 {V(tmp + 16 * p + 4 * j)}, {wa[0]} offset:{4096 * p + 1024 * j}") for j in range(4)]
        def ad(d, a, b): return [I(f"v_pk_add_f32 {V(d + 2 * i, 2)}, {V(a + 2 * i, 2)}, {V(b + 2 * i, 2)}") for i in range(8)]
        g = [I(mf(3, i, n)) for i in range(7) for n in (3, 2)]
        for j in range(4):
            g[1 + j] += I([f"v_accvgpr_read_b32 v{x + i}, a{224 + i}" for i in range(4 * j, 4 * j + 4)])
        P.add(I(g))
        g = [I(mf(3, i, 1) if n else f"{MF} {V(x, 16)}, {A((21 + i) * 8)}, {V(hf(3, i, 0))}, {V(x, 16)}") for i in range(7) for n in (1, 0)]
        W0, BA = opt("W0", 0), opt("BA", 6)
        attach(g, wr(3) + wr(2), W0, opt("WP", 4))
        g[BA] += barrier() + I(rd(1) + rd(2))
        attach(g, ad(tmp + 16, tmp + 16, tmp + 32), opt("AP", 10), 4)
        P.add(I(g + wr(1) + ad(x, x, tmp + 16)))
        P.add(tick(f"{L}.S3"))
        P.add(barrier(*(["wkv"] if L == 0 else [])))
        P.add(I(rd(0) + ad(x, x, tmp)))
    elif DEF:
        for n, it in enumerate(pre + [I([f"v_accvgpr_read_b32 v{x + i}, a{224 + i}" for i in range(j, j + 4)]) for j in range(0, 16, 4)]):
            at(st, 143 + n, it)
        P.add(I(st[122:143]))
        P.add(tick(f"{L}.S2"))
        own = [I(f"{MF} {V(x, 16)}, {A((7 * s + i) * 8)}, {V(hf(s, i, 0))}, {V(x, 16)}") for s in (2, 3) for i in range(7)]
        g, wr = st[143:], []
        for n in (3, 2, 1, 0):
            for e, i in enumerate(range(7 - NT, 7)):
                g.append(I(mf(3, i, n)) if n else own.pop(0))
                if e >= 1 or NT == 1:
                    k = (len(wr) + (NT - e) - 1) // (NT - e)
                    g.append(I(wr[:k])); wr = wr[k:]
            if n:
                wr = [f"ds_write_b128 {wa[n]}, {V(base[n] + 4 * j)} offset:{1024 * j}" for j in range(4)]
        K1 = opt("K1", 3)
        P.add(I(g + own[:K1]))
        own = own[K1:]
        P.add(tick(f"{L}.S3"))
        P.add(barrier(*(["wkv"] if L == 0 else [])))
        order = [j + 4 * p for j in range(4) for p in range(3)]
        rd = [I(f"ds_read_b128 {V(tmp + 4 * j)}, {wa[0]} offset:{1024 * j}") for j in order]
        ad = [I([f"v_pk_add_f32 {V(tmp + 2 * i, 2)}, {V(tmp + 2 * i, 2)}, {V(tmp + 16 * p + 2 * i, 2)}" for p in (1, 2) for i in (2 * j, 2 * j + 1)]) for j in range(4)]
        RP = opt("RP", 4)
        for n in range(0, 12, RP):
            P.add(I(rd[n:n + RP]))
            P.add(own.pop(0))
        assert len(own) >= 4
        while len(own) > 4:
            P.add(own.pop(0))
        for j in range(4):
            P.add(own.pop(0))
            P.add(ad[j])
        for i in range(8):
            P(f"v_pk_add_f32 {V(x + 2 * i, 2)}, {V(x + 2 * i, 2)}, {V(tmp + 2 * i, 2)}")
    else:
        P.add(I(st[122:150]))
        P.add(tick(f"{L}.S2"))
        NT = opt("NT5", 2)
        wa = ["v16", "v17", "v18", "v19"]
        pre = []
        for i in range(4):
            pre.append(I([f"s_xor_b32 {u0}, {sW}, {i}", f"s_mul_i32 {u0}, {u0}, 12288", f"s_add_u32 {u0}, {u0}, {SL + 4096 * max(0, i - 1)}",
                          f"v_add_u32 {wa[i]}, {u0}, {vL16}"]))
        if L == 0:
            pre.append(tile_addr(LB(1) + XIN_O, LB(1) + ST2_O))
        else:
            pre.append(I([f"v_and_b32 {x2}, 31, {vL}", f"v_lshrrev_b32 {x1}, 5, {vL}", f"v_lshlrev_b32 {x2}, 10, {x2}", f"v_lshl_add_u32 {x2}, {x1}, 4, {x2}",
                          f"s_lshl_b32 {t1}, {sTP}, 15", f"s_lshl_b32 {t2}, {sCT}, 6", f"s_add_u32 {t1}, {t1}, {t2}"]))
        P.add(I(pre))
        g = gS(3, 7 - NT)
        if L == 0:
            attach(g, inits("C", RING), 1, 1)
            if opt("WQ3", 0):
                wq = wq_items([2])
                wq[0] = I(f"s_sub_u32 {d1}, {d1}, 1024") + wq[0]
                attach(g, wq, opt("WQ3", 0) - 1, 1)
        base = [0, 32, 48, 240]
        wr = []
        for n in (3, 2, 1, 0):
            for e, i in enumerate(range(7 - NT, 7)):
                g.append((hchk(3, i) if n == 3 else []) + I(mf(3, i, n)))
                if e >= 1 or NT == 1:
                    k = (len(wr) + (NT - e) - 1) // (NT - e)
                    g.append(I(wr[:k])); wr = wr[k:]
            if n:
                wr = [f"ds_write_b128 {wa[n]}, {V(base[n] + 4 * j)} offset:{1024 * j}" for j in range(4)]
        P.add(I(g))
        x, tmp = 64, 80
        for i in range(16):
            P(f"v_accvgpr_read_b32 v{x + i}, a{224 + i}")
        P.add(tick(f"{L}.S3"))
        P.add(barrier(*(["wkv"] if L == 0 else [])))
        for j in range(12):
            P(f"ds_read_b128 {V(tmp + 4 * j)}, {wa[0]} offset:{1024 * j}")
        for p in range(3):
            for i in range(8):
                P(f"v_pk_add_f32 {V(x + 2 * i, 2)}, {V(x + 2 * i, 2)}, {V(tmp + 16 * p + 2 * i, 2)}")
    if L == 0:
        tile_out(x, 16, 24, 8, publish(8, x1, early="iY0") if EF & 8 else [], "iY0")
        for i in range(16):
            P(f"v_accvgpr_write_b32 a{224 + i}, v{x + i}")
        if not EF & 8:
            P.add(publish(8, x1))
        P.add(tick("0.p5end"))
    else:
        for i in range(8):
            P(f"v_cvt_pk_bf16_f32 v{16 + i}, v{x + 2 * i}, v{x + 2 * i + 1}")
        P(f"buffer_store_dwordx4 {V(16)}, {x2}, {sOUT}, {t1} offen {OM}")
        P(f"buffer_store_dwordx4 {V(20)}, {x2}, {sOUT}, {t1} offen offset:32 {OM}")
        if PROF:
            P.need("stores")
            P.add(tick("1.final"))
            P.add(prof_dump())


def tail45(L, vtb, vtw, N3=0):
    o = lambda n, d: opt(f"{n}_{L}", opt(n, d))
    G0X, G2X, G3X = (1 if L == 0 else o("G0X", 1)), o("G2X", 1), o("G3X", N3)
    T = [16, 32, 48, 16 if G0X else STV]
    C0R, C1R, IRR, RR, GT = "v116", "v118", "v120", "v122", 124
    FB, D = 16 * L, 3
    def rd(t):
        n = RING + 8 * (t % 4)
        if t < 32:
            return trp(n, R2 + 2048 * t) + trp(n + 4, R2 + 2048 * t + 512)
        if t == 32:
            return I([f"ds_read_b128 {V(n + 4 * e)}, {vtb} offset:{2048 + 1024 * e}" for e in range(2)])
        return []
    gBC = []
    for k in range(33):
        xb = V(XF + 4 * k) if k < 32 else V(EX)
        r = rd(k + D)
        for e in range(2):
            gBC.append(I(f"{MF} {V(T[2 + e], 16)}, {V(RING + 8 * (k % 4) + 4 * e)}, {xb}, {V(T[2 + e], 16) if k else 0}") + r[len(r) // 2 * e:len(r) // 2 * (e + 1)])
    pre = [rd(t) for t in range(D)]
    if N3:
        D = 6
        def rd(t):
            n = RING + 4 * (t % 8)
            if t < 32:
                return trp(n, R2 + 2048 * t + 512)
            return I(f"ds_read_b128 {V(n)}, {vtb} offset:3072") if t == 32 else []
        gBC = []
        for k in range(33):
            xb = V(XF + 4 * k) if k < 32 else V(EX)
            it = rd(k + D)
            if k % 2 == 0 and k + 1 < 33:
                it = it + [need_ins(("v", RING + 4 * ((k + 1) % 8) + 3))]
            gBC.append(it + I(f"{MF} {V(T[3], 16)}, {V(RING + 4 * (k % 8))}, {xb}, {V(T[3], 16) if k else 0}"))
        pre = [rd(t) for t in range(D)]
    NB_ = len(gBC)
    def G(i, pk=False):
        return gelu(T[i], C0R, C1R, IRR, GT, (t3 if i < 2 else t4, 2048 * (i & 1)), f"h{i}", 4 << (4 * L), pk)
    def at(groups, n, item):
        groups[n] = groups[n] + I(item)
    kv = []
    if L == 0:
        cs = [I([need_ins("w1CD2")] + tr("v", STV + 4 * (j & 3), x0, 32768 + 2048 * (j >> 1) + 512 * (j & 1))) for j in range(4)]
        for j in range(8):
            c = V(CC + 4 * (j & 1))
            cs.append(I(f"{MF16} {c}, {V(AS4)}, {V(STV + 4 * (j & 3))}, {c}"))
            if j + 4 < 8:
                cs.append(tr("v", STV + 4 * (j & 3), x0, 32768 + 2048 * ((j + 4) >> 1) + 512 * (j & 1)))
        cs += [[]] + table_write(CC, 5, vtw, f"v{B1V + 2}") + table_write(CD_, 6, vtw, f"v{B1V + 3}")
        P.add(I(spread(G(0), cs + pre, 0.1, 0.95)))
        P.add(barrier())
        kv = wkv_items()
    elif G0X:
        P.add(I(spread(G(0, True), pre, 0.5, 0.95)))
    else:
        P.add(I(pre))
    P.add(tick(f"{L}.G0"))
    AB = [0, 32, RING, RING + 16]
    ACC = [A(224, 16)] + [V(b, 16) for b in AB[1:]]
    NR = 32
    def hf(s, i, tt): return XF + 4 * ((14 * s + 2 * i + tt) % NR)
    def hloads(s):
        return [I([f"s_add_u32 {u0}, {t5 if tt == 0 else d3}, {(8 * i + 2 * s) * 1024}",
                   f"buffer_load_dwordx4 {V(hf(s, i, tt))}, {vL16}, {sWS}, {u0} offen sc1"]) for i in range(7) for tt in range(2)]
    def mf(s, i, n):
        tt, ct = n >> 1, n & 1
        a = ACC[n]
        return f"{MF} {a}, {A(((7 * s + i) * 2 + ct) * 4)}, {V(hf(s, i, tt))}, {a if (s or i or n == 0) else 0}"
    def gS(s, ni=7): return [I(mf(s, i, n)) for i in range(ni) for n in range(4)]
    hb = I([f"s_lshr_b32 {u0}, {sW}, 1", f"s_mul_i32 {u0}, {u0}, {56 * 1024}", f"s_and_b32 {u1}, {sW}, 1", f"s_lshl_b32 {u1}, {u1}, 10",
            f"s_add_u32 {u0}, {u0}, {u1}", f"s_add_u32 {u0}, {u0}, {LB(L) + H_O}", f"s_lshl_b32 {t5}, {sTP}, 17", f"s_xor_b32 {d3}, {t5}, 0x20000",
            f"s_add_u32 {t5}, {t5}, {u0}", f"s_add_u32 {d3}, {d3}, {u0}"])
    for n in range(0, 10, 2):
        at(gBC, 1 + n, hb[n:n + 2])
    gx = []
    for i, x in ((2, G2X), (3, G3X)):
        if x:
            g = G(i, True)
            gx += [I(g[len(g) * n // 10:len(g) * (n + 1) // 10]) for n in range(10)]
    NT = opt("NT5", 2)
    S0 = NB_ + len(gx)
    st = gBC + gx + gS(0) + gS(1) + gS(2) + gS(3, 7 - NT)
    def pos(p): return p if p < 100 else (NB_ + p - 100 if p < 200 else S0 + p - 200)
    PB = [pos(o(f"PB{i}", ((18, 58, 216, 246), (14, 109, 200, 218))[N3][i])) for i in range(4)]
    PI = [pos(o(f"PI{i}", ((30, 103, 228, 256), (27, 115, 212, 232))[N3][i])) for i in range(4)]
    CK = [pos(o(f"CK{i}", ((42, 202, 240, 268), (32, 119, 220, 240))[N3][i])) for i in range(4)]
    for s in range(4):
        at(st, PB[s], tick(f"{L}.zpb{s}") + publish(FB + 4 + s, x1, f"h{s}") + tick(f"{L}.zPB{s}"))
        at(st, PI[s], poll_issue(vPH, x0, FB + 4 + s))
        at(st, CK[s], tick(f"{L}.zck{s}") + poll_check(vPH, x0, FB + 4 + s) + tick(f"{L}.zCK{s}"))
        n = CK[s]
        HS = o(f"HS{s}", ((14, 10, 15, 10), (7, 10, 10, 10))[N3][s])
        for j, x in enumerate(hloads(s)):
            q = 14 * s + j
            lo = (q if N3 else 2 * q + 1) if q < NR else S0 + 4 * ((q - NR) >> 1) + 3
            n = max(n, lo)
            assert n < S0 + 4 * (q >> 1), (s, j, n)
            at(st, n, x)
            n = max(n, CK[s] + (j + 1) * HS // 10)
    at(st, pos(o("B6", 210)), barrier() + tick(f"{L}.zB6"))
    for j, x in enumerate(kv):
        at(st, pos(o("KV0", 1)) + j * o("KVS", 20) // 10, x)
    if L == 0 and opt("WQ3", 0):
        wq = wq_items([2])
        wq[0] = I(f"s_sub_u32 {d1}, {d1}, 1024") + wq[0]
        for j, x in enumerate(wq):
            at(st, pos(opt("WQ3", 0)) + j * opt("WQS", 20) // 10, x)
    wa = [f"v{EX + i}" for i in range(4)]
    for i in range(4):
        at(st, S0 + 60 + i, [f"s_xor_b32 {u0}, {sW}, {i}", f"s_mul_i32 {u0}, {u0}, 12288", f"s_add_u32 {u0}, {u0}, {SL + 4096 * max(0, i - 1)}",
                             f"v_add_u32 {wa[i]}, {u0}, {vL16}"])
    if L == 0:
        at(st, S0 + 64, tile_addr(LB(1) + XIN_O, LB(1) + ST2_O))
    else:
        at(st, S0 + 64, [f"v_and_b32 {x2}, 31, {vL}", f"v_lshrrev_b32 v{GT}, 5, {vL}", f"v_lshlrev_b32 {x2}, 10, {x2}", f"v_lshl_add_u32 {x2}, v{GT}, 4, {x2}",
                         f"s_lshl_b32 {t1}, {sTP}, 15", f"s_lshl_b32 {t2}, {sCT}, 6", f"s_add_u32 {t1}, {t1}, {t2}"])
    P.add(I(spread(st[:NB_], ([] if G0X else G(0)) + G(1), 0.02, o("GHI", 90 if N3 else 62 if G0X else 97) / 100)))
    P.add(tick(f"{L}.pC"))
    P.add(I(st[NB_:S0]))
    P.add(tick(f"{L}.GX"))
    wv = ([] if G2X else G(2)) + ([] if G3X else G(3))
    P.add(I(spread(st[S0:S0 + 28], wv, 0.02, o("GH2", 95) / 100)))
    P.add(tick(f"{L}.S0"))
    P.add(I(st[S0 + 28:S0 + 56]))
    P.add(tick(f"{L}.S1"))
    P.add(I(st[S0 + 56:S0 + 84]))
    P.add(tick(f"{L}.S2"))
    g = st[S0 + 84:]
    wr = []
    for n in (3, 2, 1, 0):
        for e, i in enumerate(range(7 - NT, 7)):
            g.append(I(mf(3, i, n)))
            if e >= 1 or NT == 1:
                k = (len(wr) + (NT - e) - 1) // (NT - e)
                g.append(I(wr[:k])); wr = wr[k:]
        if n:
            wr = [f"ds_write_b128 {wa[n]}, {V(AB[n] + 4 * j)} offset:{1024 * j}" for j in range(4)]
    P.add(I(g))
    x, tmp = 48, XF
    for i in range(16):
        P(f"v_accvgpr_read_b32 v{x + i}, a{224 + i}")
    P.add(tick(f"{L}.S3"))
    P.add(barrier(*(["wkv"] if L == 0 else [])))
    for j in range(12):
        P(f"ds_read_b128 {V(tmp + 4 * j)}, {wa[0]} offset:{1024 * j}")
    for p in range(3):
        for i in range(8):
            P(f"v_pk_add_f32 {V(x + 2 * i, 2)}, {V(x + 2 * i, 2)}, {V(tmp + 16 * p + 2 * i, 2)}")
    if L == 0:
        tile_out(x, 16, 24, 8, [], None)
        for i in range(16):
            P(f"v_accvgpr_write_b32 a{224 + i}, v{x + i}")
        P.add(publish(8, x1))
        P.add(tick("0.p5end"))
    else:
        for i in range(8):
            P(f"v_cvt_pk_bf16_f32 v{16 + i}, v{x + 2 * i}, v{x + 2 * i + 1}")
        P(f"buffer_store_dwordx4 {V(16)}, {x2}, {sOUT}, {t1} offen {OM}")
        P(f"buffer_store_dwordx4 {V(20)}, {x2}, {sOUT}, {t1} offen offset:32 {OM}")
        if PROF:
            P.need("stores")
            P.add(tick("1.final"))
            P.add(prof_dump())
```

```python
import sys, struct, re
from asmgen import Prog, Ins, emit, need_ins

KN = "interleave_layers__sliding_block__mixer_channel_mlp__prompt_kernel"
OPT = dict(a.split("=") for a in sys.argv[2:])
STOP = OPT.get("STOP")
PROF = int(OPT.get("PROF", 0))
def opt(name, default): return int(OPT.get(name, default))

MB = 1 << 20
KV_O, O_O, X1_O, XIN_O, ST1_O, ST2_O, H_O = 0, 4 * MB, 6 * MB, 8 * MB, 10 * MB, 10 * MB + 256 * 1024, 11 * MB
if opt("RU", 0) >= 3:
    X1_O = -MB
if opt('RU', 0) >= 2:
    XIN_O, ST2_O = X1_O, ST1_O
LSTRIDE = 20 * MB
def LB(L): return MB + L * LSTRIDE
def LX(L): return MB if opt('RU', 0) else LB(L)
def LY(L): return LB(L) if opt('RU', 0) == 4 else LX(L)
FPACK = 131072
MBOX = FPACK + 8192
ARR = FPACK + 65536
OOB = 0x40000000
R0, R1, R2, SL, PITCH = 0, 32768, 65536, 98304, 4112
SCR3, SPARE, TAB0, RBC = 131072, 147648, 156160, 163328

sC, sM, sW, sCNT = "s4", "s5", "s6", "s7"
sRR = "s0"
sX, sWQ, sWO, sW1, sW2, sWS, sOUT, sB2, sB1, sDBG = [f"s[{8 + 4 * i}:{11 + 4 * i}]" for i in range(10)]
sT, sTP, sCT, sMODE, sFA, sFP = "s48", "s49", "s50", "s51", "s52", "s53"
t0, t1, t2, t3, t4, t5 = "s54", "s55", "s56", "s57", "s58", "s59"
d0, d1, d2, d3 = "s60", "s61", "s62", "s63"
u0, u1, u2, u3 = "s96", "s97", "s98", "s99"
def sMASK(r): return f"s[{64 + 2 * r}:{65 + 2 * r}]"
vL, vL16, vTR, vTR1, vTP, vTP1, vPX, vPO, vPH, vPROF, voQ, vo1, vo2 = [f"v{i}" for i in range(13)]
x0, x1, x2 = "v13", "v14", "v15"
XF = 128

def f2u(x): return struct.unpack("<I", struct.pack("<f", x))[0]
def fc(x): return hex(f2u(x))
def V(n, k=4): return f"v[{n}:{n + k - 1}]" if k > 1 else f"v{n}"
def A(n, k=4): return f"a[{n}:{n + k - 1}]" if k > 1 else f"a{n}"
def R(f, n, k=4): return f"{f}[{n}:{n + k - 1}]"

PL = opt("PL", 0)
P3N = opt("P3N", 1)
PMOD = OPT.get("PMOD", "")
LOG2E = 1.4426950408889634
EPS = 1e-5
P = Prog()
MF = "v_mfma_f32_32x32x16_bf16"
MF16 = "v_mfma_f32_16x16x32_bf16"
OUTL = []


def I(x):
    if isinstance(x, str):
        return [Ins(x)]
    if isinstance(x, Ins):
        return [x]
    out = []
    for e in x:
        out += I(e)
    return out


def cost(ins):
    c = 0
    for i in ins:
        if i.kind in ("label", "dir"):
            continue
        c += 8 if (i.kind in ("mfma", "trans") or i.op.startswith("v_permlane")) else 4
    return c


def weave(groups, fill, slack=4, start=0, rate=1.0):
    out, f, credit = [], [], 0
    for it in fill:
        if isinstance(it, tuple):
            f.append((it[0], I(it[1])))
        else:
            f.append((0, I(it)))
    for n, g in enumerate(groups):
        g = I(g)
        out += g
        pipe = sum(4 * i.passes for i in g if i.kind == "mfma")
        if n < start:
            continue
        credit = min(credit, 8) + (pipe - cost(g) - slack) * rate
        while f and f[0][0] <= n and credit > 0:
            it = f.pop(0)[1]
            out += it
            credit -= cost(it)
    for _, it in f:
        out += it
    return out


def spread(main, fill, lo=0.0, hi=1.0):
    main = [I(m) for m in main]
    fill = [I(x) for x in fill]
    tot = sum(cost(m) for m in main)
    out, acc, k = [], 0, 0
    for m in main:
        out.append(m)
        acc += cost(m)
        while k < len(fill) and acc >= tot * (lo + (hi - lo) * k / max(1, len(fill))):
            out.append(fill[k]); k += 1
    out += fill[k:]
    return out


def tr(f, n, base, off):
    assert 0 <= off and off + 256 < 65536
    return [Ins(f"ds_read_b64_tr_b16 {R(f, n, 2)}, {base} offset:{off}"),
            Ins(f"ds_read_b64_tr_b16 {R(f, n + 2, 2)}, {base} offset:{off + 256}")]

def tr1(n, addr):
    return tr("v", n, vTR, addr) if addr < 65536 else tr("v", n, vTR1, addr - 65536)

def trp(n, addr):
    return tr("v", n, vTP, addr) if addr < 65536 else tr("v", n, vTP1, addr - 65536)


def ntm(srd):
    b = {sW2: 1, sW1: 2, sWO: 4, sWQ: 8, "H": 16, "X": 32, "O": 64, "KV": 128, sX: 256}[srd]
    return " nt" if opt("NT", 0) & b else ""


def dma(srd, voff, sbase, goffs, lds_s, lds_imm, tag, st=d0):
    out = []
    for j, g in enumerate(goffs):
        it = []
        if j % 4 == 0:
            it.append(Ins(f"s_add_u32 m0, {lds_s}, {lds_imm + 1024 * j}") if lds_s else Ins(f"s_mov_b32 m0, {lds_imm + 1024 * j}"))
        o = g - (j % 4) * 1024
        assert o >= 0
        it.append(Ins(f"s_add_u32 {st}, {sbase}, {o}"))
        it.append(Ins(f"buffer_load_dwordx4 {voff}, {srd}, {st} offen offset:{(j % 4) * 1024}{ntm(srd)} lds", xdst=[tag]))
        out.append(it)
    return out


def dma_rot(srd, voff, sbase, n, gstep, g0, lds_s, lds_imm, tag, rot):
    out = []
    for j in range(n):
        it = []
        if j % 4 == 0:
            it += [f"s_xor_b32 {d0}, {rot}, {j // 4}", f"s_lshl_b32 {d3}, {d0}, 12", f"s_mul_i32 {d0}, {d0}, {4 * gstep}", f"s_add_u32 {d3}, {d3}, {lds_s}",
                   f"s_add_u32 {d0}, {d0}, {sbase}", f"s_add_u32 m0, {d3}, {lds_imm - g0}"]
        else:
            it.append(f"s_add_u32 {d0}, {d0}, {gstep - 1024}")
        it.append(Ins(f"buffer_load_dwordx4 {voff}, {srd}, {d0} offen offset:{(j % 4) * 1024 + g0} lds", xdst=[tag]))
        out.append(I(it))
    return out


def barrier(*extra):
    return [need_ins("ds_any", *extra), Ins("s_barrier")]


SP = opt("SP", 0)
SFB, SBIAS = 20 * MB, 0xFF0000
cO, cH, cX, sAT, pO, pX, pH = "s36", "s37", "s38", "s39", "s8", "s9", "s10"


def spk(val):
    L, e = val >> 4, val & 15
    if e == 1 and SP & 1: return cO, 512 * L, pO, 512 * L, "O"
    if e == 3 and SP & 2: return cX, 4096 * L + 3072, pX, 3072, "X"
    if 4 <= e < 8 and SP & 4: return cH, 4096 * L + 512 * (e - 2), pH, 512 * (e - 2), "H"
    if e == 8 and SP & 8: return cX, 3584, pX, 3584, "X"
    return None


def sload(k, base):
    return f"s_buffer_load_dwordx2 s[44:45], {sWS}, {base} offset:{k[1]}" if k[4] == "O" else f"s_buffer_load_dwordx4 s[44:47], {sWS}, {base} offset:{k[1]}"


def stest(k):
    if k[4] == "O":
        return ["s_nand_b32 s44, s44, s45"]
    return (["s_or_b32 s47, s47, 0xffff0000"] if k[4] == "H" else []) + ["s_nand_b64 s[44:45], s[44:45], s[46:47]"]


def poll_issue(vaddr, vt, target=0):
    k = spk(target)
    if k:
        return I(sload(k, k[0]))
    return [Ins(f"buffer_load_dword {vt}, {vaddr}, {sWS}, {sFP} offen sc1")]


def poll_check(vaddr, vt, target):
    ls, lr, lp = P.label(), P.label(), P.label()
    k = spk(target)
    o = [ls + ":"]
    if k:
        l1, lv = P.label(), P.label()
        o += [f"s_mov_b32 {sAT}, {k[0]}", f"s_cmp_eq_u32 {sMODE}, 0", f"s_cbranch_scc1 {lv}", l1 + ":", f"s_add_u32 {sAT}, {sAT}, 64",
              f"s_and_b32 s44, {sAT}, {0xc0 if k[4] == 'H' else 0x1c0}", f"s_cbranch_scc0 {lv}", sload(k, sAT)] + stest(k) + [f"s_cbranch_scc0 {lr}", f"s_branch {l1}", lv + ":"]
    OUTL.extend(I(o + [f"s_mov_b32 {sCNT}, 30000", lp + ":",
                       f"buffer_load_dword {vt}, {vaddr}, {sWS}, {sFP} offen sc1",
                       f"v_cmp_gt_u32 vcc, {target}, {vt}", f"s_cbranch_vccz {lr}",
                       f"s_sub_u32 {sCNT}, {sCNT}, 1", f"s_cbranch_scc0 {lp}", "s_endpgm"]))
    if k:
        return I(stest(k) + [f"s_cbranch_scc1 {ls}", lr + ":"])
    return I([f"v_cmp_gt_u32 vcc, {target}, {vt}", f"s_cbranch_vccnz {ls}", lr + ":"])


def poll(vaddr, vt, target):
    if spk(target):
        return poll_issue(vaddr, vt, target) + poll_check(vaddr, vt, target)
    lp, lr = P.label(), P.label()
    return I([f"s_mov_b32 {sCNT}, 30000", lp + ":",
              f"buffer_load_dword {vt}, {vaddr}, {sWS}, {sFP} offen sc1",
              f"v_cmp_gt_u32 vcc, {target}, {vt}", f"s_cbranch_vccz {lr}",
              f"s_sub_u32 {sCNT}, {sCNT}, 1", f"s_cbranch_scc0 {lp}", "s_endpgm", lr + ":"])


def sp_setup():
    if not SP:
        return []
    b = [f"s_lshl_b32 {u0}, {sC}, 15", f"s_add_u32 {u0}, {u0}, {SFB}", f"s_cmp_eq_u32 {sMODE}, 0", f"s_cselect_b32 {u0}, {OOB}, {u0}"]
    a = b + [f"s_and_b32 {u1}, {sTP}, 3", f"s_lshl_b32 {u1}, {u1}, 13", f"s_add_u32 {u1}, {u1}, {u0}", f"s_and_b32 {u2}, {sW}, 1",
             f"s_lshl_b32 {u3}, {u2}, 12", f"s_add_u32 {cO}, {u1}, {u3}", f"s_lshl_b32 {u3}, {u2}, 8", f"s_add_u32 {cH}, {u1}, {u3}",
             f"s_add_u32 {pX}, {u1}, {sCT}", f"s_sub_u32 {pX}, {pX}, {SBIAS}",
             f"s_lshl_b32 {u3}, {sW}, 13", f"s_add_u32 {cX}, {u0}, {u3}", f"s_buffer_load_dword s44, {sWS}, {cX} offset:{4096 + 3584}"]
    c = [f"s_lshr_b32 {u1}, {sM}, 3", f"s_lshl_b32 {u1}, {u1}, 12", f"s_and_b32 {u2}, {sM}, 7", f"s_add_u32 {u1}, {u1}, {u2}",
         f"s_add_u32 {pO}, {cX}, {u1}", f"s_sub_u32 {pO}, {pO}, {SBIAS}",
         f"s_cmp_ge_u32 {sM}, 7", f"s_cselect_b32 {u1}, {8192 - 14}, 0", f"s_lshl_b32 {u2}, {sM}, 1", f"s_add_u32 {u1}, {u1}, {u2}",
         f"s_and_b32 {u2}, {sW}, 1", f"s_add_u32 {u1}, {u1}, {u2}", f"s_andn2_b32 {u2}, {cX}, 8192", f"s_add_u32 {u1}, {u1}, {u2}",
         f"s_sub_u32 {pH}, {u1}, {SBIAS}", f"s_cmp_ge_u32 {sM}, 14", f"s_cselect_b32 {pH}, {OOB}, {pH}"]
    return [I(a), I(c)]


def sp_touch(bit, vt, va):
    if not opt("SPT", 0) & bit:
        return []
    return [I([f"s_lshl_b32 {u0}, {sC}, 4", f"s_add_u32 {u0}, {u0}, {sM}", f"s_lshl_b32 {u0}, {u0}, 2", f"s_add_u32 {u0}, {u0}, {sW}", f"s_lshl_b32 {u0}, {u0}, 9", f"s_add_u32 {u0}, {u0}, {SFB}",
               f"v_and_b32 {va}, 0x180, {vL16}", f"buffer_load_dword {vt}, {va}, {sWS}, {u0} offen sc1"])]


def ctouch(bit, vt, va, lo, hi):
    if not opt("CT", 0) & bit:
        return []
    lx = P.label()
    return [I([f"s_lshr_b32 {u0}, s2, 3", f"s_lshl_b32 {u0}, {u0}, 2", f"s_add_u32 {u0}, {u0}, {sW}", f"s_lshl_b32 {u0}, {u0}, 8", f"v_and_b32 {va}, 0x80, {vL16}",
               f"v_add_u32 {va}, {u0}, {va}", f"v_add_u32 {va}, {lo}-{lx}, {va}", f"v_min_u32 {va}, {hi}-{lx}, {va}", "s_getpc_b64 s[96:97]", lx + ":",
               f"global_load_dword {vt}, {va}, s[96:97]"])]


EF = opt("EF", 0)
sRT = "s1"


def publish(val, vt, tag="stores", early=None):
    ls, lr = P.label(), P.label()
    st = f"buffer_store_dword {vt}, off, {sWS}, {sFA}"
    OUTL.extend(I([ls + ":", need_ins(tag), st + " sc1", f"s_branch {lr}"]))
    k = spk(val)
    nx = [f"s_add_u32 {pX}, {pX}, 4096", f"s_add_u32 {pH}, {pH}, 4096"] if SP and val == 8 else []
    if k:
        return I([f"v_and_b32 {vt}, 0x1c0, {vL16}", f"v_or_b32 {vt}, {SBIAS}, {vt}", f"s_cmp_eq_u32 {sMODE}, 0", need_ins(early or tag),
                  f"buffer_store_byte_d16_hi {vt}, {vt}, {sWS}, {k[2]} offen offset:{k[3]}", f"v_mov_b32 {vt}, {val}", f"s_cbranch_scc1 {ls}", st, lr + ":"] + nx)
    return I([f"v_mov_b32 {vt}, {val}", f"s_cmp_eq_u32 {sMODE}, 0", need_ins(early or tag), f"s_cbranch_scc1 {ls}", st, lr + ":"] + nx)


INAMES = ["O0", "X0", "H00", "H01", "H02", "H03", "Y0", "O1", "X1", "H10", "H11", "H12", "H13"]
IW = dict(zip(INAMES, OPT.get("IW", "AAAAAAACCaaaa")))
def efbit(n): return EF & {"O": 1, "X": 2, "H": 4, "Y": 8}[n[0]]


def inits(win, r):
    out = []
    for n in INAMES:
        if IW[n] != win or not efbit(n):
            continue
        L = int(n[1])
        def st(off): return Ins(f"buffer_store_dwordx4 {V(r)}, {vL16}, {sWS}, {u0} offen offset:{off} sc1", xdst=["i" + n])
        if n[0] == "O":
            o = [f"s_lshl_b32 {u0}, {sT}, 4", f"s_add_u32 {u0}, {u0}, {sM}", f"s_lshl_b32 {u0}, {u0}, 11", f"s_add_u32 {u0}, {u0}, {LB(L) + O_O}", st(0), st(1024)]
        elif n[0] == "H":
            o = [f"s_lshl_b32 {u0}, {sT}, 4", f"s_add_u32 {u0}, {u0}, {sM}", f"s_lshl_b32 {u0}, {u0}, 13", f"s_add_u32 {u0}, {u0}, {LB(L) + H_O + 2048 * int(n[2])}",
                 f"s_cmp_ge_u32 {sM}, 14", f"s_cselect_b32 {u0}, {OOB}, {u0}", st(0), st(1024)]
        else:
            xo, so = (LB(L) + X1_O, LB(L) + ST1_O) if n[0] == "X" else (LB(1) + XIN_O, LB(1) + ST2_O)
            o = [f"s_lshl_b32 {u1}, {sTP}, 4", f"s_add_u32 {u1}, {u1}, {sCT}", f"s_lshl_b32 {u0}, {u1}, 11", f"s_add_u32 {u0}, {u0}, {xo}", st(0), st(1024),
                 f"s_lshl_b32 {u0}, {u1}, 8", f"s_add_u32 {u0}, {u0}, {so}", "s_mov_b64 exec, 0xffff", st(0), "s_mov_b64 exec, -1"]
        out.append(I(o))
    if out:
        out[0] = I([f"v_mov_b64 {V(r, 2)}, -1", f"v_mov_b64 {V(r + 2, 2)}, -1"]) + out[0]
    return out


def redo(vc, back, extra=()):
    ls, lr = P.label(), P.label()
    OUTL.extend(I([ls + ":", f"s_cmp_eq_u32 {sRT}, 0", f"s_cbranch_scc1 {lr}", f"s_sub_u32 {sRT}, {sRT}, 1", "s_nop 15"] + list(extra) + ["s_waitcnt vmcnt(0) lgkmcnt(0)", f"s_branch {back}"]))
    return I([f"v_cmp_eq_u32 vcc, -1, {vc}", f"s_cbranch_vccnz {ls}", lr + ":"])


def chain(vc, base, n):
    return [(t + 1, f"v_max3_u32 {vc}, {vc}, v{base + 4 * t}, v{base + 4 * t + 4}" if t else f"v_max_u32 {vc}, v{base}, v{base + 4}") for t in range(0, n, 2)]


def xstore(txt, bit, tag=None, ini=None):
    kw = dict(xdst=[tag]) if tag else {}
    if ini:
        kw["xsrc"] = [ini]
    if not PL & bit:
        return [Ins(txt + " sc1" + (" nt" if opt("NTS", 0) & 1 else ""), **kw)]
    ls, lr = P.label(), P.label()
    OUTL.extend(I([ls + ":", Ins(txt + " sc1", **kw), f"s_branch {lr}"]))
    return I([f"s_cmp_eq_u32 {sMODE}, 0", f"s_cbranch_scc1 {ls}", Ins(txt + (" " + PMOD if PMOD else ""), **kw), lr + ":"])


PNAMES = []
def tick(name):
    if not PROF:
        return []
    if OPT.get("TK") and not re.match(OPT["TK"], name):
        return []
    op = "s_memtime" if opt("CLK", 0) else "s_memrealtime"
    return I([f"{op} s[100:101]", "s_waitcnt lgkmcnt(0)", Ins(f"v_writelane_b32 {vPROF}, s100, 0", comment="T:" + name)])


def prof_dump():
    if not PROF:
        return []
    return I([f"v_writelane_b32 {vPROF}, {sRT}, 63", f"s_lshl_b32 {t0}, s2, 2", f"s_add_u32 {t0}, {t0}, {sW}", f"s_lshl_b32 {t0}, {t0}, 8",
              f"s_add_u32 {t0}, {t0}, {LB(1) + 19 * MB}", f"v_lshlrev_b32 {x0}, 2, {vL}",
              f"buffer_store_dword {vPROF}, {x0}, {sWS}, {t0} offen"])


def stop(L, ph):
    if STOP == f"{L}.{ph}":
        P.add(prof_dump())
        P("s_endpgm")
        return True
    return False


def finish():
    import asmgen
    asmgen.SCHED = bool(opt('SCHED', 1))
    asmgen.MINW = opt('MINW', 2)
    P.put("L_end")
    P("s_endpgm")
    P.add(OUTL)
    if opt("CPF", 0):
        P.put("L_ce")
        P("s_endpgm")
    for i in P.ins:
        if i.comment and i.comment.startswith("T:"):
            if i.comment[2:] not in PNAMES:
                PNAMES.append(i.comment[2:])
            i.text = i.text[:-1] + str(PNAMES.index(i.comment[2:]))
    assert len(PNAMES) <= 63
    body, ins = emit(P)
    hdr = open("interleave_layers__sliding_block__mixer_channel_mlp__prompt.s.ref").read()
    top = hdr.split("; @launch")[0]
    txt = top + "; @launch grid=(256,1,1) block=(256,1,1) lds=163840\n"
    txt += f""".amdgcn_target "amdgcn-amd-amdhsa--gfx950"
.text
.globl {KN}
.p2align 8
.type {KN},@function
{KN}:
{body}
.section .rodata,"a"
.p2align 6
.amdhsa_kernel {KN}
  .amdhsa_next_free_vgpr 512
  .amdhsa_next_free_sgpr 102
  .amdhsa_accum_offset 256
  .amdhsa_group_segment_fixed_size 0
  .amdhsa_kernarg_size 88
  .amdhsa_user_sgpr_count 2
  .amdhsa_user_sgpr_kernarg_segment_ptr 1
  .amdhsa_system_sgpr_workgroup_id_x 1
.end_amdhsa_kernel
"""
    open(sys.argv[1], "w").write(txt)
    print("instructions:", len(ins))
    open(sys.argv[1] + ".names", "w").write(" ".join(PNAMES))
```

```python
from k2_base import *

sW2B = "s3"
sTI = "s1"
X3 = opt("X3", 0)
NK = " nt" if opt("NTS", 0) & 2 else ""

def wq_items(imgs, tag="wq"):
    out = []
    for q in range(4):
        for img in imgs:
            cb = (0, 1024, 0)[img]
            out.append(I([f"s_xor_b32 {d0}, {sRR}, {q}", f"s_mul_i32 {d0}, {d0}, {128 * 3072}", f"s_add_u32 m0, {d2}, {img * 32768 + q * 8192 - cb}", f"s_add_u32 {d0}, {d0}, {d1}",
                          Ins(f"buffer_load_dwordx4 {voQ}, {sWQ}, {d0} offen offset:{cb} lds", xdst=[tag])]))
            out.append(I([f"s_add_u32 {d0}, {d0}, {16 * 3072 - 1024}",
                          Ins(f"buffer_load_dwordx4 {voQ}, {sWQ}, {d0} offen offset:{cb + 1024} lds", xdst=[tag])]))
    return out

KP = opt("KP", 0)
voK = "v119"

def kp_off(v):
    return [f"s_and_b32 {d0}, {sM}, 1", f"s_lshl_b32 {d0}, {d0}, 6", f"v_xor_b32 {v}, {d0}, {v}", f"s_mul_i32 {d0}, {d0}, 15", f"s_add_u32 {d0}, {d0}, 1024", f"v_add_u32 {v}, {d0}, {v}"]

def wkv_items():
    if not KP:
        kv = wq_items([0, 1], "wkv")
        kv[0] = wq_setup(1024) + kv[0]
        return kv
    out = []
    for q in range(4):
        for j in range(4):
            o = [f"s_xor_b32 {d0}, {sRR}, {q}", f"s_mul_i32 {d0}, {d0}, {128 * 3072}", f"s_lshl1_add_u32 m0, {d2}, {q * 16384}", f"s_add_u32 {d0}, {d0}, {d1}"] if j == 0 else [f"s_add_u32 {d0}, {d0}, {8 * 3072 - 1024}"]
            out.append(I(o + [Ins(f"buffer_load_dwordx4 {voQ}, {sWQ}, {d0} offen offset:{1024 * j} lds", xdst=["wkv"])]))
    out[0] = wq_setup() + I([f"v_bfe_u32 {voQ}, {vL}, 2, 3", f"v_lshlrev_b32 {voQ}, 9, {voQ}", f"v_sub_u32 {voQ}, {vo1}, {voQ}"] + kp_off(voQ)) + out[0]
    return out

def wq_setup(cb=0):
    return I([f"s_mul_i32 {d1}, {sW}, {32 * 3072}", f"s_lshl_b32 {d2}, {sM}, 6", f"s_add_u32 {d1}, {d1}, {d2}",
              f"s_lshl_b32 {d2}, {sW}, 11"] + ([f"s_add_u32 {d1}, {d1}, {cb}"] if cb else []))

vX0, vX1, XA = "v112", "v113", 120

def x0_items(h):
    out = []
    for j in range(4):
        it = []
        if j == 0:
            it += [f"s_xor_b32 {d1}, {t5}, {h}", f"s_lshl_b32 {d1}, {d1}, 7", f"s_add_u32 {d1}, {d1}, {t3}", f"s_add_u32 m0, {d3}, {SL + 4096 * (h & 3)}"]
        else:
            it.append(f"s_add_u32 {d1}, {d1}, 7168")
        it.append(Ins(f"buffer_load_dwordx4 {vX1 if j & 1 else vX0}, {sX}, {d1} offen offset:{j * 1024}{ntm(sX)} lds", xdst=[f"x{h}"]))
        out.append(I(it))
    return out

def w0_items(h, imgs=(0, 1), tag=None):
    out = []
    if KP and imgs == (0, 1):
        imgs = ()
        out = [I([f"s_lshl1_add_u32 m0, {d2}, {8192 * h}", Ins(f"buffer_load_dwordx4 {voK}, {sWQ}, {d1} offen lds", xdst=[f"kv{h}"])]),
               I([f"s_add_u32 {d0}, {d1}, {8 * 3072 - 1024}", Ins(f"buffer_load_dwordx4 {voK}, {sWQ}, {d0} offen offset:1024 lds", xdst=[f"kv{h}"])])]
    for img in imgs:
        cb = (1024, 2048, 0)[img]
        out += dma(sWQ, voQ, d1, [cb], d2, img * 32768 + h * 4096, tag or f"kv{h}")
    out[0] = I([f"s_xor_b32 {d1}, {t5}, {h}", f"s_mul_i32 {d1}, {d1}, {64 * 3072}", f"s_add_u32 {d1}, {d1}, {t4}"]) + out[0]
    return out

def w2_piece(kks, mul, imm, tag, vb):
    goffs = []
    for kk in kks:
        s, i = kk // 7, kk % 7
        goffs += [(128 * i + 32 * s + 8 * h) * 1024 for h in range(2)]
    dm = dma(sW2, vo2, sW2B, goffs, d2, imm, tag)
    dm[0] = I(f"s_mul_i32 {d2}, {sW}, {mul}") + dm[0]
    rd = [I([f"s_mul_i32 {u0}, {sW}, {mul}", f"s_add_u32 {u0}, {u0}, {imm}", f"v_add_u32 {vb}, {u0}, {vTP}", need_ins(tag)])]
    for j, kk in enumerate(kks):
        for ct in range(2):
            rd.append(tr("a", (kk * 2 + ct) * 4, vb, 2048 * j + 512 * ct))
    return dm, rd

def w2_round(rnd, vb):
    k = {1: 13, 2: 0, 3: 18, 4: 23}[rnd]
    pieces = {1: [(5, 16384, 0)],
              2: [(8, 16384, 0), (4, 8192, R2), (1, 2048, SPARE)],
              3: [(4, 8192, R2), (1, 2048, SPARE)],
              4: [(4, 8192, SL), (1, 2048, SPARE)]}[rnd]
    dm, rd = [], []
    for n, (cnt, mul, imm) in enumerate(pieces):
        a, b = w2_piece(list(range(k, k + cnt)), mul, imm, f"w2r{rnd}_{n}", vb)
        dm += a; rd += b
        k += cnt
    return dm, rd

def wo_items(rot=False):
    it = dma_rot(sWO, vo2, d1, 16, 8192, 0, d2, 0, "wo", sRR) if rot else dma(sWO, vo2, d1, [j * 8 * 1024 for j in range(16)], d2, 0, "wo")
    it[0] = I([f"s_and_b32 {d1}, {sW}, 1", f"s_lshl_b32 {d1}, {d1}, 18", f"s_lshr_b32 {d2}, {sW}, 1", f"s_xor_b32 {d2}, {d2}, {sRR}", f"s_and_b32 {d2}, {d2}, 1", f"s_lshl_b32 {d2}, {d2}, 17",
               f"s_add_u32 {d1}, {d1}, {d2}", f"s_and_b32 {d2}, {sCT}, 14", f"s_lshl_b32 {d2}, {d2}, 6", f"s_add_u32 {d1}, {d1}, {d2}",
               f"s_lshl_b32 {d2}, {sW}, 14"]) + it[0]
    return it

def wo_reads(va):
    rd = [I([f"s_lshl_b32 {u0}, {sW}, 14", f"v_add_u32 {va}, {u0}, {vTP}", need_ins("wo")])]
    return rd + [tr("v", 128 + (ks * 2 + ct) * 4, va, 2048 * ks + 512 * ct) for ks in (0, 2, 4, 6, 1, 3, 5, 7) for ct in range(2)]

def idle(*regs):
    if not opt("IDL", 1):
        return []
    return [f"s_cmp_ge_u32 {sM}, 14"] + [f"s_cselect_b32 {r}, {OOB}, {r}" for r in regs]

def w1_items(part, rot=False):
    if part == "AB":
        rows, n, g0, sh, imm = 128, 16, 0, 14, 0
        pre = [f"s_xor_b32 {d1}, {sW}, {sRR}"]
    else:
        rows, n, sh, g0 = 64, 8, 13, 128
        imm = R2 if part == "CD1" else SL
        pre = [f"s_lshl_b32 {d1}, {sRR}, 1", f"s_xor_b32 {d1}, {d1}, {sW}"] + ([f"s_xor_b32 {d1}, {d1}, 4"] if part == "CD2" else [])
    if rot:
        it = dma_rot(sW1, vo1, d1, n, 8 * 3584, g0, d2, imm, "w1" + part, u3)
        pre = pre + [f"s_and_b32 {u3}, {sRR}, 1"] + ([f"s_lshl_b32 {u3}, {u3}, 1"] if n == 16 else [])
    else:
        it = dma(sW1, vo1, d1, [g0 + j * 8 * 3584 for j in range(n)], d2, imm, "w1" + part)
    it[0] = I(pre + [f"s_mul_i32 {d1}, {d1}, {rows * 3584}", f"s_lshl_b32 {d2}, {sM}, 8", f"s_add_u32 {d1}, {d1}, {d2}"] + idle(d1) +
              [f"s_lshl_b32 {d2}, {sW}, {sh}"]) + it[0]
    return it


def asel(n):
    return I([f"v_lshrrev_b32 v{n}, 2, {vL}", f"v_xor_b32 v{n}, v{n}, {vL}", f"v_bfe_u32 v{n}, v{n}, 2, 1",
              f"v_add_u32 v{n}, -1, v{n}", f"v_and_b32 v{n}, 0x3f803f80, v{n}",
              f"v_mov_b32 v{n + 1}, v{n}", f"v_mov_b64 {V(n + 2, 2)}, {V(n, 2)}"])


def table_write(c, tab, va, bias=None, tag=None):
    o = [f"v_cvt_pk_bf16_f32 v{c + 2}, v{c}, v{c}",
         f"v_lshlrev_b32 v{c + 1}, 16, v{c + 2}",
         f"v_sub_f32 v{c + 1}, v{c}, v{c + 1}",
         f"v_and_b32 v{c + 3}, 0xffff, v{c + 2}",
         f"v_cvt_pk_bf16_f32 v{c + 2}, v{c}, v{c + 1}"]
    if bias:
        o.append(f"v_lshl_or_b32 v{c + 3}, {bias}, 16, v{c + 3}")
    o.append(Ins(f"ds_write_b64 {va}, {V(c + 2, 2)} offset:{tab * 1024}", **(dict(xdst=[tag]) if tag else {})))
    return [I(x) for x in o]


def table_addr(va):
    return I([f"s_lshr_b32 {u0}, {sW}, 1", f"s_lshl_b32 {u0}, {u0}, 9", f"s_and_b32 {u1}, {sW}, 1", f"s_lshl_b32 {u1}, {u1}, 3",
              f"s_add_u32 {u0}, {u0}, {u1}", f"s_add_u32 {u0}, {u0}, {TAB0}",
              f"v_and_b32 {va}, 0x1f0, {vL16}", f"v_add_u32 {va}, {u0}, {va}"])


def stats_finish(a, b, c, d, ex, mlp, r, ir):
    o = [f"v_mul_f32 {a}, {fc(-1.0 / 512)}, {a}",
         f"v_mul_f32 {c}, {a}, {a}",
         f"v_fma_f32 {b}, {b}, {u3}, -{c}",
         f"v_cvt_pk_bf16_f32 v{ex}, {a}, {a}",
         f"v_max_f32 {b}, 0, {b}",
         f"v_add_f32 {c}, {fc(EPS)}, {b}",
         f"v_rsq_f32 {r}, {c}",
         f"v_lshlrev_b32 {d}, 16, v{ex}",
         f"v_sub_f32 {d}, {a}, {d}"]
    o = [f"s_mov_b32 {u3}, {fc(1.0 / 512)}"] + o
    if mlp:
        o += [f"v_mul_f32 {b}, {b}, {r}", f"v_mul_f32 {b}, {b}, {r}", f"v_add_f32 {b}, {fc(EPS)}, {b}",
              f"v_rsq_f32 {b}, {b}", f"v_mov_b32 v{ex + 2}, v{ex}", f"v_mul_f32 {r}, {b}, {r}", f"v_rcp_f32 {ir}, {r}",
              f"v_cvt_pk_bf16_f32 v{ex + 1}, {d}, {ir}", f"v_and_b32 {a}, 0xffff0000, v{ex + 1}", f"v_sub_f32 {a}, {ir}, {a}",
              f"v_cvt_pk_bf16_f32 v{ex + 3}, {d}, {a}"]
    else:
        o += [f"v_mov_b32 v{ex + 2}, v{ex}", f"v_cvt_pk_bf16_f32 v{ex + 1}, {d}, {d}", f"v_mov_b32 v{ex + 3}, v{ex + 1}"]
    return [I(x) for x in o]


def x_loads(xoff, stoff, stv):
    setup = I([f"s_lshl_b32 {t1}, {sT}, 2", f"s_add_u32 {t1}, {t1}, {sRR}", f"s_lshl_b32 {t1}, {t1}, 13", f"s_add_u32 {t1}, {t1}, {xoff}", f"s_lshl_b32 {t2}, {sT}, 12", f"s_add_u32 {t2}, {t2}, {stoff}", f"v_lshlrev_b32 v{stv + 15}, 2, {vL}"])
    items = []
    for t in range(32):
        if t == opt("XSP", 16):
            for s in range(0, 16, 4):
                items.append(I([f"buffer_load_dword v{stv + s + e}, v{stv + 15}, {sWS}, {t2} offen offset:{(s + e) * 256} sc1" for e in range(4)]))
        o = []
        if t % 4 == 0:
            o.append(f"s_xor_b32 {t0}, {t1}, {t * 1024}")
        o.append(f"buffer_load_dwordx4 {V(XF + 4 * t)}, {vL16}, {sWS}, {t0} offen offset:{(t % 4) * 1024} sc1{ntm('X')}")
        items.append(I(o))
    return setup, items


def attach(groups, items, start=0, per=1):
    items = list(items)
    for n in range(start, len(groups)):
        for _ in range(per):
            if items:
                groups[n] = groups[n] + I(items.pop(0))
    assert not items
    return groups


def stats_sum(stv, vc=None):
    o = []
    for st in (8, 4, 2, 1):
        for i in range(st):
            o.append(f"v_add_f32 v{stv + i}, v{stv + i}, v{stv + i + st}")
    if vc:
        o += [[f"v_cmp_u_f32 vcc, v{stv}, v{stv}", f"v_mov_b32 v{stv + 1}, v{stv}", "s_nop 0", f"v_cndmask_b32_e64 {vc}, {vc}, -1, vcc"], f"v_permlane32_swap_b32 v{stv}, v{stv + 1}"]
    else:
        o += [f"v_mov_b32 v{stv + 1}, v{stv}", "s_nop 0", f"v_permlane32_swap_b32 v{stv}, v{stv + 1}"]
    return [I(x) for x in o]


def prologue():
    P("s_cmp_ge_u32 s2, 256")
    P("s_cbranch_scc1 L_end")
    P.add(tick("s.start"))
    P("s_load_dwordx16 s[64:79], s[0:1], 0")
    P("s_load_dwordx4 s[80:83], s[0:1], 64")
    P("s_load_dwordx2 s[84:85], s[0:1], 80")
    if opt("CPF", 0):
        P("s_getpc_b64 s[86:87]")
        P.put("L_pc")
        P("v_lshrrev_b32 v16, 3, v0")
        P("s_lshr_b32 s88, s2, 3")
        if opt("CPF", 0) == 1:
            P("v_lshl_add_u32 v16, v16, 5, s88")
        else:
            P("s_lshl_b32 s88, s88, 5")
            P("v_add_u32 v16, s88, v16")
        P("v_lshlrev_b32 v16, 7, v16")
        P("v_min_u32 v16, L_ce-L_pc, v16")
        P("global_load_dword a235, v16, s[86:87]")
    P(f"v_lshrrev_b32 {x0}, 6, v0")
    P("v_and_b32 v0, 63, v0")
    P(f"v_readfirstlane_b32 {sW}, {x0}")
    P("s_and_b32 s3, s2, 7")
    P(f"s_lshl_b32 {sC}, s3, 1")
    P("s_bfe_u32 s3, s2, 0x10003")
    P(f"s_or_b32 {sC}, {sC}, s3")
    P(f"s_lshr_b32 {sM}, s2, 4")
    if opt("MX", 0):
        P(f"s_xor_b32 {sM}, {sM}, {opt('MX', 0)}")
    P(f"v_lshlrev_b32 {vL16}, 4, {vL}")
    P(f"s_lshl_b32 {sT}, {sC}, 2")
    P(f"s_add_u32 {sT}, {sT}, {sW}")
    P(f"v_lshrrev_b32 {x0}, 3, {vL}")
    P(f"v_xor_b32 {x2}, {x0}, {vL}")
    P(f"v_and_b32 {x2}, 7, {x2}")
    P(f"v_lshlrev_b32 {x2}, 4, {x2}")
    P(f"v_lshl_add_u32 {vX0}, {x0}, 10, {x2}")
    P(f"v_xor_b32 {vX1}, 16, {vX0}")
    P(f"v_lshrrev_b32 {x1}, 5, {vL}")
    P(f"v_lshrrev_b32 {voQ}, 2, {vL}")
    P(f"v_mul_u32_u24 {voQ}, 3072, {voQ}")
    P(f"v_and_b32 {x0}, 0x30, {vL16}")
    P(f"v_add_u32 {voQ}, {voQ}, {x0}")
    if KP:
        P.add(I([f"v_bfe_u32 {voK}, {vL}, 2, 3", f"v_mul_u32_u24 {voK}, 3072, {voK}", f"v_add_u32 {voK}, {voK}, {x0}", f"v_lshl_add_u32 {voK}, {x1}, 6, {voK}"] + kp_off(voK)))
    P(f"s_lshl_b32 {t5}, s3, 1")
    P(f"s_and_b32 {t0}, {sM}, 1")
    P(f"s_or_b32 {t5}, {t5}, {t0}")
    P(f"s_bfe_u32 {t0}, {sM}, 0x20001")
    P(f"s_xor_b32 {t5}, {t5}, {t0}")
    ROT = opt("ROT", 0)
    if ROT == 0:
        P(f"s_mov_b32 {t5}, 0")
    elif ROT == 1:
        P(f"s_and_b32 {t5}, {t5}, 1")
        P(f"s_lshl_b32 {t5}, {t5}, 1")
    elif ROT == 2:
        P(f"s_lshl_b32 {t5}, {t5}, 1")
    elif ROT == 3:
        P(f"s_and_b32 {t5}, {t5}, 1")
    elif ROT == 4:
        P(f"s_lshr_b32 {t5}, {sM}, 1")
    elif ROT == 5:
        P(f"s_lshr_b32 {t5}, {sM}, 1")
        P(f"s_lshl_b32 {t0}, s3, 2")
        P(f"s_xor_b32 {t5}, {t5}, {t0}")
    elif ROT == 6:
        P(f"s_and_b32 {t5}, {sM}, 7")
    elif ROT == 7:
        P(f"s_lshr_b32 {t5}, {sM}, 2")
        P(f"s_lshl_b32 {t5}, {t5}, 1")
    elif ROT == 8:
        P(f"s_lshl_b32 {t5}, {t5}, 1")
        P(f"s_lshr_b32 {t0}, {sM}, 3")
        P(f"s_or_b32 {t5}, {t5}, {t0}")
    if opt("ROTX", 0):
        P(f"s_and_b32 {t0}, s2, 7")
        P(f"s_xor_b32 {t5}, {t5}, {t0}")
    P(f"s_lshl_b32 {t3}, {sT}, 15")
    P(f"s_mul_i32 {t4}, {sW}, {16 * 3072}")
    P(f"s_lshl_b32 {d2}, {sM}, 6")
    P(f"s_add_u32 {t4}, {t4}, {d2}")
    P(f"s_lshl_b32 {d2}, {sW}, 10")
    P(f"s_lshl_b32 {d3}, {sW}, 14")
    def srd(n, src, size):
        P(f"s_mov_b64 s[{n}:{n + 1}], s[{src}:{src + 1}]")
        P(f"s_mov_b32 s{n + 2}, {size}")
        P(f"s_mov_b32 s{n + 3}, 0x00020000")
    ini = init_l0()
    P.add(I(ini[0]))
    srd(28, 84, 64 * MB)
    srd(8, 64, 2 * MB)
    srd(12, 66, 512 * 1536 * 2)
    IP = [int(c) for c in OPT.get("IP", "11020")]
    assert sum(IP) == 4
    global INI
    INI = ini[1:5]
    H3 = opt("H3", 0)
    h3 = I([f"s_lshr_b32 {sTI}, s2, 3", f"s_cmp_ge_u32 {sM}, 8", f"s_cselect_b32 {u0}, 4, 0", f"s_sub_u32 {sTI}, {sTI}, {u0}", f"s_lshl_b32 {sTI}, {sTI}, 2", f"s_add_u32 {sTI}, {sTI}, {sW}",
            f"s_lshr_b32 {u0}, {sM}, 1", f"s_cmp_eq_u32 {u0}, 3", f"s_cselect_b32 {sTI}, 0x10000, {sTI}"]) if X3 or H3 else []
    if H3:
        h3 += help3("a232", "v23", u0)
    P.add(I(ini[5:] + INI[:IP[0]] + (h3 if H3 == 3 else []) + x0_items(0) + w0_items(0) + (h3 if H3 == 2 else []) + INI[IP[0]:IP[0] + IP[1]] + x0_items(1) + w0_items(1) + INI[IP[0] + IP[1]:sum(IP[:3])]))
    if H3 < 2:
        P.add(h3)
    INI = [INI[sum(IP[:3]):sum(IP[:4])], INI[sum(IP[:4]):]]
    if opt("TLB", 0):
        lsk = P.label()
        P.add(I([f"s_cmp_lg_u32 {sW}, 3", f"s_cbranch_scc1 {lsk}", f"v_min_u32 v16, 41, {vL}", "v_lshlrev_b32 v16, 20, v16", f"s_lshl_b32 {u0}, s2, 7",
                 f"buffer_load_dword a235, v16, {sWS}, {u0} offen", lsk + ":"]))
    P.add(tick("s.c0"))
    srd(44, 82, 256)
    P(f"s_getreg_b32 {sMODE}, hwreg(HW_REG_XCC_ID, 0, 4)")
    P(f"s_or_b32 {sMODE}, {sMODE}, 0x10")
    P.add(lead_init())
    srd(16, 68, 512 * 512 * 2)
    srd(20, 72, 512 * 1792 * 2)
    srd(24, 76, 1792 * 512 * 2)
    srd(32, 80, 2 * MB)
    srd(36, 78, 1024)
    srd(40, 74, 3584)
    P(f"s_lshr_b32 {u0}, s2, 2")
    P(f"s_xor_b32 {u0}, {u0}, s2")
    P(f"s_bfe_u32 {sRR}, {u0}, 0x20003")
    if not (X3 or H3):
        P(f"s_mov_b32 {sRT}, 1000")
    if not opt("RR", 1):
        P(f"s_mov_b32 {sRR}, 0")
    P(f"v_bfe_u32 {x0}, {vL}, 2, 2")
    P(f"v_lshl_add_u32 {x0}, {x1}, 3, {x0}")
    P(f"v_lshlrev_b32 {x0}, 6, {x0}")
    P(f"v_bfe_u32 {x2}, {vL}, 4, 1")
    P(f"v_lshl_add_u32 {x0}, {x2}, 5, {x0}")
    P(f"v_and_b32 {x2}, 1, {vL}")
    P(f"v_lshl_add_u32 {x0}, {x2}, 4, {x0}")
    P(f"v_bfe_u32 {x2}, {vL}, 1, 1")
    P(f"v_lshl_add_u32 {vTR}, {x2}, 3, {x0}")
    P(f"v_add_u32 {vTR1}, 0x10000, {vTR}")
    P(f"v_lshl_add_u32 {vTP}, {x1}, 9, {vTR}")
    P(f"v_add_u32 {vTP1}, 0x10000, {vTP}")
    P(f"s_and_b32 {t0}, {sM}, 1")
    P(f"s_lshl_b32 {t0}, {t0}, 1")
    P(f"s_lshl_b32 {sTP}, {sC}, 2")
    P(f"s_add_u32 {sTP}, {sTP}, {t0}")
    P(f"s_lshr_b32 {t0}, {sW}, 1")
    P(f"s_add_u32 {sTP}, {sTP}, {t0}")
    P(f"s_and_b32 {u0}, {sM}, 14")
    P(f"s_and_b32 {u1}, {sW}, 1")
    P(f"s_add_u32 {sCT}, {u0}, {u1}")
    P(f"s_mul_i32 {sW2B}, {t0}, {896 * 1024}")
    P(f"s_lshl_b32 {t0}, {u1}, 14")
    P(f"s_add_u32 {sW2B}, {sW2B}, {t0}")
    P(f"s_lshl_b32 {u0}, {u0}, 6")
    P(f"s_add_u32 {sW2B}, {sW2B}, {u0}")
    P(f"v_bfe_u32 {x0}, {vL}, 2, 3")
    P(f"v_and_b32 {x2}, 0x30, {vL16}")
    P(f"v_mul_u32_u24 {vo1}, 3584, {x0}")
    P(f"v_lshl_add_u32 {vo2}, {x0}, 10, {x2}")
    P(f"v_add_u32 {vo1}, {vo1}, {x2}")
    P(f"v_lshl_add_u32 {vo1}, {x1}, 6, {vo1}")
    P(f"v_xor_b32 {x0}, {u1}, {x1}")
    P(f"v_lshl_add_u32 {vo2}, {x0}, 6, {vo2}")
    P(f"v_and_b32 {x0}, 31, {vL}")
    P(f"v_lshlrev_b32 {x2}, 2, {x1}")
    P(f"v_sub_u32 {x0}, {x0}, {x2}")
    for r in range(16):
        P(f"v_cmp_le_i32_e64 {sMASK(r)}, {(r & 3) + 8 * (r >> 2)}, {x0}")
    P(f"v_mov_b32 {x0}, 0xffff")
    P(f"v_mov_b32 {x2}, 0xffff0000")
    for d in range(8):
        P(f"v_cndmask_b32_e64 v16, 0, {x0}, {sMASK(2 * d)}")
        P(f"v_cndmask_b32_e64 v17, 0, {x2}, {sMASK(2 * d + 1)}")
        P(f"v_or_b32 v16, v16, v17")
        P(f"v_accvgpr_write_b32 a{240 + d}, v16")


def init_kv(L, tag):
    it = []
    if L:
        it.append(I(f"s_add_u32 {u2}, {u2}, {LSTRIDE}"))
    for j in range(4):
        it.append(I([f"s_xor_b32 {u2}, {u2}, 4096"] if KP and j == 2 else []) +
                  [Ins(f"buffer_store_dwordx4 a[236:239], {vL16}, {sWS}, {u2} offen offset:{2048 * (j & 1) if KP else 1024 * j} sc1{NK}", xdst=[tag])])
    return it


def init_l0():
    it = [I([f"v_accvgpr_write_b32 a{236 + i}, -1" for i in range(4)] +
            [f"s_lshl_b32 {u2}, {sT}, 4", f"s_add_u32 {u2}, {u2}, {sM}", f"s_lshl_b32 {u2}, {u2}, 12", f"s_add_u32 {u2}, {u2}, {LB(0) + KV_O}"] +
            ([f"s_and_b32 {u0}, {sM}, 1", f"s_lshl_b32 {u0}, {u0}, 10", f"s_add_u32 {u2}, {u2}, {u0}"] if KP else []) +
            ["v_mov_b32 v20, 0", f"s_lshl_b32 {u0}, {sC}, 4", f"s_add_u32 {u0}, {u0}, {sM}", f"s_lshl_b32 {sFP}, {u0}, 7", f"s_add_u32 {sFP}, {sFP}, {MBOX}",
             f"s_lshl_b32 {u0}, {u0}, 2", f"s_add_u32 {sFA}, {u0}, {sW}",
             f"s_lshl_b32 {t1}, {sC}, 9", f"s_lshl_b32 {u0}, {sM}, 2", f"s_add_u32 {t1}, {t1}, {u0}", f"s_add_u32 {t1}, {t1}, {ARR}",
             f"v_lshrrev_b32 v21, 4, {vL}", f"v_and_b32 {vPO}, 15, {vL}", f"v_lshlrev_b32 {vPO}, 2, {vPO}", f"v_lshl_add_u32 v22, v21, 7, {vPO}",
             f"s_or_b32 {t2}, {sM}, {sW}"])]
    it += init_kv(0, "init")
    lsk = P.label()
    it.append(I([f"s_cmp_lg_u32 {t2}, 0", f"s_cbranch_scc1 {lsk}", f"buffer_store_dword v20, v22, {sWS}, {t1} offen sc1", lsk + ":"]))
    it.append([Ins(f"buffer_store_dword v20, off, {sWS}, {sFP} sc1", xdst=["init"])])
    if SP:
        it[opt("SPI", 4)] += I(["v_mov_b64 v[18:19], 0", f"v_lshlrev_b32 v17, 3, {vL}", f"s_lshl_b32 {u1}, {sFA}, 9", f"s_add_u32 {u1}, {u1}, {SFB}",
                                Ins(f"buffer_store_dwordx2 v[18:19], v17, {sWS}, {u1} offen sc1", xdst=["init"])])
    return it


def lead_init():
    lsk = P.label()
    return I([f"s_cmp_lg_u32 {t2}, 0", f"s_cbranch_scc1 {lsk}",
              f"s_min_u32 {u0}, {sC}, 2", f"v_cmp_ge_u32 vcc, {u0}, v21", f"v_cndmask_b32 {vPO}, {vPO}, v22, vcc",
              f"v_lshlrev_b32 v21, 2, {vL}", f"v_lshlrev_b32 v22, 7, {vL}", f"s_lshl_b32 {u0}, {sC}, 8", f"s_add_u32 {u0}, {u0}, {FPACK}", f"s_lshl_b32 {u1}, {sC}, 13",
              f"buffer_store_dword v20, v21, {sWS}, {u0} offen sc1", f"buffer_store_dword v20, v22, {sWS}, {u1} offen sc1", lsk + ":"])


def arrive(vd, so):
    return ["s_mov_b64 exec, 7", f"buffer_store_dword {vd}, {vPX}, {sWS}, {so} offen sc1", "s_mov_b64 exec, -1"]


def misc_l0():
    it = []
    it.append(I([f"v_and_b32 v21, 31, {vL}", f"v_lshrrev_b32 v22, 5, {vL}", "v_lshlrev_b32 v21, 10, v21", "v_lshlrev_b32 v22, 4, v22",
                 "v_add_u32 v21, v21, v22",
                 f"s_lshl_b32 {u0}, {sTP}, 15", f"s_lshl_b32 {u1}, {sCT}, 6", f"s_add_u32 {u0}, {u0}, {u1}"]))
    it.append(I(f"buffer_load_dwordx4 a[224:227], v21, {sX}, {u0} offen"))
    it.append(I(f"buffer_load_dwordx4 a[228:231], v21, {sX}, {u0} offen offset:32"))
    it.append(I(f"buffer_load_dwordx4 a[248:251], v22, {sB2}, {u1} offen"))
    it.append(I(f"buffer_load_dwordx4 a[252:255], v22, {sB2}, {u1} offen offset:32"))
    return it


def touch(srd, total, vt, va, st=u0, sh=7, grp=None):
    share, pb = total // 128, 64 << sh
    it = [I([f"s_lshr_b32 {st}, s2, 3", f"s_lshl_b32 {st}, {st}, 2", f"s_add_u32 {st}, {st}, {sW}", f"s_mul_i32 {st}, {st}, {share}",
             f"v_lshlrev_b32 {va}, {sh}, {vL}"])]
    if X3:
        share = (total + 112 * 128 - 1) // (112 * 128) * 128
        it = [I([f"s_mul_i32 {st}, {sTI}, {share}", f"v_lshlrev_b32 {va}, {sh}, {vL}"])]
    if grp is not None:
        it[0] += I([f"s_bitcmp{grp}_b32 s2, {opt('GB', 3)}", f"s_cselect_b32 {st}, {st}, {OOB}"])
    pos, base = 0, 0
    while pos < share:
        a = min(pos, share - pb)
        assert a >= 0
        o = []
        if a - base >= 4096:
            o.append(f"s_add_u32 {st}, {st}, {a - base}")
            base = a
        o.append(f"buffer_load_dword {vt}, {va}, {srd}, {st} offen offset:{a - base}{ntm(srd)}")
        it.append(I(o))
        pos += pb
    it[1] = it[0] + it[1]
    return it[1:]


def help3(vt, va, st):
    return I([f"s_mul_i32 {st}, {sTI}, 14336", f"v_min_u32 {va}, 13, {vL}", f"v_lshlrev_b32 {va}, 10, {va}",
              f"buffer_load_dword {vt}, {va}, {sWQ}, {st} offen offset:384"])


def touch_ab(vt, va, st, odd=0):
    it = [I([f"s_lshr_b32 {st}, s2, 3", f"s_lshl_b32 {st}, {st}, 2", f"s_add_u32 {st}, {st}, {sW}", f"s_mul_i32 {st}, {st}, 14336",
             f"v_lshrrev_b32 {va}, 2, {vL}", f"v_lshlrev_b32 {va}, 8, {va}", f"buffer_load_dword {vt}, {va}, {sW1}, {st} offen offset:{128 * odd}"])]
    for d in (4096, 4096, 2048):
        it.append(I([f"s_add_u32 {st}, {st}, {d}", f"buffer_load_dword {vt}, {va}, {sW1}, {st} offen offset:{128 * odd}"]))
    return it


def touch_qkv(va, vb):
    return [I([f"s_lshr_b32 {u0}, s2, 3", f"s_lshl_b32 {u0}, {u0}, 2", f"s_add_u32 {u0}, {u0}, {sW}", f"s_mul_i32 {u0}, {u0}, {4 * 3072}",
               f"v_lshrrev_b32 {va}, 4, {vL}", f"v_mul_u32_u24 {va}, 3072, {va}", f"v_and_b32 {vb}, 15, {vL}", f"v_lshl_add_u32 {va}, {vb}, 6, {va}",
               f"v_lshl_add_u32 {vb}, {vb}, 6, {va}",
               f"buffer_load_dword {vb}, {vb}, {sWQ}, {u0} offen offset:1024"] +
              ([f"buffer_load_dword {va}, {va}, {sWQ}, {u0} offen"] if opt("TKV", 0) > 1 else []))]


def touch_wq(vt, st):
    return [I([f"s_lshr_b32 {st}, s2, 3", f"s_mul_i32 {st}, {st}, {16 * 3072}", f"s_lshl_b32 {d0}, {sW}, 8", f"s_add_u32 {st}, {st}, {d0}",
               f"buffer_load_dword {vt}, {voQ}, {sWQ}, {st} offen"]),
            I(f"buffer_load_dword {vt}, {voQ}, {sWQ}, {st} offen offset:128")]


aK, aV, aQ, RING, STV, EX, TABS = 16, 32, 48, 64, 96, 112, 116
HB = XF


def kv_epilogue(L):
    r = x0
    it = []
    PKE = opt("PKE", 0)
    for i in range(16):
        if PKE:
            it.append([] if i & 1 else f"v_pk_mul_f32 {V(aK + i, 2)}, {V(aK + i, 2)}, v[12:13] op_sel:[0,1]")
        else:
            it.append(f"v_mul_f32 v{aK + i}, v{aK + i}, {r}")
    for i in range(8):
        it.append(f"v_cvt_pk_bf16_f32 v{aK + i}, v{aK + 2 * i}, v{aK + 2 * i + 1}")
    it.append([f"s_lshl_b32 {u0}, {sT}, 4", f"s_add_u32 {u0}, {u0}, {sM}", f"s_lshl_b32 {u0}, {u0}, 12", f"s_add_u32 {u0}, {u0}, {LB(L) + KV_O}"])
    it.append(f"buffer_store_dwordx4 {V(aK)}, {vL16}, {sWS}, {u0} offen sc1{NK}")
    it.append(f"buffer_store_dwordx4 {V(aK + 4)}, {vL16}, {sWS}, {u0} offen offset:2048 sc1{NK}")
    for i in range(16):
        if PKE:
            it.append([] if i & 1 else f"v_pk_mul_f32 {V(aV + i, 2)}, {V(aV + i, 2)}, {V(STV + i, 2)}")
        else:
            it.append(f"v_mul_f32 v{aV + i}, v{aV + i}, v{STV + i}")
    for i in range(8):
        it.append(f"v_cvt_pk_bf16_f32 v{aV + i}, v{aV + 2 * i}, v{aV + 2 * i + 1}")
    it.append(f"buffer_store_dwordx4 {V(aV)}, {x2}, {sWS}, {u0} offen offset:1024 sc1{NK}")
    it.append(f"buffer_store_dwordx4 {V(aV + 4)}, {x2}, {sWS}, {u0} offen offset:1536 sc1{NK}")
    it.append([f"s_mul_i32 {u1}, {sW}, {PITCH}", f"s_add_u32 {u1}, {u1}, {SL + 8 * PITCH}"])
    it.append(f"v_add_u32 {x1}, {u1}, {vL16}")
    it.append(f"v_add_u32 {x2}, {u1}, {x2}")
    it.append(f"ds_write_b128 {x1}, {V(aK)}")
    it.append(f"ds_write_b128 {x1}, {V(aK + 4)} offset:2048")
    it.append(f"ds_write_b128 {x2}, {V(aV)} offset:1024")
    it.append(f"ds_write_b128 {x2}, {V(aV + 4)} offset:1536")
    it.append(f"v_mul_f32 {r}, {fc(0.25 * LOG2E)}, {r}")
    return [I(x) for x in it]


def kp_epilogue(L, par):
    it = [[f"s_lshl_b32 {u0}, {sT}, 4", f"s_add_u32 {u0}, {u0}, {sM}", f"s_lshl_b32 {u0}, {u0}, 12", f"s_add_u32 {u0}, {u0}, {LB(L) + KV_O}", f"s_xor_b32 {u1}, {u0}, 4096"]]
    va, offs = (x2, (1024, 1536)) if par else (vL16, (0, 2048))
    for a, so in ((aV, u1), (aK, u0))[::opt("KPO", 1)]:
        for hf in range(2):
            for i in range(8 * hf, 8 * hf + 8, 2):
                it.append(f"v_pk_mul_f32 {V(a + i, 2)}, {V(a + i, 2)}, " + (V(STV + i, 2) if par else "v[12:13] op_sel:[0,1]"))
            for i in range(4 * hf, 4 * hf + 4):
                it.append(f"v_cvt_pk_bf16_f32 v{a + i}, v{a + 2 * i}, v{a + 2 * i + 1}")
            it.append(f"buffer_store_dwordx4 {V(a + 4 * hf)}, {va}, {sWS}, {so} offen offset:{offs[hf]} sc1{NK}")
    it.append([f"s_mul_i32 {u1}, {sW}, {PITCH}", f"s_add_u32 {u1}, {u1}, {SL + 8 * PITCH}"])
    it.append(f"v_add_u32 {x1}, {u1}, {va}")
    it.append(f"ds_write_b128 {x1}, {V(aK)} offset:{offs[0]}")
    it.append(f"ds_write_b128 {x1}, {V(aK + 4)} offset:{offs[1]}")
    it.append(f"v_mul_f32 {x0}, {fc(0.25 * LOG2E)}, {x0}")
    return [I(x) for x in it]


def kmf(a, w, x, c, par):
    return f"{MF} {V(a, 16)}, {V(x if par else w)}, {V(w if par else x)}, {V(a, 16) if c else 0}"


def fork(fn):
    if not KP:
        return P.add(I(fn(None)))
    l1, lj = P.label(), P.label()
    P(f"s_bitcmp1_b32 {sM}, 0")
    P(f"s_cbranch_scc1 {l1}")
    P.add(I(fn(0)))
    if opt("FKI", 0):
        P(f"s_branch {lj}")
        P.put(l1)
        P.add(I(fn(1)))
        return P.put(lj)
    P.put(lj)
    OUTL.extend(I([l1 + ":"]) + [x for x in I(fn(1))] + I(f"s_branch {lj}"))


def r_bcast():
    it = [[f"s_lshl_b32 {u0}, {sW}, 7", f"s_add_u32 {u0}, {u0}, {RBC}"],
          f"v_and_b32 {x1}, 31, {vL}", f"v_lshl_add_u32 {x1}, {x1}, 2, {u0}", f"ds_write_b32 {x1}, {x0}",
          f"v_lshrrev_b32 {x2}, 5, {vL}", f"v_lshl_add_u32 {x1}, {x2}, 4, {u0}"]
    for g in range(4):
        it.append(f"ds_read_b128 {V(STV + 4 * g)}, {x1} offset:{32 * g}")
    it += [f"v_lshlrev_b32 {x2}, 8, {x2}", f"v_and_b32 {x1}, 0xf0, {vL16}", f"v_add_u32 {x2}, {x2}, {x1}",
           f"v_bfe_u32 {x1}, {vL}, 4, 1", f"v_lshl_add_u32 {x2}, {x1}, 11, {x2}"]
    return [I(x) for x in it]


def kv_rd(t):
    if KP:
        return trp(RING + 8 * (t % 4), t * 2048) + trp(RING + 8 * (t % 4) + 4, t * 2048 + 512)
    return tr1(RING + 8 * (t % 4), R0 + t * 1024) + tr1(RING + 8 * (t % 4) + 4, R1 + t * 1024)


def kv_groups(ts, par=None, D=3, lo=0, hi=32):
    g = []
    for k in ts:
        it = []
        t = k + D
        if lo <= t < hi:
            it += kv_rd(t)
        it += I([kmf(aK, RING + 8 * (k % 4), XF + 4 * k, k, par == 1), kmf(aV, RING + 8 * (k % 4) + 4, XF + 4 * k, k, par != 0)])
        g.append(it)
    return g


def kv_pre(t0_, n=3):
    o = []
    for t in range(t0_, t0_ + n):
        o += kv_rd(t)
    return o


def tab_reads(js, va):
    return [I(f"v_add_u32 {va}, {TAB0}, {vL16}")] + [I(f"ds_read_b128 {V(TABS + 4 * j)}, {va} offset:{1024 * j}") for j in js]


def halo_setup(L):
    o = []
    for i, (back, sk, sv) in enumerate(((8, d1, d2), (4, d3, t5))):
        o += [f"s_sub_u32 {u0}, {sT}, {back}", f"s_cselect_b32 {u0}, 0, {u0}", f"s_cselect_b32 {u1}, 0x200, -1", f"s_cselect_b32 {u2}, {OOB}, 0",
              f"s_lshl_b32 {u0}, {u0}, 4", f"s_add_u32 {u0}, {u0}, {sM}", f"s_lshl_b32 {u0}, {u0}, 12", f"s_add_u32 {sk}, {u0}, {LB(L) + KV_O}",
              f"s_add_u32 {sv}, {sk}, {u2}", f"v_and_b32 v{STV + i}, {u1}, {vL16}"]
    if KP:
        o += [f"s_lshl_b32 {u0}, {sT}, 4", f"s_add_u32 {u0}, {u0}, {sM}", f"s_lshl_b32 {u0}, {u0}, 12", f"s_and_b32 {u1}, {sM}, 1", f"s_lshl_b32 {u1}, {u1}, 10",
              f"s_sub_u32 {u0}, {u0}, {u1}", f"s_add_u32 {t4}, {u0}, {LB(L) + KV_O + 1024}"]
    return [I(o)]


PLR = 160


def halo_loads():
    o = [f"buffer_load_dwordx4 {V(PLR + 4 * h)}, {vL16}, {sWS}, {t4} offen offset:{2048 * h} sc1{ntm('KV')}" for h in range(2 if KP else 0)]
    for i, (sk, sv) in enumerate(((d1, d2), (d3, t5))):
        for j in range(4):
            va, so = (f"v{STV + i}", sk) if j % 2 == 0 else (vL16, sv)
            o.append(f"buffer_load_dwordx4 {V(HB + 16 * i + 4 * j)}, {va}, {sWS}, {so} offen offset:{1024 * j} sc1{ntm('KV')}")
    if KP and opt("PLL", 0):
        o = o[2:] + o[:2]
    return [I(x) for x in o]


def lead_try(chk, iss, ta, tb, final=False):
    lsk, lag, lp = P.label(), P.label(), P.label()
    o = [f"s_cmp_lg_u32 {t2}, 0", f"s_cbranch_scc1 {lsk}"]
    if final:
        o += [f"s_mov_b32 {sCNT}, 30000"]
    if chk:
        o += [f"v_accvgpr_read_b32 {ta}, {chk}"] + ([lp + ":"] if final else [])
        o += [f"v_cmp_eq_u32 vcc, 0, {ta}", f"s_cbranch_vccnz {lag}",
              f"v_cmp_ne_u32 vcc, {sMODE}, {ta}", f"v_lshlrev_b32 {tb}, 7, {vL}", f"s_lshl_b32 {u1}, {sC}, 2", f"s_and_b32 {u0}, vcc_lo, 0xffff", f"s_cselect_b32 {t2}, 1, 2",
              f"v_mov_b32 {ta}, {t2}", "s_mov_b64 exec, 0xffff", f"buffer_store_dword {ta}, {tb}, {sWS}, {sFP} offen sc1",
              "s_mov_b64 exec, 1", f"buffer_store_dword {ta}, off, {sDBG}, {u1} sc1", "s_mov_b64 exec, -1"]
        if final:
            OUTL.extend(I([lag + ":", f"v_mov_b32 {ta}, {sMODE}", f"v_lshrrev_b32 {tb}, 7, {vPO}", f"v_sub_u32 {tb}, {sC}, {tb}", f"v_lshlrev_b32 {tb}, 2, {tb}"] + arrive(ta, t1) +
                          [f"buffer_load_dword {ta}, {vPO}, {sWS}, {t1} offen sc1", f"buffer_load_dword {tb}, {tb}, {sDBG}, 0 offen sc1",
                           f"v_or_b32 {ta}, {ta}, {tb}", f"s_sub_u32 {sCNT}, {sCNT}, 1", f"s_cbranch_scc0 {lp}", "s_endpgm"]))
        elif iss:
            o += [f"s_branch {lsk}", lag + ":"]
        else:
            o += [lag + ":"]
    if iss:
        o += [f"buffer_load_dword {iss}, {vPO}, {sWS}, {t1} offen sc1"]
    return I(o + [lsk + ":"])


def handshake_issue():
    return [I([f"s_buffer_load_dword {t3}, {sWS}, {sFP} glc"])]


def handshake_check():
    b, c = f"v{STV + 3}", f"v{STV + 4}"
    ls, lr, lp = P.label(), P.label(), P.label()
    l2 = P.label()
    OUTL.extend(I([ls + ":", f"s_mov_b32 {sCNT}, 30003", f"v_mov_b32 {b}, {sMODE}", lp + ":", f"s_buffer_load_dword {t3}, {sWS}, {sFP} glc",
                   f"s_cmp_lg_u32 {t3}, 0", f"s_cbranch_scc1 {lr}",
                   f"s_and_b32 {u0}, {sCNT}, 3", f"s_or_b32 {u0}, {u0}, {sW}", f"s_cbranch_scc1 {l2}"] + arrive(b, t1) +
                  [l2 + ":", f"s_sub_u32 {sCNT}, {sCNT}, 1", f"s_cbranch_scc0 {lp}", "s_endpgm"]))
    o = [f"s_cmp_eq_u32 {t3}, 0", f"s_cbranch_scc1 {ls}", lr + ":"]
    it = [I(o)]
    o = [f"s_cmp_eq_u32 {t3}, 1"]
    if OPT.get("SLOW"):
        o.append("s_cmp_eq_u32 0, 0")
    o += [f"s_cselect_b32 {sMODE}, 0, 1", f"s_cselect_b32 {u0}, 7, {opt('FSH', 2)}", f"s_cselect_b32 {u1}, 0, {FPACK if opt('FSH', 2) == 2 else 0}",
          f"s_lshl_b32 {sFA}, {sFA}, {u0}", f"s_add_u32 {sFA}, {sFA}, {u1}",
          f"s_lshl_b32 {sFP}, {sC}, 6", f"s_lshl_b32 {sFP}, {sFP}, {u0}", f"s_add_u32 {sFP}, {sFP}, {u1}"]
    it.append(I(o))
    it.append(I([f"s_lshr_b32 {u1}, {sW}, 1", f"s_lshl_b32 {u1}, {u1}, 2", f"s_and_b32 {u2}, {sW}, 1", f"s_lshl_b32 {u3}, {u2}, 1", f"s_add_u32 {u1}, {u1}, {u3}",
                 f"v_and_b32 {b}, 14, {vL}", f"v_and_b32 {c}, 1, {vL}", f"v_lshl_add_u32 {b}, {b}, 2, {c}", f"v_add_u32 {b}, {u1}, {b}",
                 f"v_lshlrev_b32 {vPX}, {u0}, {b}"]))
    if P3N:
        it.append(I([f"s_lshr_b32 {u1}, {sW}, 1", f"s_xor_b32 {u1}, {u1}, {sRR}", f"s_and_b32 {u1}, {u1}, 1", f"s_add_u32 {u1}, {u1}, {u3}", f"s_lshl_b32 {u1}, {u1}, 4",
                     f"s_and_b32 {u2}, {sTP}, 2", f"s_add_u32 {u1}, {u1}, {u2}",
                     f"v_and_b32 {b}, 6, {vL}", f"v_lshl_add_u32 {b}, {b}, 1, {c}", f"v_add_u32 {b}, {u1}, {b}", f"v_lshlrev_b32 {vPO}, {u0}, {b}"]))
    else:
        it.append(I([f"s_lshl_b32 {u2}, {u2}, 5", f"s_and_b32 {u1}, {sTP}, 3", f"s_add_u32 {u1}, {u1}, {u2}",
                     f"v_and_b32 {b}, 7, {vL}", f"v_lshl_add_u32 {b}, {b}, 2, {u1}", f"v_lshlrev_b32 {vPO}, {u0}, {b}"]))
    it.append(I([f"s_lshr_b32 {u1}, {sW}, 1", f"s_mul_i32 {u1}, {u1}, 28", f"s_and_b32 {u2}, {sTP}, 2", f"s_add_u32 {u1}, {u1}, {u2}",
                 f"v_bfe_u32 {b}, {vL}, 1, 3", f"v_min_u32 {b}, 6, {b}", f"v_lshl_add_u32 {b}, {b}, 2, {c}", f"v_add_u32 {b}, {u1}, {b}",
                 f"v_lshlrev_b32 {vPH}, {u0}, {b}"]))
    return it


PRE = opt("PRE", 0)


def att_pre():
    KA, VA, PM, KD = 24, 25, 32, 192
    b = [f"s_mul_i32 {u0}, {sW}, {PITCH}", f"s_add_u32 {u0}, {u0}, {SL}"]
    it = [(1, b + [f"v_add_u32 v{KA}, {u0}, {vL16}", f"v_and_b32 v30, 0xf0, {vL16}", f"v_lshrrev_b32 v31, 5, {vL}", "v_lshl_add_u32 v30, v31, 8, v30",
                   f"v_add_u32 v30, {u0}, v30", f"v_bfe_i32 v31, {vL}, 4, 1"])]
    it.append((1, b + [x for hs in range(4) for x in (f"s_add_u32 {u1}, {u0}, {4096 - (2048 * (hs >> 1) + 1024 + 512 * (hs & 1))}", f"v_bfi_b32 v{VA + hs}, v31, {u1}, v30")]))
    it.append((1, b + [f"v_lshrrev_b32 v30, 2, {vL}", "v_min_u32 v30, 2, v30", "v_lshlrev_b32 v31, 2, v30", f"v_add_u32 v31, {sT}, v31", "v_cmp_le_u32 vcc, 8, v31",
                       f"v_mul_u32_u24 v30, {4 * PITCH}, v30", f"v_and_b32 v31, 3, {vL}", "v_lshl_add_u32 v30, v31, 2, v30", f"v_add_u32 v30, {u0}, v30",
                       "v_mov_b32 v31, 0x3f803f80", "v_cndmask_b32 v31, 0, v31, vcc", "ds_write_b32 v30, v31 offset:4096"]))
    it += [(1, f"v_accvgpr_read_b32 v{PM + d}, a{240 + d}") for d in range(8)]
    return it


def att_pre2():
    KA, VA, KD = 24, 25, 192
    if KP:
        return []
    it = [(opt("PR2", 26), f"ds_read_b128 {V(KD + 4 * h)}, v{KA} offset:{PITCH * 8 + 2048 * h}") for h in range(2)]
    it += [(opt("PR2", 26), f"ds_read_b128 {V(n + 4 * s)}, v{VA + 2 * h + s} offset:{PITCH * 8 + 2048 * h + 1024 + 512 * s}") for h, n in ((0, 112), (1, 200)) for s in range(2)]
    return it


def phase1(L):
    extq = f"{MF} {V(aQ, 16)}, {V(TABS + 8)}, {V(EX)}, {V(aQ, 16)}"
    vtq = "v23" if PRE else "v119"
    def ext(par): return I([kmf(aK, TABS, EX, 1, par == 1), kmf(aV, TABS + 4, EX, 1, par != 0)])
    D = 6
    qg = []
    for k in range(32):
        it = tr1(RING + 4 * ((k + D) % 8), R2 + (k + D) * 1024) if k + D < 32 else []
        qg.append(it + I(f"{MF} {V(aQ, 16)}, {V(RING + 4 * (k % 8))}, {V(XF + 4 * k)}, {V(aQ, 16) if k else 0}"))
    for k in range(3, 32, 4):
        qg[k] += tick(f"{L}.zq{k}")
    qpre = []
    for t in range(D):
        qpre += tr1(RING + 4 * t, R2 + t * 1024)
    HL = opt("HL", 20)
    if L == 0:
        AS, S1, S2, CK, CV, CF = 124, 96, 100, 104, 108, 48
        P.add(asel(AS))
        for i in range(4):
            P(f"v_mov_b32 v{S2 + i}, 0")
        P(f"v_lshrrev_b32 {x0}, 5, {vL}")
        P(f"v_bfe_u32 {x1}, {vL}, 3, 1")
        P(f"v_xor_b32 {x0}, {x0}, {x1}")
        P(f"v_xor_b32 {x0}, {x0}, {vL}")
        P(f"v_and_b32 {x0}, 7, {x0}")
        P(f"v_and_b32 {x1}, 31, {vL}")
        P(f"v_lshlrev_b32 {x1}, 7, {x1}")
        P(f"v_lshl_add_u32 {x0}, {x0}, 4, {x1}")
        P(f"s_add_u32 {t0}, {d3}, {SL}")
        P(f"v_add_u32 v{XA}, {t0}, {x0}")
        for k in range(1, 4):
            P(f"v_xor_b32 v{XA + k}, {32 * k}, v{XA}")
        P(f"v_lshl_add_u32 {x1}, {d2}, 1, {vTP}" if KP else f"v_add_u32 {x1}, {d2}, {vTR}")
        P.add(table_addr(x2))
        P(f"v_mov_b32 v118, {sMODE}")
        P(f"v_mul_u32_u24 {vPX}, 640, {vL}")
        P.add(tick("s.setup"))
        TS = opt("TS", 5)
        tw2 = touch(sW2, 1792 * 1024, "a232", vPH, t0, TS)
        tw2b = touch(sW2, 1792 * 1024, "a232", vtq, t0, TS)
        TW = [int(c, 16) for c in OPT.get("TW", "000000003")]
        I1 = [int(c) for c in OPT.get("I1", "001111000")]
        def mkstrm():
            tw2 = touch(sW2, 1792 * 1024, "a232", vPH, t0, TS)
            i1 = init_kv(1, "init1")
            i1 = [i1[0] + i1[1]] + i1[2:]
            if opt("NOI1", 0):
                i1 = []
            wq = sum((w0_items(h, (2,), "wq") for h in range(8)), [])
            WQ1 = opt("WQ1", 5)
            strm = {h: x0_items(h) + w0_items(h) for h in range(2, 8)}
            strm.update({8: wq[:WQ1], 9: wq[WQ1:], 10: []})
            strm[2] = INI[0] + strm[2]
            strm[3] = INI[1] + strm[3]
            if opt("TQ", 4):
                strm[opt("TQ", 4)] += touch_wq("a232", u0)
            for n in range(2, 11):
                strm[n] = i1[:I1[n - 2]] + strm[n] + tw2[:TW[n - 2]]
                tw2, i1 = tw2[TW[n - 2]:], i1[I1[n - 2]:]
            assert not i1
            return strm, tw2
        assert not (KP and INI[1])
        strm, tw2 = mkstrm()
        SIG = 3 if INI[1] else (2 if INI[0] else opt("SIG", 1))
        LT0 = opt("LT0", SIG + 1)
        def sync(h):
            o = [need_ins(f"x{h}")]
            o += [f"ds_read_b128 {V(XF + 16 * h + 4 * t)}, v{XA + t} offset:{4096 * (h & 3)}" for t in range(4)]
            if h >= LT0:
                o += lead_try(f"a{233 + (h & 1)}" if h >= LT0 + 2 else None, f"a{233 + (h & 1)}", "v114", "v115")
            o += [need_ins(f"kv{h}")] + tr("v", CF + 8 * (h & 1), x1, (8192 if KP else 4096) * h) + tr("v", CF + 8 * (h & 1) + 4, x1, 8192 * h + 512 if KP else R1 + 4096 * h)
            if h >= SIG and (h - SIG) % opt("SIGS", 2) == 0:
                lsk = P.label()
                o += [f"s_cmp_lg_u32 {sW}, {1 + (h >> 1) % 3}", need_ins("init"), "s_barrier", f"s_cbranch_scc1 {lsk}"] + arrive("v118", t1) + [lsk + ":"]
            else:
                o += ["s_barrier"]
            return I(o) + tick(f"s.b{h}")
        def stats(h):
            o = []
            for t in range(4 * h, 4 * h + 4):
                o.append(I([f"v_dot2c_f32_bf16 v{S2 + j}, v{XF + 4 * t + j}, v{XF + 4 * t + j}" for j in range(4)] +
                           [f"{MF16} {V(S1)}, {V(AS)}, {V(XF + 4 * t)}, {V(S1) if t else 0}"]))
            return [I([f"{MF16} {V(CK)}, {V(AS)}, {V(CF + 8 * (h & 1))}, {V(CK) if h else 0}",
                       f"{MF16} {V(CV)}, {V(AS)}, {V(CF + 8 * (h & 1) + 4)}, {V(CV) if h else 0}"]) + o[0], o[1] + o[2], o[3]]
        PFD = opt("PFD", 0)
        for n in range(PFD):
            P.add(I(strm[2 + n]))
        P.add(sync(0))
        P.add(kv_pre(0))
        P.add(I(spread(stats(0), strm[2 + PFD], 0.0 if PFD < 2 else 0.99, 0.7 if PFD < 2 else 1)))
        QX = opt("QX", 0)
        def kv0(par):
            strm = mkstrm()[0]
            g = kv_groups(range(32), par)
            for i in range(8):
                lt = strm.get(i + 3 + PFD, [])
                if i < 7 and PFD == 2:
                    g[4 * i] += sync(i + 1)
                    for e in range(3):
                        g[4 * i + 1 + e] += stats(i + 1)[e]
                    g[4 * i + 3] += I(lt)
                elif i < 7:
                    g[4 * i] += sync(i + 1)
                    n = (len(lt) + 2) // 3
                    for e in range(3):
                        g[4 * i + 1 + e] += I(lt[n * e:n * e + n]) + stats(i + 1)[e]
                else:
                    attach(g, lt, 28, max(1, (len(lt) + 3) // 4))
            fin = [f"v_add_f32 v{S2}, v{S2}, v{S2 + 1}", f"v_add_f32 v{S2 + 2}, v{S2 + 2}, v{S2 + 3}", f"v_add_f32 v{S2}, v{S2}, v{S2 + 2}",
                   f"v_mov_b32 v{S2 + 1}, v{S2}", f"v_permlane32_swap_b32 v{S2}, v{S2 + 1}", f"v_add_f32 v{S2}, v{S2}, v{S2 + 1}"]
            fin = [I(x) for x in fin] + stats_finish(f"v{S1}", f"v{S2}", f"v{S2 + 1}", f"v{S2 + 2}", EX, False, x0, None)
            fill = table_write(CK, 0, x2) + table_write(CV, 1, x2) + [(2, lead_try("a233", None, "v114", "v115"))] + [(2, x) for x in fin[:6]] + [barrier()] + tab_reads([0, 1], x2) + fin[6:] + (r_bcast() if par != 0 else [])
            return I(g[:26]) + weave(g[26:], fill) + tick("s.kv") + [need_ins("init1")] + ext(par) + I(kp_epilogue(0, par) if KP else kv_epilogue(0))
        fork(kv0)
        if QX:
            assert PRE
            P.add(I(handshake_issue()))
        P.add(lead_try("a234", None, "v116", "v117", True))
        P.add(tick("0.kv"))
        CQ = 104
        P(f"v_add_u32 {x1}, {d2}, {vTR1}")
        P.add(table_addr(x2))
        P.need("wq")
        for h in range(8):
            P.add(tr("v", 16 + 4 * h, x1, 4096 * h))
        P("s_barrier")
        P.add(qpre)
        for j in range(8):
            P(f"{MF16} {V(CQ)}, {V(AS)}, {V(16 + 4 * j)}, {V(CQ) if j else 0}")
        tw2 = tw2b[len(tw2b) - len(tw2):]
        if tw2:
            tw2[0] = I(f"v_lshlrev_b32 {vtq}, {TS}, {vL}") + tw2[0]
        hc = [(opt("HSC", 16), x) for x in handshake_check()]
        fill = [(1, x) for x in table_write(CQ, 2, x2)] + [(opt("HSI", 6), x) for x in handshake_issue()] + [(8, barrier())] + tab_reads([2], x2) + ([(12, extq)] if PRE else [])
        if opt("HF", 0):
            fill += halo_setup(0) + hc[:1] + [(HL, x) for x in halo_loads()] + hc[1:] + misc_l0()
        else:
            fill += hc + halo_setup(0) + [(HL, x) for x in halo_loads()] + misc_l0()
        if PRE:
            ap = [x for _, x in att_pre()]
            for n, x in zip((2, 3, 5, 7, 7, 7, 7, 9, 9, 9, 9), ap):
                qg[n] += I(x)
        if opt("T0", 0) == 1:
            fill += touch(sWO, 512 * 1024, "a232", "v119", t0, min(TS, 6)) + touch(sW1, 1792 * 1024, "a232", "v119", t0, opt("TS1", 5))
        elif opt("T0", 0) == 2:
            fill += tw2[:opt("TW2N", 0)] + touch(sW1, 1792 * 1024, "a232", "v119", t0, opt("TS1", 5))
        elif opt("QT", 0):
            fill += tw2 + touch(sWO, 512 * 1024, "a232", vtq, t0, min(TS, 6))
        if PRE:
            for n, x in att_pre2():
                qg[n] += I(x)
        P.add(tick("0.qs"))
        if QX:
            def place(n, items, per=1):
                for j, x in enumerate(items):
                    qg[min(31, n + int(j / per))] += I(x)
            place(1, table_write(CQ, 2, x2), 6)
            place(4, halo_setup(0))
            hc = [x for _, x in hc]
            place(8, [barrier() + hc[0] + I(tab_reads([2], x2))])
            place(10, hc[1:])
            place(14, [extq])
            ms = misc_l0()
            tt = tw2 + touch(sWO, 512 * 1024, "a232", vtq, t0, min(TS, 6))
            place(HL, halo_loads()[:8], opt("HLP", 4))
            place(opt("HL3", 12), halo_loads()[8:], 2)
            assert not 10 <= opt("MSP", 24) <= 13
            place(opt("MSP", 24), [I(ms)])
            place(opt("TTP", 26), tt, opt("TTR", 10) / 10)
            P.add(I(qg))
        else:
            P.add(weave(qg, fill))
    else:
        WQL = opt("WQL", 0)
        wql = []
        if not opt("WQE", 0) and not opt("WQ3", 0):
            P.add(wq_setup())
            if KP:
                P.add(I([f"v_lshrrev_b32 {voQ}, 2, {vL}", f"v_mul_u32_u24 {voQ}, 3072, {voQ}", f"v_and_or_b32 {voQ}, {vL16}, 48, {voQ}"]))
            wql = wq_items([2])
            P.add(I(wql[:8 - WQL]))
            wql = wql[8 - WQL:]
        P.add(I(tab_reads([0, 1, 2], x2)))
        back, vc = P.label(), (f"v{aQ}" if EF & 8 else None)
        P.put(back)
        P.add(kv_pre(0))
        xs, xi = x_loads(LB(1) + XIN_O, LB(1) + ST2_O, STV)
        NB = opt("NB", 14)
        P.add(xs)
        P.add(poll(vPX, x1, 8))
        P.add(tick("1.pollx"))
        P.add(I(xi[:NB]))
        P.add(tick("1.xiss"))
        s = [f"v{STV + i}" for i in range(4)]
        ke = [] if KP else kv_epilogue(1)
        KE = opt("KE", 0)
        def kv1(par):
            fill = stats_sum(STV, vc) + stats_finish(s[0], s[1], s[2], s[3], EX, False, x0, None) + (r_bcast() if par != 0 else [])
            xi = x_loads(LB(1) + XIN_O, LB(1) + ST2_O, STV)[1]
            if opt("TWO", 0):
                xi += touch(sWO, 512 * 1024, f"v{aQ}", f"v{aQ + 1}", d0, opt("TWO", 0))
            g = attach(kv_groups(range(32), par), xi[NB:] + inits("k", aQ + 4) + (wq_items([2])[8 - WQL:] if wql else []))
            if vc:
                for n, x in chain(vc, XF, 32):
                    g[n] += I(x)
            return weave(g, [(opt("XSP", 16) + 2, x) for x in fill]) + (redo(vc, back) if vc else []) + ext(par) + tick("1.kv") + I(kp_epilogue(1, par) if KP else ke[:KE])
        fork(kv1)
        P.add(tick("1.ke"))
        P.add(barrier("wq"))
        P.add(tick("1.B1"))
        P.add(qpre)
        fill = [(1, x) for x in ke[KE:]] + halo_setup(1) + [(opt("HL1", HL), x) for x in halo_loads()[:8]]
        if PRE:
            qg[0] += I(extq)
            fill += att_pre() + att_pre2()
        fill += [(opt("HL2", 22), x) for x in halo_loads()[8:]]
        P.add(weave(qg, fill))
    P.add(tick(f"{L}.zqe"))
    if not PRE:
        P(extq)
```

```python
from k2_base import *
from k2_p1 import *

B1V, CC, CD_, AS4 = 48, 52, 56, 60
OM = OPT.get("OM", "").replace("_", " ")


def tile_out(x, pk, tmp, bit, pub, ini):
    XE = opt("XE", 1)
    if XE == 0:
        P.add(pub)
    for i in range(8):
        P(f"v_cvt_pk_bf16_f32 v{pk + i}, v{x + 2 * i}, v{x + 2 * i + 1}")
    P.add(xstore(f"buffer_store_dwordx4 {V(pk)}, {vL16}, {sWS}, {t1} offen", bit, ini=ini))
    P.add(xstore(f"buffer_store_dwordx4 {V(pk + 4)}, {vL16}, {sWS}, {t1} offen offset:1024", bit))
    if XE == 1:
        P.add(pub)
    a, b = V(tmp, 2), V(tmp + 2, 2)
    P(f"v_pk_add_f32 {a}, {V(x, 2)}, {V(x + 2, 2)}")
    P(f"v_pk_mul_f32 {b}, {V(x, 2)}, {V(x, 2)}")
    for i in range(1, 8):
        if i >= 2:
            P(f"v_pk_add_f32 {a}, {a}, {V(x + 2 * i, 2)}")
        P(f"v_pk_fma_f32 {b}, {V(x + 2 * i, 2)}, {V(x + 2 * i, 2)}, {b}")
    P(f"v_add_f32 v{tmp}, v{tmp}, v{tmp + 1}")
    P(f"v_add_f32 v{tmp + 2}, v{tmp + 2}, v{tmp + 3}")
    P(f"v_permlane32_swap_b32 v{tmp}, v{tmp + 2}")
    P(f"v_add_f32 v{tmp}, v{tmp}, v{tmp + 2}")
    P.add(xstore(f"buffer_store_dword v{tmp}, {x2}, {sWS}, {t2} offen", bit))
    if XE == 2:
        P.add(pub)


def tile_addr(xo, so):
    return I([f"s_lshl_b32 {t2}, {sTP}, 4", f"s_add_u32 {t2}, {t2}, {sCT}", f"s_lshl_b32 {t1}, {t2}, 11", f"s_add_u32 {t1}, {t1}, {xo}",
              f"s_lshl_b32 {t2}, {t2}, 8", f"s_add_u32 {t2}, {t2}, {so}", f"v_lshlrev_b32 {x2}, 2, {vL}"])


def b1_loads():
    return I([f"v_and_b32 {x1}, 0x13, {vL}", f"v_bfe_u32 {x2}, {vL}, 2, 1", f"v_lshl_add_u32 {x1}, {x2}, 3, {x1}", f"v_bfe_u32 {x2}, {vL}, 3, 1",
              f"v_lshl_add_u32 {x1}, {x2}, 2, {x1}", f"v_lshlrev_b32 {x1}, 1, {x1}", f"s_lshl_b32 {t1}, {sM}, 8", f"s_cmp_ge_u32 {sW}, 2", f"s_cselect_b32 {t1}, {OOB}, {t1}"] +
             [f"buffer_load_ushort v{B1V + e}, {x1}, {sB1}, {t1} offen offset:{64 * e}" for e in range(4)])


def phase3n(L, late_rd):
    o = lambda n, d: opt(f"{n}_{L}", opt(n, d))
    a0, OF, WO = 16, 64, 128
    AB = [a0, 192, 208, 224]
    wa = [f"v{32 + i}" for i in range(5)]
    v4k = "v37"
    P.add(I([f"s_lshr_b32 {t3}, {sW}, 1", f"s_xor_b32 {t3}, {t3}, {sRR}", f"s_and_b32 {t3}, {t3}, 1", f"s_and_b32 {t4}, {sW}, 1", f"s_lshl_b32 {t4}, {t4}, 1",
             f"s_add_u32 {t3}, {t3}, {t4}", f"s_lshl_b32 {t4}, {sTP}, 2", f"s_add_u32 {t3}, {t3}, {t4}", f"s_lshl_b32 {t3}, {t3}, 13",
             f"s_add_u32 {t3}, {t3}, {LB(L) + O_O}", f"s_xor_b32 {t4}, {t3}, 0x8000", f"v_add_u32 {v4k}, 0x1000, {vL16}"]))
    if L == 0:
        P.add(I(late_rd))
        P.add(I(wo_reads(x0)))
        P.add(b1_loads())
        P.add(I([x for d in range(8) for x in (f"v_accvgpr_read_b32 {x2}, a{224 + d}", f"v_lshlrev_b32 v{a0 + 2 * d}, 16, {x2}", f"v_and_b32 v{a0 + 2 * d + 1}, 0xffff0000, {x2}")]))
    else:
        if opt("ABT", 1):
            P.add(I(wo_reads(x0)))
        P.add(I([f"v_accvgpr_read_b32 v{a0 + i}, a{224 + i}" for i in range(16)]))
    for i in range(5):
        n = i & 3 if i < 4 else 0
        hi = i == 3 or i == 4
        P.add(I([f"s_xor_b32 {u0}, {sW}, {n}", f"s_lshl_b32 {u0}, {u0}, {12 if hi else 13}", f"s_add_u32 {u0}, {u0}, {SCR3 if hi else SL + 4096 * max(0, n - 1)}",
                 f"v_add_u32 {wa[i]}, {u0}, {vL16}"]))
    P.add(tile_addr(LB(L) + X1_O, LB(L) + ST1_O))
    fill = (w1_items("AB") + w1_items("CD1")) if L == 0 else (w1_items("CD1", opt("DR", 0) & 4) if opt("C1P", 0) == 2 else [])
    if L and opt("ABT", 1):
        fill = w1_items("AB")
    if L == 0 or opt("ABT", 1):
        fill[0] = [need_ins("ds_any")] + fill[0]
    FE, FM = o("FE", 0), o("FM", 0)
    P.add(I(fill[:FE]))
    P.add(publish(16 * L + 2, x1, "o1"))
    P.add(tick(f"{L}.p2end"))
    def of(ks, tt): return OF + (ks * 2 + tt) * 4
    def oloads(h): return [f"buffer_load_dwordx4 {V(of(ks, tt))}, {v4k if ks >= 4 else vL16}, {sWS}, {t4 if tt else t3} offen offset:{(ks & 3) * 1024} sc1"
                           for ks in range(h, 8, 2) for tt in range(2)]
    def mf(ks, n):
        a = V(AB[n], 16)
        return f"{MF} {a}, {V(WO + (ks * 2 + (n & 1)) * 4)}, {V(of(ks, n >> 1))}, {a if (ks or n == 0) else 0}"
    P.add(poll_check(vPO, "v56", 16 * L + 1))
    P.add(tick(f"{L}.yck0"))
    P.add(I(oloads(0)))
    P.add(I(fill[FE:FM]))
    P.add(poll_issue(vPO, "v56"))
    P.add(barrier())
    P.add(tick(f"{L}.B3"))
    NT, NH0 = o("NT3", 2), o("NH0", 12)
    g = [mf(ks, n) for ks in (0, 2, 4, 6) + (1, 3, 5, 7)[:4 - NT] for n in range(4)]
    P.add(I(g[:NH0]))
    P.add(tick(f"{L}.ymf0"))
    P.add(poll_check(vPO, "v56", 16 * L + 2))
    P.add(tick(f"{L}.pollo"))
    P.add(I(oloads(1)))
    g = g[NH0:]
    wr = []
    for n in (3, 2, 1, 0):
        for e, ks in enumerate((1, 3, 5, 7)[4 - NT:]):
            g.append(mf(ks, n))
            if e >= 1 or NT == 1:
                k = (len(wr) + (NT - e) - 1) // (NT - e)
                g.append(wr[:k]); wr = wr[k:]
        if n:
            wr = [f"ds_write_b128 {wa[n]}, {V(AB[n] + 4 * j)} offset:{1024 * j}" for j in range(4)]
    P.add(I(spread(g, fill[max(FE, FM):], 0.0, 1.0)))
    P.add(tick(f"{L}.p3mm"))
    P.add(barrier())
    P.add(tick(f"{L}.yB4"))
    for j in range(12):
        P(f"ds_read_b128 {V(OF + 4 * j)}, {wa[0 if j < 8 else 4]} offset:{1024 * (j & 7 if j < 8 else j - 8)}")
    for p in range(3):
        for i in range(8):
            P(f"v_pk_add_f32 {V(a0 + 2 * i, 2)}, {V(a0 + 2 * i, 2)}, {V(OF + 16 * p + 2 * i, 2)}")
    tile_out(a0, OF + 16, OF + 24, 2 << (4 * L), [], None)
    P.add(tick(f"{L}.yst"))
    r4 = []
    if L == 0:
        d4, r4 = w2_round(4, x0)
        P.add(I(d4))
    elif o("CD2P", 1) == 0:
        P.add(I(w1_items("CD2")))
    for d in range(8):
        P(f"v_accvgpr_read_b32 {x1}, a{248 + d}")
        P(f"v_lshlrev_b32 v{OF}, 16, {x1}")
        P(f"v_and_b32 v{OF + 1}, 0xffff0000, {x1}")
        P(f"v_pk_add_f32 {V(a0 + 2 * d, 2)}, {V(a0 + 2 * d, 2)}, {V(OF, 2)}")
        P(f"v_accvgpr_write_b32 a{224 + 2 * d}, v{a0 + 2 * d}")
        P(f"v_accvgpr_write_b32 a{225 + 2 * d}, v{a0 + 2 * d + 1}")
    P.add(publish(16 * L + 3, x1))
    P.add(tick(f"{L}.p3end"))
    return r4


def phase3(L, late_rd):
    if P3N:
        return phase3n(L, late_rd)
    a0, a1, OF, WO = 16, 32, 64, 128
    vp, vc = "v53", "v54"
    P(f"s_and_b32 {t0}, {sW}, 1")
    P(f"s_lshl_b32 {t0}, {t0}, 14")
    P(f"v_add_u32 {x1}, {t0}, {vTP}")
    P(f"s_lshl_b32 {t3}, {sTP}, 15")
    P(f"s_add_u32 {t3}, {t3}, {t0}")
    P(f"s_add_u32 {t3}, {t3}, {LB(L) + O_O}")
    P(f"s_and_b32 {t4}, {sRR}, 1")
    P(f"s_lshl_b32 {t4}, {t4}, 13")
    P(f"s_add_u32 {t3}, {t3}, {t4}")
    P.add(barrier("wo"))
    P.add(tick(f"{L}.B3"))
    CD2E = opt("CD2E", 1)
    if L and CD2E:
        P.add(I(w1_items("CD2")))
    rd = [tr("v", WO + (ks * 2 + ct) * 4, x1, (ks >> 3) * 32768 + 2048 * (ks & 7) + 512 * ct) for ks in range(16) for ct in range(2)]
    PO1, PO2 = opt(f"PO1_{L}", opt("PO1", 6)), opt(f"PO2_{L}", opt("PO2", 14))
    def oloads():
        o = []
        for ks in range(16):
            if ks % 4 == 0:
                o.append(f"s_xor_b32 {t4}, {t3}, {4096 * (ks // 4)}")
            o.append(f"buffer_load_dwordx4 {V(OF + 4 * ks)}, {vL16}, {sWS}, {t4} offen offset:{(ks % 4) * 1024} sc1{ntm('O')}")
        return o
    def res(tmpv):
        if L:
            return [f"v_accvgpr_read_b32 v{a0 + i}, a{224 + i}" for i in range(16)]
        return [x for d in range(8) for x in (f"v_accvgpr_read_b32 {tmpv}, a{224 + d}", f"v_lshlrev_b32 v{a0 + 2 * d}, 16, {tmpv}", f"v_and_b32 v{a0 + 2 * d + 1}, 0xffff0000, {tmpv}")]
    P.add(I(rd[:PO1]))
    P.add(poll_issue(vPO, vp, 16 * L + 1))
    P.add(I(rd[PO1:PO2]))
    P.add(I(res(x2)))
    P.add(poll_check(vPO, vp, 16 * L + 1))
    P.add(tick(f"{L}.pollo"))
    if opt("OIL", 0):
        P.add(I(spread([I(x) for x in oloads()], rd[PO2:], opt("OI0", 10) / 100, opt("OI1", 100) / 100)))
    else:
        P.add(I(oloads()))
        if L and not CD2E:
            P.add(I(w1_items("CD2")))
        P.add(I(rd[PO2:]))
    r4 = []
    if L == 0:
        d4, r4 = w2_round(4, x0)
        P.add(I(late_rd))
        P.add(I(d4[:8]))
        P(f"v_and_b32 {x1}, 0x13, {vL}")
        P(f"v_bfe_u32 {x2}, {vL}, 2, 1")
        P(f"v_lshl_add_u32 {x1}, {x2}, 3, {x1}")
        P(f"v_bfe_u32 {x2}, {vL}, 3, 1")
        P(f"v_lshl_add_u32 {x1}, {x2}, 2, {x1}")
        P(f"v_lshlrev_b32 {x1}, 1, {x1}")
        P(f"s_lshl_b32 {t1}, {sM}, 8")
        P(f"s_cmp_ge_u32 {sW}, 2")
        P(f"s_cselect_b32 {t1}, {OOB}, {t1}")
        for e in range(4):
            P(f"buffer_load_ushort v{B1V + e}, {x1}, {sB1}, {t1} offen offset:{64 * e}")
        P.need("ds_any")
        P.add(I(d4[8:]))
    P(f"s_xor_b32 {t0}, {sW}, 1")
    P(f"s_lshl_b32 {t0}, {t0}, 12")
    P(f"s_add_u32 {t0}, {t0}, {SCR3}")
    P(f"v_add_u32 {x0 if L else 'v52'}, {t0}, {vL16}")
    vw = x0 if L else "v52"
    P.add(tile_addr(LB(L) + X1_O, LB(L) + ST1_O))
    P.add(barrier())
    P.add(tick(f"{L}.B3b"))
    back = P.label()
    P.put(back)
    def mf(ks, ct):
        a = V(a0 if ct == 0 else a1, 16)
        return f"{MF} {a}, {V(WO + (ks * 2 + ct) * 4)}, {V(OF + 4 * ks)}, {a if (ks or ct == 0) else 0}"
    NT = 4
    g = [[mf(ks, 1), mf(ks, 0)] for ks in range(16 - NT)] + [[mf(ks, 1)] for ks in range(16 - NT, 16)]
    fill = w1_items("AB") + (w1_items("CD1") if L == 0 else [])
    if EF & 1:
        for n, x in chain(vc, OF, 16):
            g[n].append(x)
    P.add(I(spread(g, fill, 0.0, 1.0)))
    if EF & 1:
        P.add(redo(vc, back, oloads() + res(x1)))
    for n, ks in enumerate(range(16 - NT, 16)):
        P(mf(ks, 0))
        if n >= 1:
            for j in ([n - 1] if n < NT - 1 else range(n - 1, 4)):
                P(f"ds_write_b128 {vw}, {V(a1 + 4 * j)} offset:{1024 * j}")
    P(f"v_xor_b32 {vw}, 0x1000, {vw}")
    P.add(tick(f"{L}.p3mm"))
    P.add(barrier())
    for j in range(4):
        P(f"ds_read_b128 {V(OF + 4 * j)}, {vw} offset:{1024 * j}")
    for i in range(8):
        P(f"v_pk_add_f32 {V(a0 + 2 * i, 2)}, {V(a0 + 2 * i, 2)}, {V(OF + 2 * i, 2)}")
    tile_out(a0, OF + 16, OF + 24, 2 << (4 * L), publish(16 * L + 3, x1, early=f"iX{L}") if EF & 2 else [], f"iX{L}")
    rs = [I([f"v_accvgpr_read_b32 {x1}, a{248 + d}", f"v_lshlrev_b32 v{OF}, 16, {x1}", f"v_and_b32 v{OF + 1}, 0xffff0000, {x1}",
             f"v_pk_add_f32 {V(a0 + 2 * d, 2)}, {V(a0 + 2 * d, 2)}, {V(OF, 2)}", f"v_accvgpr_write_b32 a{224 + 2 * d}, v{a0 + 2 * d}",
             f"v_accvgpr_write_b32 a{225 + 2 * d}, v{a0 + 2 * d + 1}"]) for d in range(8)]
    if L == 0 and opt("CSN", 0) >= 4:
        cs = [I([f"s_lshl_b32 {t0}, {sW}, 14", f"v_add_u32 v122, {t0}, {vTP}", f"s_lshl_b32 {t0}, {sW}, 13", f"v_add_u32 {x0}, {t0}, {vTP1}", need_ins("w1AB")])]
        cs += [tr("v", XF + 4 * j, "v122", 2048 * (j >> 1) + 512 * (j & 1)) for j in range(16)]
        cs += [[need_ins("w1CD1")] + tr("v", XF + 64 + 4 * j, x0, 2048 * (j >> 1) + 512 * (j & 1)) for j in range(8)]
        cs += [asel(AS4), table_addr("v123")]
        cs += [I(f"{MF16} {V(STV + 4 * (j & 1))}, {V(AS4)}, {V(XF + 4 * j)}, {V(STV + 4 * (j & 1)) if j >= 2 else 0}") for j in range(16)]
        cs += [I(f"{MF16} {V(CC + 4 * (j & 1))}, {V(AS4)}, {V(XF + 64 + 4 * j)}, {V(CC + 4 * (j & 1)) if j >= 2 else 0}") for j in range(8)]
        cs += table_write(STV, 3, "v123", f"v{B1V}") + table_write(STV + 4, 4, "v123", f"v{B1V + 1}")
        NP = opt("NP", 8)
        P.add(I(spread(r4 + cs[:NP], rs)))
        r4 = cs[NP:]
    else:
        P.add(I(rs))
    if not EF & 2:
        P.add(publish(16 * L + 3, x1))
    P.add(tick(f"{L}.p3end"))
    return r4


def gelu(a, c0, c1, ir, tmp, so, tag, bit, pk=False, ini=None):
    res = []
    for g in range(4):
        if pk:
            xs = [V(a + 4 * g + 2 * e, 2) for e in range(2)]
            ts = [V(tmp + 2 * e, 2) for e in range(2)]
            bc = lambda r: f"v[{r[1:]}:{int(r[1:]) + 1}]"
            res += [f"v_pk_mul_f32 {t}, {x}, {x}" for x, t in zip(xs, ts)]
            res += [f"v_pk_fma_f32 {t}, {t}, {bc(c1)}, {bc(c0)} op_sel_hi:[1,0,0]" for t in ts]
            res += [f"v_pk_mul_f32 {t}, {t}, {x}" for x, t in zip(xs, ts)]
            res += [f"v_exp_f32 v{tmp + e}, v{tmp + e}" for e in range(4)]
            res += [f"v_pk_fma_f32 {t}, {t}, {bc(ir)}, {bc(ir)} op_sel_hi:[1,0,0]" for t in ts]
            res += [f"v_rcp_f32 v{tmp + e}, v{tmp + e}" for e in range(4)]
            res += [f"v_pk_mul_f32 {x}, {x}, {t}" for x, t in zip(xs, ts)]
        else:
            blk = []
            for e in range(4):
                x, t = f"v{a + 4 * g + e}", f"v{tmp + e}"
                blk.append([f"v_mul_f32 {t}, {x}, {x}", f"v_fma_f32 {t}, {t}, {c1}, {c0}", f"v_mul_f32 {t}, {t}, {x}",
                            f"v_exp_f32 {t}, {t}", f"v_fma_f32 {t}, {t}, {ir}, {ir}", f"v_rcp_f32 {t}, {t}", f"v_mul_f32 {x}, {x}, {t}"])
            for s in range(7):
                for e in range(4):
                    res.append(blk[e][s])
        for i in (2 * g, 2 * g + 1):
            res.append(f"v_cvt_pk_bf16_f32 v{a + i}, v{a + 2 * i}, v{a + 2 * i + 1}")
        if g & 1:
            s, off = so
            res.append(xstore(f"buffer_store_dwordx4 {V(a + 2 * (g - 1))}, {vL16}, {sWS}, {s} offen offset:{off + 1024 * (g >> 1)}", bit, tag, ini))
    return [I(x) for x in res]


def phase45(L, r4):
    T = [16, 32, 48, 16]
    C0R, C1R, IRR, RR, GT = "v116", "v118", "v120", "v122", 124
    FB = 16 * L
    vtb = x2
    CSN = opt("CSN", 0) if L == 0 else 0
    CS5 = False
    if L == 0:
        if CSN < 4:
            P.add(I(r4))
        IM = opt("IM", 0)
        if IM:
            lid, ljn = P.label(), P.label()
            P(f"s_cmp_ge_u32 {sM}, 14")
            P(f"s_cbranch_scc1 {lid}")
            o = [lid + ":", f"s_bfe_u32 {u0}, s2, 0x20003", f"s_lshl_b32 {u0}, {u0}, 2", f"s_add_u32 {u0}, {u0}, {sW}", f"s_mul_i32 {u0}, {u0}, {4 * 3072}",
                 f"v_lshrrev_b32 {x0}, 4, {vL}", f"v_mul_u32_u24 {x0}, 3072, {x0}", f"v_and_b32 {x1}, 15, {vL}", f"v_lshl_add_u32 {x0}, {x1}, 7, {x0}",
                 f"s_mov_b32 {t3}, {OOB}", f"s_mov_b32 {t4}, {OOB}", f"v_add_u32 {vtb}, {TAB0 + 3072}, {vL16}"]
            for i in range(8):
                o += [f"s_add_u32 {u1}, {u0}, {64 * 3072 * ((2 * i) % 8 + (i >> 2))}", f"buffer_load_dword {x1}, {x0}, {sWQ}, {u1} offen offset:1024"]
            if IM > 1:
                o += [f"v_lshrrev_b32 {x0}, 3, {vL}", f"v_mul_u32_u24 {x0}, 3072, {x0}", f"v_and_b32 v16, 7, {vL}", f"v_lshl_add_u32 {x0}, v16, 7, {x0}", f"s_lshl_b32 {u0}, {u0}, 1"]
                for i in range(opt("IQ", 4)):
                    o += [f"s_add_u32 {u1}, {u0}, {128 * 3072 * i}", f"buffer_load_dword {x1}, {x0}, {sWQ}, {u1} offen"]
            if opt("CT", 0) & 2:
                lx = P.label()
                o += [f"s_lshl_b32 {u0}, {sW}, 12", f"v_and_b32 v16, 31, {vL}", f"v_lshl_add_u32 v16, v16, 7, {u0}", "v_min_u32 v16, L_p3_1-L_p1_1, v16",
                      "s_getpc_b64 s[96:97]", lx + ":", f"s_sub_u32 s96, s96, {lx}-L_p1_1", "s_subb_u32 s97, s97, 0", f"global_load_dword {x1}, v16, s[96:97]"]
            if CSN == 5:
                o += [f"s_lshl_b32 {u0}, {sW}, 13", f"v_add_u32 {x0}, {u0}, {vTP1}"] + table_addr("v123")
            if IM < 3:
                o += ["s_waitcnt vmcnt(0) lgkmcnt(0)", "s_barrier"] + tick("0.idle") + [f"s_branch {ljn}"]
                OUTL.extend(I(o))
            idl = o
        vtw = "v123"
        if CSN < 4:
            P.add(asel(AS4))
            P(f"s_lshl_b32 {t0}, {sW}, 14")
            P(f"v_add_u32 {'v122' if CSN else x1}, {t0}, {vTP}")
            P(f"s_lshl_b32 {t0}, {sW}, 13")
            P(f"v_add_u32 {x0}, {t0}, {vTP1}")
        if CSN >= 4:
            P.add(I(r4))
            P.add(barrier())
            if CSN == 5:
                T[2] = STV
            CS5, CSN = CSN == 5, 0
        elif CSN:
            P.add(table_addr(vtw))
            P.add(barrier("w1AB"))
            if CSN == 1:
                P.add(I(w1_items("CD2")))
        else:
            P.add(table_addr(x2))
            P.need("w1AB")
            for j in range(16):
                P.add(tr("v", XF + 4 * j, x1, 2048 * (j >> 1) + 512 * (j & 1)))
            P.need("w1CD1")
            for j in range(8):
                P.add(tr("v", XF + 64 + 4 * j, x0, 2048 * (j >> 1) + 512 * (j & 1)))
            for j in range(16):
                c = V(16 + 4 * (j & 1))
                P(f"{MF16} {c}, {V(AS4)}, {V(XF + 4 * j)}, {c if j >= 2 else 0}")
            for j in range(8):
                c = V(CC + 4 * (j & 1))
                P(f"{MF16} {c}, {V(AS4)}, {V(XF + 64 + 4 * j)}, {c if j >= 2 else 0}")
            P.add(I(table_write(16, 3, x2, f"v{B1V}") + table_write(20, 4, x2, f"v{B1V + 1}")))
            P.add(barrier())
            P(f"v_mov_b32 {vtw}, {x2}")
    else:
        P.add(barrier("w1AB", "w1CD1", *([] if P3N else ["w1CD2"])))
    P(f"v_add_u32 {vtb}, {TAB0 + 3072}, {vL16}")
    D = 3
    def rdA(t):
        if t < 32:
            return trp(RING + 8 * (t % 4), 2048 * t) + trp(RING + 8 * (t % 4) + 4, 2048 * t + 512)
        if t == 32:
            return I([f"ds_read_b128 {V(RING + 8 * (t % 4) + 4 * e)}, {vtb} offset:{1024 * e}" for e in range(2)])
        return []
    N3 = opt("N3", 0) >> L & 1
    D3 = opt("D3", 7)
    def rdF(f):
        t, e = divmod(f, 3)
        n = RING + 4 * (f % 8)
        if t < 32:
            return trp(n, 2048 * t + 512 * e) if e < 2 else trp(n, R2 + 2048 * t)
        if t == 32:
            return I(f"ds_read_b128 {V(n)}, {vtb} offset:{1024 * e}")
        return []
    back, vc = P.label(), (f"v{GT}" if EF & 2 else None)
    P.put(back)
    for t in range(D3 if N3 else D):
        P.add(rdF(t) if N3 else rdA(t))
    P(f"s_lshl_b32 {t3}, {sT}, 17")
    P(f"s_lshl_b32 {t4}, {sM}, 13")
    P(f"s_add_u32 {t3}, {t3}, {t4}")
    P(f"s_add_u32 {t3}, {t3}, {LB(L) + H_O}")
    P.add(I(idle(t3)))
    P(f"s_add_u32 {t4}, {t3}, 4096")
    xs, xi = x_loads(LB(L) + X1_O, LB(L) + ST1_O, STV)
    NB = opt("NB", 14)
    P.add(xs)
    P.add(I(idle(t1, t2)))
    P.add(tick(f"{L}.B4b"))
    P.add(poll(vPX, x1, FB + 3))
    P.add(tick(f"{L}.pollx1"))
    if CSN:
        assert NB <= 16
        csr = [tr("v", XF + 64 + 4 * j, "v122", 2048 * (j >> 1) + 512 * (j & 1)) for j in range(16)]
        P.add(I(spread(xi[:NB], csr)))
        if CSN == 2:
            P.add(I(w1_items("CD2")))
        for j in range(16):
            c = V(STV + 4 * (j & 1))
            P(f"{MF16} {c}, {V(AS4)}, {V(XF + 64 + 4 * j)}, {c if j >= 2 else 0}")
        tw = table_write(STV, 3, vtw, f"v{B1V}") + table_write(STV + 4, 4, vtw, f"v{B1V + 1}", "tw1")
    else:
        P.add(I(xi[:NB]))
    xi = xi[NB:] + (w1_items("CD2") if (L == 0 and CSN in (0, 3)) or (L and P3N and opt("CD2P", 1) == 1) else [])
    if L == 0 and opt("TKV", 0):
        xi += touch_qkv("v117", "v119")
    if L == 0 and opt("H3B", 0):
        xi += [help3("v117", "v119", u0)]
    xi += sp_touch(2, x1, x1)
    gA = []
    for k in range(33):
        xb = V(XF + 4 * k) if k < 32 else V(EX)
        if N3:
            gA.append(sum((rdF(3 * k + e + D3) + I(f"{MF} {V(T[e], 16)}, {V(RING + 4 * ((3 * k + e) % 8))}, {xb}, {V(T[e], 16) if k else 0}") for e in range(3)), []))
            continue
        gA.append(rdA(k + D) + I([f"{MF} {V(T[e], 16)}, {V(RING + 8 * (k % 4) + 4 * e)}, {xb}, {V(T[e], 16) if k else 0}" for e in range(2)]))
    s = [f"v{STV + i}" for i in range(4)]
    C0 = -2.0 * LOG2E * 0.7978845608028654
    fill = stats_sum(STV, vc) + stats_finish(s[0], s[1], s[2], s[3], EX, True, RR, IRR)
    fill += [I(x) for x in [f"v_mul_f32 {C0R}, {fc(C0)}, {RR}", f"v_mul_f32 {C1R}, {RR}, {RR}", f"v_mul_f32 {C1R}, {C1R}, {C0R}",
                            f"v_mul_f32 {C1R}, {fc(0.044715)}, {C1R}"]]
    for k in range(0, 32, 4):
        gA[k] = gA[k] + tick(f"{L}.zA{k}")
    if CSN:
        gA[0] = I(tw[:7]) + gA[0] + I(tw[7:])
        CR = [112, 116, 124]
        ncd = 8 if CSN == 3 else 16
        def crd(j): return I([need_ins("w1CD1" if j < 8 else "w1CD2")] + tr("v", CR[j % 3], x0, 32768 * (j >> 3) + 2048 * ((j >> 1) & 3) + 512 * (j & 1))) if j < ncd else []
        for j in range(ncd + 2):
            c = V(CC + 4 * (j & 1))
            gA[j] = gA[j] + ((I(f"{MF16} {c}, {V(AS4)}, {V(CR[(j - 2) % 3])}, {c if j >= 4 else 0}") if j >= 2 else []) + crd(j))
        if CSN != 3:
            tw = table_write(CC, 5, vtw, f"v{B1V + 2}") + table_write(CD_, 6, vtw, f"v{B1V + 3}", "tw2")
            for j in range(7):
                gA[ncd + 3 + j] += I(tw[2 * j:2 * j + 2])
        gA[opt("BAP", 20)] += I([need_ins("tw1", "w1CD1", *([] if CSN == 3 else ["w1CD2"])), "s_barrier"])
    attach(gA, xi)
    if opt("WB", 0) >> L & 1:
        lsk = P.label()
        gA[opt("WBP", 24)] += I([f"s_lshl_b32 {u0}, {sM}, 2", f"s_or_b32 {u0}, {u0}, {sW}"] + ([f"s_lshl_b32 {u0}, {u0}, 1", f"s_and_b32 {u1}, {sC}, 1", f"s_or_b32 {u0}, {u0}, {u1}"] if opt("WB1", 1) else []) +
                                [f"s_cmp_lg_u32 {u0}, {120 if opt('WB1', 1) else 60}", f"s_cbranch_scc1 {lsk}", "buffer_wbl2 sc1", lsk + ":"])
    if vc:
        for n, x in chain(vc, XF, 32):
            gA[n] += I(x)
    P.add(weave(gA, [(opt("XSP", 16) + 2, x) for x in fill] + [(len(xi), x) for x in inits("Bb"[L], STV + 8)]))
    if vc:
        P.add(redo(vc, back))
    P.add(tick(f"{L}.pA"))
    if (opt("N45", 0) >> L & 1) or N3:
        return tail45(L, vtb, vtw if L == 0 else None, N3)
    D1 = 6
    def rd1(e, t):
        if t < 32:
            return trp(RING + 4 * (t % 8), R2 + 2048 * t + 512 * e)
        if t == 32:
            return I(f"ds_read_b128 {V(RING + 4 * (t % 8))}, {vtb} offset:{2048 + 1024 * e}")
        if e == 0 and t - 34 >= 0:
            pass
        return []
    def g1(e, off):
        def rd(t):
            n = RING + 4 * ((t + off) % 8)
            if t < 32:
                return trp(n, R2 + 2048 * t + 512 * e)
            if t == 32:
                return I(f"ds_read_b128 {V(n)}, {vtb} offset:{2048 + 1024 * e}")
            if e == 0:
                return trp(n, R2 + 2048 * (t - 33) + 512)
            return []
        a = V(T[2 + e], 16)
        out = []
        for k in range(33):
            xb = V(XF + 4 * k) if k < 32 else V(EX)
            it = rd(k + D1)
            if k % 2 == 0 and k + 1 < 33:
                it = it + [need_ins(("v", RING + 4 * ((k + 1 + off) % 8) + 3))]
            out.append(it + I(f"{MF} {a}, {V(RING + 4 * ((k + off) % 8))}, {xb}, {a if k else 0}"))
        return out, [rd(t) for t in range(D1)]
    gB, preB = g1(0, 0)
    gC, _ = g1(1, 33)
    PUBD = opt("PUBD", 14)
    GHI = opt("GHI", 90) / 100
    def G(i, pk=False):
        o = gelu(T[i], C0R, C1R, IRR, GT, (t3 if i < 2 else t4, 2048 * (i & 1)), f"h{i}", 4 << (4 * L), pk, f"iH{L}{i}")
        if EF & 4:
            o.insert(len(o) - opt("HE", 0), tick(f"{L}.zpb{i}") + publish(FB + 4 + i, x1, f"h{i}", f"iH{L}{i}"))
        return o
    def at(groups, n, item):
        groups[n] = groups[n] + I(item)
    if L == 0:
        cs = [I([need_ins("w1CD2")] + tr("v", STV + 4 * (j & 3), x0, 32768 + 2048 * (j >> 1) + 512 * (j & 1))) for j in range(4)]
        for j in range(8):
            c = V(CC + 4 * (j & 1))
            cs.append(I(f"{MF16} {c}, {V(AS4)}, {V(STV + 4 * (j & 3))}, {c}"))
            if j + 4 < 8:
                cs.append(tr("v", STV + 4 * (j & 3), x0, 32768 + 2048 * ((j + 4) >> 1) + 512 * (j & 1)))
        cs += [[]] + table_write(CC, 5, vtw, f"v{B1V + 2}") + table_write(CD_, 6, vtw, f"v{B1V + 3}")
        if CS5:
            P.add(I(spread(G(0, True), preB, 0.5, 0.95)))
            C2 = opt("C2P", 5)
            LA = opt("C2L", 4)
            for j in range(8):
                at(gB, C2 + j, [need_ins("w1CD2")] + tr("v", 16 + 4 * (j & 3), x0, 32768 + 2048 * (j >> 1) + 512 * (j & 1)))
            for j in range(8):
                c = V(CC + 4 * (j & 1))
                gB[C2 + j + LA] = I(f"{MF16} {c}, {V(AS4)}, {V(16 + 4 * (j & 3))}, {c}") + gB[C2 + j + LA]
            gB[C2 + 1] = I("s_barrier") + gB[C2 + 1]
            tw = table_write(CC, 5, vtw, f"v{B1V + 2}") + table_write(CD_, 6, vtw, f"v{B1V + 3}", "tw2")
            for j in range(5):
                at(gB, C2 + 8 + LA + j, tw[3 * j:3 * j + 3])
            assert C2 + 1 <= 10 and C2 + 8 + LA + 4 < 25 and LA <= 4 and opt("KV0", 0) > C2
            at(gB, 25, [need_ins("tw2"), "s_barrier"])
        elif CSN in (1, 2):
            P.add(I(spread(G(0, True), preB, 0.5, 0.95)))
            P.add(I([need_ins("tw2"), "s_barrier"]))
        else:
            P.add(I(spread(G(0), cs + preB, 0.1, 0.95)))
            P.add(barrier())
        if 0 < IM < 3:
            P.put(ljn)
        kv = wkv_items()
        if not opt("KV0", 0):
            for j in range(8):
                at(gB, 1 + j, kv[j]); at(gC, 1 + j, kv[8 + j])
    else:
        P.add(I(spread(G(0, True), preB, 0.5, 0.95)))
        if P3N:
            at(gB, opt("B5P", 4), [need_ins("w1CD2"), "s_barrier"])
    P.add(tick(f"{L}.G0"))
    ACC = [A(224, 16), V(32, 16), V(48, 16), V(240, 16)]
    def hf(s, i, tt): return XF + 4 * (14 * (s & 1) + 2 * i + tt)
    def hloads(s):
        out = []
        for i in range(7):
            for tt in range(2):
                out.append(I([f"s_add_u32 {u0}, {t5 if tt == 0 else d3}, {(8 * i + 2 * s) * 1024}",
                              f"buffer_load_dwordx4 {V(hf(s, i, tt))}, {vL16}, {sWS}, {u0} offen sc1{ntm('H')}"]))
        return out
    def mf(s, i, n):
        tt, ct = n >> 1, n & 1
        a = ACC[n]
        return f"{MF} {a}, {A(((7 * s + i) * 2 + ct) * 4)}, {V(hf(s, i, tt))}, {a if (s or i or n == 0) else 0}"
    def hchk(s, i):
        if not EF & 4:
            return []
        ls, lr = P.label(), P.label()
        c = [f"v_cmp_u_f32 vcc, v{hf(s, i, 0)}, v{hf(s, i, 1)}", f"s_cbranch_vccnz {ls}"]
        OUTL.extend(I([ls + ":", f"s_cmp_eq_u32 {sRT}, 0", f"s_cbranch_scc1 {lr}", f"s_sub_u32 {sRT}, {sRT}, 1"] + hloads(s)[2 * i:2 * i + 2] + c + [f"s_branch {lr}"]))
        return I(c + [lr + ":"])
    def gS(s, ni=7): return [(hchk(s, i) if n == 0 else []) + I(mf(s, i, n)) for i in range(ni) for n in range(4)]
    hb = I([f"s_lshr_b32 {u0}, {sW}, 1", f"s_mul_i32 {u0}, {u0}, {56 * 1024}", f"s_and_b32 {u1}, {sW}, 1", f"s_lshl_b32 {u1}, {u1}, 10",
            f"s_add_u32 {u0}, {u0}, {u1}", f"s_add_u32 {u0}, {u0}, {LB(L) + H_O}", f"s_lshl_b32 {t5}, {sTP}, 17", f"s_xor_b32 {d3}, {t5}, 0x20000",
            f"s_add_u32 {t5}, {t5}, {u0}", f"s_add_u32 {d3}, {d3}, {u0}"])
    for n, x in enumerate(hb):
        at(gB, 16 + n, x)
    DEF = opt("DEF", 0)
    NT = opt("NT5", 2)
    if DEF == 1:
        assert not EF & 4
        st = gB + gC + gS(0) + gS(1) + [I(mf(2, i, n)) for i in range(7) for n in (1, 2, 3)] + [I(mf(3, i, n)) for i in range(7 - NT) for n in (1, 2, 3)]
    else:
        st = gB + gC + gS(0) + gS(1) + gS(2)
    CK = [opt(f"CK{i}", ((41, 66, 96, 124), (33, 48, 80, 110))[EF >> 2 & 1][i]) for i in range(4)]
    PB = [opt("PB0", 14), opt("PB1", 47), opt("PB2", 78), opt("PB3", 108)]
    PD = opt("PD", 12)
    for s in range(4):
        if not EF & 4:
            at(st, PB[s], tick(f"{L}.zpb{s}") + publish(FB + 4 + s, x1, f"h{s}") + tick(f"{L}.zPB{s}"))
        at(st, CK[s] - PD, poll_issue(vPH, x0, FB + 4 + s))
        at(st, CK[s], tick(f"{L}.zck{s}") + poll_check(vPH, x0, FB + 4 + s) + tick(f"{L}.zCK{s}"))
        n = CK[s] + 1
        hl = list(enumerate(hloads(s)))
        if DEF == 2 and s == 3:
            hl = hl[1::2] + hl[0::2]
        for j, (q, x) in enumerate(hl):
            lo = {0: 33 + j, 1: 33 + 14 + j}.get(s, 66 + 28 * (s - 2) + 4 * (q >> 1) + 3)
            n = max(n, lo)
            at(st, n, x)
            assert DEF != 1 or s < 2 or n < 122 + 21 * (s - 2) + 3 * (j >> 1)
            n += 1 if j < opt(f"HBU{s}", opt("HBU", 6)) else opt("HST", 2)
        assert n <= len(st) + 1
    at(st, opt("B6", 110), barrier() + tick(f"{L}.zB6"))
    if L == 0 and opt("KV0", 0):
        for j in range(16):
            at(st, opt("KV0", 0) + j * opt("KVS", 10) // 10, kv[j])
    if L == 0 and opt("WQE", 0):
        assert opt("WQE", 0) > opt("B6", 110)
        for j, x in enumerate(wq_items([2])):
            at(st, opt("WQE", 0) + j * opt("WQS", 1), (I(f"s_sub_u32 {d1}, {d1}, 1024") if j == 0 else []) + x)
    P.add(I(spread(st[:33], G(1, opt("GPK", 0) & 1), 0.03, GHI)))
    P.add(tick(f"{L}.pB"))
    P.add(I(spread(st[33:66], G(2, opt("GPK", 0) & 2), 0.03, GHI)))
    P.add(tick(f"{L}.pC"))
    if L == 0 and IM == 3:
        assert CK[1] >= 66 and CK[1] - PD < 66 and opt("KV0", 0) + 15 * opt("KVS", 10) // 10 < 66
        kvi = wkv_items()
        hb2 = I([x.text for x in hb])
        idl += ["s_waitcnt lgkmcnt(0)", "s_barrier"] + hb2 + poll(vPH, x0, FB + 4) + tick("0.idle") + hloads(0) + poll_issue(vPH, x0, FB + 5) + kvi + [f"s_branch {ljn}"]
        OUTL.extend(I(idl))
        P.put(ljn)
    P.add(weave(st[66:94], [(1, x) for x in G(3, opt("GPK", 0) & 4)], slack=0))
    P.add(tick(f"{L}.S0"))
    P.add(I(st[94:122]))
    P.add(tick(f"{L}.S1"))
    x, tmp = 64, 80
    wa = ["v16", "v17", "v18", "v19"]
    pre = []
    for i in range(4):
        pre.append(I([f"s_xor_b32 {u0}, {sW}, {i}", f"s_mul_i32 {u0}, {u0}, 12288", f"s_add_u32 {u0}, {u0}, {SL + 4096 * max(0, i - 1)}",
                      f"v_add_u32 {wa[i]}, {u0}, {vL16}"]))
    if L == 0:
        pre.append(tile_addr(LB(1) + XIN_O, LB(1) + ST2_O))
    else:
        pre.append(I([f"v_and_b32 {x2}, 31, {vL}", f"v_lshrrev_b32 {x1}, 5, {vL}", f"v_lshlrev_b32 {x2}, 10, {x2}", f"v_lshl_add_u32 {x2}, {x1}, 4, {x2}",
                      f"s_lshl_b32 {t1}, {sTP}, 15", f"s_lshl_b32 {t2}, {sCT}, 6", f"s_add_u32 {t1}, {t1}, {t2}"]))
    base = [0, 32, 48, 240]
    if DEF == 2:
        for n, it in enumerate(pre):
            at(st, 140 + n, it)
        P.add(I(st[122:150]))
        P.add(tick(f"{L}.S2"))
        def wr(n): return [I(f"ds_write_b128 {wa[n]}, {V(base[n] + 4 * j)} offset:{1024 * j}") for j in range(4)]
        def rd(p): return [I(f"ds_read_b128 {V(tmp + 16 * p + 4 * j)}, {wa[0]} offset:{4096 * p + 1024 * j}") for j in range(4)]
        def ad(d, a, b): return [I(f"v_pk_add_f32 {V(d + 2 * i, 2)}, {V(a + 2 * i, 2)}, {V(b + 2 * i, 2)}") for i in range(8)]
        g = [I(mf(3, i, n)) for i in range(7) for n in (3, 2)]
        for j in range(4):
            g[1 + j] += I([f"v_accvgpr_read_b32 v{x + i}, a{224 + i}" for i in range(4 * j, 4 * j + 4)])
        P.add(I(g))
        g = [I(mf(3, i, 1) if n else f"{MF} {V(x, 16)}, {A((21 + i) * 8)}, {V(hf(3, i, 0))}, {V(x, 16)}") for i in range(7) for n in (1, 0)]
        W0, BA = opt("W0", 0), opt("BA", 6)
        attach(g, wr(3) + wr(2), W0, opt("WP", 4))
        g[BA] += barrier() + I(rd(1) + rd(2))
        attach(g, ad(tmp + 16, tmp + 16, tmp + 32), opt("AP", 10), 4)
        P.add(I(g + wr(1) + ad(x, x, tmp + 16)))
        P.add(tick(f"{L}.S3"))
        P.add(barrier(*(["wkv"] if L == 0 else [])))
        P.add(I(rd(0) + ad(x, x, tmp)))
    elif DEF:
        for n, it in enumerate(pre + [I([f"v_accvgpr_read_b32 v{x + i}, a{224 + i}" for i in range(j, j + 4)]) for j in range(0, 16, 4)]):
            at(st, 143 + n, it)
        P.add(I(st[122:143]))
        P.add(tick(f"{L}.S2"))
        own = [I(f"{MF} {V(x, 16)}, {A((7 * s + i) * 8)}, {V(hf(s, i, 0))}, {V(x, 16)}") for s in (2, 3) for i in range(7)]
        g, wr = st[143:], []
        for n in (3, 2, 1, 0):
            for e, i in enumerate(range(7 - NT, 7)):
                g.append(I(mf(3, i, n)) if n else own.pop(0))
                if e >= 1 or NT == 1:
                    k = (len(wr) + (NT - e) - 1) // (NT - e)
                    g.append(I(wr[:k])); wr = wr[k:]
            if n:
                wr = [f"ds_write_b128 {wa[n]}, {V(base[n] + 4 * j)} offset:{1024 * j}" for j in range(4)]
        K1 = opt("K1", 3)
        P.add(I(g + own[:K1]))
        own = own[K1:]
        P.add(tick(f"{L}.S3"))
        P.add(barrier(*(["wkv"] if L == 0 else [])))
        order = [j + 4 * p for j in range(4) for p in range(3)]
        rd = [I(f"ds_read_b128 {V(tmp + 4 * j)}, {wa[0]} offset:{1024 * j}") for j in order]
        ad = [I([f"v_pk_add_f32 {V(tmp + 2 * i, 2)}, {V(tmp + 2 * i, 2)}, {V(tmp + 16 * p + 2 * i, 2)}" for p in (1, 2) for i in (2 * j, 2 * j + 1)]) for j in range(4)]
        RP = opt("RP", 4)
        for n in range(0, 12, RP):
            P.add(I(rd[n:n + RP]))
            P.add(own.pop(0))
        assert len(own) >= 4
        while len(own) > 4:
            P.add(own.pop(0))
        for j in range(4):
            P.add(own.pop(0))
            P.add(ad[j])
        for i in range(8):
            P(f"v_pk_add_f32 {V(x + 2 * i, 2)}, {V(x + 2 * i, 2)}, {V(tmp + 2 * i, 2)}")
    else:
        P.add(I(st[122:150]))
        P.add(tick(f"{L}.S2"))
        NT = opt("NT5", 2)
        wa = ["v16", "v17", "v18", "v19"]
        pre = []
        for i in range(4):
            pre.append(I([f"s_xor_b32 {u0}, {sW}, {i}", f"s_mul_i32 {u0}, {u0}, 12288", f"s_add_u32 {u0}, {u0}, {SL + 4096 * max(0, i - 1)}",
                          f"v_add_u32 {wa[i]}, {u0}, {vL16}"]))
        if L == 0:
            pre.append(tile_addr(LB(1) + XIN_O, LB(1) + ST2_O))
        else:
            pre.append(I([f"v_and_b32 {x2}, 31, {vL}", f"v_lshrrev_b32 {x1}, 5, {vL}", f"v_lshlrev_b32 {x2}, 10, {x2}", f"v_lshl_add_u32 {x2}, {x1}, 4, {x2}",
                          f"s_lshl_b32 {t1}, {sTP}, 15", f"s_lshl_b32 {t2}, {sCT}, 6", f"s_add_u32 {t1}, {t1}, {t2}"]))
        P.add(I(pre))
        g = gS(3, 7 - NT)
        if L == 0:
            attach(g, inits("C", RING), 1, 1)
            if opt("WQ3", 0):
                wq = wq_items([2])
                wq[0] = I(f"s_sub_u32 {d1}, {d1}, 1024") + wq[0]
                attach(g, wq, opt("WQ3", 0) - 1, 1)
        base = [0, 32, 48, 240]
        wr = []
        for n in (3, 2, 1, 0):
            for e, i in enumerate(range(7 - NT, 7)):
                g.append((hchk(3, i) if n == 3 else []) + I(mf(3, i, n)))
                if e >= 1 or NT == 1:
                    k = (len(wr) + (NT - e) - 1) // (NT - e)
                    g.append(I(wr[:k])); wr = wr[k:]
            if n:
                wr = [f"ds_write_b128 {wa[n]}, {V(base[n] + 4 * j)} offset:{1024 * j}" for j in range(4)]
        P.add(I(g))
        x, tmp = 64, 80
        for i in range(16):
            P(f"v_accvgpr_read_b32 v{x + i}, a{224 + i}")
        P.add(tick(f"{L}.S3"))
        P.add(barrier(*(["wkv"] if L == 0 else [])))
        for j in range(12):
            P(f"ds_read_b128 {V(tmp + 4 * j)}, {wa[0]} offset:{1024 * j}")
        for p in range(3):
            for i in range(8):
                P(f"v_pk_add_f32 {V(x + 2 * i, 2)}, {V(x + 2 * i, 2)}, {V(tmp + 16 * p + 2 * i, 2)}")
    if L == 0:
        tile_out(x, 16, 24, 8, publish(8, x1, early="iY0") if EF & 8 else [], "iY0")
        for i in range(16):
            P(f"v_accvgpr_write_b32 a{224 + i}, v{x + i}")
        if not EF & 8:
            P.add(publish(8, x1))
        P.add(tick("0.p5end"))
    else:
        for i in range(8):
            P(f"v_cvt_pk_bf16_f32 v{16 + i}, v{x + 2 * i}, v{x + 2 * i + 1}")
        P(f"buffer_store_dwordx4 {V(16)}, {x2}, {sOUT}, {t1} offen {OM}")
        P(f"buffer_store_dwordx4 {V(20)}, {x2}, {sOUT}, {t1} offen offset:32 {OM}")
        if PROF:
            P.need("stores")
            P.add(tick("1.final"))
            P.add(prof_dump())


def tail45(L, vtb, vtw, N3=0):
    o = lambda n, d: opt(f"{n}_{L}", opt(n, d))
    G0X, G2X, G3X = (1 if L == 0 else o("G0X", 1)), o("G2X", 1), o("G3X", N3)
    T = [16, 32, 48, 16 if G0X else STV]
    C0R, C1R, IRR, RR, GT = "v116", "v118", "v120", "v122", 124
    FB, D = 16 * L, 3
    def rd(t):
        n = RING + 8 * (t % 4)
        if t < 32:
            return trp(n, R2 + 2048 * t) + trp(n + 4, R2 + 2048 * t + 512)
        if t == 32:
            return I([f"ds_read_b128 {V(n + 4 * e)}, {vtb} offset:{2048 + 1024 * e}" for e in range(2)])
        return []
    gBC = []
    for k in range(33):
        xb = V(XF + 4 * k) if k < 32 else V(EX)
        r = rd(k + D)
        for e in range(2):
            gBC.append(I(f"{MF} {V(T[2 + e], 16)}, {V(RING + 8 * (k % 4) + 4 * e)}, {xb}, {V(T[2 + e], 16) if k else 0}") + r[len(r) // 2 * e:len(r) // 2 * (e + 1)])
    pre = [rd(t) for t in range(D)]
    if N3:
        D = 6
        def rd(t):
            n = RING + 4 * (t % 8)
            if t < 32:
                return trp(n, R2 + 2048 * t + 512)
            return I(f"ds_read_b128 {V(n)}, {vtb} offset:3072") if t == 32 else []
        gBC = []
        for k in range(33):
            xb = V(XF + 4 * k) if k < 32 else V(EX)
            it = rd(k + D)
            if k % 2 == 0 and k + 1 < 33:
                it = it + [need_ins(("v", RING + 4 * ((k + 1) % 8) + 3))]
            gBC.append(it + I(f"{MF} {V(T[3], 16)}, {V(RING + 4 * (k % 8))}, {xb}, {V(T[3], 16) if k else 0}"))
        pre = [rd(t) for t in range(D)]
    NB_ = len(gBC)
    def G(i, pk=False):
        return gelu(T[i], C0R, C1R, IRR, GT, (t3 if i < 2 else t4, 2048 * (i & 1)), f"h{i}", 4 << (4 * L), pk)
    def at(groups, n, item):
        groups[n] = groups[n] + I(item)
    kv = []
    if L == 0:
        cs = [I([need_ins("w1CD2")] + tr("v", STV + 4 * (j & 3), x0, 32768 + 2048 * (j >> 1) + 512 * (j & 1))) for j in range(4)]
        for j in range(8):
            c = V(CC + 4 * (j & 1))
            cs.append(I(f"{MF16} {c}, {V(AS4)}, {V(STV + 4 * (j & 3))}, {c}"))
            if j + 4 < 8:
                cs.append(tr("v", STV + 4 * (j & 3), x0, 32768 + 2048 * ((j + 4) >> 1) + 512 * (j & 1)))
        cs += [[]] + table_write(CC, 5, vtw, f"v{B1V + 2}") + table_write(CD_, 6, vtw, f"v{B1V + 3}")
        P.add(I(spread(G(0), cs + pre, 0.1, 0.95)))
        P.add(barrier())
        kv = wkv_items()
    elif G0X:
        P.add(I(spread(G(0, True), pre, 0.5, 0.95)))
    else:
        P.add(I(pre))
    P.add(tick(f"{L}.G0"))
    AB = [0, 32, RING, RING + 16]
    ACC = [A(224, 16)] + [V(b, 16) for b in AB[1:]]
    NR = 32
    def hf(s, i, tt): return XF + 4 * ((14 * s + 2 * i + tt) % NR)
    def hloads(s):
        return [I([f"s_add_u32 {u0}, {t5 if tt == 0 else d3}, {(8 * i + 2 * s) * 1024}",
                   f"buffer_load_dwordx4 {V(hf(s, i, tt))}, {vL16}, {sWS}, {u0} offen sc1"]) for i in range(7) for tt in range(2)]
    def mf(s, i, n):
        tt, ct = n >> 1, n & 1
        a = ACC[n]
        return f"{MF} {a}, {A(((7 * s + i) * 2 + ct) * 4)}, {V(hf(s, i, tt))}, {a if (s or i or n == 0) else 0}"
    def gS(s, ni=7): return [I(mf(s, i, n)) for i in range(ni) for n in range(4)]
    hb = I([f"s_lshr_b32 {u0}, {sW}, 1", f"s_mul_i32 {u0}, {u0}, {56 * 1024}", f"s_and_b32 {u1}, {sW}, 1", f"s_lshl_b32 {u1}, {u1}, 10",
            f"s_add_u32 {u0}, {u0}, {u1}", f"s_add_u32 {u0}, {u0}, {LB(L) + H_O}", f"s_lshl_b32 {t5}, {sTP}, 17", f"s_xor_b32 {d3}, {t5}, 0x20000",
            f"s_add_u32 {t5}, {t5}, {u0}", f"s_add_u32 {d3}, {d3}, {u0}"])
    for n in range(0, 10, 2):
        at(gBC, 1 + n, hb[n:n + 2])
    gx = []
    for i, x in ((2, G2X), (3, G3X)):
        if x:
            g = G(i, True)
            gx += [I(g[len(g) * n // 10:len(g) * (n + 1) // 10]) for n in range(10)]
    NT = opt("NT5", 2)
    S0 = NB_ + len(gx)
    st = gBC + gx + gS(0) + gS(1) + gS(2) + gS(3, 7 - NT)
    def pos(p): return p if p < 100 else (NB_ + p - 100 if p < 200 else S0 + p - 200)
    PB = [pos(o(f"PB{i}", ((18, 58, 216, 246), (14, 109, 200, 218))[N3][i])) for i in range(4)]
    PI = [pos(o(f"PI{i}", ((30, 103, 228, 256), (27, 115, 212, 232))[N3][i])) for i in range(4)]
    CK = [pos(o(f"CK{i}", ((42, 202, 240, 268), (32, 119, 220, 240))[N3][i])) for i in range(4)]
    for s in range(4):
        at(st, PB[s], tick(f"{L}.zpb{s}") + publish(FB + 4 + s, x1, f"h{s}") + tick(f"{L}.zPB{s}"))
        at(st, PI[s], poll_issue(vPH, x0, FB + 4 + s))
        at(st, CK[s], tick(f"{L}.zck{s}") + poll_check(vPH, x0, FB + 4 + s) + tick(f"{L}.zCK{s}"))
        n = CK[s]
        HS = o(f"HS{s}", ((14, 10, 15, 10), (7, 10, 10, 10))[N3][s])
        for j, x in enumerate(hloads(s)):
            q = 14 * s + j
            lo = (q if N3 else 2 * q + 1) if q < NR else S0 + 4 * ((q - NR) >> 1) + 3
            n = max(n, lo)
            assert n < S0 + 4 * (q >> 1), (s, j, n)
            at(st, n, x)
            n = max(n, CK[s] + (j + 1) * HS // 10)
    at(st, pos(o("B6", 210)), barrier() + tick(f"{L}.zB6"))
    for j, x in enumerate(kv):
        at(st, pos(o("KV0", 1)) + j * o("KVS", 20) // 10, x)
    if L == 0 and opt("WQ3", 0):
        wq = wq_items([2])
        wq[0] = I(f"s_sub_u32 {d1}, {d1}, 1024") + wq[0]
        for j, x in enumerate(wq):
            at(st, pos(opt("WQ3", 0)) + j * opt("WQS", 20) // 10, x)
    wa = [f"v{EX + i}" for i in range(4)]
    for i in range(4):
        at(st, S0 + 60 + i, [f"s_xor_b32 {u0}, {sW}, {i}", f"s_mul_i32 {u0}, {u0}, 12288", f"s_add_u32 {u0}, {u0}, {SL + 4096 * max(0, i - 1)}",
                             f"v_add_u32 {wa[i]}, {u0}, {vL16}"])
    if L == 0:
        at(st, S0 + 64, tile_addr(LB(1) + XIN_O, LB(1) + ST2_O))
    else:
        at(st, S0 + 64, [f"v_and_b32 {x2}, 31, {vL}", f"v_lshrrev_b32 v{GT}, 5, {vL}", f"v_lshlrev_b32 {x2}, 10, {x2}", f"v_lshl_add_u32 {x2}, v{GT}, 4, {x2}",
                         f"s_lshl_b32 {t1}, {sTP}, 15", f"s_lshl_b32 {t2}, {sCT}, 6", f"s_add_u32 {t1}, {t1}, {t2}"])
    P.add(I(spread(st[:NB_], ([] if G0X else G(0)) + G(1), 0.02, o("GHI", 90 if N3 else 62 if G0X else 97) / 100)))
    P.add(tick(f"{L}.pC"))
    P.add(I(st[NB_:S0]))
    P.add(tick(f"{L}.GX"))
    wv = ([] if G2X else G(2)) + ([] if G3X else G(3))
    P.add(I(spread(st[S0:S0 + 28], wv, 0.02, o("GH2", 95) / 100)))
    P.add(tick(f"{L}.S0"))
    P.add(I(st[S0 + 28:S0 + 56]))
    P.add(tick(f"{L}.S1"))
    P.add(I(st[S0 + 56:S0 + 84]))
    P.add(tick(f"{L}.S2"))
    g = st[S0 + 84:]
    wr = []
    for n in (3, 2, 1, 0):
        for e, i in enumerate(range(7 - NT, 7)):
            g.append(I(mf(3, i, n)))
            if e >= 1 or NT == 1:
                k = (len(wr) + (NT - e) - 1) // (NT - e)
                g.append(I(wr[:k])); wr = wr[k:]
        if n:
            wr = [f"ds_write_b128 {wa[n]}, {V(AB[n] + 4 * j)} offset:{1024 * j}" for j in range(4)]
    P.add(I(g))
    x, tmp = 48, XF
    for i in range(16):
        P(f"v_accvgpr_read_b32 v{x + i}, a{224 + i}")
    P.add(tick(f"{L}.S3"))
    P.add(barrier(*(["wkv"] if L == 0 else [])))
    for j in range(12):
        P(f"ds_read_b128 {V(tmp + 4 * j)}, {wa[0]} offset:{1024 * j}")
    for p in range(3):
        for i in range(8):
            P(f"v_pk_add_f32 {V(x + 2 * i, 2)}, {V(x + 2 * i, 2)}, {V(tmp + 16 * p + 2 * i, 2)}")
    if L == 0:
        tile_out(x, 16, 24, 8, [], None)
        for i in range(16):
            P(f"v_accvgpr_write_b32 a{224 + i}, v{x + i}")
        P.add(publish(8, x1))
        P.add(tick("0.p5end"))
    else:
        for i in range(8):
            P(f"v_cvt_pk_bf16_f32 v{16 + i}, v{x + 2 * i}, v{x + 2 * i + 1}")
        P(f"buffer_store_dwordx4 {V(16)}, {x2}, {sOUT}, {t1} offen {OM}")
        P(f"buffer_store_dwordx4 {V(20)}, {x2}, {sOUT}, {t1} offen offset:32 {OM}")
        if PROF:
            P.need("stores")
            P.add(tick("1.final"))
            P.add(prof_dump())
```

```python
from k2_base import *

sW2B = "s3"
sTI = "s1"
X3 = opt("X3", 0)
NK = " nt" if opt("NTS", 0) & 2 else ""

def wq_items(imgs, tag="wq"):
    out = []
    for q in range(4):
        for img in imgs:
            cb = (0, 1024, 0)[img]
            out.append(I([f"s_xor_b32 {d0}, {sRR}, {q}", f"s_mul_i32 {d0}, {d0}, {128 * 3072}", f"s_add_u32 m0, {d2}, {img * 32768 + q * 8192 - cb}", f"s_add_u32 {d0}, {d0}, {d1}",
                          Ins(f"buffer_load_dwordx4 {voQ}, {sWQ}, {d0} offen offset:{cb} lds", xdst=[tag])]))
            out.append(I([f"s_add_u32 {d0}, {d0}, {16 * 3072 - 1024}",
                          Ins(f"buffer_load_dwordx4 {voQ}, {sWQ}, {d0} offen offset:{cb + 1024} lds", xdst=[tag])]))
    return out

KP = opt("KP", 0)
voK = "v119"

def kp_off(v):
    return [f"s_and_b32 {d0}, {sM}, 1", f"s_lshl_b32 {d0}, {d0}, 6", f"v_xor_b32 {v}, {d0}, {v}", f"s_mul_i32 {d0}, {d0}, 15", f"s_add_u32 {d0}, {d0}, 1024", f"v_add_u32 {v}, {d0}, {v}"]

def wkv_items():
    if not KP:
        kv = wq_items([0, 1], "wkv")
        kv[0] = wq_setup(1024) + kv[0]
        return kv
    out = []
    for q in range(4):
        for j in range(4):
            o = [f"s_xor_b32 {d0}, {sRR}, {q}", f"s_mul_i32 {d0}, {d0}, {128 * 3072}", f"s_lshl1_add_u32 m0, {d2}, {q * 16384}", f"s_add_u32 {d0}, {d0}, {d1}"] if j == 0 else [f"s_add_u32 {d0}, {d0}, {8 * 3072 - 1024}"]
            out.append(I(o + [Ins(f"buffer_load_dwordx4 {voQ}, {sWQ}, {d0} offen offset:{1024 * j} lds", xdst=["wkv"])]))
    out[0] = wq_setup() + I([f"v_bfe_u32 {voQ}, {vL}, 2, 3", f"v_lshlrev_b32 {voQ}, 9, {voQ}", f"v_sub_u32 {voQ}, {vo1}, {voQ}"] + kp_off(voQ)) + out[0]
    return out

def wq_setup(cb=0):
    return I([f"s_mul_i32 {d1}, {sW}, {32 * 3072}", f"s_lshl_b32 {d2}, {sM}, 6", f"s_add_u32 {d1}, {d1}, {d2}",
              f"s_lshl_b32 {d2}, {sW}, 11"] + ([f"s_add_u32 {d1}, {d1}, {cb}"] if cb else []))

vX0, vX1, XA = "v112", "v113", 120

def x0_items(h):
    out = []
    for j in range(4):
        it = []
        if j == 0:
            it += [f"s_xor_b32 {d1}, {t5}, {h}", f"s_lshl_b32 {d1}, {d1}, 7", f"s_add_u32 {d1}, {d1}, {t3}", f"s_add_u32 m0, {d3}, {SL + 4096 * (h & 3)}"]
        else:
            it.append(f"s_add_u32 {d1}, {d1}, 7168")
        it.append(Ins(f"buffer_load_dwordx4 {vX1 if j & 1 else vX0}, {sX}, {d1} offen offset:{j * 1024}{ntm(sX)} lds", xdst=[f"x{h}"]))
        out.append(I(it))
    return out

def w0_items(h, imgs=(0, 1), tag=None):
    out = []
    if KP and imgs == (0, 1):
        imgs = ()
        out = [I([f"s_lshl1_add_u32 m0, {d2}, {8192 * h}", Ins(f"buffer_load_dwordx4 {voK}, {sWQ}, {d1} offen lds", xdst=[f"kv{h}"])]),
               I([f"s_add_u32 {d0}, {d1}, {8 * 3072 - 1024}", Ins(f"buffer_load_dwordx4 {voK}, {sWQ}, {d0} offen offset:1024 lds", xdst=[f"kv{h}"])])]
    for img in imgs:
        cb = (1024, 2048, 0)[img]
        out += dma(sWQ, voQ, d1, [cb], d2, img * 32768 + h * 4096, tag or f"kv{h}")
    out[0] = I([f"s_xor_b32 {d1}, {t5}, {h}", f"s_mul_i32 {d1}, {d1}, {64 * 3072}", f"s_add_u32 {d1}, {d1}, {t4}"]) + out[0]
    return out

def w2_piece(kks, mul, imm, tag, vb):
    goffs = []
    for kk in kks:
        s, i = kk // 7, kk % 7
        goffs += [(128 * i + 32 * s + 8 * h) * 1024 for h in range(2)]
    dm = dma(sW2, vo2, sW2B, goffs, d2, imm, tag)
    dm[0] = I(f"s_mul_i32 {d2}, {sW}, {mul}") + dm[0]
    rd = [I([f"s_mul_i32 {u0}, {sW}, {mul}", f"s_add_u32 {u0}, {u0}, {imm}", f"v_add_u32 {vb}, {u0}, {vTP}", need_ins(tag)])]
    for j, kk in enumerate(kks):
        for ct in range(2):
            rd.append(tr("a", (kk * 2 + ct) * 4, vb, 2048 * j + 512 * ct))
    return dm, rd

def w2_round(rnd, vb):
    k = {1: 13, 2: 0, 3: 18, 4: 23}[rnd]
    pieces = {1: [(5, 16384, 0)],
              2: [(8, 16384, 0), (4, 8192, R2), (1, 2048, SPARE)],
              3: [(4, 8192, R2), (1, 2048, SPARE)],
              4: [(4, 8192, SL), (1, 2048, SPARE)]}[rnd]
    dm, rd = [], []
    for n, (cnt, mul, imm) in enumerate(pieces):
        a, b = w2_piece(list(range(k, k + cnt)), mul, imm, f"w2r{rnd}_{n}", vb)
        dm += a; rd += b
        k += cnt
    return dm, rd

def wo_items(rot=False):
    it = dma_rot(sWO, vo2, d1, 16, 8192, 0, d2, 0, "wo", sRR) if rot else dma(sWO, vo2, d1, [j * 8 * 1024 for j in range(16)], d2, 0, "wo")
    it[0] = I([f"s_and_b32 {d1}, {sW}, 1", f"s_lshl_b32 {d1}, {d1}, 18", f"s_lshr_b32 {d2}, {sW}, 1", f"s_xor_b32 {d2}, {d2}, {sRR}", f"s_and_b32 {d2}, {d2}, 1", f"s_lshl_b32 {d2}, {d2}, 17",
               f"s_add_u32 {d1}, {d1}, {d2}", f"s_and_b32 {d2}, {sCT}, 14", f"s_lshl_b32 {d2}, {d2}, 6", f"s_add_u32 {d1}, {d1}, {d2}",
               f"s_lshl_b32 {d2}, {sW}, 14"]) + it[0]
    return it

def wo_reads(va):
    rd = [I([f"s_lshl_b32 {u0}, {sW}, 14", f"v_add_u32 {va}, {u0}, {vTP}", need_ins("wo")])]
    return rd + [tr("v", 128 + (ks * 2 + ct) * 4, va, 2048 * ks + 512 * ct) for ks in (0, 2, 4, 6, 1, 3, 5, 7) for ct in range(2)]

def idle(*regs):
    if not opt("IDL", 1):
        return []
    return [f"s_cmp_ge_u32 {sM}, 14"] + [f"s_cselect_b32 {r}, {OOB}, {r}" for r in regs]

def w1_items(part, rot=False):
    if part == "AB":
        rows, n, g0, sh, imm = 128, 16, 0, 14, 0
        pre = [f"s_xor_b32 {d1}, {sW}, {sRR}"]
    else:
        rows, n, sh, g0 = 64, 8, 13, 128
        imm = R2 if part == "CD1" else SL
        pre = [f"s_lshl_b32 {d1}, {sRR}, 1", f"s_xor_b32 {d1}, {d1}, {sW}"] + ([f"s_xor_b32 {d1}, {d1}, 4"] if part == "CD2" else [])
    if rot:
        it = dma_rot(sW1, vo1, d1, n, 8 * 3584, g0, d2, imm, "w1" + part, u3)
        pre = pre + [f"s_and_b32 {u3}, {sRR}, 1"] + ([f"s_lshl_b32 {u3}, {u3}, 1"] if n == 16 else [])
    else:
        it = dma(sW1, vo1, d1, [g0 + j * 8 * 3584 for j in range(n)], d2, imm, "w1" + part)
    it[0] = I(pre + [f"s_mul_i32 {d1}, {d1}, {rows * 3584}", f"s_lshl_b32 {d2}, {sM}, 8", f"s_add_u32 {d1}, {d1}, {d2}"] + idle(d1) +
              [f"s_lshl_b32 {d2}, {sW}, {sh}"]) + it[0]
    return it


def asel(n):
    return I([f"v_lshrrev_b32 v{n}, 2, {vL}", f"v_xor_b32 v{n}, v{n}, {vL}", f"v_bfe_u32 v{n}, v{n}, 2, 1",
              f"v_add_u32 v{n}, -1, v{n}", f"v_and_b32 v{n}, 0x3f803f80, v{n}",
              f"v_mov_b32 v{n + 1}, v{n}", f"v_mov_b64 {V(n + 2, 2)}, {V(n, 2)}"])


def table_write(c, tab, va, bias=None, tag=None):
    o = [f"v_cvt_pk_bf16_f32 v{c + 2}, v{c}, v{c}",
         f"v_lshlrev_b32 v{c + 1}, 16, v{c + 2}",
         f"v_sub_f32 v{c + 1}, v{c}, v{c + 1}",
         f"v_and_b32 v{c + 3}, 0xffff, v{c + 2}",
         f"v_cvt_pk_bf16_f32 v{c + 2}, v{c}, v{c + 1}"]
    if bias:
        o.append(f"v_lshl_or_b32 v{c + 3}, {bias}, 16, v{c + 3}")
    o.append(Ins(f"ds_write_b64 {va}, {V(c + 2, 2)} offset:{tab * 1024}", **(dict(xdst=[tag]) if tag else {})))
    return [I(x) for x in o]


def table_addr(va):
    return I([f"s_lshr_b32 {u0}, {sW}, 1", f"s_lshl_b32 {u0}, {u0}, 9", f"s_and_b32 {u1}, {sW}, 1", f"s_lshl_b32 {u1}, {u1}, 3",
              f"s_add_u32 {u0}, {u0}, {u1}", f"s_add_u32 {u0}, {u0}, {TAB0}",
              f"v_and_b32 {va}, 0x1f0, {vL16}", f"v_add_u32 {va}, {u0}, {va}"])


def stats_finish(a, b, c, d, ex, mlp, r, ir):
    o = [f"v_mul_f32 {a}, {fc(-1.0 / 512)}, {a}",
         f"v_mul_f32 {c}, {a}, {a}",
         f"v_fma_f32 {b}, {b}, {u3}, -{c}",
         f"v_cvt_pk_bf16_f32 v{ex}, {a}, {a}",
         f"v_max_f32 {b}, 0, {b}",
         f"v_add_f32 {c}, {fc(EPS)}, {b}",
         f"v_rsq_f32 {r}, {c}",
         f"v_lshlrev_b32 {d}, 16, v{ex}",
         f"v_sub_f32 {d}, {a}, {d}"]
    o = [f"s_mov_b32 {u3}, {fc(1.0 / 512)}"] + o
    if mlp:
        o += [f"v_mul_f32 {b}, {b}, {r}", f"v_mul_f32 {b}, {b}, {r}", f"v_add_f32 {b}, {fc(EPS)}, {b}",
              f"v_rsq_f32 {b}, {b}", f"v_mov_b32 v{ex + 2}, v{ex}", f"v_mul_f32 {r}, {b}, {r}", f"v_rcp_f32 {ir}, {r}",
              f"v_cvt_pk_bf16_f32 v{ex + 1}, {d}, {ir}", f"v_and_b32 {a}, 0xffff0000, v{ex + 1}", f"v_sub_f32 {a}, {ir}, {a}",
              f"v_cvt_pk_bf16_f32 v{ex + 3}, {d}, {a}"]
    else:
        o += [f"v_mov_b32 v{ex + 2}, v{ex}", f"v_cvt_pk_bf16_f32 v{ex + 1}, {d}, {d}", f"v_mov_b32 v{ex + 3}, v{ex + 1}"]
    return [I(x) for x in o]


def x_loads(xoff, stoff, stv):
    setup = I([f"s_lshl_b32 {t1}, {sT}, 2", f"s_add_u32 {t1}, {t1}, {sRR}", f"s_lshl_b32 {t1}, {t1}, 13", f"s_add_u32 {t1}, {t1}, {xoff}", f"s_lshl_b32 {t2}, {sT}, 12", f"s_add_u32 {t2}, {t2}, {stoff}", f"v_lshlrev_b32 v{stv + 15}, 2, {vL}"])
    items = []
    for t in range(32):
        if t == opt("XSP", 16):
            for s in range(0, 16, 4):
                items.append(I([f"buffer_load_dword v{stv + s + e}, v{stv + 15}, {sWS}, {t2} offen offset:{(s + e) * 256} sc1" for e in range(4)]))
        o = []
        if t % 4 == 0:
            o.append(f"s_xor_b32 {t0}, {t1}, {t * 1024}")
        o.append(f"buffer_load_dwordx4 {V(XF + 4 * t)}, {vL16}, {sOUT if opt('RU', 0) >= 3 else sWS}, {t0} offen offset:{(t % 4) * 1024} sc1{ntm('X')}")
        items.append(I(o))
    return setup, items


def attach(groups, items, start=0, per=1):
    items = list(items)
    for n in range(start, len(groups)):
        for _ in range(per):
            if items:
                groups[n] = groups[n] + I(items.pop(0))
    assert not items
    return groups


def stats_sum(stv, vc=None):
    o = []
    for st in (8, 4, 2, 1):
        for i in range(st):
            o.append(f"v_add_f32 v{stv + i}, v{stv + i}, v{stv + i + st}")
    if vc:
        o += [[f"v_cmp_u_f32 vcc, v{stv}, v{stv}", f"v_mov_b32 v{stv + 1}, v{stv}", "s_nop 0", f"v_cndmask_b32_e64 {vc}, {vc}, -1, vcc"], f"v_permlane32_swap_b32 v{stv}, v{stv + 1}"]
    else:
        o += [f"v_mov_b32 v{stv + 1}, v{stv}", "s_nop 0", f"v_permlane32_swap_b32 v{stv}, v{stv + 1}"]
    return [I(x) for x in o]


def prologue():
    P("s_cmp_ge_u32 s2, 256")
    P("s_cbranch_scc1 L_end")
    P.add(tick("s.start"))
    P("s_load_dwordx16 s[64:79], s[0:1], 0")
    P("s_load_dwordx4 s[80:83], s[0:1], 64")
    P("s_load_dwordx2 s[84:85], s[0:1], 80")
    if opt("CPF", 0):
        P("s_getpc_b64 s[86:87]")
        P.put("L_pc")
        P("v_lshrrev_b32 v16, 3, v0")
        P("s_lshr_b32 s88, s2, 3")
        if opt("CPF", 0) == 1:
            P("v_lshl_add_u32 v16, v16, 5, s88")
        else:
            P("s_lshl_b32 s88, s88, 5")
            P("v_add_u32 v16, s88, v16")
        P("v_lshlrev_b32 v16, 7, v16")
        P("v_min_u32 v16, L_ce-L_pc, v16")
        P("global_load_dword a235, v16, s[86:87]")
    P(f"v_lshrrev_b32 {x0}, 6, v0")
    P("v_and_b32 v0, 63, v0")
    P(f"v_readfirstlane_b32 {sW}, {x0}")
    P("s_and_b32 s3, s2, 7")
    P(f"s_lshl_b32 {sC}, s3, 1")
    P("s_bfe_u32 s3, s2, 0x10003")
    P(f"s_or_b32 {sC}, {sC}, s3")
    P(f"s_lshr_b32 {sM}, s2, 4")
    if opt("MX", 0):
        P(f"s_xor_b32 {sM}, {sM}, {opt('MX', 0)}")
    P(f"v_lshlrev_b32 {vL16}, 4, {vL}")
    P(f"s_lshl_b32 {sT}, {sC}, 2")
    P(f"s_add_u32 {sT}, {sT}, {sW}")
    P(f"v_lshrrev_b32 {x0}, 3, {vL}")
    P(f"v_xor_b32 {x2}, {x0}, {vL}")
    P(f"v_and_b32 {x2}, 7, {x2}")
    P(f"v_lshlrev_b32 {x2}, 4, {x2}")
    P(f"v_lshl_add_u32 {vX0}, {x0}, 10, {x2}")
    P(f"v_xor_b32 {vX1}, 16, {vX0}")
    P(f"v_lshrrev_b32 {x1}, 5, {vL}")
    P(f"v_lshrrev_b32 {voQ}, 2, {vL}")
    P(f"v_mul_u32_u24 {voQ}, 3072, {voQ}")
    P(f"v_and_b32 {x0}, 0x30, {vL16}")
    P(f"v_add_u32 {voQ}, {voQ}, {x0}")
    if KP:
        P.add(I([f"v_bfe_u32 {voK}, {vL}, 2, 3", f"v_mul_u32_u24 {voK}, 3072, {voK}", f"v_add_u32 {voK}, {voK}, {x0}", f"v_lshl_add_u32 {voK}, {x1}, 6, {voK}"] + kp_off(voK)))
    P(f"s_lshl_b32 {t5}, s3, 1")
    P(f"s_and_b32 {t0}, {sM}, 1")
    P(f"s_or_b32 {t5}, {t5}, {t0}")
    P(f"s_bfe_u32 {t0}, {sM}, 0x20001")
    P(f"s_xor_b32 {t5}, {t5}, {t0}")
    ROT = opt("ROT", 0)
    if ROT == 0:
        P(f"s_mov_b32 {t5}, 0")
    elif ROT == 1:
        P(f"s_and_b32 {t5}, {t5}, 1")
        P(f"s_lshl_b32 {t5}, {t5}, 1")
    elif ROT == 2:
        P(f"s_lshl_b32 {t5}, {t5}, 1")
    elif ROT == 3:
        P(f"s_and_b32 {t5}, {t5}, 1")
    elif ROT == 4:
        P(f"s_lshr_b32 {t5}, {sM}, 1")
    elif ROT == 5:
        P(f"s_lshr_b32 {t5}, {sM}, 1")
        P(f"s_lshl_b32 {t0}, s3, 2")
        P(f"s_xor_b32 {t5}, {t5}, {t0}")
    elif ROT == 6:
        P(f"s_and_b32 {t5}, {sM}, 7")
    elif ROT == 7:
        P(f"s_lshr_b32 {t5}, {sM}, 2")
        P(f"s_lshl_b32 {t5}, {t5}, 1")
    elif ROT == 8:
        P(f"s_lshl_b32 {t5}, {t5}, 1")
        P(f"s_lshr_b32 {t0}, {sM}, 3")
        P(f"s_or_b32 {t5}, {t5}, {t0}")
    if opt("ROTX", 0):
        P(f"s_and_b32 {t0}, s2, 7")
        P(f"s_xor_b32 {t5}, {t5}, {t0}")
    P(f"s_lshl_b32 {t3}, {sT}, 15")
    P(f"s_mul_i32 {t4}, {sW}, {16 * 3072}")
    P(f"s_lshl_b32 {d2}, {sM}, 6")
    P(f"s_add_u32 {t4}, {t4}, {d2}")
    P(f"s_lshl_b32 {d2}, {sW}, 10")
    P(f"s_lshl_b32 {d3}, {sW}, 14")
    def srd(n, src, size):
        P(f"s_mov_b64 s[{n}:{n + 1}], s[{src}:{src + 1}]")
        P(f"s_mov_b32 s{n + 2}, {size}")
        P(f"s_mov_b32 s{n + 3}, 0x00020000")
    ini = init_l0()
    P.add(I(ini[0]))
    P.add(tick("s.i0"))
    P.add(tick("s.ka"))
    srd(28, 84, 64 * MB)
    srd(8, 64, 2 * MB)
    srd(12, 66, 512 * 1536 * 2)
    IP = [int(c) for c in OPT.get("IP", "11020")]
    assert sum(IP) == 4
    global INI
    INI = ini[1:5]
    H3 = opt("H3", 0)
    h3 = I([f"s_lshr_b32 {sTI}, s2, 3", f"s_cmp_ge_u32 {sM}, 8", f"s_cselect_b32 {u0}, 4, 0", f"s_sub_u32 {sTI}, {sTI}, {u0}", f"s_lshl_b32 {sTI}, {sTI}, 2", f"s_add_u32 {sTI}, {sTI}, {sW}",
            f"s_lshr_b32 {u0}, {sM}, 1", f"s_cmp_eq_u32 {u0}, 3", f"s_cselect_b32 {sTI}, 0x10000, {sTI}"]) if X3 or H3 else []
    if H3:
        h3 += help3("a232", "v23", u0)
    XFI = opt("XFI", 0)
    pre = ini[5:] + INI[:IP[0]] + (h3 if H3 == 3 else [])
    fst = x0_items(0) + w0_items(0)
    if XFI == 2:
        fst = w0_items(0) + x0_items(0)
    P.add(I((fst + pre if XFI in (1, 2) else pre + fst) + (h3 if H3 == 2 else []) + INI[IP[0]:IP[0] + IP[1]] + x0_items(1) + w0_items(1) + INI[IP[0] + IP[1]:sum(IP[:3])]))
    if H3 < 2:
        P.add(h3)
    INI = [INI[sum(IP[:3]):sum(IP[:4])], INI[sum(IP[:4]):]]
    if opt("TLB", 0):
        lsk = P.label()
        P.add(I([f"s_cmp_lg_u32 {sW}, 3", f"s_cbranch_scc1 {lsk}", f"v_min_u32 v16, 41, {vL}", "v_lshlrev_b32 v16, 20, v16", f"s_lshl_b32 {u0}, s2, 7",
                 f"buffer_load_dword a235, v16, {sWS}, {u0} offen", lsk + ":"]))
    P.add(tick("s.c0"))
    srd(44, 82, 256)
    P(f"s_getreg_b32 {sMODE}, hwreg(HW_REG_XCC_ID, 0, 4)")
    P(f"s_or_b32 {sMODE}, {sMODE}, 0x10")
    P.add(lead_init())
    srd(16, 68, 512 * 512 * 2)
    srd(20, 72, 512 * 1792 * 2)
    srd(24, 76, 1792 * 512 * 2)
    srd(32, 80, 2 * MB)
    srd(36, 78, 1024)
    srd(40, 74, 3584)
    P(f"s_lshr_b32 {u0}, s2, 2")
    P(f"s_xor_b32 {u0}, {u0}, s2")
    P(f"s_bfe_u32 {sRR}, {u0}, 0x20003")
    if not (X3 or H3) or (EF and not X3):
        P(f"s_mov_b32 {sRT}, 1000")
    if not opt("RR", 1):
        P(f"s_mov_b32 {sRR}, 0")
    P(f"v_bfe_u32 {x0}, {vL}, 2, 2")
    P(f"v_lshl_add_u32 {x0}, {x1}, 3, {x0}")
    P(f"v_lshlrev_b32 {x0}, 6, {x0}")
    P(f"v_bfe_u32 {x2}, {vL}, 4, 1")
    P(f"v_lshl_add_u32 {x0}, {x2}, 5, {x0}")
    P(f"v_and_b32 {x2}, 1, {vL}")
    P(f"v_lshl_add_u32 {x0}, {x2}, 4, {x0}")
    P(f"v_bfe_u32 {x2}, {vL}, 1, 1")
    P(f"v_lshl_add_u32 {vTR}, {x2}, 3, {x0}")
    P(f"v_add_u32 {vTR1}, 0x10000, {vTR}")
    P(f"v_lshl_add_u32 {vTP}, {x1}, 9, {vTR}")
    P(f"v_add_u32 {vTP1}, 0x10000, {vTP}")
    P(f"s_and_b32 {t0}, {sM}, 1")
    P(f"s_lshl_b32 {t0}, {t0}, 1")
    P(f"s_lshl_b32 {sTP}, {sC}, 2")
    P(f"s_add_u32 {sTP}, {sTP}, {t0}")
    P(f"s_lshr_b32 {t0}, {sW}, 1")
    P(f"s_add_u32 {sTP}, {sTP}, {t0}")
    P(f"s_and_b32 {u0}, {sM}, 14")
    P(f"s_and_b32 {u1}, {sW}, 1")
    P(f"s_add_u32 {sCT}, {u0}, {u1}")
    P(f"s_mul_i32 {sW2B}, {t0}, {896 * 1024}")
    P(f"s_lshl_b32 {t0}, {u1}, 14")
    P(f"s_add_u32 {sW2B}, {sW2B}, {t0}")
    P(f"s_lshl_b32 {u0}, {u0}, 6")
    P(f"s_add_u32 {sW2B}, {sW2B}, {u0}")
    P(f"v_bfe_u32 {x0}, {vL}, 2, 3")
    P(f"v_and_b32 {x2}, 0x30, {vL16}")
    P(f"v_mul_u32_u24 {vo1}, 3584, {x0}")
    P(f"v_lshl_add_u32 {vo2}, {x0}, 10, {x2}")
    P(f"v_add_u32 {vo1}, {vo1}, {x2}")
    P(f"v_lshl_add_u32 {vo1}, {x1}, 6, {vo1}")
    P(f"v_xor_b32 {x0}, {u1}, {x1}")
    P(f"v_lshl_add_u32 {vo2}, {x0}, 6, {vo2}")
    P(f"v_and_b32 {x0}, 31, {vL}")
    P(f"v_lshlrev_b32 {x2}, 2, {x1}")
    P(f"v_sub_u32 {x0}, {x0}, {x2}")
    for r in range(16):
        P(f"v_cmp_le_i32_e64 {sMASK(r)}, {(r & 3) + 8 * (r >> 2)}, {x0}")
    P(f"v_mov_b32 {x0}, 0xffff")
    P(f"v_mov_b32 {x2}, 0xffff0000")
    for d in range(8):
        P(f"v_cndmask_b32_e64 v16, 0, {x0}, {sMASK(2 * d)}")
        P(f"v_cndmask_b32_e64 v17, 0, {x2}, {sMASK(2 * d + 1)}")
        P(f"v_or_b32 v16, v16, v17")
        P(f"v_accvgpr_write_b32 a{240 + d}, v16")


def init_kv(L, tag):
    it = []
    if L:
        it.append(I(f"s_add_u32 {u2}, {u2}, {LSTRIDE}"))
    for j in range(4):
        it.append(I([f"s_xor_b32 {u2}, {u2}, 4096"] if KP and j == 2 else []) +
                  [Ins(f"buffer_store_dwordx4 a[236:239], {vL16}, {sWS}, {u2} offen offset:{2048 * (j & 1) if KP else 1024 * j} sc1{NK}", xdst=[tag])])
    return it


def init_l0():
    it = [I([f"v_accvgpr_write_b32 a{236 + i}, -1" for i in range(4)] +
            [f"s_lshl_b32 {u2}, {sT}, 4", f"s_add_u32 {u2}, {u2}, {sM}", f"s_lshl_b32 {u2}, {u2}, 12", f"s_add_u32 {u2}, {u2}, {LB(0) + KV_O}"] +
            ([f"s_and_b32 {u0}, {sM}, 1", f"s_lshl_b32 {u0}, {u0}, 10", f"s_add_u32 {u2}, {u2}, {u0}"] if KP else []) +
            ["v_mov_b32 v20, 0", f"s_lshl_b32 {u0}, {sC}, 4", f"s_add_u32 {u0}, {u0}, {sM}", f"s_lshl_b32 {sFP}, {u0}, 7", f"s_add_u32 {sFP}, {sFP}, {MBOX}",
             f"s_lshl_b32 {u0}, {u0}, 2", f"s_add_u32 {sFA}, {u0}, {sW}",
             f"s_lshl_b32 {t1}, {sC}, 9", f"s_lshl_b32 {u0}, {sM}, 2", f"s_add_u32 {t1}, {t1}, {u0}", f"s_add_u32 {t1}, {t1}, {ARR}",
             f"v_lshrrev_b32 v21, 4, {vL}", f"v_and_b32 {vPO}, 15, {vL}", f"v_lshlrev_b32 {vPO}, 2, {vPO}", f"v_lshl_add_u32 v22, v21, 7, {vPO}",
             f"s_or_b32 {t2}, {sM}, {sW}"])]
    it += init_kv(0, "init")
    lsk = P.label()
    it.append(I([f"s_cmp_lg_u32 {t2}, 0", f"s_cbranch_scc1 {lsk}", f"buffer_store_dword v20, v22, {sWS}, {t1} offen sc1", lsk + ":"]))
    it.append([Ins(f"buffer_store_dword v20, off, {sWS}, {sFP} sc1", xdst=["init"])])
    if SP:
        it[opt("SPI", 4)] += I(["v_mov_b64 v[18:19], 0", f"v_lshlrev_b32 v17, 3, {vL}", f"s_lshl_b32 {u1}, {sFA}, 9", f"s_add_u32 {u1}, {u1}, {SFB}",
                                Ins(f"buffer_store_dwordx2 v[18:19], v17, {sWS}, {u1} offen sc1", xdst=["init"])])
    return it


def lead_init():
    lsk = P.label()
    return I([f"s_cmp_lg_u32 {t2}, 0", f"s_cbranch_scc1 {lsk}",
              f"s_min_u32 {u0}, {sC}, 2", f"v_cmp_ge_u32 vcc, {u0}, v21", f"v_cndmask_b32 {vPO}, {vPO}, v22, vcc",
              f"v_lshlrev_b32 v21, 2, {vL}", f"v_lshlrev_b32 v22, 7, {vL}", f"s_lshl_b32 {u0}, {sC}, 8", f"s_add_u32 {u0}, {u0}, {FPACK}", f"s_lshl_b32 {u1}, {sC}, 13",
              f"buffer_store_dword v20, v21, {sWS}, {u0} offen sc1", f"buffer_store_dword v20, v22, {sWS}, {u1} offen sc1", lsk + ":"])


def arrive(vd, so):
    return ["s_mov_b64 exec, 7", f"buffer_store_dword {vd}, {vPX}, {sWS}, {so} offen sc1", "s_mov_b64 exec, -1"]


def misc_l0():
    it = []
    it.append(I([f"v_and_b32 v21, 31, {vL}", f"v_lshrrev_b32 v22, 5, {vL}", "v_lshlrev_b32 v21, 10, v21", "v_lshlrev_b32 v22, 4, v22",
                 "v_add_u32 v21, v21, v22",
                 f"s_lshl_b32 {u0}, {sTP}, 15", f"s_lshl_b32 {u1}, {sCT}, 6", f"s_add_u32 {u0}, {u0}, {u1}"]))
    it.append(I(f"buffer_load_dwordx4 a[224:227], v21, {sX}, {u0} offen"))
    it.append(I(f"buffer_load_dwordx4 a[228:231], v21, {sX}, {u0} offen offset:32"))
    it.append(I(f"buffer_load_dwordx4 a[248:251], v22, {sB2}, {u1} offen"))
    it.append(I(f"buffer_load_dwordx4 a[252:255], v22, {sB2}, {u1} offen offset:32"))
    return it


def thm(va, sh):
    return [f"v_and_b32 {va}, {hex(0xffffff80 | opt('THM', 0))}, {va}"] if opt("TH", 0) and sh < 7 else []


def touch(srd, total, vt, va, st=u0, sh=7, grp=None):
    share, pb = total // 128, 64 << sh
    it = [I([f"s_lshr_b32 {st}, s2, 3", f"s_lshl_b32 {st}, {st}, 2", f"s_add_u32 {st}, {st}, {sW}", f"s_mul_i32 {st}, {st}, {share}",
             f"v_lshlrev_b32 {va}, {sh}, {vL}"] + thm(va, sh))]
    if X3:
        share = (total + 112 * 128 - 1) // (112 * 128) * 128
        it = [I([f"s_mul_i32 {st}, {sTI}, {share}", f"v_lshlrev_b32 {va}, {sh}, {vL}"])]
    if grp is not None:
        it[0] += I([f"s_bitcmp{grp}_b32 s2, {opt('GB', 3)}", f"s_cselect_b32 {st}, {st}, {OOB}"])
    pos, base = 0, 0
    while pos < share:
        a = min(pos, share - pb)
        assert a >= 0
        o = []
        if a - base >= 4096:
            o.append(f"s_add_u32 {st}, {st}, {a - base}")
            base = a
        o.append(f"buffer_load_dword {vt}, {va}, {srd}, {st} offen offset:{a - base}{ntm(srd)}")
        it.append(I(o))
        pos += pb
    it[1] = it[0] + it[1]
    return it[1:]


def help3(vt, va, st):
    return I([f"s_mul_i32 {st}, {sTI}, 14336", f"v_min_u32 {va}, 13, {vL}", f"v_lshlrev_b32 {va}, 10, {va}",
              f"buffer_load_dword {vt}, {va}, {sWQ}, {st} offen offset:384"])


def touch_ab(vt, va, st, odd=0):
    it = [I([f"s_lshr_b32 {st}, s2, 3", f"s_lshl_b32 {st}, {st}, 2", f"s_add_u32 {st}, {st}, {sW}", f"s_mul_i32 {st}, {st}, 14336",
             f"v_lshrrev_b32 {va}, 2, {vL}", f"v_lshlrev_b32 {va}, 8, {va}", f"buffer_load_dword {vt}, {va}, {sW1}, {st} offen offset:{128 * odd}"])]
    for d in (4096, 4096, 2048):
        it.append(I([f"s_add_u32 {st}, {st}, {d}", f"buffer_load_dword {vt}, {va}, {sW1}, {st} offen offset:{128 * odd}"]))
    return it


def touch_qkv(va, vb):
    return [I([f"s_lshr_b32 {u0}, s2, 3", f"s_lshl_b32 {u0}, {u0}, 2", f"s_add_u32 {u0}, {u0}, {sW}", f"s_mul_i32 {u0}, {u0}, {4 * 3072}",
               f"v_lshrrev_b32 {va}, 4, {vL}", f"v_mul_u32_u24 {va}, 3072, {va}", f"v_and_b32 {vb}, 15, {vL}", f"v_lshl_add_u32 {va}, {vb}, 6, {va}",
               f"v_lshl_add_u32 {vb}, {vb}, 6, {va}",
               f"buffer_load_dword {vb}, {vb}, {sWQ}, {u0} offen offset:1024"] +
              ([f"buffer_load_dword {va}, {va}, {sWQ}, {u0} offen"] if opt("TKV", 0) > 1 else []))]


def touch_wq(vt, st):
    return [I([f"s_lshr_b32 {st}, s2, 3", f"s_mul_i32 {st}, {st}, {16 * 3072}", f"s_lshl_b32 {d0}, {sW}, 8", f"s_add_u32 {st}, {st}, {d0}",
               f"buffer_load_dword {vt}, {voQ}, {sWQ}, {st} offen"]),
            I(f"buffer_load_dword {vt}, {voQ}, {sWQ}, {st} offen offset:128")]


aK, aV, aQ, RING, STV, EX, TABS = 16, 32, 48, 64, 96, 112, 116
HB = XF


def kv_epilogue(L):
    r = x0
    it = []
    PKE = opt("PKE", 0)
    for i in range(16):
        if PKE:
            it.append([] if i & 1 else f"v_pk_mul_f32 {V(aK + i, 2)}, {V(aK + i, 2)}, v[12:13] op_sel:[0,1]")
        else:
            it.append(f"v_mul_f32 v{aK + i}, v{aK + i}, {r}")
    for i in range(8):
        it.append(f"v_cvt_pk_bf16_f32 v{aK + i}, v{aK + 2 * i}, v{aK + 2 * i + 1}")
    it.append([f"s_lshl_b32 {u0}, {sT}, 4", f"s_add_u32 {u0}, {u0}, {sM}", f"s_lshl_b32 {u0}, {u0}, 12", f"s_add_u32 {u0}, {u0}, {LB(L) + KV_O}"])
    it.append(f"buffer_store_dwordx4 {V(aK)}, {vL16}, {sWS}, {u0} offen sc1{NK}")
    it.append(f"buffer_store_dwordx4 {V(aK + 4)}, {vL16}, {sWS}, {u0} offen offset:2048 sc1{NK}")
    for i in range(16):
        if PKE:
            it.append([] if i & 1 else f"v_pk_mul_f32 {V(aV + i, 2)}, {V(aV + i, 2)}, {V(STV + i, 2)}")
        else:
            it.append(f"v_mul_f32 v{aV + i}, v{aV + i}, v{STV + i}")
    for i in range(8):
        it.append(f"v_cvt_pk_bf16_f32 v{aV + i}, v{aV + 2 * i}, v{aV + 2 * i + 1}")
    it.append(f"buffer_store_dwordx4 {V(aV)}, {x2}, {sWS}, {u0} offen offset:1024 sc1{NK}")
    it.append(f"buffer_store_dwordx4 {V(aV + 4)}, {x2}, {sWS}, {u0} offen offset:1536 sc1{NK}")
    it.append([f"s_mul_i32 {u1}, {sW}, {PITCH}", f"s_add_u32 {u1}, {u1}, {SL + 8 * PITCH}"])
    it.append(f"v_add_u32 {x1}, {u1}, {vL16}")
    it.append(f"v_add_u32 {x2}, {u1}, {x2}")
    it.append(f"ds_write_b128 {x1}, {V(aK)}")
    it.append(f"ds_write_b128 {x1}, {V(aK + 4)} offset:2048")
    it.append(f"ds_write_b128 {x2}, {V(aV)} offset:1024")
    it.append(f"ds_write_b128 {x2}, {V(aV + 4)} offset:1536")
    it.append(f"v_mul_f32 {r}, {fc(0.25 * LOG2E)}, {r}")
    return [I(x) for x in it]


def kp_epilogue(L, par):
    it = [[f"s_lshl_b32 {u0}, {sT}, 4", f"s_add_u32 {u0}, {u0}, {sM}", f"s_lshl_b32 {u0}, {u0}, 12", f"s_add_u32 {u0}, {u0}, {LB(L) + KV_O}", f"s_xor_b32 {u1}, {u0}, 4096"]]
    va, offs = (x2, (1024, 1536)) if par else (vL16, (0, 2048))
    for a, so in ((aV, u1), (aK, u0))[::opt("KPO", 1)]:
        for hf in range(2):
            for i in range(8 * hf, 8 * hf + 8, 2):
                it.append(f"v_pk_mul_f32 {V(a + i, 2)}, {V(a + i, 2)}, " + (V(STV + i, 2) if par else "v[12:13] op_sel:[0,1]"))
            for i in range(4 * hf, 4 * hf + 4):
                it.append(f"v_cvt_pk_bf16_f32 v{a + i}, v{a + 2 * i}, v{a + 2 * i + 1}")
            it.append(f"buffer_store_dwordx4 {V(a + 4 * hf)}, {va}, {sWS}, {so} offen offset:{offs[hf]} sc1{NK}")
    it.append([f"s_mul_i32 {u1}, {sW}, {PITCH}", f"s_add_u32 {u1}, {u1}, {SL + 8 * PITCH}"])
    it.append(f"v_add_u32 {x1}, {u1}, {va}")
    it.append(f"ds_write_b128 {x1}, {V(aK)} offset:{offs[0]}")
    it.append(f"ds_write_b128 {x1}, {V(aK + 4)} offset:{offs[1]}")
    it.append(f"v_mul_f32 {x0}, {fc(0.25 * LOG2E)}, {x0}")
    return [I(x) for x in it]


def kmf(a, w, x, c, par):
    return f"{MF} {V(a, 16)}, {V(x if par else w)}, {V(w if par else x)}, {V(a, 16) if c else 0}"


def fork(fn):
    if not KP:
        return P.add(I(fn(None)))
    l1, lj = P.label(), P.label()
    P(f"s_bitcmp1_b32 {sM}, 0")
    P(f"s_cbranch_scc1 {l1}")
    P.add(I(fn(0)))
    if opt("FKI", 0):
        P(f"s_branch {lj}")
        P.put(l1)
        P.add(I(fn(1)))
        return P.put(lj)
    P.put(lj)
    OUTL.extend(I([l1 + ":"]) + [x for x in I(fn(1))] + I(f"s_branch {lj}"))


def r_bcast():
    it = [[f"s_lshl_b32 {u0}, {sW}, 7", f"s_add_u32 {u0}, {u0}, {RBC}"],
          f"v_and_b32 {x1}, 31, {vL}", f"v_lshl_add_u32 {x1}, {x1}, 2, {u0}", f"ds_write_b32 {x1}, {x0}",
          f"v_lshrrev_b32 {x2}, 5, {vL}", f"v_lshl_add_u32 {x1}, {x2}, 4, {u0}"]
    for g in range(4):
        it.append(f"ds_read_b128 {V(STV + 4 * g)}, {x1} offset:{32 * g}")
    it += [f"v_lshlrev_b32 {x2}, 8, {x2}", f"v_and_b32 {x1}, 0xf0, {vL16}", f"v_add_u32 {x2}, {x2}, {x1}",
           f"v_bfe_u32 {x1}, {vL}, 4, 1", f"v_lshl_add_u32 {x2}, {x1}, 11, {x2}"]
    return [I(x) for x in it]


def kv_rd(t):
    if KP:
        return trp(RING + 8 * (t % 4), t * 2048) + trp(RING + 8 * (t % 4) + 4, t * 2048 + 512)
    return tr1(RING + 8 * (t % 4), R0 + t * 1024) + tr1(RING + 8 * (t % 4) + 4, R1 + t * 1024)


def kv_groups(ts, par=None, D=3, lo=0, hi=32):
    g = []
    for k in ts:
        it = []
        t = k + D
        if lo <= t < hi:
            it += kv_rd(t)
        it += I([kmf(aK, RING + 8 * (k % 4), XF + 4 * k, k, par == 1), kmf(aV, RING + 8 * (k % 4) + 4, XF + 4 * k, k, par != 0)])
        g.append(it)
    return g


def kv_pre(t0_, n=3):
    o = []
    for t in range(t0_, t0_ + n):
        o += kv_rd(t)
    return o


def tab_reads(js, va):
    return [I(f"v_add_u32 {va}, {TAB0}, {vL16}")] + [I(f"ds_read_b128 {V(TABS + 4 * j)}, {va} offset:{1024 * j}") for j in js]


def halo_setup(L):
    o = []
    for i, (back, sk, sv) in enumerate(((8, d1, d2), (4, d3, t5))):
        o += [f"s_sub_u32 {u0}, {sT}, {back}", f"s_cselect_b32 {u0}, 0, {u0}", f"s_cselect_b32 {u1}, 0x200, -1", f"s_cselect_b32 {u2}, {OOB}, 0",
              f"s_lshl_b32 {u0}, {u0}, 4", f"s_add_u32 {u0}, {u0}, {sM}", f"s_lshl_b32 {u0}, {u0}, 12", f"s_add_u32 {sk}, {u0}, {LB(L) + KV_O}",
              f"s_add_u32 {sv}, {sk}, {u2}", f"v_and_b32 v{STV + i}, {u1}, {vL16}"]
    if KP:
        o += [f"s_lshl_b32 {u0}, {sT}, 4", f"s_add_u32 {u0}, {u0}, {sM}", f"s_lshl_b32 {u0}, {u0}, 12", f"s_and_b32 {u1}, {sM}, 1", f"s_lshl_b32 {u1}, {u1}, 10",
              f"s_sub_u32 {u0}, {u0}, {u1}", f"s_add_u32 {t4}, {u0}, {LB(L) + KV_O + 1024}"]
    return [I(o)]


PLR = 160


def halo_loads():
    o = [f"buffer_load_dwordx4 {V(PLR + 4 * h)}, {vL16}, {sWS}, {t4} offen offset:{2048 * h} sc1{ntm('KV')}" for h in range(2 if KP else 0)]
    for i, (sk, sv) in enumerate(((d1, d2), (d3, t5))):
        for j in range(4):
            va, so = (f"v{STV + i}", sk) if j % 2 == 0 else (vL16, sv)
            o.append(f"buffer_load_dwordx4 {V(HB + 16 * i + 4 * j)}, {va}, {sWS}, {so} offen offset:{1024 * j} sc1{ntm('KV')}")
    if KP and opt("PLL", 0):
        o = o[2:] + o[:2]
    return [I(x) for x in o]


def lead_try(chk, iss, ta, tb, final=False):
    lsk, lag, lp = P.label(), P.label(), P.label()
    o = [f"s_cmp_lg_u32 {t2}, 0", f"s_cbranch_scc1 {lsk}"]
    if final:
        o += [f"s_mov_b32 {sCNT}, 30000"]
    if chk:
        o += [f"v_accvgpr_read_b32 {ta}, {chk}"] + ([lp + ":"] if final else [])
        o += [f"v_cmp_eq_u32 vcc, 0, {ta}", f"s_cbranch_vccnz {lag}",
              f"v_cmp_ne_u32 vcc, {sMODE}, {ta}", f"v_lshlrev_b32 {tb}, 7, {vL}", f"s_lshl_b32 {u1}, {sC}, 2", f"s_and_b32 {u0}, vcc_lo, 0xffff", f"s_cselect_b32 {t2}, 1, 2",
              f"v_mov_b32 {ta}, {t2}", "s_mov_b64 exec, 0xffff", f"buffer_store_dword {ta}, {tb}, {sWS}, {sFP} offen sc1",
              "s_mov_b64 exec, 1", f"buffer_store_dword {ta}, off, {sDBG}, {u1} sc1", "s_mov_b64 exec, -1"]
        if final:
            OUTL.extend(I([lag + ":", f"v_mov_b32 {ta}, {sMODE}", f"v_lshrrev_b32 {tb}, 7, {vPO}", f"v_sub_u32 {tb}, {sC}, {tb}", f"v_lshlrev_b32 {tb}, 2, {tb}"] + arrive(ta, t1) +
                          [f"buffer_load_dword {ta}, {vPO}, {sWS}, {t1} offen sc1", f"buffer_load_dword {tb}, {tb}, {sDBG}, 0 offen sc1",
                           f"v_or_b32 {ta}, {ta}, {tb}", f"s_sub_u32 {sCNT}, {sCNT}, 1", f"s_cbranch_scc0 {lp}", "s_endpgm"]))
        elif iss:
            o += [f"s_branch {lsk}", lag + ":"]
        else:
            o += [lag + ":"]
    if iss:
        o += [f"buffer_load_dword {iss}, {vPO}, {sWS}, {t1} offen sc1"]
    return I(o + [lsk + ":"])


def handshake_issue():
    return [I([f"s_buffer_load_dword {t3}, {sWS}, {sFP} glc"])]


def handshake_check():
    b, c = f"v{STV + 3}", f"v{STV + 4}"
    ls, lr, lp = P.label(), P.label(), P.label()
    l2 = P.label()
    OUTL.extend(I([ls + ":", f"s_mov_b32 {sCNT}, 30003", f"v_mov_b32 {b}, {sMODE}", lp + ":", f"s_buffer_load_dword {t3}, {sWS}, {sFP} glc",
                   f"s_cmp_lg_u32 {t3}, 0", f"s_cbranch_scc1 {lr}",
                   f"s_and_b32 {u0}, {sCNT}, 3", f"s_or_b32 {u0}, {u0}, {sW}", f"s_cbranch_scc1 {l2}"] + arrive(b, t1) +
                  [l2 + ":", f"s_sub_u32 {sCNT}, {sCNT}, 1", f"s_cbranch_scc0 {lp}", "s_endpgm"]))
    o = [f"s_cmp_eq_u32 {t3}, 0", f"s_cbranch_scc1 {ls}", lr + ":"]
    it = [I(o)]
    o = [f"s_cmp_eq_u32 {t3}, 1"]
    if OPT.get("SLOW"):
        o.append("s_cmp_eq_u32 0, 0")
    o += [f"s_cselect_b32 {sMODE}, 0, 1", f"s_cselect_b32 {u0}, 7, {opt('FSH', 2)}", f"s_cselect_b32 {u1}, 0, {FPACK if opt('FSH', 2) == 2 else 0}",
          f"s_lshl_b32 {sFA}, {sFA}, {u0}", f"s_add_u32 {sFA}, {sFA}, {u1}",
          f"s_lshl_b32 {sFP}, {sC}, 6", f"s_lshl_b32 {sFP}, {sFP}, {u0}", f"s_add_u32 {sFP}, {sFP}, {u1}"]
    it.append(I(o))
    it.append(I([f"s_lshr_b32 {u1}, {sW}, 1", f"s_lshl_b32 {u1}, {u1}, 2", f"s_and_b32 {u2}, {sW}, 1", f"s_lshl_b32 {u3}, {u2}, 1", f"s_add_u32 {u1}, {u1}, {u3}",
                 f"v_and_b32 {b}, 14, {vL}", f"v_and_b32 {c}, 1, {vL}", f"v_lshl_add_u32 {b}, {b}, 2, {c}", f"v_add_u32 {b}, {u1}, {b}",
                 f"v_lshlrev_b32 {vPX}, {u0}, {b}"]))
    if P3N:
        it.append(I([f"s_lshr_b32 {u1}, {sW}, 1", f"s_xor_b32 {u1}, {u1}, {sRR}", f"s_and_b32 {u1}, {u1}, 1", f"s_add_u32 {u1}, {u1}, {u3}", f"s_lshl_b32 {u1}, {u1}, 4",
                     f"s_and_b32 {u2}, {sTP}, 2", f"s_add_u32 {u1}, {u1}, {u2}",
                     f"v_and_b32 {b}, 6, {vL}", f"v_lshl_add_u32 {b}, {b}, 1, {c}", f"v_add_u32 {b}, {u1}, {b}", f"v_lshlrev_b32 {vPO}, {u0}, {b}"]))
    else:
        it.append(I([f"s_lshl_b32 {u2}, {u2}, 5", f"s_and_b32 {u1}, {sTP}, 3", f"s_add_u32 {u1}, {u1}, {u2}",
                     f"v_and_b32 {b}, 7, {vL}", f"v_lshl_add_u32 {b}, {b}, 2, {u1}", f"v_lshlrev_b32 {vPO}, {u0}, {b}"]))
    it.append(I([f"s_lshr_b32 {u1}, {sW}, 1", f"s_mul_i32 {u1}, {u1}, 28", f"s_and_b32 {u2}, {sTP}, 2", f"s_add_u32 {u1}, {u1}, {u2}",
                 f"v_bfe_u32 {b}, {vL}, 1, 3", f"v_min_u32 {b}, 6, {b}", f"v_lshl_add_u32 {b}, {b}, 2, {c}", f"v_add_u32 {b}, {u1}, {b}",
                 f"v_lshlrev_b32 {vPH}, {u0}, {b}"]))
    return it


PRE = opt("PRE", 0)


def att_pre():
    KA, VA, PM, KD = 24, 25, 32, 192
    b = [f"s_mul_i32 {u0}, {sW}, {PITCH}", f"s_add_u32 {u0}, {u0}, {SL}"]
    it = [(1, b + [f"v_add_u32 v{KA}, {u0}, {vL16}", f"v_and_b32 v30, 0xf0, {vL16}", f"v_lshrrev_b32 v31, 5, {vL}", "v_lshl_add_u32 v30, v31, 8, v30",
                   f"v_add_u32 v30, {u0}, v30", f"v_bfe_i32 v31, {vL}, 4, 1"])]
    it.append((1, b + [x for hs in range(4) for x in (f"s_add_u32 {u1}, {u0}, {4096 - (2048 * (hs >> 1) + 1024 + 512 * (hs & 1))}", f"v_bfi_b32 v{VA + hs}, v31, {u1}, v30")]))
    it.append((1, b + [f"v_lshrrev_b32 v30, 2, {vL}", "v_min_u32 v30, 2, v30", "v_lshlrev_b32 v31, 2, v30", f"v_add_u32 v31, {sT}, v31", "v_cmp_le_u32 vcc, 8, v31",
                       f"v_mul_u32_u24 v30, {4 * PITCH}, v30", f"v_and_b32 v31, 3, {vL}", "v_lshl_add_u32 v30, v31, 2, v30", f"v_add_u32 v30, {u0}, v30",
                       "v_mov_b32 v31, 0x3f803f80", "v_cndmask_b32 v31, 0, v31, vcc", "ds_write_b32 v30, v31 offset:4096"]))
    it += [(1, f"v_accvgpr_read_b32 v{PM + d}, a{240 + d}") for d in range(8)]
    return it


def att_pre2():
    KA, VA, KD = 24, 25, 192
    if KP:
        return []
    it = [(opt("PR2", 26), f"ds_read_b128 {V(KD + 4 * h)}, v{KA} offset:{PITCH * 8 + 2048 * h}") for h in range(2)]
    it += [(opt("PR2", 26), f"ds_read_b128 {V(n + 4 * s)}, v{VA + 2 * h + s} offset:{PITCH * 8 + 2048 * h + 1024 + 512 * s}") for h, n in ((0, 112), (1, 200)) for s in range(2)]
    return it


def phase1(L):
    extq = f"{MF} {V(aQ, 16)}, {V(TABS + 8)}, {V(EX)}, {V(aQ, 16)}"
    vtq = "v23" if PRE else "v119"
    def ext(par): return I([kmf(aK, TABS, EX, 1, par == 1), kmf(aV, TABS + 4, EX, 1, par != 0)])
    D = 6
    qg = []
    for k in range(32):
        it = tr1(RING + 4 * ((k + D) % 8), R2 + (k + D) * 1024) if k + D < 32 else []
        qg.append(it + I(f"{MF} {V(aQ, 16)}, {V(RING + 4 * (k % 8))}, {V(XF + 4 * k)}, {V(aQ, 16) if k else 0}"))
    for k in range(3, 32, 4):
        qg[k] += tick(f"{L}.zq{k}")
    qpre = []
    for t in range(D):
        qpre += tr1(RING + 4 * t, R2 + t * 1024)
    HL = opt("HL", 20)
    if L == 0:
        AS, S1, S2, CK, CV, CF = 124, 96, 100, 104, 108, 48
        P.add(asel(AS))
        for i in range(4):
            P(f"v_mov_b32 v{S2 + i}, 0")
        P(f"v_lshrrev_b32 {x0}, 5, {vL}")
        P(f"v_bfe_u32 {x1}, {vL}, 3, 1")
        P(f"v_xor_b32 {x0}, {x0}, {x1}")
        P(f"v_xor_b32 {x0}, {x0}, {vL}")
        P(f"v_and_b32 {x0}, 7, {x0}")
        P(f"v_and_b32 {x1}, 31, {vL}")
        P(f"v_lshlrev_b32 {x1}, 7, {x1}")
        P(f"v_lshl_add_u32 {x0}, {x0}, 4, {x1}")
        P(f"s_add_u32 {t0}, {d3}, {SL}")
        P(f"v_add_u32 v{XA}, {t0}, {x0}")
        for k in range(1, 4):
            P(f"v_xor_b32 v{XA + k}, {32 * k}, v{XA}")
        P(f"v_lshl_add_u32 {x1}, {d2}, 1, {vTP}" if KP else f"v_add_u32 {x1}, {d2}, {vTR}")
        P.add(table_addr(x2))
        P(f"v_mov_b32 v118, {sMODE}")
        P(f"v_mul_u32_u24 {vPX}, 640, {vL}")
        P.add(tick("s.setup"))
        TS = opt("TS", 5)
        tw2 = touch(sW2, 1792 * 1024, "a232", vPH, t0, TS)
        tw2b = touch(sW2, 1792 * 1024, "a232", vtq, t0, TS)
        TW = [int(c, 16) for c in OPT.get("TW", "000000003")]
        I1 = [int(c) for c in OPT.get("I1", "001111000")]
        def mkstrm():
            tw2 = touch(sW2, 1792 * 1024, "a232", vPH, t0, TS)
            i1 = init_kv(1, "init1")
            i1 = [i1[0] + i1[1]] + i1[2:]
            if opt("NOI1", 0):
                i1 = []
            wq = sum((w0_items(h, (2,), "wq") for h in range(8)), [])
            WQ1 = opt("WQ1", 5)
            strm = {h: x0_items(h) + w0_items(h) for h in range(2, 8)}
            strm.update({8: wq[:WQ1], 9: wq[WQ1:], 10: []})
            strm[2] = INI[0] + strm[2]
            strm[3] = INI[1] + strm[3]
            if opt("TQ", 4):
                strm[opt("TQ", 4)] += touch_wq("a232", u0)
            for n in range(2, 11):
                strm[n] = i1[:I1[n - 2]] + strm[n] + tw2[:TW[n - 2]]
                tw2, i1 = tw2[TW[n - 2]:], i1[I1[n - 2]:]
            assert not i1
            return strm, tw2
        assert not (KP and INI[1])
        strm, tw2 = mkstrm()
        SIG = 3 if INI[1] else (2 if INI[0] else opt("SIG", 1))
        LT0 = opt("LT0", SIG + 1)
        def sync(h):
            o = [need_ins(f"x{h}")]
            o += [f"ds_read_b128 {V(XF + 16 * h + 4 * t)}, v{XA + t} offset:{4096 * (h & 3)}" for t in range(4)]
            if h >= LT0:
                o += lead_try(f"a{233 + (h & 1)}" if h >= LT0 + 2 else None, f"a{233 + (h & 1)}", "v114", "v115")
            o += [need_ins(f"kv{h}")] + tr("v", CF + 8 * (h & 1), x1, (8192 if KP else 4096) * h) + tr("v", CF + 8 * (h & 1) + 4, x1, 8192 * h + 512 if KP else R1 + 4096 * h)
            if h >= SIG and (h - SIG) % opt("SIGS", 2) == 0:
                lsk = P.label()
                o += [f"s_cmp_lg_u32 {sW}, {1 + (h >> 1) % 3}", need_ins("init"), "s_barrier", f"s_cbranch_scc1 {lsk}"] + arrive("v118", t1) + [lsk + ":"]
            else:
                o += ["s_barrier"]
            return I(o) + tick(f"s.b{h}")
        def stats(h):
            o = []
            for t in range(4 * h, 4 * h + 4):
                o.append(I([f"v_dot2c_f32_bf16 v{S2 + j}, v{XF + 4 * t + j}, v{XF + 4 * t + j}" for j in range(4)] +
                           [f"{MF16} {V(S1)}, {V(AS)}, {V(XF + 4 * t)}, {V(S1) if t else 0}"]))
            return [I([f"{MF16} {V(CK)}, {V(AS)}, {V(CF + 8 * (h & 1))}, {V(CK) if h else 0}",
                       f"{MF16} {V(CV)}, {V(AS)}, {V(CF + 8 * (h & 1) + 4)}, {V(CV) if h else 0}"]) + o[0], o[1] + o[2], o[3]]
        PFD = opt("PFD", 0)
        for n in range(PFD):
            P.add(I(strm[2 + n]))
        P.add(sync(0))
        P.add(kv_pre(0))
        P.add(I(spread(stats(0), strm[2 + PFD], 0.0 if PFD < 2 else 0.99, 0.7 if PFD < 2 else 1)))
        QX = opt("QX", 0)
        def kv0(par):
            strm = mkstrm()[0]
            g = kv_groups(range(32), par)
            for i in range(8):
                lt = strm.get(i + 3 + PFD, [])
                if i < 7 and PFD == 2:
                    g[4 * i] += sync(i + 1)
                    for e in range(3):
                        g[4 * i + 1 + e] += stats(i + 1)[e]
                    g[4 * i + 3] += I(lt)
                elif i < 7:
                    g[4 * i] += sync(i + 1)
                    n = (len(lt) + 2) // 3
                    for e in range(3):
                        g[4 * i + 1 + e] += I(lt[n * e:n * e + n]) + stats(i + 1)[e]
                else:
                    attach(g, lt, 28, max(1, (len(lt) + 3) // 4))
            fin = [f"v_add_f32 v{S2}, v{S2}, v{S2 + 1}", f"v_add_f32 v{S2 + 2}, v{S2 + 2}, v{S2 + 3}", f"v_add_f32 v{S2}, v{S2}, v{S2 + 2}",
                   f"v_mov_b32 v{S2 + 1}, v{S2}", f"v_permlane32_swap_b32 v{S2}, v{S2 + 1}", f"v_add_f32 v{S2}, v{S2}, v{S2 + 1}"]
            fin = [I(x) for x in fin] + stats_finish(f"v{S1}", f"v{S2}", f"v{S2 + 1}", f"v{S2 + 2}", EX, False, x0, None)
            fill = table_write(CK, 0, x2) + table_write(CV, 1, x2) + [(2, lead_try("a233", None, "v114", "v115"))] + [(2, x) for x in fin[:6]] + [barrier()] + tab_reads([0, 1], x2) + fin[6:] + (r_bcast() if par != 0 else [])
            return I(g[:26]) + weave(g[26:], fill) + tick("s.kv") + [need_ins("init1")] + ext(par) + I(kp_epilogue(0, par) if KP else kv_epilogue(0))
        fork(kv0)
        if QX:
            assert PRE
            P.add(I(handshake_issue()))
        P.add(lead_try("a234", None, "v116", "v117", True))
        P.add(tick("0.kv"))
        CQ = 104
        P(f"v_add_u32 {x1}, {d2}, {vTR1}")
        P.add(table_addr(x2))
        P.need("wq")
        for h in range(8):
            P.add(tr("v", 16 + 4 * h, x1, 4096 * h))
        P("s_barrier")
        P.add(qpre)
        for j in range(8):
            P(f"{MF16} {V(CQ)}, {V(AS)}, {V(16 + 4 * j)}, {V(CQ) if j else 0}")
        tw2 = tw2b[len(tw2b) - len(tw2):]
        if tw2:
            tw2[0] = I([f"v_lshlrev_b32 {vtq}, {TS}, {vL}"] + thm(vtq, TS)) + tw2[0]
        hc = [(opt("HSC", 16), x) for x in handshake_check()]
        fill = [(1, x) for x in table_write(CQ, 2, x2)] + [(opt("HSI", 6), x) for x in handshake_issue()] + [(8, barrier())] + tab_reads([2], x2) + ([(12, extq)] if PRE else [])
        if opt("HF", 0):
            fill += halo_setup(0) + hc[:1] + [(HL, x) for x in halo_loads()] + hc[1:] + misc_l0()
        else:
            fill += hc + halo_setup(0) + [(HL, x) for x in halo_loads()] + misc_l0()
        if PRE:
            ap = [x for _, x in att_pre()]
            for n, x in zip((2, 3, 5, 7, 7, 7, 7, 9, 9, 9, 9), ap):
                qg[n] += I(x)
        if opt("T0", 0) == 1:
            fill += touch(sWO, 512 * 1024, "a232", "v119", t0, min(TS, 6)) + touch(sW1, 1792 * 1024, "a232", "v119", t0, opt("TS1", 5))
        elif opt("T0", 0) == 2:
            fill += tw2[:opt("TW2N", 0)] + touch(sW1, 1792 * 1024, "a232", "v119", t0, opt("TS1", 5))
        elif opt("QT", 0):
            fill += tw2 + touch(sWO, 512 * 1024, "a232", vtq, t0, min(TS, 6))
        if PRE:
            for n, x in att_pre2():
                qg[n] += I(x)
        P.add(tick("0.qs"))
        if QX:
            def place(n, items, per=1):
                for j, x in enumerate(items):
                    qg[min(31, n + int(j / per))] += I(x)
            place(1, table_write(CQ, 2, x2), 6)
            place(4, halo_setup(0))
            hc = [x for _, x in hc]
            place(8, [barrier() + hc[0] + I(tab_reads([2], x2))])
            place(10, hc[1:])
            place(14, [extq])
            ms = misc_l0()
            tt = tw2 + touch(sWO, 512 * 1024, "a232", vtq, t0, min(TS, 6))
            place(HL, halo_loads()[:8], opt("HLP", 4))
            place(opt("HL3", 12), halo_loads()[8:], 2)
            assert not 10 <= opt("MSP", 24) <= 13
            place(opt("MSP", 24), [I(ms)])
            place(opt("TTP", 26), tt, opt("TTR", 10) / 10)
            P.add(I(qg))
        else:
            P.add(weave(qg, fill))
    else:
        WQL = opt("WQL", 0)
        wql = []
        if not opt("WQE", 0) and not opt("WQ3", 0):
            P.add(wq_setup())
            if KP:
                P.add(I([f"v_lshrrev_b32 {voQ}, 2, {vL}", f"v_mul_u32_u24 {voQ}, 3072, {voQ}", f"v_and_or_b32 {voQ}, {vL16}, 48, {voQ}"]))
            wql = wq_items([2])
            P.add(I(wql[:8 - WQL]))
            wql = wql[8 - WQL:]
        P.add(I(tab_reads([0, 1, 2], x2)))
        back, vc = P.label(), (f"v{aQ}" if EF & 8 else None)
        P.put(back)
        P.add(kv_pre(0))
        xs, xi = x_loads(LX(1) + XIN_O, LX(1) + ST2_O, STV)
        NB = opt("NB", 14)
        P.add(xs)
        P.add(poll(vPX, x1, 8))
        P.add(tick("1.pollx"))
        P.add(I(xi[:NB]))
        P.add(tick("1.xiss"))
        s = [f"v{STV + i}" for i in range(4)]
        ke = [] if KP else kv_epilogue(1)
        KE = opt("KE", 0)
        def kv1(par):
            fill = stats_sum(STV, vc) + stats_finish(s[0], s[1], s[2], s[3], EX, False, x0, None) + (r_bcast() if par != 0 else [])
            xi = x_loads(LX(1) + XIN_O, LX(1) + ST2_O, STV)[1]
            if opt("TWO", 0):
                xi += touch(sWO, 512 * 1024, f"v{aQ}", f"v{aQ + 1}", d0, opt("TWO", 0))
            g = attach(kv_groups(range(32), par), xi[NB:] + inits("k", aQ + 4) + (wq_items([2])[8 - WQL:] if wql else []))
            if vc:
                for n, x in chain(vc, XF, 32):
                    g[n] += I(x)
            return weave(g, [(opt("XSP", 16) + 2, x) for x in fill]) + (redo(vc, back) if vc else []) + ext(par) + tick("1.kv") + I(kp_epilogue(1, par) if KP else ke[:KE])
        fork(kv1)
        P.add(tick("1.ke"))
        P.add(barrier("wq"))
        P.add(tick("1.B1"))
        P.add(qpre)
        fill = [(1, x) for x in ke[KE:]] + halo_setup(1) + [(opt("HL1", HL), x) for x in halo_loads()[:8]]
        if PRE:
            qg[0] += I(extq)
            fill += att_pre() + att_pre2()
        fill += [(opt("HL2", 22), x) for x in halo_loads()[8:]]
        P.add(weave(qg, fill))
    P.add(tick(f"{L}.zqe"))
    if not PRE:
        P(extq)
```

```python
from k2_base import *
from k2_p1 import *

B1V, CC, CD_, AS4 = 48, 52, 56, 60
OM = OPT.get("OM", "").replace("_", " ")


def tile_out(x, pk, tmp, bit, pub, ini):
    XE = opt("XE", 1)
    if XE == 0:
        P.add(pub)
    for i in range(8):
        P(f"v_cvt_pk_bf16_f32 v{pk + i}, v{x + 2 * i}, v{x + 2 * i + 1}")
    P.add(xstore(f"buffer_store_dwordx4 {V(pk)}, {vL16}, {sWS}, {t1} offen", bit, ini=ini))
    P.add(xstore(f"buffer_store_dwordx4 {V(pk + 4)}, {vL16}, {sWS}, {t1} offen offset:1024", bit))
    if XE == 1:
        P.add(pub)
    a, b = V(tmp, 2), V(tmp + 2, 2)
    P(f"v_pk_add_f32 {a}, {V(x, 2)}, {V(x + 2, 2)}")
    P(f"v_pk_mul_f32 {b}, {V(x, 2)}, {V(x, 2)}")
    for i in range(1, 8):
        if i >= 2:
            P(f"v_pk_add_f32 {a}, {a}, {V(x + 2 * i, 2)}")
        P(f"v_pk_fma_f32 {b}, {V(x + 2 * i, 2)}, {V(x + 2 * i, 2)}, {b}")
    P(f"v_add_f32 v{tmp}, v{tmp}, v{tmp + 1}")
    P(f"v_add_f32 v{tmp + 2}, v{tmp + 2}, v{tmp + 3}")
    P(f"v_permlane32_swap_b32 v{tmp}, v{tmp + 2}")
    P(f"v_add_f32 v{tmp}, v{tmp}, v{tmp + 2}")
    P.add(xstore(f"buffer_store_dword v{tmp}, {x2}, {sWS}, {t2} offen", bit))
    if XE == 2:
        P.add(pub)


def tile_addr(xo, so):
    return I([f"s_lshl_b32 {t2}, {sTP}, 4", f"s_add_u32 {t2}, {t2}, {sCT}", f"s_lshl_b32 {t1}, {t2}, 11", f"s_add_u32 {t1}, {t1}, {xo}",
              f"s_lshl_b32 {t2}, {t2}, 8", f"s_add_u32 {t2}, {t2}, {so}", f"v_lshlrev_b32 {x2}, 2, {vL}"])


def b1_loads():
    return I([f"v_and_b32 {x1}, 0x13, {vL}", f"v_bfe_u32 {x2}, {vL}, 2, 1", f"v_lshl_add_u32 {x1}, {x2}, 3, {x1}", f"v_bfe_u32 {x2}, {vL}, 3, 1",
              f"v_lshl_add_u32 {x1}, {x2}, 2, {x1}", f"v_lshlrev_b32 {x1}, 1, {x1}", f"s_lshl_b32 {t1}, {sM}, 8", f"s_cmp_ge_u32 {sW}, 2", f"s_cselect_b32 {t1}, {OOB}, {t1}"] +
             [f"buffer_load_ushort v{B1V + e}, {x1}, {sB1}, {t1} offen offset:{64 * e}" for e in range(4)])


def phase3n(L, late_rd):
    o = lambda n, d: opt(f"{n}_{L}", opt(n, d))
    a0, OF, WO = 16, 64, 128
    AB = [a0, 192, 208, 224]
    wa = [f"v{32 + i}" for i in range(5)]
    v4k = "v37"
    P.add(I([f"s_lshr_b32 {t3}, {sW}, 1", f"s_xor_b32 {t3}, {t3}, {sRR}", f"s_and_b32 {t3}, {t3}, 1", f"s_and_b32 {t4}, {sW}, 1", f"s_lshl_b32 {t4}, {t4}, 1",
             f"s_add_u32 {t3}, {t3}, {t4}", f"s_lshl_b32 {t4}, {sTP}, 2", f"s_add_u32 {t3}, {t3}, {t4}", f"s_lshl_b32 {t3}, {t3}, 13",
             f"s_add_u32 {t3}, {t3}, {LX(L) + O_O}", f"s_xor_b32 {t4}, {t3}, 0x8000", f"v_add_u32 {v4k}, 0x1000, {vL16}"]))
    if L == 0:
        P.add(I(late_rd))
        P.add(I(wo_reads(x0)))
        P.add(b1_loads())
        P.add(I([x for d in range(8) for x in (f"v_accvgpr_read_b32 {x2}, a{224 + d}", f"v_lshlrev_b32 v{a0 + 2 * d}, 16, {x2}", f"v_and_b32 v{a0 + 2 * d + 1}, 0xffff0000, {x2}")]))
    else:
        if opt("ABT", 1):
            P.add(I(wo_reads(x0)))
        P.add(I([f"v_accvgpr_read_b32 v{a0 + i}, a{224 + i}" for i in range(16)]))
    for i in range(5):
        n = i & 3 if i < 4 else 0
        hi = i == 3 or i == 4
        P.add(I([f"s_xor_b32 {u0}, {sW}, {n}", f"s_lshl_b32 {u0}, {u0}, {12 if hi else 13}", f"s_add_u32 {u0}, {u0}, {SCR3 if hi else SL + 4096 * max(0, n - 1)}",
                 f"v_add_u32 {wa[i]}, {u0}, {vL16}"]))
    P.add(tile_addr(LX(L) + X1_O, LX(L) + ST1_O))
    fill = (w1_items("AB") + w1_items("CD1")) if L == 0 else (w1_items("CD1", opt("DR", 0) & 4) if opt("C1P", 0) == 2 else [])
    if L and opt("ABT", 1):
        fill = w1_items("AB")
    if L == 0 or opt("ABT", 1):
        fill[0] = [need_ins("ds_any")] + fill[0]
    FE, FM = o("FE", 0), o("FM", 0)
    P.add(I(fill[:FE]))
    P.add(publish(16 * L + 2, x1, "o1"))
    P.add(tick(f"{L}.p2end"))
    def of(ks, tt): return OF + (ks * 2 + tt) * 4
    def oloads(h): return [f"buffer_load_dwordx4 {V(of(ks, tt))}, {v4k if ks >= 4 else vL16}, {sWS}, {t4 if tt else t3} offen offset:{(ks & 3) * 1024} sc1"
                           for ks in range(h, 8, 2) for tt in range(2)]
    def mf(ks, n):
        a = V(AB[n], 16)
        return f"{MF} {a}, {V(WO + (ks * 2 + (n & 1)) * 4)}, {V(of(ks, n >> 1))}, {a if (ks or n == 0) else 0}"
    P.add(poll_check(vPO, "v56", 16 * L + 1))
    P.add(tick(f"{L}.yck0"))
    P.add(I(oloads(0)))
    P.add(I(fill[FE:FM]))
    P.add(poll_issue(vPO, "v56"))
    P.add(barrier())
    P.add(tick(f"{L}.B3"))
    NT, NH0 = o("NT3", 2), o("NH0", 12)
    g = [mf(ks, n) for ks in (0, 2, 4, 6) + (1, 3, 5, 7)[:4 - NT] for n in range(4)]
    P.add(I(g[:NH0]))
    P.add(tick(f"{L}.ymf0"))
    P.add(poll_check(vPO, "v56", 16 * L + 2))
    P.add(tick(f"{L}.pollo"))
    P.add(I(oloads(1)))
    g = g[NH0:]
    wr = []
    for n in (3, 2, 1, 0):
        for e, ks in enumerate((1, 3, 5, 7)[4 - NT:]):
            g.append(mf(ks, n))
            if e >= 1 or NT == 1:
                k = (len(wr) + (NT - e) - 1) // (NT - e)
                g.append(wr[:k]); wr = wr[k:]
        if n:
            wr = [f"ds_write_b128 {wa[n]}, {V(AB[n] + 4 * j)} offset:{1024 * j}" for j in range(4)]
    P.add(I(spread(g, fill[max(FE, FM):], 0.0, 1.0)))
    P.add(tick(f"{L}.p3mm"))
    P.add(barrier())
    P.add(tick(f"{L}.yB4"))
    for j in range(12):
        P(f"ds_read_b128 {V(OF + 4 * j)}, {wa[0 if j < 8 else 4]} offset:{1024 * (j & 7 if j < 8 else j - 8)}")
    for p in range(3):
        for i in range(8):
            P(f"v_pk_add_f32 {V(a0 + 2 * i, 2)}, {V(a0 + 2 * i, 2)}, {V(OF + 16 * p + 2 * i, 2)}")
    tile_out(a0, OF + 16, OF + 24, 2 << (4 * L), [], None)
    P.add(tick(f"{L}.yst"))
    r4 = []
    if L == 0:
        d4, r4 = w2_round(4, x0)
        P.add(I(d4))
    elif o("CD2P", 1) == 0:
        P.add(I(w1_items("CD2")))
    for d in range(8):
        P(f"v_accvgpr_read_b32 {x1}, a{248 + d}")
        P(f"v_lshlrev_b32 v{OF}, 16, {x1}")
        P(f"v_and_b32 v{OF + 1}, 0xffff0000, {x1}")
        P(f"v_pk_add_f32 {V(a0 + 2 * d, 2)}, {V(a0 + 2 * d, 2)}, {V(OF, 2)}")
        P(f"v_accvgpr_write_b32 a{224 + 2 * d}, v{a0 + 2 * d}")
        P(f"v_accvgpr_write_b32 a{225 + 2 * d}, v{a0 + 2 * d + 1}")
    P.add(publish(16 * L + 3, x1))
    P.add(tick(f"{L}.p3end"))
    return r4


def phase3(L, late_rd):
    if P3N:
        return phase3n(L, late_rd)
    a0, a1, OF, WO = 16, 32, 64, 128
    vp, vc = "v53", "v54"
    P(f"s_and_b32 {t0}, {sW}, 1")
    P(f"s_lshl_b32 {t0}, {t0}, 14")
    P(f"v_add_u32 {x1}, {t0}, {vTP}")
    P(f"s_lshl_b32 {t3}, {sTP}, 15")
    P(f"s_add_u32 {t3}, {t3}, {t0}")
    P(f"s_add_u32 {t3}, {t3}, {LX(L) + O_O}")
    P(f"s_and_b32 {t4}, {sRR}, 1")
    P(f"s_lshl_b32 {t4}, {t4}, 13")
    P(f"s_add_u32 {t3}, {t3}, {t4}")
    P.add(barrier("wo"))
    P.add(tick(f"{L}.B3"))
    CD2E = opt("CD2E", 1)
    if L and CD2E:
        P.add(I(w1_items("CD2")))
    rd = [tr("v", WO + (ks * 2 + ct) * 4, x1, (ks >> 3) * 32768 + 2048 * (ks & 7) + 512 * ct) for ks in range(16) for ct in range(2)]
    PO1, PO2 = opt(f"PO1_{L}", opt("PO1", 6)), opt(f"PO2_{L}", opt("PO2", 14))
    def oloads():
        o = []
        for ks in range(16):
            if ks % 4 == 0:
                o.append(f"s_xor_b32 {t4}, {t3}, {4096 * (ks // 4)}")
            o.append(f"buffer_load_dwordx4 {V(OF + 4 * ks)}, {vL16}, {sWS}, {t4} offen offset:{(ks % 4) * 1024} sc1{ntm('O')}")
        return o
    def res(tmpv):
        if L:
            return [f"v_accvgpr_read_b32 v{a0 + i}, a{224 + i}" for i in range(16)]
        return [x for d in range(8) for x in (f"v_accvgpr_read_b32 {tmpv}, a{224 + d}", f"v_lshlrev_b32 v{a0 + 2 * d}, 16, {tmpv}", f"v_and_b32 v{a0 + 2 * d + 1}, 0xffff0000, {tmpv}")]
    P.add(I(rd[:PO1]))
    P.add(poll_issue(vPO, vp, 16 * L + 1))
    P.add(I(rd[PO1:PO2]))
    P.add(I(res(x2)))
    P.add(poll_check(vPO, vp, 16 * L + 1))
    P.add(tick(f"{L}.pollo"))
    if opt("OIL", 0):
        P.add(I(spread([I(x) for x in oloads()], rd[PO2:], opt("OI0", 10) / 100, opt("OI1", 100) / 100)))
    else:
        P.add(I(oloads()))
        if L and not CD2E:
            P.add(I(w1_items("CD2")))
        P.add(I(rd[PO2:]))
    r4 = []
    if L == 0:
        d4, r4 = w2_round(4, x0)
        P.add(I(late_rd))
        P.add(I(d4[:8]))
        P(f"v_and_b32 {x1}, 0x13, {vL}")
        P(f"v_bfe_u32 {x2}, {vL}, 2, 1")
        P(f"v_lshl_add_u32 {x1}, {x2}, 3, {x1}")
        P(f"v_bfe_u32 {x2}, {vL}, 3, 1")
        P(f"v_lshl_add_u32 {x1}, {x2}, 2, {x1}")
        P(f"v_lshlrev_b32 {x1}, 1, {x1}")
        P(f"s_lshl_b32 {t1}, {sM}, 8")
        P(f"s_cmp_ge_u32 {sW}, 2")
        P(f"s_cselect_b32 {t1}, {OOB}, {t1}")
        for e in range(4):
            P(f"buffer_load_ushort v{B1V + e}, {x1}, {sB1}, {t1} offen offset:{64 * e}")
        P.need("ds_any")
        P.add(I(d4[8:]))
    P(f"s_xor_b32 {t0}, {sW}, 1")
    P(f"s_lshl_b32 {t0}, {t0}, 12")
    P(f"s_add_u32 {t0}, {t0}, {SCR3}")
    P(f"v_add_u32 {x0 if L else 'v52'}, {t0}, {vL16}")
    vw = x0 if L else "v52"
    P.add(tile_addr(LX(L) + X1_O, LX(L) + ST1_O))
    P.add(barrier())
    P.add(tick(f"{L}.B3b"))
    back = P.label()
    P.put(back)
    def mf(ks, ct):
        a = V(a0 if ct == 0 else a1, 16)
        return f"{MF} {a}, {V(WO + (ks * 2 + ct) * 4)}, {V(OF + 4 * ks)}, {a if (ks or ct == 0) else 0}"
    NT = 4
    g = [[mf(ks, 1), mf(ks, 0)] for ks in range(16 - NT)] + [[mf(ks, 1)] for ks in range(16 - NT, 16)]
    fill = w1_items("AB") + (w1_items("CD1") if L == 0 else [])
    if EF & 1:
        for n, x in chain(vc, OF, 16):
            g[n].append(x)
    P.add(I(spread(g, fill, 0.0, 1.0)))
    if EF & 1:
        P.add(redo(vc, back, oloads() + res(x1)))
    for n, ks in enumerate(range(16 - NT, 16)):
        P(mf(ks, 0))
        if n >= 1:
            for j in ([n - 1] if n < NT - 1 else range(n - 1, 4)):
                P(f"ds_write_b128 {vw}, {V(a1 + 4 * j)} offset:{1024 * j}")
    P(f"v_xor_b32 {vw}, 0x1000, {vw}")
    P.add(tick(f"{L}.p3mm"))
    P.add(barrier())
    for j in range(4):
        P(f"ds_read_b128 {V(OF + 4 * j)}, {vw} offset:{1024 * j}")
    for i in range(8):
        P(f"v_pk_add_f32 {V(a0 + 2 * i, 2)}, {V(a0 + 2 * i, 2)}, {V(OF + 2 * i, 2)}")
    tile_out(a0, OF + 16, OF + 24, 2 << (4 * L), publish(16 * L + 3, x1, early=f"iX{L}") if EF & 2 else [], f"iX{L}")
    rs = [I([f"v_accvgpr_read_b32 {x1}, a{248 + d}", f"v_lshlrev_b32 v{OF}, 16, {x1}", f"v_and_b32 v{OF + 1}, 0xffff0000, {x1}",
             f"v_pk_add_f32 {V(a0 + 2 * d, 2)}, {V(a0 + 2 * d, 2)}, {V(OF, 2)}", f"v_accvgpr_write_b32 a{224 + 2 * d}, v{a0 + 2 * d}",
             f"v_accvgpr_write_b32 a{225 + 2 * d}, v{a0 + 2 * d + 1}"]) for d in range(8)]
    if L == 0 and opt("CSN", 0) >= 4:
        cs = [I([f"s_lshl_b32 {t0}, {sW}, 14", f"v_add_u32 v122, {t0}, {vTP}", f"s_lshl_b32 {t0}, {sW}, 13", f"v_add_u32 {x0}, {t0}, {vTP1}", need_ins("w1AB")])]
        cs += [tr("v", XF + 4 * j, "v122", 2048 * (j >> 1) + 512 * (j & 1)) for j in range(16)]
        cs += [[need_ins("w1CD1")] + tr("v", XF + 64 + 4 * j, x0, 2048 * (j >> 1) + 512 * (j & 1)) for j in range(8)]
        cs += [asel(AS4), table_addr("v123")]
        cs += [I(f"{MF16} {V(STV + 4 * (j & 1))}, {V(AS4)}, {V(XF + 4 * j)}, {V(STV + 4 * (j & 1)) if j >= 2 else 0}") for j in range(16)]
        cs += [I(f"{MF16} {V(CC + 4 * (j & 1))}, {V(AS4)}, {V(XF + 64 + 4 * j)}, {V(CC + 4 * (j & 1)) if j >= 2 else 0}") for j in range(8)]
        cs += table_write(STV, 3, "v123", f"v{B1V}") + table_write(STV + 4, 4, "v123", f"v{B1V + 1}")
        NP = opt("NP", 8)
        P.add(I(spread(r4 + cs[:NP], rs)))
        r4 = cs[NP:]
    else:
        P.add(I(rs))
    if not EF & 2:
        P.add(publish(16 * L + 3, x1))
    P.add(tick(f"{L}.p3end"))
    return r4


def gelu(a, c0, c1, ir, tmp, so, tag, bit, pk=False, ini=None):
    res = []
    for g in range(4):
        if pk:
            xs = [V(a + 4 * g + 2 * e, 2) for e in range(2)]
            ts = [V(tmp + 2 * e, 2) for e in range(2)]
            bc = lambda r: f"v[{r[1:]}:{int(r[1:]) + 1}]"
            res += [f"v_pk_mul_f32 {t}, {x}, {x}" for x, t in zip(xs, ts)]
            res += [f"v_pk_fma_f32 {t}, {t}, {bc(c1)}, {bc(c0)} op_sel_hi:[1,0,0]" for t in ts]
            res += [f"v_pk_mul_f32 {t}, {t}, {x}" for x, t in zip(xs, ts)]
            res += [f"v_exp_f32 v{tmp + e}, v{tmp + e}" for e in range(4)]
            res += [f"v_pk_fma_f32 {t}, {t}, {bc(ir)}, {bc(ir)} op_sel_hi:[1,0,0]" for t in ts]
            res += [f"v_rcp_f32 v{tmp + e}, v{tmp + e}" for e in range(4)]
            res += [f"v_pk_mul_f32 {x}, {x}, {t}" for x, t in zip(xs, ts)]
        else:
            blk = []
            for e in range(4):
                x, t = f"v{a + 4 * g + e}", f"v{tmp + e}"
                blk.append([f"v_mul_f32 {t}, {x}, {x}", f"v_fma_f32 {t}, {t}, {c1}, {c0}", f"v_mul_f32 {t}, {t}, {x}",
                            f"v_exp_f32 {t}, {t}", f"v_fma_f32 {t}, {t}, {ir}, {ir}", f"v_rcp_f32 {t}, {t}", f"v_mul_f32 {x}, {x}, {t}"])
            for s in range(7):
                for e in range(4):
                    res.append(blk[e][s])
        for i in (2 * g, 2 * g + 1):
            res.append(f"v_cvt_pk_bf16_f32 v{a + i}, v{a + 2 * i}, v{a + 2 * i + 1}")
        if g & 1:
            s, off = so
            res.append(xstore(f"buffer_store_dwordx4 {V(a + 2 * (g - 1))}, {vL16}, {sWS}, {s} offen offset:{off + 1024 * (g >> 1)}", bit, tag, ini))
    return [I(x) for x in res]


def phase45(L, r4):
    T = [16, 32, 48, 16]
    C0R, C1R, IRR, RR, GT = "v116", "v118", "v120", "v122", 124
    FB = 16 * L
    vtb = x2
    CSN = opt("CSN", 0) if L == 0 else 0
    CS5 = False
    if L == 0:
        if CSN < 4:
            P.add(I(r4))
        IM = opt("IM", 0)
        if IM:
            lid, ljn = P.label(), P.label()
            P(f"s_cmp_ge_u32 {sM}, 14")
            P(f"s_cbranch_scc1 {lid}")
            o = [lid + ":", f"s_bfe_u32 {u0}, s2, 0x20003", f"s_lshl_b32 {u0}, {u0}, 2", f"s_add_u32 {u0}, {u0}, {sW}", f"s_mul_i32 {u0}, {u0}, {4 * 3072}",
                 f"v_lshrrev_b32 {x0}, 4, {vL}", f"v_mul_u32_u24 {x0}, 3072, {x0}", f"v_and_b32 {x1}, 15, {vL}", f"v_lshl_add_u32 {x0}, {x1}, 7, {x0}",
                 f"s_mov_b32 {t3}, {OOB}", f"s_mov_b32 {t4}, {OOB}", f"v_add_u32 {vtb}, {TAB0 + 3072}, {vL16}"]
            for i in range(8):
                o += [f"s_add_u32 {u1}, {u0}, {64 * 3072 * ((2 * i) % 8 + (i >> 2))}", f"buffer_load_dword {x1}, {x0}, {sWQ}, {u1} offen offset:1024"]
            if IM > 1:
                o += [f"v_lshrrev_b32 {x0}, 3, {vL}", f"v_mul_u32_u24 {x0}, 3072, {x0}", f"v_and_b32 v16, 7, {vL}", f"v_lshl_add_u32 {x0}, v16, 7, {x0}", f"s_lshl_b32 {u0}, {u0}, 1"]
                for i in range(opt("IQ", 4)):
                    o += [f"s_add_u32 {u1}, {u0}, {128 * 3072 * i}", f"buffer_load_dword {x1}, {x0}, {sWQ}, {u1} offen"]
            if opt("CT", 0) & 2:
                lx = P.label()
                o += [f"s_lshl_b32 {u0}, {sW}, 12", f"v_and_b32 v16, 31, {vL}", f"v_lshl_add_u32 v16, v16, 7, {u0}", "v_min_u32 v16, L_p3_1-L_p1_1, v16",
                      "s_getpc_b64 s[96:97]", lx + ":", f"s_sub_u32 s96, s96, {lx}-L_p1_1", "s_subb_u32 s97, s97, 0", f"global_load_dword {x1}, v16, s[96:97]"]
            if CSN == 5:
                o += [f"s_lshl_b32 {u0}, {sW}, 13", f"v_add_u32 {x0}, {u0}, {vTP1}"] + table_addr("v123")
            if IM < 3:
                o += ["s_waitcnt vmcnt(0) lgkmcnt(0)", "s_barrier"] + tick("0.idle") + [f"s_branch {ljn}"]
                OUTL.extend(I(o))
            idl = o
        vtw = "v123"
        if CSN < 4:
            P.add(asel(AS4))
            P(f"s_lshl_b32 {t0}, {sW}, 14")
            P(f"v_add_u32 {'v122' if CSN else x1}, {t0}, {vTP}")
            P(f"s_lshl_b32 {t0}, {sW}, 13")
            P(f"v_add_u32 {x0}, {t0}, {vTP1}")
        if CSN >= 4:
            P.add(I(r4))
            P.add(barrier())
            if CSN == 5:
                T[2] = STV
            CS5, CSN = CSN == 5, 0
        elif CSN:
            P.add(table_addr(vtw))
            P.add(barrier("w1AB"))
            if CSN == 1:
                P.add(I(w1_items("CD2")))
        else:
            P.add(table_addr(x2))
            P.need("w1AB")
            for j in range(16):
                P.add(tr("v", XF + 4 * j, x1, 2048 * (j >> 1) + 512 * (j & 1)))
            P.need("w1CD1")
            for j in range(8):
                P.add(tr("v", XF + 64 + 4 * j, x0, 2048 * (j >> 1) + 512 * (j & 1)))
            for j in range(16):
                c = V(16 + 4 * (j & 1))
                P(f"{MF16} {c}, {V(AS4)}, {V(XF + 4 * j)}, {c if j >= 2 else 0}")
            for j in range(8):
                c = V(CC + 4 * (j & 1))
                P(f"{MF16} {c}, {V(AS4)}, {V(XF + 64 + 4 * j)}, {c if j >= 2 else 0}")
            P.add(I(table_write(16, 3, x2, f"v{B1V}") + table_write(20, 4, x2, f"v{B1V + 1}")))
            P.add(barrier())
            P(f"v_mov_b32 {vtw}, {x2}")
    else:
        P.add(barrier("w1AB", "w1CD1", *([] if P3N else ["w1CD2"])))
    P(f"v_add_u32 {vtb}, {TAB0 + 3072}, {vL16}")
    D = 3
    def rdA(t):
        if t < 32:
            return trp(RING + 8 * (t % 4), 2048 * t) + trp(RING + 8 * (t % 4) + 4, 2048 * t + 512)
        if t == 32:
            return I([f"ds_read_b128 {V(RING + 8 * (t % 4) + 4 * e)}, {vtb} offset:{1024 * e}" for e in range(2)])
        return []
    N3 = opt("N3", 0) >> L & 1
    D3 = opt("D3", 7)
    def rdF(f):
        t, e = divmod(f, 3)
        n = RING + 4 * (f % 8)
        if t < 32:
            return trp(n, 2048 * t + 512 * e) if e < 2 else trp(n, R2 + 2048 * t)
        if t == 32:
            return I(f"ds_read_b128 {V(n)}, {vtb} offset:{1024 * e}")
        return []
    back, vc = P.label(), (f"v{GT}" if EF & 2 else None)
    P.put(back)
    for t in range(D3 if N3 else D):
        P.add(rdF(t) if N3 else rdA(t))
    P(f"s_lshl_b32 {t3}, {sT}, 17")
    P(f"s_lshl_b32 {t4}, {sM}, 13")
    P(f"s_add_u32 {t3}, {t3}, {t4}")
    P(f"s_add_u32 {t3}, {t3}, {LX(L) + H_O}")
    P.add(I(idle(t3)))
    P(f"s_add_u32 {t4}, {t3}, 4096")
    xs, xi = x_loads(LX(L) + X1_O, LX(L) + ST1_O, STV)
    NB = opt("NB", 14)
    P.add(xs)
    P.add(I(idle(t1, t2)))
    P.add(tick(f"{L}.B4b"))
    P.add(poll(vPX, x1, FB + 3))
    P.add(tick(f"{L}.pollx1"))
    if CSN:
        assert NB <= 16
        csr = [tr("v", XF + 64 + 4 * j, "v122", 2048 * (j >> 1) + 512 * (j & 1)) for j in range(16)]
        P.add(I(spread(xi[:NB], csr)))
        if CSN == 2:
            P.add(I(w1_items("CD2")))
        for j in range(16):
            c = V(STV + 4 * (j & 1))
            P(f"{MF16} {c}, {V(AS4)}, {V(XF + 64 + 4 * j)}, {c if j >= 2 else 0}")
        tw = table_write(STV, 3, vtw, f"v{B1V}") + table_write(STV + 4, 4, vtw, f"v{B1V + 1}", "tw1")
    else:
        P.add(I(xi[:NB]))
    xi = xi[NB:] + (w1_items("CD2") if (L == 0 and CSN in (0, 3)) or (L and P3N and opt("CD2P", 1) == 1) else [])
    if L == 0 and opt("TKV", 0):
        xi += touch_qkv("v117", "v119")
    if L == 0 and opt("H3B", 0):
        xi += [help3("v117", "v119", u0)]
    xi += sp_touch(2, x1, x1)
    gA = []
    for k in range(33):
        xb = V(XF + 4 * k) if k < 32 else V(EX)
        if N3:
            gA.append(sum((rdF(3 * k + e + D3) + I(f"{MF} {V(T[e], 16)}, {V(RING + 4 * ((3 * k + e) % 8))}, {xb}, {V(T[e], 16) if k else 0}") for e in range(3)), []))
            continue
        gA.append(rdA(k + D) + I([f"{MF} {V(T[e], 16)}, {V(RING + 8 * (k % 4) + 4 * e)}, {xb}, {V(T[e], 16) if k else 0}" for e in range(2)]))
    s = [f"v{STV + i}" for i in range(4)]
    C0 = -2.0 * LOG2E * 0.7978845608028654
    fill = stats_sum(STV, vc) + stats_finish(s[0], s[1], s[2], s[3], EX, True, RR, IRR)
    fill += [I(x) for x in [f"v_mul_f32 {C0R}, {fc(C0)}, {RR}", f"v_mul_f32 {C1R}, {RR}, {RR}", f"v_mul_f32 {C1R}, {C1R}, {C0R}",
                            f"v_mul_f32 {C1R}, {fc(0.044715)}, {C1R}"]]
    for k in range(0, 32, 4):
        gA[k] = gA[k] + tick(f"{L}.zA{k}")
    if CSN:
        gA[0] = I(tw[:7]) + gA[0] + I(tw[7:])
        CR = [112, 116, 124]
        ncd = 8 if CSN == 3 else 16
        def crd(j): return I([need_ins("w1CD1" if j < 8 else "w1CD2")] + tr("v", CR[j % 3], x0, 32768 * (j >> 3) + 2048 * ((j >> 1) & 3) + 512 * (j & 1))) if j < ncd else []
        for j in range(ncd + 2):
            c = V(CC + 4 * (j & 1))
            gA[j] = gA[j] + ((I(f"{MF16} {c}, {V(AS4)}, {V(CR[(j - 2) % 3])}, {c if j >= 4 else 0}") if j >= 2 else []) + crd(j))
        if CSN != 3:
            tw = table_write(CC, 5, vtw, f"v{B1V + 2}") + table_write(CD_, 6, vtw, f"v{B1V + 3}", "tw2")
            for j in range(7):
                gA[ncd + 3 + j] += I(tw[2 * j:2 * j + 2])
        gA[opt("BAP", 20)] += I([need_ins("tw1", "w1CD1", *([] if CSN == 3 else ["w1CD2"])), "s_barrier"])
    attach(gA, xi)
    if opt("WB", 0) >> L & 1:
        lsk = P.label()
        gA[opt("WBP", 24)] += I([f"s_lshl_b32 {u0}, {sM}, 2", f"s_or_b32 {u0}, {u0}, {sW}"] + ([f"s_lshl_b32 {u0}, {u0}, 1", f"s_and_b32 {u1}, {sC}, 1", f"s_or_b32 {u0}, {u0}, {u1}"] if opt("WB1", 1) else []) +
                                [f"s_cmp_lg_u32 {u0}, {120 if opt('WB1', 1) else 60}", f"s_cbranch_scc1 {lsk}", "buffer_wbl2 sc1", lsk + ":"])
    if vc:
        for n, x in chain(vc, XF, 32):
            gA[n] += I(x)
    P.add(weave(gA, [(opt("XSP", 16) + 2, x) for x in fill] + [(len(xi), x) for x in inits("Bb"[L], STV + 8)]))
    if vc:
        P.add(redo(vc, back))
    P.add(tick(f"{L}.pA"))
    if (opt("N45", 0) >> L & 1) or N3:
        return tail45(L, vtb, vtw if L == 0 else None, N3)
    D1 = 6
    def rd1(e, t):
        if t < 32:
            return trp(RING + 4 * (t % 8), R2 + 2048 * t + 512 * e)
        if t == 32:
            return I(f"ds_read_b128 {V(RING + 4 * (t % 8))}, {vtb} offset:{2048 + 1024 * e}")
        if e == 0 and t - 34 >= 0:
            pass
        return []
    def g1(e, off):
        def rd(t):
            n = RING + 4 * ((t + off) % 8)
            if t < 32:
                return trp(n, R2 + 2048 * t + 512 * e)
            if t == 32:
                return I(f"ds_read_b128 {V(n)}, {vtb} offset:{2048 + 1024 * e}")
            if e == 0:
                return trp(n, R2 + 2048 * (t - 33) + 512)
            return []
        a = V(T[2 + e], 16)
        out = []
        for k in range(33):
            xb = V(XF + 4 * k) if k < 32 else V(EX)
            it = rd(k + D1)
            if k % 2 == 0 and k + 1 < 33:
                it = it + [need_ins(("v", RING + 4 * ((k + 1 + off) % 8) + 3))]
            out.append(it + I(f"{MF} {a}, {V(RING + 4 * ((k + off) % 8))}, {xb}, {a if k else 0}"))
        return out, [rd(t) for t in range(D1)]
    gB, preB = g1(0, 0)
    gC, _ = g1(1, 33)
    PUBD = opt("PUBD", 14)
    GHI = opt("GHI", 90) / 100
    def G(i, pk=False):
        o = gelu(T[i], C0R, C1R, IRR, GT, (t3 if i < 2 else t4, 2048 * (i & 1)), f"h{i}", 4 << (4 * L), pk, f"iH{L}{i}")
        if EF & 4:
            o.insert(len(o) - opt("HE", 0), tick(f"{L}.zpb{i}") + publish(FB + 4 + i, x1, f"h{i}", f"iH{L}{i}"))
        return o
    def at(groups, n, item):
        groups[n] = groups[n] + I(item)
    if L == 0:
        cs = [I([need_ins("w1CD2")] + tr("v", STV + 4 * (j & 3), x0, 32768 + 2048 * (j >> 1) + 512 * (j & 1))) for j in range(4)]
        for j in range(8):
            c = V(CC + 4 * (j & 1))
            cs.append(I(f"{MF16} {c}, {V(AS4)}, {V(STV + 4 * (j & 3))}, {c}"))
            if j + 4 < 8:
                cs.append(tr("v", STV + 4 * (j & 3), x0, 32768 + 2048 * ((j + 4) >> 1) + 512 * (j & 1)))
        cs += [[]] + table_write(CC, 5, vtw, f"v{B1V + 2}") + table_write(CD_, 6, vtw, f"v{B1V + 3}")
        if CS5:
            P.add(I(spread(G(0, True), preB, 0.5, 0.95)))
            C2 = opt("C2P", 5)
            LA = opt("C2L", 4)
            for j in range(8):
                at(gB, C2 + j, [need_ins("w1CD2")] + tr("v", 16 + 4 * (j & 3), x0, 32768 + 2048 * (j >> 1) + 512 * (j & 1)))
            for j in range(8):
                c = V(CC + 4 * (j & 1))
                gB[C2 + j + LA] = I(f"{MF16} {c}, {V(AS4)}, {V(16 + 4 * (j & 3))}, {c}") + gB[C2 + j + LA]
            gB[C2 + 1] = I("s_barrier") + gB[C2 + 1]
            tw = table_write(CC, 5, vtw, f"v{B1V + 2}") + table_write(CD_, 6, vtw, f"v{B1V + 3}", "tw2")
            for j in range(5):
                at(gB, C2 + 8 + LA + j, tw[3 * j:3 * j + 3])
            assert C2 + 1 <= 10 and C2 + 8 + LA + 4 < 25 and LA <= 4 and opt("KV0", 0) > C2
            at(gB, 25, [need_ins("tw2"), "s_barrier"])
        elif CSN in (1, 2):
            P.add(I(spread(G(0, True), preB, 0.5, 0.95)))
            P.add(I([need_ins("tw2"), "s_barrier"]))
        else:
            P.add(I(spread(G(0), cs + preB, 0.1, 0.95)))
            P.add(barrier())
        if 0 < IM < 3:
            P.put(ljn)
        kv = wkv_items()
        if not opt("KV0", 0):
            for j in range(8):
                at(gB, 1 + j, kv[j]); at(gC, 1 + j, kv[8 + j])
    else:
        P.add(I(spread(G(0, True), preB, 0.5, 0.95)))
        if P3N:
            at(gB, opt("B5P", 4), [need_ins("w1CD2"), "s_barrier"])
    P.add(tick(f"{L}.G0"))
    ACC = [A(224, 16), V(32, 16), V(48, 16), V(240, 16)]
    def hf(s, i, tt): return XF + 4 * (14 * (s & 1) + 2 * i + tt)
    def hloads(s):
        out = []
        for i in range(7):
            for tt in range(2):
                out.append(I([f"s_add_u32 {u0}, {t5 if tt == 0 else d3}, {(8 * i + 2 * s) * 1024}",
                              f"buffer_load_dwordx4 {V(hf(s, i, tt))}, {vL16}, {sWS}, {u0} offen sc1{ntm('H')}"]))
        return out
    def mf(s, i, n):
        tt, ct = n >> 1, n & 1
        a = ACC[n]
        return f"{MF} {a}, {A(((7 * s + i) * 2 + ct) * 4)}, {V(hf(s, i, tt))}, {a if (s or i or n == 0) else 0}"
    def hchk(s, i):
        if not EF & 4:
            return []
        ls, lr = P.label(), P.label()
        c = [f"v_cmp_u_f32 vcc, v{hf(s, i, 0)}, v{hf(s, i, 1)}", f"s_cbranch_vccnz {ls}"]
        OUTL.extend(I([ls + ":", f"s_cmp_eq_u32 {sRT}, 0", f"s_cbranch_scc1 {lr}", f"s_sub_u32 {sRT}, {sRT}, 1"] + hloads(s)[2 * i:2 * i + 2] + c + [f"s_branch {lr}"]))
        return I(c + [lr + ":"])
    def gS(s, ni=7): return [(hchk(s, i) if n == 0 else []) + I(mf(s, i, n)) for i in range(ni) for n in range(4)]
    hb = I([f"s_lshr_b32 {u0}, {sW}, 1", f"s_mul_i32 {u0}, {u0}, {56 * 1024}", f"s_and_b32 {u1}, {sW}, 1", f"s_lshl_b32 {u1}, {u1}, 10",
            f"s_add_u32 {u0}, {u0}, {u1}", f"s_add_u32 {u0}, {u0}, {LX(L) + H_O}", f"s_lshl_b32 {t5}, {sTP}, 17", f"s_xor_b32 {d3}, {t5}, 0x20000",
            f"s_add_u32 {t5}, {t5}, {u0}", f"s_add_u32 {d3}, {d3}, {u0}"])
    for n, x in enumerate(hb):
        at(gB, 16 + n, x)
    DEF = opt("DEF", 0)
    NT = opt("NT5", 2)
    if DEF == 1:
        assert not EF & 4
        st = gB + gC + gS(0) + gS(1) + [I(mf(2, i, n)) for i in range(7) for n in (1, 2, 3)] + [I(mf(3, i, n)) for i in range(7 - NT) for n in (1, 2, 3)]
    else:
        st = gB + gC + gS(0) + gS(1) + gS(2)
    CK = [opt(f"CK{i}", ((41, 66, 96, 124), (33, 48, 80, 110))[EF >> 2 & 1][i]) for i in range(4)]
    PB = [opt("PB0", 14), opt("PB1", 47), opt("PB2", 78), opt("PB3", 108)]
    PD = opt("PD", 12)
    for s in range(4):
        if not EF & 4:
            at(st, PB[s], tick(f"{L}.zpb{s}") + publish(FB + 4 + s, x1, f"h{s}") + tick(f"{L}.zPB{s}"))
        at(st, CK[s] - PD, poll_issue(vPH, x0, FB + 4 + s))
        at(st, CK[s], tick(f"{L}.zck{s}") + poll_check(vPH, x0, FB + 4 + s) + tick(f"{L}.zCK{s}"))
        n = CK[s] + 1
        hl = list(enumerate(hloads(s)))
        if DEF == 2 and s == 3:
            hl = hl[1::2] + hl[0::2]
        for j, (q, x) in enumerate(hl):
            lo = {0: 33 + j, 1: 33 + 14 + j}.get(s, 66 + 28 * (s - 2) + 4 * (q >> 1) + 3)
            n = max(n, lo)
            at(st, n, x)
            assert DEF != 1 or s < 2 or n < 122 + 21 * (s - 2) + 3 * (j >> 1)
            n += 1 if j < opt(f"HBU{s}", opt("HBU", 6)) else opt("HST", 2)
        assert n <= len(st) + 1
    at(st, opt("B6", 110), barrier() + tick(f"{L}.zB6"))
    if L == 0 and opt("KV0", 0):
        for j in range(16):
            at(st, opt("KV0", 0) + j * opt("KVS", 10) // 10, kv[j])
    if L == 0 and opt("WQE", 0):
        assert opt("WQE", 0) > opt("B6", 110)
        for j, x in enumerate(wq_items([2])):
            at(st, opt("WQE", 0) + j * opt("WQS", 1), (I(f"s_sub_u32 {d1}, {d1}, 1024") if j == 0 else []) + x)
    P.add(I(spread(st[:33], G(1, opt("GPK", 0) & 1), 0.03, GHI)))
    P.add(tick(f"{L}.pB"))
    P.add(I(spread(st[33:66], G(2, opt("GPK", 0) & 2), 0.03, GHI)))
    P.add(tick(f"{L}.pC"))
    if L == 0 and IM == 3:
        assert CK[1] >= 66 and CK[1] - PD < 66 and opt("KV0", 0) + 15 * opt("KVS", 10) // 10 < 66
        kvi = wkv_items()
        hb2 = I([x.text for x in hb])
        idl += ["s_waitcnt lgkmcnt(0)", "s_barrier"] + hb2 + poll(vPH, x0, FB + 4) + tick("0.idle") + hloads(0) + poll_issue(vPH, x0, FB + 5) + kvi + [f"s_branch {ljn}"]
        OUTL.extend(I(idl))
        P.put(ljn)
    P.add(weave(st[66:94], [(1, x) for x in G(3, opt("GPK", 0) & 4)], slack=0))
    P.add(tick(f"{L}.S0"))
    P.add(I(st[94:122]))
    P.add(tick(f"{L}.S1"))
    x, tmp = 64, 80
    wa = ["v16", "v17", "v18", "v19"]
    pre = []
    for i in range(4):
        pre.append(I([f"s_xor_b32 {u0}, {sW}, {i}", f"s_mul_i32 {u0}, {u0}, 12288", f"s_add_u32 {u0}, {u0}, {SL + 4096 * max(0, i - 1)}",
                      f"v_add_u32 {wa[i]}, {u0}, {vL16}"]))
    if L == 0:
        pre.append(tile_addr(LX(1) + XIN_O, LX(1) + ST2_O))
    else:
        pre.append(I([f"v_and_b32 {x2}, 31, {vL}", f"v_lshrrev_b32 {x1}, 5, {vL}", f"v_lshlrev_b32 {x2}, 10, {x2}", f"v_lshl_add_u32 {x2}, {x1}, 4, {x2}",
                      f"s_lshl_b32 {t1}, {sTP}, 15", f"s_lshl_b32 {t2}, {sCT}, 6", f"s_add_u32 {t1}, {t1}, {t2}"]))
    base = [0, 32, 48, 240]
    if DEF == 2:
        for n, it in enumerate(pre):
            at(st, 140 + n, it)
        P.add(I(st[122:150]))
        P.add(tick(f"{L}.S2"))
        def wr(n): return [I(f"ds_write_b128 {wa[n]}, {V(base[n] + 4 * j)} offset:{1024 * j}") for j in range(4)]
        def rd(p): return [I(f"ds_read_b128 {V(tmp + 16 * p + 4 * j)}, {wa[0]} offset:{4096 * p + 1024 * j}") for j in range(4)]
        def ad(d, a, b): return [I(f"v_pk_add_f32 {V(d + 2 * i, 2)}, {V(a + 2 * i, 2)}, {V(b + 2 * i, 2)}") for i in range(8)]
        g = [I(mf(3, i, n)) for i in range(7) for n in (3, 2)]
        for j in range(4):
            g[1 + j] += I([f"v_accvgpr_read_b32 v{x + i}, a{224 + i}" for i in range(4 * j, 4 * j + 4)])
        P.add(I(g))
        g = [I(mf(3, i, 1) if n else f"{MF} {V(x, 16)}, {A((21 + i) * 8)}, {V(hf(3, i, 0))}, {V(x, 16)}") for i in range(7) for n in (1, 0)]
        W0, BA = opt("W0", 0), opt("BA", 6)
        attach(g, wr(3) + wr(2), W0, opt("WP", 4))
        g[BA] += barrier() + I(rd(1) + rd(2))
        attach(g, ad(tmp + 16, tmp + 16, tmp + 32), opt("AP", 10), 4)
        P.add(I(g + wr(1) + ad(x, x, tmp + 16)))
        P.add(tick(f"{L}.S3"))
        P.add(barrier(*(["wkv"] if L == 0 else [])))
        P.add(I(rd(0) + ad(x, x, tmp)))
    elif DEF:
        for n, it in enumerate(pre + [I([f"v_accvgpr_read_b32 v{x + i}, a{224 + i}" for i in range(j, j + 4)]) for j in range(0, 16, 4)]):
            at(st, 143 + n, it)
        P.add(I(st[122:143]))
        P.add(tick(f"{L}.S2"))
        own = [I(f"{MF} {V(x, 16)}, {A((7 * s + i) * 8)}, {V(hf(s, i, 0))}, {V(x, 16)}") for s in (2, 3) for i in range(7)]
        g, wr = st[143:], []
        for n in (3, 2, 1, 0):
            for e, i in enumerate(range(7 - NT, 7)):
                g.append(I(mf(3, i, n)) if n else own.pop(0))
                if e >= 1 or NT == 1:
                    k = (len(wr) + (NT - e) - 1) // (NT - e)
                    g.append(I(wr[:k])); wr = wr[k:]
            if n:
                wr = [f"ds_write_b128 {wa[n]}, {V(base[n] + 4 * j)} offset:{1024 * j}" for j in range(4)]
        K1 = opt("K1", 3)
        P.add(I(g + own[:K1]))
        own = own[K1:]
        P.add(tick(f"{L}.S3"))
        P.add(barrier(*(["wkv"] if L == 0 else [])))
        order = [j + 4 * p for j in range(4) for p in range(3)]
        rd = [I(f"ds_read_b128 {V(tmp + 4 * j)}, {wa[0]} offset:{1024 * j}") for j in order]
        ad = [I([f"v_pk_add_f32 {V(tmp + 2 * i, 2)}, {V(tmp + 2 * i, 2)}, {V(tmp + 16 * p + 2 * i, 2)}" for p in (1, 2) for i in (2 * j, 2 * j + 1)]) for j in range(4)]
        RP = opt("RP", 4)
        for n in range(0, 12, RP):
            P.add(I(rd[n:n + RP]))
            P.add(own.pop(0))
        assert len(own) >= 4
        while len(own) > 4:
            P.add(own.pop(0))
        for j in range(4):
            P.add(own.pop(0))
            P.add(ad[j])
        for i in range(8):
            P(f"v_pk_add_f32 {V(x + 2 * i, 2)}, {V(x + 2 * i, 2)}, {V(tmp + 2 * i, 2)}")
    else:
        P.add(I(st[122:150]))
        P.add(tick(f"{L}.S2"))
        NT = opt("NT5", 2)
        wa = ["v16", "v17", "v18", "v19"]
        pre = []
        for i in range(4):
            pre.append(I([f"s_xor_b32 {u0}, {sW}, {i}", f"s_mul_i32 {u0}, {u0}, 12288", f"s_add_u32 {u0}, {u0}, {SL + 4096 * max(0, i - 1)}",
                          f"v_add_u32 {wa[i]}, {u0}, {vL16}"]))
        if L == 0:
            pre.append(tile_addr(LX(1) + XIN_O, LX(1) + ST2_O))
        else:
            pre.append(I([f"v_and_b32 {x2}, 31, {vL}", f"v_lshrrev_b32 {x1}, 5, {vL}", f"v_lshlrev_b32 {x2}, 10, {x2}", f"v_lshl_add_u32 {x2}, {x1}, 4, {x2}",
                          f"s_lshl_b32 {t1}, {sTP}, 15", f"s_lshl_b32 {t2}, {sCT}, 6", f"s_add_u32 {t1}, {t1}, {t2}"]))
        P.add(I(pre))
        g = gS(3, 7 - NT)
        if L == 0:
            attach(g, inits("C", RING), 1, 1)
            if opt("WQ3", 0):
                wq = wq_items([2])
                wq[0] = I(f"s_sub_u32 {d1}, {d1}, 1024") + wq[0]
                attach(g, wq, opt("WQ3", 0) - 1, 1)
        base = [0, 32, 48, 240]
        wr = []
        for n in (3, 2, 1, 0):
            for e, i in enumerate(range(7 - NT, 7)):
                g.append((hchk(3, i) if n == 3 else []) + I(mf(3, i, n)))
                if e >= 1 or NT == 1:
                    k = (len(wr) + (NT - e) - 1) // (NT - e)
                    g.append(I(wr[:k])); wr = wr[k:]
            if n:
                wr = [f"ds_write_b128 {wa[n]}, {V(base[n] + 4 * j)} offset:{1024 * j}" for j in range(4)]
        P.add(I(g))
        x, tmp = 64, 80
        for i in range(16):
            P(f"v_accvgpr_read_b32 v{x + i}, a{224 + i}")
        P.add(tick(f"{L}.S3"))
        P.add(barrier(*(["wkv"] if L == 0 else [])))
        for j in range(12):
            P(f"ds_read_b128 {V(tmp + 4 * j)}, {wa[0]} offset:{1024 * j}")
        for p in range(3):
            for i in range(8):
                P(f"v_pk_add_f32 {V(x + 2 * i, 2)}, {V(x + 2 * i, 2)}, {V(tmp + 16 * p + 2 * i, 2)}")
    if L == 0:
        tile_out(x, 16, 24, 8, publish(8, x1, early="iY0") if EF & 8 else [], "iY0")
        for i in range(16):
            P(f"v_accvgpr_write_b32 a{224 + i}, v{x + i}")
        if not EF & 8:
            P.add(publish(8, x1))
        P.add(tick("0.p5end"))
    else:
        for i in range(8):
            P(f"v_cvt_pk_bf16_f32 v{16 + i}, v{x + 2 * i}, v{x + 2 * i + 1}")
        P(f"buffer_store_dwordx4 {V(16)}, {x2}, {sOUT}, {t1} offen {OM}")
        P(f"buffer_store_dwordx4 {V(20)}, {x2}, {sOUT}, {t1} offen offset:32 {OM}")
        if PROF:
            P.need("stores")
            P.add(tick("1.final"))
            P.add(prof_dump())


def tail45(L, vtb, vtw, N3=0):
    o = lambda n, d: opt(f"{n}_{L}", opt(n, d))
    G0X, G2X, G3X = (1 if L == 0 else o("G0X", 1)), o("G2X", 1), o("G3X", N3)
    T = [16, 32, 48, 16 if G0X else STV]
    C0R, C1R, IRR, RR, GT = "v116", "v118", "v120", "v122", 124
    FB, D = 16 * L, 3
    def rd(t):
        n = RING + 8 * (t % 4)
        if t < 32:
            return trp(n, R2 + 2048 * t) + trp(n + 4, R2 + 2048 * t + 512)
        if t == 32:
            return I([f"ds_read_b128 {V(n + 4 * e)}, {vtb} offset:{2048 + 1024 * e}" for e in range(2)])
        return []
    gBC = []
    for k in range(33):
        xb = V(XF + 4 * k) if k < 32 else V(EX)
        r = rd(k + D)
        for e in range(2):
            gBC.append(I(f"{MF} {V(T[2 + e], 16)}, {V(RING + 8 * (k % 4) + 4 * e)}, {xb}, {V(T[2 + e], 16) if k else 0}") + r[len(r) // 2 * e:len(r) // 2 * (e + 1)])
    pre = [rd(t) for t in range(D)]
    if N3:
        D = 6
        def rd(t):
            n = RING + 4 * (t % 8)
            if t < 32:
                return trp(n, R2 + 2048 * t + 512)
            return I(f"ds_read_b128 {V(n)}, {vtb} offset:3072") if t == 32 else []
        gBC = []
        for k in range(33):
            xb = V(XF + 4 * k) if k < 32 else V(EX)
            it = rd(k + D)
            if k % 2 == 0 and k + 1 < 33:
                it = it + [need_ins(("v", RING + 4 * ((k + 1) % 8) + 3))]
            gBC.append(it + I(f"{MF} {V(T[3], 16)}, {V(RING + 4 * (k % 8))}, {xb}, {V(T[3], 16) if k else 0}"))
        pre = [rd(t) for t in range(D)]
    NB_ = len(gBC)
    def G(i, pk=False):
        return gelu(T[i], C0R, C1R, IRR, GT, (t3 if i < 2 else t4, 2048 * (i & 1)), f"h{i}", 4 << (4 * L), pk)
    def at(groups, n, item):
        groups[n] = groups[n] + I(item)
    kv = []
    if L == 0:
        cs = [I([need_ins("w1CD2")] + tr("v", STV + 4 * (j & 3), x0, 32768 + 2048 * (j >> 1) + 512 * (j & 1))) for j in range(4)]
        for j in range(8):
            c = V(CC + 4 * (j & 1))
            cs.append(I(f"{MF16} {c}, {V(AS4)}, {V(STV + 4 * (j & 3))}, {c}"))
            if j + 4 < 8:
                cs.append(tr("v", STV + 4 * (j & 3), x0, 32768 + 2048 * ((j + 4) >> 1) + 512 * (j & 1)))
        cs += [[]] + table_write(CC, 5, vtw, f"v{B1V + 2}") + table_write(CD_, 6, vtw, f"v{B1V + 3}")
        P.add(I(spread(G(0), cs + pre, 0.1, 0.95)))
        P.add(barrier())
        kv = wkv_items()
    elif G0X:
        P.add(I(spread(G(0, True), pre, 0.5, 0.95)))
    else:
        P.add(I(pre))
    P.add(tick(f"{L}.G0"))
    AB = [0, 32, RING, RING + 16]
    ACC = [A(224, 16)] + [V(b, 16) for b in AB[1:]]
    NR = 32
    def hf(s, i, tt): return XF + 4 * ((14 * s + 2 * i + tt) % NR)
    def hloads(s):
        return [I([f"s_add_u32 {u0}, {t5 if tt == 0 else d3}, {(8 * i + 2 * s) * 1024}",
                   f"buffer_load_dwordx4 {V(hf(s, i, tt))}, {vL16}, {sWS}, {u0} offen sc1"]) for i in range(7) for tt in range(2)]
    def mf(s, i, n):
        tt, ct = n >> 1, n & 1
        a = ACC[n]
        return f"{MF} {a}, {A(((7 * s + i) * 2 + ct) * 4)}, {V(hf(s, i, tt))}, {a if (s or i or n == 0) else 0}"
    def gS(s, ni=7): return [I(mf(s, i, n)) for i in range(ni) for n in range(4)]
    hb = I([f"s_lshr_b32 {u0}, {sW}, 1", f"s_mul_i32 {u0}, {u0}, {56 * 1024}", f"s_and_b32 {u1}, {sW}, 1", f"s_lshl_b32 {u1}, {u1}, 10",
            f"s_add_u32 {u0}, {u0}, {u1}", f"s_add_u32 {u0}, {u0}, {LX(L) + H_O}", f"s_lshl_b32 {t5}, {sTP}, 17", f"s_xor_b32 {d3}, {t5}, 0x20000",
            f"s_add_u32 {t5}, {t5}, {u0}", f"s_add_u32 {d3}, {d3}, {u0}"])
    for n in range(0, 10, 2):
        at(gBC, 1 + n, hb[n:n + 2])
    gx = []
    for i, x in ((2, G2X), (3, G3X)):
        if x:
            g = G(i, True)
            gx += [I(g[len(g) * n // 10:len(g) * (n + 1) // 10]) for n in range(10)]
    NT = opt("NT5", 2)
    S0 = NB_ + len(gx)
    st = gBC + gx + gS(0) + gS(1) + gS(2) + gS(3, 7 - NT)
    def pos(p): return p if p < 100 else (NB_ + p - 100 if p < 200 else S0 + p - 200)
    PB = [pos(o(f"PB{i}", ((18, 58, 216, 246), (14, 109, 200, 218))[N3][i])) for i in range(4)]
    PI = [pos(o(f"PI{i}", ((30, 103, 228, 256), (27, 115, 212, 232))[N3][i])) for i in range(4)]
    CK = [pos(o(f"CK{i}", ((42, 202, 240, 268), (32, 119, 220, 240))[N3][i])) for i in range(4)]
    for s in range(4):
        at(st, PB[s], tick(f"{L}.zpb{s}") + publish(FB + 4 + s, x1, f"h{s}") + tick(f"{L}.zPB{s}"))
        at(st, PI[s], poll_issue(vPH, x0, FB + 4 + s))
        at(st, CK[s], tick(f"{L}.zck{s}") + poll_check(vPH, x0, FB + 4 + s) + tick(f"{L}.zCK{s}"))
        n = CK[s]
        HS = o(f"HS{s}", ((14, 10, 15, 10), (7, 10, 10, 10))[N3][s])
        for j, x in enumerate(hloads(s)):
            q = 14 * s + j
            lo = (q if N3 else 2 * q + 1) if q < NR else S0 + 4 * ((q - NR) >> 1) + 3
            n = max(n, lo)
            assert n < S0 + 4 * (q >> 1), (s, j, n)
            at(st, n, x)
            n = max(n, CK[s] + (j + 1) * HS // 10)
    at(st, pos(o("B6", 210)), barrier() + tick(f"{L}.zB6"))
    for j, x in enumerate(kv):
        at(st, pos(o("KV0", 1)) + j * o("KVS", 20) // 10, x)
    if L == 0 and opt("WQ3", 0):
        wq = wq_items([2])
        wq[0] = I(f"s_sub_u32 {d1}, {d1}, 1024") + wq[0]
        for j, x in enumerate(wq):
            at(st, pos(opt("WQ3", 0)) + j * opt("WQS", 20) // 10, x)
    wa = [f"v{EX + i}" for i in range(4)]
    for i in range(4):
        at(st, S0 + 60 + i, [f"s_xor_b32 {u0}, {sW}, {i}", f"s_mul_i32 {u0}, {u0}, 12288", f"s_add_u32 {u0}, {u0}, {SL + 4096 * max(0, i - 1)}",
                             f"v_add_u32 {wa[i]}, {u0}, {vL16}"])
    if L == 0:
        at(st, S0 + 64, tile_addr(LX(1) + XIN_O, LX(1) + ST2_O))
    else:
        at(st, S0 + 64, [f"v_and_b32 {x2}, 31, {vL}", f"v_lshrrev_b32 v{GT}, 5, {vL}", f"v_lshlrev_b32 {x2}, 10, {x2}", f"v_lshl_add_u32 {x2}, v{GT}, 4, {x2}",
                         f"s_lshl_b32 {t1}, {sTP}, 15", f"s_lshl_b32 {t2}, {sCT}, 6", f"s_add_u32 {t1}, {t1}, {t2}"])
    P.add(I(spread(st[:NB_], ([] if G0X else G(0)) + G(1), 0.02, o("GHI", 90 if N3 else 62 if G0X else 97) / 100)))
    P.add(tick(f"{L}.pC"))
    P.add(I(st[NB_:S0]))
    P.add(tick(f"{L}.GX"))
    wv = ([] if G2X else G(2)) + ([] if G3X else G(3))
    P.add(I(spread(st[S0:S0 + 28], wv, 0.02, o("GH2", 95) / 100)))
    P.add(tick(f"{L}.S0"))
    P.add(I(st[S0 + 28:S0 + 56]))
    P.add(tick(f"{L}.S1"))
    P.add(I(st[S0 + 56:S0 + 84]))
    P.add(tick(f"{L}.S2"))
    g = st[S0 + 84:]
    wr = []
    for n in (3, 2, 1, 0):
        for e, i in enumerate(range(7 - NT, 7)):
            g.append(I(mf(3, i, n)))
            if e >= 1 or NT == 1:
                k = (len(wr) + (NT - e) - 1) // (NT - e)
                g.append(I(wr[:k])); wr = wr[k:]
        if n:
            wr = [f"ds_write_b128 {wa[n]}, {V(AB[n] + 4 * j)} offset:{1024 * j}" for j in range(4)]
    P.add(I(g))
    x, tmp = 48, XF
    for i in range(16):
        P(f"v_accvgpr_read_b32 v{x + i}, a{224 + i}")
    P.add(tick(f"{L}.S3"))
    P.add(barrier(*(["wkv"] if L == 0 else [])))
    for j in range(12):
        P(f"ds_read_b128 {V(tmp + 4 * j)}, {wa[0]} offset:{1024 * j}")
    for p in range(3):
        for i in range(8):
            P(f"v_pk_add_f32 {V(x + 2 * i, 2)}, {V(x + 2 * i, 2)}, {V(tmp + 16 * p + 2 * i, 2)}")
    if L == 0:
        tile_out(x, 16, 24, 8, [], None)
        for i in range(16):
            P(f"v_accvgpr_write_b32 a{224 + i}, v{x + i}")
        P.add(publish(8, x1))
        P.add(tick("0.p5end"))
    else:
        for i in range(8):
            P(f"v_cvt_pk_bf16_f32 v{16 + i}, v{x + 2 * i}, v{x + 2 * i + 1}")
        P(f"buffer_store_dwordx4 {V(16)}, {x2}, {sOUT}, {t1} offen {OM}")
        P(f"buffer_store_dwordx4 {V(20)}, {x2}, {sOUT}, {t1} offen offset:32 {OM}")
        if PROF:
            P.need("stores")
            P.add(tick("1.final"))
            P.add(prof_dump())
```

```python
from k2_base import *
from k2_p1 import *

QF, KA, VA, LC, TMP, PM, KR, SB, DG, KD, OA0 = 16, 24, 25, 29, 31, 32, 40, 64, 160, 192, 224
VS = [112, 120, 200, 208, 216]


def q(h): return V(QF + 4 * h)
def kread(n, j, h): return f"ds_read_b128 {V(n)}, v{KA} offset:{PITCH * j + 2048 * h}"
def vread(n, j, h): return [f"ds_read_b128 {V(n + 4 * s)}, v{VA + 2 * h + s} offset:{PITCH * j + 2048 * h + 1024 + 512 * s}" for s in range(2)]
def merge(s, d): return [f"v_cndmask_b32_e64 v{s + r}, v{s + r}, v{d + r}, {sMASK(r)}" for r in range(16)]
def exps(s): return [f"v_exp_f32 v{s + i}, v{s + i}" for i in range(16)]
def cvts(s): return [f"v_cvt_pk_bf16_f32 v{s + i}, v{s + 2 * i}, v{s + 2 * i + 1}" for i in range(8)]
def split(s): return [x for i in range(8) for x in (f"v_and_b32 v{s + 8 + i}, v{s + i}, v{PM + i}", f"v_xor_b32 v{s + i}, v{s + i}, v{s + 8 + i}")]


def epi(L, h, o):
    e = [f"v_mul_f32 v{o + i}, v{o + i}, v{TMP}" for i in range(8)]
    e += [f"v_cvt_pk_bf16_f32 v{o + 8 + i}, v{o + 2 * i}, v{o + 2 * i + 1}" for i in range(4)]
    e += [xstore(f"buffer_store_dwordx4 {V(o + 8)}, {vL16}, {sWS}, {t0} offen offset:{1024 * h}", 1 << (4 * L) if h or not opt("DS", 0) else 0, f"o{h}", ini=f"iO{L}")]
    return e


def att_safe(L):
    K, SA_, SB_, NM, VV, O, m = 40, 96, 112, 192, 208, 224, f"v{LC}"
    o = []
    for h in range(2):
        o += [kread(K + 4 * j, j, h) for j in range(9)]
        for ps in range(2):
            c = V(NM, 16) if ps else 0
            for j in range(8):
                s = SB_ if j % 2 == 0 else SA_
                if j == 0:
                    o.append(f"{MF} {V(SA_, 16)}, {V(K + 32)}, {q(h)}, {c}")
                o.append(f"{MF} {V(s, 16)}, {V(K + 4 * j)}, {q(h)}, {c}")
                if j == 0:
                    o += merge(s, SA_)
                if ps == 0:
                    if j == 0:
                        o.append(f"v_mov_b32 {m}, v{s}")
                    o += [f"v_max3_f32 {m}, {m}, v{s + 2 * i}, v{s + 2 * i + 1}" for i in range(8)]
                    continue
                o += vread(VV, j, h) + exps(s) + cvts(s)
                if j == 0:
                    o += vread(VV + 8, 8, h) + split(s)
                    o += [f"{MF} {V(O, 16)}, {V(VV + 8)}, {V(s + 8)}, 0", f"{MF} {V(O, 16)}, {V(VV + 12)}, {V(s + 12)}, {V(O, 16)}"]
                o += [f"{MF} {V(O, 16)}, {V(VV)}, {V(s)}, {V(O, 16)}", f"{MF} {V(O, 16)}, {V(VV + 4)}, {V(s + 4)}, {V(O, 16)}", "s_nop 15"]
            if ps == 0:
                o += [f"v_mov_b32 v{TMP}, {m}", f"v_permlane32_swap_b32 {m}, v{TMP}", f"v_max_f32 {m}, {m}, v{TMP}"]
                o += [f"v_sub_f32 v{NM + i}, 0, {m}" for i in range(16)]
        o += [f"v_rcp_f32 v{TMP}, v{O + 8}"] + epi(L, h, O)
    if opt("DS", 0):
        o += [f"v_mov_b32 v{OA0 + 24 + i}, v{O + 8 + i}" for i in range(4)]
    return I(o + ["s_waitcnt vmcnt(0)", "v_mov_b32 v56, 0"])


def phase2(L):
    if not PRE:
        P(f"s_mul_i32 {t0}, {sW}, {PITCH}")
        P(f"s_add_u32 {t0}, {t0}, {SL}")
        P(f"v_add_u32 v{KA}, {t0}, {vL16}")
        P(f"v_and_b32 {x1}, 0xf0, {vL16}")
        P(f"v_lshrrev_b32 {x2}, 5, {vL}")
        P(f"v_lshl_add_u32 {x1}, {x2}, 8, {x1}")
        P(f"v_add_u32 {x1}, {t0}, {x1}")
        P(f"s_mov_b32 vcc_lo, 0xffff0000")
        P(f"s_mov_b32 vcc_hi, 0xffff0000")
        P(kread(KD, 8, 0))
        P(kread(KD + 4, 8, 1))
        for hs in range(4):
            P(f"s_add_u32 {t1}, {t0}, {4096 - (2048 * (hs >> 1) + 1024 + 512 * (hs & 1))}")
            P(f"v_mov_b32 {x2}, {t1}")
            P(f"v_cndmask_b32 v{VA + hs}, {x1}, {x2}, vcc")
        P(f"v_lshrrev_b32 {x1}, 2, {vL}")
        P(f"v_min_u32 {x1}, 2, {x1}")
        P(f"v_lshlrev_b32 {x2}, 2, {x1}")
        P(f"v_add_u32 {x2}, {sT}, {x2}")
        P(f"v_cmp_le_u32 vcc, 8, {x2}")
        P(f"v_mul_u32_u24 {x1}, {4 * PITCH}, {x1}")
        P(f"v_and_b32 {x2}, 3, {vL}")
        P(f"v_lshl_add_u32 {x1}, {x2}, 2, {x1}")
        P(f"v_add_u32 {x1}, {t0}, {x1}")
        P(f"v_mov_b32 {x2}, 0x3f803f80")
        P(f"v_cndmask_b32 {x2}, 0, {x2}, vcc")
        P(f"ds_write_b32 {x1}, {x2} offset:4096")
    tiles = [(8, 0), (0, 0), (8, 1), (0, 1), (4, 0), (4, 1)] + [(j, h) for h in range(2) for j in (1, 2, 3, 5, 6, 7)]
    def vs(t): return VS[t % 5]
    def vl(t): return vread(vs(t), *tiles[t])
    def hd(u): return tiles[u + 2][1] if u >= 2 else u
    def sb(u): return SB + 16 * (u % 3)
    def oa(h): return OA0 + 16 * h
    def qk(u): return f"{MF} {V(sb(u), 16)}, {V(HB + 8 * u if u < 4 else KR + 4 * (u % 4))}, {q(hd(u))}, 0"
    if not PRE:
        P.add(I(vl(0) + vl(2)))
    for h in range(2):
        for i in range(8 * h, 8 * h + 8):
            if not opt("PKE", 0):
                P(f"v_mul_f32 v{aQ + i}, v{aQ + i}, {x0}")
            elif i % 2 == 0:
                P(f"v_pk_mul_f32 {V(aQ + i, 2)}, {V(aQ + i, 2)}, v[12:13] op_sel:[0,1]")
        for i in range(4 * h, 4 * h + 4):
            P(f"v_cvt_pk_bf16_f32 v{QF + i}, v{aQ + 2 * i}, v{aQ + 2 * i + 1}")
        for d in range(4 * h, 4 * h + 4):
            if not PRE:
                P(f"v_accvgpr_read_b32 v{PM + d}, a{240 + d}")
        if not KP:
            P(f"{MF} {V(DG + 16 * h, 16)}, {V(KD + 4 * h)}, {q(h)}, 0")
    if KP:
        assert PRE
        P.add(I([f"s_and_b32 {t0}, {t4}, 1024", f"v_add_u32 {x2}, {t0}, v{KA}"]))
    P.add(I([f"s_lshl_b32 {t0}, {sT}, 4", f"s_add_u32 {t0}, {t0}, {sM}", f"s_lshl_b32 {t0}, {t0}, 11", f"s_add_u32 {t0}, {t0}, {LY(L) + O_O}"]))
    P.add(tick(f"{L}.p1end"))
    lp, lr, ls = P.label(), P.label(), P.label()
    P(f"s_mov_b32 {sCNT}, 20000")
    P.put(lp)
    PLL = opt("PLL", 0)
    def plp():
        for h in range(2):
            P(f"ds_write_b128 {x2}, {V(PLR + 4 * h)} offset:{8 * PITCH + 2048 * h}")
        P.add(I([kread(KD, 8, 0), kread(KD + 4, 8, 1)] + vl(0) + vl(2)))
        P(f"v_max3_u32 {x1}, {x1}, v{PLR}, v{PLR + 1}" if PLL else f"v_max_u32 {x1}, v{PLR}, v{PLR + 1}")
        for n in range(2, 8, 2):
            P(f"v_max3_u32 {x1}, {x1}, v{PLR + n}, v{PLR + n + 1}")
    def dgp():
        for h in range(2):
            P(f"{MF} {V(DG + 16 * h, 16)}, {V(KD + 4 * h)}, {q(h)}, 0")
    if KP and not PLL:
        plp()
    for i in range(2):
        for j in range(4):
            b = HB + 16 * i + 4 * j
            if KP and 4 * i + j == opt("DGP", 0) and not PLL:
                dgp()
            if i == 0 and j % 2 == 0:
                P(qk(j >> 1))
            P(f"ds_write_b128 v{KA}, {V(b)} offset:{4 * PITCH * i + 1024 * j}")
            if i == 0 and j == 3:
                P.add(I(vl(1) + vl(3)))
            if i == 0 and j == 0 and (PLL or not KP):
                P(f"v_max3_u32 {x1}, v{b}, v{b + 1}, v{b + 2}")
                P(f"v_max_u32 {x1}, {x1}, v{b + 3}")
            else:
                P(f"v_max3_u32 {x1}, {x1}, v{b}, v{b + 1}")
                P(f"v_max3_u32 {x1}, {x1}, v{b + 2}, v{b + 3}")
    if KP and PLL:
        plp()
        dgp()
    P(f"v_cmp_eq_u32 vcc, -1, {x1}")
    P(f"s_cbranch_vccnz {ls}")
    P.put(lr)
    OUTL.extend(I([ls + ":", f"s_sub_u32 {sCNT}, {sCNT}, 1", f"s_cbranch_scc1 {lr}"] + halo_loads() +
                  [f"buffer_load_dword a232, off, {sWS}, {u0}" if n else f"s_mov_b32 {u0}, {OOB}" for n in range(opt("HD", 0) + 1 if L == 0 else 0)] + [f"s_branch {lp}"]))
    P.add(tick(f"{L}.halo"))

    def mix(a, b):
        out, b = [], list(b)
        for x in a:
            out.append(x)
            if b:
                y = b.pop(0)
                if y is not None:
                    out.append(y)
        return out + [y for y in b if y is not None]
    BU, DR = opt("BU", 1), opt("DR", 0)
    head, main, pend = [], [], []
    for u in range(16):
        h, s = hd(u), sb(u)
        o = V(oa(h), 16)
        if u < 2:
            valu = merge(s, DG + 16 * u) + exps(s) + cvts(s) + split(s)
            pv = [f"{MF} {o}, {V(vs(2 * u))}, {V(s + 8)}, 0", f"{MF} {o}, {V(vs(2 * u) + 4)}, {V(s + 12)}, {o}",
                  f"{MF} {o}, {V(vs(2 * u + 1))}, {V(s)}, {o}", f"{MF} {o}, {V(vs(2 * u + 1) + 4)}, {V(s + 4)}, {o}"]
        else:
            valu = exps(s) + cvts(s)
            pv = [f"{MF} {o}, {V(vs(u + 2))}, {V(s)}, {o}", f"{MF} {o}, {V(vs(u + 2) + 4)}, {V(s + 4)}, {o}"]
        if u == 11:
            valu = valu[:12] + mix(valu[12:], [f"v_rcp_f32 v{TMP}, v{oa(0) + 8}", f"v_add_u32 v{LC}, 0xe0800000, v{oa(0) + 8}"] + epi(L, 0, oa(0)))
        if u == 15:
            valu = valu[:8] + valu[16:20] + valu[8:10] + [pv.pop(0)] + valu[10:16] + valu[20:]
        mf = list(pend) + ([qk(u + 2)] if u + 2 < 16 else [])
        rd = (vl(u + 3) if 1 <= u <= 14 else []) + ([kread(KR + 4 * ((u + 3) % 4), *tiles[u + 5])] if 1 <= u <= 12 else [])
        rd = [None] * (len(mf) - len(rd)) + rd
        out, acc = [], 32
        for x in valu:
            if acc >= 28 and mf:
                r = rd.pop(0)
                out.append(I([mf.pop(0)] + ([r] if r else []))); acc = 4 if r else 0
            out.append(I(x)); acc += cost(I(x))
        assert not mf and not rd
        pend = pv
        if u < BU:
            head += out
        else:
            main += out
    main += pend
    if P3N and L:
        head = spread(head, wo_items(DR & 1)[:opt("WOH", 0)], 0.0, 0.9)
    P.add(I(head))
    P.add(barrier())
    P.add(tick(f"{L}.B2"))
    if L == 0:
        d2_, r2_ = w2_round(2, x0)
        d3_, r3_ = w2_round(3, x0)
        d1_, r1_ = w2_round(1, x0)
        A0 = [int(x) / 100 for x in OPT.get("A0", "0,25,35,62,72,92").split(",")]
        tw1 = touch(sW1, 1792 * 1024, "a232", x1, u2, opt("TS1", 7))
        T0 = opt("T0", 0)
        if T0 == 6:
            tw1 = touch(sW1, 1792 * 1024, "a232", x1, u2, opt("TS1", 7), 0)
            twe = touch(sW1, 1792 * 1024, "a232", x1, u2, opt("TS1", 7), 1)
        a = spread(main, d2_ + (tw1 if T0 == 3 else []), A0[0], A0[1])
        a = spread(a, r2_ + [[need_ins("ds_any")]] + d1_ + d3_ + (tw1 if T0 == 4 else []), A0[2], A0[3])
        a = spread(a, r1_ + [[need_ins("ds_any")]] + wo_items() + (tw1 if T0 == 0 or (T0 == 6 and not opt("TB0", 0)) else []), A0[4], A0[5])
        if T0 == 6:
            a = spread(a, twe, opt("TA0", 22) / 100, opt("TA1", 24) / 100)
            if opt("TB0", 0):
                a = spread(a, tw1, opt("TB0", 0) / 100, opt("TB1", opt("TB0", 0) + 2) / 100)
        if T0 == 5:
            a = spread(a, tw1, opt("TA0", 5) / 100, opt("TA1", 80) / 100)
        a = spread(a, inits("A", 56), opt("IA0", 5) / 100, opt("IA1", 70) / 100)
        a = spread(a, sp_setup(), 0.3, 0.34)
        a = spread(a, sp_touch(1, "a232", x1) + ctouch(1, "a232", x1, "L_p3_0", "L_p1_1"), opt("SPA", 10) / 100, opt("SPB", 20) / 100)
        late_rd = r3_
    elif P3N and opt("ABT", 1):
        A1 = [int(x) / 100 for x in OPT.get("A1", "0,60,10,60").split(",")]
        a = spread(main, wo_items(DR & 1)[opt("WOH", 0):] + w1_items("CD1", DR & 4), A1[0], A1[1])
        if opt("ABT", 1) == 1:
            a = spread(a, touch_ab("v60", "v61", u2), A1[2], A1[3])
        late_rd = []
    elif P3N:
        A1 = [int(x) / 100 for x in OPT.get("A1", "0,12,30,66").split(",")]
        C1 = opt("C1P", 0)
        a = spread(main, wo_items(DR & 1)[opt("WOH", 0):] + (w1_items("CD1", DR & 4) if C1 == 0 else []), A1[0], A1[1])
        wr = wo_reads(x0)
        wr = [wr[0] + wr[1] + wr[2]] + [wr[i] + wr[i + 1] for i in range(3, 17, 2)]
        a = spread(a, wr + [[need_ins(("v", 191))]] + w1_items("AB", DR & 2) + (w1_items("CD1", DR & 4) if C1 == 1 else []), A1[2], A1[3])
        late_rd = []
    else:
        a = spread(main, (touch(sW1, 1792 * 1024, "v60", x1, u2, opt("TW1", 0)) if opt("TW1", 0) else []) + wo_items() + w1_items("CD1"), 0.0, 0.6)
        a = spread(a, inits("a", 56), opt("Ia0", 5) / 100, opt("Ia1", 60) / 100)
        a = spread(a, sp_touch(1, "v60", "v60") + ctouch(4, "v61", "v61", "L_p3_1", "L_ce"), opt("SPA", 10) / 100, opt("SPB", 20) / 100)
        late_rd = []
    if P3N:
        lsk = P.label()
        pf = opt(f"PF_{L}", opt("PF", 90)) / 100
        a = spread(a, [I([f"v_cmp_le_u32 vcc, {0 if opt('FB', 0) else '0x40000000'}, v{LC}", f"s_cbranch_vccnz {lsk}"]) + tick(f"{L}.zpf") + publish(16 * L + 1, "v57", "o0") + tick(f"{L}.zPF") + I(lsk + ":")], pf, pf)
        pf = opt(f"PG_{L}", opt("PG", 98)) / 100
        a = spread(a, [poll_issue(vPO, "v56")], pf, pf)
    P.add(I(a))
    lf, lj = P.label(), P.label()
    P(f"v_rcp_f32 v{TMP}, v{oa(1) + 8}")
    P(f"v_add_u32 {x1}, 0xe0800000, v{oa(1) + 8}")
    P(f"v_max_u32 {x1}, {x1}, v{LC}")
    P(f"v_cmp_le_u32 vcc, {0 if opt('FB', 0) else '0x40000000'}, {x1}")
    e = epi(L, 1, oa(1))
    P.add(I(e[:4]))
    P(f"s_cbranch_vccnz {lf}")
    P.add(I(e[4:]))
    P.put(lj)
    OUTL.extend(I([lf + ":"]) + att_safe(L) + I(f"s_branch {lj}"))
    P.add(tick(f"{L}.att"))
    if P3N:
        return late_rd
    P.add(publish(16 * L + 1, x1, early=f"iO{L}" if EF & 1 else None))
    if opt("DS", 0) and PL >> (4 * L) & 1:
        P(f"buffer_store_dwordx4 {V(oa(1) + 8)}, {vL16}, {sWS}, {t0} offen offset:1024 sc1")
    P.add(tick(f"{L}.p2end"))
    return late_rd
```

```python
from k2_base import *
from k2_p1 import *

B1V, CC, CD_, AS4 = 48, 52, 56, 60
OM = OPT.get("OM", "").replace("_", " ")


def tile_out(x, pk, tmp, bit, pub, ini):
    XE = opt("XE", 1)
    if XE == 0:
        P.add(pub)
    for i in range(8):
        P(f"v_cvt_pk_bf16_f32 v{pk + i}, v{x + 2 * i}, v{x + 2 * i + 1}")
    P.add(xstore(f"buffer_store_dwordx4 {V(pk)}, {vL16}, {sWS}, {t1} offen", bit, ini=ini))
    P.add(xstore(f"buffer_store_dwordx4 {V(pk + 4)}, {vL16}, {sWS}, {t1} offen offset:1024", bit))
    if XE == 1:
        P.add(pub)
    a, b = V(tmp, 2), V(tmp + 2, 2)
    P(f"v_pk_add_f32 {a}, {V(x, 2)}, {V(x + 2, 2)}")
    P(f"v_pk_mul_f32 {b}, {V(x, 2)}, {V(x, 2)}")
    for i in range(1, 8):
        if i >= 2:
            P(f"v_pk_add_f32 {a}, {a}, {V(x + 2 * i, 2)}")
        P(f"v_pk_fma_f32 {b}, {V(x + 2 * i, 2)}, {V(x + 2 * i, 2)}, {b}")
    P(f"v_add_f32 v{tmp}, v{tmp}, v{tmp + 1}")
    P(f"v_add_f32 v{tmp + 2}, v{tmp + 2}, v{tmp + 3}")
    P(f"v_permlane32_swap_b32 v{tmp}, v{tmp + 2}")
    P(f"v_add_f32 v{tmp}, v{tmp}, v{tmp + 2}")
    P.add(xstore(f"buffer_store_dword v{tmp}, {x2}, {sWS}, {t2} offen", bit))
    if XE == 2:
        P.add(pub)


def tile_addr(xo, so):
    return I([f"s_lshl_b32 {t2}, {sTP}, 4", f"s_add_u32 {t2}, {t2}, {sCT}", f"s_lshl_b32 {t1}, {t2}, 11", f"s_add_u32 {t1}, {t1}, {xo}",
              f"s_lshl_b32 {t2}, {t2}, 8", f"s_add_u32 {t2}, {t2}, {so}", f"v_lshlrev_b32 {x2}, 2, {vL}"])


def b1_loads():
    return I([f"v_and_b32 {x1}, 0x13, {vL}", f"v_bfe_u32 {x2}, {vL}, 2, 1", f"v_lshl_add_u32 {x1}, {x2}, 3, {x1}", f"v_bfe_u32 {x2}, {vL}, 3, 1",
              f"v_lshl_add_u32 {x1}, {x2}, 2, {x1}", f"v_lshlrev_b32 {x1}, 1, {x1}", f"s_lshl_b32 {t1}, {sM}, 8", f"s_cmp_ge_u32 {sW}, 2", f"s_cselect_b32 {t1}, {OOB}, {t1}"] +
             [f"buffer_load_ushort v{B1V + e}, {x1}, {sB1}, {t1} offen offset:{64 * e}" for e in range(4)])


def phase3n(L, late_rd):
    o = lambda n, d: opt(f"{n}_{L}", opt(n, d))
    a0, OF, WO = 16, 64, 128
    AB = [a0, 192, 208, 224]
    wa = [f"v{32 + i}" for i in range(5)]
    v4k = "v37"
    P.add(I([f"s_lshr_b32 {t3}, {sW}, 1", f"s_xor_b32 {t3}, {t3}, {sRR}", f"s_and_b32 {t3}, {t3}, 1", f"s_and_b32 {t4}, {sW}, 1", f"s_lshl_b32 {t4}, {t4}, 1",
             f"s_add_u32 {t3}, {t3}, {t4}", f"s_lshl_b32 {t4}, {sTP}, 2", f"s_add_u32 {t3}, {t3}, {t4}", f"s_lshl_b32 {t3}, {t3}, 13",
             f"s_add_u32 {t3}, {t3}, {LX(L) + O_O}", f"s_xor_b32 {t4}, {t3}, 0x8000", f"v_add_u32 {v4k}, 0x1000, {vL16}"]))
    if L == 0:
        P.add(I(late_rd))
        P.add(I(wo_reads(x0)))
        P.add(b1_loads())
        P.add(I([x for d in range(8) for x in (f"v_accvgpr_read_b32 {x2}, a{224 + d}", f"v_lshlrev_b32 v{a0 + 2 * d}, 16, {x2}", f"v_and_b32 v{a0 + 2 * d + 1}, 0xffff0000, {x2}")]))
    else:
        if opt("ABT", 1):
            P.add(I(wo_reads(x0)))
        P.add(I([f"v_accvgpr_read_b32 v{a0 + i}, a{224 + i}" for i in range(16)]))
    for i in range(5):
        n = i & 3 if i < 4 else 0
        hi = i == 3 or i == 4
        P.add(I([f"s_xor_b32 {u0}, {sW}, {n}", f"s_lshl_b32 {u0}, {u0}, {12 if hi else 13}", f"s_add_u32 {u0}, {u0}, {SCR3 if hi else SL + 4096 * max(0, n - 1)}",
                 f"v_add_u32 {wa[i]}, {u0}, {vL16}"]))
    P.add(tile_addr(LX(L) + X1_O, LX(L) + ST1_O))
    fill = (w1_items("AB") + w1_items("CD1")) if L == 0 else (w1_items("CD1", opt("DR", 0) & 4) if opt("C1P", 0) == 2 else [])
    if L and opt("ABT", 1):
        fill = w1_items("AB")
    if L == 0 or opt("ABT", 1):
        fill[0] = [need_ins("ds_any")] + fill[0]
    FE, FM = o("FE", 0), o("FM", 0)
    P.add(I(fill[:FE]))
    P.add(publish(16 * L + 2, x1, "o1"))
    P.add(tick(f"{L}.p2end"))
    def of(ks, tt): return OF + (ks * 2 + tt) * 4
    def oloads(h): return [f"buffer_load_dwordx4 {V(of(ks, tt))}, {v4k if ks >= 4 else vL16}, {sWS}, {t4 if tt else t3} offen offset:{(ks & 3) * 1024} sc1"
                           for ks in range(h, 8, 2) for tt in range(2)]
    def mf(ks, n):
        a = V(AB[n], 16)
        return f"{MF} {a}, {V(WO + (ks * 2 + (n & 1)) * 4)}, {V(of(ks, n >> 1))}, {a if (ks or n == 0) else 0}"
    P.add(poll_check(vPO, "v56", 16 * L + 1))
    P.add(tick(f"{L}.yck0"))
    P.add(I(oloads(0)))
    P.add(I(fill[FE:FM]))
    P.add(poll_issue(vPO, "v56"))
    P.add(barrier())
    P.add(tick(f"{L}.B3"))
    NT, NH0 = o("NT3", 2), o("NH0", 12)
    g = [mf(ks, n) for ks in (0, 2, 4, 6) + (1, 3, 5, 7)[:4 - NT] for n in range(4)]
    P.add(I(g[:NH0]))
    P.add(tick(f"{L}.ymf0"))
    P.add(poll_check(vPO, "v56", 16 * L + 2))
    P.add(tick(f"{L}.pollo"))
    P.add(I(oloads(1)))
    g = g[NH0:]
    wr = []
    for n in (3, 2, 1, 0):
        for e, ks in enumerate((1, 3, 5, 7)[4 - NT:]):
            g.append(mf(ks, n))
            if e >= 1 or NT == 1:
                k = (len(wr) + (NT - e) - 1) // (NT - e)
                g.append(wr[:k]); wr = wr[k:]
        if n:
            wr = [f"ds_write_b128 {wa[n]}, {V(AB[n] + 4 * j)} offset:{1024 * j}" for j in range(4)]
    P.add(I(spread(g, fill[max(FE, FM):], 0.0, 1.0)))
    P.add(tick(f"{L}.p3mm"))
    P.add(barrier())
    P.add(tick(f"{L}.yB4"))
    for j in range(12):
        P(f"ds_read_b128 {V(OF + 4 * j)}, {wa[0 if j < 8 else 4]} offset:{1024 * (j & 7 if j < 8 else j - 8)}")
    for p in range(3):
        for i in range(8):
            P(f"v_pk_add_f32 {V(a0 + 2 * i, 2)}, {V(a0 + 2 * i, 2)}, {V(OF + 16 * p + 2 * i, 2)}")
    tile_out(a0, OF + 16, OF + 24, 2 << (4 * L), [], None)
    P.add(tick(f"{L}.yst"))
    r4 = []
    if L == 0:
        d4, r4 = w2_round(4, x0)
        P.add(I(d4))
    elif o("CD2P", 1) == 0:
        P.add(I(w1_items("CD2")))
    for d in range(8):
        P(f"v_accvgpr_read_b32 {x1}, a{248 + d}")
        P(f"v_lshlrev_b32 v{OF}, 16, {x1}")
        P(f"v_and_b32 v{OF + 1}, 0xffff0000, {x1}")
        P(f"v_pk_add_f32 {V(a0 + 2 * d, 2)}, {V(a0 + 2 * d, 2)}, {V(OF, 2)}")
        P(f"v_accvgpr_write_b32 a{224 + 2 * d}, v{a0 + 2 * d}")
        P(f"v_accvgpr_write_b32 a{225 + 2 * d}, v{a0 + 2 * d + 1}")
    P.add(publish(16 * L + 3, x1))
    P.add(tick(f"{L}.p3end"))
    return r4


def phase3(L, late_rd):
    if P3N:
        return phase3n(L, late_rd)
    a0, a1, OF, WO = 16, 32, 64, 128
    vp, vc = "v53", "v54"
    P(f"s_and_b32 {t0}, {sW}, 1")
    P(f"s_lshl_b32 {t0}, {t0}, 14")
    P(f"v_add_u32 {x1}, {t0}, {vTP}")
    P(f"s_lshl_b32 {t3}, {sTP}, 15")
    P(f"s_add_u32 {t3}, {t3}, {t0}")
    P(f"s_add_u32 {t3}, {t3}, {LX(L) + O_O}")
    P(f"s_and_b32 {t4}, {sRR}, 1")
    P(f"s_lshl_b32 {t4}, {t4}, 13")
    P(f"s_add_u32 {t3}, {t3}, {t4}")
    P.add(barrier("wo"))
    P.add(tick(f"{L}.B3"))
    CD2E = opt("CD2E", 1)
    if L and CD2E:
        P.add(I(w1_items("CD2")))
    rd = [tr("v", WO + (ks * 2 + ct) * 4, x1, (ks >> 3) * 32768 + 2048 * (ks & 7) + 512 * ct) for ks in range(16) for ct in range(2)]
    PO1, PO2 = opt(f"PO1_{L}", opt("PO1", 6)), opt(f"PO2_{L}", opt("PO2", 14))
    def oloads():
        o = []
        for ks in range(16):
            if ks % 4 == 0:
                o.append(f"s_xor_b32 {t4}, {t3}, {4096 * (ks // 4)}")
            o.append(f"buffer_load_dwordx4 {V(OF + 4 * ks)}, {vL16}, {sWS}, {t4} offen offset:{(ks % 4) * 1024} sc1{ntm('O')}")
        return o
    def res(tmpv):
        if L:
            return [f"v_accvgpr_read_b32 v{a0 + i}, a{224 + i}" for i in range(16)]
        return [x for d in range(8) for x in (f"v_accvgpr_read_b32 {tmpv}, a{224 + d}", f"v_lshlrev_b32 v{a0 + 2 * d}, 16, {tmpv}", f"v_and_b32 v{a0 + 2 * d + 1}, 0xffff0000, {tmpv}")]
    P.add(I(rd[:PO1]))
    P.add(poll_issue(vPO, vp, 16 * L + 1))
    P.add(I(rd[PO1:PO2]))
    P.add(I(res(x2)))
    P.add(poll_check(vPO, vp, 16 * L + 1))
    P.add(tick(f"{L}.pollo"))
    if opt("OIL", 0):
        P.add(I(spread([I(x) for x in oloads()], rd[PO2:], opt("OI0", 10) / 100, opt("OI1", 100) / 100)))
    else:
        P.add(I(oloads()))
        if L and not CD2E:
            P.add(I(w1_items("CD2")))
        P.add(I(rd[PO2:]))
    r4 = []
    if L == 0:
        d4, r4 = w2_round(4, x0)
        P.add(I(late_rd))
        P.add(I(d4[:8]))
        P(f"v_and_b32 {x1}, 0x13, {vL}")
        P(f"v_bfe_u32 {x2}, {vL}, 2, 1")
        P(f"v_lshl_add_u32 {x1}, {x2}, 3, {x1}")
        P(f"v_bfe_u32 {x2}, {vL}, 3, 1")
        P(f"v_lshl_add_u32 {x1}, {x2}, 2, {x1}")
        P(f"v_lshlrev_b32 {x1}, 1, {x1}")
        P(f"s_lshl_b32 {t1}, {sM}, 8")
        P(f"s_cmp_ge_u32 {sW}, 2")
        P(f"s_cselect_b32 {t1}, {OOB}, {t1}")
        for e in range(4):
            P(f"buffer_load_ushort v{B1V + e}, {x1}, {sB1}, {t1} offen offset:{64 * e}")
        P.need("ds_any")
        P.add(I(d4[8:]))
    P(f"s_xor_b32 {t0}, {sW}, 1")
    P(f"s_lshl_b32 {t0}, {t0}, 12")
    P(f"s_add_u32 {t0}, {t0}, {SCR3}")
    P(f"v_add_u32 {x0 if L else 'v52'}, {t0}, {vL16}")
    vw = x0 if L else "v52"
    P.add(tile_addr(LX(L) + X1_O, LX(L) + ST1_O))
    P.add(barrier())
    P.add(tick(f"{L}.B3b"))
    back = P.label()
    P.put(back)
    def mf(ks, ct):
        a = V(a0 if ct == 0 else a1, 16)
        return f"{MF} {a}, {V(WO + (ks * 2 + ct) * 4)}, {V(OF + 4 * ks)}, {a if (ks or ct == 0) else 0}"
    NT = 4
    g = [[mf(ks, 1), mf(ks, 0)] for ks in range(16 - NT)] + [[mf(ks, 1)] for ks in range(16 - NT, 16)]
    fill = w1_items("AB") + (w1_items("CD1") if L == 0 else [])
    if EF & 1:
        for n, x in chain(vc, OF, 16):
            g[n].append(x)
    P.add(I(spread(g, fill, 0.0, 1.0)))
    if EF & 1:
        P.add(redo(vc, back, oloads() + res(x1)))
    for n, ks in enumerate(range(16 - NT, 16)):
        P(mf(ks, 0))
        if n >= 1:
            for j in ([n - 1] if n < NT - 1 else range(n - 1, 4)):
                P(f"ds_write_b128 {vw}, {V(a1 + 4 * j)} offset:{1024 * j}")
    P(f"v_xor_b32 {vw}, 0x1000, {vw}")
    P.add(tick(f"{L}.p3mm"))
    P.add(barrier())
    for j in range(4):
        P(f"ds_read_b128 {V(OF + 4 * j)}, {vw} offset:{1024 * j}")
    for i in range(8):
        P(f"v_pk_add_f32 {V(a0 + 2 * i, 2)}, {V(a0 + 2 * i, 2)}, {V(OF + 2 * i, 2)}")
    tile_out(a0, OF + 16, OF + 24, 2 << (4 * L), publish(16 * L + 3, x1, early=f"iX{L}") if EF & 2 else [], f"iX{L}")
    rs = [I([f"v_accvgpr_read_b32 {x1}, a{248 + d}", f"v_lshlrev_b32 v{OF}, 16, {x1}", f"v_and_b32 v{OF + 1}, 0xffff0000, {x1}",
             f"v_pk_add_f32 {V(a0 + 2 * d, 2)}, {V(a0 + 2 * d, 2)}, {V(OF, 2)}", f"v_accvgpr_write_b32 a{224 + 2 * d}, v{a0 + 2 * d}",
             f"v_accvgpr_write_b32 a{225 + 2 * d}, v{a0 + 2 * d + 1}"]) for d in range(8)]
    if L == 0 and opt("CSN", 0) >= 4:
        cs = [I([f"s_lshl_b32 {t0}, {sW}, 14", f"v_add_u32 v122, {t0}, {vTP}", f"s_lshl_b32 {t0}, {sW}, 13", f"v_add_u32 {x0}, {t0}, {vTP1}", need_ins("w1AB")])]
        cs += [tr("v", XF + 4 * j, "v122", 2048 * (j >> 1) + 512 * (j & 1)) for j in range(16)]
        cs += [[need_ins("w1CD1")] + tr("v", XF + 64 + 4 * j, x0, 2048 * (j >> 1) + 512 * (j & 1)) for j in range(8)]
        cs += [asel(AS4), table_addr("v123")]
        cs += [I(f"{MF16} {V(STV + 4 * (j & 1))}, {V(AS4)}, {V(XF + 4 * j)}, {V(STV + 4 * (j & 1)) if j >= 2 else 0}") for j in range(16)]
        cs += [I(f"{MF16} {V(CC + 4 * (j & 1))}, {V(AS4)}, {V(XF + 64 + 4 * j)}, {V(CC + 4 * (j & 1)) if j >= 2 else 0}") for j in range(8)]
        cs += table_write(STV, 3, "v123", f"v{B1V}") + table_write(STV + 4, 4, "v123", f"v{B1V + 1}")
        NP = opt("NP", 8)
        P.add(I(spread(r4 + cs[:NP], rs)))
        r4 = cs[NP:]
    else:
        P.add(I(rs))
    if not EF & 2:
        P.add(publish(16 * L + 3, x1))
    if opt("DS", 0) and PL >> (4 * L) & 2:
        assert L == 1
        P(f"buffer_store_dwordx4 {V(OF + 16)}, {vL16}, {sWS}, {t1} offen sc1")
        P(f"buffer_store_dwordx4 {V(OF + 20)}, {vL16}, {sWS}, {t1} offen offset:1024 sc1")
        P(f"buffer_store_dword v{OF + 24}, {x2}, {sWS}, {t2} offen sc1")
    P.add(tick(f"{L}.p3end"))
    return r4


def gelu(a, c0, c1, ir, tmp, so, tag, bit, pk=False, ini=None):
    res = []
    for g in range(4):
        if pk:
            xs = [V(a + 4 * g + 2 * e, 2) for e in range(2)]
            ts = [V(tmp + 2 * e, 2) for e in range(2)]
            bc = lambda r: f"v[{r[1:]}:{int(r[1:]) + 1}]"
            res += [f"v_pk_mul_f32 {t}, {x}, {x}" for x, t in zip(xs, ts)]
            res += [f"v_pk_fma_f32 {t}, {t}, {bc(c1)}, {bc(c0)} op_sel_hi:[1,0,0]" for t in ts]
            res += [f"v_pk_mul_f32 {t}, {t}, {x}" for x, t in zip(xs, ts)]
            res += [f"v_exp_f32 v{tmp + e}, v{tmp + e}" for e in range(4)]
            res += [f"v_pk_fma_f32 {t}, {t}, {bc(ir)}, {bc(ir)} op_sel_hi:[1,0,0]" for t in ts]
            res += [f"v_rcp_f32 v{tmp + e}, v{tmp + e}" for e in range(4)]
            res += [f"v_pk_mul_f32 {x}, {x}, {t}" for x, t in zip(xs, ts)]
        else:
            blk = []
            for e in range(4):
                x, t = f"v{a + 4 * g + e}", f"v{tmp + e}"
                blk.append([f"v_mul_f32 {t}, {x}, {x}", f"v_fma_f32 {t}, {t}, {c1}, {c0}", f"v_mul_f32 {t}, {t}, {x}",
                            f"v_exp_f32 {t}, {t}", f"v_fma_f32 {t}, {t}, {ir}, {ir}", f"v_rcp_f32 {t}, {t}", f"v_mul_f32 {x}, {x}, {t}"])
            for s in range(7):
                for e in range(4):
                    res.append(blk[e][s])
        for i in (2 * g, 2 * g + 1):
            res.append(f"v_cvt_pk_bf16_f32 v{a + i}, v{a + 2 * i}, v{a + 2 * i + 1}")
        if g & 1:
            s, off = so
            res.append(xstore(f"buffer_store_dwordx4 {V(a + 2 * (g - 1))}, {vL16}, {sWS}, {s} offen offset:{off + 1024 * (g >> 1)}", bit, tag, ini))
    return [I(x) for x in res]


def phase45(L, r4):
    T = [16, 32, 48, 16]
    C0R, C1R, IRR, RR, GT = "v116", "v118", "v120", "v122", 124
    FB = 16 * L
    vtb = x2
    CSN = opt("CSN", 0) if L == 0 else 0
    CS5 = False
    if L == 0:
        if CSN < 4:
            P.add(I(r4))
        IM = opt("IM", 0)
        if IM:
            lid, ljn = P.label(), P.label()
            P(f"s_cmp_ge_u32 {sM}, 14")
            P(f"s_cbranch_scc1 {lid}")
            o = [lid + ":", f"s_bfe_u32 {u0}, s2, 0x20003", f"s_lshl_b32 {u0}, {u0}, 2", f"s_add_u32 {u0}, {u0}, {sW}", f"s_mul_i32 {u0}, {u0}, {4 * 3072}",
                 f"v_lshrrev_b32 {x0}, 4, {vL}", f"v_mul_u32_u24 {x0}, 3072, {x0}", f"v_and_b32 {x1}, 15, {vL}", f"v_lshl_add_u32 {x0}, {x1}, 7, {x0}",
                 f"s_mov_b32 {t3}, {OOB}", f"s_mov_b32 {t4}, {OOB}", f"v_add_u32 {vtb}, {TAB0 + 3072}, {vL16}"]
            for i in range(8):
                o += [f"s_add_u32 {u1}, {u0}, {64 * 3072 * ((2 * i) % 8 + (i >> 2))}", f"buffer_load_dword {x1}, {x0}, {sWQ}, {u1} offen offset:1024"]
            if IM > 1:
                o += [f"v_lshrrev_b32 {x0}, 3, {vL}", f"v_mul_u32_u24 {x0}, 3072, {x0}", f"v_and_b32 v16, 7, {vL}", f"v_lshl_add_u32 {x0}, v16, 7, {x0}", f"s_lshl_b32 {u0}, {u0}, 1"]
                for i in range(opt("IQ", 4)):
                    o += [f"s_add_u32 {u1}, {u0}, {128 * 3072 * i}", f"buffer_load_dword {x1}, {x0}, {sWQ}, {u1} offen"]
            if opt("CT", 0) & 2:
                lx = P.label()
                o += [f"s_lshl_b32 {u0}, {sW}, 12", f"v_and_b32 v16, 31, {vL}", f"v_lshl_add_u32 v16, v16, 7, {u0}", "v_min_u32 v16, L_p3_1-L_p1_1, v16",
                      "s_getpc_b64 s[96:97]", lx + ":", f"s_sub_u32 s96, s96, {lx}-L_p1_1", "s_subb_u32 s97, s97, 0", f"global_load_dword {x1}, v16, s[96:97]"]
            if CSN == 5:
                o += [f"s_lshl_b32 {u0}, {sW}, 13", f"v_add_u32 {x0}, {u0}, {vTP1}"] + table_addr("v123")
            if IM < 3:
                o += ["s_waitcnt vmcnt(0) lgkmcnt(0)", "s_barrier"] + tick("0.idle") + [f"s_branch {ljn}"]
                OUTL.extend(I(o))
            idl = o
        vtw = "v123"
        if CSN < 4:
            P.add(asel(AS4))
            P(f"s_lshl_b32 {t0}, {sW}, 14")
            P(f"v_add_u32 {'v122' if CSN else x1}, {t0}, {vTP}")
            P(f"s_lshl_b32 {t0}, {sW}, 13")
            P(f"v_add_u32 {x0}, {t0}, {vTP1}")
        if CSN >= 4:
            P.add(I(r4))
            P.add(barrier())
            if CSN == 5:
                T[2] = STV
            CS5, CSN = CSN == 5, 0
        elif CSN:
            P.add(table_addr(vtw))
            P.add(barrier("w1AB"))
            if CSN == 1:
                P.add(I(w1_items("CD2")))
        else:
            P.add(table_addr(x2))
            P.need("w1AB")
            for j in range(16):
                P.add(tr("v", XF + 4 * j, x1, 2048 * (j >> 1) + 512 * (j & 1)))
            P.need("w1CD1")
            for j in range(8):
                P.add(tr("v", XF + 64 + 4 * j, x0, 2048 * (j >> 1) + 512 * (j & 1)))
            for j in range(16):
                c = V(16 + 4 * (j & 1))
                P(f"{MF16} {c}, {V(AS4)}, {V(XF + 4 * j)}, {c if j >= 2 else 0}")
            for j in range(8):
                c = V(CC + 4 * (j & 1))
                P(f"{MF16} {c}, {V(AS4)}, {V(XF + 64 + 4 * j)}, {c if j >= 2 else 0}")
            P.add(I(table_write(16, 3, x2, f"v{B1V}") + table_write(20, 4, x2, f"v{B1V + 1}")))
            P.add(barrier())
            P(f"v_mov_b32 {vtw}, {x2}")
    else:
        P.add(barrier("w1AB", "w1CD1", *([] if P3N else ["w1CD2"])))
    P(f"v_add_u32 {vtb}, {TAB0 + 3072}, {vL16}")
    D = 3
    def rdA(t):
        if t < 32:
            return trp(RING + 8 * (t % 4), 2048 * t) + trp(RING + 8 * (t % 4) + 4, 2048 * t + 512)
        if t == 32:
            return I([f"ds_read_b128 {V(RING + 8 * (t % 4) + 4 * e)}, {vtb} offset:{1024 * e}" for e in range(2)])
        return []
    N3 = opt("N3", 0) >> L & 1
    D3 = opt("D3", 7)
    def rdF(f):
        t, e = divmod(f, 3)
        n = RING + 4 * (f % 8)
        if t < 32:
            return trp(n, 2048 * t + 512 * e) if e < 2 else trp(n, R2 + 2048 * t)
        if t == 32:
            return I(f"ds_read_b128 {V(n)}, {vtb} offset:{1024 * e}")
        return []
    back, vc = P.label(), (f"v{GT}" if EF & 2 else None)
    P.put(back)
    for t in range(D3 if N3 else D):
        P.add(rdF(t) if N3 else rdA(t))
    P(f"s_lshl_b32 {t3}, {sT}, 17")
    P(f"s_lshl_b32 {t4}, {sM}, 13")
    P(f"s_add_u32 {t3}, {t3}, {t4}")
    P(f"s_add_u32 {t3}, {t3}, {LX(L) + H_O}")
    P.add(I(idle(t3)))
    P(f"s_add_u32 {t4}, {t3}, 4096")
    xs, xi = x_loads(LX(L) + X1_O, LX(L) + ST1_O, STV)
    NB = opt("NB", 14)
    P.add(xs)
    P.add(I(idle(t1, t2)))
    P.add(tick(f"{L}.B4b"))
    P.add(poll(vPX, x1, FB + 3))
    P.add(tick(f"{L}.pollx1"))
    if CSN:
        assert NB <= 16
        csr = [tr("v", XF + 64 + 4 * j, "v122", 2048 * (j >> 1) + 512 * (j & 1)) for j in range(16)]
        P.add(I(spread(xi[:NB], csr)))
        if CSN == 2:
            P.add(I(w1_items("CD2")))
        for j in range(16):
            c = V(STV + 4 * (j & 1))
            P(f"{MF16} {c}, {V(AS4)}, {V(XF + 64 + 4 * j)}, {c if j >= 2 else 0}")
        tw = table_write(STV, 3, vtw, f"v{B1V}") + table_write(STV + 4, 4, vtw, f"v{B1V + 1}", "tw1")
    else:
        P.add(I(xi[:NB]))
    xi = xi[NB:] + (w1_items("CD2") if (L == 0 and CSN in (0, 3)) or (L and P3N and opt("CD2P", 1) == 1) else [])
    if L == 0 and opt("TKV", 0):
        xi += touch_qkv("v117", "v119")
    if L == 0 and opt("H3B", 0):
        xi += [help3("v117", "v119", u0)]
    xi += sp_touch(2, x1, x1)
    gA = []
    for k in range(33):
        xb = V(XF + 4 * k) if k < 32 else V(EX)
        if N3:
            gA.append(sum((rdF(3 * k + e + D3) + I(f"{MF} {V(T[e], 16)}, {V(RING + 4 * ((3 * k + e) % 8))}, {xb}, {V(T[e], 16) if k else 0}") for e in range(3)), []))
            continue
        gA.append(rdA(k + D) + I([f"{MF} {V(T[e], 16)}, {V(RING + 8 * (k % 4) + 4 * e)}, {xb}, {V(T[e], 16) if k else 0}" for e in range(2)]))
    s = [f"v{STV + i}" for i in range(4)]
    C0 = -2.0 * LOG2E * 0.7978845608028654
    fill = stats_sum(STV, vc) + stats_finish(s[0], s[1], s[2], s[3], EX, True, RR, IRR)
    fill += [I(x) for x in [f"v_mul_f32 {C0R}, {fc(C0)}, {RR}", f"v_mul_f32 {C1R}, {RR}, {RR}", f"v_mul_f32 {C1R}, {C1R}, {C0R}",
                            f"v_mul_f32 {C1R}, {fc(0.044715)}, {C1R}"]]
    for k in range(0, 32, 4):
        gA[k] = gA[k] + tick(f"{L}.zA{k}")
    if CSN:
        gA[0] = I(tw[:7]) + gA[0] + I(tw[7:])
        CR = [112, 116, 124]
        ncd = 8 if CSN == 3 else 16
        def crd(j): return I([need_ins("w1CD1" if j < 8 else "w1CD2")] + tr("v", CR[j % 3], x0, 32768 * (j >> 3) + 2048 * ((j >> 1) & 3) + 512 * (j & 1))) if j < ncd else []
        for j in range(ncd + 2):
            c = V(CC + 4 * (j & 1))
            gA[j] = gA[j] + ((I(f"{MF16} {c}, {V(AS4)}, {V(CR[(j - 2) % 3])}, {c if j >= 4 else 0}") if j >= 2 else []) + crd(j))
        if CSN != 3:
            tw = table_write(CC, 5, vtw, f"v{B1V + 2}") + table_write(CD_, 6, vtw, f"v{B1V + 3}", "tw2")
            for j in range(7):
                gA[ncd + 3 + j] += I(tw[2 * j:2 * j + 2])
        gA[opt("BAP", 20)] += I([need_ins("tw1", "w1CD1", *([] if CSN == 3 else ["w1CD2"])), "s_barrier"])
    attach(gA, xi)
    if opt("WB", 0) >> L & 1:
        lsk = P.label()
        gA[opt("WBP", 24)] += I([f"s_lshl_b32 {u0}, {sM}, 2", f"s_or_b32 {u0}, {u0}, {sW}"] + ([f"s_lshl_b32 {u0}, {u0}, 1", f"s_and_b32 {u1}, {sC}, 1", f"s_or_b32 {u0}, {u0}, {u1}"] if opt("WB1", 1) else []) +
                                [f"s_cmp_lg_u32 {u0}, {120 if opt('WB1', 1) else 60}", f"s_cbranch_scc1 {lsk}", "buffer_wbl2 sc1", lsk + ":"])
    if vc:
        for n, x in chain(vc, XF, 32):
            gA[n] += I(x)
    P.add(weave(gA, [(opt("XSP", 16) + 2, x) for x in fill] + [(len(xi), x) for x in inits("Bb"[L], STV + 8)]))
    if vc:
        P.add(redo(vc, back))
    P.add(tick(f"{L}.pA"))
    if (opt("N45", 0) >> L & 1) or N3:
        return tail45(L, vtb, vtw if L == 0 else None, N3)
    D1 = 6
    def rd1(e, t):
        if t < 32:
            return trp(RING + 4 * (t % 8), R2 + 2048 * t + 512 * e)
        if t == 32:
            return I(f"ds_read_b128 {V(RING + 4 * (t % 8))}, {vtb} offset:{2048 + 1024 * e}")
        if e == 0 and t - 34 >= 0:
            pass
        return []
    def g1(e, off):
        def rd(t):
            n = RING + 4 * ((t + off) % 8)
            if t < 32:
                return trp(n, R2 + 2048 * t + 512 * e)
            if t == 32:
                return I(f"ds_read_b128 {V(n)}, {vtb} offset:{2048 + 1024 * e}")
            if e == 0:
                return trp(n, R2 + 2048 * (t - 33) + 512)
            return []
        a = V(T[2 + e], 16)
        out = []
        for k in range(33):
            xb = V(XF + 4 * k) if k < 32 else V(EX)
            it = rd(k + D1)
            if k % 2 == 0 and k + 1 < 33:
                it = it + [need_ins(("v", RING + 4 * ((k + 1 + off) % 8) + 3))]
            out.append(it + I(f"{MF} {a}, {V(RING + 4 * ((k + off) % 8))}, {xb}, {a if k else 0}"))
        return out, [rd(t) for t in range(D1)]
    gB, preB = g1(0, 0)
    gC, _ = g1(1, 33)
    PUBD = opt("PUBD", 14)
    GHI = opt("GHI", 90) / 100
    def G(i, pk=False):
        o = gelu(T[i], C0R, C1R, IRR, GT, (t3 if i < 2 else t4, 2048 * (i & 1)), f"h{i}", 4 << (4 * L), pk, f"iH{L}{i}")
        if EF & 4:
            o.insert(len(o) - opt("HE", 0), tick(f"{L}.zpb{i}") + publish(FB + 4 + i, x1, f"h{i}", f"iH{L}{i}"))
        return o
    def at(groups, n, item):
        groups[n] = groups[n] + I(item)
    if L == 0:
        cs = [I([need_ins("w1CD2")] + tr("v", STV + 4 * (j & 3), x0, 32768 + 2048 * (j >> 1) + 512 * (j & 1))) for j in range(4)]
        for j in range(8):
            c = V(CC + 4 * (j & 1))
            cs.append(I(f"{MF16} {c}, {V(AS4)}, {V(STV + 4 * (j & 3))}, {c}"))
            if j + 4 < 8:
                cs.append(tr("v", STV + 4 * (j & 3), x0, 32768 + 2048 * ((j + 4) >> 1) + 512 * (j & 1)))
        cs += [[]] + table_write(CC, 5, vtw, f"v{B1V + 2}") + table_write(CD_, 6, vtw, f"v{B1V + 3}")
        if CS5:
            P.add(I(spread(G(0, True), preB, 0.5, 0.95)))
            C2 = opt("C2P", 5)
            LA = opt("C2L", 4)
            for j in range(8):
                at(gB, C2 + j, [need_ins("w1CD2")] + tr("v", 16 + 4 * (j & 3), x0, 32768 + 2048 * (j >> 1) + 512 * (j & 1)))
            for j in range(8):
                c = V(CC + 4 * (j & 1))
                gB[C2 + j + LA] = I(f"{MF16} {c}, {V(AS4)}, {V(16 + 4 * (j & 3))}, {c}") + gB[C2 + j + LA]
            gB[C2 + 1] = I("s_barrier") + gB[C2 + 1]
            tw = table_write(CC, 5, vtw, f"v{B1V + 2}") + table_write(CD_, 6, vtw, f"v{B1V + 3}", "tw2")
            for j in range(5):
                at(gB, C2 + 8 + LA + j, tw[3 * j:3 * j + 3])
            assert C2 + 1 <= 10 and C2 + 8 + LA + 4 < 25 and LA <= 4 and opt("KV0", 0) > C2
            at(gB, 25, [need_ins("tw2"), "s_barrier"])
        elif CSN in (1, 2):
            P.add(I(spread(G(0, True), preB, 0.5, 0.95)))
            P.add(I([need_ins("tw2"), "s_barrier"]))
        else:
            P.add(I(spread(G(0), cs + preB, 0.1, 0.95)))
            P.add(barrier())
        if 0 < IM < 3:
            P.put(ljn)
        kv = wkv_items()
        if not opt("KV0", 0):
            for j in range(8):
                at(gB, 1 + j, kv[j]); at(gC, 1 + j, kv[8 + j])
    else:
        P.add(I(spread(G(0, True), preB, 0.5, 0.95)))
        if P3N:
            at(gB, opt("B5P", 4), [need_ins("w1CD2"), "s_barrier"])
    P.add(tick(f"{L}.G0"))
    ACC = [A(224, 16), V(32, 16), V(48, 16), V(240, 16)]
    def hf(s, i, tt): return XF + 4 * (14 * (s & 1) + 2 * i + tt)
    def hloads(s):
        out = []
        for i in range(7):
            for tt in range(2):
                out.append(I([f"s_add_u32 {u0}, {t5 if tt == 0 else d3}, {(8 * i + 2 * s) * 1024}",
                              f"buffer_load_dwordx4 {V(hf(s, i, tt))}, {vL16}, {sWS}, {u0} offen sc1{ntm('H')}"]))
        return out
    def mf(s, i, n):
        tt, ct = n >> 1, n & 1
        a = ACC[n]
        return f"{MF} {a}, {A(((7 * s + i) * 2 + ct) * 4)}, {V(hf(s, i, tt))}, {a if (s or i or n == 0) else 0}"
    def hchk(s, i):
        if not EF & 4:
            return []
        ls, lr = P.label(), P.label()
        c = [f"v_cmp_u_f32 vcc, v{hf(s, i, 0)}, v{hf(s, i, 1)}", f"s_cbranch_vccnz {ls}"]
        OUTL.extend(I([ls + ":", f"s_cmp_eq_u32 {sRT}, 0", f"s_cbranch_scc1 {lr}", f"s_sub_u32 {sRT}, {sRT}, 1"] + hloads(s)[2 * i:2 * i + 2] + c + [f"s_branch {lr}"]))
        return I(c + [lr + ":"])
    def gS(s, ni=7): return [(hchk(s, i) if n == 0 else []) + I(mf(s, i, n)) for i in range(ni) for n in range(4)]
    hb = I([f"s_lshr_b32 {u0}, {sW}, 1", f"s_mul_i32 {u0}, {u0}, {56 * 1024}", f"s_and_b32 {u1}, {sW}, 1", f"s_lshl_b32 {u1}, {u1}, 10",
            f"s_add_u32 {u0}, {u0}, {u1}", f"s_add_u32 {u0}, {u0}, {LX(L) + H_O}", f"s_lshl_b32 {t5}, {sTP}, 17", f"s_xor_b32 {d3}, {t5}, 0x20000",
            f"s_add_u32 {t5}, {t5}, {u0}", f"s_add_u32 {d3}, {d3}, {u0}"])
    for n, x in enumerate(hb):
        at(gB, 16 + n, x)
    DEF = opt("DEF", 0)
    NT = opt("NT5", 2)
    if DEF == 1:
        assert not EF & 4
        st = gB + gC + gS(0) + gS(1) + [I(mf(2, i, n)) for i in range(7) for n in (1, 2, 3)] + [I(mf(3, i, n)) for i in range(7 - NT) for n in (1, 2, 3)]
    else:
        st = gB + gC + gS(0) + gS(1) + gS(2)
    CK = [opt(f"CK{i}", ((41, 66, 96, 124), (33, 48, 80, 110))[EF >> 2 & 1][i]) for i in range(4)]
    PB = [opt("PB0", 14), opt("PB1", 47), opt("PB2", 78), opt("PB3", 108)]
    PD = opt("PD", 12)
    for s in range(4):
        if not EF & 4:
            at(st, PB[s], tick(f"{L}.zpb{s}") + publish(FB + 4 + s, x1, f"h{s}") + tick(f"{L}.zPB{s}"))
        at(st, CK[s] - PD, poll_issue(vPH, x0, FB + 4 + s))
        at(st, CK[s], tick(f"{L}.zck{s}") + poll_check(vPH, x0, FB + 4 + s) + tick(f"{L}.zCK{s}"))
        n = CK[s] + 1
        hl = list(enumerate(hloads(s)))
        if DEF == 2 and s == 3:
            hl = hl[1::2] + hl[0::2]
        for j, (q, x) in enumerate(hl):
            lo = {0: 33 + j, 1: 33 + 14 + j}.get(s, 66 + 28 * (s - 2) + 4 * (q >> 1) + 3)
            n = max(n, lo)
            at(st, n, x)
            assert DEF != 1 or s < 2 or n < 122 + 21 * (s - 2) + 3 * (j >> 1)
            n += 1 if j < opt(f"HBU{s}", opt("HBU", 6)) else opt("HST", 2)
        assert n <= len(st) + 1
    at(st, opt("B6", 110), barrier() + tick(f"{L}.zB6"))
    if L == 0 and opt("KV0", 0):
        for j in range(16):
            at(st, opt("KV0", 0) + j * opt("KVS", 10) // 10, kv[j])
    if L == 0 and opt("WQE", 0):
        assert opt("WQE", 0) > opt("B6", 110)
        for j, x in enumerate(wq_items([2])):
            at(st, opt("WQE", 0) + j * opt("WQS", 1), (I(f"s_sub_u32 {d1}, {d1}, 1024") if j == 0 else []) + x)
    P.add(I(spread(st[:33], G(1, opt("GPK", 0) & 1), 0.03, GHI)))
    P.add(tick(f"{L}.pB"))
    P.add(I(spread(st[33:66], G(2, opt("GPK", 0) & 2), 0.03, GHI)))
    P.add(tick(f"{L}.pC"))
    if L == 0 and IM == 3:
        assert CK[1] >= 66 and CK[1] - PD < 66 and opt("KV0", 0) + 15 * opt("KVS", 10) // 10 < 66
        kvi = wkv_items()
        hb2 = I([x.text for x in hb])
        idl += ["s_waitcnt lgkmcnt(0)", "s_barrier"] + hb2 + poll(vPH, x0, FB + 4) + tick("0.idle") + hloads(0) + poll_issue(vPH, x0, FB + 5) + kvi + [f"s_branch {ljn}"]
        OUTL.extend(I(idl))
        P.put(ljn)
    P.add(weave(st[66:94], [(1, x) for x in G(3, opt("GPK", 0) & 4)], slack=0))
    P.add(tick(f"{L}.S0"))
    P.add(I(st[94:122]))
    P.add(tick(f"{L}.S1"))
    x, tmp = 64, 80
    wa = ["v16", "v17", "v18", "v19"]
    pre = []
    for i in range(4):
        pre.append(I([f"s_xor_b32 {u0}, {sW}, {i}", f"s_mul_i32 {u0}, {u0}, 12288", f"s_add_u32 {u0}, {u0}, {SL + 4096 * max(0, i - 1)}",
                      f"v_add_u32 {wa[i]}, {u0}, {vL16}"]))
    if L == 0:
        pre.append(tile_addr(LX(1) + XIN_O, LX(1) + ST2_O))
    else:
        pre.append(I([f"v_and_b32 {x2}, 31, {vL}", f"v_lshrrev_b32 {x1}, 5, {vL}", f"v_lshlrev_b32 {x2}, 10, {x2}", f"v_lshl_add_u32 {x2}, {x1}, 4, {x2}",
                      f"s_lshl_b32 {t1}, {sTP}, 15", f"s_lshl_b32 {t2}, {sCT}, 6", f"s_add_u32 {t1}, {t1}, {t2}"]))
    base = [0, 32, 48, 240]
    if DEF == 2:
        for n, it in enumerate(pre):
            at(st, 140 + n, it)
        P.add(I(st[122:150]))
        P.add(tick(f"{L}.S2"))
        def wr(n): return [I(f"ds_write_b128 {wa[n]}, {V(base[n] + 4 * j)} offset:{1024 * j}") for j in range(4)]
        def rd(p): return [I(f"ds_read_b128 {V(tmp + 16 * p + 4 * j)}, {wa[0]} offset:{4096 * p + 1024 * j}") for j in range(4)]
        def ad(d, a, b): return [I(f"v_pk_add_f32 {V(d + 2 * i, 2)}, {V(a + 2 * i, 2)}, {V(b + 2 * i, 2)}") for i in range(8)]
        g = [I(mf(3, i, n)) for i in range(7) for n in (3, 2)]
        for j in range(4):
            g[1 + j] += I([f"v_accvgpr_read_b32 v{x + i}, a{224 + i}" for i in range(4 * j, 4 * j + 4)])
        P.add(I(g))
        g = [I(mf(3, i, 1) if n else f"{MF} {V(x, 16)}, {A((21 + i) * 8)}, {V(hf(3, i, 0))}, {V(x, 16)}") for i in range(7) for n in (1, 0)]
        W0, BA = opt("W0", 0), opt("BA", 6)
        attach(g, wr(3) + wr(2), W0, opt("WP", 4))
        g[BA] += barrier() + I(rd(1) + rd(2))
        attach(g, ad(tmp + 16, tmp + 16, tmp + 32), opt("AP", 10), 4)
        P.add(I(g + wr(1) + ad(x, x, tmp + 16)))
        P.add(tick(f"{L}.S3"))
        P.add(barrier(*(["wkv"] if L == 0 else [])))
        P.add(I(rd(0) + ad(x, x, tmp)))
    elif DEF:
        for n, it in enumerate(pre + [I([f"v_accvgpr_read_b32 v{x + i}, a{224 + i}" for i in range(j, j + 4)]) for j in range(0, 16, 4)]):
            at(st, 143 + n, it)
        P.add(I(st[122:143]))
        P.add(tick(f"{L}.S2"))
        own = [I(f"{MF} {V(x, 16)}, {A((7 * s + i) * 8)}, {V(hf(s, i, 0))}, {V(x, 16)}") for s in (2, 3) for i in range(7)]
        g, wr = st[143:], []
        for n in (3, 2, 1, 0):
            for e, i in enumerate(range(7 - NT, 7)):
                g.append(I(mf(3, i, n)) if n else own.pop(0))
                if e >= 1 or NT == 1:
                    k = (len(wr) + (NT - e) - 1) // (NT - e)
                    g.append(I(wr[:k])); wr = wr[k:]
            if n:
                wr = [f"ds_write_b128 {wa[n]}, {V(base[n] + 4 * j)} offset:{1024 * j}" for j in range(4)]
        K1 = opt("K1", 3)
        P.add(I(g + own[:K1]))
        own = own[K1:]
        P.add(tick(f"{L}.S3"))
        P.add(barrier(*(["wkv"] if L == 0 else [])))
        order = [j + 4 * p for j in range(4) for p in range(3)]
        rd = [I(f"ds_read_b128 {V(tmp + 4 * j)}, {wa[0]} offset:{1024 * j}") for j in order]
        ad = [I([f"v_pk_add_f32 {V(tmp + 2 * i, 2)}, {V(tmp + 2 * i, 2)}, {V(tmp + 16 * p + 2 * i, 2)}" for p in (1, 2) for i in (2 * j, 2 * j + 1)]) for j in range(4)]
        RP = opt("RP", 4)
        for n in range(0, 12, RP):
            P.add(I(rd[n:n + RP]))
            P.add(own.pop(0))
        assert len(own) >= 4
        while len(own) > 4:
            P.add(own.pop(0))
        for j in range(4):
            P.add(own.pop(0))
            P.add(ad[j])
        for i in range(8):
            P(f"v_pk_add_f32 {V(x + 2 * i, 2)}, {V(x + 2 * i, 2)}, {V(tmp + 2 * i, 2)}")
    else:
        P.add(I(st[122:150]))
        P.add(tick(f"{L}.S2"))
        NT = opt("NT5", 2)
        wa = ["v16", "v17", "v18", "v19"]
        pre = []
        for i in range(4):
            pre.append(I([f"s_xor_b32 {u0}, {sW}, {i}", f"s_mul_i32 {u0}, {u0}, 12288", f"s_add_u32 {u0}, {u0}, {SL + 4096 * max(0, i - 1)}",
                          f"v_add_u32 {wa[i]}, {u0}, {vL16}"]))
        if L == 0:
            pre.append(tile_addr(LX(1) + XIN_O, LX(1) + ST2_O))
        else:
            pre.append(I([f"v_and_b32 {x2}, 31, {vL}", f"v_lshrrev_b32 {x1}, 5, {vL}", f"v_lshlrev_b32 {x2}, 10, {x2}", f"v_lshl_add_u32 {x2}, {x1}, 4, {x2}",
                          f"s_lshl_b32 {t1}, {sTP}, 15", f"s_lshl_b32 {t2}, {sCT}, 6", f"s_add_u32 {t1}, {t1}, {t2}"]))
        P.add(I(pre))
        g = gS(3, 7 - NT)
        if L == 0:
            attach(g, inits("C", RING), 1, 1)
            if opt("WQ3", 0):
                wq = wq_items([2])
                wq[0] = I(f"s_sub_u32 {d1}, {d1}, 1024") + wq[0]
                attach(g, wq, opt("WQ3", 0) - 1, 1)
        base = [0, 32, 48, 240]
        wr = []
        for n in (3, 2, 1, 0):
            for e, i in enumerate(range(7 - NT, 7)):
                g.append((hchk(3, i) if n == 3 else []) + I(mf(3, i, n)))
                if e >= 1 or NT == 1:
                    k = (len(wr) + (NT - e) - 1) // (NT - e)
                    g.append(I(wr[:k])); wr = wr[k:]
            if n:
                wr = [f"ds_write_b128 {wa[n]}, {V(base[n] + 4 * j)} offset:{1024 * j}" for j in range(4)]
        P.add(I(g))
        x, tmp = 64, 80
        for i in range(16):
            P(f"v_accvgpr_read_b32 v{x + i}, a{224 + i}")
        P.add(tick(f"{L}.S3"))
        P.add(barrier(*(["wkv"] if L == 0 else [])))
        for j in range(12):
            P(f"ds_read_b128 {V(tmp + 4 * j)}, {wa[0]} offset:{1024 * j}")
        for p in range(3):
            for i in range(8):
                P(f"v_pk_add_f32 {V(x + 2 * i, 2)}, {V(x + 2 * i, 2)}, {V(tmp + 16 * p + 2 * i, 2)}")
    if L == 0:
        tile_out(x, 16, 24, 8, publish(8, x1, early="iY0") if EF & 8 else [], "iY0")
        for i in range(16):
            P(f"v_accvgpr_write_b32 a{224 + i}, v{x + i}")
        if not EF & 8:
            P.add(publish(8, x1))
        P.add(tick("0.p5end"))
    else:
        for i in range(8):
            P(f"v_cvt_pk_bf16_f32 v{16 + i}, v{x + 2 * i}, v{x + 2 * i + 1}")
        P(f"buffer_store_dwordx4 {V(16)}, {x2}, {sOUT}, {t1} offen {OM}")
        P(f"buffer_store_dwordx4 {V(20)}, {x2}, {sOUT}, {t1} offen offset:32 {OM}")
        if PROF:
            P.need("stores")
            P.add(tick("1.final"))
            P.add(prof_dump())


def tail45(L, vtb, vtw, N3=0):
    o = lambda n, d: opt(f"{n}_{L}", opt(n, d))
    G0X, G2X, G3X = (1 if L == 0 else o("G0X", 1)), o("G2X", 1), o("G3X", N3)
    T = [16, 32, 48, 16 if G0X else STV]
    C0R, C1R, IRR, RR, GT = "v116", "v118", "v120", "v122", 124
    FB, D = 16 * L, 3
    def rd(t):
        n = RING + 8 * (t % 4)
        if t < 32:
            return trp(n, R2 + 2048 * t) + trp(n + 4, R2 + 2048 * t + 512)
        if t == 32:
            return I([f"ds_read_b128 {V(n + 4 * e)}, {vtb} offset:{2048 + 1024 * e}" for e in range(2)])
        return []
    gBC = []
    for k in range(33):
        xb = V(XF + 4 * k) if k < 32 else V(EX)
        r = rd(k + D)
        for e in range(2):
            gBC.append(I(f"{MF} {V(T[2 + e], 16)}, {V(RING + 8 * (k % 4) + 4 * e)}, {xb}, {V(T[2 + e], 16) if k else 0}") + r[len(r) // 2 * e:len(r) // 2 * (e + 1)])
    pre = [rd(t) for t in range(D)]
    if N3:
        D = 6
        def rd(t):
            n = RING + 4 * (t % 8)
            if t < 32:
                return trp(n, R2 + 2048 * t + 512)
            return I(f"ds_read_b128 {V(n)}, {vtb} offset:3072") if t == 32 else []
        gBC = []
        for k in range(33):
            xb = V(XF + 4 * k) if k < 32 else V(EX)
            it = rd(k + D)
            if k % 2 == 0 and k + 1 < 33:
                it = it + [need_ins(("v", RING + 4 * ((k + 1) % 8) + 3))]
            gBC.append(it + I(f"{MF} {V(T[3], 16)}, {V(RING + 4 * (k % 8))}, {xb}, {V(T[3], 16) if k else 0}"))
        pre = [rd(t) for t in range(D)]
    NB_ = len(gBC)
    def G(i, pk=False):
        return gelu(T[i], C0R, C1R, IRR, GT, (t3 if i < 2 else t4, 2048 * (i & 1)), f"h{i}", 4 << (4 * L), pk)
    def at(groups, n, item):
        groups[n] = groups[n] + I(item)
    kv = []
    if L == 0:
        cs = [I([need_ins("w1CD2")] + tr("v", STV + 4 * (j & 3), x0, 32768 + 2048 * (j >> 1) + 512 * (j & 1))) for j in range(4)]
        for j in range(8):
            c = V(CC + 4 * (j & 1))
            cs.append(I(f"{MF16} {c}, {V(AS4)}, {V(STV + 4 * (j & 3))}, {c}"))
            if j + 4 < 8:
                cs.append(tr("v", STV + 4 * (j & 3), x0, 32768 + 2048 * ((j + 4) >> 1) + 512 * (j & 1)))
        cs += [[]] + table_write(CC, 5, vtw, f"v{B1V + 2}") + table_write(CD_, 6, vtw, f"v{B1V + 3}")
        P.add(I(spread(G(0), cs + pre, 0.1, 0.95)))
        P.add(barrier())
        kv = wkv_items()
    elif G0X:
        P.add(I(spread(G(0, True), pre, 0.5, 0.95)))
    else:
        P.add(I(pre))
    P.add(tick(f"{L}.G0"))
    AB = [0, 32, RING, RING + 16]
    ACC = [A(224, 16)] + [V(b, 16) for b in AB[1:]]
    NR = 32
    def hf(s, i, tt): return XF + 4 * ((14 * s + 2 * i + tt) % NR)
    def hloads(s):
        return [I([f"s_add_u32 {u0}, {t5 if tt == 0 else d3}, {(8 * i + 2 * s) * 1024}",
                   f"buffer_load_dwordx4 {V(hf(s, i, tt))}, {vL16}, {sWS}, {u0} offen sc1"]) for i in range(7) for tt in range(2)]
    def mf(s, i, n):
        tt, ct = n >> 1, n & 1
        a = ACC[n]
        return f"{MF} {a}, {A(((7 * s + i) * 2 + ct) * 4)}, {V(hf(s, i, tt))}, {a if (s or i or n == 0) else 0}"
    def gS(s, ni=7): return [I(mf(s, i, n)) for i in range(ni) for n in range(4)]
    hb = I([f"s_lshr_b32 {u0}, {sW}, 1", f"s_mul_i32 {u0}, {u0}, {56 * 1024}", f"s_and_b32 {u1}, {sW}, 1", f"s_lshl_b32 {u1}, {u1}, 10",
            f"s_add_u32 {u0}, {u0}, {u1}", f"s_add_u32 {u0}, {u0}, {LX(L) + H_O}", f"s_lshl_b32 {t5}, {sTP}, 17", f"s_xor_b32 {d3}, {t5}, 0x20000",
            f"s_add_u32 {t5}, {t5}, {u0}", f"s_add_u32 {d3}, {d3}, {u0}"])
    for n in range(0, 10, 2):
        at(gBC, 1 + n, hb[n:n + 2])
    gx = []
    for i, x in ((2, G2X), (3, G3X)):
        if x:
            g = G(i, True)
            gx += [I(g[len(g) * n // 10:len(g) * (n + 1) // 10]) for n in range(10)]
    NT = opt("NT5", 2)
    S0 = NB_ + len(gx)
    st = gBC + gx + gS(0) + gS(1) + gS(2) + gS(3, 7 - NT)
    def pos(p): return p if p < 100 else (NB_ + p - 100 if p < 200 else S0 + p - 200)
    PB = [pos(o(f"PB{i}", ((18, 58, 216, 246), (14, 109, 200, 218))[N3][i])) for i in range(4)]
    PI = [pos(o(f"PI{i}", ((30, 103, 228, 256), (27, 115, 212, 232))[N3][i])) for i in range(4)]
    CK = [pos(o(f"CK{i}", ((42, 202, 240, 268), (32, 119, 220, 240))[N3][i])) for i in range(4)]
    for s in range(4):
        at(st, PB[s], tick(f"{L}.zpb{s}") + publish(FB + 4 + s, x1, f"h{s}") + tick(f"{L}.zPB{s}"))
        at(st, PI[s], poll_issue(vPH, x0, FB + 4 + s))
        at(st, CK[s], tick(f"{L}.zck{s}") + poll_check(vPH, x0, FB + 4 + s) + tick(f"{L}.zCK{s}"))
        n = CK[s]
        HS = o(f"HS{s}", ((14, 10, 15, 10), (7, 10, 10, 10))[N3][s])
        for j, x in enumerate(hloads(s)):
            q = 14 * s + j
            lo = (q if N3 else 2 * q + 1) if q < NR else S0 + 4 * ((q - NR) >> 1) + 3
            n = max(n, lo)
            assert n < S0 + 4 * (q >> 1), (s, j, n)
            at(st, n, x)
            n = max(n, CK[s] + (j + 1) * HS // 10)
    at(st, pos(o("B6", 210)), barrier() + tick(f"{L}.zB6"))
    for j, x in enumerate(kv):
        at(st, pos(o("KV0", 1)) + j * o("KVS", 20) // 10, x)
    if L == 0 and opt("WQ3", 0):
        wq = wq_items([2])
        wq[0] = I(f"s_sub_u32 {d1}, {d1}, 1024") + wq[0]
        for j, x in enumerate(wq):
            at(st, pos(opt("WQ3", 0)) + j * opt("WQS", 20) // 10, x)
    wa = [f"v{EX + i}" for i in range(4)]
    for i in range(4):
        at(st, S0 + 60 + i, [f"s_xor_b32 {u0}, {sW}, {i}", f"s_mul_i32 {u0}, {u0}, 12288", f"s_add_u32 {u0}, {u0}, {SL + 4096 * max(0, i - 1)}",
                             f"v_add_u32 {wa[i]}, {u0}, {vL16}"])
    if L == 0:
        at(st, S0 + 64, tile_addr(LX(1) + XIN_O, LX(1) + ST2_O))
    else:
        at(st, S0 + 64, [f"v_and_b32 {x2}, 31, {vL}", f"v_lshrrev_b32 v{GT}, 5, {vL}", f"v_lshlrev_b32 {x2}, 10, {x2}", f"v_lshl_add_u32 {x2}, v{GT}, 4, {x2}",
                         f"s_lshl_b32 {t1}, {sTP}, 15", f"s_lshl_b32 {t2}, {sCT}, 6", f"s_add_u32 {t1}, {t1}, {t2}"])
    P.add(I(spread(st[:NB_], ([] if G0X else G(0)) + G(1), 0.02, o("GHI", 90 if N3 else 62 if G0X else 97) / 100)))
    P.add(tick(f"{L}.pC"))
    P.add(I(st[NB_:S0]))
    P.add(tick(f"{L}.GX"))
    wv = ([] if G2X else G(2)) + ([] if G3X else G(3))
    P.add(I(spread(st[S0:S0 + 28], wv, 0.02, o("GH2", 95) / 100)))
    P.add(tick(f"{L}.S0"))
    P.add(I(st[S0 + 28:S0 + 56]))
    P.add(tick(f"{L}.S1"))
    P.add(I(st[S0 + 56:S0 + 84]))
    P.add(tick(f"{L}.S2"))
    g = st[S0 + 84:]
    wr = []
    for n in (3, 2, 1, 0):
        for e, i in enumerate(range(7 - NT, 7)):
            g.append(I(mf(3, i, n)))
            if e >= 1 or NT == 1:
                k = (len(wr) + (NT - e) - 1) // (NT - e)
                g.append(I(wr[:k])); wr = wr[k:]
        if n:
            wr = [f"ds_write_b128 {wa[n]}, {V(AB[n] + 4 * j)} offset:{1024 * j}" for j in range(4)]
    P.add(I(g))
    x, tmp = 48, XF
    for i in range(16):
        P(f"v_accvgpr_read_b32 v{x + i}, a{224 + i}")
    P.add(tick(f"{L}.S3"))
    P.add(barrier(*(["wkv"] if L == 0 else [])))
    for j in range(12):
        P(f"ds_read_b128 {V(tmp + 4 * j)}, {wa[0]} offset:{1024 * j}")
    for p in range(3):
        for i in range(8):
            P(f"v_pk_add_f32 {V(x + 2 * i, 2)}, {V(x + 2 * i, 2)}, {V(tmp + 16 * p + 2 * i, 2)}")
    if L == 0:
        tile_out(x, 16, 24, 8, [], None)
        for i in range(16):
            P(f"v_accvgpr_write_b32 a{224 + i}, v{x + i}")
        P.add(publish(8, x1))
        P.add(tick("0.p5end"))
    else:
        for i in range(8):
            P(f"v_cvt_pk_bf16_f32 v{16 + i}, v{x + 2 * i}, v{x + 2 * i + 1}")
        P(f"buffer_store_dwordx4 {V(16)}, {x2}, {sOUT}, {t1} offen {OM}")
        P(f"buffer_store_dwordx4 {V(20)}, {x2}, {sOUT}, {t1} offen offset:32 {OM}")
        if PROF:
            P.need("stores")
            P.add(tick("1.final"))
            P.add(prof_dump())
```

```python
from k2_base import *
from k2_p1 import *

B1V, CC, CD_, AS4 = 48, 52, 56, 60
OM = OPT.get("OM", "").replace("_", " ")


def tile_out(x, pk, tmp, bit, pub, ini):
    XE = opt("XE", 1)
    if XE == 0:
        P.add(pub)
    for i in range(8):
        P(f"v_cvt_pk_bf16_f32 v{pk + i}, v{x + 2 * i}, v{x + 2 * i + 1}")
    sXB = sOUT if opt('RU', 0) == 3 else sWS
    P.add(xstore(f"buffer_store_dwordx4 {V(pk)}, {vL16}, {sXB}, {t1} offen", bit, ini=ini))
    P.add(xstore(f"buffer_store_dwordx4 {V(pk + 4)}, {vL16}, {sXB}, {t1} offen offset:1024", bit))
    if XE == 1:
        P.add(pub)
    a, b = V(tmp, 2), V(tmp + 2, 2)
    P(f"v_pk_add_f32 {a}, {V(x, 2)}, {V(x + 2, 2)}")
    P(f"v_pk_mul_f32 {b}, {V(x, 2)}, {V(x, 2)}")
    for i in range(1, 8):
        if i >= 2:
            P(f"v_pk_add_f32 {a}, {a}, {V(x + 2 * i, 2)}")
        P(f"v_pk_fma_f32 {b}, {V(x + 2 * i, 2)}, {V(x + 2 * i, 2)}, {b}")
    P(f"v_add_f32 v{tmp}, v{tmp}, v{tmp + 1}")
    P(f"v_add_f32 v{tmp + 2}, v{tmp + 2}, v{tmp + 3}")
    P(f"v_permlane32_swap_b32 v{tmp}, v{tmp + 2}")
    P(f"v_add_f32 v{tmp}, v{tmp}, v{tmp + 2}")
    P.add(xstore(f"buffer_store_dword v{tmp}, {x2}, {sWS}, {t2} offen", bit))
    if XE == 2:
        P.add(pub)


def tile_addr(xo, so):
    return I([f"s_lshl_b32 {t2}, {sTP}, 4", f"s_add_u32 {t2}, {t2}, {sCT}", f"s_lshl_b32 {t1}, {t2}, 11", f"s_add_u32 {t1}, {t1}, {xo}",
              f"s_lshl_b32 {t2}, {t2}, 8", f"s_add_u32 {t2}, {t2}, {so}", f"v_lshlrev_b32 {x2}, 2, {vL}"])


def b1_loads():
    return I([f"v_and_b32 {x1}, 0x13, {vL}", f"v_bfe_u32 {x2}, {vL}, 2, 1", f"v_lshl_add_u32 {x1}, {x2}, 3, {x1}", f"v_bfe_u32 {x2}, {vL}, 3, 1",
              f"v_lshl_add_u32 {x1}, {x2}, 2, {x1}", f"v_lshlrev_b32 {x1}, 1, {x1}", f"s_lshl_b32 {t1}, {sM}, 8", f"s_cmp_ge_u32 {sW}, 2", f"s_cselect_b32 {t1}, {OOB}, {t1}"] +
             [f"buffer_load_ushort v{B1V + e}, {x1}, {sB1}, {t1} offen offset:{64 * e}" for e in range(4)])


def phase3n(L, late_rd):
    o = lambda n, d: opt(f"{n}_{L}", opt(n, d))
    a0, OF, WO = 16, 64, 128
    AB = [a0, 192, 208, 224]
    wa = [f"v{32 + i}" for i in range(5)]
    v4k = "v37"
    P.add(I([f"s_lshr_b32 {t3}, {sW}, 1", f"s_xor_b32 {t3}, {t3}, {sRR}", f"s_and_b32 {t3}, {t3}, 1", f"s_and_b32 {t4}, {sW}, 1", f"s_lshl_b32 {t4}, {t4}, 1",
             f"s_add_u32 {t3}, {t3}, {t4}", f"s_lshl_b32 {t4}, {sTP}, 2", f"s_add_u32 {t3}, {t3}, {t4}", f"s_lshl_b32 {t3}, {t3}, 13",
             f"s_add_u32 {t3}, {t3}, {LX(L) + O_O}", f"s_xor_b32 {t4}, {t3}, 0x8000", f"v_add_u32 {v4k}, 0x1000, {vL16}"]))
    if L == 0:
        P.add(I(late_rd))
        P.add(I(wo_reads(x0)))
        P.add(b1_loads())
        P.add(I([x for d in range(8) for x in (f"v_accvgpr_read_b32 {x2}, a{224 + d}", f"v_lshlrev_b32 v{a0 + 2 * d}, 16, {x2}", f"v_and_b32 v{a0 + 2 * d + 1}, 0xffff0000, {x2}")]))
    else:
        if opt("ABT", 1):
            P.add(I(wo_reads(x0)))
        P.add(I([f"v_accvgpr_read_b32 v{a0 + i}, a{224 + i}" for i in range(16)]))
    for i in range(5):
        n = i & 3 if i < 4 else 0
        hi = i == 3 or i == 4
        P.add(I([f"s_xor_b32 {u0}, {sW}, {n}", f"s_lshl_b32 {u0}, {u0}, {12 if hi else 13}", f"s_add_u32 {u0}, {u0}, {SCR3 if hi else SL + 4096 * max(0, n - 1)}",
                 f"v_add_u32 {wa[i]}, {u0}, {vL16}"]))
    P.add(tile_addr(LX(L) + X1_O, LX(L) + ST1_O))
    fill = (w1_items("AB") + w1_items("CD1")) if L == 0 else (w1_items("CD1", opt("DR", 0) & 4) if opt("C1P", 0) == 2 else [])
    if L and opt("ABT", 1):
        fill = w1_items("AB")
    if L == 0 or opt("ABT", 1):
        fill[0] = [need_ins("ds_any")] + fill[0]
    FE, FM = o("FE", 0), o("FM", 0)
    P.add(I(fill[:FE]))
    P.add(publish(16 * L + 2, x1, "o1"))
    P.add(tick(f"{L}.p2end"))
    def of(ks, tt): return OF + (ks * 2 + tt) * 4
    def oloads(h): return [f"buffer_load_dwordx4 {V(of(ks, tt))}, {v4k if ks >= 4 else vL16}, {sWS}, {t4 if tt else t3} offen offset:{(ks & 3) * 1024} sc1"
                           for ks in range(h, 8, 2) for tt in range(2)]
    def mf(ks, n):
        a = V(AB[n], 16)
        return f"{MF} {a}, {V(WO + (ks * 2 + (n & 1)) * 4)}, {V(of(ks, n >> 1))}, {a if (ks or n == 0) else 0}"
    P.add(poll_check(vPO, "v56", 16 * L + 1))
    P.add(tick(f"{L}.yck0"))
    P.add(I(oloads(0)))
    P.add(I(fill[FE:FM]))
    P.add(poll_issue(vPO, "v56"))
    P.add(barrier())
    P.add(tick(f"{L}.B3"))
    NT, NH0 = o("NT3", 2), o("NH0", 12)
    g = [mf(ks, n) for ks in (0, 2, 4, 6) + (1, 3, 5, 7)[:4 - NT] for n in range(4)]
    P.add(I(g[:NH0]))
    P.add(tick(f"{L}.ymf0"))
    P.add(poll_check(vPO, "v56", 16 * L + 2))
    P.add(tick(f"{L}.pollo"))
    P.add(I(oloads(1)))
    g = g[NH0:]
    wr = []
    for n in (3, 2, 1, 0):
        for e, ks in enumerate((1, 3, 5, 7)[4 - NT:]):
            g.append(mf(ks, n))
            if e >= 1 or NT == 1:
                k = (len(wr) + (NT - e) - 1) // (NT - e)
                g.append(wr[:k]); wr = wr[k:]
        if n:
            wr = [f"ds_write_b128 {wa[n]}, {V(AB[n] + 4 * j)} offset:{1024 * j}" for j in range(4)]
    P.add(I(spread(g, fill[max(FE, FM):], 0.0, 1.0)))
    P.add(tick(f"{L}.p3mm"))
    P.add(barrier())
    P.add(tick(f"{L}.yB4"))
    for j in range(12):
        P(f"ds_read_b128 {V(OF + 4 * j)}, {wa[0 if j < 8 else 4]} offset:{1024 * (j & 7 if j < 8 else j - 8)}")
    for p in range(3):
        for i in range(8):
            P(f"v_pk_add_f32 {V(a0 + 2 * i, 2)}, {V(a0 + 2 * i, 2)}, {V(OF + 16 * p + 2 * i, 2)}")
    tile_out(a0, OF + 16, OF + 24, 2 << (4 * L), [], None)
    P.add(tick(f"{L}.yst"))
    r4 = []
    if L == 0:
        d4, r4 = w2_round(4, x0)
        P.add(I(d4))
    elif o("CD2P", 1) == 0:
        P.add(I(w1_items("CD2")))
    for d in range(8):
        P(f"v_accvgpr_read_b32 {x1}, a{248 + d}")
        P(f"v_lshlrev_b32 v{OF}, 16, {x1}")
        P(f"v_and_b32 v{OF + 1}, 0xffff0000, {x1}")
        P(f"v_pk_add_f32 {V(a0 + 2 * d, 2)}, {V(a0 + 2 * d, 2)}, {V(OF, 2)}")
        P(f"v_accvgpr_write_b32 a{224 + 2 * d}, v{a0 + 2 * d}")
        P(f"v_accvgpr_write_b32 a{225 + 2 * d}, v{a0 + 2 * d + 1}")
    P.add(publish(16 * L + 3, x1))
    P.add(tick(f"{L}.p3end"))
    return r4


def phase3(L, late_rd):
    if P3N:
        return phase3n(L, late_rd)
    a0, a1, OF, WO = 16, 32, 64, 128
    vp, vc = "v53", "v54"
    P(f"s_and_b32 {t0}, {sW}, 1")
    P(f"s_lshl_b32 {t0}, {t0}, 14")
    P(f"v_add_u32 {x1}, {t0}, {vTP}")
    P(f"s_lshl_b32 {t3}, {sTP}, 15")
    P(f"s_add_u32 {t3}, {t3}, {t0}")
    P(f"s_add_u32 {t3}, {t3}, {LX(L) + O_O}")
    P(f"s_and_b32 {t4}, {sRR}, 1")
    P(f"s_lshl_b32 {t4}, {t4}, 13")
    P(f"s_add_u32 {t3}, {t3}, {t4}")
    P.add(barrier("wo"))
    P.add(tick(f"{L}.B3"))
    CD2E = opt("CD2E", 1)
    if L and CD2E:
        P.add(I(w1_items("CD2")))
    rd = [tr("v", WO + (ks * 2 + ct) * 4, x1, (ks >> 3) * 32768 + 2048 * (ks & 7) + 512 * ct) for ks in range(16) for ct in range(2)]
    PO1, PO2 = opt(f"PO1_{L}", opt("PO1", 6)), opt(f"PO2_{L}", opt("PO2", 14))
    def oloads():
        o = []
        for ks in range(16):
            if ks % 4 == 0:
                o.append(f"s_xor_b32 {t4}, {t3}, {4096 * (ks // 4)}")
            o.append(f"buffer_load_dwordx4 {V(OF + 4 * ks)}, {vL16}, {sWS}, {t4} offen offset:{(ks % 4) * 1024} sc1{ntm('O')}")
        return o
    def res(tmpv):
        if L:
            return [f"v_accvgpr_read_b32 v{a0 + i}, a{224 + i}" for i in range(16)]
        return [x for d in range(8) for x in (f"v_accvgpr_read_b32 {tmpv}, a{224 + d}", f"v_lshlrev_b32 v{a0 + 2 * d}, 16, {tmpv}", f"v_and_b32 v{a0 + 2 * d + 1}, 0xffff0000, {tmpv}")]
    P.add(I(rd[:PO1]))
    P.add(poll_issue(vPO, vp, 16 * L + 1))
    P.add(I(rd[PO1:PO2]))
    P.add(I(res(x2)))
    P.add(poll_check(vPO, vp, 16 * L + 1))
    P.add(tick(f"{L}.pollo"))
    if opt("OIL", 0):
        P.add(I(spread([I(x) for x in oloads()], rd[PO2:], opt("OI0", 10) / 100, opt("OI1", 100) / 100)))
    else:
        P.add(I(oloads()))
        if L and not CD2E:
            P.add(I(w1_items("CD2")))
        P.add(I(rd[PO2:]))
    r4 = []
    if L == 0:
        d4, r4 = w2_round(4, x0)
        P.add(I(late_rd))
        P.add(I(d4[:8]))
        P(f"v_and_b32 {x1}, 0x13, {vL}")
        P(f"v_bfe_u32 {x2}, {vL}, 2, 1")
        P(f"v_lshl_add_u32 {x1}, {x2}, 3, {x1}")
        P(f"v_bfe_u32 {x2}, {vL}, 3, 1")
        P(f"v_lshl_add_u32 {x1}, {x2}, 2, {x1}")
        P(f"v_lshlrev_b32 {x1}, 1, {x1}")
        P(f"s_lshl_b32 {t1}, {sM}, 8")
        P(f"s_cmp_ge_u32 {sW}, 2")
        P(f"s_cselect_b32 {t1}, {OOB}, {t1}")
        for e in range(4):
            P(f"buffer_load_ushort v{B1V + e}, {x1}, {sB1}, {t1} offen offset:{64 * e}")
        P.need("ds_any")
        P.add(I(d4[8:]))
    P(f"s_xor_b32 {t0}, {sW}, 1")
    P(f"s_lshl_b32 {t0}, {t0}, 12")
    P(f"s_add_u32 {t0}, {t0}, {SCR3}")
    P(f"v_add_u32 {x0 if L else 'v52'}, {t0}, {vL16}")
    vw = x0 if L else "v52"
    P.add(tile_addr(LX(L) + X1_O, LX(L) + ST1_O))
    P.add(barrier())
    P.add(tick(f"{L}.B3b"))
    back = P.label()
    P.put(back)
    def mf(ks, ct):
        a = V(a0 if ct == 0 else a1, 16)
        return f"{MF} {a}, {V(WO + (ks * 2 + ct) * 4)}, {V(OF + 4 * ks)}, {a if (ks or ct == 0) else 0}"
    NT = 4
    g = [[mf(ks, 1), mf(ks, 0)] for ks in range(16 - NT)] + [[mf(ks, 1)] for ks in range(16 - NT, 16)]
    fill = w1_items("AB") + (w1_items("CD1") if L == 0 else [])
    if EF & 1:
        for n, x in chain(vc, OF, 16):
            g[n].append(x)
    P.add(I(spread(g, fill, 0.0, 1.0)))
    if EF & 1:
        P.add(redo(vc, back, oloads() + res(x1)))
    for n, ks in enumerate(range(16 - NT, 16)):
        P(mf(ks, 0))
        if n >= 1:
            for j in ([n - 1] if n < NT - 1 else range(n - 1, 4)):
                P(f"ds_write_b128 {vw}, {V(a1 + 4 * j)} offset:{1024 * j}")
    P(f"v_xor_b32 {vw}, 0x1000, {vw}")
    P.add(tick(f"{L}.p3mm"))
    P.add(barrier())
    for j in range(4):
        P(f"ds_read_b128 {V(OF + 4 * j)}, {vw} offset:{1024 * j}")
    for i in range(8):
        P(f"v_pk_add_f32 {V(a0 + 2 * i, 2)}, {V(a0 + 2 * i, 2)}, {V(OF + 2 * i, 2)}")
    tile_out(a0, OF + 16, OF + 24, 2 << (4 * L), publish(16 * L + 3, x1, early=f"iX{L}") if EF & 2 else [], f"iX{L}")
    rs = [I([f"v_accvgpr_read_b32 {x1}, a{248 + d}", f"v_lshlrev_b32 v{OF}, 16, {x1}", f"v_and_b32 v{OF + 1}, 0xffff0000, {x1}",
             f"v_pk_add_f32 {V(a0 + 2 * d, 2)}, {V(a0 + 2 * d, 2)}, {V(OF, 2)}", f"v_accvgpr_write_b32 a{224 + 2 * d}, v{a0 + 2 * d}",
             f"v_accvgpr_write_b32 a{225 + 2 * d}, v{a0 + 2 * d + 1}"]) for d in range(8)]
    if L == 0 and opt("CSN", 0) >= 4:
        cs = [I([f"s_lshl_b32 {t0}, {sW}, 14", f"v_add_u32 v122, {t0}, {vTP}", f"s_lshl_b32 {t0}, {sW}, 13", f"v_add_u32 {x0}, {t0}, {vTP1}", need_ins("w1AB")])]
        cs += [tr("v", XF + 4 * j, "v122", 2048 * (j >> 1) + 512 * (j & 1)) for j in range(16)]
        cs += [[need_ins("w1CD1")] + tr("v", XF + 64 + 4 * j, x0, 2048 * (j >> 1) + 512 * (j & 1)) for j in range(8)]
        cs += [asel(AS4), table_addr("v123")]
        cs += [I(f"{MF16} {V(STV + 4 * (j & 1))}, {V(AS4)}, {V(XF + 4 * j)}, {V(STV + 4 * (j & 1)) if j >= 2 else 0}") for j in range(16)]
        cs += [I(f"{MF16} {V(CC + 4 * (j & 1))}, {V(AS4)}, {V(XF + 64 + 4 * j)}, {V(CC + 4 * (j & 1)) if j >= 2 else 0}") for j in range(8)]
        cs += table_write(STV, 3, "v123", f"v{B1V}") + table_write(STV + 4, 4, "v123", f"v{B1V + 1}")
        NP = opt("NP", 8)
        P.add(I(spread(r4 + cs[:NP], rs)))
        r4 = cs[NP:]
    else:
        P.add(I(rs))
    if not EF & 2:
        P.add(publish(16 * L + 3, x1))
    if opt("DS", 0) and PL >> (4 * L) & 2:
        assert L == 1
        P(f"buffer_store_dwordx4 {V(OF + 16)}, {vL16}, {sWS}, {t1} offen sc1")
        P(f"buffer_store_dwordx4 {V(OF + 20)}, {vL16}, {sWS}, {t1} offen offset:1024 sc1")
        P(f"buffer_store_dword v{OF + 24}, {x2}, {sWS}, {t2} offen sc1")
    P.add(tick(f"{L}.p3end"))
    return r4


def gelu(a, c0, c1, ir, tmp, so, tag, bit, pk=False, ini=None):
    res = []
    for g in range(4):
        if pk:
            xs = [V(a + 4 * g + 2 * e, 2) for e in range(2)]
            ts = [V(tmp + 2 * e, 2) for e in range(2)]
            bc = lambda r: f"v[{r[1:]}:{int(r[1:]) + 1}]"
            res += [f"v_pk_mul_f32 {t}, {x}, {x}" for x, t in zip(xs, ts)]
            res += [f"v_pk_fma_f32 {t}, {t}, {bc(c1)}, {bc(c0)} op_sel_hi:[1,0,0]" for t in ts]
            res += [f"v_pk_mul_f32 {t}, {t}, {x}" for x, t in zip(xs, ts)]
            res += [f"v_exp_f32 v{tmp + e}, v{tmp + e}" for e in range(4)]
            res += [f"v_pk_fma_f32 {t}, {t}, {bc(ir)}, {bc(ir)} op_sel_hi:[1,0,0]" for t in ts]
            res += [f"v_rcp_f32 v{tmp + e}, v{tmp + e}" for e in range(4)]
            res += [f"v_pk_mul_f32 {x}, {x}, {t}" for x, t in zip(xs, ts)]
        else:
            blk = []
            for e in range(4):
                x, t = f"v{a + 4 * g + e}", f"v{tmp + e}"
                blk.append([f"v_mul_f32 {t}, {x}, {x}", f"v_fma_f32 {t}, {t}, {c1}, {c0}", f"v_mul_f32 {t}, {t}, {x}",
                            f"v_exp_f32 {t}, {t}", f"v_fma_f32 {t}, {t}, {ir}, {ir}", f"v_rcp_f32 {t}, {t}", f"v_mul_f32 {x}, {x}, {t}"])
            for s in range(7):
                for e in range(4):
                    res.append(blk[e][s])
        for i in (2 * g, 2 * g + 1):
            res.append(f"v_cvt_pk_bf16_f32 v{a + i}, v{a + 2 * i}, v{a + 2 * i + 1}")
        if g & 1:
            s, off = so
            res.append(xstore(f"buffer_store_dwordx4 {V(a + 2 * (g - 1))}, {vL16}, {sWS}, {s} offen offset:{off + 1024 * (g >> 1)}", bit, tag, ini))
            if g == 3 and opt("DS", 0) & 2 and PL & bit:
                res += [f"buffer_store_dwordx4 {V(a + 4 * j)}, {vL16}, {sWS}, {s} offen offset:{off + 1024 * j} sc1" for j in range(2)]
    return [I(x) for x in res]


def phase45(L, r4):
    T = [16, 32, 48, 16]
    C0R, C1R, IRR, RR, GT = "v116", "v118", "v120", "v122", 124
    FB = 16 * L
    vtb = x2
    CSN = opt("CSN", 0) if L == 0 else 0
    CS5 = False
    if L == 0:
        if CSN < 4:
            P.add(I(r4))
        IM = opt("IM", 0)
        if IM:
            lid, ljn = P.label(), P.label()
            P(f"s_cmp_ge_u32 {sM}, 14")
            P(f"s_cbranch_scc1 {lid}")
            o = [lid + ":", f"s_bfe_u32 {u0}, s2, 0x20003", f"s_lshl_b32 {u0}, {u0}, 2", f"s_add_u32 {u0}, {u0}, {sW}", f"s_mul_i32 {u0}, {u0}, {4 * 3072}",
                 f"v_lshrrev_b32 {x0}, 4, {vL}", f"v_mul_u32_u24 {x0}, 3072, {x0}", f"v_and_b32 {x1}, 15, {vL}", f"v_lshl_add_u32 {x0}, {x1}, 7, {x0}",
                 f"s_mov_b32 {t3}, {OOB}", f"s_mov_b32 {t4}, {OOB}", f"v_add_u32 {vtb}, {TAB0 + 3072}, {vL16}"]
            for i in range(8):
                o += [f"s_add_u32 {u1}, {u0}, {64 * 3072 * ((2 * i) % 8 + (i >> 2))}", f"buffer_load_dword {x1}, {x0}, {sWQ}, {u1} offen offset:1024"]
            if IM > 1:
                o += [f"v_lshrrev_b32 {x0}, 3, {vL}", f"v_mul_u32_u24 {x0}, 3072, {x0}", f"v_and_b32 v16, 7, {vL}", f"v_lshl_add_u32 {x0}, v16, 7, {x0}", f"s_lshl_b32 {u0}, {u0}, 1"]
                for i in range(opt("IQ", 4)):
                    o += [f"s_add_u32 {u1}, {u0}, {128 * 3072 * i}", f"buffer_load_dword {x1}, {x0}, {sWQ}, {u1} offen"]
            if opt("CT", 0) & 2:
                lx = P.label()
                o += [f"s_lshl_b32 {u0}, {sW}, 12", f"v_and_b32 v16, 31, {vL}", f"v_lshl_add_u32 v16, v16, 7, {u0}", "v_min_u32 v16, L_p3_1-L_p1_1, v16",
                      "s_getpc_b64 s[96:97]", lx + ":", f"s_sub_u32 s96, s96, {lx}-L_p1_1", "s_subb_u32 s97, s97, 0", f"global_load_dword {x1}, v16, s[96:97]"]
            if CSN == 5:
                o += [f"s_lshl_b32 {u0}, {sW}, 13", f"v_add_u32 {x0}, {u0}, {vTP1}"] + table_addr("v123")
            if IM < 3:
                o += ["s_waitcnt vmcnt(0) lgkmcnt(0)", "s_barrier"] + tick("0.idle") + [f"s_branch {ljn}"]
                OUTL.extend(I(o))
            idl = o
        vtw = "v123"
        if CSN < 4:
            P.add(asel(AS4))
            P(f"s_lshl_b32 {t0}, {sW}, 14")
            P(f"v_add_u32 {'v122' if CSN else x1}, {t0}, {vTP}")
            P(f"s_lshl_b32 {t0}, {sW}, 13")
            P(f"v_add_u32 {x0}, {t0}, {vTP1}")
        if CSN >= 4:
            P.add(I(r4))
            P.add(barrier())
            if CSN == 5:
                T[2] = STV
            CS5, CSN = CSN == 5, 0
        elif CSN:
            P.add(table_addr(vtw))
            P.add(barrier("w1AB"))
            if CSN == 1:
                P.add(I(w1_items("CD2")))
        else:
            P.add(table_addr(x2))
            P.need("w1AB")
            for j in range(16):
                P.add(tr("v", XF + 4 * j, x1, 2048 * (j >> 1) + 512 * (j & 1)))
            P.need("w1CD1")
            for j in range(8):
                P.add(tr("v", XF + 64 + 4 * j, x0, 2048 * (j >> 1) + 512 * (j & 1)))
            for j in range(16):
                c = V(16 + 4 * (j & 1))
                P(f"{MF16} {c}, {V(AS4)}, {V(XF + 4 * j)}, {c if j >= 2 else 0}")
            for j in range(8):
                c = V(CC + 4 * (j & 1))
                P(f"{MF16} {c}, {V(AS4)}, {V(XF + 64 + 4 * j)}, {c if j >= 2 else 0}")
            P.add(I(table_write(16, 3, x2, f"v{B1V}") + table_write(20, 4, x2, f"v{B1V + 1}")))
            P.add(barrier())
            P(f"v_mov_b32 {vtw}, {x2}")
    else:
        P.add(barrier("w1AB", "w1CD1", *([] if P3N else ["w1CD2"])))
    P(f"v_add_u32 {vtb}, {TAB0 + 3072}, {vL16}")
    D = 3
    def rdA(t):
        if t < 32:
            return trp(RING + 8 * (t % 4), 2048 * t) + trp(RING + 8 * (t % 4) + 4, 2048 * t + 512)
        if t == 32:
            return I([f"ds_read_b128 {V(RING + 8 * (t % 4) + 4 * e)}, {vtb} offset:{1024 * e}" for e in range(2)])
        return []
    N3 = opt("N3", 0) >> L & 1
    D3 = opt("D3", 7)
    def rdF(f):
        t, e = divmod(f, 3)
        n = RING + 4 * (f % 8)
        if t < 32:
            return trp(n, 2048 * t + 512 * e) if e < 2 else trp(n, R2 + 2048 * t)
        if t == 32:
            return I(f"ds_read_b128 {V(n)}, {vtb} offset:{1024 * e}")
        return []
    back, vc = P.label(), (f"v{GT}" if EF & 2 else None)
    P.put(back)
    for t in range(D3 if N3 else D):
        P.add(rdF(t) if N3 else rdA(t))
    P(f"s_lshl_b32 {t3}, {sT}, 17")
    P(f"s_lshl_b32 {t4}, {sM}, 13")
    P(f"s_add_u32 {t3}, {t3}, {t4}")
    P(f"s_add_u32 {t3}, {t3}, {LX(L) + H_O}")
    P.add(I(idle(t3)))
    P(f"s_add_u32 {t4}, {t3}, 4096")
    xs, xi = x_loads(LX(L) + X1_O, LX(L) + ST1_O, STV)
    NB = opt("NB", 14)
    P.add(xs)
    P.add(I(idle(t1, t2)))
    P.add(tick(f"{L}.B4b"))
    P.add(poll(vPX, x1, FB + 3))
    P.add(tick(f"{L}.pollx1"))
    if CSN:
        assert NB <= 16
        csr = [tr("v", XF + 64 + 4 * j, "v122", 2048 * (j >> 1) + 512 * (j & 1)) for j in range(16)]
        P.add(I(spread(xi[:NB], csr)))
        if CSN == 2:
            P.add(I(w1_items("CD2")))
        for j in range(16):
            c = V(STV + 4 * (j & 1))
            P(f"{MF16} {c}, {V(AS4)}, {V(XF + 64 + 4 * j)}, {c if j >= 2 else 0}")
        tw = table_write(STV, 3, vtw, f"v{B1V}") + table_write(STV + 4, 4, vtw, f"v{B1V + 1}", "tw1")
    else:
        P.add(I(xi[:NB]))
    xi = xi[NB:] + (w1_items("CD2") if (L == 0 and CSN in (0, 3)) or (L and P3N and opt("CD2P", 1) == 1) else [])
    if L == 0 and opt("TKV", 0):
        xi += touch_qkv("v117", "v119")
    if L == 0 and opt("H3B", 0):
        xi += [help3("v117", "v119", u0)]
    xi += sp_touch(2, x1, x1)
    gA = []
    for k in range(33):
        xb = V(XF + 4 * k) if k < 32 else V(EX)
        if N3:
            gA.append(sum((rdF(3 * k + e + D3) + I(f"{MF} {V(T[e], 16)}, {V(RING + 4 * ((3 * k + e) % 8))}, {xb}, {V(T[e], 16) if k else 0}") for e in range(3)), []))
            continue
        gA.append(rdA(k + D) + I([f"{MF} {V(T[e], 16)}, {V(RING + 8 * (k % 4) + 4 * e)}, {xb}, {V(T[e], 16) if k else 0}" for e in range(2)]))
    s = [f"v{STV + i}" for i in range(4)]
    C0 = -2.0 * LOG2E * 0.7978845608028654
    fill = stats_sum(STV, vc) + stats_finish(s[0], s[1], s[2], s[3], EX, True, RR, IRR)
    fill += [I(x) for x in [f"v_mul_f32 {C0R}, {fc(C0)}, {RR}", f"v_mul_f32 {C1R}, {RR}, {RR}", f"v_mul_f32 {C1R}, {C1R}, {C0R}",
                            f"v_mul_f32 {C1R}, {fc(0.044715)}, {C1R}"]]
    for k in range(0, 32, 4):
        gA[k] = gA[k] + tick(f"{L}.zA{k}")
    if CSN:
        gA[0] = I(tw[:7]) + gA[0] + I(tw[7:])
        CR = [112, 116, 124]
        ncd = 8 if CSN == 3 else 16
        def crd(j): return I([need_ins("w1CD1" if j < 8 else "w1CD2")] + tr("v", CR[j % 3], x0, 32768 * (j >> 3) + 2048 * ((j >> 1) & 3) + 512 * (j & 1))) if j < ncd else []
        for j in range(ncd + 2):
            c = V(CC + 4 * (j & 1))
            gA[j] = gA[j] + ((I(f"{MF16} {c}, {V(AS4)}, {V(CR[(j - 2) % 3])}, {c if j >= 4 else 0}") if j >= 2 else []) + crd(j))
        if CSN != 3:
            tw = table_write(CC, 5, vtw, f"v{B1V + 2}") + table_write(CD_, 6, vtw, f"v{B1V + 3}", "tw2")
            for j in range(7):
                gA[ncd + 3 + j] += I(tw[2 * j:2 * j + 2])
        gA[opt("BAP", 20)] += I([need_ins("tw1", "w1CD1", *([] if CSN == 3 else ["w1CD2"])), "s_barrier"])
    attach(gA, xi)
    if opt("WB", 0) >> L & 1:
        lsk = P.label()
        gA[opt("WBP", 24)] += I([f"s_lshl_b32 {u0}, {sM}, 2", f"s_or_b32 {u0}, {u0}, {sW}"] + ([f"s_lshl_b32 {u0}, {u0}, 1", f"s_and_b32 {u1}, {sC}, 1", f"s_or_b32 {u0}, {u0}, {u1}"] if opt("WB1", 1) else []) +
                                [f"s_cmp_lg_u32 {u0}, {120 if opt('WB1', 1) else 60}", f"s_cbranch_scc1 {lsk}", "buffer_wbl2 sc1", lsk + ":"])
    if vc:
        for n, x in chain(vc, XF, 32):
            gA[n] += I(x)
    P.add(weave(gA, [(opt("XSP", 16) + 2, x) for x in fill] + [(len(xi), x) for x in inits("Bb"[L], STV + 8)]))
    if vc:
        P.add(redo(vc, back))
    P.add(tick(f"{L}.pA"))
    if (opt("N45", 0) >> L & 1) or N3:
        return tail45(L, vtb, vtw if L == 0 else None, N3)
    D1 = 6
    def rd1(e, t):
        if t < 32:
            return trp(RING + 4 * (t % 8), R2 + 2048 * t + 512 * e)
        if t == 32:
            return I(f"ds_read_b128 {V(RING + 4 * (t % 8))}, {vtb} offset:{2048 + 1024 * e}")
        if e == 0 and t - 34 >= 0:
            pass
        return []
    def g1(e, off):
        def rd(t):
            n = RING + 4 * ((t + off) % 8)
            if t < 32:
                return trp(n, R2 + 2048 * t + 512 * e)
            if t == 32:
                return I(f"ds_read_b128 {V(n)}, {vtb} offset:{2048 + 1024 * e}")
            if e == 0:
                return trp(n, R2 + 2048 * (t - 33) + 512)
            return []
        a = V(T[2 + e], 16)
        out = []
        for k in range(33):
            xb = V(XF + 4 * k) if k < 32 else V(EX)
            it = rd(k + D1)
            if k % 2 == 0 and k + 1 < 33:
                it = it + [need_ins(("v", RING + 4 * ((k + 1 + off) % 8) + 3))]
            out.append(it + I(f"{MF} {a}, {V(RING + 4 * ((k + off) % 8))}, {xb}, {a if k else 0}"))
        return out, [rd(t) for t in range(D1)]
    gB, preB = g1(0, 0)
    gC, _ = g1(1, 33)
    PUBD = opt("PUBD", 14)
    GHI = opt("GHI", 90) / 100
    def G(i, pk=False):
        o = gelu(T[i], C0R, C1R, IRR, GT, (t3 if i < 2 else t4, 2048 * (i & 1)), f"h{i}", 4 << (4 * L), pk, f"iH{L}{i}")
        if EF & 4:
            o.insert(len(o) - opt("HE", 0), tick(f"{L}.zpb{i}") + publish(FB + 4 + i, x1, f"h{i}", f"iH{L}{i}"))
        return o
    def at(groups, n, item):
        groups[n] = groups[n] + I(item)
    if L == 0:
        cs = [I([need_ins("w1CD2")] + tr("v", STV + 4 * (j & 3), x0, 32768 + 2048 * (j >> 1) + 512 * (j & 1))) for j in range(4)]
        for j in range(8):
            c = V(CC + 4 * (j & 1))
            cs.append(I(f"{MF16} {c}, {V(AS4)}, {V(STV + 4 * (j & 3))}, {c}"))
            if j + 4 < 8:
                cs.append(tr("v", STV + 4 * (j & 3), x0, 32768 + 2048 * ((j + 4) >> 1) + 512 * (j & 1)))
        cs += [[]] + table_write(CC, 5, vtw, f"v{B1V + 2}") + table_write(CD_, 6, vtw, f"v{B1V + 3}")
        if CS5:
            P.add(I(spread(G(0, True), preB, 0.5, 0.95)))
            C2 = opt("C2P", 5)
            LA = opt("C2L", 4)
            for j in range(8):
                at(gB, C2 + j, [need_ins("w1CD2")] + tr("v", 16 + 4 * (j & 3), x0, 32768 + 2048 * (j >> 1) + 512 * (j & 1)))
            for j in range(8):
                c = V(CC + 4 * (j & 1))
                gB[C2 + j + LA] = I(f"{MF16} {c}, {V(AS4)}, {V(16 + 4 * (j & 3))}, {c}") + gB[C2 + j + LA]
            gB[C2 + 1] = I("s_barrier") + gB[C2 + 1]
            tw = table_write(CC, 5, vtw, f"v{B1V + 2}") + table_write(CD_, 6, vtw, f"v{B1V + 3}", "tw2")
            for j in range(5):
                at(gB, C2 + 8 + LA + j, tw[3 * j:3 * j + 3])
            assert C2 + 1 <= 10 and C2 + 8 + LA + 4 < 25 and LA <= 4 and opt("KV0", 0) > C2
            at(gB, 25, [need_ins("tw2"), "s_barrier"])
        elif CSN in (1, 2):
            P.add(I(spread(G(0, True), preB, 0.5, 0.95)))
            P.add(I([need_ins("tw2"), "s_barrier"]))
        else:
            P.add(I(spread(G(0), cs + preB, 0.1, 0.95)))
            P.add(barrier())
        if 0 < IM < 3:
            P.put(ljn)
        kv = wkv_items()
        if not opt("KV0", 0):
            for j in range(8):
                at(gB, 1 + j, kv[j]); at(gC, 1 + j, kv[8 + j])
    else:
        P.add(I(spread(G(0, True), preB, 0.5, 0.95)))
        if P3N:
            at(gB, opt("B5P", 4), [need_ins("w1CD2"), "s_barrier"])
    P.add(tick(f"{L}.G0"))
    ACC = [A(224, 16), V(32, 16), V(48, 16), V(240, 16)]
    def hf(s, i, tt): return XF + 4 * (14 * (s & 1) + 2 * i + tt)
    def hloads(s):
        out = []
        for i in range(7):
            for tt in range(2):
                out.append(I([f"s_add_u32 {u0}, {t5 if tt == 0 else d3}, {(8 * i + 2 * s) * 1024}",
                              f"buffer_load_dwordx4 {V(hf(s, i, tt))}, {vL16}, {sWS}, {u0} offen sc1{ntm('H')}"]))
        return out
    def mf(s, i, n):
        tt, ct = n >> 1, n & 1
        a = ACC[n]
        return f"{MF} {a}, {A(((7 * s + i) * 2 + ct) * 4)}, {V(hf(s, i, tt))}, {a if (s or i or n == 0) else 0}"
    def hchk(s, i):
        if not EF & 4:
            return []
        ls, lr = P.label(), P.label()
        c = [f"v_cmp_u_f32 vcc, v{hf(s, i, 0)}, v{hf(s, i, 1)}", f"s_cbranch_vccnz {ls}"]
        OUTL.extend(I([ls + ":", f"s_cmp_eq_u32 {sRT}, 0", f"s_cbranch_scc1 {lr}", f"s_sub_u32 {sRT}, {sRT}, 1"] + hloads(s)[2 * i:2 * i + 2] + c + [f"s_branch {lr}"]))
        return I(c + [lr + ":"])
    def gS(s, ni=7): return [(hchk(s, i) if n == 0 else []) + I(mf(s, i, n)) for i in range(ni) for n in range(4)]
    hb = I([f"s_lshr_b32 {u0}, {sW}, 1", f"s_mul_i32 {u0}, {u0}, {56 * 1024}", f"s_and_b32 {u1}, {sW}, 1", f"s_lshl_b32 {u1}, {u1}, 10",
            f"s_add_u32 {u0}, {u0}, {u1}", f"s_add_u32 {u0}, {u0}, {LX(L) + H_O}", f"s_lshl_b32 {t5}, {sTP}, 17", f"s_xor_b32 {d3}, {t5}, 0x20000",
            f"s_add_u32 {t5}, {t5}, {u0}", f"s_add_u32 {d3}, {d3}, {u0}"])
    for n, x in enumerate(hb):
        at(gB, 16 + n, x)
    DEF = opt("DEF", 0)
    NT = opt("NT5", 2)
    if DEF == 1:
        assert not EF & 4
        st = gB + gC + gS(0) + gS(1) + [I(mf(2, i, n)) for i in range(7) for n in (1, 2, 3)] + [I(mf(3, i, n)) for i in range(7 - NT) for n in (1, 2, 3)]
    else:
        st = gB + gC + gS(0) + gS(1) + gS(2)
    CK = [opt(f"CK{i}", ((41, 66, 96, 124), (33, 48, 80, 110))[EF >> 2 & 1][i]) for i in range(4)]
    PB = [opt("PB0", 14), opt("PB1", 47), opt("PB2", 78), opt("PB3", 108)]
    PD = opt("PD", 12)
    for s in range(4):
        if not EF & 4:
            at(st, PB[s], tick(f"{L}.zpb{s}") + publish(FB + 4 + s, x1, f"h{s}") + tick(f"{L}.zPB{s}"))
        at(st, CK[s] - PD, poll_issue(vPH, x0, FB + 4 + s))
        at(st, CK[s], tick(f"{L}.zck{s}") + poll_check(vPH, x0, FB + 4 + s) + tick(f"{L}.zCK{s}"))
        n = CK[s] + 1
        hl = list(enumerate(hloads(s)))
        if DEF == 2 and s == 3:
            hl = hl[1::2] + hl[0::2]
        for j, (q, x) in enumerate(hl):
            lo = {0: 33 + j, 1: 33 + 14 + j}.get(s, 66 + 28 * (s - 2) + 4 * (q >> 1) + 3)
            n = max(n, lo)
            at(st, n, x)
            assert DEF != 1 or s < 2 or n < 122 + 21 * (s - 2) + 3 * (j >> 1)
            n += 1 if j < opt(f"HBU{s}", opt("HBU", 6)) else opt("HST", 2)
        assert n <= len(st) + 1
    at(st, opt("B6", 110), barrier() + tick(f"{L}.zB6"))
    if L == 0 and opt("KV0", 0):
        for j in range(16):
            at(st, opt("KV0", 0) + j * opt("KVS", 10) // 10, kv[j])
    if L == 0 and opt("WQE", 0):
        assert opt("WQE", 0) > opt("B6", 110)
        for j, x in enumerate(wq_items([2])):
            at(st, opt("WQE", 0) + j * opt("WQS", 1), (I(f"s_sub_u32 {d1}, {d1}, 1024") if j == 0 else []) + x)
    P.add(I(spread(st[:33], G(1, opt("GPK", 0) & 1), 0.03, GHI)))
    P.add(tick(f"{L}.pB"))
    P.add(I(spread(st[33:66], G(2, opt("GPK", 0) & 2), 0.03, GHI)))
    P.add(tick(f"{L}.pC"))
    if L == 0 and IM == 3:
        assert CK[1] >= 66 and CK[1] - PD < 66 and opt("KV0", 0) + 15 * opt("KVS", 10) // 10 < 66
        kvi = wkv_items()
        hb2 = I([x.text for x in hb])
        idl += ["s_waitcnt lgkmcnt(0)", "s_barrier"] + hb2 + poll(vPH, x0, FB + 4) + tick("0.idle") + hloads(0) + poll_issue(vPH, x0, FB + 5) + kvi + [f"s_branch {ljn}"]
        OUTL.extend(I(idl))
        P.put(ljn)
    P.add(weave(st[66:94], [(1, x) for x in G(3, opt("GPK", 0) & 4)], slack=0))
    P.add(tick(f"{L}.S0"))
    P.add(I(st[94:122]))
    P.add(tick(f"{L}.S1"))
    x, tmp = 64, 80
    wa = ["v16", "v17", "v18", "v19"]
    pre = []
    for i in range(4):
        pre.append(I([f"s_xor_b32 {u0}, {sW}, {i}", f"s_mul_i32 {u0}, {u0}, 12288", f"s_add_u32 {u0}, {u0}, {SL + 4096 * max(0, i - 1)}",
                      f"v_add_u32 {wa[i]}, {u0}, {vL16}"]))
    if L == 0:
        pre.append(tile_addr(LX(1) + XIN_O, LX(1) + ST2_O))
    else:
        pre.append(I([f"v_and_b32 {x2}, 31, {vL}", f"v_lshrrev_b32 {x1}, 5, {vL}", f"v_lshlrev_b32 {x2}, 10, {x2}", f"v_lshl_add_u32 {x2}, {x1}, 4, {x2}",
                      f"s_lshl_b32 {t1}, {sTP}, 15", f"s_lshl_b32 {t2}, {sCT}, 6", f"s_add_u32 {t1}, {t1}, {t2}"]))
    base = [0, 32, 48, 240]
    if DEF == 2:
        for n, it in enumerate(pre):
            at(st, 140 + n, it)
        P.add(I(st[122:150]))
        P.add(tick(f"{L}.S2"))
        def wr(n): return [I(f"ds_write_b128 {wa[n]}, {V(base[n] + 4 * j)} offset:{1024 * j}") for j in range(4)]
        def rd(p): return [I(f"ds_read_b128 {V(tmp + 16 * p + 4 * j)}, {wa[0]} offset:{4096 * p + 1024 * j}") for j in range(4)]
        def ad(d, a, b): return [I(f"v_pk_add_f32 {V(d + 2 * i, 2)}, {V(a + 2 * i, 2)}, {V(b + 2 * i, 2)}") for i in range(8)]
        g = [I(mf(3, i, n)) for i in range(7) for n in (3, 2)]
        for j in range(4):
            g[1 + j] += I([f"v_accvgpr_read_b32 v{x + i}, a{224 + i}" for i in range(4 * j, 4 * j + 4)])
        P.add(I(g))
        g = [I(mf(3, i, 1) if n else f"{MF} {V(x, 16)}, {A((21 + i) * 8)}, {V(hf(3, i, 0))}, {V(x, 16)}") for i in range(7) for n in (1, 0)]
        W0, BA = opt("W0", 0), opt("BA", 6)
        attach(g, wr(3) + wr(2), W0, opt("WP", 4))
        g[BA] += barrier() + I(rd(1) + rd(2))
        attach(g, ad(tmp + 16, tmp + 16, tmp + 32), opt("AP", 10), 4)
        P.add(I(g + wr(1) + ad(x, x, tmp + 16)))
        P.add(tick(f"{L}.S3"))
        P.add(barrier(*(["wkv"] if L == 0 else [])))
        P.add(I(rd(0) + ad(x, x, tmp)))
    elif DEF:
        for n, it in enumerate(pre + [I([f"v_accvgpr_read_b32 v{x + i}, a{224 + i}" for i in range(j, j + 4)]) for j in range(0, 16, 4)]):
            at(st, 143 + n, it)
        P.add(I(st[122:143]))
        P.add(tick(f"{L}.S2"))
        own = [I(f"{MF} {V(x, 16)}, {A((7 * s + i) * 8)}, {V(hf(s, i, 0))}, {V(x, 16)}") for s in (2, 3) for i in range(7)]
        g, wr = st[143:], []
        for n in (3, 2, 1, 0):
            for e, i in enumerate(range(7 - NT, 7)):
                g.append(I(mf(3, i, n)) if n else own.pop(0))
                if e >= 1 or NT == 1:
                    k = (len(wr) + (NT - e) - 1) // (NT - e)
                    g.append(I(wr[:k])); wr = wr[k:]
            if n:
                wr = [f"ds_write_b128 {wa[n]}, {V(base[n] + 4 * j)} offset:{1024 * j}" for j in range(4)]
        K1 = opt("K1", 3)
        P.add(I(g + own[:K1]))
        own = own[K1:]
        P.add(tick(f"{L}.S3"))
        P.add(barrier(*(["wkv"] if L == 0 else [])))
        order = [j + 4 * p for j in range(4) for p in range(3)]
        rd = [I(f"ds_read_b128 {V(tmp + 4 * j)}, {wa[0]} offset:{1024 * j}") for j in order]
        ad = [I([f"v_pk_add_f32 {V(tmp + 2 * i, 2)}, {V(tmp + 2 * i, 2)}, {V(tmp + 16 * p + 2 * i, 2)}" for p in (1, 2) for i in (2 * j, 2 * j + 1)]) for j in range(4)]
        RP = opt("RP", 4)
        for n in range(0, 12, RP):
            P.add(I(rd[n:n + RP]))
            P.add(own.pop(0))
        assert len(own) >= 4
        while len(own) > 4:
            P.add(own.pop(0))
        for j in range(4):
            P.add(own.pop(0))
            P.add(ad[j])
        for i in range(8):
            P(f"v_pk_add_f32 {V(x + 2 * i, 2)}, {V(x + 2 * i, 2)}, {V(tmp + 2 * i, 2)}")
    else:
        P.add(I(st[122:150]))
        P.add(tick(f"{L}.S2"))
        NT = opt("NT5", 2)
        wa = ["v16", "v17", "v18", "v19"]
        pre = []
        for i in range(4):
            pre.append(I([f"s_xor_b32 {u0}, {sW}, {i}", f"s_mul_i32 {u0}, {u0}, 12288", f"s_add_u32 {u0}, {u0}, {SL + 4096 * max(0, i - 1)}",
                          f"v_add_u32 {wa[i]}, {u0}, {vL16}"]))
        if L == 0:
            pre.append(tile_addr(LX(1) + XIN_O, LX(1) + ST2_O))
        else:
            pre.append(I([f"v_and_b32 {x2}, 31, {vL}", f"v_lshrrev_b32 {x1}, 5, {vL}", f"v_lshlrev_b32 {x2}, 10, {x2}", f"v_lshl_add_u32 {x2}, {x1}, 4, {x2}",
                          f"s_lshl_b32 {t1}, {sTP}, 15", f"s_lshl_b32 {t2}, {sCT}, 6", f"s_add_u32 {t1}, {t1}, {t2}"]))
        P.add(I(pre))
        g = gS(3, 7 - NT)
        if L == 0:
            attach(g, inits("C", RING), 1, 1)
            if opt("WQ3", 0):
                wq = wq_items([2])
                wq[0] = I(f"s_sub_u32 {d1}, {d1}, 1024") + wq[0]
                attach(g, wq, opt("WQ3", 0) - 1, 1)
        base = [0, 32, 48, 240]
        wr = []
        for n in (3, 2, 1, 0):
            for e, i in enumerate(range(7 - NT, 7)):
                g.append((hchk(3, i) if n == 3 else []) + I(mf(3, i, n)))
                if e >= 1 or NT == 1:
                    k = (len(wr) + (NT - e) - 1) // (NT - e)
                    g.append(I(wr[:k])); wr = wr[k:]
            if n:
                wr = [f"ds_write_b128 {wa[n]}, {V(base[n] + 4 * j)} offset:{1024 * j}" for j in range(4)]
        P.add(I(g))
        x, tmp = 64, 80
        for i in range(16):
            P(f"v_accvgpr_read_b32 v{x + i}, a{224 + i}")
        P.add(tick(f"{L}.S3"))
        P.add(barrier(*(["wkv"] if L == 0 else [])))
        for j in range(12):
            P(f"ds_read_b128 {V(tmp + 4 * j)}, {wa[0]} offset:{1024 * j}")
        for p in range(3):
            for i in range(8):
                P(f"v_pk_add_f32 {V(x + 2 * i, 2)}, {V(x + 2 * i, 2)}, {V(tmp + 16 * p + 2 * i, 2)}")
    if L == 0:
        tile_out(x, 16, 24, 8, publish(8, x1, early="iY0") if EF & 8 else [], "iY0")
        for i in range(16):
            P(f"v_accvgpr_write_b32 a{224 + i}, v{x + i}")
        if not EF & 8:
            P.add(publish(8, x1))
        P.add(tick("0.p5end"))
    else:
        for i in range(8):
            P(f"v_cvt_pk_bf16_f32 v{16 + i}, v{x + 2 * i}, v{x + 2 * i + 1}")
        P(f"buffer_store_dwordx4 {V(16)}, {x2}, {sOUT}, {t1} offen {OM}")
        P(f"buffer_store_dwordx4 {V(20)}, {x2}, {sOUT}, {t1} offen offset:32 {OM}")
        if PROF:
            P.need("stores")
            P.add(tick("1.final"))
            P.add(prof_dump())


def tail45(L, vtb, vtw, N3=0):
    o = lambda n, d: opt(f"{n}_{L}", opt(n, d))
    G0X, G2X, G3X = (1 if L == 0 else o("G0X", 1)), o("G2X", 1), o("G3X", N3)
    T = [16, 32, 48, 16 if G0X else STV]
    C0R, C1R, IRR, RR, GT = "v116", "v118", "v120", "v122", 124
    FB, D = 16 * L, 3
    def rd(t):
        n = RING + 8 * (t % 4)
        if t < 32:
            return trp(n, R2 + 2048 * t) + trp(n + 4, R2 + 2048 * t + 512)
        if t == 32:
            return I([f"ds_read_b128 {V(n + 4 * e)}, {vtb} offset:{2048 + 1024 * e}" for e in range(2)])
        return []
    gBC = []
    for k in range(33):
        xb = V(XF + 4 * k) if k < 32 else V(EX)
        r = rd(k + D)
        for e in range(2):
            gBC.append(I(f"{MF} {V(T[2 + e], 16)}, {V(RING + 8 * (k % 4) + 4 * e)}, {xb}, {V(T[2 + e], 16) if k else 0}") + r[len(r) // 2 * e:len(r) // 2 * (e + 1)])
    pre = [rd(t) for t in range(D)]
    if N3:
        D = 6
        def rd(t):
            n = RING + 4 * (t % 8)
            if t < 32:
                return trp(n, R2 + 2048 * t + 512)
            return I(f"ds_read_b128 {V(n)}, {vtb} offset:3072") if t == 32 else []
        gBC = []
        for k in range(33):
            xb = V(XF + 4 * k) if k < 32 else V(EX)
            it = rd(k + D)
            if k % 2 == 0 and k + 1 < 33:
                it = it + [need_ins(("v", RING + 4 * ((k + 1) % 8) + 3))]
            gBC.append(it + I(f"{MF} {V(T[3], 16)}, {V(RING + 4 * (k % 8))}, {xb}, {V(T[3], 16) if k else 0}"))
        pre = [rd(t) for t in range(D)]
    NB_ = len(gBC)
    def G(i, pk=False):
        return gelu(T[i], C0R, C1R, IRR, GT, (t3 if i < 2 else t4, 2048 * (i & 1)), f"h{i}", 4 << (4 * L), pk)
    def at(groups, n, item):
        groups[n] = groups[n] + I(item)
    kv = []
    if L == 0:
        cs = [I([need_ins("w1CD2")] + tr("v", STV + 4 * (j & 3), x0, 32768 + 2048 * (j >> 1) + 512 * (j & 1))) for j in range(4)]
        for j in range(8):
            c = V(CC + 4 * (j & 1))
            cs.append(I(f"{MF16} {c}, {V(AS4)}, {V(STV + 4 * (j & 3))}, {c}"))
            if j + 4 < 8:
                cs.append(tr("v", STV + 4 * (j & 3), x0, 32768 + 2048 * ((j + 4) >> 1) + 512 * (j & 1)))
        cs += [[]] + table_write(CC, 5, vtw, f"v{B1V + 2}") + table_write(CD_, 6, vtw, f"v{B1V + 3}")
        P.add(I(spread(G(0), cs + pre, 0.1, 0.95)))
        P.add(barrier())
        kv = wkv_items()
    elif G0X:
        P.add(I(spread(G(0, True), pre, 0.5, 0.95)))
    else:
        P.add(I(pre))
    P.add(tick(f"{L}.G0"))
    AB = [0, 32, RING, RING + 16]
    ACC = [A(224, 16)] + [V(b, 16) for b in AB[1:]]
    NR = 32
    def hf(s, i, tt): return XF + 4 * ((14 * s + 2 * i + tt) % NR)
    def hloads(s):
        return [I([f"s_add_u32 {u0}, {t5 if tt == 0 else d3}, {(8 * i + 2 * s) * 1024}",
                   f"buffer_load_dwordx4 {V(hf(s, i, tt))}, {vL16}, {sWS}, {u0} offen sc1"]) for i in range(7) for tt in range(2)]
    def mf(s, i, n):
        tt, ct = n >> 1, n & 1
        a = ACC[n]
        return f"{MF} {a}, {A(((7 * s + i) * 2 + ct) * 4)}, {V(hf(s, i, tt))}, {a if (s or i or n == 0) else 0}"
    def gS(s, ni=7): return [I(mf(s, i, n)) for i in range(ni) for n in range(4)]
    hb = I([f"s_lshr_b32 {u0}, {sW}, 1", f"s_mul_i32 {u0}, {u0}, {56 * 1024}", f"s_and_b32 {u1}, {sW}, 1", f"s_lshl_b32 {u1}, {u1}, 10",
            f"s_add_u32 {u0}, {u0}, {u1}", f"s_add_u32 {u0}, {u0}, {LX(L) + H_O}", f"s_lshl_b32 {t5}, {sTP}, 17", f"s_xor_b32 {d3}, {t5}, 0x20000",
            f"s_add_u32 {t5}, {t5}, {u0}", f"s_add_u32 {d3}, {d3}, {u0}"])
    for n in range(0, 10, 2):
        at(gBC, 1 + n, hb[n:n + 2])
    gx = []
    for i, x in ((2, G2X), (3, G3X)):
        if x:
            g = G(i, True)
            gx += [I(g[len(g) * n // 10:len(g) * (n + 1) // 10]) for n in range(10)]
    NT = opt("NT5", 2)
    S0 = NB_ + len(gx)
    st = gBC + gx + gS(0) + gS(1) + gS(2) + gS(3, 7 - NT)
    def pos(p): return p if p < 100 else (NB_ + p - 100 if p < 200 else S0 + p - 200)
    PB = [pos(o(f"PB{i}", ((18, 58, 216, 246), (14, 109, 200, 218))[N3][i])) for i in range(4)]
    PI = [pos(o(f"PI{i}", ((30, 103, 228, 256), (27, 115, 212, 232))[N3][i])) for i in range(4)]
    CK = [pos(o(f"CK{i}", ((42, 202, 240, 268), (32, 119, 220, 240))[N3][i])) for i in range(4)]
    for s in range(4):
        at(st, PB[s], tick(f"{L}.zpb{s}") + publish(FB + 4 + s, x1, f"h{s}") + tick(f"{L}.zPB{s}"))
        at(st, PI[s], poll_issue(vPH, x0, FB + 4 + s))
        at(st, CK[s], tick(f"{L}.zck{s}") + poll_check(vPH, x0, FB + 4 + s) + tick(f"{L}.zCK{s}"))
        n = CK[s]
        HS = o(f"HS{s}", ((14, 10, 15, 10), (7, 10, 10, 10))[N3][s])
        for j, x in enumerate(hloads(s)):
            q = 14 * s + j
            lo = (q if N3 else 2 * q + 1) if q < NR else S0 + 4 * ((q - NR) >> 1) + 3
            n = max(n, lo)
            assert n < S0 + 4 * (q >> 1), (s, j, n)
            at(st, n, x)
            n = max(n, CK[s] + (j + 1) * HS // 10)
    at(st, pos(o("B6", 210)), barrier() + tick(f"{L}.zB6"))
    for j, x in enumerate(kv):
        at(st, pos(o("KV0", 1)) + j * o("KVS", 20) // 10, x)
    if L == 0 and opt("WQ3", 0):
        wq = wq_items([2])
        wq[0] = I(f"s_sub_u32 {d1}, {d1}, 1024") + wq[0]
        for j, x in enumerate(wq):
            at(st, pos(opt("WQ3", 0)) + j * opt("WQS", 20) // 10, x)
    wa = [f"v{EX + i}" for i in range(4)]
    for i in range(4):
        at(st, S0 + 60 + i, [f"s_xor_b32 {u0}, {sW}, {i}", f"s_mul_i32 {u0}, {u0}, 12288", f"s_add_u32 {u0}, {u0}, {SL + 4096 * max(0, i - 1)}",
                             f"v_add_u32 {wa[i]}, {u0}, {vL16}"])
    if L == 0:
        at(st, S0 + 64, tile_addr(LX(1) + XIN_O, LX(1) + ST2_O))
    else:
        at(st, S0 + 64, [f"v_and_b32 {x2}, 31, {vL}", f"v_lshrrev_b32 v{GT}, 5, {vL}", f"v_lshlrev_b32 {x2}, 10, {x2}", f"v_lshl_add_u32 {x2}, v{GT}, 4, {x2}",
                         f"s_lshl_b32 {t1}, {sTP}, 15", f"s_lshl_b32 {t2}, {sCT}, 6", f"s_add_u32 {t1}, {t1}, {t2}"])
    P.add(I(spread(st[:NB_], ([] if G0X else G(0)) + G(1), 0.02, o("GHI", 90 if N3 else 62 if G0X else 97) / 100)))
    P.add(tick(f"{L}.pC"))
    P.add(I(st[NB_:S0]))
    P.add(tick(f"{L}.GX"))
    wv = ([] if G2X else G(2)) + ([] if G3X else G(3))
    P.add(I(spread(st[S0:S0 + 28], wv, 0.02, o("GH2", 95) / 100)))
    P.add(tick(f"{L}.S0"))
    P.add(I(st[S0 + 28:S0 + 56]))
    P.add(tick(f"{L}.S1"))
    P.add(I(st[S0 + 56:S0 + 84]))
    P.add(tick(f"{L}.S2"))
    g = st[S0 + 84:]
    wr = []
    for n in (3, 2, 1, 0):
        for e, i in enumerate(range(7 - NT, 7)):
            g.append(I(mf(3, i, n)))
            if e >= 1 or NT == 1:
                k = (len(wr) + (NT - e) - 1) // (NT - e)
                g.append(I(wr[:k])); wr = wr[k:]
        if n:
            wr = [f"ds_write_b128 {wa[n]}, {V(AB[n] + 4 * j)} offset:{1024 * j}" for j in range(4)]
    P.add(I(g))
    x, tmp = 48, XF
    for i in range(16):
        P(f"v_accvgpr_read_b32 v{x + i}, a{224 + i}")
    P.add(tick(f"{L}.S3"))
    P.add(barrier(*(["wkv"] if L == 0 else [])))
    for j in range(12):
        P(f"ds_read_b128 {V(tmp + 4 * j)}, {wa[0]} offset:{1024 * j}")
    for p in range(3):
        for i in range(8):
            P(f"v_pk_add_f32 {V(x + 2 * i, 2)}, {V(x + 2 * i, 2)}, {V(tmp + 16 * p + 2 * i, 2)}")
    if L == 0:
        tile_out(x, 16, 24, 8, [], None)
        for i in range(16):
            P(f"v_accvgpr_write_b32 a{224 + i}, v{x + i}")
        P.add(publish(8, x1))
        P.add(tick("0.p5end"))
    else:
        for i in range(8):
            P(f"v_cvt_pk_bf16_f32 v{16 + i}, v{x + 2 * i}, v{x + 2 * i + 1}")
        P(f"buffer_store_dwordx4 {V(16)}, {x2}, {sOUT}, {t1} offen {OM}")
        P(f"buffer_store_dwordx4 {V(20)}, {x2}, {sOUT}, {t1} offen offset:32 {OM}")
        if PROF:
            P.need("stores")
            P.add(tick("1.final"))
            P.add(prof_dump())
```

```python
from k2_base import *
from k2_p1 import *

B1V, CC, CD_, AS4 = 48, 52, 56, 60
OM = OPT.get("OM", "").replace("_", " ")


def tile_out(x, pk, tmp, bit, pub, ini):
    XE = opt("XE", 1)
    if XE == 0:
        P.add(pub)
    for i in range(8):
        P(f"v_cvt_pk_bf16_f32 v{pk + i}, v{x + 2 * i}, v{x + 2 * i + 1}")
    sXB = sOUT if opt("RU", 0) >= 3 else sWS
    P.add(xstore(f"buffer_store_dwordx4 {V(pk)}, {vL16}, {sXB}, {t1} offen", bit, ini=ini))
    P.add(xstore(f"buffer_store_dwordx4 {V(pk + 4)}, {vL16}, {sXB}, {t1} offen offset:1024", bit))
    if XE == 1:
        P.add(pub)
    a, b = V(tmp, 2), V(tmp + 2, 2)
    P(f"v_pk_add_f32 {a}, {V(x, 2)}, {V(x + 2, 2)}")
    P(f"v_pk_mul_f32 {b}, {V(x, 2)}, {V(x, 2)}")
    for i in range(1, 8):
        if i >= 2:
            P(f"v_pk_add_f32 {a}, {a}, {V(x + 2 * i, 2)}")
        P(f"v_pk_fma_f32 {b}, {V(x + 2 * i, 2)}, {V(x + 2 * i, 2)}, {b}")
    P(f"v_add_f32 v{tmp}, v{tmp}, v{tmp + 1}")
    P(f"v_add_f32 v{tmp + 2}, v{tmp + 2}, v{tmp + 3}")
    P(f"v_permlane32_swap_b32 v{tmp}, v{tmp + 2}")
    P(f"v_add_f32 v{tmp}, v{tmp}, v{tmp + 2}")
    P.add(xstore(f"buffer_store_dword v{tmp}, {x2}, {sWS}, {t2} offen", bit))
    if XE == 2:
        P.add(pub)


def tile_addr(xo, so):
    return I([f"s_lshl_b32 {t2}, {sTP}, 4", f"s_add_u32 {t2}, {t2}, {sCT}", f"s_lshl_b32 {t1}, {t2}, 11", f"s_add_u32 {t1}, {t1}, {xo}",
              f"s_lshl_b32 {t2}, {t2}, 8", f"s_add_u32 {t2}, {t2}, {so}", f"v_lshlrev_b32 {x2}, 2, {vL}"])


def b1_loads():
    return I([f"v_and_b32 {x1}, 0x13, {vL}", f"v_bfe_u32 {x2}, {vL}, 2, 1", f"v_lshl_add_u32 {x1}, {x2}, 3, {x1}", f"v_bfe_u32 {x2}, {vL}, 3, 1",
              f"v_lshl_add_u32 {x1}, {x2}, 2, {x1}", f"v_lshlrev_b32 {x1}, 1, {x1}", f"s_lshl_b32 {t1}, {sM}, 8", f"s_cmp_ge_u32 {sW}, 2", f"s_cselect_b32 {t1}, {OOB}, {t1}"] +
             [f"buffer_load_ushort v{B1V + e}, {x1}, {sB1}, {t1} offen offset:{64 * e}" for e in range(4)])


def phase3n(L, late_rd):
    o = lambda n, d: opt(f"{n}_{L}", opt(n, d))
    a0, OF, WO = 16, 64, 128
    AB = [a0, 192, 208, 224]
    wa = [f"v{32 + i}" for i in range(5)]
    v4k = "v37"
    P.add(I([f"s_lshr_b32 {t3}, {sW}, 1", f"s_xor_b32 {t3}, {t3}, {sRR}", f"s_and_b32 {t3}, {t3}, 1", f"s_and_b32 {t4}, {sW}, 1", f"s_lshl_b32 {t4}, {t4}, 1",
             f"s_add_u32 {t3}, {t3}, {t4}", f"s_lshl_b32 {t4}, {sTP}, 2", f"s_add_u32 {t3}, {t3}, {t4}", f"s_lshl_b32 {t3}, {t3}, 13",
             f"s_add_u32 {t3}, {t3}, {LY(L) + O_O}", f"s_xor_b32 {t4}, {t3}, 0x8000", f"v_add_u32 {v4k}, 0x1000, {vL16}"]))
    if L == 0:
        P.add(I(late_rd))
        P.add(I(wo_reads(x0)))
        P.add(b1_loads())
        P.add(I([x for d in range(8) for x in (f"v_accvgpr_read_b32 {x2}, a{224 + d}", f"v_lshlrev_b32 v{a0 + 2 * d}, 16, {x2}", f"v_and_b32 v{a0 + 2 * d + 1}, 0xffff0000, {x2}")]))
    else:
        if opt("ABT", 1):
            P.add(I(wo_reads(x0)))
        P.add(I([f"v_accvgpr_read_b32 v{a0 + i}, a{224 + i}" for i in range(16)]))
    for i in range(5):
        n = i & 3 if i < 4 else 0
        hi = i == 3 or i == 4
        P.add(I([f"s_xor_b32 {u0}, {sW}, {n}", f"s_lshl_b32 {u0}, {u0}, {12 if hi else 13}", f"s_add_u32 {u0}, {u0}, {SCR3 if hi else SL + 4096 * max(0, n - 1)}",
                 f"v_add_u32 {wa[i]}, {u0}, {vL16}"]))
    P.add(tile_addr(LX(L) + X1_O, LX(L) + ST1_O))
    fill = (w1_items("AB") + w1_items("CD1")) if L == 0 else (w1_items("CD1", opt("DR", 0) & 4) if opt("C1P", 0) == 2 else [])
    if L and opt("ABT", 1):
        fill = w1_items("AB")
    if L == 0 or opt("ABT", 1):
        fill[0] = [need_ins("ds_any")] + fill[0]
    FE, FM = o("FE", 0), o("FM", 0)
    P.add(I(fill[:FE]))
    P.add(publish(16 * L + 2, x1, "o1"))
    P.add(tick(f"{L}.p2end"))
    def of(ks, tt): return OF + (ks * 2 + tt) * 4
    def oloads(h): return [f"buffer_load_dwordx4 {V(of(ks, tt))}, {v4k if ks >= 4 else vL16}, {sWS}, {t4 if tt else t3} offen offset:{(ks & 3) * 1024} sc1"
                           for ks in range(h, 8, 2) for tt in range(2)]
    def mf(ks, n):
        a = V(AB[n], 16)
        return f"{MF} {a}, {V(WO + (ks * 2 + (n & 1)) * 4)}, {V(of(ks, n >> 1))}, {a if (ks or n == 0) else 0}"
    P.add(poll_check(vPO, "v56", 16 * L + 1))
    P.add(tick(f"{L}.yck0"))
    P.add(I(oloads(0)))
    P.add(I(fill[FE:FM]))
    P.add(poll_issue(vPO, "v56"))
    P.add(barrier())
    P.add(tick(f"{L}.B3"))
    NT, NH0 = o("NT3", 2), o("NH0", 12)
    g = [mf(ks, n) for ks in (0, 2, 4, 6) + (1, 3, 5, 7)[:4 - NT] for n in range(4)]
    P.add(I(g[:NH0]))
    P.add(tick(f"{L}.ymf0"))
    P.add(poll_check(vPO, "v56", 16 * L + 2))
    P.add(tick(f"{L}.pollo"))
    P.add(I(oloads(1)))
    g = g[NH0:]
    wr = []
    for n in (3, 2, 1, 0):
        for e, ks in enumerate((1, 3, 5, 7)[4 - NT:]):
            g.append(mf(ks, n))
            if e >= 1 or NT == 1:
                k = (len(wr) + (NT - e) - 1) // (NT - e)
                g.append(wr[:k]); wr = wr[k:]
        if n:
            wr = [f"ds_write_b128 {wa[n]}, {V(AB[n] + 4 * j)} offset:{1024 * j}" for j in range(4)]
    P.add(I(spread(g, fill[max(FE, FM):], 0.0, 1.0)))
    P.add(tick(f"{L}.p3mm"))
    P.add(barrier())
    P.add(tick(f"{L}.yB4"))
    for j in range(12):
        P(f"ds_read_b128 {V(OF + 4 * j)}, {wa[0 if j < 8 else 4]} offset:{1024 * (j & 7 if j < 8 else j - 8)}")
    for p in range(3):
        for i in range(8):
            P(f"v_pk_add_f32 {V(a0 + 2 * i, 2)}, {V(a0 + 2 * i, 2)}, {V(OF + 16 * p + 2 * i, 2)}")
    tile_out(a0, OF + 16, OF + 24, 2 << (4 * L), [], None)
    P.add(tick(f"{L}.yst"))
    r4 = []
    if L == 0:
        d4, r4 = w2_round(4, x0)
        P.add(I(d4))
    elif o("CD2P", 1) == 0:
        P.add(I(w1_items("CD2")))
    for d in range(8):
        P(f"v_accvgpr_read_b32 {x1}, a{248 + d}")
        P(f"v_lshlrev_b32 v{OF}, 16, {x1}")
        P(f"v_and_b32 v{OF + 1}, 0xffff0000, {x1}")
        P(f"v_pk_add_f32 {V(a0 + 2 * d, 2)}, {V(a0 + 2 * d, 2)}, {V(OF, 2)}")
        P(f"v_accvgpr_write_b32 a{224 + 2 * d}, v{a0 + 2 * d}")
        P(f"v_accvgpr_write_b32 a{225 + 2 * d}, v{a0 + 2 * d + 1}")
    P.add(publish(16 * L + 3, x1))
    P.add(tick(f"{L}.p3end"))
    return r4


def phase3(L, late_rd):
    if P3N:
        return phase3n(L, late_rd)
    a0, a1, OF, WO = 16, 32, 64, 128
    vp, vc = "v53", "v54"
    P(f"s_and_b32 {t0}, {sW}, 1")
    P(f"s_lshl_b32 {t0}, {t0}, 14")
    P(f"v_add_u32 {x1}, {t0}, {vTP}")
    P(f"s_lshl_b32 {t3}, {sTP}, 15")
    P(f"s_add_u32 {t3}, {t3}, {t0}")
    P(f"s_add_u32 {t3}, {t3}, {LY(L) + O_O}")
    P(f"s_and_b32 {t4}, {sRR}, 1")
    P(f"s_lshl_b32 {t4}, {t4}, 13")
    P(f"s_add_u32 {t3}, {t3}, {t4}")
    P.add(barrier("wo"))
    P.add(tick(f"{L}.B3"))
    CD2E = opt("CD2E", 1)
    if L and CD2E:
        P.add(I(w1_items("CD2")))
    rd = [tr("v", WO + (ks * 2 + ct) * 4, x1, (ks >> 3) * 32768 + 2048 * (ks & 7) + 512 * ct) for ks in range(16) for ct in range(2)]
    PO1, PO2 = opt(f"PO1_{L}", opt("PO1", 6)), opt(f"PO2_{L}", opt("PO2", 14))
    def oloads():
        o = []
        for ks in range(16):
            if ks % 4 == 0:
                o.append(f"s_xor_b32 {t4}, {t3}, {4096 * (ks // 4)}")
            o.append(f"buffer_load_dwordx4 {V(OF + 4 * ks)}, {vL16}, {sWS}, {t4} offen offset:{(ks % 4) * 1024} sc1{ntm('O')}")
        return o
    def res(tmpv):
        if L:
            return [f"v_accvgpr_read_b32 v{a0 + i}, a{224 + i}" for i in range(16)]
        return [x for d in range(8) for x in (f"v_accvgpr_read_b32 {tmpv}, a{224 + d}", f"v_lshlrev_b32 v{a0 + 2 * d}, 16, {tmpv}", f"v_and_b32 v{a0 + 2 * d + 1}, 0xffff0000, {tmpv}")]
    P.add(I(rd[:PO1]))
    P.add(poll_issue(vPO, vp, 16 * L + 1))
    P.add(I(rd[PO1:PO2]))
    P.add(I(res(x2)))
    P.add(poll_check(vPO, vp, 16 * L + 1))
    P.add(tick(f"{L}.pollo"))
    if opt("OIL", 0):
        P.add(I(spread([I(x) for x in oloads()], rd[PO2:], opt("OI0", 10) / 100, opt("OI1", 100) / 100)))
    else:
        P.add(I(oloads()))
        if L and not CD2E:
            P.add(I(w1_items("CD2")))
        P.add(I(rd[PO2:]))
    r4 = []
    if L == 0:
        d4, r4 = w2_round(4, x0)
        P.add(I(late_rd))
        P.add(I(d4[:8]))
        P(f"v_and_b32 {x1}, 0x13, {vL}")
        P(f"v_bfe_u32 {x2}, {vL}, 2, 1")
        P(f"v_lshl_add_u32 {x1}, {x2}, 3, {x1}")
        P(f"v_bfe_u32 {x2}, {vL}, 3, 1")
        P(f"v_lshl_add_u32 {x1}, {x2}, 2, {x1}")
        P(f"v_lshlrev_b32 {x1}, 1, {x1}")
        P(f"s_lshl_b32 {t1}, {sM}, 8")
        P(f"s_cmp_ge_u32 {sW}, 2")
        P(f"s_cselect_b32 {t1}, {OOB}, {t1}")
        for e in range(4):
            P(f"buffer_load_ushort v{B1V + e}, {x1}, {sB1}, {t1} offen offset:{64 * e}")
        P.need("ds_any")
        P.add(I(d4[8:]))
    P(f"s_xor_b32 {t0}, {sW}, 1")
    P(f"s_lshl_b32 {t0}, {t0}, 12")
    P(f"s_add_u32 {t0}, {t0}, {SCR3}")
    P(f"v_add_u32 {x0 if L else 'v52'}, {t0}, {vL16}")
    vw = x0 if L else "v52"
    P.add(tile_addr(LX(L) + X1_O, LX(L) + ST1_O))
    P.add(barrier())
    P.add(tick(f"{L}.B3b"))
    back = P.label()
    P.put(back)
    def mf(ks, ct):
        a = V(a0 if ct == 0 else a1, 16)
        return f"{MF} {a}, {V(WO + (ks * 2 + ct) * 4)}, {V(OF + 4 * ks)}, {a if (ks or ct == 0) else 0}"
    NT = 4
    g = [[mf(ks, 1), mf(ks, 0)] for ks in range(16 - NT)] + [[mf(ks, 1)] for ks in range(16 - NT, 16)]
    fill = w1_items("AB") + (w1_items("CD1") if L == 0 else [])
    if EF & 1:
        for n, x in chain(vc, OF, 16):
            g[n].append(x)
    P.add(I(spread(g, fill, 0.0, 1.0)))
    if EF & 1:
        P.add(redo(vc, back, oloads() + res(x1)))
    for n, ks in enumerate(range(16 - NT, 16)):
        P(mf(ks, 0))
        if n >= 1:
            for j in ([n - 1] if n < NT - 1 else range(n - 1, 4)):
                P(f"ds_write_b128 {vw}, {V(a1 + 4 * j)} offset:{1024 * j}")
    P(f"v_xor_b32 {vw}, 0x1000, {vw}")
    P.add(tick(f"{L}.p3mm"))
    P.add(barrier())
    for j in range(4):
        P(f"ds_read_b128 {V(OF + 4 * j)}, {vw} offset:{1024 * j}")
    for i in range(8):
        P(f"v_pk_add_f32 {V(a0 + 2 * i, 2)}, {V(a0 + 2 * i, 2)}, {V(OF + 2 * i, 2)}")
    tile_out(a0, OF + 16, OF + 24, 2 << (4 * L), publish(16 * L + 3, x1, early=f"iX{L}") if EF & 2 else [], f"iX{L}")
    rs = [I([f"v_accvgpr_read_b32 {x1}, a{248 + d}", f"v_lshlrev_b32 v{OF}, 16, {x1}", f"v_and_b32 v{OF + 1}, 0xffff0000, {x1}",
             f"v_pk_add_f32 {V(a0 + 2 * d, 2)}, {V(a0 + 2 * d, 2)}, {V(OF, 2)}", f"v_accvgpr_write_b32 a{224 + 2 * d}, v{a0 + 2 * d}",
             f"v_accvgpr_write_b32 a{225 + 2 * d}, v{a0 + 2 * d + 1}"]) for d in range(8)]
    if L == 0 and opt("CSN", 0) >= 4:
        cs = [I([f"s_lshl_b32 {t0}, {sW}, 14", f"v_add_u32 v122, {t0}, {vTP}", f"s_lshl_b32 {t0}, {sW}, 13", f"v_add_u32 {x0}, {t0}, {vTP1}", need_ins("w1AB")])]
        cs += [tr("v", XF + 4 * j, "v122", 2048 * (j >> 1) + 512 * (j & 1)) for j in range(16)]
        cs += [[need_ins("w1CD1")] + tr("v", XF + 64 + 4 * j, x0, 2048 * (j >> 1) + 512 * (j & 1)) for j in range(8)]
        cs += [asel(AS4), table_addr("v123")]
        cs += [I(f"{MF16} {V(STV + 4 * (j & 1))}, {V(AS4)}, {V(XF + 4 * j)}, {V(STV + 4 * (j & 1)) if j >= 2 else 0}") for j in range(16)]
        cs += [I(f"{MF16} {V(CC + 4 * (j & 1))}, {V(AS4)}, {V(XF + 64 + 4 * j)}, {V(CC + 4 * (j & 1)) if j >= 2 else 0}") for j in range(8)]
        cs += table_write(STV, 3, "v123", f"v{B1V}") + table_write(STV + 4, 4, "v123", f"v{B1V + 1}")
        NP = opt("NP", 8)
        P.add(I(spread(r4 + cs[:NP], rs)))
        r4 = cs[NP:]
    else:
        P.add(I(rs))
    if not EF & 2:
        P.add(publish(16 * L + 3, x1))
    if opt("DS", 0) and PL >> (4 * L) & 2:
        assert L == 1
        P(f"buffer_store_dwordx4 {V(OF + 16)}, {vL16}, {sWS}, {t1} offen sc1")
        P(f"buffer_store_dwordx4 {V(OF + 20)}, {vL16}, {sWS}, {t1} offen offset:1024 sc1")
        P(f"buffer_store_dword v{OF + 24}, {x2}, {sWS}, {t2} offen sc1")
    P.add(tick(f"{L}.p3end"))
    return r4


def gelu(a, c0, c1, ir, tmp, so, tag, bit, pk=False, ini=None):
    res = []
    for g in range(4):
        if pk:
            xs = [V(a + 4 * g + 2 * e, 2) for e in range(2)]
            ts = [V(tmp + 2 * e, 2) for e in range(2)]
            bc = lambda r: f"v[{r[1:]}:{int(r[1:]) + 1}]"
            res += [f"v_pk_mul_f32 {t}, {x}, {x}" for x, t in zip(xs, ts)]
            res += [f"v_pk_fma_f32 {t}, {t}, {bc(c1)}, {bc(c0)} op_sel_hi:[1,0,0]" for t in ts]
            res += [f"v_pk_mul_f32 {t}, {t}, {x}" for x, t in zip(xs, ts)]
            res += [f"v_exp_f32 v{tmp + e}, v{tmp + e}" for e in range(4)]
            res += [f"v_pk_fma_f32 {t}, {t}, {bc(ir)}, {bc(ir)} op_sel_hi:[1,0,0]" for t in ts]
            res += [f"v_rcp_f32 v{tmp + e}, v{tmp + e}" for e in range(4)]
            res += [f"v_pk_mul_f32 {x}, {x}, {t}" for x, t in zip(xs, ts)]
        else:
            blk = []
            for e in range(4):
                x, t = f"v{a + 4 * g + e}", f"v{tmp + e}"
                blk.append([f"v_mul_f32 {t}, {x}, {x}", f"v_fma_f32 {t}, {t}, {c1}, {c0}", f"v_mul_f32 {t}, {t}, {x}",
                            f"v_exp_f32 {t}, {t}", f"v_fma_f32 {t}, {t}, {ir}, {ir}", f"v_rcp_f32 {t}, {t}", f"v_mul_f32 {x}, {x}, {t}"])
            for s in range(7):
                for e in range(4):
                    res.append(blk[e][s])
        for i in (2 * g, 2 * g + 1):
            res.append(f"v_cvt_pk_bf16_f32 v{a + i}, v{a + 2 * i}, v{a + 2 * i + 1}")
        if g & 1:
            s, off = so
            res.append(xstore(f"buffer_store_dwordx4 {V(a + 2 * (g - 1))}, {vL16}, {sWS}, {s} offen offset:{off + 1024 * (g >> 1)}", bit, tag, ini))
            if g == 3 and opt("DS", 0) & 2 and PL & bit:
                res += [f"buffer_store_dwordx4 {V(a + 4 * j)}, {vL16}, {sWS}, {s} offen offset:{off + 1024 * j} sc1" for j in range(2)]
    return [I(x) for x in res]


def phase45(L, r4):
    T = [16, 32, 48, 16]
    C0R, C1R, IRR, RR, GT = "v116", "v118", "v120", "v122", 124
    FB = 16 * L
    vtb = x2
    CSN = opt("CSN", 0) if L == 0 else 0
    CS5 = False
    if L == 0:
        if CSN < 4:
            P.add(I(r4))
        IM = opt("IM", 0)
        if IM:
            lid, ljn = P.label(), P.label()
            P(f"s_cmp_ge_u32 {sM}, 14")
            P(f"s_cbranch_scc1 {lid}")
            o = [lid + ":", f"s_bfe_u32 {u0}, s2, 0x20003", f"s_lshl_b32 {u0}, {u0}, 2", f"s_add_u32 {u0}, {u0}, {sW}", f"s_mul_i32 {u0}, {u0}, {4 * 3072}",
                 f"v_lshrrev_b32 {x0}, 4, {vL}", f"v_mul_u32_u24 {x0}, 3072, {x0}", f"v_and_b32 {x1}, 15, {vL}", f"v_lshl_add_u32 {x0}, {x1}, 7, {x0}",
                 f"s_mov_b32 {t3}, {OOB}", f"s_mov_b32 {t4}, {OOB}", f"v_add_u32 {vtb}, {TAB0 + 3072}, {vL16}"]
            for i in range(8):
                o += [f"s_add_u32 {u1}, {u0}, {64 * 3072 * ((2 * i) % 8 + (i >> 2))}", f"buffer_load_dword {x1}, {x0}, {sWQ}, {u1} offen offset:1024"]
            if IM > 1:
                o += [f"v_lshrrev_b32 {x0}, 3, {vL}", f"v_mul_u32_u24 {x0}, 3072, {x0}", f"v_and_b32 v16, 7, {vL}", f"v_lshl_add_u32 {x0}, v16, 7, {x0}", f"s_lshl_b32 {u0}, {u0}, 1"]
                for i in range(opt("IQ", 4)):
                    o += [f"s_add_u32 {u1}, {u0}, {128 * 3072 * i}", f"buffer_load_dword {x1}, {x0}, {sWQ}, {u1} offen"]
            if opt("CT", 0) & 2:
                lx = P.label()
                o += [f"s_lshl_b32 {u0}, {sW}, 12", f"v_and_b32 v16, 31, {vL}", f"v_lshl_add_u32 v16, v16, 7, {u0}", "v_min_u32 v16, L_p3_1-L_p1_1, v16",
                      "s_getpc_b64 s[96:97]", lx + ":", f"s_sub_u32 s96, s96, {lx}-L_p1_1", "s_subb_u32 s97, s97, 0", f"global_load_dword {x1}, v16, s[96:97]"]
            if CSN == 5:
                o += [f"s_lshl_b32 {u0}, {sW}, 13", f"v_add_u32 {x0}, {u0}, {vTP1}"] + table_addr("v123")
            if IM < 3:
                o += ["s_waitcnt vmcnt(0) lgkmcnt(0)", "s_barrier"] + tick("0.idle") + [f"s_branch {ljn}"]
                OUTL.extend(I(o))
            idl = o
        vtw = "v123"
        if CSN < 4:
            P.add(asel(AS4))
            P(f"s_lshl_b32 {t0}, {sW}, 14")
            P(f"v_add_u32 {'v122' if CSN else x1}, {t0}, {vTP}")
            P(f"s_lshl_b32 {t0}, {sW}, 13")
            P(f"v_add_u32 {x0}, {t0}, {vTP1}")
        if CSN >= 4:
            P.add(I(r4))
            P.add(barrier())
            if CSN == 5:
                T[2] = STV
            CS5, CSN = CSN == 5, 0
        elif CSN:
            P.add(table_addr(vtw))
            P.add(barrier("w1AB"))
            if CSN == 1:
                P.add(I(w1_items("CD2")))
        else:
            P.add(table_addr(x2))
            P.need("w1AB")
            for j in range(16):
                P.add(tr("v", XF + 4 * j, x1, 2048 * (j >> 1) + 512 * (j & 1)))
            P.need("w1CD1")
            for j in range(8):
                P.add(tr("v", XF + 64 + 4 * j, x0, 2048 * (j >> 1) + 512 * (j & 1)))
            for j in range(16):
                c = V(16 + 4 * (j & 1))
                P(f"{MF16} {c}, {V(AS4)}, {V(XF + 4 * j)}, {c if j >= 2 else 0}")
            for j in range(8):
                c = V(CC + 4 * (j & 1))
                P(f"{MF16} {c}, {V(AS4)}, {V(XF + 64 + 4 * j)}, {c if j >= 2 else 0}")
            P.add(I(table_write(16, 3, x2, f"v{B1V}") + table_write(20, 4, x2, f"v{B1V + 1}")))
            P.add(barrier())
            P(f"v_mov_b32 {vtw}, {x2}")
    else:
        P.add(barrier("w1AB", "w1CD1", *([] if P3N else ["w1CD2"])))
    P(f"v_add_u32 {vtb}, {TAB0 + 3072}, {vL16}")
    D = 3
    def rdA(t):
        if t < 32:
            return trp(RING + 8 * (t % 4), 2048 * t) + trp(RING + 8 * (t % 4) + 4, 2048 * t + 512)
        if t == 32:
            return I([f"ds_read_b128 {V(RING + 8 * (t % 4) + 4 * e)}, {vtb} offset:{1024 * e}" for e in range(2)])
        return []
    N3 = opt("N3", 0) >> L & 1
    D3 = opt("D3", 7)
    def rdF(f):
        t, e = divmod(f, 3)
        n = RING + 4 * (f % 8)
        if t < 32:
            return trp(n, 2048 * t + 512 * e) if e < 2 else trp(n, R2 + 2048 * t)
        if t == 32:
            return I(f"ds_read_b128 {V(n)}, {vtb} offset:{1024 * e}")
        return []
    back, vc = P.label(), (f"v{GT}" if EF & 2 else None)
    P.put(back)
    for t in range(D3 if N3 else D):
        P.add(rdF(t) if N3 else rdA(t))
    P(f"s_lshl_b32 {t3}, {sT}, 17")
    P(f"s_lshl_b32 {t4}, {sM}, 13")
    P(f"s_add_u32 {t3}, {t3}, {t4}")
    P(f"s_add_u32 {t3}, {t3}, {LY(L) + H_O}")
    P.add(I(idle(t3)))
    P(f"s_add_u32 {t4}, {t3}, 4096")
    xs, xi = x_loads(LX(L) + X1_O, LX(L) + ST1_O, STV)
    NB = opt("NB", 14)
    P.add(xs)
    P.add(I(idle(t1, t2)))
    P.add(tick(f"{L}.B4b"))
    P.add(poll(vPX, x1, FB + 3))
    P.add(tick(f"{L}.pollx1"))
    if CSN:
        assert NB <= 16
        csr = [tr("v", XF + 64 + 4 * j, "v122", 2048 * (j >> 1) + 512 * (j & 1)) for j in range(16)]
        P.add(I(spread(xi[:NB], csr)))
        if CSN == 2:
            P.add(I(w1_items("CD2")))
        for j in range(16):
            c = V(STV + 4 * (j & 1))
            P(f"{MF16} {c}, {V(AS4)}, {V(XF + 64 + 4 * j)}, {c if j >= 2 else 0}")
        tw = table_write(STV, 3, vtw, f"v{B1V}") + table_write(STV + 4, 4, vtw, f"v{B1V + 1}", "tw1")
    else:
        P.add(I(xi[:NB]))
    xi = xi[NB:] + (w1_items("CD2") if (L == 0 and CSN in (0, 3)) or (L and P3N and opt("CD2P", 1) == 1) else [])
    if L == 0 and opt("TKV", 0):
        xi += touch_qkv("v117", "v119")
    if L == 0 and opt("H3B", 0):
        xi += [help3("v117", "v119", u0)]
    xi += sp_touch(2, x1, x1)
    gA = []
    for k in range(33):
        xb = V(XF + 4 * k) if k < 32 else V(EX)
        if N3:
            gA.append(sum((rdF(3 * k + e + D3) + I(f"{MF} {V(T[e], 16)}, {V(RING + 4 * ((3 * k + e) % 8))}, {xb}, {V(T[e], 16) if k else 0}") for e in range(3)), []))
            continue
        gA.append(rdA(k + D) + I([f"{MF} {V(T[e], 16)}, {V(RING + 8 * (k % 4) + 4 * e)}, {xb}, {V(T[e], 16) if k else 0}" for e in range(2)]))
    s = [f"v{STV + i}" for i in range(4)]
    C0 = -2.0 * LOG2E * 0.7978845608028654
    fill = stats_sum(STV, vc) + stats_finish(s[0], s[1], s[2], s[3], EX, True, RR, IRR)
    fill += [I(x) for x in [f"v_mul_f32 {C0R}, {fc(C0)}, {RR}", f"v_mul_f32 {C1R}, {RR}, {RR}", f"v_mul_f32 {C1R}, {C1R}, {C0R}",
                            f"v_mul_f32 {C1R}, {fc(0.044715)}, {C1R}"]]
    for k in range(0, 32, 4):
        gA[k] = gA[k] + tick(f"{L}.zA{k}")
    if CSN:
        gA[0] = I(tw[:7]) + gA[0] + I(tw[7:])
        CR = [112, 116, 124]
        ncd = 8 if CSN == 3 else 16
        def crd(j): return I([need_ins("w1CD1" if j < 8 else "w1CD2")] + tr("v", CR[j % 3], x0, 32768 * (j >> 3) + 2048 * ((j >> 1) & 3) + 512 * (j & 1))) if j < ncd else []
        for j in range(ncd + 2):
            c = V(CC + 4 * (j & 1))
            gA[j] = gA[j] + ((I(f"{MF16} {c}, {V(AS4)}, {V(CR[(j - 2) % 3])}, {c if j >= 4 else 0}") if j >= 2 else []) + crd(j))
        if CSN != 3:
            tw = table_write(CC, 5, vtw, f"v{B1V + 2}") + table_write(CD_, 6, vtw, f"v{B1V + 3}", "tw2")
            for j in range(7):
                gA[ncd + 3 + j] += I(tw[2 * j:2 * j + 2])
        gA[opt("BAP", 20)] += I([need_ins("tw1", "w1CD1", *([] if CSN == 3 else ["w1CD2"])), "s_barrier"])
    attach(gA, xi)
    if opt("WB", 0) >> L & 1:
        lsk = P.label()
        gA[opt("WBP", 24)] += I([f"s_lshl_b32 {u0}, {sM}, 2", f"s_or_b32 {u0}, {u0}, {sW}"] + ([f"s_lshl_b32 {u0}, {u0}, 1", f"s_and_b32 {u1}, {sC}, 1", f"s_or_b32 {u0}, {u0}, {u1}"] if opt("WB1", 1) else []) +
                                [f"s_cmp_lg_u32 {u0}, {120 if opt('WB1', 1) else 60}", f"s_cbranch_scc1 {lsk}", "buffer_wbl2 sc1", lsk + ":"])
    if vc:
        for n, x in chain(vc, XF, 32):
            gA[n] += I(x)
    P.add(weave(gA, [(opt("XSP", 16) + 2, x) for x in fill] + [(len(xi), x) for x in inits("Bb"[L], STV + 8)]))
    if vc:
        P.add(redo(vc, back))
    P.add(tick(f"{L}.pA"))
    if (opt("N45", 0) >> L & 1) or N3:
        return tail45(L, vtb, vtw if L == 0 else None, N3)
    D1 = 6
    def rd1(e, t):
        if t < 32:
            return trp(RING + 4 * (t % 8), R2 + 2048 * t + 512 * e)
        if t == 32:
            return I(f"ds_read_b128 {V(RING + 4 * (t % 8))}, {vtb} offset:{2048 + 1024 * e}")
        if e == 0 and t - 34 >= 0:
            pass
        return []
    def g1(e, off):
        def rd(t):
            n = RING + 4 * ((t + off) % 8)
            if t < 32:
                return trp(n, R2 + 2048 * t + 512 * e)
            if t == 32:
                return I(f"ds_read_b128 {V(n)}, {vtb} offset:{2048 + 1024 * e}")
            if e == 0:
                return trp(n, R2 + 2048 * (t - 33) + 512)
            return []
        a = V(T[2 + e], 16)
        out = []
        for k in range(33):
            xb = V(XF + 4 * k) if k < 32 else V(EX)
            it = rd(k + D1)
            if k % 2 == 0 and k + 1 < 33:
                it = it + [need_ins(("v", RING + 4 * ((k + 1 + off) % 8) + 3))]
            out.append(it + I(f"{MF} {a}, {V(RING + 4 * ((k + off) % 8))}, {xb}, {a if k else 0}"))
        return out, [rd(t) for t in range(D1)]
    gB, preB = g1(0, 0)
    gC, _ = g1(1, 33)
    PUBD = opt("PUBD", 14)
    GHI = opt("GHI", 90) / 100
    def G(i, pk=False):
        o = gelu(T[i], C0R, C1R, IRR, GT, (t3 if i < 2 else t4, 2048 * (i & 1)), f"h{i}", 4 << (4 * L), pk, f"iH{L}{i}")
        if EF & 4:
            o.insert(len(o) - opt("HE", 0), tick(f"{L}.zpb{i}") + publish(FB + 4 + i, x1, f"h{i}", f"iH{L}{i}"))
        return o
    def at(groups, n, item):
        groups[n] = groups[n] + I(item)
    if L == 0:
        cs = [I([need_ins("w1CD2")] + tr("v", STV + 4 * (j & 3), x0, 32768 + 2048 * (j >> 1) + 512 * (j & 1))) for j in range(4)]
        for j in range(8):
            c = V(CC + 4 * (j & 1))
            cs.append(I(f"{MF16} {c}, {V(AS4)}, {V(STV + 4 * (j & 3))}, {c}"))
            if j + 4 < 8:
                cs.append(tr("v", STV + 4 * (j & 3), x0, 32768 + 2048 * ((j + 4) >> 1) + 512 * (j & 1)))
        cs += [[]] + table_write(CC, 5, vtw, f"v{B1V + 2}") + table_write(CD_, 6, vtw, f"v{B1V + 3}")
        if CS5:
            P.add(I(spread(G(0, True), preB, 0.5, 0.95)))
            C2 = opt("C2P", 5)
            LA = opt("C2L", 4)
            for j in range(8):
                at(gB, C2 + j, [need_ins("w1CD2")] + tr("v", 16 + 4 * (j & 3), x0, 32768 + 2048 * (j >> 1) + 512 * (j & 1)))
            for j in range(8):
                c = V(CC + 4 * (j & 1))
                gB[C2 + j + LA] = I(f"{MF16} {c}, {V(AS4)}, {V(16 + 4 * (j & 3))}, {c}") + gB[C2 + j + LA]
            gB[C2 + 1] = I("s_barrier") + gB[C2 + 1]
            tw = table_write(CC, 5, vtw, f"v{B1V + 2}") + table_write(CD_, 6, vtw, f"v{B1V + 3}", "tw2")
            for j in range(5):
                at(gB, C2 + 8 + LA + j, tw[3 * j:3 * j + 3])
            assert C2 + 1 <= 10 and C2 + 8 + LA + 4 < 25 and LA <= 4 and opt("KV0", 0) > C2
            at(gB, 25, [need_ins("tw2"), "s_barrier"])
        elif CSN in (1, 2):
            P.add(I(spread(G(0, True), preB, 0.5, 0.95)))
            P.add(I([need_ins("tw2"), "s_barrier"]))
        else:
            P.add(I(spread(G(0), cs + preB, 0.1, 0.95)))
            P.add(barrier())
        if 0 < IM < 3:
            P.put(ljn)
        kv = wkv_items()
        if not opt("KV0", 0):
            for j in range(8):
                at(gB, 1 + j, kv[j]); at(gC, 1 + j, kv[8 + j])
    else:
        P.add(I(spread(G(0, True), preB, 0.5, 0.95)))
        if P3N:
            at(gB, opt("B5P", 4), [need_ins("w1CD2"), "s_barrier"])
    P.add(tick(f"{L}.G0"))
    ACC = [A(224, 16), V(32, 16), V(48, 16), V(240, 16)]
    def hf(s, i, tt): return XF + 4 * (14 * (s & 1) + 2 * i + tt)
    def hloads(s):
        out = []
        for i in range(7):
            for tt in range(2):
                out.append(I([f"s_add_u32 {u0}, {t5 if tt == 0 else d3}, {(8 * i + 2 * s) * 1024}",
                              f"buffer_load_dwordx4 {V(hf(s, i, tt))}, {vL16}, {sWS}, {u0} offen sc1{ntm('H')}"]))
        return out
    def mf(s, i, n):
        tt, ct = n >> 1, n & 1
        a = ACC[n]
        return f"{MF} {a}, {A(((7 * s + i) * 2 + ct) * 4)}, {V(hf(s, i, tt))}, {a if (s or i or n == 0) else 0}"
    def hchk(s, i):
        if not EF & 4:
            return []
        ls, lr = P.label(), P.label()
        c = [f"v_cmp_u_f32 vcc, v{hf(s, i, 0)}, v{hf(s, i, 1)}", f"s_cbranch_vccnz {ls}"]
        OUTL.extend(I([ls + ":", f"s_cmp_eq_u32 {sRT}, 0", f"s_cbranch_scc1 {lr}", f"s_sub_u32 {sRT}, {sRT}, 1"] + hloads(s)[2 * i:2 * i + 2] + c + [f"s_branch {lr}"]))
        return I(c + [lr + ":"])
    def gS(s, ni=7): return [(hchk(s, i) if n == 0 else []) + I(mf(s, i, n)) for i in range(ni) for n in range(4)]
    hb = I([f"s_lshr_b32 {u0}, {sW}, 1", f"s_mul_i32 {u0}, {u0}, {56 * 1024}", f"s_and_b32 {u1}, {sW}, 1", f"s_lshl_b32 {u1}, {u1}, 10",
            f"s_add_u32 {u0}, {u0}, {u1}", f"s_add_u32 {u0}, {u0}, {LY(L) + H_O}", f"s_lshl_b32 {t5}, {sTP}, 17", f"s_xor_b32 {d3}, {t5}, 0x20000",
            f"s_add_u32 {t5}, {t5}, {u0}", f"s_add_u32 {d3}, {d3}, {u0}"])
    for n, x in enumerate(hb):
        at(gB, 16 + n, x)
    DEF = opt("DEF", 0)
    NT = opt("NT5", 2)
    if DEF == 1:
        assert not EF & 4
        st = gB + gC + gS(0) + gS(1) + [I(mf(2, i, n)) for i in range(7) for n in (1, 2, 3)] + [I(mf(3, i, n)) for i in range(7 - NT) for n in (1, 2, 3)]
    else:
        st = gB + gC + gS(0) + gS(1) + gS(2)
    CK = [opt(f"CK{i}", ((41, 66, 96, 124), (33, 48, 80, 110))[EF >> 2 & 1][i]) for i in range(4)]
    PB = [opt("PB0", 14), opt("PB1", 47), opt("PB2", 78), opt("PB3", 108)]
    PD = opt("PD", 12)
    for s in range(4):
        if not EF & 4:
            at(st, PB[s], tick(f"{L}.zpb{s}") + publish(FB + 4 + s, x1, f"h{s}") + tick(f"{L}.zPB{s}"))
        at(st, CK[s] - PD, poll_issue(vPH, x0, FB + 4 + s))
        at(st, CK[s], tick(f"{L}.zck{s}") + poll_check(vPH, x0, FB + 4 + s) + tick(f"{L}.zCK{s}"))
        n = CK[s] + 1
        hl = list(enumerate(hloads(s)))
        if DEF == 2 and s == 3:
            hl = hl[1::2] + hl[0::2]
        for j, (q, x) in enumerate(hl):
            lo = {0: 33 + j, 1: 33 + 14 + j}.get(s, 66 + 28 * (s - 2) + 4 * (q >> 1) + 3)
            n = max(n, lo)
            at(st, n, x)
            assert DEF != 1 or s < 2 or n < 122 + 21 * (s - 2) + 3 * (j >> 1)
            n += 1 if j < opt(f"HBU{s}", opt("HBU", 6)) else opt("HST", 2)
        assert n <= len(st) + 1
    at(st, opt("B6", 110), barrier() + tick(f"{L}.zB6"))
    if L == 0 and opt("KV0", 0):
        for j in range(16):
            at(st, opt("KV0", 0) + j * opt("KVS", 10) // 10, kv[j])
    if L == 0 and opt("WQE", 0):
        assert opt("WQE", 0) > opt("B6", 110)
        for j, x in enumerate(wq_items([2])):
            at(st, opt("WQE", 0) + j * opt("WQS", 1), (I(f"s_sub_u32 {d1}, {d1}, 1024") if j == 0 else []) + x)
    P.add(I(spread(st[:33], G(1, opt("GPK", 0) & 1), 0.03, GHI)))
    P.add(tick(f"{L}.pB"))
    P.add(I(spread(st[33:66], G(2, opt("GPK", 0) & 2), 0.03, GHI)))
    P.add(tick(f"{L}.pC"))
    if L == 0 and IM == 3:
        assert CK[1] >= 66 and CK[1] - PD < 66 and opt("KV0", 0) + 15 * opt("KVS", 10) // 10 < 66
        kvi = wkv_items()
        hb2 = I([x.text for x in hb])
        idl += ["s_waitcnt lgkmcnt(0)", "s_barrier"] + hb2 + poll(vPH, x0, FB + 4) + tick("0.idle") + hloads(0) + poll_issue(vPH, x0, FB + 5) + kvi + [f"s_branch {ljn}"]
        OUTL.extend(I(idl))
        P.put(ljn)
    P.add(weave(st[66:94], [(1, x) for x in G(3, opt("GPK", 0) & 4)], slack=0))
    P.add(tick(f"{L}.S0"))
    P.add(I(st[94:122]))
    P.add(tick(f"{L}.S1"))
    x, tmp = 64, 80
    wa = ["v16", "v17", "v18", "v19"]
    pre = []
    for i in range(4):
        pre.append(I([f"s_xor_b32 {u0}, {sW}, {i}", f"s_mul_i32 {u0}, {u0}, 12288", f"s_add_u32 {u0}, {u0}, {SL + 4096 * max(0, i - 1)}",
                      f"v_add_u32 {wa[i]}, {u0}, {vL16}"]))
    if L == 0:
        pre.append(tile_addr(LX(1) + XIN_O, LX(1) + ST2_O))
    else:
        pre.append(I([f"v_and_b32 {x2}, 31, {vL}", f"v_lshrrev_b32 {x1}, 5, {vL}", f"v_lshlrev_b32 {x2}, 10, {x2}", f"v_lshl_add_u32 {x2}, {x1}, 4, {x2}",
                      f"s_lshl_b32 {t1}, {sTP}, 15", f"s_lshl_b32 {t2}, {sCT}, 6", f"s_add_u32 {t1}, {t1}, {t2}"]))
    base = [0, 32, 48, 240]
    if DEF == 2:
        for n, it in enumerate(pre):
            at(st, 140 + n, it)
        P.add(I(st[122:150]))
        P.add(tick(f"{L}.S2"))
        def wr(n): return [I(f"ds_write_b128 {wa[n]}, {V(base[n] + 4 * j)} offset:{1024 * j}") for j in range(4)]
        def rd(p): return [I(f"ds_read_b128 {V(tmp + 16 * p + 4 * j)}, {wa[0]} offset:{4096 * p + 1024 * j}") for j in range(4)]
        def ad(d, a, b): return [I(f"v_pk_add_f32 {V(d + 2 * i, 2)}, {V(a + 2 * i, 2)}, {V(b + 2 * i, 2)}") for i in range(8)]
        g = [I(mf(3, i, n)) for i in range(7) for n in (3, 2)]
        for j in range(4):
            g[1 + j] += I([f"v_accvgpr_read_b32 v{x + i}, a{224 + i}" for i in range(4 * j, 4 * j + 4)])
        P.add(I(g))
        g = [I(mf(3, i, 1) if n else f"{MF} {V(x, 16)}, {A((21 + i) * 8)}, {V(hf(3, i, 0))}, {V(x, 16)}") for i in range(7) for n in (1, 0)]
        W0, BA = opt("W0", 0), opt("BA", 6)
        attach(g, wr(3) + wr(2), W0, opt("WP", 4))
        g[BA] += barrier() + I(rd(1) + rd(2))
        attach(g, ad(tmp + 16, tmp + 16, tmp + 32), opt("AP", 10), 4)
        P.add(I(g + wr(1) + ad(x, x, tmp + 16)))
        P.add(tick(f"{L}.S3"))
        P.add(barrier(*(["wkv"] if L == 0 else [])))
        P.add(I(rd(0) + ad(x, x, tmp)))
    elif DEF:
        for n, it in enumerate(pre + [I([f"v_accvgpr_read_b32 v{x + i}, a{224 + i}" for i in range(j, j + 4)]) for j in range(0, 16, 4)]):
            at(st, 143 + n, it)
        P.add(I(st[122:143]))
        P.add(tick(f"{L}.S2"))
        own = [I(f"{MF} {V(x, 16)}, {A((7 * s + i) * 8)}, {V(hf(s, i, 0))}, {V(x, 16)}") for s in (2, 3) for i in range(7)]
        g, wr = st[143:], []
        for n in (3, 2, 1, 0):
            for e, i in enumerate(range(7 - NT, 7)):
                g.append(I(mf(3, i, n)) if n else own.pop(0))
                if e >= 1 or NT == 1:
                    k = (len(wr) + (NT - e) - 1) // (NT - e)
                    g.append(I(wr[:k])); wr = wr[k:]
            if n:
                wr = [f"ds_write_b128 {wa[n]}, {V(base[n] + 4 * j)} offset:{1024 * j}" for j in range(4)]
        K1 = opt("K1", 3)
        P.add(I(g + own[:K1]))
        own = own[K1:]
        P.add(tick(f"{L}.S3"))
        P.add(barrier(*(["wkv"] if L == 0 else [])))
        order = [j + 4 * p for j in range(4) for p in range(3)]
        rd = [I(f"ds_read_b128 {V(tmp + 4 * j)}, {wa[0]} offset:{1024 * j}") for j in order]
        ad = [I([f"v_pk_add_f32 {V(tmp + 2 * i, 2)}, {V(tmp + 2 * i, 2)}, {V(tmp + 16 * p + 2 * i, 2)}" for p in (1, 2) for i in (2 * j, 2 * j + 1)]) for j in range(4)]
        RP = opt("RP", 4)
        for n in range(0, 12, RP):
            P.add(I(rd[n:n + RP]))
            P.add(own.pop(0))
        assert len(own) >= 4
        while len(own) > 4:
            P.add(own.pop(0))
        for j in range(4):
            P.add(own.pop(0))
            P.add(ad[j])
        for i in range(8):
            P(f"v_pk_add_f32 {V(x + 2 * i, 2)}, {V(x + 2 * i, 2)}, {V(tmp + 2 * i, 2)}")
    else:
        P.add(I(st[122:150]))
        P.add(tick(f"{L}.S2"))
        NT = opt("NT5", 2)
        wa = ["v16", "v17", "v18", "v19"]
        pre = []
        for i in range(4):
            pre.append(I([f"s_xor_b32 {u0}, {sW}, {i}", f"s_mul_i32 {u0}, {u0}, 12288", f"s_add_u32 {u0}, {u0}, {SL + 4096 * max(0, i - 1)}",
                          f"v_add_u32 {wa[i]}, {u0}, {vL16}"]))
        if L == 0:
            pre.append(tile_addr(LX(1) + XIN_O, LX(1) + ST2_O))
        else:
            pre.append(I([f"v_and_b32 {x2}, 31, {vL}", f"v_lshrrev_b32 {x1}, 5, {vL}", f"v_lshlrev_b32 {x2}, 10, {x2}", f"v_lshl_add_u32 {x2}, {x1}, 4, {x2}",
                          f"s_lshl_b32 {t1}, {sTP}, 15", f"s_lshl_b32 {t2}, {sCT}, 6", f"s_add_u32 {t1}, {t1}, {t2}"]))
        P.add(I(pre))
        g = gS(3, 7 - NT)
        if L == 0:
            attach(g, inits("C", RING), 1, 1)
            if opt("WQ3", 0):
                wq = wq_items([2])
                wq[0] = I(f"s_sub_u32 {d1}, {d1}, 1024") + wq[0]
                attach(g, wq, opt("WQ3", 0) - 1, 1)
        base = [0, 32, 48, 240]
        wr = []
        for n in (3, 2, 1, 0):
            for e, i in enumerate(range(7 - NT, 7)):
                g.append((hchk(3, i) if n == 3 else []) + I(mf(3, i, n)))
                if e >= 1 or NT == 1:
                    k = (len(wr) + (NT - e) - 1) // (NT - e)
                    g.append(I(wr[:k])); wr = wr[k:]
            if n:
                wr = [f"ds_write_b128 {wa[n]}, {V(base[n] + 4 * j)} offset:{1024 * j}" for j in range(4)]
        P.add(I(g))
        x, tmp = 64, 80
        for i in range(16):
            P(f"v_accvgpr_read_b32 v{x + i}, a{224 + i}")
        P.add(tick(f"{L}.S3"))
        P.add(barrier(*(["wkv"] if L == 0 else [])))
        for j in range(12):
            P(f"ds_read_b128 {V(tmp + 4 * j)}, {wa[0]} offset:{1024 * j}")
        for p in range(3):
            for i in range(8):
                P(f"v_pk_add_f32 {V(x + 2 * i, 2)}, {V(x + 2 * i, 2)}, {V(tmp + 16 * p + 2 * i, 2)}")
    if L == 0:
        tile_out(x, 16, 24, 8, publish(8, x1, early="iY0") if EF & 8 else [], "iY0")
        for i in range(16):
            P(f"v_accvgpr_write_b32 a{224 + i}, v{x + i}")
        if not EF & 8:
            P.add(publish(8, x1))
        P.add(tick("0.p5end"))
    else:
        for i in range(8):
            P(f"v_cvt_pk_bf16_f32 v{16 + i}, v{x + 2 * i}, v{x + 2 * i + 1}")
        P(f"buffer_store_dwordx4 {V(16)}, {x2}, {sOUT}, {t1} offen {OM}")
        P(f"buffer_store_dwordx4 {V(20)}, {x2}, {sOUT}, {t1} offen offset:32 {OM}")
        if PROF:
            P.need("stores")
            P.add(tick("1.final"))
            P.add(prof_dump())


def tail45(L, vtb, vtw, N3=0):
    o = lambda n, d: opt(f"{n}_{L}", opt(n, d))
    G0X, G2X, G3X = (1 if L == 0 else o("G0X", 1)), o("G2X", 1), o("G3X", N3)
    T = [16, 32, 48, 16 if G0X else STV]
    C0R, C1R, IRR, RR, GT = "v116", "v118", "v120", "v122", 124
    FB, D = 16 * L, 3
    def rd(t):
        n = RING + 8 * (t % 4)
        if t < 32:
            return trp(n, R2 + 2048 * t) + trp(n + 4, R2 + 2048 * t + 512)
        if t == 32:
            return I([f"ds_read_b128 {V(n + 4 * e)}, {vtb} offset:{2048 + 1024 * e}" for e in range(2)])
        return []
    gBC = []
    for k in range(33):
        xb = V(XF + 4 * k) if k < 32 else V(EX)
        r = rd(k + D)
        for e in range(2):
            gBC.append(I(f"{MF} {V(T[2 + e], 16)}, {V(RING + 8 * (k % 4) + 4 * e)}, {xb}, {V(T[2 + e], 16) if k else 0}") + r[len(r) // 2 * e:len(r) // 2 * (e + 1)])
    pre = [rd(t) for t in range(D)]
    if N3:
        D = 6
        def rd(t):
            n = RING + 4 * (t % 8)
            if t < 32:
                return trp(n, R2 + 2048 * t + 512)
            return I(f"ds_read_b128 {V(n)}, {vtb} offset:3072") if t == 32 else []
        gBC = []
        for k in range(33):
            xb = V(XF + 4 * k) if k < 32 else V(EX)
            it = rd(k + D)
            if k % 2 == 0 and k + 1 < 33:
                it = it + [need_ins(("v", RING + 4 * ((k + 1) % 8) + 3))]
            gBC.append(it + I(f"{MF} {V(T[3], 16)}, {V(RING + 4 * (k % 8))}, {xb}, {V(T[3], 16) if k else 0}"))
        pre = [rd(t) for t in range(D)]
    NB_ = len(gBC)
    def G(i, pk=False):
        return gelu(T[i], C0R, C1R, IRR, GT, (t3 if i < 2 else t4, 2048 * (i & 1)), f"h{i}", 4 << (4 * L), pk)
    def at(groups, n, item):
        groups[n] = groups[n] + I(item)
    kv = []
    if L == 0:
        cs = [I([need_ins("w1CD2")] + tr("v", STV + 4 * (j & 3), x0, 32768 + 2048 * (j >> 1) + 512 * (j & 1))) for j in range(4)]
        for j in range(8):
            c = V(CC + 4 * (j & 1))
            cs.append(I(f"{MF16} {c}, {V(AS4)}, {V(STV + 4 * (j & 3))}, {c}"))
            if j + 4 < 8:
                cs.append(tr("v", STV + 4 * (j & 3), x0, 32768 + 2048 * ((j + 4) >> 1) + 512 * (j & 1)))
        cs += [[]] + table_write(CC, 5, vtw, f"v{B1V + 2}") + table_write(CD_, 6, vtw, f"v{B1V + 3}")
        P.add(I(spread(G(0), cs + pre, 0.1, 0.95)))
        P.add(barrier())
        kv = wkv_items()
    elif G0X:
        P.add(I(spread(G(0, True), pre, 0.5, 0.95)))
    else:
        P.add(I(pre))
    P.add(tick(f"{L}.G0"))
    AB = [0, 32, RING, RING + 16]
    ACC = [A(224, 16)] + [V(b, 16) for b in AB[1:]]
    NR = 32
    def hf(s, i, tt): return XF + 4 * ((14 * s + 2 * i + tt) % NR)
    def hloads(s):
        return [I([f"s_add_u32 {u0}, {t5 if tt == 0 else d3}, {(8 * i + 2 * s) * 1024}",
                   f"buffer_load_dwordx4 {V(hf(s, i, tt))}, {vL16}, {sWS}, {u0} offen sc1"]) for i in range(7) for tt in range(2)]
    def mf(s, i, n):
        tt, ct = n >> 1, n & 1
        a = ACC[n]
        return f"{MF} {a}, {A(((7 * s + i) * 2 + ct) * 4)}, {V(hf(s, i, tt))}, {a if (s or i or n == 0) else 0}"
    def gS(s, ni=7): return [I(mf(s, i, n)) for i in range(ni) for n in range(4)]
    hb = I([f"s_lshr_b32 {u0}, {sW}, 1", f"s_mul_i32 {u0}, {u0}, {56 * 1024}", f"s_and_b32 {u1}, {sW}, 1", f"s_lshl_b32 {u1}, {u1}, 10",
            f"s_add_u32 {u0}, {u0}, {u1}", f"s_add_u32 {u0}, {u0}, {LY(L) + H_O}", f"s_lshl_b32 {t5}, {sTP}, 17", f"s_xor_b32 {d3}, {t5}, 0x20000",
            f"s_add_u32 {t5}, {t5}, {u0}", f"s_add_u32 {d3}, {d3}, {u0}"])
    for n in range(0, 10, 2):
        at(gBC, 1 + n, hb[n:n + 2])
    gx = []
    for i, x in ((2, G2X), (3, G3X)):
        if x:
            g = G(i, True)
            gx += [I(g[len(g) * n // 10:len(g) * (n + 1) // 10]) for n in range(10)]
    NT = opt("NT5", 2)
    S0 = NB_ + len(gx)
    st = gBC + gx + gS(0) + gS(1) + gS(2) + gS(3, 7 - NT)
    def pos(p): return p if p < 100 else (NB_ + p - 100 if p < 200 else S0 + p - 200)
    PB = [pos(o(f"PB{i}", ((18, 58, 216, 246), (14, 109, 200, 218))[N3][i])) for i in range(4)]
    PI = [pos(o(f"PI{i}", ((30, 103, 228, 256), (27, 115, 212, 232))[N3][i])) for i in range(4)]
    CK = [pos(o(f"CK{i}", ((42, 202, 240, 268), (32, 119, 220, 240))[N3][i])) for i in range(4)]
    for s in range(4):
        at(st, PB[s], tick(f"{L}.zpb{s}") + publish(FB + 4 + s, x1, f"h{s}") + tick(f"{L}.zPB{s}"))
        at(st, PI[s], poll_issue(vPH, x0, FB + 4 + s))
        at(st, CK[s], tick(f"{L}.zck{s}") + poll_check(vPH, x0, FB + 4 + s) + tick(f"{L}.zCK{s}"))
        n = CK[s]
        HS = o(f"HS{s}", ((14, 10, 15, 10), (7, 10, 10, 10))[N3][s])
        for j, x in enumerate(hloads(s)):
            q = 14 * s + j
            lo = (q if N3 else 2 * q + 1) if q < NR else S0 + 4 * ((q - NR) >> 1) + 3
            n = max(n, lo)
            assert n < S0 + 4 * (q >> 1), (s, j, n)
            at(st, n, x)
            n = max(n, CK[s] + (j + 1) * HS // 10)
    at(st, pos(o("B6", 210)), barrier() + tick(f"{L}.zB6"))
    for j, x in enumerate(kv):
        at(st, pos(o("KV0", 1)) + j * o("KVS", 20) // 10, x)
    if L == 0 and opt("WQ3", 0):
        wq = wq_items([2])
        wq[0] = I(f"s_sub_u32 {d1}, {d1}, 1024") + wq[0]
        for j, x in enumerate(wq):
            at(st, pos(opt("WQ3", 0)) + j * opt("WQS", 20) // 10, x)
    wa = [f"v{EX + i}" for i in range(4)]
    for i in range(4):
        at(st, S0 + 60 + i, [f"s_xor_b32 {u0}, {sW}, {i}", f"s_mul_i32 {u0}, {u0}, 12288", f"s_add_u32 {u0}, {u0}, {SL + 4096 * max(0, i - 1)}",
                             f"v_add_u32 {wa[i]}, {u0}, {vL16}"])
    if L == 0:
        at(st, S0 + 64, tile_addr(LX(1) + XIN_O, LX(1) + ST2_O))
    else:
        at(st, S0 + 64, [f"v_and_b32 {x2}, 31, {vL}", f"v_lshrrev_b32 v{GT}, 5, {vL}", f"v_lshlrev_b32 {x2}, 10, {x2}", f"v_lshl_add_u32 {x2}, v{GT}, 4, {x2}",
                         f"s_lshl_b32 {t1}, {sTP}, 15", f"s_lshl_b32 {t2}, {sCT}, 6", f"s_add_u32 {t1}, {t1}, {t2}"])
    P.add(I(spread(st[:NB_], ([] if G0X else G(0)) + G(1), 0.02, o("GHI", 90 if N3 else 62 if G0X else 97) / 100)))
    P.add(tick(f"{L}.pC"))
    P.add(I(st[NB_:S0]))
    P.add(tick(f"{L}.GX"))
    wv = ([] if G2X else G(2)) + ([] if G3X else G(3))
    P.add(I(spread(st[S0:S0 + 28], wv, 0.02, o("GH2", 95) / 100)))
    P.add(tick(f"{L}.S0"))
    P.add(I(st[S0 + 28:S0 + 56]))
    P.add(tick(f"{L}.S1"))
    P.add(I(st[S0 + 56:S0 + 84]))
    P.add(tick(f"{L}.S2"))
    g = st[S0 + 84:]
    wr = []
    for n in (3, 2, 1, 0):
        for e, i in enumerate(range(7 - NT, 7)):
            g.append(I(mf(3, i, n)))
            if e >= 1 or NT == 1:
                k = (len(wr) + (NT - e) - 1) // (NT - e)
                g.append(I(wr[:k])); wr = wr[k:]
        if n:
            wr = [f"ds_write_b128 {wa[n]}, {V(AB[n] + 4 * j)} offset:{1024 * j}" for j in range(4)]
    P.add(I(g))
    x, tmp = 48, XF
    for i in range(16):
        P(f"v_accvgpr_read_b32 v{x + i}, a{224 + i}")
    P.add(tick(f"{L}.S3"))
    P.add(barrier(*(["wkv"] if L == 0 else [])))
    for j in range(12):
        P(f"ds_read_b128 {V(tmp + 4 * j)}, {wa[0]} offset:{1024 * j}")
    for p in range(3):
        for i in range(8):
            P(f"v_pk_add_f32 {V(x + 2 * i, 2)}, {V(x + 2 * i, 2)}, {V(tmp + 16 * p + 2 * i, 2)}")
    if L == 0:
        tile_out(x, 16, 24, 8, [], None)
        for i in range(16):
            P(f"v_accvgpr_write_b32 a{224 + i}, v{x + i}")
        P.add(publish(8, x1))
        P.add(tick("0.p5end"))
    else:
        for i in range(8):
            P(f"v_cvt_pk_bf16_f32 v{16 + i}, v{x + 2 * i}, v{x + 2 * i + 1}")
        P(f"buffer_store_dwordx4 {V(16)}, {x2}, {sOUT}, {t1} offen {OM}")
        P(f"buffer_store_dwordx4 {V(20)}, {x2}, {sOUT}, {t1} offen offset:32 {OM}")
        if PROF:
            P.need("stores")
            P.add(tick("1.final"))
            P.add(prof_dump())
```
